```python
import torch

def _softmax(x, axis=-1):
    return torch.softmax(x, dim=axis)
def _gelu(x):
    return torch.nn.functional.gelu(x, approximate="tanh")
def _silu(x):
    return torch.nn.functional.silu(x)
def _sigmoid(x):
    return torch.sigmoid(x)
def _layernorm(x, axis=-1, eps=1e-5):
    m = x.mean(dim=axis, keepdim=True)
    v = x.var(dim=axis, keepdim=True, unbiased=False)
    return (x - m) / torch.sqrt(v + eps)
def _scatter_add(tgt, idx, src, axis=0):
    return tgt.clone().index_add_(axis, idx, src)
def _segment_sum(src, seg, n):
    out = torch.zeros((n,) + src.shape[1:], dtype=src.dtype)
    return out.index_add_(0, seg, src)
def _pad(x, pw):
    flat = tuple(v for pair in reversed(pw) for v in pair)
    return torch.nn.functional.pad(x, flat)

kernel_name = 'gated_mix__softmax_full_mha__sliding_block__prompt'

def setup_inputs():

    _w = (lambda a: (lambda t: t.to(torch.bfloat16) if t.is_floating_point() else t)(torch.as_tensor(a)))
    def _A_setup():
        B, S, D = 1, 2048, 512
        return {
            "x": _w((lambda *s: torch.randn(*s, dtype=torch.bfloat16) * 0.05)(B, S, D)),
            "wqkv": _w((lambda *s: torch.randn(*s, dtype=torch.bfloat16) * 1.6)(D, 3 * D)),
            "wo": _w((lambda *s: torch.randn(*s, dtype=torch.bfloat16) * 0.1)(D, D)),
        }
    _A_in = _A_setup()

    def _B_setup():
        B, S, D = 1, 2048, 512
        return {
            "x": _w((lambda *s: torch.randn(*s, dtype=torch.bfloat16) * 0.05)(B, S, D)),
            "wqkv": _w((lambda *s: torch.randn(*s, dtype=torch.bfloat16) * 1.6)(D, 3 * D)),
            "wo": _w((lambda *s: torch.randn(*s, dtype=torch.bfloat16) * 0.05)(D, D)),
        }
    _B_in = _B_setup()

    return {
        "A_x": _A_in["x"],
        "A_wqkv": _A_in["wqkv"],
        "A_wo": _A_in["wo"],
        "B_x": _B_in["x"],
        "B_wqkv": _B_in["wqkv"],
        "B_wo": _B_in["wo"],
        "gate_w": _w((lambda *s: torch.randn(*s, dtype=torch.bfloat16) * 0.05)(512) * 16.0),
    }

def reference(A_x, A_wqkv, A_wo, B_x, B_wqkv, B_wo, gate_w):
    def _A_ref(x, wqkv, wo):
        B, S, D = x.shape
        H = 32; Dh = D // H
        qkv = (lambda x, *d: x.permute(*d))((x @ wqkv).reshape(B, S, 3, H, Dh), 2, 0, 3, 1, 4)
        q, k, v = qkv[0], qkv[1], qkv[2]
        scale = Dh ** -0.5
        scores = torch.einsum("bhqd,bhkd->bhqk", q, k) * scale
        p = _softmax(scores, axis=-1)
        o = torch.einsum("bhqk,bhkd->bhqd", p, v)
        return (lambda x, *d: x.permute(*d))(o, 0, 2, 1, 3).reshape(B, S, D) @ wo

    def _B_ref(x, wqkv, wo):
        B, S, D = x.shape
        H = 32; Dh = D // H; W = 256
        qkv = (lambda x, *d: x.permute(*d))((x @ wqkv).reshape(B, S, 3, H, Dh), 2, 0, 3, 1, 4)
        q, k, v = qkv[0], qkv[1], qkv[2]
        scores = torch.einsum("bhqd,bhkd->bhqk", q, k) * (Dh ** -0.5)
        idx = torch.arange(S)
        mask = (idx[:, None] - idx[None, :] >= 0) & (idx[:, None] - idx[None, :] < W)
        scores = torch.where(mask[None, None], scores, -1e9)
        p = _softmax(scores, axis=-1)
        o = torch.einsum("bhqk,bhkd->bhqd", p, v)
        return (lambda x, *d: x.permute(*d))(o, 0, 2, 1, 3).reshape(B, S, D) @ wo

    x = A_x
    g = _sigmoid((x * gate_w).sum(-1, keepdims=True))
    a = _A_ref(x, A_wqkv, A_wo)
    b = _B_ref(x, B_wqkv, B_wo)
    return g * a + (1 - g) * b
```

```python
class Asm:
    def __init__(s): s.L=[]
    def __call__(s, *lines):
        for l in lines:
            if isinstance(l,(list,tuple)): s(*l)
            else:
                for x in l.split('\n'):
                    x=x.rstrip()
                    if not x.strip(): continue
                    t=x.strip()
                    if t.endswith(':') or t.startswith('.'): s.L.append(t)
                    else: s.L.append('    '+t)
    def text(s): return '\n'.join(s.L)+'\n'
def vr(a,n=1): return f"v{a}" if n==1 else f"v[{a}:{a+n-1}]"
def ar(a,n=1): return f"a{a}" if n==1 else f"a[{a}:{a+n-1}]"
def sr(a,n=1): return f"s{a}" if n==1 else f"s[{a}:{a+n-1}]"
def mfma32(d,a,b,c):
    cs = c if isinstance(c,str) else vr(c,16)
    return f"v_mfma_f32_32x32x16_bf16 {vr(d,16)}, {vr(a,4)}, {vr(b,4)}, {cs}"
def srd(A, s, base, size):
    A(f"s_mov_b32 s{s}, s{base}", f"s_and_b32 s{s+1}, s{base+1}, 0xffff", f"s_mov_b32 s{s+2}, {size}", f"s_mov_b32 s{s+3}, 0x00020000")
def kdesc(name, vgpr, sgpr=96, accum=None):
    if accum is None: accum=(vgpr+3)//4*4
    return f""".section .rodata,"a"
.p2align 6
.amdhsa_kernel {name}
  .amdhsa_next_free_vgpr {vgpr}
  .amdhsa_next_free_sgpr {sgpr}
  .amdhsa_accum_offset {accum}
  .amdhsa_group_segment_fixed_size 0
  .amdhsa_kernarg_size 80
  .amdhsa_user_sgpr_count 2
  .amdhsa_user_sgpr_kernarg_segment_ptr 1
  .amdhsa_system_sgpr_workgroup_id_x 1
  .amdhsa_float_denorm_mode_32 3
.end_amdhsa_kernel
.text
"""
```

```python
import re, sys

REG = re.compile(r'^(-|\|)?(v|s|a)(\d+)\|?$')
RNG = re.compile(r'^(-|\|)?(v|s|a)\[(\d+):(\d+)\]\|?$')

def regs_of(tok):
    tok = tok.strip()
    m = RNG.match(tok)
    if m: return {(m.group(2), i) for i in range(int(m.group(3)), int(m.group(4))+1)}
    m = REG.match(tok)
    if m: return {(m.group(2), int(m.group(3)))}
    if tok in ('vcc','vcc_lo','vcc_hi'): return {('vcc',0)}
    if tok in ('exec','exec_lo','exec_hi'): return {('exec',0)}
    if tok == 'm0': return {('m0',0)}
    if tok == 'scc': return {('scc',0)}
    return set()

TRANS = ('v_exp_f32','v_log_f32','v_rcp_f32','v_rsq_f32','v_sqrt_f32','v_sin_f32','v_cos_f32','v_rcp_iflag_f32','v_exp_f16','v_rcp_f16')

class I:
    __slots__=('line','op','defs','uses','kind','text','ws','target','passes','srcc','srcab','lds','wide_store','ops')
    def __repr__(s): return f"{s.line}: {s.text}"

def parse(text):
    ins=[]; labels={}
    for ln, raw in enumerate(text.split('\n'),1):
        t = raw.split(';')[0].split('//')[0].strip()
        if not t: continue
        m = re.match(r'^([\w.$]+):\s*(.*)$', t)
        if m:
            labels[m.group(1)] = len(ins); t = m.group(2).strip()
            if not t: continue
        if t.startswith('.'):
            if t.startswith('.section') or t.startswith('.amdhsa') or t.startswith('.end'):
                i=I(); i.line=ln; i.op='.dir'; i.text=t; i.defs=set(); i.uses=set(); i.kind='dir'; i.ws=0; i.target=None; i.passes=0; i.srcc=set(); i.srcab=set(); i.lds=False; i.wide_store=False; i.ops=[]
                ins.append(i)
            continue
        parts = t.split(None,1)
        op = parts[0]
        for suf in ('_e32','_e64','_sdwa','_dpp'):
            if op.endswith(suf): op = op[:-len(suf)]
        rest = parts[1] if len(parts)>1 else ''
        ops=[]; cur=''; d=0
        for ch in rest:
            if ch=='[': d+=1
            if ch==']': d-=1
            if ch==',' and d==0: ops.append(cur.strip()); cur=''
            else: cur+=ch
        if cur.strip(): ops.append(cur.strip())
        mods=''
        if ops:
            sp = ops[-1].split(None,1)
            ops[-1]=sp[0]
            mods = sp[1] if len(sp)>1 else ''
        i=I(); i.line=ln; i.op=op; i.text=t; i.ops=ops; i.target=None; i.passes=0; i.srcc=set(); i.srcab=set(); i.lds=False; i.wide_store=False
        i.ws=1
        R=[regs_of(o) for o in ops]
        U=lambda lst: set().union(*lst) if lst else set()
        if op=='s_nop':
            i.kind='nop'; i.ws=int(ops[0],0)+1; i.defs=set(); i.uses=set()
        elif op.startswith('v_mfma') or op.startswith('v_smfmac'):
            i.kind='mfma'; i.defs=R[0]; i.srcab=R[1]|R[2]; i.srcc=R[3] if len(R)>3 else set(); i.uses=i.srcab|i.srcc
            i.passes = 8 if '32x32' in op else 4
        elif op.startswith('v_cmpx'):
            i.kind='valu'; i.defs=R[0]|{('exec',0)}; i.uses=U(R[1:])
        elif op.startswith('v_cmp'):
            i.kind='valu'; i.defs=R[0]; i.uses=U(R[1:])
        elif op in ('v_readfirstlane_b32','v_readlane_b32'):
            i.kind='valu'; i.defs=R[0]; i.uses=U(R[1:])
        elif op.startswith('v_permlane') and 'swap' in op:
            i.kind='valu'; i.defs=R[0]|R[1]; i.uses=R[0]|R[1]
        elif op.startswith('v_add_co') or op.startswith('v_sub_co') or op.startswith('v_addc_co') or op.startswith('v_subb_co'):
            i.kind='valu'; i.defs=R[0]|R[1]; i.uses=U(R[2:])
        elif op.startswith('v_'):
            i.kind='valu'; i.defs=R[0]; i.uses=U(R[1:])
            if op.startswith('v_fmac') or op.startswith('v_dot2c') or op.startswith('v_mac') or op=='v_writelane_b32' or 'UNUSED_PRESERVE' in mods or op.startswith('v_pk_fmac'):
                i.uses|=R[0]
            if op.startswith('v_cndmask') and len(ops)==3: i.uses|={('vcc',0)}
            if op.startswith('v_div_fmas'): i.uses|={('vcc',0)}
        elif op.startswith('buffer_') or op.startswith('global_'):
            i.kind='vmem'
            lds = re.search(r'\blds\b', mods) is not None or 'load_lds' in op
            i.lds=lds
            if 'load' in op and not lds:
                i.defs=R[0]; i.uses=U(R[1:])
            elif lds:
                i.defs=set(); i.uses=U(R)|{('m0',0)}
            elif 'atomic' in op:
                ret = 'sc0' in mods
                if op.startswith('buffer_'):
                    i.defs=R[0] if ret else set(); i.uses=U(R)
                else:
                    i.defs=R[0] if ret else set(); i.uses=U(R[1:]) if ret else U(R)
            else:
                i.defs=set(); i.uses=U(R)
                if 'x4' in op or 'x3' in op:
                    i.wide_store=True
                    i.srcab = R[0] if op.startswith('buffer_') else R[1]
        elif op.startswith('ds_'):
            i.kind='ds'
            if 'read' in op or 'bpermute' in op or 'permute' in op or 'swizzle' in op:
                i.defs=R[0]; i.uses=U(R[1:])
            else:
                i.defs=set(); i.uses=U(R)
        elif op.startswith('s_load') or op.startswith('s_buffer_load') or op in('s_memtime','s_memrealtime'):
            i.kind='smem'; i.defs=R[0]; i.uses=U(R[1:])
        elif op in ('s_branch',) or op.startswith('s_cbranch'):
            i.kind='branch'; i.target=ops[0]; i.defs=set(); i.uses=set()
        elif op=='s_endpgm':
            i.kind='end'; i.defs=set(); i.uses=set()
        elif op.startswith('s_cmp') or op.startswith('s_bitcmp'):
            i.kind='salu'; i.defs={('scc',0)}; i.uses=U(R)
        elif op in ('s_waitcnt','s_barrier','s_setprio','s_sleep','s_sethalt','s_setreg_imm32_b32','s_setreg_b32'):
            i.kind='sopp'; i.defs=set(); i.uses=set()
        elif op.startswith('s_'):
            i.kind='salu'; i.defs=R[0] if R else set(); i.uses=U(R[1:])
            if 'saveexec' in op: i.defs=i.defs|{('exec',0)}; i.uses|={('exec',0)}
        else:
            raise Exception(f"unknown op line {ln}: {t}")
        ins.append(i)
    return ins, labels

def succ(ins, labels, k):
    i=ins[k]
    if i.kind in('end','dir'): return []
    out=[]
    if i.kind=='branch':
        out.append(labels[i.target])
        if i.op!='s_branch': out.append(k+1)
    else: out.append(k+1)
    return [x for x in out if x<len(ins)]

def is_v(r): return r[0] in ('v','a')

def need(p, c):
    n=0; why=''
    def upd(x,w):
        nonlocal n,why
        if x>n: n=x; why=w
    pv = {r for r in p.defs if is_v(r)}
    if p.kind=='valu':
        if c.kind=='mfma' and pv & c.uses: upd(2,'VALU write -> MFMA read')
        if p.op in TRANS and c.kind in('valu',) and c.op not in TRANS and pv & c.uses: upd(1,'trans -> valu')
        if p.op in TRANS and c.kind in('valu',) and c.op in TRANS and pv & c.uses: upd(0,'')
        if c.op.startswith('v_permlane') and pv & c.uses: upd(2,'VALU -> permlane')
        if c.op in('v_readfirstlane_b32','v_readlane_b32') and pv & c.uses: upd(1,'VALU -> readlane')
        ps = {r for r in p.defs if r[0] in('s','vcc')}
        if ps:
            if c.kind=='vmem' and ps & c.uses: upd(5,'VALU sgpr -> VMEM')
            if c.kind=='valu' and ps & c.uses: upd(2,'VALU sgpr/vcc -> VALU read')
            if c.op in('v_readlane_b32','v_writelane_b32') and ps & c.uses: upd(4,'VALU sgpr -> lane select')
        if ('exec',0) in p.defs:
            if c.kind=='mfma': upd(4,'VALU exec -> MFMA')
            if c.op.startswith('v_permlane') or c.op.startswith('v_read'): upd(4,'VALU exec -> lane op')
        if 'dpp' in c.text and pv & c.uses: upd(2,'VALU->DPP')
        if 'sdwa' in p.text and c.kind=='valu' and pv & (c.uses|c.defs): upd(1,'SDWA result')
        if 'op_sel' in p.text and c.kind=='valu' and pv & (c.uses|c.defs): upd(1,'opsel result')
    if p.kind=='mfma':
        P=p.passes
        D=p.defs
        if c.kind=='mfma':
            if D & c.srcc:
                if not (c.srcc==D and c.passes==P): upd({4:6,8:10}[P],'MFMA D -> partial srcC')
            if D & c.srcab: upd({4:8,8:12}[P],'MFMA D -> srcAB')
            if D & c.defs and not (D & c.srcc):
                upd({4:6,8:10}[P] if c.defs!=D else 0,'MFMA WAW partial')
        elif c.kind in('valu','vmem','ds'):
            if D & (c.uses|c.defs): upd({4:8,8:12}[P],'MFMA D -> VALU/mem')
        if c.kind=='valu' and (p.srcc & c.defs): upd({4:3,8:7}[P],'MFMA srcC WAR')
    if p.kind=='vmem' and p.wide_store:
        if c.kind=='valu' and (p.srcab & c.defs): upd(2,'wide store data WAR (valu)')
        elif (p.srcab & c.defs): upd(1,'wide store data WAR')
    if p.kind=='salu' and ('m0',0) in p.defs:
        if c.kind=='vmem' and c.lds: upd(1,'m0 -> lds dma')
    return n,why

def check(text, maxd=21, verbose=True):
    ins,labels=parse(text)
    bad=[]
    for k,p in enumerate(ins):
        if p.kind not in('valu','mfma','vmem','salu'): continue
        seen={}
        stack=[(s,0) for s in succ(ins,labels,k)]
        while stack:
            j,d=stack.pop()
            if d>=maxd: continue
            if seen.get(j,99)<=d: continue
            seen[j]=d
            c=ins[j]
            n,why=need(p,c)
            if n>d: bad.append((p,c,n,d,why))
            for s in succ(ins,labels,j): stack.append((s,d+c.ws))
    if verbose:
        for p,c,n,d,why in bad[:40]:
            print(f"HAZARD {why}: need {n} have {d}\n    {p}\n    {c}")
    return bad

if __name__=='__main__':
    b=check(open(sys.argv[1]).read())
    print(len(b),'hazards')
```

```python
from asm import *
QF=0; KF=4<<20; VF=8<<20; GOFF=12<<20; OF=16<<20; WS_SIZE=24<<20
QSCALE = 0.25*1.4426950408889634
import struct
def f2u(x): return struct.unpack('<I',struct.pack('<f',x))[0]

def gen_k1(name="qkv_kernel"):
    A=Asm()
    A(f".globl {name}", ".p2align 8", f".type {name},@function", f"{name}:")
    A("s_cmp_ge_u32 s2, 256", "s_cbranch_scc1 K1_done")
    A("s_load_dwordx2 s[4:5], s[0:1], 0",
      "s_load_dwordx2 s[6:7], s[0:1], 8",
      "s_load_dwordx2 s[8:9], s[0:1], 32",
      "s_load_dwordx2 s[10:11], s[0:1], 48",
      "s_load_dwordx2 s[34:35], s[0:1], 72")
    A("s_and_b32 s36, s2, 7",
      "s_lshr_b32 s37, s2, 3",
      "s_lshr_b32 s38, s36, 2",
      "s_lshl_b32 s38, s38, 3",
      "s_and_b32 s39, s37, 7",
      "s_add_u32 s29, s38, s39",
      "s_and_b32 s38, s36, 3",
      "s_lshl_b32 s38, s38, 2",
      "s_lshr_b32 s39, s37, 3",
      "s_add_u32 s33, s38, s39",
      "s_lshr_b32 s30, s33, 3",
      "s_and_b32 s31, s33, 7")
    A("v_lshrrev_b32 v1, 6, v0", "v_and_b32 v2, 63, v0", "s_nop 0", "v_readfirstlane_b32 s28, v1")
    A("s_waitcnt lgkmcnt(0)")
    srd(A,12,4,2048*512*2)
    A("s_cmp_eq_u32 s30, 0", "s_cselect_b32 s6, s6, s8", "s_cselect_b32 s7, s7, s9")
    srd(A,16,6,512*1536*2)
    srd(A,20,34,WS_SIZE)
    srd(A,24,10,1024)
    A("s_and_b32 s40, s28, 3",
      "s_lshr_b32 s41, s28, 2")
    lane=2
    vX=3; vW=4; t0=5; t1=6; t2=7
    A(f"v_lshrrev_b32 v{t0}, 3, v{lane}",
      f"s_lshl_b32 s42, s28, 3",
      f"v_add_u32 v{t0}, s42, v{t0}",
      f"v_lshrrev_b32 v{t1}, 1, v{t0}",
      f"v_and_b32 v{t1}, 7, v{t1}",
      f"v_and_b32 v{t2}, 7, v{lane}",
      f"v_xor_b32 v{t1}, v{t1}, v{t2}",
      f"v_lshlrev_b32 v{t1}, 4, v{t1}",
      f"s_lshl_b32 s43, s29, 7",
      f"v_add_u32 v{vX}, s43, v{t0}",
      f"v_lshlrev_b32 v{vX}, 10, v{vX}",
      f"v_add_u32 v{vX}, v{vX}, v{t1}")
    A(f"v_bfe_u32 v{t1}, v{lane}, 4, 1",
      f"v_lshlrev_b32 v{t1}, 2, v{t1}",
      f"v_xor_b32 v{t1}, v{t1}, v{t2}",
      f"v_lshlrev_b32 v{t1}, 4, v{t1}",
      f"s_mov_b32 s44, 3072",
      f"v_mul_lo_u32 v{vW}, v{t0}, s44",
      f"v_add_u32 v{vW}, v{vW}, v{t1}",
      f"s_lshl_b32 s45, s31, 7",
      f"v_add_u32 v{vW}, s45, v{vW}")
    STG=40960
    def dma(c):
        st=c%4
        A(f"s_lshl_b32 s46, s28, 10")
        A(f"s_add_u32 s47, s46, {st*STG}", "s_mov_b32 m0, s47", f"s_mov_b32 s48, {c*128}",
          f"buffer_load_dwordx4 v{vX}, s[12:15], s48 offen lds")
        A(f"s_add_u32 s47, s46, {st*STG+8192}", "s_mov_b32 m0, s47", f"s_mov_b32 s48, {c*128+65536}",
          f"buffer_load_dwordx4 v{vX}, s[12:15], s48 offen lds")
        for seg in range(3):
            A(f"s_add_u32 s47, s46, {st*STG+16384+seg*8192}", "s_mov_b32 m0, s47", f"s_mov_b32 s48, {c*64*3072+seg*1024}",
              f"buffer_load_dwordx4 v{vW}, s[16:19], s48 offen lds")
    A("s_cmp_eq_u32 s33, s29", "s_cselect_b32 s49, 1, 0", "s_cmp_eq_u32 s41, 0", "s_cselect_b32 s49, s49, 0")
    GW=128
    hh_t=8
    A(f"v_lshrrev_b32 v{hh_t}, 5, v{lane}")
    A("s_cmp_eq_u32 s49, 0", "s_cbranch_scc1 K1_nogateload")
    A(f"v_lshlrev_b32 v9, 4, v{hh_t}")
    for n in range(32):
        A(f"buffer_load_dwordx4 {vr(GW+4*n,4)}, v9, s[24:27], 0 offen offset:{n*32}")
    A("K1_nogateload:")
    for c in range(4): dma(c)
    aX=[10,11,12,13]; aX2=[14,15,16,17]; aW=18; aW2=19
    r=20
    A(f"v_and_b32 v{r}, 31, v{lane}",
      f"v_lshrrev_b32 v{t0}, 1, v{r}", f"v_and_b32 v{t0}, 7, v{t0}",
      f"s_lshl_b32 s42, s40, 5",
      f"v_add_u32 v{t1}, s42, v{r}",
      f"v_lshlrev_b32 v{t1}, 7, v{t1}")
    for s in range(4):
        A(f"v_or_b32 v{t2}, {2*s}, v{hh_t}",
          f"v_xor_b32 v{t2}, v{t2}, v{t0}",
          f"v_lshlrev_b32 v{t2}, 4, v{t2}",
          f"v_add_u32 v{aX[s]}, v{t1}, v{t2}",
          f"v_add_u32 v{aX2[s]}, {2*STG}, v{aX[s]}")
    A(f"v_bfe_u32 v{t0}, v{lane}, 2, 2",
      f"v_lshl_add_u32 v{t1}, v{hh_t}, 3, v{t0}",
      f"v_lshlrev_b32 v{t1}, 7, v{t1}",
      f"v_bfe_u32 v{t2}, v{lane}, 4, 1",
      f"v_lshlrev_b32 v{t2}, 1, v{t2}",
      f"v_bfe_u32 v21, v{lane}, 1, 1",
      f"v_add_u32 v{t2}, v{t2}, v21",
      f"s_lshl_b32 s42, s41, 2",
      f"v_add_u32 v{t2}, s42, v{t2}",
      f"v_bfe_u32 v21, v{lane}, 3, 1",
      f"v_lshlrev_b32 v21, 2, v21",
      f"v_xor_b32 v{t2}, v{t2}, v21",
      f"v_lshlrev_b32 v{t2}, 4, v{t2}",
      f"v_add_u32 v{t1}, v{t1}, v{t2}",
      f"v_and_b32 v21, 1, v{lane}",
      f"v_lshlrev_b32 v21, 3, v21",
      f"v_add_u32 v{t1}, v{t1}, v21",
      f"v_add_u32 v{aW}, 16384, v{t1}",
      f"v_add_u32 v{aW2}, {16384+2*STG}, v{t1}")
    TQ=32; TK=48; TV=64
    XF=[80,84]; WF=[[88,92,96],[100,104,108]]
    GA=22
    for i in range(48): A(f"v_mov_b32 v{TQ+i}, 0")
    A(f"v_mov_b32 v{GA}, 0")
    def reads(n):
        c,s=divmod(n,4); st=c%4; b=n%2
        ax = aX[s] if st<2 else aX2[s]; aw = aW if st<2 else aW2
        so = (st%2)*STG
        L=[f"ds_read_b128 {vr(XF[b],4)}, v{ax} offset:{so}"]
        for seg in range(3):
            for rr in range(2):
                L.append(f"ds_read_b64_tr_b16 {vr(WF[b][seg]+2*rr,2)}, v{aw} offset:{so+seg*8192+(16*s+4*rr)*128}")
        return L
    def mainloop(gate, tag):
        A("s_waitcnt vmcnt(15)", "s_barrier")
        A(reads(0))
        for n in range(32):
            c,s=divmod(n,4); b=n%2
            if s==3 and c<7:
                X = 5*(min(c+3,7)-(c+1))
                A("s_waitcnt lgkmcnt(0)", f"s_waitcnt vmcnt({X})", "s_barrier")
                A(reads(n+1))
                if c+4<=7: dma(c+4)
            elif n<31:
                A(reads(n+1))
                A("s_waitcnt lgkmcnt(7)")
            else:
                A("s_waitcnt lgkmcnt(0)")
            A(mfma32(TQ, WF[b][0], XF[b], TQ))
            if gate:
                A(f"v_dot2_f32_bf16 v{GA}, v{XF[b]}, v{GW+4*n}, v{GA}", f"v_dot2_f32_bf16 v{GA}, v{XF[b]+1}, v{GW+4*n+1}, v{GA}")
            A(mfma32(TK, WF[b][1], XF[b], TK))
            if gate:
                A(f"v_dot2_f32_bf16 v{GA}, v{XF[b]+2}, v{GW+4*n+2}, v{GA}", f"v_dot2_f32_bf16 v{GA}, v{XF[b]+3}, v{GW+4*n+3}, v{GA}")
            A(mfma32(TV, XF[b], WF[b][2], TV))
    A("s_cmp_eq_u32 s49, 0", "s_cbranch_scc1 K1_main_nogate")
    mainloop(True,"g")
    A("s_nop 1",
      f"v_mov_b32 v23, v{GA}", "s_nop 1",
      f"v_permlane32_swap_b32 v23, v{GA}",
      "s_nop 1",
      f"v_add_f32 v{GA}, v23, v{GA}",
      f"v_mul_f32 v{GA}, {hex(f2u(-1.4426950408889634))}, v{GA}",
      f"v_exp_f32 v{GA}, v{GA}", "s_nop 0",
      f"v_add_f32 v{GA}, 1.0, v{GA}",
      f"v_rcp_f32 v{GA}, v{GA}",
      f"s_lshl_b32 s42, s29, 7", f"s_lshl_b32 s43, s40, 5", "s_add_u32 s42, s42, s43",
      f"v_add_u32 v23, s42, v{r}", "v_lshlrev_b32 v23, 2, v23",
      f"s_mov_b32 s43, {GOFF}",
      f"buffer_store_dword v{GA}, v23, s[20:23], s43 offen")
    A("s_branch K1_epi")
    A("K1_main_nogate:")
    mainloop(False,"n")
    A("K1_epi:")
    A("s_lshl_b32 s42, s31, 2", "s_lshl_b32 s43, s41, 1", "s_add_u32 s42, s42, s43",
      "s_lshl_b32 s43, s30, 5", "s_add_u32 s42, s42, s43",
      "s_lshl_b32 s42, s42, 16",
      "s_lshl_b32 s43, s29, 2", "s_add_u32 s43, s43, s40", "s_lshl_b32 s43, s43, 10",
      "s_add_u32 s42, s42, s43")
    A(f"v_lshlrev_b32 v24, 4, v{lane}")
    A(f"s_mov_b32 s44, {hex(f2u(QSCALE))}")
    A("s_nop 7")
    PK=80
    for i in range(16): A(f"v_mul_f32 v{TQ+i}, s44, v{TQ+i}")
    for i in range(8): A(f"v_cvt_pk_bf16_f32 v{PK+i}, v{TQ+2*i}, v{TQ+2*i+1}")
    A(f"s_add_u32 s45, s42, {QF}", f"s_add_u32 s46, s45, 65536")
    A(f"buffer_store_dwordx4 {vr(PK,4)}, v24, s[20:23], s45 offen", f"buffer_store_dwordx4 {vr(PK+4,4)}, v24, s[20:23], s46 offen")
    for i in range(8): A(f"v_cvt_pk_bf16_f32 v{PK+8+i}, v{TK+2*i}, v{TK+2*i+1}")
    A(f"s_add_u32 s45, s42, {KF}", f"s_add_u32 s46, s45, 65536")
    A(f"buffer_store_dwordx4 {vr(PK+8,4)}, v24, s[20:23], s45 offen", f"buffer_store_dwordx4 {vr(PK+12,4)}, v24, s[20:23], s46 offen")
    A(f"v_bfe_u32 v25, v{lane}, 4, 1", "v_lshlrev_b32 v25, 16, v25",
      f"v_lshl_add_u32 v25, v{hh_t}, 8, v25",
      f"v_and_b32 v26, 15, v{lane}", "v_lshl_add_u32 v25, v26, 4, v25")
    for i in range(8): A(f"v_cvt_pk_bf16_f32 v{PK+16+i}, v{TV+2*i}, v{TV+2*i+1}")
    A(f"s_add_u32 s45, s42, {VF}")
    A(f"buffer_store_dwordx4 {vr(PK+16,4)}, v25, s[20:23], s45 offen", f"buffer_store_dwordx4 {vr(PK+20,4)}, v25, s[20:23], s45 offen offset:512")
    A("K1_done:", "s_endpgm")
    return A.text(), kdesc(name, 256)
```

```python
from asm import *
from k1 import QF,KF,VF,GOFF,OF,WS_SIZE,f2u
NEG = f2u(-2.0**100)
LLO = f2u(2.0**-64); LHI = f2u(2.0**64)

LANE=1
QA0=4; QA1=8; QB=12
OA0=16; OA1=32
S0=48; S1=64
P=80
KB_=88
VB_=96
MF=112; MD=128
CB=144
vKa=160; vVa=161
vG=162; vL16=163; vT=164; vT2=165; vT3=166; vNEGM=167; vM=168; vKs=169; vVs=170; vX0=172
NV=184
LDS_KA=0; LDS_VA=65536; LDS_KB=131072; LDS_VB=147456

def exps(S): return [f"v_exp_f32 v{S+i}, v{S+i}" for i in range(16)]
def cvts(S): return [f"v_cvt_pk_bf16_f32 v{P+i}, v{S+2*i}, v{S+2*i+1}" for i in range(8)]
MK=["s_mov_b64 exec, s[40:41]"]; UM=["s_mov_b64 exec, -1"]

def unit(A, Sc, QK, PV1, ld, wK, wV, PV0):
    e=exps(Sc); c=cvts(Sc)
    A(wK, QK)
    A(e[0:4], c[0], e[4:6], c[1])
    A(PV1, ld)
    A(e[6:8], c[2], e[8:10], c[3], e[10:12])
    A(wV, PV0)
    A(e[12:13], c[4], e[13:15], c[5], e[15:16], c[6], c[7])

def slow_pass(A, tag, Q, O, pass1, far_sgpr, diag_sgpr, n_sgpr):
    A(f"v_mov_b32 v{vX0}, v{vKs}", f"v_mov_b32 v{vX0+1}, v{vVs}", "s_mov_b32 s60, 0")
    if pass1: A(f"v_mov_b32 v{vM}, {hex(NEG)}", f"v_mov_b32 v{vNEGM}, 0")
    else:
        for i in range(16): A(f"v_mov_b32 v{O+i}, 0")
    A(f"L_{tag}_loop:")
    A(f"ds_read_b128 {vr(KB_,4)}, v{vX0}")
    if not pass1:
        A(MK, f"ds_read_b128 {vr(VB_,4)}, v{vX0+1}", f"ds_read_b128 {vr(VB_+4,4)}, v{vX0+1} offset:512", UM)
    A("s_cmp_eq_u32 s60, 0", f"s_cselect_b32 s61, s{far_sgpr}, 0", "s_cmp_lg_u32 s61, 0", f"s_cbranch_scc1 L_{tag}_far")
    A(f"s_add_u32 s61, s60, 1", f"s_cmp_eq_u32 s61, s{n_sgpr}", f"s_cselect_b32 s61, s{diag_sgpr}, 0", "s_cmp_lg_u32 s61, 0", f"s_cbranch_scc1 L_{tag}_diag")
    for i in range(16): A(f"v_mov_b32 v{CB+i}, v{vNEGM}")
    A(f"s_branch L_{tag}_go")
    A(f"L_{tag}_far:")
    for i in range(16): A(f"v_add_f32 v{CB+i}, v{MF+i}, v{vNEGM}")
    A(f"s_branch L_{tag}_go")
    A(f"L_{tag}_diag:")
    for i in range(16): A(f"v_add_f32 v{CB+i}, v{MD+i}, v{vNEGM}")
    A(f"L_{tag}_go:")
    A("s_waitcnt lgkmcnt(0)", "s_nop 0")
    A(mfma32(S0, KB_, Q, CB))
    A("s_nop 7","s_nop 3")
    if pass1:
        for i in range(16): A(f"v_max_f32 v{vM}, v{vM}, v{S0+i}")
    else:
        A(exps(S0), "s_nop 0", cvts(S0), "s_nop 1")
        A(mfma32(O, VB_, P, O), mfma32(O, VB_+4, P+4, O))
    A(f"v_add_u32 v{vX0}, 1024, v{vX0}", f"v_add_u32 v{vX0+1}, 1024, v{vX0+1}")
    A("s_add_u32 s60, s60, 1", f"s_cmp_lt_u32 s60, s{n_sgpr}", f"s_cbranch_scc1 L_{tag}_loop")
    if pass1:
        A(f"v_mov_b32 v{vT}, v{vM}", "s_nop 1", f"v_permlane32_swap_b32 v{vT}, v{vM}", "s_nop 1",
          f"v_max_f32 v{vM}, v{vM}, v{vT}", f"v_sub_f32 v{vNEGM}, 0, v{vM}")
    else:
        A("s_nop 7","s_nop 3")

def check_range(A, O, okl):
    A(f"v_mov_b32 v{vT}, v{O+8}")
    for i in range(8): A(f"v_fma_f32 v{vT}, v{O+i}, 0, v{vT}")
    A(f"s_mov_b32 s62, {hex(LLO)}", f"s_mov_b32 s63, {hex(LHI)}")
    A(f"v_cmp_le_f32 s[64:65], s62, v{vT}", f"v_cmp_ge_f32 s[66:67], s63, v{vT}", "s_nop 1",
      "s_and_b64 s[64:65], s[64:65], s[66:67]", "s_cmp_eq_u64 s[64:65], -1", f"s_cbranch_scc1 {okl}")

def finalize(A, O, scale_reg, soff_sgpr):
    A(f"v_rcp_f32 v{vT}, v{O+8}", "s_nop 0", f"v_mul_f32 v{vT}, v{vT}, v{scale_reg}")
    for i in range(8): A(f"v_mul_f32 v{O+i}, v{O+i}, v{vT}")
    for i in range(4): A(f"v_cvt_pk_bf16_f32 v{vX0+4+i}, v{O+2*i}, v{O+2*i+1}")
    A(f"buffer_store_dwordx4 {vr(vX0+4,4)}, v{vL16}, s[8:11], s{soff_sgpr} offen")

def gen_k2(name="attn_kernel"):
    A=Asm()
    A(f".globl {name}", ".p2align 8", f".type {name},@function", f"{name}:")
    A("s_cmp_ge_u32 s2, 256", "s_cbranch_scc1 K2_done")
    A("s_load_dwordx2 s[4:5], s[0:1], 72")
    A("s_and_b32 s12, s2, 31",
      "s_lshr_b32 s13, s2, 5")
    A(f"v_lshrrev_b32 v2, 6, v0", f"v_and_b32 v{LANE}, 63, v0", "s_nop 0", "v_readfirstlane_b32 s14, v2")
    A("s_waitcnt lgkmcnt(0)")
    srd(A,8,4,WS_SIZE)
    A("s_and_b32 s15, s14, 3",
      "s_lshr_b32 s16, s14, 2",
      "s_lshl_b32 s17, s15, 1", "s_add_u32 s17, s17, s16",
      "s_lshl_b32 s18, s13, 3",
      "s_add_u32 s19, s18, s17",
      "s_lshl_b32 s20, s12, 16",
      f"s_add_u32 s21, s20, {32*65536}")
    A(f"v_lshlrev_b32 v{vL16}, 4, v{LANE}")
    A("s_lshl_b32 s22, s19, 10", "s_add_u32 s22, s22, s21", f"s_add_u32 s22, s22, {QF}",
      f"buffer_load_dwordx4 {vr(QB,4)}, v{vL16}, s[8:11], s22 offen")
    A(f"v_and_b32 v{vT}, 31, v{LANE}", "s_lshl_b32 s23, s19, 5", f"v_add_u32 v{vT2}, s23, v{vT}", f"v_lshlrev_b32 v{vT2}, 2, v{vT2}",
      f"s_mov_b32 s24, {GOFF}", f"buffer_load_dword v{vG}, v{vT2}, s[8:11], s24 offen")
    for ii in range(2):
        A(f"s_add_u32 s25, s14, {8*ii}",
          "s_add_u32 s26, s18, s25", "s_sub_u32 s26, s26, 8", "s_max_i32 s26, s26, 0",
          "s_lshl_b32 s26, s26, 10", "s_add_u32 s26, s26, s21",
          "s_lshl_b32 s25, s25, 10")
        A(f"s_add_u32 s27, s25, {LDS_KB}", "s_mov_b32 m0, s27", f"s_add_u32 s28, s26, {KF}",
          f"buffer_load_dwordx4 v{vL16}, s[8:11], s28 offen lds")
        A(f"s_add_u32 s27, s25, {LDS_VB}", "s_mov_b32 m0, s27", f"s_add_u32 s28, s26, {VF}",
          f"buffer_load_dwordx4 v{vL16}, s[8:11], s28 offen lds")
    A("s_lshl_b32 s22, s15, 1", "s_add_u32 s22, s22, s18", "s_lshl_b32 s22, s22, 10", "s_add_u32 s22, s22, s20", f"s_add_u32 s22, s22, {QF}",
      f"buffer_load_dwordx4 {vr(QA0,4)}, v{vL16}, s[8:11], s22 offen",
      f"buffer_load_dwordx4 {vr(QA1,4)}, v{vL16}, s[8:11], s22 offen offset:1024")
    A("s_lshl_b32 s25, s14, 10", "s_add_u32 s26, s25, s20")
    for m in range(8):
        A(f"s_add_u32 s27, s25, {LDS_KA+m*8192}", "s_mov_b32 m0, s27", f"s_add_u32 s28, s26, {KF+m*8192}",
          f"buffer_load_dwordx4 v{vL16}, s[8:11], s28 offen lds")
        A(f"s_add_u32 s27, s25, {LDS_VA+m*8192}", "s_mov_b32 m0, s27", f"s_add_u32 s28, s26, {VF+m*8192}",
          f"buffer_load_dwordx4 v{vL16}, s[8:11], s28 offen lds")
    A("s_mov_b32 s40, 0x0000ffff", "s_mov_b32 s41, 0x0000ffff")
    for i in range(16): A(f"v_mov_b32 v{VB_+i}, 0x3f803f80")
    hh=vT3
    A(f"v_lshrrev_b32 v{hh}, 5, v{LANE}", f"v_lshlrev_b32 v{vT2}, 2, v{hh}", f"v_sub_u32 v{vT2}, v{vT}, v{vT2}")
    A(f"v_mov_b32 v{vX0}, {hex(NEG)}")
    for g in range(4):
        for k in range(4):
            i=4*g+k; ci=8*g+k
            A(f"v_cmp_gt_i32 s[{44+2*k}:{45+2*k}], {ci}, v{vT2}")
        A("s_nop 0")
        for k in range(4):
            i=4*g+k
            A(f"v_cndmask_b32 v{MF+i}, v{vX0}, 0, s[{44+2*k}:{45+2*k}]", f"v_cndmask_b32 v{MD+i}, 0, v{vX0}, s[{44+2*k}:{45+2*k}]")
    A(f"v_and_b32 v{vT}, 15, v{LANE}", f"v_lshlrev_b32 v{vT}, 4, v{vT}", f"v_lshl_add_u32 v{vT}, v{hh}, 8, v{vT}")
    A(f"v_mov_b32 v{vX0+11}, v{vT}")
    VL=vX0+11
    A("s_lshl_b32 s25, s17, 10", f"s_add_u32 s26, s25, {LDS_KB}", f"v_add_u32 v{vKa}, s26, v{vL16}",
      f"s_add_u32 s26, s25, {LDS_VB}", f"v_add_u32 v{vVa}, s26, v{VL}")
    A("s_lshl_b32 s30, s19, 16", "s_lshl_b32 s31, s12, 10", "s_add_u32 s30, s30, s31", f"s_add_u32 s30, s30, {OF}",
      "s_add_u32 s31, s30, 32768")
    A("s_waitcnt vmcnt(18)", "s_barrier")
    OB=OA0
    A("s_cmp_eq_u32 s13, 0", "s_cbranch_scc1 K2_B_zero")
    for i in range(16): A(f"v_mov_b32 v{OB+i}, 0")
    def ldK(t,base): return [f"ds_read_b128 {vr(KB_+4*(t%2),4)}, v{base} offset:{t*1024}"]
    def ldV(t,base): return MK+[f"ds_read_b128 {vr(VB_+8*(t%2),4)}, v{base} offset:{t*1024}", f"ds_read_b128 {vr(VB_+8*(t%2)+4,4)}, v{base} offset:{t*1024+512}"]+UM
    NB=9
    A(ldK(0,vKa), ldV(0,vVa), ldK(1,vKa))
    A("s_waitcnt lgkmcnt(3)")
    A(mfma32(S0, KB_, QB, MF))
    for t in range(NB):
        Sc=S0 if t%2==0 else S1; Sn=S1 if t%2==0 else S0
        if t+1<NB:
            QK=[mfma32(Sn, KB_+4*((t+1)%2), QB, MD if t+1==NB-1 else "0")]
            wK=["s_waitcnt lgkmcnt(0)"] if t==0 else ["s_waitcnt lgkmcnt(2)"]
        else: QK=[]; wK=[]
        PV1=[mfma32(OB, VB_+8*((t-1)%2)+4, P+4, OB)] if t>0 else []
        ld=[]
        if t+2<NB: ld+=ldK(t+2,vKa)
        if t+1<NB: ld+=ldV(t+1,vVa)
        nld = (1 if t+2<NB else 0)+(2 if t+1<NB else 0)
        wV=[f"s_waitcnt lgkmcnt({nld})"]
        PV0=[mfma32(OB, VB_+8*(t%2), P, OB)]
        if t==0:
            A("s_nop 7","s_nop 3")
        unit(A,Sc,QK,PV1,ld,wK,wV,PV0)
    A("s_nop 1", mfma32(OB, VB_+8*((NB-1)%2)+4, P+4, OB))
    A("s_nop 7","s_nop 3")
    A("s_mov_b32 s50, 1", "s_mov_b32 s51, 1", "s_mov_b32 s52, 9")
    A(f"v_mov_b32 v{vKs}, v{vKa}", f"v_mov_b32 v{vVs}, v{vVa}")
    A("s_branch K2_B_check")
    A("K2_B_zero:")
    A("s_mov_b32 s50, 0", "s_mov_b32 s51, 1", "s_add_u32 s52, s17, 1")
    A(f"v_add_u32 v{vKs}, {LDS_KB+8192}, v{vL16}", f"v_add_u32 v{vVs}, {LDS_VB+8192}, v{VL}", f"v_mov_b32 v{vNEGM}, 0")
    slow_pass(A,"bz",QB,OB,False,50,51,52)
    A("K2_B_check:")
    check_range(A,OB,"K2_B_ok")
    slow_pass(A,"bf1",QB,OB,True,50,51,52)
    slow_pass(A,"bf2",QB,OB,False,50,51,52)
    A("K2_B_ok:")
    A(f"v_sub_f32 v{vT2}, 1.0, v{vG}")
    finalize(A,OB,vT2,31)
    A("s_waitcnt vmcnt(1)", "s_barrier")
    A("s_lshl_b32 s25, s16, 15",
      f"v_add_u32 v{vKa}, s25, v{vL16}", f"s_add_u32 s26, s25, {LDS_VA}", f"v_add_u32 v{vVa}, s26, v{VL}")
    for i in range(32): A(f"v_mov_b32 v{OA0+i}, 0")
    A(f"v_mov_b32 v{P+4}, 0", f"v_mov_b32 v{P+5}, 0", f"v_mov_b32 v{P+6}, 0", f"v_mov_b32 v{P+7}, 0")
    Qr=[QA0,QA1]; Or=[OA0,OA1]
    A(ldK(0,vKa), ldV(0,vVa))
    A("s_waitcnt lgkmcnt(2)")
    A(mfma32(S0, KB_, QA0, "0"))
    A("s_mov_b32 s53, 4", "s_nop 7", "s_nop 2")
    A(".p2align 3", "K2_A_loop:")
    NK=8
    units=[(t,qi) for t in range(NK) for qi in range(2)]
    for u,(t,qi) in enumerate(units):
        Sc=S0 if u%2==0 else S1; Sn=S1 if u%2==0 else S0
        tn,qn=(t,1) if qi==0 else (t+1,0)
        tp,qp=(t-1,1) if qi==0 else (t,0)
        QK=[mfma32(Sn, KB_+4*(tn%2), Qr[qn], "0")]
        PV1=[mfma32(Or[qp], VB_+8*(tp%2)+4, P+4, Or[qp])]
        PV0=[mfma32(Or[qi], VB_+8*(t%2), P, Or[qi])]
        ld=[];wK=[];wV=[]
        if qi==0:
            ld=ldK(t+1,vKa)+ldV(t+1,vVa); wV=["s_waitcnt lgkmcnt(3)"]
        else:
            wK=["s_waitcnt lgkmcnt(2)"]
        unit(A,Sc,QK,PV1,ld,wK,wV,PV0)
    A(f"v_add_u32 v{vKa}, {NK*1024}, v{vKa}", f"v_add_u32 v{vVa}, {NK*1024}, v{vVa}")
    A("s_sub_u32 s53, s53, 1", "s_cmp_lg_u32 s53, 0", "s_cbranch_scc1 K2_A_loop")
    A(mfma32(OA1, VB_+8*((NK-1)%2)+4, P+4, OA1))
    A("s_waitcnt lgkmcnt(0)", "s_nop 7", "s_nop 3")
    A("s_cmp_eq_u32 s16, 0", "s_cbranch_scc1 K2_X0")
    for i in range(9):
        A(f"v_mov_b32 v{vT}, v{OA0+i}", f"v_mov_b32 v{OA0+i}, v{OA1+i}", f"v_mov_b32 v{OA1+i}, v{vT}")
    A("K2_X0:")
    A(f"s_mul_i32 s25, s14, 2560", f"s_add_u32 s25, s25, {LDS_KB}", f"v_add_u32 v{vT}, s25, v{vL16}",
      f"v_lshlrev_b32 v{vT2}, 2, v{LANE}", f"v_add_u32 v{vT2}, s25, v{vT2}")
    A(f"ds_write_b128 v{vT}, {vr(OA1,4)}", f"ds_write_b128 v{vT}, {vr(OA1+4,4)} offset:1024", f"ds_write_b32 v{vT2}, v{OA1+8} offset:2048")
    A("s_xor_b32 s26, s14, 4", f"s_mul_i32 s25, s26, 2560", f"s_add_u32 s25, s25, {LDS_KB}", f"v_add_u32 v{vT}, s25, v{vL16}",
      f"v_lshlrev_b32 v{vT2}, 2, v{LANE}", f"v_add_u32 v{vT2}, s25, v{vT2}")
    A("s_waitcnt lgkmcnt(0)", "s_barrier")
    A(f"ds_read_b128 {vr(S0,4)}, v{vT}", f"ds_read_b128 {vr(S0+4,4)}, v{vT} offset:1024", f"ds_read_b32 v{S0+8}, v{vT2} offset:2048")
    A("s_waitcnt lgkmcnt(0)")
    for i in range(9): A(f"v_add_f32 v{OA0+i}, v{OA0+i}, v{S0+i}")
    check_range(A,OA0,"K2_A_ok")
    A("s_cmp_eq_u32 s16, 0", "s_cbranch_scc1 K2_AF0")
    for i in range(4): A(f"v_mov_b32 v{QA0+i}, v{QA1+i}")
    A("K2_AF0:")
    A("s_mov_b32 s50, 0", "s_mov_b32 s51, 0", "s_mov_b32 s52, 64")
    A(f"v_add_u32 v{vKs}, {LDS_KA}, v{vL16}", f"v_add_u32 v{vVs}, {LDS_VA}, v{VL}")
    slow_pass(A,"af1",QA0,OA0,True,50,51,52)
    slow_pass(A,"af2",QA0,OA0,False,50,51,52)
    A("K2_A_ok:")
    finalize(A,OA0,vG,30)
    A("K2_done:", "s_endpgm")
    return A.text(), kdesc(name, NV)
```

```python
from asm import *
from k1 import QF,KF,VF,GOFF,OF,WS_SIZE,f2u
def gen_k3(name="oproj_kernel"):
    A=Asm()
    A(f".globl {name}", ".p2align 8", f".type {name},@function", f"{name}:")
    A("s_cmp_ge_u32 s2, 256", "s_cbranch_scc1 K3_done")
    A("s_load_dwordx2 s[4:5], s[0:1], 72", "s_load_dwordx2 s[6:7], s[0:1], 16", "s_load_dwordx2 s[24:25], s[0:1], 40", "s_load_dwordx2 s[26:27], s[0:1], 56")
    A("s_and_b32 s28, s2, 31",
      "s_lshr_b32 s29, s2, 5")
    A("v_lshrrev_b32 v2, 6, v0", "v_and_b32 v1, 63, v0", "s_nop 0", "v_readfirstlane_b32 s30, v2")
    A("s_waitcnt lgkmcnt(0)")
    srd(A,8,4,WS_SIZE); srd(A,12,6,512*512*2); srd(A,16,24,512*512*2); srd(A,20,26,2048*512*2)
    A("s_and_b32 s31, s30, 1", "s_lshr_b32 s32, s30, 1")
    vL16=3; vW=4
    A(f"v_lshlrev_b32 v{vL16}, 4, v1")
    A("v_lshrrev_b32 v5, 3, v1", "v_lshlrev_b32 v5, 10, v5", "v_bfe_u32 v6, v1, 4, 1", "v_lshlrev_b32 v6, 2, v6", "v_and_b32 v7, 7, v1", "v_xor_b32 v6, v6, v7",
      "v_lshlrev_b32 v6, 4, v6", "v_add_u32 v5, v5, v6", "s_lshl_b32 s33, s29, 7", f"v_add_u32 v{vW}, s33, v5")
    STG=32768
    A("s_lshl_b32 s34, s28, 17", f"s_add_u32 s34, s34, {OF}",
      "s_lshr_b32 s35, s30, 1", "s_lshl_b32 s36, s35, 16", "s_add_u32 s34, s34, s36",
      "s_and_b32 s36, s30, 1", "s_lshl_b32 s36, s36, 12", "s_add_u32 s34, s34, s36",
      "s_lshl_b32 s37, s30, 12",
      "s_lshl_b32 s38, s30, 15")
    def dma(c):
        st=c%4
        for ii in range(4):
            A(f"s_add_u32 s40, s37, {st*STG+ii*1024}", "s_mov_b32 m0, s40", f"s_add_u32 s41, s34, {c*8192+ii*1024}",
              f"buffer_load_dwordx4 v{vL16}, s[8:11], s41 offen lds")
        sw = "s[12:15]" if c<4 else "s[16:19]"
        for ii in range(4):
            A(f"s_add_u32 s40, s37, {st*STG+16384+ii*1024}", "s_mov_b32 m0, s40", f"s_add_u32 s41, s38, {(c%4)*131072+ii*8192}",
              f"buffer_load_dwordx4 v{vW}, {sw}, s41 offen lds")
    for c in range(4): dma(c)
    aO=[10,11]; aW=[12,13]
    A("s_lshl_b32 s42, s31, 13", f"v_add_u32 v{aO[0]}, s42, v{vL16}", f"v_add_u32 v{aO[1]}, {2*STG}, v{aO[0]}")
    A("v_lshrrev_b32 v8, 5, v1",
      "v_bfe_u32 v5, v1, 2, 2", "v_lshl_add_u32 v5, v8, 2, v5", "v_lshlrev_b32 v5, 7, v5",
      "v_bfe_u32 v6, v1, 4, 1", "v_lshlrev_b32 v6, 1, v6", "v_bfe_u32 v7, v1, 1, 1", "v_add_u32 v6, v6, v7",
      "s_lshl_b32 s42, s32, 2", "v_add_u32 v6, s42, v6",
      "v_bfe_u32 v7, v1, 3, 1", "v_lshlrev_b32 v7, 2, v7", "v_xor_b32 v6, v6, v7", "v_lshlrev_b32 v6, 4, v6", "v_add_u32 v5, v5, v6",
      "v_and_b32 v7, 1, v1", "v_lshlrev_b32 v7, 3, v7", "v_add_u32 v5, v5, v7",
      f"v_add_u32 v{aW[0]}, 16384, v5", f"v_add_u32 v{aW[1]}, {16384+2*STG}, v5")
    ACC=16; OFr=[32,36,40,44]; WFr=[48,52,56,60]
    for i in range(16): A(f"v_mov_b32 v{ACC+i}, 0")
    def reads(n):
        c,s=divmod(n,8); st=c%4; b=n%4
        so=(st%2)*STG
        return [f"ds_read_b128 {vr(OFr[b],4)}, v{aO[st//2]} offset:{so+s*1024}",
                f"ds_read_b64_tr_b16 {vr(WFr[b],2)}, v{aW[st//2]} offset:{so+(16*s)*128}",
                f"ds_read_b64_tr_b16 {vr(WFr[b]+2,2)}, v{aW[st//2]} offset:{so+(16*s+8)*128}"]
    A("s_waitcnt vmcnt(24)", "s_barrier")
    A(reads(0), reads(1))
    for n in range(64):
        c,s=divmod(n,8); b=n%4
        if s==6 and c<7:
            X=8*(min(c+3,7)-(c+1))
            A("s_waitcnt lgkmcnt(0)", f"s_waitcnt vmcnt({X})", "s_barrier")
            A(reads(n+2))
            if c+4<=7: dma(c+4)
        elif n+2<64:
            A(reads(n+2))
            A("s_waitcnt lgkmcnt(6)")
        elif n==62: A("s_waitcnt lgkmcnt(3)")
        else: A("s_waitcnt lgkmcnt(0)")
        A(mfma32(ACC, WFr[b], OFr[b], ACC))
    A("s_nop 7","s_nop 3")
    PK=32
    for i in range(8): A(f"v_cvt_pk_bf16_f32 v{PK+i}, v{ACC+2*i}, v{ACC+2*i+1}")
    A("s_nop 1")
    A(f"v_permlane32_swap_b32 v{PK}, v{PK+2}", f"v_permlane32_swap_b32 v{PK+1}, v{PK+3}", f"v_permlane32_swap_b32 v{PK+4}, v{PK+6}", f"v_permlane32_swap_b32 v{PK+5}, v{PK+7}")
    A("v_and_b32 v5, 31, v1", "s_lshl_b32 s42, s28, 6", "s_lshl_b32 s43, s31, 5", "s_add_u32 s42, s42, s43", "v_add_u32 v5, s42, v5", "v_lshlrev_b32 v5, 10, v5",
      "v_lshl_add_u32 v5, v8, 4, v5", "s_lshl_b32 s42, s29, 7", "s_lshl_b32 s43, s32, 6", "s_add_u32 s42, s42, s43")
    A(f"buffer_store_dwordx4 {vr(PK,4)}, v5, s[20:23], s42 offen", f"buffer_store_dwordx4 {vr(PK+4,4)}, v5, s[20:23], s42 offen offset:32")
    A("K3_done:", "s_endpgm")
    return A.text(), kdesc(name, 64)
```

```python
import sys
from k1 import gen_k1
from k2 import gen_k2
from k3 import gen_k3
import hazard
HDR = open('gated_mix__softmax_full_mha__sliding_block__prompt.s.ref').read().split('\n')
hdr = [l for l in HDR if l.startswith(';') and 'launch' not in l.lower() and 'Override' not in l and 'grid=ceil' not in l]
def build(out, stamps=False, dbg=False):
    t1,d1=gen_k1(stamps=stamps,dbg=dbg); t2,d2=gen_k2(stamps=stamps,dbg=dbg); t3,d3=gen_k3(stamps=stamps,dbg=dbg)
    s = '\n'.join(hdr)+'\n'
    s += "; @launch kernel=qkv_kernel grid=(256,1,1) block=(512,1,1) lds=163840\n"
    s += "; @launch kernel=attn_kernel grid=(256,1,1) block=(512,1,1) lds=163840\n"
    s += "; @launch kernel=oproj_kernel grid=(256,1,1) block=(256,1,1) lds=131072\n"
    s += '.amdgcn_target "amdgcn-amd-amdhsa--gfx950"\n.text\n'
    s += t1+d1+t2+d2+t3+d3
    open(out,'w').write(s)
    nb=0
    for t in (t1,t2,t3):
        nb+=len(hazard.check(t))
    print('hazards:',nb, 'bytes', len(s))
if __name__=='__main__':
    build(sys.argv[1] if len(sys.argv)>1 else 'gated_mix__softmax_full_mha__sliding_block__prompt.s', stamps=('stamps' in sys.argv), dbg=('dbg' in sys.argv))
```

```python
class Asm:
    def __init__(s): s.L=[]
    def __call__(s, *lines):
        for l in lines:
            if isinstance(l,(list,tuple)): s(*l)
            else:
                for x in l.split('\n'):
                    x=x.rstrip()
                    if not x.strip(): continue
                    t=x.strip()
                    if t.endswith(':') or t.startswith('.'): s.L.append(t)
                    else: s.L.append('    '+t)
    def text(s): return '\n'.join(s.L)+'\n'
def vr(a,n=1): return f"v{a}" if n==1 else f"v[{a}:{a+n-1}]"
def ar(a,n=1): return f"a{a}" if n==1 else f"a[{a}:{a+n-1}]"
def sr(a,n=1): return f"s{a}" if n==1 else f"s[{a}:{a+n-1}]"
def mfma32(d,a,b,c):
    cs = c if isinstance(c,str) else vr(c,16)
    return f"v_mfma_f32_32x32x16_bf16 {vr(d,16)}, {vr(a,4)}, {vr(b,4)}, {cs}"
def srd(A, s, base, size):
    A(f"s_mov_b32 s{s}, s{base}", f"s_and_b32 s{s+1}, s{base+1}, 0xffff", f"s_mov_b32 s{s+2}, {size}", f"s_mov_b32 s{s+3}, 0x00020000")
def kdesc(name, vgpr, sgpr=96, accum=None):
    if accum is None: accum=(vgpr+3)//4*4
    return f""".section .rodata,"a"
.p2align 6
.amdhsa_kernel {name}
  .amdhsa_next_free_vgpr {vgpr}
  .amdhsa_next_free_sgpr {sgpr}
  .amdhsa_accum_offset {accum}
  .amdhsa_group_segment_fixed_size 0
  .amdhsa_kernarg_size 80
  .amdhsa_user_sgpr_count 2
  .amdhsa_user_sgpr_kernarg_segment_ptr 1
  .amdhsa_system_sgpr_workgroup_id_x 1
  .amdhsa_float_denorm_mode_32 3
.end_amdhsa_kernel
.text
"""

STAMP_OFF = 32<<20
class Stamps:
    def __init__(s, A, on, kid): s.A=A; s.on=on; s.kid=kid; s.n=0
    def stamp(s):
        if not s.on: return
        A=s.A
        A(f"s_memrealtime s[70:71]", "s_waitcnt lgkmcnt(0)", f"s_mov_b32 s{72+s.n}, s70")
        s.n+=1
    def cyc(s):
        if not s.on: return
        A=s.A
        A(f"s_memtime s[70:71]", "s_waitcnt lgkmcnt(0)", f"s_mov_b32 s{72+s.n}, s70")
        s.n+=1
    def flush(s, wave_sgpr, ws_ptr_sgpr, vtmp):
        if not s.on: return
        A=s.A
        A(f"s_mov_b32 s92, s{ws_ptr_sgpr}", f"s_mov_b32 s93, s{ws_ptr_sgpr+1}", "s_mov_b32 s94, 0x10000000", "s_mov_b32 s95, 0x00020000")
        A(f"s_lshl_b32 s70, s2, 4", f"s_add_u32 s70, s70, s{wave_sgpr}", "s_lshl_b32 s70, s70, 6", f"s_add_u32 s70, s70, {STAMP_OFF + s.kid*256*16*64}")
        for i in range(s.n):
            A(f"v_mov_b32 v{vtmp}, s{72+i}", f"v_mov_b32 v{vtmp+1}, {4*i}", f"buffer_store_dword v{vtmp}, v{vtmp+1}, s[92:95], s70 offen")

class DbgStamps:
    def __init__(s, A, on, kid, vtmp): s.A=A; s.on=on; s.kid=kid; s.v=vtmp; s.pend=[]; s.n=0
    def init(s):
        if not s.on: return
        A=s.A
        A("s_load_dwordx2 s[92:93], s[0:1], 64", "s_waitcnt lgkmcnt(0)")
        if s.kid<2: A(f"s_add_u32 s92, s92, {512*(2-s.kid)}", "s_addc_u32 s93, s93, 0")
        A("s_mov_b32 s94, 256", "s_mov_b32 s95, 0x00020000")
    def mark(s, slot, kind):
        if not s.on: return
        A=s.A
        A("s_memrealtime s[70:71]", "s_waitcnt lgkmcnt(0)", f"s_mov_b32 s{72+s.n}, s70")
        s.pend.append((s.n,slot,kind)); s.n+=1
    def flush(s):
        if not s.on: return
        A=s.A; v=s.v
        A(f"v_cmp_eq_u32 vcc, 0, v0", "s_and_saveexec_b64 s[70:71], vcc", "s_cbranch_execz DBG_skip_%d"%s.kid)
        for n,slot,kind in s.pend:
            if kind in('max','both'):
                A(f"v_mov_b32 v{v}, s{72+n}", f"v_mov_b32 v{v+1}, {4*slot}", f"buffer_atomic_umax v{v}, v{v+1}, s[92:95], 0 offen")
            if kind in('min','both'):
                sl = slot if kind=='min' else slot+1
                A(f"s_sub_u32 s69, 0, s{72+n}", f"v_mov_b32 v{v+2}, s69", f"v_mov_b32 v{v+3}, {4*sl}", f"buffer_atomic_umax v{v+2}, v{v+3}, s[92:95], 0 offen")
            A("s_waitcnt vmcnt(0)")
        A("DBG_skip_%d:"%s.kid, "s_mov_b64 exec, s[70:71]")

class DbgAdapter:
    SL={0:[(0,'min'),(1,'max'),(2,'max'),(3,'max')], 1:[(4,'min'),(5,'max'),(6,'max'),(7,'max'),(8,'max'),(9,'max')], 2:[(10,'min'),(11,'max'),(12,'max'),(13,'max')]}
    def __init__(s,A,kid,v): s.d=DbgStamps(A,True,kid,v); s.kid=kid; s.n=0; s.first=True; s.A=A
    def stamp(s):
        if s.first: s.d.init(); s.first=False
        slot,kind=s.SL[s.kid][s.n]
        s.d.n=s.n
        s.d.pend=[p for p in s.d.pend if p[0]!=s.n]
        s.d.mark(slot,kind); s.n+=1
    def cyc(s): pass
    def flush(s,*a): s.d.flush()
```

```python
from asm import *
QF=0; KF=4<<20; VF=8<<20; GOFF=12<<20; OF=16<<20; WS_SIZE=24<<20
QSCALE = 0.25*1.4426950408889634
import struct
def f2u(x): return struct.unpack('<I',struct.pack('<f',x))[0]

def gen_k1(name="qkv_kernel", stamps=False, dbg=False):
    A=Asm(); ST=Stamps(A,stamps,0) if not dbg else DbgAdapter(A,0,120)
    stamps = stamps or dbg
    A(f".globl {name}", ".p2align 8", f".type {name},@function", f"{name}:")
    A("s_cmp_ge_u32 s2, 256", "s_cbranch_scc1 K1_done")
    A("s_load_dwordx2 s[4:5], s[0:1], 0",
      "s_load_dwordx2 s[6:7], s[0:1], 8",
      "s_load_dwordx2 s[8:9], s[0:1], 32",
      "s_load_dwordx2 s[10:11], s[0:1], 48",
      "s_load_dwordx2 s[34:35], s[0:1], 72")
    A("s_and_b32 s36, s2, 7",
      "s_lshr_b32 s37, s2, 3",
      "s_lshr_b32 s38, s36, 2",
      "s_lshl_b32 s38, s38, 3",
      "s_and_b32 s39, s37, 7",
      "s_add_u32 s29, s38, s39",
      "s_and_b32 s38, s36, 3",
      "s_lshl_b32 s38, s38, 2",
      "s_lshr_b32 s39, s37, 3",
      "s_add_u32 s33, s38, s39",
      "s_lshr_b32 s30, s33, 3",
      "s_and_b32 s31, s33, 7")
    A("v_lshrrev_b32 v1, 6, v0", "v_and_b32 v2, 63, v0", "s_nop 0", "v_readfirstlane_b32 s28, v1")
    A("s_waitcnt lgkmcnt(0)")
    ST.stamp(); ST.cyc()
    srd(A,12,4,2048*512*2)
    A("s_cmp_eq_u32 s30, 0", "s_cselect_b32 s6, s6, s8", "s_cselect_b32 s7, s7, s9")
    srd(A,16,6,512*1536*2)
    srd(A,20,34,WS_SIZE)
    srd(A,24,10,1024)
    A("s_and_b32 s40, s28, 3",
      "s_lshr_b32 s41, s28, 2")
    lane=2
    vX=3; vW=4; t0=5; t1=6; t2=7
    A(f"v_lshrrev_b32 v{t0}, 3, v{lane}",
      f"s_lshl_b32 s42, s28, 3",
      f"v_add_u32 v{t0}, s42, v{t0}",
      f"v_lshrrev_b32 v{t1}, 1, v{t0}",
      f"v_and_b32 v{t1}, 7, v{t1}",
      f"v_and_b32 v{t2}, 7, v{lane}",
      f"v_xor_b32 v{t1}, v{t1}, v{t2}",
      f"v_lshlrev_b32 v{t1}, 4, v{t1}",
      f"s_lshl_b32 s43, s29, 7",
      f"v_add_u32 v{vX}, s43, v{t0}",
      f"v_lshlrev_b32 v{vX}, 10, v{vX}",
      f"v_add_u32 v{vX}, v{vX}, v{t1}")
    A(f"v_bfe_u32 v{t1}, v{lane}, 4, 1",
      f"v_lshlrev_b32 v{t1}, 2, v{t1}",
      f"v_xor_b32 v{t1}, v{t1}, v{t2}",
      f"v_lshlrev_b32 v{t1}, 4, v{t1}",
      f"s_mov_b32 s44, 3072",
      f"v_mul_lo_u32 v{vW}, v{t0}, s44",
      f"v_add_u32 v{vW}, v{vW}, v{t1}",
      f"s_lshl_b32 s45, s31, 7",
      f"v_add_u32 v{vW}, s45, v{vW}")
    STG=40960
    def dma(c):
        st=c%4
        A(f"s_lshl_b32 s46, s28, 10")
        A(f"s_add_u32 s47, s46, {st*STG}", "s_mov_b32 m0, s47", f"s_mov_b32 s48, {c*128}",
          f"buffer_load_dwordx4 v{vX}, s[12:15], s48 offen lds")
        A(f"s_add_u32 s47, s46, {st*STG+8192}", "s_mov_b32 m0, s47", f"s_mov_b32 s48, {c*128+65536}",
          f"buffer_load_dwordx4 v{vX}, s[12:15], s48 offen lds")
        for seg in range(3):
            A(f"s_add_u32 s47, s46, {st*STG+16384+seg*8192}", "s_mov_b32 m0, s47", f"s_mov_b32 s48, {c*64*3072+seg*1024}",
              f"buffer_load_dwordx4 v{vW}, s[16:19], s48 offen lds")
    A("s_cmp_eq_u32 s33, s29", "s_cselect_b32 s49, 1, 0", "s_cmp_eq_u32 s41, 0", "s_cselect_b32 s49, s49, 0")
    GW=128
    hh_t=8
    A(f"v_lshrrev_b32 v{hh_t}, 5, v{lane}")
    A("s_cmp_eq_u32 s49, 0", "s_cbranch_scc1 K1_nogateload")
    A(f"v_lshlrev_b32 v9, 4, v{hh_t}")
    for n in range(32):
        A(f"buffer_load_dwordx4 {vr(GW+4*n,4)}, v9, s[24:27], 0 offen offset:{n*32}")
    A("K1_nogateload:")
    for c in range(4): dma(c)
    aX=[10,11,12,13]; aX2=[14,15,16,17]; aW=18; aW2=19
    r=20
    A(f"v_and_b32 v{r}, 31, v{lane}",
      f"v_lshrrev_b32 v{t0}, 1, v{r}", f"v_and_b32 v{t0}, 7, v{t0}",
      f"s_lshl_b32 s42, s40, 5",
      f"v_add_u32 v{t1}, s42, v{r}",
      f"v_lshlrev_b32 v{t1}, 7, v{t1}")
    for s in range(4):
        A(f"v_or_b32 v{t2}, {2*s}, v{hh_t}",
          f"v_xor_b32 v{t2}, v{t2}, v{t0}",
          f"v_lshlrev_b32 v{t2}, 4, v{t2}",
          f"v_add_u32 v{aX[s]}, v{t1}, v{t2}",
          f"v_add_u32 v{aX2[s]}, {2*STG}, v{aX[s]}")
    A(f"v_bfe_u32 v{t0}, v{lane}, 2, 2",
      f"v_lshl_add_u32 v{t1}, v{hh_t}, 3, v{t0}",
      f"v_lshlrev_b32 v{t1}, 7, v{t1}",
      f"v_bfe_u32 v{t2}, v{lane}, 4, 1",
      f"v_lshlrev_b32 v{t2}, 1, v{t2}",
      f"v_bfe_u32 v21, v{lane}, 1, 1",
      f"v_add_u32 v{t2}, v{t2}, v21",
      f"s_lshl_b32 s42, s41, 2",
      f"v_add_u32 v{t2}, s42, v{t2}",
      f"v_bfe_u32 v21, v{lane}, 3, 1",
      f"v_lshlrev_b32 v21, 2, v21",
      f"v_xor_b32 v{t2}, v{t2}, v21",
      f"v_lshlrev_b32 v{t2}, 4, v{t2}",
      f"v_add_u32 v{t1}, v{t1}, v{t2}",
      f"v_and_b32 v21, 1, v{lane}",
      f"v_lshlrev_b32 v21, 3, v21",
      f"v_add_u32 v{t1}, v{t1}, v21",
      f"v_add_u32 v{aW}, 16384, v{t1}",
      f"v_add_u32 v{aW2}, {16384+2*STG}, v{t1}")
    TQ=32; TK=48; TV=64
    XF=[80,84]; WF=[[88,92,96],[100,104,108]]
    GA=22
    for i in range(48): A(f"v_mov_b32 v{TQ+i}, 0")
    A(f"v_mov_b32 v{GA}, 0")
    def reads(n):
        c,s=divmod(n,4); st=c%4; b=n%2
        ax = aX[s] if st<2 else aX2[s]; aw = aW if st<2 else aW2
        so = (st%2)*STG
        L=[f"ds_read_b128 {vr(XF[b],4)}, v{ax} offset:{so}"]
        for seg in range(3):
            for rr in range(2):
                L.append(f"ds_read_b64_tr_b16 {vr(WF[b][seg]+2*rr,2)}, v{aw} offset:{so+seg*8192+(16*s+4*rr)*128}")
        return L
    def mainloop(gate, tag):
        A("s_waitcnt vmcnt(15)", "s_barrier")
        n0=ST.n; ST.stamp();
        A(reads(0))
        for n in range(32):
            c,s=divmod(n,4); b=n%2
            if s==3 and c<7:
                X = 5*(min(c+3,7)-(c+1))
                A("s_waitcnt lgkmcnt(0)", f"s_waitcnt vmcnt({X})", "s_barrier")
                A(reads(n+1))
                if c+4<=7: dma(c+4)
            elif n<31:
                A(reads(n+1))
                A("s_waitcnt lgkmcnt(7)")
            else:
                A("s_waitcnt lgkmcnt(0)")
            A(mfma32(TQ, WF[b][0], XF[b], TQ))
            if gate:
                A(f"v_dot2_f32_bf16 v{GA}, v{XF[b]}, v{GW+4*n}, v{GA}", f"v_dot2_f32_bf16 v{GA}, v{XF[b]+1}, v{GW+4*n+1}, v{GA}")
            A(mfma32(TK, WF[b][1], XF[b], TK))
            if gate:
                A(f"v_dot2_f32_bf16 v{GA}, v{XF[b]+2}, v{GW+4*n+2}, v{GA}", f"v_dot2_f32_bf16 v{GA}, v{XF[b]+3}, v{GW+4*n+3}, v{GA}")
            A(mfma32(TV, XF[b], WF[b][2], TV))
    A("s_cmp_eq_u32 s49, 0", "s_cbranch_scc1 K1_main_nogate")
    nsave=ST.n
    mainloop(True,"g")
    A("s_nop 1",
      f"v_mov_b32 v23, v{GA}", "s_nop 1",
      f"v_permlane32_swap_b32 v23, v{GA}",
      "s_nop 1",
      f"v_add_f32 v{GA}, v23, v{GA}",
      f"v_mul_f32 v{GA}, {hex(f2u(-1.4426950408889634))}, v{GA}",
      f"v_exp_f32 v{GA}, v{GA}", "s_nop 0",
      f"v_add_f32 v{GA}, 1.0, v{GA}",
      f"v_rcp_f32 v{GA}, v{GA}",
      f"s_lshl_b32 s42, s29, 7", f"s_lshl_b32 s43, s40, 5", "s_add_u32 s42, s42, s43",
      f"v_add_u32 v23, s42, v{r}", "v_lshlrev_b32 v23, 2, v23",
      f"s_mov_b32 s43, {GOFF}",
      f"buffer_store_dword v{GA}, v23, s[20:23], s43 offen")
    A("s_branch K1_epi")
    A("K1_main_nogate:")
    ST.n=nsave
    mainloop(False,"n")
    A("K1_epi:")
    ST.stamp()
    A("s_lshl_b32 s42, s31, 2", "s_lshl_b32 s43, s41, 1", "s_add_u32 s42, s42, s43",
      "s_lshl_b32 s43, s30, 5", "s_add_u32 s42, s42, s43",
      "s_lshl_b32 s42, s42, 16",
      "s_lshl_b32 s43, s29, 2", "s_add_u32 s43, s43, s40", "s_lshl_b32 s43, s43, 10",
      "s_add_u32 s42, s42, s43")
    A(f"v_lshlrev_b32 v24, 4, v{lane}")
    A(f"s_mov_b32 s44, {hex(f2u(QSCALE))}")
    A("s_nop 7")
    PK=80
    for i in range(16): A(f"v_mul_f32 v{TQ+i}, s44, v{TQ+i}")
    for i in range(8): A(f"v_cvt_pk_bf16_f32 v{PK+i}, v{TQ+2*i}, v{TQ+2*i+1}")
    A(f"s_add_u32 s45, s42, {QF}", f"s_add_u32 s46, s45, 65536")
    A(f"buffer_store_dwordx4 {vr(PK,4)}, v24, s[20:23], s45 offen", f"buffer_store_dwordx4 {vr(PK+4,4)}, v24, s[20:23], s46 offen")
    for i in range(8): A(f"v_cvt_pk_bf16_f32 v{PK+8+i}, v{TK+2*i}, v{TK+2*i+1}")
    A(f"s_add_u32 s45, s42, {KF}", f"s_add_u32 s46, s45, 65536")
    A(f"buffer_store_dwordx4 {vr(PK+8,4)}, v24, s[20:23], s45 offen", f"buffer_store_dwordx4 {vr(PK+12,4)}, v24, s[20:23], s46 offen")
    A(f"v_bfe_u32 v25, v{lane}, 4, 1", "v_lshlrev_b32 v25, 16, v25",
      f"v_lshl_add_u32 v25, v{hh_t}, 8, v25",
      f"v_and_b32 v26, 15, v{lane}", "v_lshl_add_u32 v25, v26, 4, v25")
    for i in range(8): A(f"v_cvt_pk_bf16_f32 v{PK+16+i}, v{TV+2*i}, v{TV+2*i+1}")
    A(f"s_add_u32 s45, s42, {VF}")
    A(f"buffer_store_dwordx4 {vr(PK+16,4)}, v25, s[20:23], s45 offen", f"buffer_store_dwordx4 {vr(PK+20,4)}, v25, s[20:23], s45 offen offset:512")
    if stamps: A("s_waitcnt vmcnt(0)")
    ST.stamp(); ST.cyc()
    ST.flush(28,34,27 if False else 120)
    A("K1_done:", "s_endpgm")
    return A.text(), kdesc(name, 256)
```

```python
from asm import *
from k1 import QF,KF,VF,GOFF,OF,WS_SIZE,f2u
NEG = f2u(-2.0**100)
LLO = f2u(2.0**-64); LHI = f2u(2.0**64)

LANE=1
QA0=4; QA1=8; QB=12
OA0=16; OA1=32
S0=48; S1=64
P=80
KB_=88
VB_=96
MF=112; MD=128
CB=144
vKa=160; vVa=161
vG=162; vL16=163; vT=164; vT2=165; vT3=166; vNEGM=167; vM=168; vKs=169; vVs=170; vX0=172
NV=184
LDS_KA=0; LDS_VA=65536; LDS_KB=131072; LDS_VB=147456

def exps(S): return [f"v_exp_f32 v{S+i}, v{S+i}" for i in range(16)]
def cvts(S): return [f"v_cvt_pk_bf16_f32 v{P+i}, v{S+2*i}, v{S+2*i+1}" for i in range(8)]
MK=["s_mov_b64 exec, s[40:41]"]; UM=["s_mov_b64 exec, -1"]

def unit(A, Sc, QK, PV1, ld, wK, wV, PV0):
    e=exps(Sc); c=cvts(Sc)
    A(wK, QK)
    A(e[0:4], c[0], e[4:6], c[1])
    A(PV1, ld)
    A(e[6:8], c[2], e[8:10], c[3], e[10:12])
    A(wV, PV0)
    A(e[12:13], c[4], e[13:15], c[5], e[15:16], c[6], c[7])

def slow_pass(A, tag, Q, O, pass1, far_sgpr, diag_sgpr, n_sgpr):
    A(f"v_mov_b32 v{vX0}, v{vKs}", f"v_mov_b32 v{vX0+1}, v{vVs}", "s_mov_b32 s60, 0")
    if pass1: A(f"v_mov_b32 v{vM}, {hex(NEG)}", f"v_mov_b32 v{vNEGM}, 0")
    else:
        for i in range(16): A(f"v_mov_b32 v{O+i}, 0")
    A(f"L_{tag}_loop:")
    A(f"ds_read_b128 {vr(KB_,4)}, v{vX0}")
    if not pass1:
        A(MK, f"ds_read_b128 {vr(VB_,4)}, v{vX0+1}", f"ds_read_b128 {vr(VB_+4,4)}, v{vX0+1} offset:512", UM)
    A("s_cmp_eq_u32 s60, 0", f"s_cselect_b32 s61, s{far_sgpr}, 0", "s_cmp_lg_u32 s61, 0", f"s_cbranch_scc1 L_{tag}_far")
    A(f"s_add_u32 s61, s60, 1", f"s_cmp_eq_u32 s61, s{n_sgpr}", f"s_cselect_b32 s61, s{diag_sgpr}, 0", "s_cmp_lg_u32 s61, 0", f"s_cbranch_scc1 L_{tag}_diag")
    for i in range(16): A(f"v_mov_b32 v{CB+i}, v{vNEGM}")
    A(f"s_branch L_{tag}_go")
    A(f"L_{tag}_far:")
    for i in range(16): A(f"v_add_f32 v{CB+i}, v{MF+i}, v{vNEGM}")
    A(f"s_branch L_{tag}_go")
    A(f"L_{tag}_diag:")
    for i in range(16): A(f"v_add_f32 v{CB+i}, v{MD+i}, v{vNEGM}")
    A(f"L_{tag}_go:")
    A("s_waitcnt lgkmcnt(0)", "s_nop 0")
    A(mfma32(S0, KB_, Q, CB))
    A("s_nop 7","s_nop 3")
    if pass1:
        for i in range(16): A(f"v_max_f32 v{vM}, v{vM}, v{S0+i}")
    else:
        A(exps(S0), "s_nop 0", cvts(S0), "s_nop 1")
        A(mfma32(O, VB_, P, O), mfma32(O, VB_+4, P+4, O))
    A(f"v_add_u32 v{vX0}, 1024, v{vX0}", f"v_add_u32 v{vX0+1}, 1024, v{vX0+1}")
    A("s_add_u32 s60, s60, 1", f"s_cmp_lt_u32 s60, s{n_sgpr}", f"s_cbranch_scc1 L_{tag}_loop")
    if pass1:
        A(f"v_mov_b32 v{vT}, v{vM}", "s_nop 1", f"v_permlane32_swap_b32 v{vT}, v{vM}", "s_nop 1",
          f"v_max_f32 v{vM}, v{vM}, v{vT}", f"v_sub_f32 v{vNEGM}, 0, v{vM}")
    else:
        A("s_nop 7","s_nop 3")

def check_range(A, O, okl):
    A(f"v_mov_b32 v{vT}, v{O+8}")
    for i in range(8): A(f"v_fma_f32 v{vT}, v{O+i}, 0, v{vT}")
    A(f"s_mov_b32 s62, {hex(LLO)}", f"s_mov_b32 s63, {hex(LHI)}")
    A(f"v_cmp_le_f32 s[64:65], s62, v{vT}", f"v_cmp_ge_f32 s[66:67], s63, v{vT}", "s_nop 1",
      "s_and_b64 s[64:65], s[64:65], s[66:67]", "s_cmp_eq_u64 s[64:65], -1", f"s_cbranch_scc1 {okl}")

def finalize(A, O, scale_reg, soff_sgpr):
    A(f"v_rcp_f32 v{vT}, v{O+8}", "s_nop 0", f"v_mul_f32 v{vT}, v{vT}, v{scale_reg}")
    for i in range(8): A(f"v_mul_f32 v{O+i}, v{O+i}, v{vT}")
    for i in range(4): A(f"v_cvt_pk_bf16_f32 v{vX0+4+i}, v{O+2*i}, v{O+2*i+1}")
    A(f"buffer_store_dwordx4 {vr(vX0+4,4)}, v{vL16}, s[8:11], s{soff_sgpr} offen")

def gen_k2(name="attn_kernel", stamps=False, dbg=False):
    A=Asm(); ST=Stamps(A,stamps,1) if not dbg else DbgAdapter(A,1,vX0)
    stamps = stamps or dbg
    A(f".globl {name}", ".p2align 8", f".type {name},@function", f"{name}:")
    A("s_cmp_ge_u32 s2, 256", "s_cbranch_scc1 K2_done")
    A("s_load_dwordx2 s[4:5], s[0:1], 72")
    A("s_and_b32 s12, s2, 31",
      "s_lshr_b32 s13, s2, 5")
    A(f"v_lshrrev_b32 v2, 6, v0", f"v_and_b32 v{LANE}, 63, v0", "s_nop 0", "v_readfirstlane_b32 s14, v2")
    A("s_waitcnt lgkmcnt(0)")
    ST.stamp(); ST.cyc()
    srd(A,8,4,WS_SIZE)
    A("s_and_b32 s15, s14, 3",
      "s_lshr_b32 s16, s14, 2",
      "s_lshl_b32 s17, s15, 1", "s_add_u32 s17, s17, s16",
      "s_lshl_b32 s18, s13, 3",
      "s_add_u32 s19, s18, s17",
      "s_lshl_b32 s20, s12, 16",
      f"s_add_u32 s21, s20, {32*65536}")
    A(f"v_lshlrev_b32 v{vL16}, 4, v{LANE}")
    A("s_lshl_b32 s22, s19, 10", "s_add_u32 s22, s22, s21", f"s_add_u32 s22, s22, {QF}",
      f"buffer_load_dwordx4 {vr(QB,4)}, v{vL16}, s[8:11], s22 offen")
    A(f"v_and_b32 v{vT}, 31, v{LANE}", "s_lshl_b32 s23, s19, 5", f"v_add_u32 v{vT2}, s23, v{vT}", f"v_lshlrev_b32 v{vT2}, 2, v{vT2}",
      f"s_mov_b32 s24, {GOFF}", f"buffer_load_dword v{vG}, v{vT2}, s[8:11], s24 offen")
    for ii in range(2):
        A(f"s_add_u32 s25, s14, {8*ii}",
          "s_add_u32 s26, s18, s25", "s_sub_u32 s26, s26, 8", "s_max_i32 s26, s26, 0",
          "s_lshl_b32 s26, s26, 10", "s_add_u32 s26, s26, s21",
          "s_lshl_b32 s25, s25, 10")
        A(f"s_add_u32 s27, s25, {LDS_KB}", "s_mov_b32 m0, s27", f"s_add_u32 s28, s26, {KF}",
          f"buffer_load_dwordx4 v{vL16}, s[8:11], s28 offen lds")
        A(f"s_add_u32 s27, s25, {LDS_VB}", "s_mov_b32 m0, s27", f"s_add_u32 s28, s26, {VF}",
          f"buffer_load_dwordx4 v{vL16}, s[8:11], s28 offen lds")
    A("s_lshl_b32 s22, s15, 1", "s_add_u32 s22, s22, s18", "s_lshl_b32 s22, s22, 10", "s_add_u32 s22, s22, s20", f"s_add_u32 s22, s22, {QF}",
      f"buffer_load_dwordx4 {vr(QA0,4)}, v{vL16}, s[8:11], s22 offen",
      f"buffer_load_dwordx4 {vr(QA1,4)}, v{vL16}, s[8:11], s22 offen offset:1024")
    A("s_lshl_b32 s25, s14, 10", "s_add_u32 s26, s25, s20")
    for m in range(8):
        A(f"s_add_u32 s27, s25, {LDS_KA+m*8192}", "s_mov_b32 m0, s27", f"s_add_u32 s28, s26, {KF+m*8192}",
          f"buffer_load_dwordx4 v{vL16}, s[8:11], s28 offen lds")
        A(f"s_add_u32 s27, s25, {LDS_VA+m*8192}", "s_mov_b32 m0, s27", f"s_add_u32 s28, s26, {VF+m*8192}",
          f"buffer_load_dwordx4 v{vL16}, s[8:11], s28 offen lds")
    A("s_mov_b32 s40, 0x0000ffff", "s_mov_b32 s41, 0x0000ffff")
    for i in range(16): A(f"v_mov_b32 v{VB_+i}, 0x3f803f80")
    hh=vT3
    A(f"v_lshrrev_b32 v{hh}, 5, v{LANE}", f"v_lshlrev_b32 v{vT2}, 2, v{hh}", f"v_sub_u32 v{vT2}, v{vT}, v{vT2}")
    A(f"v_mov_b32 v{vX0}, {hex(NEG)}")
    for g in range(4):
        for k in range(4):
            i=4*g+k; ci=8*g+k
            A(f"v_cmp_gt_i32 s[{44+2*k}:{45+2*k}], {ci}, v{vT2}")
        A("s_nop 0")
        for k in range(4):
            i=4*g+k
            A(f"v_cndmask_b32 v{MF+i}, v{vX0}, 0, s[{44+2*k}:{45+2*k}]", f"v_cndmask_b32 v{MD+i}, 0, v{vX0}, s[{44+2*k}:{45+2*k}]")
    A(f"v_and_b32 v{vT}, 15, v{LANE}", f"v_lshlrev_b32 v{vT}, 4, v{vT}", f"v_lshl_add_u32 v{vT}, v{hh}, 8, v{vT}")
    A(f"v_mov_b32 v{vX0+11}, v{vT}")
    VL=vX0+11
    A("s_lshl_b32 s25, s17, 10", f"s_add_u32 s26, s25, {LDS_KB}", f"v_add_u32 v{vKa}, s26, v{vL16}",
      f"s_add_u32 s26, s25, {LDS_VB}", f"v_add_u32 v{vVa}, s26, v{VL}")
    A("s_lshl_b32 s30, s19, 16", "s_lshl_b32 s31, s12, 10", "s_add_u32 s30, s30, s31", f"s_add_u32 s30, s30, {OF}",
      "s_add_u32 s31, s30, 32768")
    A("s_waitcnt vmcnt(18)", "s_barrier")
    ST.stamp()
    OB=OA0
    A("s_cmp_eq_u32 s13, 0", "s_cbranch_scc1 K2_B_zero")
    for i in range(16): A(f"v_mov_b32 v{OB+i}, 0")
    def ldK(t,base): return [f"ds_read_b128 {vr(KB_+4*(t%2),4)}, v{base} offset:{t*1024}"]
    def ldV(t,base): return MK+[f"ds_read_b128 {vr(VB_+8*(t%2),4)}, v{base} offset:{t*1024}", f"ds_read_b128 {vr(VB_+8*(t%2)+4,4)}, v{base} offset:{t*1024+512}"]+UM
    NB=9
    A(ldK(0,vKa), ldV(0,vVa), ldK(1,vKa))
    A("s_waitcnt lgkmcnt(3)")
    A(mfma32(S0, KB_, QB, MF))
    for t in range(NB):
        Sc=S0 if t%2==0 else S1; Sn=S1 if t%2==0 else S0
        if t+1<NB:
            QK=[mfma32(Sn, KB_+4*((t+1)%2), QB, MD if t+1==NB-1 else "0")]
            wK=["s_waitcnt lgkmcnt(0)"] if t==0 else ["s_waitcnt lgkmcnt(2)"]
        else: QK=[]; wK=[]
        PV1=[mfma32(OB, VB_+8*((t-1)%2)+4, P+4, OB)] if t>0 else []
        ld=[]
        if t+2<NB: ld+=ldK(t+2,vKa)
        if t+1<NB: ld+=ldV(t+1,vVa)
        nld = (1 if t+2<NB else 0)+(2 if t+1<NB else 0)
        wV=[f"s_waitcnt lgkmcnt({nld})"]
        PV0=[mfma32(OB, VB_+8*(t%2), P, OB)]
        if t==0:
            A("s_nop 7","s_nop 3")
        unit(A,Sc,QK,PV1,ld,wK,wV,PV0)
    A("s_nop 1", mfma32(OB, VB_+8*((NB-1)%2)+4, P+4, OB))
    A("s_nop 7","s_nop 3")
    A("s_mov_b32 s50, 1", "s_mov_b32 s51, 1", "s_mov_b32 s52, 9")
    A(f"v_mov_b32 v{vKs}, v{vKa}", f"v_mov_b32 v{vVs}, v{vVa}")
    A("s_branch K2_B_check")
    A("K2_B_zero:")
    A("s_mov_b32 s50, 0", "s_mov_b32 s51, 1", "s_add_u32 s52, s17, 1")
    A(f"v_add_u32 v{vKs}, {LDS_KB+8192}, v{vL16}", f"v_add_u32 v{vVs}, {LDS_VB+8192}, v{VL}", f"v_mov_b32 v{vNEGM}, 0")
    slow_pass(A,"bz",QB,OB,False,50,51,52)
    A("K2_B_check:")
    check_range(A,OB,"K2_B_ok")
    slow_pass(A,"bf1",QB,OB,True,50,51,52)
    slow_pass(A,"bf2",QB,OB,False,50,51,52)
    A("K2_B_ok:")
    A(f"v_sub_f32 v{vT2}, 1.0, v{vG}")
    finalize(A,OB,vT2,31)
    ST.stamp()
    A("s_waitcnt vmcnt(1)", "s_barrier")
    ST.stamp()
    A("s_lshl_b32 s25, s16, 15",
      f"v_add_u32 v{vKa}, s25, v{vL16}", f"s_add_u32 s26, s25, {LDS_VA}", f"v_add_u32 v{vVa}, s26, v{VL}")
    for i in range(32): A(f"v_mov_b32 v{OA0+i}, 0")
    A(f"v_mov_b32 v{P+4}, 0", f"v_mov_b32 v{P+5}, 0", f"v_mov_b32 v{P+6}, 0", f"v_mov_b32 v{P+7}, 0")
    Qr=[QA0,QA1]; Or=[OA0,OA1]
    A(ldK(0,vKa), ldV(0,vVa))
    A("s_waitcnt lgkmcnt(2)")
    A(mfma32(S0, KB_, QA0, "0"))
    A("s_mov_b32 s53, 4", "s_nop 7", "s_nop 2")
    A(".p2align 3", "K2_A_loop:")
    NK=8
    units=[(t,qi) for t in range(NK) for qi in range(2)]
    for u,(t,qi) in enumerate(units):
        Sc=S0 if u%2==0 else S1; Sn=S1 if u%2==0 else S0
        tn,qn=(t,1) if qi==0 else (t+1,0)
        tp,qp=(t-1,1) if qi==0 else (t,0)
        QK=[mfma32(Sn, KB_+4*(tn%2), Qr[qn], "0")]
        PV1=[mfma32(Or[qp], VB_+8*(tp%2)+4, P+4, Or[qp])]
        PV0=[mfma32(Or[qi], VB_+8*(t%2), P, Or[qi])]
        ld=[];wK=[];wV=[]
        if qi==0:
            ld=ldK(t+1,vKa)+ldV(t+1,vVa); wV=["s_waitcnt lgkmcnt(3)"]
        else:
            wK=["s_waitcnt lgkmcnt(2)"]
        unit(A,Sc,QK,PV1,ld,wK,wV,PV0)
    A(f"v_add_u32 v{vKa}, {NK*1024}, v{vKa}", f"v_add_u32 v{vVa}, {NK*1024}, v{vVa}")
    A("s_sub_u32 s53, s53, 1", "s_cmp_lg_u32 s53, 0", "s_cbranch_scc1 K2_A_loop")
    A(mfma32(OA1, VB_+8*((NK-1)%2)+4, P+4, OA1))
    A("s_waitcnt lgkmcnt(0)", "s_nop 7", "s_nop 3")
    ST.stamp()
    A("s_cmp_eq_u32 s16, 0", "s_cbranch_scc1 K2_X0")
    for i in range(9):
        A(f"v_mov_b32 v{vT}, v{OA0+i}", f"v_mov_b32 v{OA0+i}, v{OA1+i}", f"v_mov_b32 v{OA1+i}, v{vT}")
    A("K2_X0:")
    A(f"s_mul_i32 s25, s14, 2560", f"s_add_u32 s25, s25, {LDS_KB}", f"v_add_u32 v{vT}, s25, v{vL16}",
      f"v_lshlrev_b32 v{vT2}, 2, v{LANE}", f"v_add_u32 v{vT2}, s25, v{vT2}")
    A(f"ds_write_b128 v{vT}, {vr(OA1,4)}", f"ds_write_b128 v{vT}, {vr(OA1+4,4)} offset:1024", f"ds_write_b32 v{vT2}, v{OA1+8} offset:2048")
    A("s_xor_b32 s26, s14, 4", f"s_mul_i32 s25, s26, 2560", f"s_add_u32 s25, s25, {LDS_KB}", f"v_add_u32 v{vT}, s25, v{vL16}",
      f"v_lshlrev_b32 v{vT2}, 2, v{LANE}", f"v_add_u32 v{vT2}, s25, v{vT2}")
    A("s_waitcnt lgkmcnt(0)", "s_barrier")
    A(f"ds_read_b128 {vr(S0,4)}, v{vT}", f"ds_read_b128 {vr(S0+4,4)}, v{vT} offset:1024", f"ds_read_b32 v{S0+8}, v{vT2} offset:2048")
    A("s_waitcnt lgkmcnt(0)")
    for i in range(9): A(f"v_add_f32 v{OA0+i}, v{OA0+i}, v{S0+i}")
    check_range(A,OA0,"K2_A_ok")
    A("s_cmp_eq_u32 s16, 0", "s_cbranch_scc1 K2_AF0")
    for i in range(4): A(f"v_mov_b32 v{QA0+i}, v{QA1+i}")
    A("K2_AF0:")
    A("s_mov_b32 s50, 0", "s_mov_b32 s51, 0", "s_mov_b32 s52, 64")
    A(f"v_add_u32 v{vKs}, {LDS_KA}, v{vL16}", f"v_add_u32 v{vVs}, {LDS_VA}, v{VL}")
    slow_pass(A,"af1",QA0,OA0,True,50,51,52)
    slow_pass(A,"af2",QA0,OA0,False,50,51,52)
    A("K2_A_ok:")
    finalize(A,OA0,vG,30)
    if stamps: A("s_waitcnt vmcnt(0)")
    ST.stamp(); ST.cyc()
    ST.flush(14,4,vX0)
    A("K2_done:", "s_endpgm")
    return A.text(), kdesc(name, NV)
```

```python
from asm import *
from k1 import QF,KF,VF,GOFF,OF,WS_SIZE,f2u
def gen_k3(name="oproj_kernel", stamps=False, dbg=False):
    A=Asm(); ST=Stamps(A,stamps,2) if not dbg else DbgAdapter(A,2,56)
    stamps = stamps or dbg
    A(f".globl {name}", ".p2align 8", f".type {name},@function", f"{name}:")
    A("s_cmp_ge_u32 s2, 256", "s_cbranch_scc1 K3_done")
    A("s_load_dwordx2 s[4:5], s[0:1], 72", "s_load_dwordx2 s[6:7], s[0:1], 16", "s_load_dwordx2 s[24:25], s[0:1], 40", "s_load_dwordx2 s[26:27], s[0:1], 56")
    A("s_and_b32 s28, s2, 31",
      "s_lshr_b32 s29, s2, 5")
    A("v_lshrrev_b32 v2, 6, v0", "v_and_b32 v1, 63, v0", "s_nop 0", "v_readfirstlane_b32 s30, v2")
    A("s_waitcnt lgkmcnt(0)")
    ST.stamp(); ST.cyc()
    srd(A,8,4,WS_SIZE); srd(A,12,6,512*512*2); srd(A,16,24,512*512*2); srd(A,20,26,2048*512*2)
    A("s_and_b32 s31, s30, 1", "s_lshr_b32 s32, s30, 1")
    vL16=3; vW=4
    A(f"v_lshlrev_b32 v{vL16}, 4, v1")
    A("v_lshrrev_b32 v5, 3, v1", "v_lshlrev_b32 v5, 10, v5", "v_bfe_u32 v6, v1, 4, 1", "v_lshlrev_b32 v6, 2, v6", "v_and_b32 v7, 7, v1", "v_xor_b32 v6, v6, v7",
      "v_lshlrev_b32 v6, 4, v6", "v_add_u32 v5, v5, v6", "s_lshl_b32 s33, s29, 7", f"v_add_u32 v{vW}, s33, v5")
    STG=32768
    A("s_lshl_b32 s34, s28, 17", f"s_add_u32 s34, s34, {OF}",
      "s_lshr_b32 s35, s30, 1", "s_lshl_b32 s36, s35, 16", "s_add_u32 s34, s34, s36",
      "s_and_b32 s36, s30, 1", "s_lshl_b32 s36, s36, 12", "s_add_u32 s34, s34, s36",
      "s_lshl_b32 s37, s30, 12",
      "s_lshl_b32 s38, s30, 15")
    def dma(c):
        st=c%4
        for ii in range(4):
            A(f"s_add_u32 s40, s37, {st*STG+ii*1024}", "s_mov_b32 m0, s40", f"s_add_u32 s41, s34, {c*8192+ii*1024}",
              f"buffer_load_dwordx4 v{vL16}, s[8:11], s41 offen lds")
        sw = "s[12:15]" if c<4 else "s[16:19]"
        for ii in range(4):
            A(f"s_add_u32 s40, s37, {st*STG+16384+ii*1024}", "s_mov_b32 m0, s40", f"s_add_u32 s41, s38, {(c%4)*131072+ii*8192}",
              f"buffer_load_dwordx4 v{vW}, {sw}, s41 offen lds")
    for c in range(4): dma(c)
    aO=[10,11]; aW=[12,13]
    A("s_lshl_b32 s42, s31, 13", f"v_add_u32 v{aO[0]}, s42, v{vL16}", f"v_add_u32 v{aO[1]}, {2*STG}, v{aO[0]}")
    A("v_lshrrev_b32 v8, 5, v1",
      "v_bfe_u32 v5, v1, 2, 2", "v_lshl_add_u32 v5, v8, 2, v5", "v_lshlrev_b32 v5, 7, v5",
      "v_bfe_u32 v6, v1, 4, 1", "v_lshlrev_b32 v6, 1, v6", "v_bfe_u32 v7, v1, 1, 1", "v_add_u32 v6, v6, v7",
      "s_lshl_b32 s42, s32, 2", "v_add_u32 v6, s42, v6",
      "v_bfe_u32 v7, v1, 3, 1", "v_lshlrev_b32 v7, 2, v7", "v_xor_b32 v6, v6, v7", "v_lshlrev_b32 v6, 4, v6", "v_add_u32 v5, v5, v6",
      "v_and_b32 v7, 1, v1", "v_lshlrev_b32 v7, 3, v7", "v_add_u32 v5, v5, v7",
      f"v_add_u32 v{aW[0]}, 16384, v5", f"v_add_u32 v{aW[1]}, {16384+2*STG}, v5")
    ACC=16; OFr=[32,36,40,44]; WFr=[48,52,56,60]
    for i in range(16): A(f"v_mov_b32 v{ACC+i}, 0")
    def reads(n):
        c,s=divmod(n,8); st=c%4; b=n%4
        so=(st%2)*STG
        return [f"ds_read_b128 {vr(OFr[b],4)}, v{aO[st//2]} offset:{so+s*1024}",
                f"ds_read_b64_tr_b16 {vr(WFr[b],2)}, v{aW[st//2]} offset:{so+(16*s)*128}",
                f"ds_read_b64_tr_b16 {vr(WFr[b]+2,2)}, v{aW[st//2]} offset:{so+(16*s+8)*128}"]
    A("s_waitcnt vmcnt(24)", "s_barrier")
    ST.stamp()
    A(reads(0), reads(1))
    for n in range(64):
        c,s=divmod(n,8); b=n%4
        if s==6 and c<7:
            X=8*(min(c+3,7)-(c+1))
            A("s_waitcnt lgkmcnt(0)", f"s_waitcnt vmcnt({X})", "s_barrier")
            A(reads(n+2))
            if c+4<=7: dma(c+4)
        elif n+2<64:
            A(reads(n+2))
            A("s_waitcnt lgkmcnt(6)")
        elif n==62: A("s_waitcnt lgkmcnt(3)")
        else: A("s_waitcnt lgkmcnt(0)")
        A(mfma32(ACC, WFr[b], OFr[b], ACC))
    A("s_nop 7","s_nop 3")
    ST.stamp()
    PK=32
    for i in range(8): A(f"v_cvt_pk_bf16_f32 v{PK+i}, v{ACC+2*i}, v{ACC+2*i+1}")
    A("s_nop 1")
    A(f"v_permlane32_swap_b32 v{PK}, v{PK+2}", f"v_permlane32_swap_b32 v{PK+1}, v{PK+3}", f"v_permlane32_swap_b32 v{PK+4}, v{PK+6}", f"v_permlane32_swap_b32 v{PK+5}, v{PK+7}")
    A("v_and_b32 v5, 31, v1", "s_lshl_b32 s42, s28, 6", "s_lshl_b32 s43, s31, 5", "s_add_u32 s42, s42, s43", "v_add_u32 v5, s42, v5", "v_lshlrev_b32 v5, 10, v5",
      "v_lshl_add_u32 v5, v8, 4, v5", "s_lshl_b32 s42, s29, 7", "s_lshl_b32 s43, s32, 6", "s_add_u32 s42, s42, s43")
    A(f"buffer_store_dwordx4 {vr(PK,4)}, v5, s[20:23], s42 offen", f"buffer_store_dwordx4 {vr(PK+4,4)}, v5, s[20:23], s42 offen offset:32")
    if stamps: A("s_waitcnt vmcnt(0)")
    ST.stamp(); ST.cyc()
    ST.flush(30,4,60)
    A("K3_done:", "s_endpgm")
    return A.text(), kdesc(name, 64)
```

```python
from asm import Asm, vr, sr, mfma32
import struct
def f2u(x): return struct.unpack('<I',struct.pack('<f',x))[0]
NAME="gated_mix__softmax_full_mha__sliding_block__prompt_kernel"
QF=0; KF=4<<20; VF=8<<20; GOFF=12<<20; OF=16<<20; FL=30<<20; WS_SIZE=31<<20
FL_EPOCH=0; FL_F1=1024; FL_F2=8192
FSTR=16
STAMP_OFF=32<<20
QSCALE=0.25*1.4426950408889634
NEG=f2u(-2.0**100); LLO=f2u(2.0**-64); LHI=f2u(2.0**64)
SPIN_MAX=1<<20
sNONCE=3; sWS=4
SRD_WS=8; SRD_A=12; SRD_B=16; SRD_C=20
sW=24; sX=25; sI=26; sJ=27; sA=28; sBR=29; sRB=30; sH=31
sMASK=40
pWOA=84; pWOB=86; pOUT=88

class Stamps:
    def __init__(s, A, on): s.A=A; s.on=on; s.n=0; s.names=[]
    def rt(s,name):
        if not s.on: return
        s.A("s_memrealtime s[80:81]", "s_waitcnt lgkmcnt(0)", f"s_mov_b32 s{64+s.n}, s80"); s.names.append(name); s.n+=1
    def cyc(s,name):
        if not s.on: return
        s.A("s_memtime s[80:81]", "s_waitcnt lgkmcnt(0)", f"s_mov_b32 s{64+s.n}, s80"); s.names.append(name); s.n+=1
    def flush(s, vtmp):
        if not s.on: return
        A=s.A
        A(f"s_mov_b32 s92, s{sWS}", f"s_mov_b32 s93, s{sWS+1}", "s_mov_b32 s94, 0x10000000", "s_mov_b32 s95, 0x00020000")
        A(f"s_lshl_b32 s80, s2, 3", f"s_add_u32 s80, s80, s{sW}", "s_lshl_b32 s80, s80, 6", f"s_add_u32 s80, s80, {STAMP_OFF}")
        for i in range(s.n):
            A(f"v_mov_b32 v{vtmp}, s{64+i}", f"v_mov_b32 v{vtmp+1}, {4*i}", f"buffer_store_dword v{vtmp}, v{vtmp+1}, s[92:95], s80 offen")

def srd(A, s, base, size):
    A(f"s_mov_b32 s{s}, s{base}", f"s_mov_b32 s{s+1}, s{base+1}", f"s_mov_b32 s{s+2}, {size}", f"s_mov_b32 s{s+3}, 0x00020000")

def poll(A, tag, flag_off_sgpr, vaddr, vtmp):
    A(f"s_cmp_lg_u32 s{sW}, 0", f"s_cbranch_scc1 L_{tag}_skip")
    A(f"v_and_b32 v{vaddr}, 31, v0", f"v_mul_u32_u24 v{vaddr}, {FSTR}, v{vaddr}", f"s_mov_b32 s42, {SPIN_MAX}")
    A(f"L_{tag}_loop:")
    A(f"buffer_load_dword v{vtmp}, v{vaddr}, s[{SRD_WS}:{SRD_WS+3}], s{flag_off_sgpr} offen sc1")
    A("s_waitcnt vmcnt(0)")
    A(f"v_cmp_ne_u32 vcc, s{sNONCE}, v{vtmp}", "s_nop 1", "s_cmp_eq_u64 vcc, 0", f"s_cbranch_scc1 L_{tag}_skip")
    A("s_sub_u32 s42, s42, 1", "s_cmp_eq_u32 s42, 0", f"s_cbranch_scc1 L_{tag}_skip", "s_sleep 1", f"s_branch L_{tag}_loop")
    A(f"L_{tag}_skip:")

def setflag(A, tag, off_sgpr, vt):
    A(f"s_cmp_lg_u32 s{sW}, 0", f"s_cbranch_scc1 L_{tag}_nf")
    A(f"v_mov_b32 v{vt}, s{sNONCE}", f"v_mov_b32 v{vt+1}, 0", "s_mov_b64 exec, 1",
      f"buffer_store_dword v{vt}, v{vt+1}, s[{SRD_WS}:{SRD_WS+3}], s{off_sgpr} offen sc1", "s_mov_b64 exec, -1")
    A(f"L_{tag}_nf:")

def phase1(A, ST, opt):
    lane=2; vX=3; vX2=27; vW=4; t0=5; t1=6; t2=7; hh_t=8
    SC1=" sc1"
    A(f"v_lshrrev_b32 v{t0}, 3, v{lane}", f"s_lshl_b32 s42, s{sW}, 3", f"v_add_u32 v{t0}, s42, v{t0}",
      f"v_lshrrev_b32 v{t1}, 1, v{t0}", f"v_and_b32 v{t1}, 7, v{t1}", f"v_and_b32 v{t2}, 7, v{lane}", f"v_xor_b32 v{t1}, v{t1}, v{t2}",
      f"v_lshlrev_b32 v{t1}, 4, v{t1}", f"s_lshl_b32 s43, s{sRB}, 7", f"v_add_u32 v{vX}, s43, v{t0}", f"v_lshlrev_b32 v{vX}, 10, v{vX}",
      f"v_add_u32 v{vX}, v{vX}, v{t1}", f"v_add_u32 v{vX2}, 0x10000, v{vX}")
    A(f"v_bfe_u32 v{t1}, v{lane}, 4, 1", f"v_lshlrev_b32 v{t1}, 2, v{t1}", f"v_xor_b32 v{t1}, v{t1}, v{t2}", f"v_lshlrev_b32 v{t1}, 4, v{t1}",
      f"s_mov_b32 s44, 3072", f"v_mul_lo_u32 v{vW}, v{t0}, s44", f"v_add_u32 v{vW}, v{vW}, v{t1}", f"s_lshl_b32 s45, s{sX}, 7", f"v_add_u32 v{vW}, s45, v{vW}")
    STG=40960
    A(f"s_lshl_b32 s46, s{sW}, 10")
    def dma_list(c):
        st=c%4
        L=[]
        L.append([f"s_mov_b32 s47, {c*128}", f"s_add_u32 m0, s46, {st*STG}", "NOP", f"buffer_load_dwordx4 v{vX}, s[{SRD_A}:{SRD_A+3}], s47 offen lds"])
        L.append([f"s_add_u32 m0, s46, {st*STG+8192}", "NOP", f"buffer_load_dwordx4 v{vX2}, s[{SRD_A}:{SRD_A+3}], s47 offen lds"])
        for seg in range(3):
            pre=[f"s_mov_b32 s48, {c*64*3072}"] if seg==0 else []
            L.append(pre+[f"s_add_u32 m0, s46, {st*STG+16384+seg*8192-seg*1024}", "NOP", f"buffer_load_dwordx4 v{vW}, s[{SRD_B}:{SRD_B+3}], s48 offen offset:{seg*1024} lds"])
        return L
    def emit_dma(group): A([("s_nop 0" if x=="NOP" else x) for x in group])
    A(f"s_and_b32 s34, s{sW}, 3", f"s_lshr_b32 s35, s{sW}, 2")
    A(f"s_cmp_eq_u32 s{sBR}, 0", "s_cselect_b32 s36, 1, 0", "s_cmp_eq_u32 s35, 0", "s_cselect_b32 s36, s36, 0")
    GW=128
    A(f"v_lshrrev_b32 v{hh_t}, 5, v{lane}")
    for g in dma_list(0): emit_dma(g)
    A("s_cmp_eq_u32 s36, 0", "s_cbranch_scc1 P1_nogateload")
    A(f"v_lshlrev_b32 v9, 4, v{hh_t}")
    for n in range(32): A(f"buffer_load_dwordx4 {vr(GW+4*n,4)}, v9, s[{SRD_C}:{SRD_C+3}], 0 offen offset:{n*32}")
    A("P1_nogateload:")
    for g in dma_list(1): emit_dma(g)
    aX=[10,11,12,13]; aX2=[14,15,16,17]; aW=18; aW2=19; r=20
    A(f"v_and_b32 v{r}, 31, v{lane}", f"v_lshrrev_b32 v{t0}, 1, v{r}", f"v_and_b32 v{t0}, 7, v{t0}", "s_lshl_b32 s42, s34, 5",
      f"v_add_u32 v{t1}, s42, v{r}", f"v_lshlrev_b32 v{t1}, 7, v{t1}")
    for s in range(4):
        A(f"v_or_b32 v{t2}, {2*s}, v{hh_t}", f"v_xor_b32 v{t2}, v{t2}, v{t0}", f"v_lshlrev_b32 v{t2}, 4, v{t2}",
          f"v_add_u32 v{aX[s]}, v{t1}, v{t2}", f"v_add_u32 v{aX2[s]}, {2*STG}, v{aX[s]}")
    A(f"v_bfe_u32 v{t0}, v{lane}, 2, 2", f"v_lshl_add_u32 v{t1}, v{hh_t}, 3, v{t0}", f"v_lshlrev_b32 v{t1}, 7, v{t1}",
      f"v_bfe_u32 v{t2}, v{lane}, 4, 1", f"v_lshlrev_b32 v{t2}, 1, v{t2}", f"v_bfe_u32 v21, v{lane}, 1, 1", f"v_add_u32 v{t2}, v{t2}, v21",
      "s_lshl_b32 s42, s35, 2", f"v_add_u32 v{t2}, s42, v{t2}", f"v_bfe_u32 v21, v{lane}, 3, 1", "v_lshlrev_b32 v21, 2, v21",
      f"v_xor_b32 v{t2}, v{t2}, v21", f"v_lshlrev_b32 v{t2}, 4, v{t2}", f"v_add_u32 v{t1}, v{t1}, v{t2}",
      f"v_and_b32 v21, 1, v{lane}", "v_lshlrev_b32 v21, 3, v21", f"v_add_u32 v{t1}, v{t1}, v21",
      f"v_add_u32 v{aW}, 16384, v{t1}", f"v_add_u32 v{aW2}, {16384+2*STG}, v{t1}")
    TQ=32; TK=48; TV=64
    XF=[80,84]; WF=[[88,92,96],[100,104,108]]; GA=22
    for i in range(48): A(f"v_mov_b32 v{TQ+i}, 0")
    A(f"v_mov_b32 v{GA}, 0")
    def reads(n):
        c,s=divmod(n,4); st=c%4; b=n%2
        ax = aX[s] if st<2 else aX2[s]; aw = aW if st<2 else aW2
        so=(st%2)*STG
        L=[f"ds_read_b128 {vr(XF[b],4)}, v{ax} offset:{so}"]
        for seg in range(3):
            for rr in range(2):
                L.append(f"ds_read_b64_tr_b16 {vr(WF[b][seg]+2*rr,2)}, v{aw} offset:{so+seg*8192+(16*s+4*rr)*128}")
        return L
    def mainloop(gate):
        A("s_waitcnt vmcnt(5)", "s_barrier")
        ST.rt("p1_data")
        A(reads(0))
        sched={0:dma_list(2)+dma_list(3), 1:dma_list(4), 2:dma_list(5), 3:dma_list(6), 4:dma_list(7), 5:[], 6:[], 7:[]}
        for n in range(32):
            c,s=divmod(n,4); b=n%2
            groups=sched[c]
            per=(len(groups)+3)//4
            mine=groups[s*per:(s+1)*per]
            if s==3 and c<7:
                X={0:10,1:10,2:10,3:10,4:10,5:5,6:0}[c]
                assert True
                A("s_waitcnt lgkmcnt(0)")
                for g in mine: emit_dma(g)
                mine=[]
                A(f"s_waitcnt vmcnt({X})", "s_barrier")
                A(reads(n+1))
            elif n<31:
                A(reads(n+1))
                A("s_waitcnt lgkmcnt(7)")
            else:
                A("s_waitcnt lgkmcnt(0)")
            mf=[mfma32(TQ, WF[b][0], XF[b], TQ), mfma32(TK, WF[b][1], XF[b], TK), mfma32(TV, XF[b], WF[b][2], TV)]
            gt=[[f"v_dot2_f32_bf16 v{GA}, v{XF[b]}, v{GW+4*n}, v{GA}", f"v_dot2_f32_bf16 v{GA}, v{XF[b]+1}, v{GW+4*n+1}, v{GA}"],
                [f"v_dot2_f32_bf16 v{GA}, v{XF[b]+2}, v{GW+4*n+2}, v{GA}", f"v_dot2_f32_bf16 v{GA}, v{XF[b]+3}, v{GW+4*n+3}, v{GA}"],[]]
            for k in range(3):
                A(mf[k])
                if gate: A(gt[k])
                if k<len(mine): emit_dma(mine[k])
            for g in mine[3:]: emit_dma(g)
    A("s_cmp_eq_u32 s36, 0", "s_cbranch_scc1 P1_main_nogate")
    nsave=ST.n
    mainloop(True)
    A("s_nop 1", f"v_mov_b32 v23, v{GA}", "s_nop 1", f"v_permlane32_swap_b32 v23, v{GA}", "s_nop 1", f"v_add_f32 v{GA}, v23, v{GA}",
      f"v_mul_f32 v{GA}, {hex(f2u(-1.4426950408889634))}, v{GA}", f"v_exp_f32 v{GA}, v{GA}", "s_nop 0", f"v_add_f32 v{GA}, 1.0, v{GA}",
      f"v_rcp_f32 v{GA}, v{GA}", f"s_lshl_b32 s42, s{sRB}, 7", "s_lshl_b32 s43, s34, 5", "s_add_u32 s42, s42, s43",
      f"v_add_u32 v23, s42, v{r}", "v_lshlrev_b32 v23, 2, v23", f"s_lshl_b32 s43, s{sX}, 13", f"s_add_u32 s43, s43, {GOFF}",
      f"buffer_store_dword v{GA}, v23, s[{SRD_WS}:{SRD_WS+3}], s43 offen{SC1}")
    A("s_branch P1_epi")
    A("P1_main_nogate:")
    if ST.on:
        ST.n=nsave; ST.names=ST.names[:nsave]
    mainloop(False)
    A("P1_epi:")
    ST.rt("p1_loop")
    A(f"s_lshl_b32 s42, s{sX}, 2", "s_lshl_b32 s43, s35, 1", "s_add_u32 s42, s42, s43", f"s_lshl_b32 s43, s{sBR}, 5", "s_add_u32 s42, s42, s43",
      "s_lshl_b32 s42, s42, 16", f"s_lshl_b32 s43, s{sRB}, 2", "s_add_u32 s43, s43, s34", "s_lshl_b32 s43, s43, 10", "s_add_u32 s42, s42, s43")
    A(f"v_lshlrev_b32 v24, 4, v{lane}", f"s_mov_b32 s44, {hex(f2u(QSCALE))}", "s_nop 7")
    PK=80
    W_=f"s[{SRD_WS}:{SRD_WS+3}]"
    for i in range(8): A(f"v_cvt_pk_bf16_f32 v{PK+8+i}, v{TK+2*i}, v{TK+2*i+1}")
    A(f"s_add_u32 s45, s42, {KF}", f"s_add_u32 s46, s45, 65536")
    A(f"buffer_store_dwordx4 {vr(PK+8,4)}, v24, {W_}, s45 offen{SC1}", f"buffer_store_dwordx4 {vr(PK+12,4)}, v24, {W_}, s46 offen{SC1}")
    A(f"v_bfe_u32 v25, v{lane}, 4, 1", "v_lshlrev_b32 v25, 16, v25", f"v_lshl_add_u32 v25, v{hh_t}, 8, v25", f"v_and_b32 v26, 15, v{lane}", "v_lshl_add_u32 v25, v26, 4, v25")
    for i in range(8): A(f"v_cvt_pk_bf16_f32 v{PK+16+i}, v{TV+2*i}, v{TV+2*i+1}")
    A(f"s_add_u32 s45, s42, {VF}")
    A(f"buffer_store_dwordx4 {vr(PK+16,4)}, v25, {W_}, s45 offen{SC1}", f"buffer_store_dwordx4 {vr(PK+20,4)}, v25, {W_}, s45 offen offset:512{SC1}")
    for i in range(16): A(f"v_mul_f32 v{TQ+i}, s44, v{TQ+i}")
    for i in range(8): A(f"v_cvt_pk_bf16_f32 v{PK+i}, v{TQ+2*i}, v{TQ+2*i+1}")
    A(f"s_add_u32 s45, s42, {QF}", f"s_add_u32 s46, s45, 65536")
    A(f"buffer_store_dwordx4 {vr(PK,4)}, v24, {W_}, s45 offen{SC1}", f"buffer_store_dwordx4 {vr(PK+4,4)}, v24, {W_}, s46 offen{SC1}")
    A("s_waitcnt vmcnt(0)", "s_barrier")
    ST.rt("p1_stored")
    A(f"s_mul_i32 s42, s{sX}, {32*FSTR}", f"s_mul_i32 s43, s{sI}, {FSTR}", "s_add_u32 s43, s43, s42", f"s_add_u32 s43, s43, {FL+FL_F1}", f"s_add_u32 s38, s42, {FL+FL_F1}")
    setflag(A,"f1",43,5)
    poll(A,"p1",38,5,6)
    A("s_barrier")
    ST.rt("p1_flags")

LANE=1
QA0=4; QA1=8; QB=12
OA0=16; OA1=32
S0=48; S1=64
P=80
KB_=88; VB_=96
MF=112; MD=128; CB=144
vKa=160; vVa=161
vG=162; vL16=163; vT=164; vT2=165; vT3=166; vNEGM=167; vM=168; vKs=169; vVs=170; vGB=171; vX0=172
VL=vX0+11
LDS_KA=0; LDS_VA=65536; LDS_KB=131072; LDS_VB=147456
def exps(S): return [f"v_exp_f32 v{S+i}, v{S+i}" for i in range(16)]
def cvts(S): return [f"v_cvt_pk_bf16_f32 v{P+i}, v{S+2*i}, v{S+2*i+1}" for i in range(8)]
MK=[f"s_mov_b64 exec, s[{sMASK}:{sMASK+1}]"]; UM=["s_mov_b64 exec, -1"]
def unit(A, Sc, QK, PV1, ld, wK, wV, PV0):
    e=exps(Sc); c=cvts(Sc)
    A(wK, QK)
    A(e[0:4], c[0], e[4:6], c[1])
    A(PV1, ld)
    A(e[6:8], c[2], e[8:10], c[3], e[10:12])
    A(wV, PV0)
    A(e[12:13], c[4], e[13:15], c[5], e[15:16], c[6], c[7])
def slow_pass(A, tag, Q, O, pass1, far, diag, n):
    A(f"v_mov_b32 v{vX0}, v{vKs}", f"v_mov_b32 v{vX0+1}, v{vVs}", "s_mov_b32 s60, 0")
    if pass1: A(f"v_mov_b32 v{vM}, {hex(NEG)}", f"v_mov_b32 v{vNEGM}, 0")
    else:
        for i in range(16): A(f"v_mov_b32 v{O+i}, 0")
    A(f"L_{tag}_loop:")
    A(f"ds_read_b128 {vr(KB_,4)}, v{vX0}")
    if not pass1: A(MK, f"ds_read_b128 {vr(VB_,4)}, v{vX0+1}", f"ds_read_b128 {vr(VB_+4,4)}, v{vX0+1} offset:512", UM)
    A("s_cmp_eq_u32 s60, 0", f"s_cselect_b32 s61, s{far}, 0", "s_cmp_lg_u32 s61, 0", f"s_cbranch_scc1 L_{tag}_far")
    A(f"s_add_u32 s61, s60, 1", f"s_cmp_eq_u32 s61, s{n}", f"s_cselect_b32 s61, s{diag}, 0", "s_cmp_lg_u32 s61, 0", f"s_cbranch_scc1 L_{tag}_diag")
    for i in range(16): A(f"v_mov_b32 v{CB+i}, v{vNEGM}")
    A(f"s_branch L_{tag}_go")
    A(f"L_{tag}_far:")
    for i in range(16): A(f"v_add_f32 v{CB+i}, v{MF+i}, v{vNEGM}")
    A(f"s_branch L_{tag}_go")
    A(f"L_{tag}_diag:")
    for i in range(16): A(f"v_add_f32 v{CB+i}, v{MD+i}, v{vNEGM}")
    A(f"L_{tag}_go:")
    A("s_waitcnt lgkmcnt(0)", "s_nop 0")
    A(mfma32(S0, KB_, Q, CB))
    A("s_nop 7","s_nop 3")
    if pass1:
        for i in range(16): A(f"v_max_f32 v{vM}, v{vM}, v{S0+i}")
    else:
        A(exps(S0), "s_nop 0", cvts(S0), "s_nop 1")
        A(mfma32(O, VB_, P, O), mfma32(O, VB_+4, P+4, O))
    A(f"v_add_u32 v{vX0}, 1024, v{vX0}", f"v_add_u32 v{vX0+1}, 1024, v{vX0+1}")
    A("s_add_u32 s60, s60, 1", f"s_cmp_lt_u32 s60, s{n}", f"s_cbranch_scc1 L_{tag}_loop")
    if pass1:
        A(f"v_mov_b32 v{vT}, v{vM}", "s_nop 1", f"v_permlane32_swap_b32 v{vT}, v{vM}", "s_nop 1",
          f"v_max_f32 v{vM}, v{vM}, v{vT}", f"v_sub_f32 v{vNEGM}, 0, v{vM}")
    else: A("s_nop 7","s_nop 3")
def bcast_l(A,O):
    A(f"v_mov_b32 v{vT}, v{O+8}", "s_nop 1", f"v_permlane32_swap_b32 v{vT}, v{O+8}", "s_nop 1", f"v_add_f32 v{O+8}, v{O+8}, v{vT}")
def check_range(A, O, okl):
    bcast_l(A,O)
    A(f"v_mov_b32 v{vT}, v{O+8}")
    for i in range(8): A(f"v_fma_f32 v{vT}, v{O+i}, 0, v{vT}")
    A(f"s_mov_b32 s44, {hex(LLO)}", f"s_mov_b32 s45, {hex(LHI)}")
    A(f"v_cmp_le_f32 s[46:47], s44, v{vT}", f"v_cmp_ge_f32 s[48:49], s45, v{vT}", "s_nop 1",
      "s_and_b64 s[46:47], s[46:47], s[48:49]", "s_cmp_eq_u64 s[46:47], -1", f"s_cbranch_scc1 {okl}")
def finalize(A, O, scale_reg, soff):
    A(f"v_rcp_f32 v{vT}, v{O+8}", "s_nop 0", f"v_mul_f32 v{vT}, v{vT}, v{scale_reg}")
    for i in range(8): A(f"v_mul_f32 v{O+i}, v{O+i}, v{vT}")
    for i in range(4): A(f"v_cvt_pk_bf16_f32 v{vX0+4+i}, v{O+2*i}, v{O+2*i+1}")
    A(f"buffer_store_dwordx4 {vr(vX0+4,4)}, v{vL16}, s[{SRD_WS}:{SRD_WS+3}], s{soff} offen sc1")

def phase2(A, ST, opt):
    W_=f"s[{SRD_WS}:{SRD_WS+3}]"
    SC=" sc1"
    A(f"v_and_b32 v{LANE}, 63, v0")
    A(f"s_and_b32 s15, s{sW}, 3", f"s_lshr_b32 s16, s{sW}, 2")
    A("s_lshl_b32 s17, s15, 1", "s_add_u32 s17, s17, s16",
      f"s_lshl_b32 s18, s{sJ}, 3", "s_add_u32 s19, s18, s17",
      f"s_lshl_b32 s20, s{sH}, 16", f"s_add_u32 s21, s20, {32*65536}")
    A(f"v_lshlrev_b32 v{vL16}, 4, v{LANE}")
    A("s_lshl_b32 s22, s19, 10", "s_add_u32 s22, s22, s21", f"s_add_u32 s22, s22, {QF}",
      f"buffer_load_dwordx4 {vr(QB,4)}, v{vL16}, {W_}, s22 offen{SC}")
    A(f"v_and_b32 v{vT}, 31, v{LANE}", "s_lshl_b32 s23, s19, 5", f"v_add_u32 v{vT2}, s23, v{vT}", f"v_lshlrev_b32 v{vT2}, 2, v{vT2}",
      f"s_lshl_b32 s42, s{sX}, 13", f"s_add_u32 s42, s42, {GOFF}", f"buffer_load_dword v{vG}, v{vT2}, {W_}, s42 offen{SC}")
    for ii in range(2):
        A(f"s_add_u32 s43, s{sW}, {8*ii}", "s_add_u32 s44, s18, s43", "s_sub_u32 s44, s44, 8", "s_max_i32 s44, s44, 0",
          "s_lshl_b32 s44, s44, 10", "s_add_u32 s44, s44, s21", "s_lshl_b32 s43, s43, 10")
        A(f"s_add_u32 m0, s43, {LDS_KB}", f"s_add_u32 s45, s44, {KF}", f"buffer_load_dwordx4 v{vL16}, {W_}, s45 offen{SC} lds")
        A(f"s_add_u32 m0, s43, {LDS_VB}", f"s_add_u32 s45, s44, {VF}", f"buffer_load_dwordx4 v{vL16}, {W_}, s45 offen{SC} lds")
    A("s_lshl_b32 s22, s15, 1", "s_add_u32 s22, s22, s18", "s_lshl_b32 s22, s22, 10", "s_add_u32 s22, s22, s20", f"s_add_u32 s22, s22, {QF}",
      f"buffer_load_dwordx4 {vr(QA0,4)}, v{vL16}, {W_}, s22 offen{SC}",
      f"buffer_load_dwordx4 {vr(QA1,4)}, v{vL16}, {W_}, s22 offen offset:1024{SC}")
    A(f"s_lshl_b32 s43, s{sW}, 10", "s_add_u32 s44, s43, s20")
    for m in range(8):
        A(f"s_add_u32 m0, s43, {LDS_KA+m*8192}", f"s_add_u32 s45, s44, {KF+m*8192}", f"buffer_load_dwordx4 v{vL16}, {W_}, s45 offen{SC} lds")
        A(f"s_add_u32 m0, s43, {LDS_VA+m*8192}", f"s_add_u32 s45, s44, {VF+m*8192}", f"buffer_load_dwordx4 v{vL16}, {W_}, s45 offen{SC} lds")
    A(f"s_mov_b32 s{sMASK}, 0x0000ffff", f"s_mov_b32 s{sMASK+1}, 0x0000ffff")
    A(f"v_cmp_eq_u32 vcc, 16, v{vT}", f"v_mov_b32 v{vX0}, 0x3f803f80", "s_nop 0", f"v_cndmask_b32 v{vX0+1}, 0, v{vX0}, vcc")
    for i in range(16): A(f"v_mov_b32 v{VB_+i}, v{vX0+1}")
    hh=vT3
    A(f"v_lshrrev_b32 v{hh}, 5, v{LANE}", f"v_lshlrev_b32 v{vT2}, 2, v{hh}", f"v_sub_u32 v{vT2}, v{vT}, v{vT2}")
    A(f"v_mov_b32 v{vX0}, {hex(NEG)}")
    for g in range(4):
        for k in range(4): A(f"v_cmp_gt_i32 s[{44+2*k}:{45+2*k}], {8*g+k}, v{vT2}")
        A("s_nop 0")
        for k in range(4):
            i=4*g+k
            A(f"v_cndmask_b32 v{MF+i}, v{vX0}, 0, s[{44+2*k}:{45+2*k}]", f"v_cndmask_b32 v{MD+i}, 0, v{vX0}, s[{44+2*k}:{45+2*k}]")
    A(f"v_and_b32 v{vT}, 15, v{LANE}", f"v_lshlrev_b32 v{vT}, 4, v{vT}", f"v_lshl_add_u32 v{VL}, v{hh}, 8, v{vT}")
    A("s_lshl_b32 s43, s17, 10", f"s_add_u32 s44, s43, {LDS_KB}", f"v_add_u32 v{vKa}, s44, v{vL16}",
      f"s_add_u32 s44, s43, {LDS_VB}", f"v_add_u32 v{vVa}, s44, v{VL}")
    A("s_lshl_b32 s32, s19, 16", f"s_lshl_b32 s33, s{sH}, 10", "s_add_u32 s32, s32, s33", f"s_add_u32 s32, s32, {OF}", "s_add_u32 s33, s32, 32768")
    OB=OA0
    for i in range(16): A(f"v_mov_b32 v{OB+i}, 0")
    for i in range(4): A(f"v_mov_b32 v{P+4+i}, 0")
    A("s_waitcnt vmcnt(18)", "s_barrier")
    ST.rt("b_data")
    def ldK(t,base): return [f"ds_read_b128 {vr(KB_+4*(t%2),4)}, v{base} offset:{t*1024}"]
    def ldV(t,base): return MK+[f"ds_read_b128 {vr(VB_+8*(t%2),4)}, v{base} offset:{t*1024}", f"ds_read_b128 {vr(VB_+8*(t%2)+4,4)}, v{base} offset:{t*1024+512}"]+UM
    NB=9
    A("s_mov_b32 s51, 1", f"s_cmp_eq_u32 s{sJ}, 0", "s_cselect_b32 s50, 0, 1", "s_sub_u32 s53, 8, s17", "s_cselect_b32 s53, s53, 0")
    A.L.pop()
    A(f"s_cmp_eq_u32 s{sJ}, 0", "s_cselect_b32 s53, s53, 0")
    A("s_sub_u32 s52, 9, s53")
    A("s_lshl_b32 s43, s53, 10", f"v_add_u32 v{vKs}, s43, v{vKa}", f"v_add_u32 v{vVs}, s43, v{vVa}")
    for s0 in range(NB):
        A(f"s_cmp_eq_u32 s53, {s0}", f"s_cbranch_scc1 B_pro{s0}")
    for s0 in range(NB-1,-1,-1):
        A(f"B_pro{s0}:")
        Sc=S0 if s0%2==0 else S1
        C = MF if s0==0 else (MD if s0==NB-1 else "0")
        A(ldK(s0,vKa), "s_waitcnt lgkmcnt(0)", mfma32(Sc, KB_+4*(s0%2), QB, C))
        if s0==0:
            A(ldV(0,vVa), ldK(1,vKa))
        else:
            if s0+1<NB: A(ldK(s0+1,vKa))
            A(ldV(s0,vVa))
        A("s_nop 7","s_nop 3")
        if s0!=0: A(f"s_branch B_step{s0}")
    for t in range(NB):
        A(f"B_step{t}:")
        Sc=S0 if t%2==0 else S1; Sn=S1 if t%2==0 else S0
        if t+1<NB:
            QK=[mfma32(Sn, KB_+4*((t+1)%2), QB, MD if t+1==NB-1 else "0")]
            wK=["s_waitcnt lgkmcnt(0)"] if t==0 else ["s_waitcnt lgkmcnt(2)"]
        else: QK=[]; wK=[]
        PV1=[mfma32(OB, VB_+8*((t-1)%2)+4, P+4, OB)] if t>0 else []
        ld=[]
        if t+2<NB: ld+=ldK(t+2,vKa)
        if t+1<NB: ld+=ldV(t+1,vVa)
        nld=(1 if t+2<NB else 0)+(2 if t+1<NB else 0)
        wV=[f"s_waitcnt lgkmcnt({nld})"]
        PV0=[mfma32(OB, VB_+8*(t%2), P, OB)]
        unit(A,Sc,QK,PV1,ld,wK,wV,PV0)
    A("s_nop 1", mfma32(OB, VB_+8*((NB-1)%2)+4, P+4, OB))
    A("s_nop 7","s_nop 3")
    check_range(A,OB,"B_ok")
    slow_pass(A,"bf1",QB,OB,True,50,51,52)
    slow_pass(A,"bf2",QB,OB,False,50,51,52)
    bcast_l(A,OB)
    A("B_ok:")
    A(f"v_sub_f32 v{vT2}, 1.0, v{vG}")
    finalize(A,OB,vT2,33)
    ST.rt("b_done")
    A("s_waitcnt vmcnt(1)", "s_barrier")
    ST.rt("a_start")
    A("s_lshl_b32 s43, s16, 15", f"v_add_u32 v{vKa}, s43, v{vL16}", f"s_add_u32 s44, s43, {LDS_VA}", f"v_add_u32 v{vVa}, s44, v{VL}")
    for i in range(32): A(f"v_mov_b32 v{OA0+i}, 0")
    for i in range(4): A(f"v_mov_b32 v{P+4+i}, 0")
    Qr=[QA0,QA1]; Or=[OA0,OA1]
    A(ldK(0,vKa), ldV(0,vVa), "s_waitcnt lgkmcnt(2)", mfma32(S0, KB_, QA0, "0"))
    A("s_mov_b32 s53, 4", "s_nop 7", "s_nop 2")
    A(".p2align 3", "A_loop:")
    for pr in (3,2,1,0):
        A(f"s_cmp_eq_u32 s53, {pr+1}", f"s_cbranch_scc0 A_lp{pr}", f"s_setprio {pr}", f"A_lp{pr}:")
    NK=8
    units=[(t,qi) for t in range(NK) for qi in range(2)]
    for u,(t,qi) in enumerate(units):
        Sc=S0 if u%2==0 else S1; Sn=S1 if u%2==0 else S0
        tn,qn=(t,1) if qi==0 else (t+1,0)
        tp,qp=(t-1,1) if qi==0 else (t,0)
        QK=[mfma32(Sn, KB_+4*(tn%2), Qr[qn], "0")]
        PV1=[mfma32(Or[qp], VB_+8*(tp%2)+4, P+4, Or[qp])]
        PV0=[mfma32(Or[qi], VB_+8*(t%2), P, Or[qi])]
        ld=[];wK=[];wV=[]
        if qi==0: ld=ldK(t+1,vKa)+ldV(t+1,vVa); wV=["s_waitcnt lgkmcnt(3)"]
        else: wK=["s_waitcnt lgkmcnt(2)"]
        unit(A,Sc,QK,PV1,ld,wK,wV,PV0)
    A(f"v_add_u32 v{vKa}, {NK*1024}, v{vKa}", f"v_add_u32 v{vVa}, {NK*1024}, v{vVa}")
    A("s_sub_u32 s53, s53, 1", "s_cmp_lg_u32 s53, 0", "s_cbranch_scc1 A_loop")
    A(mfma32(OA1, VB_+8*((NK-1)%2)+4, P+4, OA1))
    A("s_waitcnt lgkmcnt(0)", "s_nop 7", "s_nop 3")
    ST.rt("a_loop")
    A("s_cmp_eq_u32 s16, 0", "s_cbranch_scc1 A_X0")
    for i in range(9): A(f"v_mov_b32 v{vT}, v{OA0+i}", f"v_mov_b32 v{OA0+i}, v{OA1+i}", f"v_mov_b32 v{OA1+i}, v{vT}")
    A("A_X0:")
    A(f"s_mul_i32 s43, s{sW}, 2560", f"s_add_u32 s43, s43, {LDS_KB}", f"v_add_u32 v{vT}, s43, v{vL16}",
      f"v_lshlrev_b32 v{vT2}, 2, v{LANE}", f"v_add_u32 v{vT2}, s43, v{vT2}")
    A(f"ds_write_b128 v{vT}, {vr(OA1,4)}", f"ds_write_b128 v{vT}, {vr(OA1+4,4)} offset:1024", f"ds_write_b32 v{vT2}, v{OA1+8} offset:2048")
    A(f"s_xor_b32 s44, s{sW}, 4", "s_mul_i32 s43, s44, 2560", f"s_add_u32 s43, s43, {LDS_KB}", f"v_add_u32 v{vT}, s43, v{vL16}",
      f"v_lshlrev_b32 v{vT2}, 2, v{LANE}", f"v_add_u32 v{vT2}, s43, v{vT2}")
    A("s_waitcnt lgkmcnt(0)", "s_barrier")
    A(f"ds_read_b128 {vr(S0,4)}, v{vT}", f"ds_read_b128 {vr(S0+4,4)}, v{vT} offset:1024", f"ds_read_b32 v{S0+8}, v{vT2} offset:2048")
    A("s_waitcnt lgkmcnt(0)")
    for i in range(9): A(f"v_add_f32 v{OA0+i}, v{OA0+i}, v{S0+i}")
    check_range(A,OA0,"A_ok")
    A("s_cmp_eq_u32 s16, 0", "s_cbranch_scc1 A_F0")
    for i in range(4): A(f"v_mov_b32 v{QA0+i}, v{QA1+i}")
    A("A_F0:")
    A("s_mov_b32 s50, 0", "s_mov_b32 s51, 0", "s_mov_b32 s52, 64")
    A(f"v_add_u32 v{vKs}, {LDS_KA}, v{vL16}", f"v_add_u32 v{vVs}, {LDS_VA}, v{VL}")
    slow_pass(A,"af1",QA0,OA0,True,50,51,52)
    slow_pass(A,"af2",QA0,OA0,False,50,51,52)
    bcast_l(A,OA0)
    A("A_ok:")
    finalize(A,OA0,vG,32)

def phase3(A, ST, opt):
    W_=f"s[{SRD_WS}:{SRD_WS+3}]"
    lane=LANE
    srd(A,SRD_A,pWOA,512*512*2); srd(A,SRD_B,pWOB,512*512*2); srd(A,SRD_C,pOUT,2048*512*2)
    A(f"s_and_b32 s34, s{sI}, 3", f"s_lshr_b32 s35, s{sI}, 2")
    A("s_barrier")
    vW=4
    A(f"v_lshrrev_b32 v5, 3, v{lane}", "v_lshlrev_b32 v5, 10, v5", f"v_bfe_u32 v6, v{lane}, 4, 1", "v_lshlrev_b32 v6, 2, v6", f"v_and_b32 v7, 7, v{lane}",
      "v_xor_b32 v6, v6, v7", "v_lshlrev_b32 v6, 4, v6", "v_add_u32 v5, v5, v6", "s_lshl_b32 s42, s35, 7", f"v_add_u32 v{vW}, s42, v5")
    A(f"s_and_b32 s43, s{sW}, 3", "s_lshl_b32 s43, s43, 17", f"s_lshl_b32 s44, s{sW}, 14")
    A(f"s_cmp_ge_u32 s{sW}, 4", "s_cbranch_scc1 P3_wB")
    for br,lab in ((0,None),(1,"P3_wB")):
        if lab: A("s_branch P3_wdone", f"{lab}:")
        S_=SRD_A if br==0 else SRD_B
        for ii in range(16):
            A(f"s_add_u32 m0, s44, {ii*1024}", f"s_add_u32 s45, s43, {ii*8192}", f"buffer_load_dwordx4 v{vW}, s[{S_}:{S_+3}], s45 offen lds")
    A("P3_wdone:")
    A("s_waitcnt vmcnt(16)", "s_barrier")
    ST.rt("o_stored")
    A(f"s_mul_i32 s42, s{sJ}, {32*FSTR}", f"s_mul_i32 s43, s{sH}, {FSTR}", "s_add_u32 s43, s43, s42", f"s_add_u32 s43, s43, {FL+FL_F2}")
    setflag(A,"f2",43,5)
    WR=128
    A(f"s_and_b32 s36, s{sW}, 1", f"s_bfe_u32 s37, s{sW}, 0x10001", f"s_lshr_b32 s38, s{sW}, 2")
    A(f"v_lshrrev_b32 v8, 5, v{lane}",
      f"v_bfe_u32 v5, v{lane}, 2, 2", "v_lshl_add_u32 v5, v8, 2, v5", "v_lshlrev_b32 v5, 7, v5",
      f"v_bfe_u32 v6, v{lane}, 4, 1", "v_lshlrev_b32 v6, 1, v6", f"v_bfe_u32 v7, v{lane}, 1, 1", "v_add_u32 v6, v6, v7",
      "s_lshl_b32 s42, s37, 2", "v_add_u32 v6, s42, v6",
      f"v_bfe_u32 v7, v{lane}, 3, 1", "v_lshlrev_b32 v7, 2, v7", "v_xor_b32 v6, v6, v7", "v_lshlrev_b32 v6, 4, v6", "v_add_u32 v5, v5, v6",
      f"v_and_b32 v7, 1, v{lane}", "v_lshlrev_b32 v7, 3, v7", "v_add_u32 v5, v5, v7",
      "s_lshl_b32 s42, s38, 16", "v_add_u32 v10, s42, v5")
    A("s_waitcnt vmcnt(0)", "s_barrier")
    ST.rt("w_landed")
    for s in range(32):
        A(f"ds_read_b64_tr_b16 {vr(WR+4*s,2)}, v10 offset:{(16*s)*128}", f"ds_read_b64_tr_b16 {vr(WR+4*s+2,2)}, v10 offset:{(16*s+8)*128}")
        if s%4==3: A("s_waitcnt lgkmcnt(4)")
    A("s_waitcnt lgkmcnt(0)")
    A(f"s_mul_i32 s42, s{sX}, {32*FSTR}", f"s_add_u32 s39, s42, {FL+FL_F2}")
    poll(A,"p2",39,5,6)
    A("s_barrier")
    ST.rt("p2_flags")
    A("s_cmp_lg_u32 s2, 0", "s_cbranch_scc1 P3_noep", f"s_mov_b32 s43, {FL+FL_EPOCH}")
    setflag(A,"ep",43,5)
    A("P3_noep:")
    A(f"v_lshlrev_b32 v3, 4, v{lane}")
    A(f"s_lshl_b32 s42, s{sX}, 3", "s_lshl_b32 s43, s34, 1", "s_add_u32 s42, s42, s43", "s_lshl_b32 s42, s42, 16", f"s_add_u32 s42, s42, {OF}")
    A("s_lshl_b32 s43, s36, 16", "s_lshl_b32 s44, s37, 15", "s_add_u32 s43, s43, s44", "s_lshl_b32 s44, s38, 12", "s_add_u32 s43, s43, s44")
    A("s_add_u32 s42, s42, s43")
    for qd in range(4):
        for ii in range(4):
            A(f"s_add_u32 m0, s43, {qd*8192+ii*1024}", f"s_add_u32 s45, s42, {qd*8192+ii*1024}", f"buffer_load_dwordx4 v3, {W_}, s45 offen sc1 lds")
    ACC=16; OFr=[32,36,40,44]
    for i in range(16): A(f"v_mov_b32 v{ACC+i}, 0")
    A("s_lshl_b32 s43, s36, 16", "s_lshl_b32 s44, s38, 15", "s_add_u32 s43, s43, s44", "v_add_u32 v11, s43, v3")
    for qd in range(4):
        A(f"s_waitcnt vmcnt({12-4*qd})", "s_barrier")
        for s in range(4): A(f"ds_read_b128 {vr(OFr[s],4)}, v11 offset:{(8*qd+s)*1024}")
        for s in range(8):
            n=8*qd+s
            A(f"s_waitcnt lgkmcnt({3 if s<5 else 7-s})")
            A(mfma32(ACC, WR+4*n, OFr[s%4], ACC))
            if s<4: A(f"ds_read_b128 {vr(OFr[s%4],4)}, v11 offset:{(8*qd+s+4)*1024}")
    ST.rt("p3_mfma")
    A("s_nop 7","s_nop 3","s_barrier")
    A(f"s_lshl_b32 s43, s{sW}, 11", "v_add_u32 v5, s43, v3", f"s_xor_b32 s44, s{sW}, 4", "s_lshl_b32 s44, s44, 11", "v_add_u32 v6, s44, v3")
    A("s_cmp_eq_u32 s38, 0", "s_cbranch_scc1 P3_k0")
    for i in range(8): A(f"v_mov_b32 v7, v{ACC+i}", f"v_mov_b32 v{ACC+i}, v{ACC+8+i}", f"v_mov_b32 v{ACC+8+i}, v7")
    A("P3_k0:")
    A(f"ds_write_b128 v5, {vr(ACC+8,4)}", f"ds_write_b128 v5, {vr(ACC+12,4)} offset:1024", "s_waitcnt lgkmcnt(0)", "s_barrier")
    A(f"ds_read_b128 {vr(32,4)}, v6", f"ds_read_b128 {vr(36,4)}, v6 offset:1024", "s_waitcnt lgkmcnt(0)")
    for i in range(8): A(f"v_add_f32 v{ACC+i}, v{ACC+i}, v{32+i}")
    PK=40
    for i in range(4): A(f"v_cvt_pk_bf16_f32 v{PK+i}, v{ACC+2*i}, v{ACC+2*i+1}")
    A("s_nop 1", f"v_permlane32_swap_b32 v{PK}, v{PK+2}", f"v_permlane32_swap_b32 v{PK+1}, v{PK+3}")
    A(f"v_and_b32 v5, 31, v{lane}", f"s_lshl_b32 s42, s{sX}, 8", "s_lshl_b32 s43, s34, 6", "s_add_u32 s42, s42, s43", "s_lshl_b32 s43, s36, 5", "s_add_u32 s42, s42, s43",
      "v_add_u32 v5, s42, v5", "v_lshlrev_b32 v5, 10, v5", "v_lshl_add_u32 v5, v8, 4, v5",
      "s_lshl_b32 s42, s35, 7", "s_lshl_b32 s43, s37, 6", "s_add_u32 s42, s42, s43", "s_lshl_b32 s43, s38, 5", "s_add_u32 s42, s42, s43")
    A(f"buffer_store_dwordx4 {vr(PK,4)}, v5, s[{SRD_C}:{SRD_C+3}], s42 offen")

def gen(opt=()):
    A=Asm(); ST=Stamps(A,'stamps' in opt)
    A(f".globl {NAME}", ".p2align 8", f".type {NAME},@function", f"{NAME}:")
    A("s_cmp_ge_u32 s2, 256", "s_cbranch_scc1 L_done")
    A(f"s_load_dwordx2 s[{sWS}:{sWS+1}], s[0:1], 72", "s_load_dwordx2 s[42:43], s[0:1], 0", "s_load_dwordx2 s[44:45], s[0:1], 8",
      "s_load_dwordx2 s[46:47], s[0:1], 32", "s_load_dwordx2 s[48:49], s[0:1], 48",
      f"s_load_dwordx2 s[{pWOA}:{pWOA+1}], s[0:1], 16", f"s_load_dwordx2 s[{pWOB}:{pWOB+1}], s[0:1], 40", f"s_load_dwordx2 s[{pOUT}:{pOUT+1}], s[0:1], 56")
    A(f"s_and_b32 s{sX}, s2, 7", f"s_lshr_b32 s{sI}, s2, 3", f"s_lshr_b32 s{sJ}, s{sI}, 2", f"s_and_b32 s{sA}, s{sI}, 3",
      f"s_lshr_b32 s{sBR}, s{sA}, 1", f"s_and_b32 s50, s{sA}, 1", f"s_lshl_b32 s{sRB}, s{sJ}, 1", f"s_add_u32 s{sRB}, s{sRB}, s50",
      f"s_lshl_b32 s{sH}, s{sX}, 2", f"s_add_u32 s{sH}, s{sH}, s{sA}")
    A("v_lshrrev_b32 v1, 6, v0", "v_and_b32 v2, 63, v0", "s_nop 0", f"v_readfirstlane_b32 s{sW}, v1")
    A("s_waitcnt lgkmcnt(0)")
    ST.rt("start"); ST.cyc("cyc0")
    A(f"s_add_u32 s6, s{sWS}, {FL+FL_EPOCH}", f"s_addc_u32 s7, s{sWS+1}, 0", "s_load_dword s3, s[6:7], 0")
    srd(A,SRD_WS,sWS,WS_SIZE)
    srd(A,SRD_A,42,2048*512*2)
    A(f"s_cmp_eq_u32 s{sBR}, 0", "s_cselect_b32 s44, s44, s46", "s_cselect_b32 s45, s45, s47")
    srd(A,SRD_B,44,512*1536*2)
    srd(A,SRD_C,48,1024)
    A("s_waitcnt lgkmcnt(0)", f"s_mul_i32 s{sNONCE}, s3, 0x9e3779b1", f"s_add_u32 s{sNONCE}, s{sNONCE}, 0x7f4a7c15")
    phase1(A,ST,opt)
    phase2(A,ST,opt)
    phase3(A,ST,opt)
    if ST.on: A("s_waitcnt vmcnt(0)")
    ST.rt("end"); ST.cyc("cyc1")
    ST.flush(120)
    A("L_done:", "s_endpgm")
    kd=f""".section .rodata,"a"
.p2align 6
.amdhsa_kernel {NAME}
  .amdhsa_next_free_vgpr 256
  .amdhsa_next_free_sgpr 102
  .amdhsa_accum_offset 256
  .amdhsa_group_segment_fixed_size 0
  .amdhsa_kernarg_size 80
  .amdhsa_user_sgpr_count 2
  .amdhsa_user_sgpr_kernarg_segment_ptr 1
  .amdhsa_system_sgpr_workgroup_id_x 1
.end_amdhsa_kernel
"""
    return A.text(), kd, ST.names

if __name__=='__main__':
    import sys, hazard
    out=sys.argv[1]; opt=tuple(sys.argv[2:])
    HDR=open('gated_mix__softmax_full_mha__sliding_block__prompt.s.ref').read().split('\n')
    hdr=[l for l in HDR if l.startswith(';') and 'launch' not in l.lower() and 'Override' not in l and 'grid=ceil' not in l]
    t,kd,names=gen(opt)
    s='\n'.join(hdr)+'\n'+"; @launch grid=(256,1,1) block=(512,1,1) lds=163840\n"+'.amdgcn_target "amdgcn-amd-amdhsa--gfx950"\n.text\n'+t+kd
    open(out,'w').write(s)
    print('hazards',len(hazard.check(t)),'bytes',len(s),'stamps',names)
```

```python
from asm import Asm, vr, sr, mfma32
import struct
def f2u(x): return struct.unpack('<I',struct.pack('<f',x))[0]
NAME="gated_mix__softmax_full_mha__sliding_block__prompt_kernel"
QF=0; KF=4<<20; VF=8<<20; GOFF=12<<20; OF=16<<20; FL=30<<20; WS_SIZE=31<<20
FL_EPOCH=0; FL_F1=1024; FL_F2=8192
FSTR=16
STAMP_OFF=32<<20
QSCALE=0.25*1.4426950408889634
NEG=f2u(-2.0**100); LLO=f2u(2.0**-64); LHI=f2u(2.0**64)
SPIN_MAX=1<<20
sNONCE=3; sWS=4
SRD_WS=8; SRD_A=12; SRD_B=16; SRD_C=20
sW=24; sX=25; sI=26; sJ=27; sA=28; sBR=29; sRB=30; sH=31
sMASK=40
pWOA=84; pWOB=86; pOUT=88

class Stamps:
    def __init__(s, A, on): s.A=A; s.on=on; s.n=0; s.names=[]
    def rt(s,name):
        if not s.on: return
        s.A("s_memrealtime s[80:81]", "s_waitcnt lgkmcnt(0)", f"s_mov_b32 s{64+s.n}, s80"); s.names.append(name); s.n+=1
    def cyc(s,name):
        if not s.on: return
        s.A("s_memtime s[80:81]", "s_waitcnt lgkmcnt(0)", f"s_mov_b32 s{64+s.n}, s80"); s.names.append(name); s.n+=1
    def flush(s, vtmp):
        if not s.on: return
        A=s.A
        A(f"s_mov_b32 s92, s{sWS}", f"s_mov_b32 s93, s{sWS+1}", "s_mov_b32 s94, 0x10000000", "s_mov_b32 s95, 0x00020000")
        A(f"s_lshl_b32 s80, s2, 3", f"s_add_u32 s80, s80, s{sW}", "s_lshl_b32 s80, s80, 6", f"s_add_u32 s80, s80, {STAMP_OFF}")
        for i in range(s.n):
            A(f"v_mov_b32 v{vtmp}, s{64+i}", f"v_mov_b32 v{vtmp+1}, {4*i}", f"buffer_store_dword v{vtmp}, v{vtmp+1}, s[92:95], s80 offen")

def srd(A, s, base, size):
    A(f"s_mov_b32 s{s}, s{base}", f"s_mov_b32 s{s+1}, s{base+1}", f"s_mov_b32 s{s+2}, {size}", f"s_mov_b32 s{s+3}, 0x00020000")

def poll(A, tag, flag_off_sgpr, vaddr, vtmp):
    A(f"s_cmp_lg_u32 s{sW}, 0", f"s_cbranch_scc1 L_{tag}_skip")
    A(f"v_and_b32 v{vaddr}, 31, v0", f"v_mul_u32_u24 v{vaddr}, {FSTR}, v{vaddr}", f"s_mov_b32 s42, {SPIN_MAX}")
    A(f"L_{tag}_loop:")
    A(f"buffer_load_dword v{vtmp}, v{vaddr}, s[{SRD_WS}:{SRD_WS+3}], s{flag_off_sgpr} offen sc1")
    A("s_waitcnt vmcnt(0)")
    A(f"v_cmp_ne_u32 vcc, s{sNONCE}, v{vtmp}", "s_nop 1", "s_cmp_eq_u64 vcc, 0", f"s_cbranch_scc1 L_{tag}_skip")
    A("s_sub_u32 s42, s42, 1", "s_cmp_eq_u32 s42, 0", f"s_cbranch_scc1 L_{tag}_skip", "s_sleep 1", f"s_branch L_{tag}_loop")
    A(f"L_{tag}_skip:")

def setflag(A, tag, off_sgpr, vt):
    A(f"s_cmp_lg_u32 s{sW}, 0", f"s_cbranch_scc1 L_{tag}_nf")
    A(f"v_mov_b32 v{vt}, s{sNONCE}", f"v_mov_b32 v{vt+1}, 0", "s_mov_b64 exec, 1",
      f"buffer_store_dword v{vt}, v{vt+1}, s[{SRD_WS}:{SRD_WS+3}], s{off_sgpr} offen sc1", "s_mov_b64 exec, -1")
    A(f"L_{tag}_nf:")

def phase1(A, ST, opt):
    lane=2; vX=3; vX2=27; vW=4; t0=5; t1=6; t2=7; hh_t=8
    SC1=" sc1"
    W_=f"s[{SRD_WS}:{SRD_WS+3}]"
    GX=112; GW=116; GA=120
    A(f"v_lshlrev_b32 v24, 4, v{lane}", "s_lshl_b32 s42, s2, 3", f"s_add_u32 s42, s42, s{sW}", "s_lshl_b32 s42, s42, 10",
      f"buffer_load_dwordx4 {vr(GX,4)}, v24, s[{SRD_A}:{SRD_A+3}], s42 offen", f"buffer_load_dwordx4 {vr(GW,4)}, v24, s[{SRD_C}:{SRD_C+3}], 0 offen")
    A(f"v_lshrrev_b32 v{t0}, 3, v{lane}", f"s_lshl_b32 s42, s{sW}, 3", f"v_add_u32 v{t0}, s42, v{t0}",
      f"v_lshrrev_b32 v{t1}, 1, v{t0}", f"v_and_b32 v{t1}, 7, v{t1}", f"v_and_b32 v{t2}, 7, v{lane}", f"v_xor_b32 v{t1}, v{t1}, v{t2}",
      f"v_lshlrev_b32 v{t1}, 4, v{t1}", f"s_lshl_b32 s43, s{sRB}, 7", f"v_add_u32 v{vX}, s43, v{t0}", f"v_lshlrev_b32 v{vX}, 10, v{vX}",
      f"v_add_u32 v{vX}, v{vX}, v{t1}", f"v_add_u32 v{vX2}, 0x10000, v{vX}")
    A(f"v_bfe_u32 v{t1}, v{lane}, 4, 1", f"v_lshlrev_b32 v{t1}, 2, v{t1}", f"v_xor_b32 v{t1}, v{t1}, v{t2}", f"v_lshlrev_b32 v{t1}, 4, v{t1}",
      f"v_mul_u32_u24 v{vW}, 3072, v{t0}", f"v_add_u32 v{vW}, v{vW}, v{t1}", f"s_lshl_b32 s45, s{sX}, 7", f"v_add_u32 v{vW}, s45, v{vW}")
    STG=40960
    def dma_groups():
        L=[]
        L.append([f"s_mov_b32 m0, s46", "NOP", f"buffer_load_dwordx4 v{vX}, s[{SRD_A}:{SRD_A+3}], s47 offen lds"])
        L.append([f"s_add_u32 m0, s46, 8192", "NOP", f"buffer_load_dwordx4 v{vX2}, s[{SRD_A}:{SRD_A+3}], s47 offen lds"])
        for seg in range(3):
            L.append([f"s_add_u32 m0, s46, {16384+seg*8192-seg*1024}", "NOP", f"buffer_load_dwordx4 v{vW}, s[{SRD_B}:{SRD_B+3}], s48 offen offset:{seg*1024} lds"])
        return L
    def emit(g): A([("s_nop 0" if x=="NOP" else x) for x in g])
    A(f"s_lshl_b32 s46, s{sW}, 10", "s_mov_b32 s47, 0", "s_mov_b32 s48, 0")
    for g in dma_groups(): emit(g)
    A(f"s_add_u32 s46, s46, {STG}", "s_add_u32 s47, s47, 128", f"s_add_u32 s48, s48, {64*3072}")
    for g in dma_groups(): emit(g)
    NPF=0
    if 'nopf' not in opt:
        NPF=3
        PF=124
        A("s_lshl_b32 s42, s2, 13", f"s_lshl_b32 s43, s{sW}, 10", "s_add_u32 s42, s42, s43",
          f"buffer_load_dwordx4 {vr(PF,4)}, v24, s[{SRD_A}:{SRD_A+3}], s42 offen")
        A(f"s_lshl_b32 s42, s{sJ}, 4", f"s_lshl_b32 s44, s{sX}, 1", "s_add_u32 s42, s42, s44", f"s_and_b32 s44, s{sA}, 1", "s_add_u32 s42, s42, s44",
          "s_mul_i32 s42, s42, 12288", "s_add_u32 s42, s42, s43",
          f"buffer_load_dwordx4 {vr(PF+4,4)}, v24, s[{SRD_B}:{SRD_B+3}], s42 offen")
        A("s_add_u32 s42, s42, 8192", f"s_cmp_lt_u32 s{sW}, 4", "s_cselect_b32 s42, s42, 0x7ffffff0",
          f"buffer_load_dwordx4 {vr(PF+8,4)}, v24, s[{SRD_B}:{SRD_B+3}], s42 offen")
    A(f"s_and_b32 s34, s{sW}, 3", f"s_lshr_b32 s35, s{sW}, 2")
    aX=[10,11,12,13]; aW=18; r=20
    A(f"v_lshrrev_b32 v{hh_t}, 5, v{lane}", f"v_and_b32 v{r}, 31, v{lane}", f"v_lshrrev_b32 v{t0}, 1, v{r}", f"v_and_b32 v{t0}, 7, v{t0}", "s_lshl_b32 s42, s34, 5",
      f"v_add_u32 v{t1}, s42, v{r}", f"v_lshlrev_b32 v{t1}, 7, v{t1}")
    for s_ in range(4):
        A(f"v_or_b32 v{t2}, {2*s_}, v{hh_t}", f"v_xor_b32 v{t2}, v{t2}, v{t0}", f"v_lshl_add_u32 v{aX[s_]}, v{t2}, 4, v{t1}")
    A(f"v_bfe_u32 v{t0}, v{lane}, 2, 2", f"v_lshl_add_u32 v{t1}, v{hh_t}, 3, v{t0}", f"v_lshlrev_b32 v{t1}, 7, v{t1}",
      f"v_bfe_u32 v{t2}, v{lane}, 4, 1", f"v_lshlrev_b32 v{t2}, 1, v{t2}", f"v_bfe_u32 v21, v{lane}, 1, 1", f"v_add_u32 v{t2}, v{t2}, v21",
      "s_lshl_b32 s42, s35, 2", f"v_add_u32 v{t2}, s42, v{t2}", f"v_bfe_u32 v21, v{lane}, 3, 1", "v_lshlrev_b32 v21, 2, v21",
      f"v_xor_b32 v{t2}, v{t2}, v21", f"v_lshl_add_u32 v{t1}, v{t2}, 4, v{t1}",
      f"v_and_b32 v21, 1, v{lane}", f"v_lshl_add_u32 v{t1}, v21, 3, v{t1}", f"v_add_u32 v{aW}, 16384, v{t1}")
    TQ=32; TK=48; TV=64
    XF=[80,84]; WF=[[88,92,96],[100,104,108]]
    for i in range(48): A(f"v_mov_b32 v{TQ+i}, 0")
    def reads(s_):
        b=s_%2
        if 'p1noread' in opt: return []
        L=[f"ds_read_b128 {vr(XF[b],4)}, v{aX[s_]}"]
        for seg in range(3):
            for rr in range(2):
                L.append(f"ds_read_b64_tr_b16 {vr(WF[b][seg]+2*rr,2)}, v{aW} offset:{seg*8192+(16*s_+4*rr)*128}")
        return L
    A("s_mov_b32 s49, 0", "s_mov_b32 s36, 0", f"s_mov_b32 s53, {STG}")
    A(f"s_waitcnt vmcnt({5+NPF})", "s_barrier")
    A("s_waitcnt lgkmcnt(0)", f"s_mul_i32 s{sNONCE}, s3, 0x9e3779b1", f"s_add_u32 s{sNONCE}, s{sNONCE}, 0x7f4a7c15")
    ST.rt("p1_data")
    A(reads(0))
    A(".p2align 3", "P1_loop:")
    A("s_add_u32 s50, s49, 2", "s_and_b32 s51, s50, 3", f"s_mul_i32 s51, s51, {STG}", f"s_lshl_b32 s46, s{sW}, 10", "s_add_u32 s46, s46, s51",
      "s_lshl_b32 s47, s50, 7", f"s_mul_i32 s48, s50, {64*3072}", "s_cmp_lt_u32 s50, 8",
      f"s_cselect_b32 s{SRD_A+2}, {2048*512*2}, 0", f"s_cselect_b32 s{SRD_B+2}, {512*1536*2}, 0")
    G=dma_groups()
    place={0:[G[0],G[1]],1:[G[2],G[3]],2:[G[4]],3:[]}
    for s_ in range(4):
        b=s_%2
        if s_<3:
            A(reads(s_+1), "s_waitcnt lgkmcnt(7)")
        else:
            A("s_add_u32 s36, s36, 1", "s_cmp_eq_u32 s36, 4", f"s_cselect_b32 s52, {(-3*STG)&0xffffffff:#x}, s53", "s_cselect_b32 s36, 0, s36")
            A("s_waitcnt lgkmcnt(0)")
            for k in range(4): A(f"v_add_u32 v{aX[k]}, s52, v{aX[k]}")
            A(f"v_add_u32 v{aW}, s52, v{aW}")
            A("s_waitcnt vmcnt(5)" if 'p1nodma' not in opt else "s_nop 0")
            if 'p1nobar' not in opt: A("s_barrier")
            if 'p1it' in opt:
                A("s_memtime s[80:81]", "s_waitcnt lgkmcnt(0)")
                for k in range(7): A(f"s_mov_b32 s{64+8+k}, s{64+9+k}")
                A(f"s_mov_b32 s{64+15}, s80")
            A(reads(0))
        mf=[mfma32(TQ, WF[b][0], XF[b], TQ), mfma32(TK, WF[b][1], XF[b], TK), mfma32(TV, XF[b], WF[b][2], TV)]
        if 'p1nomfma' in opt: mf=["s_nop 0"]*3
        mine=place[s_]
        if 'p1nodma' in opt: mine=[]
        for k in range(3):
            A(mf[k])
            if k<len(mine): emit(mine[k])
    A("s_add_u32 s49, s49, 1", "s_cmp_lt_u32 s49, 8", "s_cbranch_scc1 P1_loop")
    ST.rt("p1_loop")
    if 'p1it' in opt:
        ST.n=16; ST.flush(122); A("s_waitcnt vmcnt(0)", "s_endpgm")
    A(f"s_lshl_b32 s42, s{sX}, 2", "s_lshl_b32 s43, s35, 1", "s_add_u32 s42, s42, s43", f"s_lshl_b32 s43, s{sBR}, 5", "s_add_u32 s42, s42, s43",
      "s_lshl_b32 s42, s42, 16", f"s_lshl_b32 s43, s{sRB}, 2", "s_add_u32 s43, s43, s34", "s_lshl_b32 s43, s43, 10", "s_add_u32 s42, s42, s43")
    A(f"v_bfe_u32 v25, v{lane}, 4, 1", "v_lshlrev_b32 v25, 16, v25", f"v_lshl_add_u32 v25, v{hh_t}, 8, v25", f"v_and_b32 v26, 15, v{lane}", "v_lshl_add_u32 v25, v26, 4, v25")
    A(f"s_mov_b32 s44, {hex(f2u(QSCALE))}", "s_waitcnt lgkmcnt(0)", "s_nop 3")
    PK=80
    for i in range(8): A(f"v_cvt_pk_bf16_f32 v{PK+8+i}, v{TK+2*i}, v{TK+2*i+1}")
    A(f"s_add_u32 s45, s42, {KF}", f"s_add_u32 s46, s45, 65536")
    A(f"buffer_store_dwordx4 {vr(PK+8,4)}, v24, {W_}, s45 offen{SC1}", f"buffer_store_dwordx4 {vr(PK+12,4)}, v24, {W_}, s46 offen{SC1}")
    for i in range(8): A(f"v_cvt_pk_bf16_f32 v{PK+16+i}, v{TV+2*i}, v{TV+2*i+1}")
    A(f"s_add_u32 s45, s42, {VF}")
    A(f"buffer_store_dwordx4 {vr(PK+16,4)}, v25, {W_}, s45 offen{SC1}", f"buffer_store_dwordx4 {vr(PK+20,4)}, v25, {W_}, s45 offen offset:512{SC1}")
    for i in range(16): A(f"v_mul_f32 v{TQ+i}, s44, v{TQ+i}")
    for i in range(8): A(f"v_cvt_pk_bf16_f32 v{PK+i}, v{TQ+2*i}, v{TQ+2*i+1}")
    A(f"s_add_u32 s45, s42, {QF}", f"s_add_u32 s46, s45, 65536")
    A(f"buffer_store_dwordx4 {vr(PK,4)}, v24, {W_}, s45 offen{SC1}", f"buffer_store_dwordx4 {vr(PK+4,4)}, v24, {W_}, s46 offen{SC1}")
    A(f"v_mov_b32 v{GA}, 0")
    for i in range(4): A(f"v_dot2_f32_bf16 v{GA}, v{GX+i}, v{GW+i}, v{GA}")
    A("s_nop 2")
    for ror in (8,4,2,1):
        A(f"v_add_f32_dpp v{GA}, v{GA}, v{GA} row_ror:{ror} row_mask:0xf bank_mask:0xf", "s_nop 1")
    A(f"v_mov_b32 v{GA+1}, v{GA}", "s_nop 1", f"v_permlane16_swap_b32 v{GA+1}, v{GA}", "s_nop 1", f"v_add_f32 v{GA}, v{GA}, v{GA+1}",
      f"v_mov_b32 v{GA+1}, v{GA}", "s_nop 1", f"v_permlane32_swap_b32 v{GA+1}, v{GA}", "s_nop 1", f"v_add_f32 v{GA}, v{GA}, v{GA+1}")
    A(f"v_mul_f32 v{GA}, {hex(f2u(-1.4426950408889634))}, v{GA}", f"v_exp_f32 v{GA}, v{GA}", "s_nop 0", f"v_add_f32 v{GA}, 1.0, v{GA}", f"v_rcp_f32 v{GA}, v{GA}",
      "s_lshl_b32 s42, s2, 3", f"s_add_u32 s42, s42, s{sW}", "s_lshl_b32 s42, s42, 2", f"s_add_u32 s42, s42, {GOFF}", f"v_mov_b32 v{GA+1}, 0", "s_mov_b64 exec, 1",
      f"buffer_store_dword v{GA}, v{GA+1}, {W_}, s42 offen{SC1}", "s_mov_b64 exec, -1")

def sync1(A, ST, opt):
    A("s_waitcnt vmcnt(0)", "s_barrier")
    ST.rt("p1_stored")
    A(f"s_mul_i32 s42, s{sX}, {32*FSTR}", f"s_mul_i32 s43, s{sI}, {FSTR}", "s_add_u32 s43, s43, s42", f"s_add_u32 s43, s43, {FL+FL_F1}", f"s_add_u32 s38, s42, {FL+FL_F1}")
    setflag(A,"f1",43,2)
    poll(A,"p1",38,2,3)
    A("s_barrier")
    ST.rt("p1_flags")

LANE=1
QA0=4; QA1=8; QB=12
OA0=16; OA1=32
S0=48; S1=64
P=80
KB_=88; VB_=96
MF=112; MD=128; CB=144
vKa=160; vVa=161
vG=162; vL16=163; vT=164; vT2=165; vT3=166; vNEGM=167; vM=168; vKs=169; vVs=170; vGB=171; vX0=172
VL=vX0+11
LDS_KA=0; LDS_VA=65536; LDS_KB=131072; LDS_VB=147456
def exps(S): return [f"v_exp_f32 v{S+i}, v{S+i}" for i in range(16)]
def cvts(S): return [f"v_cvt_pk_bf16_f32 v{P+i}, v{S+2*i}, v{S+2*i+1}" for i in range(8)]
MK=[f"s_mov_b64 exec, s[{sMASK}:{sMASK+1}]"]; UM=["s_mov_b64 exec, -1"]
def unit(A, Sc, QK, PV1, ld, wK, wV, PV0):
    e=exps(Sc); c=cvts(Sc)
    A(wK, QK)
    A(e[0:4], c[0], e[4:6], c[1])
    A(PV1, ld)
    A(e[6:8], c[2], e[8:10], c[3], e[10:12])
    A(wV, PV0)
    A(e[12:13], c[4], e[13:15], c[5], e[15:16], c[6], c[7])
def slow_pass(A, tag, Q, O, pass1, far, diag, n):
    A(f"v_mov_b32 v{vX0}, v{vKs}", f"v_mov_b32 v{vX0+1}, v{vVs}", "s_mov_b32 s60, 0")
    if pass1: A(f"v_mov_b32 v{vM}, {hex(NEG)}", f"v_mov_b32 v{vNEGM}, 0")
    else:
        for i in range(16): A(f"v_mov_b32 v{O+i}, 0")
    A(f"L_{tag}_loop:")
    A(f"ds_read_b128 {vr(KB_,4)}, v{vX0}")
    if not pass1: A(MK, f"ds_read_b128 {vr(VB_,4)}, v{vX0+1}", f"ds_read_b128 {vr(VB_+4,4)}, v{vX0+1} offset:512", UM)
    A("s_cmp_eq_u32 s60, 0", f"s_cselect_b32 s61, s{far}, 0", "s_cmp_lg_u32 s61, 0", f"s_cbranch_scc1 L_{tag}_far")
    A(f"s_add_u32 s61, s60, 1", f"s_cmp_eq_u32 s61, s{n}", f"s_cselect_b32 s61, s{diag}, 0", "s_cmp_lg_u32 s61, 0", f"s_cbranch_scc1 L_{tag}_diag")
    for i in range(16): A(f"v_mov_b32 v{CB+i}, v{vNEGM}")
    A(f"s_branch L_{tag}_go")
    A(f"L_{tag}_far:")
    for i in range(16): A(f"v_add_f32 v{CB+i}, v{MF+i}, v{vNEGM}")
    A(f"s_branch L_{tag}_go")
    A(f"L_{tag}_diag:")
    for i in range(16): A(f"v_add_f32 v{CB+i}, v{MD+i}, v{vNEGM}")
    A(f"L_{tag}_go:")
    A("s_waitcnt lgkmcnt(0)", "s_nop 0")
    A(mfma32(S0, KB_, Q, CB))
    A("s_nop 7","s_nop 3")
    if pass1:
        for i in range(16): A(f"v_max_f32 v{vM}, v{vM}, v{S0+i}")
    else:
        A(exps(S0), "s_nop 0", cvts(S0), "s_nop 1")
        A(mfma32(O, VB_, P, O), mfma32(O, VB_+4, P+4, O))
    A(f"v_add_u32 v{vX0}, 1024, v{vX0}", f"v_add_u32 v{vX0+1}, 1024, v{vX0+1}")
    A("s_add_u32 s60, s60, 1", f"s_cmp_lt_u32 s60, s{n}", f"s_cbranch_scc1 L_{tag}_loop")
    if pass1:
        A(f"v_mov_b32 v{vT}, v{vM}", "s_nop 1", f"v_permlane32_swap_b32 v{vT}, v{vM}", "s_nop 1",
          f"v_max_f32 v{vM}, v{vM}, v{vT}", f"v_sub_f32 v{vNEGM}, 0, v{vM}")
    else: A("s_nop 7","s_nop 3")
def bcast_l(A,O):
    A(f"v_mov_b32 v{vT}, v{O+8}", "s_nop 1", f"v_permlane32_swap_b32 v{vT}, v{O+8}", "s_nop 1", f"v_add_f32 v{O+8}, v{O+8}, v{vT}")
def check_range(A, O, okl):
    bcast_l(A,O)
    A(f"v_mov_b32 v{vT}, v{O+8}")
    for i in range(8): A(f"v_fma_f32 v{vT}, v{O+i}, 0, v{vT}")
    A(f"s_mov_b32 s44, {hex(LLO)}", f"s_mov_b32 s45, {hex(LHI)}")
    A(f"v_cmp_le_f32 s[46:47], s44, v{vT}", f"v_cmp_ge_f32 s[48:49], s45, v{vT}", "s_nop 1",
      "s_and_b64 s[46:47], s[46:47], s[48:49]", "s_cmp_eq_u64 s[46:47], -1", f"s_cbranch_scc1 {okl}")
def finalize(A, O, soff):
    A(f"v_rcp_f32 v{vT}, v{O+8}", "s_nop 0")
    for i in range(8): A(f"v_mul_f32 v{O+i}, v{O+i}, v{vT}")
    for i in range(4): A(f"v_cvt_pk_bf16_f32 v{vX0+4+i}, v{O+2*i}, v{O+2*i+1}")
    A(f"buffer_store_dwordx4 {vr(vX0+4,4)}, v{vL16}, s[{SRD_WS}:{SRD_WS+3}], s{soff} offen sc1")

def phase2(A, ST, opt):
    W_=f"s[{SRD_WS}:{SRD_WS+3}]"
    SC=" sc1"
    A(f"v_and_b32 v{LANE}, 63, v0")
    A(f"s_and_b32 s15, s{sW}, 3", f"s_lshr_b32 s16, s{sW}, 2")
    A("s_lshl_b32 s17, s15, 1", "s_add_u32 s17, s17, s16",
      f"s_lshl_b32 s18, s{sJ}, 3", "s_add_u32 s19, s18, s17",
      f"s_lshl_b32 s20, s{sH}, 16", f"s_add_u32 s21, s20, {32*65536}")
    A(f"v_lshlrev_b32 v{vL16}, 4, v{LANE}", f"v_and_b32 v{vT}, 31, v{LANE}")
    A(f"s_mov_b32 s{sMASK}, 0x0000ffff", f"s_mov_b32 s{sMASK+1}, 0x0000ffff")
    A(f"v_cmp_eq_u32 vcc, 16, v{vT}", f"v_mov_b32 v{vX0}, 0x3f803f80", "s_nop 0", f"v_cndmask_b32 v{vX0+1}, 0, v{vX0}, vcc")
    for i in range(16): A(f"v_mov_b32 v{VB_+i}, v{vX0+1}")
    hh=vT3
    A(f"v_lshrrev_b32 v{hh}, 5, v{LANE}", f"v_lshlrev_b32 v{vT2}, 2, v{hh}", f"v_sub_u32 v{vT2}, v{vT}, v{vT2}")
    A(f"v_mov_b32 v{vX0}, {hex(NEG)}")
    for g in range(4):
        for k in range(4): A(f"v_cmp_gt_i32 s[{44+2*k}:{45+2*k}], {8*g+k}, v{vT2}")
        A("s_nop 0")
        for k in range(4):
            i=4*g+k
            A(f"v_cndmask_b32 v{MF+i}, v{vX0}, 0, s[{44+2*k}:{45+2*k}]", f"v_cndmask_b32 v{MD+i}, 0, v{vX0}, s[{44+2*k}:{45+2*k}]")
    A(f"v_and_b32 v{vT}, 15, v{LANE}", f"v_lshlrev_b32 v{vT}, 4, v{vT}", f"v_lshl_add_u32 v{VL}, v{hh}, 8, v{vT}")
    A("s_lshl_b32 s43, s17, 10", f"s_add_u32 s44, s43, {LDS_KB}", f"v_add_u32 v{vKa}, s44, v{vL16}",
      f"s_add_u32 s44, s43, {LDS_VB}", f"v_add_u32 v{vVa}, s44, v{VL}")
    A("s_lshl_b32 s32, s19, 16", f"s_lshl_b32 s33, s{sH}, 10", "s_add_u32 s32, s32, s33", f"s_add_u32 s32, s32, {OF}", "s_add_u32 s33, s32, 32768")
    A("s_lshl_b32 s22, s19, 10", "s_add_u32 s22, s22, s21", f"s_add_u32 s22, s22, {QF}")
    A("s_lshl_b32 s23, s15, 1", "s_add_u32 s23, s23, s18", "s_lshl_b32 s23, s23, 10", "s_add_u32 s23, s23, s20", f"s_add_u32 s23, s23, {QF}")
    for ii in range(2):
        A(f"s_add_u32 s43, s{sW}, {8*ii}", "s_add_u32 s44, s18, s43", "s_sub_u32 s44, s44, 8", "s_max_i32 s44, s44, 0",
          "s_lshl_b32 s44, s44, 10", "s_add_u32 s44, s44, s21", f"s_add_u32 s{54+ii}, s44, {KF}")
    A(f"s_lshl_b32 s56, s{sW}, 10", "s_add_u32 s57, s56, s20", f"s_add_u32 s57, s57, {KF}")
    OBz=OA0
    for i in range(16): A(f"v_mov_b32 v{OBz+i}, 0")
    for i in range(4): A(f"v_mov_b32 v{P+4+i}, 0")
    sync1(A,ST,opt)
    A(f"buffer_load_dwordx4 {vr(QB,4)}, v{vL16}, {W_}, s22 offen{SC}")
    for ii in range(2):
        A(f"s_add_u32 m0, s56, {LDS_KB+8192*ii}", f"s_add_u32 s45, s{54+ii}, {VF-KF}", f"buffer_load_dwordx4 v{vL16}, {W_}, s{54+ii} offen{SC} lds")
        A(f"s_add_u32 m0, s56, {LDS_VB+8192*ii}", "s_nop 0", f"buffer_load_dwordx4 v{vL16}, {W_}, s45 offen{SC} lds")
    A(f"buffer_load_dwordx4 {vr(QA0,4)}, v{vL16}, {W_}, s23 offen{SC}", f"buffer_load_dwordx4 {vr(QA1,4)}, v{vL16}, {W_}, s23 offen offset:1024{SC}")
    def adma(m):
        return [f"s_add_u32 m0, s56, {LDS_KA+m*8192}", f"s_add_u32 s45, s57, {m*8192}", f"buffer_load_dwordx4 v{vL16}, {W_}, s45 offen{SC} lds",
                f"s_add_u32 m0, s56, {LDS_VA+m*8192}", f"s_add_u32 s45, s57, {VF-KF+m*8192}", f"buffer_load_dwordx4 v{vL16}, {W_}, s45 offen{SC} lds"]
    global ADMA; ADMA=adma
    A(f"s_cmp_lg_u32 s{sJ}, 0", "s_cbranch_scc1 A_dma_skip")
    for m in range(8): A(adma(m))
    A("s_waitcnt vmcnt(18)", "s_branch A_dma_join")
    A("A_dma_skip:", "s_waitcnt vmcnt(2)", "A_dma_join:")
    OB=OA0
    A("s_barrier")
    ST.rt("b_data")
    def ldK(t,base): return [f"ds_read_b128 {vr(KB_+4*(t%2),4)}, v{base} offset:{t*1024}"]
    def ldV(t,base): return MK+[f"ds_read_b128 {vr(VB_+8*(t%2),4)}, v{base} offset:{t*1024}", f"ds_read_b128 {vr(VB_+8*(t%2)+4,4)}, v{base} offset:{t*1024+512}"]+UM
    NB=9
    A("s_mov_b32 s51, 1", f"s_cmp_eq_u32 s{sJ}, 0", "s_cselect_b32 s50, 0, 1", "s_sub_u32 s53, 8, s17", "s_cselect_b32 s53, s53, 0")
    A.L.pop()
    A(f"s_cmp_eq_u32 s{sJ}, 0", "s_cselect_b32 s53, s53, 0")
    A("s_sub_u32 s52, 9, s53")
    A("s_lshl_b32 s43, s53, 10", f"v_add_u32 v{vKs}, s43, v{vKa}", f"v_add_u32 v{vVs}, s43, v{vVa}")
    for s0 in range(NB):
        A(f"s_cmp_eq_u32 s53, {s0}", f"s_cbranch_scc1 B_pro{s0}")
    for s0 in range(NB-1,-1,-1):
        A(f"B_pro{s0}:")
        Sc=S0 if s0%2==0 else S1
        C = MF if s0==0 else (MD if s0==NB-1 else "0")
        A(ldK(s0,vKa), "s_waitcnt lgkmcnt(0)", mfma32(Sc, KB_+4*(s0%2), QB, C))
        if s0==0:
            A(ldV(0,vVa), ldK(1,vKa))
        else:
            if s0+1<NB: A(ldK(s0+1,vKa))
            A(ldV(s0,vVa))
        A("s_nop 7","s_nop 3")
        if s0!=0: A(f"s_branch B_step{s0}")
    for t in range(NB):
        A(f"B_step{t}:")
        Sc=S0 if t%2==0 else S1; Sn=S1 if t%2==0 else S0
        if t+1<NB:
            QK=[mfma32(Sn, KB_+4*((t+1)%2), QB, MD if t+1==NB-1 else "0")]
            wK=["s_waitcnt lgkmcnt(0)"] if t==0 else ["s_waitcnt lgkmcnt(2)"]
        else: QK=[]; wK=[]
        PV1=[mfma32(OB, VB_+8*((t-1)%2)+4, P+4, OB)] if t>0 else []
        ld=[]
        if t+2<NB: ld+=ldK(t+2,vKa)
        if t+1<NB: ld+=ldV(t+1,vVa)
        nld=(1 if t+2<NB else 0)+(2 if t+1<NB else 0)
        wV=[f"s_waitcnt lgkmcnt({nld})"]
        PV0=[mfma32(OB, VB_+8*(t%2), P, OB)]
        if t<8: ld=ld+ADMA(t)
        unit(A,Sc,QK,PV1,ld,wK,wV,PV0)
    A("s_nop 1", mfma32(OB, VB_+8*((NB-1)%2)+4, P+4, OB))
    A("s_nop 7","s_nop 3")
    check_range(A,OB,"B_ok")
    slow_pass(A,"bf1",QB,OB,True,50,51,52)
    slow_pass(A,"bf2",QB,OB,False,50,51,52)
    bcast_l(A,OB)
    A("B_ok:")
    finalize(A,OB,33)
    ST.rt("b_done")
    A("s_waitcnt vmcnt(1)", "s_barrier")
    ST.rt("a_start")
    if 'dup' in opt: A("s_mov_b32 s54, 2", "A_dup:")
    A("s_lshl_b32 s43, s16, 15", f"v_add_u32 v{vKa}, s43, v{vL16}", f"s_add_u32 s44, s43, {LDS_VA}", f"v_add_u32 v{vVa}, s44, v{VL}")
    for i in range(32): A(f"v_mov_b32 v{OA0+i}, 0")
    for i in range(4): A(f"v_mov_b32 v{P+4+i}, 0")
    Qr=[QA0,QA1]; Or=[OA0,OA1]
    A(ldK(0,vKa), ldV(0,vVa), "s_waitcnt lgkmcnt(2)", mfma32(S0, KB_, QA0, "0"))
    A("s_mov_b32 s53, 4", "s_nop 7", "s_nop 2")
    A(".p2align 3", "A_loop:")
    for pr in (3,2,1,0):
        A(f"s_cmp_eq_u32 s53, {pr+1}", f"s_cbranch_scc0 A_lp{pr}", f"s_setprio {pr}", f"A_lp{pr}:")
    NK=8
    units=[(t,qi) for t in range(NK) for qi in range(2)]
    for u,(t,qi) in enumerate(units):
        Sc=S0 if u%2==0 else S1; Sn=S1 if u%2==0 else S0
        tn,qn=(t,1) if qi==0 else (t+1,0)
        tp,qp=(t-1,1) if qi==0 else (t,0)
        QK=[mfma32(Sn, KB_+4*(tn%2), Qr[qn], "0")]
        PV1=[mfma32(Or[qp], VB_+8*(tp%2)+4, P+4, Or[qp])]
        PV0=[mfma32(Or[qi], VB_+8*(t%2), P, Or[qi])]
        ld=[];wK=[];wV=[]
        if qi==0: ld=ldK(t+1,vKa)+ldV(t+1,vVa); wV=["s_waitcnt lgkmcnt(3)"]
        else: wK=["s_waitcnt lgkmcnt(2)"]
        unit(A,Sc,QK,PV1,ld,wK,wV,PV0)
    A(f"v_add_u32 v{vKa}, {NK*1024}, v{vKa}", f"v_add_u32 v{vVa}, {NK*1024}, v{vVa}")
    A("s_sub_u32 s53, s53, 1", "s_cmp_lg_u32 s53, 0", "s_cbranch_scc1 A_loop")
    A(mfma32(OA1, VB_+8*((NK-1)%2)+4, P+4, OA1))
    A("s_waitcnt lgkmcnt(0)", "s_nop 7", "s_nop 3")
    if 'dup' in opt: A("s_sub_u32 s54, s54, 1", "s_cmp_lg_u32 s54, 0", "s_cbranch_scc1 A_dup")
    ST.rt("a_loop")
    A("s_cmp_eq_u32 s16, 0", "s_cbranch_scc1 A_X0")
    for i in range(9): A(f"v_mov_b32 v{vT}, v{OA0+i}", f"v_mov_b32 v{OA0+i}, v{OA1+i}", f"v_mov_b32 v{OA1+i}, v{vT}")
    A("A_X0:")
    A(f"s_mul_i32 s43, s{sW}, 2560", f"s_add_u32 s43, s43, {LDS_KB}", f"v_add_u32 v{vT}, s43, v{vL16}",
      f"v_lshlrev_b32 v{vT2}, 2, v{LANE}", f"v_add_u32 v{vT2}, s43, v{vT2}")
    A(f"ds_write_b128 v{vT}, {vr(OA1,4)}", f"ds_write_b128 v{vT}, {vr(OA1+4,4)} offset:1024", f"ds_write_b32 v{vT2}, v{OA1+8} offset:2048")
    A(f"s_xor_b32 s44, s{sW}, 4", "s_mul_i32 s43, s44, 2560", f"s_add_u32 s43, s43, {LDS_KB}", f"v_add_u32 v{vT}, s43, v{vL16}",
      f"v_lshlrev_b32 v{vT2}, 2, v{LANE}", f"v_add_u32 v{vT2}, s43, v{vT2}")
    A("s_waitcnt lgkmcnt(0)", "s_barrier")
    A(f"ds_read_b128 {vr(S0,4)}, v{vT}", f"ds_read_b128 {vr(S0+4,4)}, v{vT} offset:1024", f"ds_read_b32 v{S0+8}, v{vT2} offset:2048")
    A("s_waitcnt lgkmcnt(0)")
    for i in range(9): A(f"v_add_f32 v{OA0+i}, v{OA0+i}, v{S0+i}")
    check_range(A,OA0,"A_ok")
    A("s_cmp_eq_u32 s16, 0", "s_cbranch_scc1 A_F0")
    for i in range(4): A(f"v_mov_b32 v{QA0+i}, v{QA1+i}")
    A("A_F0:")
    A("s_mov_b32 s50, 0", "s_mov_b32 s51, 0", "s_mov_b32 s52, 64")
    A(f"v_add_u32 v{vKs}, {LDS_KA}, v{vL16}", f"v_add_u32 v{vVs}, {LDS_VA}, v{VL}")
    slow_pass(A,"af1",QA0,OA0,True,50,51,52)
    slow_pass(A,"af2",QA0,OA0,False,50,51,52)
    bcast_l(A,OA0)
    A("A_ok:")
    finalize(A,OA0,32)

def phase3(A, ST, opt):
    W_=f"s[{SRD_WS}:{SRD_WS+3}]"
    lane=LANE
    srd(A,SRD_A,pWOA,512*512*2); srd(A,SRD_B,pWOB,512*512*2); srd(A,SRD_C,pOUT,2048*512*2)
    A(f"s_and_b32 s34, s{sI}, 3", f"s_lshr_b32 s35, s{sI}, 2")
    A("s_barrier")
    vW=4
    A(f"v_lshrrev_b32 v5, 3, v{lane}", "v_lshlrev_b32 v5, 10, v5", f"v_bfe_u32 v6, v{lane}, 4, 1", "v_lshlrev_b32 v6, 2, v6", f"v_and_b32 v7, 7, v{lane}",
      "v_xor_b32 v6, v6, v7", "v_lshlrev_b32 v6, 4, v6", "v_add_u32 v5, v5, v6", "s_lshl_b32 s42, s35, 7", f"v_add_u32 v{vW}, s42, v5")
    A(f"s_and_b32 s43, s{sW}, 3", "s_lshl_b32 s43, s43, 17", f"s_lshl_b32 s44, s{sW}, 14")
    A(f"s_cmp_ge_u32 s{sW}, 4", "s_cbranch_scc1 P3_wB")
    for br,lab in ((0,None),(1,"P3_wB")):
        if lab: A("s_branch P3_wdone", f"{lab}:")
        S_=SRD_A if br==0 else SRD_B
        for ii in range(16):
            A(f"s_add_u32 m0, s44, {ii*1024}", f"s_add_u32 s45, s43, {ii*8192}", f"buffer_load_dwordx4 v{vW}, s[{S_}:{S_+3}], s45 offen lds")
    A("P3_wdone:")
    A("s_waitcnt vmcnt(16)", "s_barrier")
    ST.rt("o_stored")
    A(f"s_mul_i32 s42, s{sJ}, {32*FSTR}", f"s_mul_i32 s43, s{sH}, {FSTR}", "s_add_u32 s43, s43, s42", f"s_add_u32 s43, s43, {FL+FL_F2}")
    setflag(A,"f2",43,5)
    WR=128
    A(f"s_and_b32 s36, s{sW}, 1", f"s_bfe_u32 s37, s{sW}, 0x10001", f"s_lshr_b32 s38, s{sW}, 2")
    A(f"v_lshrrev_b32 v8, 5, v{lane}",
      f"v_bfe_u32 v5, v{lane}, 2, 2", "v_lshl_add_u32 v5, v8, 2, v5", "v_lshlrev_b32 v5, 7, v5",
      f"v_bfe_u32 v6, v{lane}, 4, 1", "v_lshlrev_b32 v6, 1, v6", f"v_bfe_u32 v7, v{lane}, 1, 1", "v_add_u32 v6, v6, v7",
      "s_lshl_b32 s42, s37, 2", "v_add_u32 v6, s42, v6",
      f"v_bfe_u32 v7, v{lane}, 3, 1", "v_lshlrev_b32 v7, 2, v7", "v_xor_b32 v6, v6, v7", "v_lshlrev_b32 v6, 4, v6", "v_add_u32 v5, v5, v6",
      f"v_and_b32 v7, 1, v{lane}", "v_lshlrev_b32 v7, 3, v7", "v_add_u32 v5, v5, v7",
      "s_lshl_b32 s42, s38, 16", "v_add_u32 v10, s42, v5")
    A("s_waitcnt vmcnt(0)", "s_barrier")
    ST.rt("w_landed")
    for s in range(32):
        A(f"ds_read_b64_tr_b16 {vr(WR+4*s,2)}, v10 offset:{(16*s)*128}", f"ds_read_b64_tr_b16 {vr(WR+4*s+2,2)}, v10 offset:{(16*s+8)*128}")
        if s%4==3: A("s_waitcnt lgkmcnt(4)")
    A("s_waitcnt lgkmcnt(0)")
    A(f"s_mul_i32 s42, s{sX}, {32*FSTR}", f"s_add_u32 s39, s42, {FL+FL_F2}")
    poll(A,"p2",39,5,6)
    A("s_barrier")
    ST.rt("p2_flags")
    A("s_cmp_lg_u32 s2, 0", "s_cbranch_scc1 P3_noep", f"s_mov_b32 s43, {FL+FL_EPOCH}")
    setflag(A,"ep",43,5)
    A("P3_noep:")
    A(f"v_lshlrev_b32 v3, 4, v{lane}")
    A(f"s_lshl_b32 s42, s{sX}, 3", "s_lshl_b32 s43, s34, 1", "s_add_u32 s42, s42, s43", "s_lshl_b32 s42, s42, 16", f"s_add_u32 s42, s42, {OF}")
    A("s_lshl_b32 s43, s36, 16", "s_lshl_b32 s44, s37, 15", "s_add_u32 s43, s43, s44", "s_lshl_b32 s44, s38, 12", "s_add_u32 s43, s43, s44")
    A("s_add_u32 s42, s42, s43")
    for qd in range(4):
        for ii in range(4):
            A(f"s_add_u32 m0, s43, {qd*8192+ii*1024}", f"s_add_u32 s45, s42, {qd*8192+ii*1024}", f"buffer_load_dwordx4 v3, {W_}, s45 offen sc1 lds")
    ACC=16; OFr=[32,36,40,44]
    A(f"v_and_b32 v12, 31, v{lane}", f"s_lshl_b32 s44, s{sX}, 8", "s_lshl_b32 s45, s34, 6", "s_add_u32 s44, s44, s45", "s_lshl_b32 s45, s36, 5", "s_add_u32 s44, s44, s45",
      "v_add_u32 v12, s44, v12", "v_lshlrev_b32 v13, 2, v12", f"s_mov_b32 s45, {GOFF}", f"buffer_load_dword v14, v13, {W_}, s45 offen sc1")
    for i in range(16): A(f"v_mov_b32 v{ACC+i}, 0")
    A("s_lshl_b32 s43, s36, 16", "s_lshl_b32 s44, s38, 15", "s_add_u32 s43, s43, s44", "v_add_u32 v11, s43, v3")
    for qd in range(4):
        A(f"s_waitcnt vmcnt({13-4*qd if qd<3 else 1})", "s_barrier")
        for s in range(4): A(f"ds_read_b128 {vr(OFr[s],4)}, v11 offset:{(8*qd+s)*1024}")
        for s in range(8):
            n=8*qd+s
            A(f"s_waitcnt lgkmcnt({3 if s<5 else 7-s})")
            A(mfma32(ACC, WR+4*n, OFr[s%4], ACC))
            if s<4: A(f"ds_read_b128 {vr(OFr[s%4],4)}, v11 offset:{(8*qd+s+4)*1024}")
    ST.rt("p3_mfma")
    A("s_nop 7","s_nop 3","s_barrier")
    A(f"s_lshl_b32 s43, s{sW}, 11", "v_add_u32 v5, s43, v3", f"s_xor_b32 s44, s{sW}, 4", "s_lshl_b32 s44, s44, 11", "v_add_u32 v6, s44, v3")
    A("s_cmp_eq_u32 s38, 0", "s_cbranch_scc1 P3_k0")
    for i in range(8): A(f"v_mov_b32 v7, v{ACC+i}", f"v_mov_b32 v{ACC+i}, v{ACC+8+i}", f"v_mov_b32 v{ACC+8+i}, v7")
    A("P3_k0:")
    A(f"ds_write_b128 v5, {vr(ACC+8,4)}", f"ds_write_b128 v5, {vr(ACC+12,4)} offset:1024", "s_waitcnt lgkmcnt(0)", "s_barrier")
    A(f"ds_read_b128 {vr(32,4)}, v6", f"ds_read_b128 {vr(36,4)}, v6 offset:1024", "s_waitcnt lgkmcnt(0)")
    A("s_waitcnt vmcnt(0)", "s_cmp_eq_u32 s38, 0", "s_cbranch_scc1 P3_g0")
    A("v_sub_f32 v14, 1.0, v14")
    A("P3_g0:")
    for i in range(8): A(f"v_sub_f32 v{ACC+i}, v{ACC+i}, v{32+i}")
    for i in range(8): A(f"v_fma_f32 v{ACC+i}, v14, v{ACC+i}, v{32+i}")
    PK=40
    for i in range(4): A(f"v_cvt_pk_bf16_f32 v{PK+i}, v{ACC+2*i}, v{ACC+2*i+1}")
    A("s_nop 1", f"v_permlane32_swap_b32 v{PK}, v{PK+2}", f"v_permlane32_swap_b32 v{PK+1}, v{PK+3}")
    A("v_lshlrev_b32 v5, 10, v12", "v_lshl_add_u32 v5, v8, 4, v5",
      "s_lshl_b32 s42, s35, 7", "s_lshl_b32 s43, s37, 6", "s_add_u32 s42, s42, s43", "s_lshl_b32 s43, s38, 5", "s_add_u32 s42, s42, s43")
    A(f"buffer_store_dwordx4 {vr(PK,4)}, v5, s[{SRD_C}:{SRD_C+3}], s42 offen")

def gen(opt=()):
    A=Asm(); ST=Stamps(A,'stamps' in opt)
    A(f".globl {NAME}", ".p2align 8", f".type {NAME},@function", f"{NAME}:")
    A("s_cmp_ge_u32 s2, 256", "s_cbranch_scc1 L_done")
    A(f"s_load_dwordx2 s[{sWS}:{sWS+1}], s[0:1], 72", "s_load_dwordx2 s[42:43], s[0:1], 0", "s_load_dwordx2 s[44:45], s[0:1], 8",
      "s_load_dwordx2 s[46:47], s[0:1], 32", "s_load_dwordx2 s[48:49], s[0:1], 48",
      f"s_load_dwordx2 s[{pWOA}:{pWOA+1}], s[0:1], 16", f"s_load_dwordx2 s[{pWOB}:{pWOB+1}], s[0:1], 40", f"s_load_dwordx2 s[{pOUT}:{pOUT+1}], s[0:1], 56")
    A(f"s_and_b32 s{sX}, s2, 7", f"s_lshr_b32 s{sI}, s2, 3", f"s_lshr_b32 s{sJ}, s{sI}, 2", f"s_and_b32 s{sA}, s{sI}, 3",
      f"s_lshr_b32 s{sBR}, s{sA}, 1", f"s_and_b32 s50, s{sA}, 1", f"s_lshl_b32 s{sRB}, s{sJ}, 1", f"s_add_u32 s{sRB}, s{sRB}, s50",
      f"s_lshl_b32 s{sH}, s{sX}, 2", f"s_add_u32 s{sH}, s{sH}, s{sA}")
    A("v_lshrrev_b32 v1, 6, v0", "v_and_b32 v2, 63, v0", "s_nop 0", f"v_readfirstlane_b32 s{sW}, v1")
    if 'pf' in opt:
        A("s_getpc_b64 s[50:51]", "L_pc:", f"s_sub_u32 s50, s50, (L_pc-{NAME})", "s_subb_u32 s51, s51, 0")
        A(f"s_lshl_b32 s52, s{sI}, 1", f"s_add_u32 s52, s52, s{sW}", "s_lshl_b32 s52, s52, 10", "v_lshlrev_b32 v3, 4, v2", "v_add_u32 v3, s52, v3")
        A(f"s_cmp_lt_u32 s{sW}, 2", "s_cbranch_scc0 L_nopf", f"s_cmp_lt_u32 s52, (L_done-{NAME}-1024)", "s_cbranch_scc0 L_nopf",
          "global_load_dwordx4 v[252:255], v3, s[50:51]", "L_nopf:")
    if 'spin60' in opt: A("s_memrealtime s[90:91]")
    A("s_waitcnt lgkmcnt(0)")
    ST.rt("start"); ST.cyc("cyc0")
    A(f"s_add_u32 s6, s{sWS}, {FL+FL_EPOCH}", f"s_addc_u32 s7, s{sWS+1}, 0", "s_load_dword s3, s[6:7], 0")
    srd(A,SRD_WS,sWS,WS_SIZE)
    srd(A,SRD_A,42,2048*512*2)
    A(f"s_cmp_eq_u32 s{sBR}, 0", "s_cselect_b32 s44, s44, s46", "s_cselect_b32 s45, s45, s47")
    srd(A,SRD_B,44,512*1536*2)
    srd(A,SRD_C,48,1024)
    phase1(A,ST,opt)
    phase2(A,ST,opt)
    phase3(A,ST,opt)
    if 'spin60' in opt:
        A("s_waitcnt vmcnt(0)", "L_spin:", "s_memrealtime s[80:81]", "s_waitcnt lgkmcnt(0)", "s_sub_u32 s80, s80, s90", "s_cmp_lt_u32 s80, 6000", "s_cbranch_scc1 L_spin")
    if ST.on: A("s_waitcnt vmcnt(0)")
    ST.rt("end"); ST.cyc("cyc1")
    ST.flush(120)
    A("L_done:", "s_endpgm")
    kd=f""".section .rodata,"a"
.p2align 6
.amdhsa_kernel {NAME}
  .amdhsa_next_free_vgpr 256
  .amdhsa_next_free_sgpr 102
  .amdhsa_accum_offset 256
  .amdhsa_group_segment_fixed_size 0
  .amdhsa_kernarg_size 80
  .amdhsa_user_sgpr_count 2
  .amdhsa_user_sgpr_kernarg_segment_ptr 1
  .amdhsa_system_sgpr_workgroup_id_x 1
.end_amdhsa_kernel
"""
    return A.text(), kd, ST.names

if __name__=='__main__':
    import sys, hazard
    out=sys.argv[1]; opt=tuple(sys.argv[2:])
    HDR=open('gated_mix__softmax_full_mha__sliding_block__prompt.s.ref').read().split('\n')
    hdr=[l for l in HDR if l.startswith(';') and 'launch' not in l.lower() and 'Override' not in l and 'grid=ceil' not in l]
    t,kd,names=gen(opt)
    s='\n'.join(hdr)+'\n'+"; @launch grid=(256,1,1) block=(512,1,1) lds=163840\n"+'.amdgcn_target "amdgcn-amd-amdhsa--gfx950"\n.text\n'+t+kd
    open(out,'w').write(s)
    print('hazards',len(hazard.check(t)),'bytes',len(s),'stamps',','.join(names))
    sys.path.insert(0,'cdna_kernels')
    import subprocess
    from cdna_launch import with_harness_metadata, address_register_problem
    open('h.s','w').write(with_harness_metadata(s,NAME,10,launch_lists=True))
    r=subprocess.run(['clang','-x','assembler','-target','amdgcn-amd-amdhsa','-mcpu=gfx950','h.s','-o','h.co'],capture_output=True,text=True)
    if r.returncode: print(r.stderr)
    else:
        print('check:',address_register_problem('h.co',NAME))
        d=subprocess.run(['llvm-objdump','-d','--mcpu=gfx950','h.co'],capture_output=True,text=True).stdout
        import re
        ad=[int(m,16) for m in re.findall(r'// ([0-9A-F]{12}):',d)]
        print('code bytes',ad[-1]-ad[0]-768)
```

```python
from asm import Asm, vr, sr, mfma32
import struct
def f2u(x): return struct.unpack('<I',struct.pack('<f',x))[0]
NAME="gated_mix__softmax_full_mha__sliding_block__prompt_kernel"
QF=0; KF=4<<20; VF=8<<20; GOFF=12<<20; OF=16<<20; FL=30<<20; WS_SIZE=31<<20
FL_EPOCH=0; FL_F0=1024; FL_F1=2048; FL_F2=8192
FSTR=16
F1STR=4
STAMP_OFF=32<<20
QSCALE=0.25*1.4426950408889634
NEG=f2u(-2.0**100); LLO=f2u(2.0**-64); LHI=f2u(2.0**64)
SPIN_MAX=1<<20
sNONCE=3; sWS=4
SRD_WS=8; SRD_A=12; SRD_B=16; SRD_C=20
sW=24; sX=25; sI=26; sJ=27; sA=28; sBR=29; sRB=30; sH=31
sMASK=40
sXCC=37; sMODE=39
pWOA=84; pWOB=86; pOUT=88

class Stamps:
    def __init__(s, A, on): s.A=A; s.on=on; s.n=0; s.names=[]
    def rt(s,name):
        if not s.on: return
        s.A("s_memrealtime s[80:81]", "s_waitcnt lgkmcnt(0)", f"s_mov_b32 s{64+s.n}, s80"); s.names.append(name); s.n+=1
    def cyc(s,name):
        if not s.on: return
        s.A("s_memtime s[80:81]", "s_waitcnt lgkmcnt(0)", f"s_mov_b32 s{64+s.n}, s80"); s.names.append(name); s.n+=1
    def flush(s, vtmp):
        if not s.on: return
        A=s.A
        A(f"s_mov_b32 s92, s{sWS}", f"s_mov_b32 s93, s{sWS+1}", "s_mov_b32 s94, 0x10000000", "s_mov_b32 s95, 0x00020000")
        A(f"s_lshl_b32 s80, s2, 3", f"s_add_u32 s80, s80, s{sW}", "s_lshl_b32 s80, s80, 6", f"s_add_u32 s80, s80, {STAMP_OFF}")
        for i in range(s.n):
            A(f"v_mov_b32 v{vtmp}, s{64+i}", f"v_mov_b32 v{vtmp+1}, {4*i}", f"buffer_store_dword v{vtmp}, v{vtmp+1}, s[92:95], s80 offen")

def srd(A, s, base, size):
    A(f"s_mov_b32 s{s}, s{base}", f"s_mov_b32 s{s+1}, s{base+1}", f"s_mov_b32 s{s+2}, {size}", f"s_mov_b32 s{s+3}, 0x00020000")

def poll(A, tag, flag_off_sgpr, vaddr, vtmp, stride=FSTR):
    A(f"s_cmp_lg_u32 s{sW}, 0", f"s_cbranch_scc1 L_{tag}_skip")
    A(f"v_and_b32 v{vaddr}, 31, v0", f"v_mul_u32_u24 v{vaddr}, {stride}, v{vaddr}", f"s_mov_b32 s42, {SPIN_MAX}")
    A(f"L_{tag}_loop:")
    A(f"buffer_load_dword v{vtmp}, v{vaddr}, s[{SRD_WS}:{SRD_WS+3}], s{flag_off_sgpr} offen sc1")
    A("s_waitcnt vmcnt(0)")
    A(f"v_cmp_ne_u32 vcc, s{sNONCE}, v{vtmp}", "s_nop 1", "s_cmp_eq_u64 vcc, 0", f"s_cbranch_scc1 L_{tag}_skip")
    A("s_sub_u32 s42, s42, 1", "s_cmp_eq_u32 s42, 0", f"s_cbranch_scc1 L_{tag}_skip", "s_sleep 1", f"s_branch L_{tag}_loop")
    A(f"L_{tag}_skip:")

def setflag(A, tag, off_sgpr, vt, sc=" sc1"):
    A(f"s_cmp_lg_u32 s{sW}, 0", f"s_cbranch_scc1 L_{tag}_nf")
    A(f"v_mov_b32 v{vt}, s{sNONCE}", f"v_mov_b32 v{vt+1}, 0", "s_mov_b64 exec, 1",
      f"buffer_store_dword v{vt}, v{vt+1}, s[{SRD_WS}:{SRD_WS+3}], s{off_sgpr} offen{sc}", "s_mov_b64 exec, -1")
    A(f"L_{tag}_nf:")

def phase1(A, ST, opt):
    lane=2; vX=3; vX2=27; vW=4; t0=5; t1=6; t2=7; hh_t=8
    SC1=" sc1"
    W_=f"s[{SRD_WS}:{SRD_WS+3}]"
    GX=112; GW=116; GA=120
    A(f"v_lshlrev_b32 v24, 4, v{lane}", "s_lshl_b32 s42, s2, 3", f"s_add_u32 s42, s42, s{sW}", "s_lshl_b32 s42, s42, 10",
      f"buffer_load_dwordx4 {vr(GX,4)}, v24, s[{SRD_A}:{SRD_A+3}], s42 offen", f"buffer_load_dwordx4 {vr(GW,4)}, v24, s[{SRD_C}:{SRD_C+3}], 0 offen")
    A(f"v_lshrrev_b32 v{t0}, 3, v{lane}", f"s_lshl_b32 s42, s{sW}, 3", f"v_add_u32 v{t0}, s42, v{t0}",
      f"v_lshrrev_b32 v{t1}, 1, v{t0}", f"v_and_b32 v{t1}, 7, v{t1}", f"v_and_b32 v{t2}, 7, v{lane}", f"v_xor_b32 v{t1}, v{t1}, v{t2}",
      f"v_lshlrev_b32 v{t1}, 4, v{t1}", f"s_lshl_b32 s43, s{sRB}, 7", f"v_add_u32 v{vX}, s43, v{t0}", f"v_lshlrev_b32 v{vX}, 10, v{vX}",
      f"v_add_u32 v{vX}, v{vX}, v{t1}", f"v_add_u32 v{vX2}, 0x10000, v{vX}")
    A(f"v_bfe_u32 v{t1}, v{lane}, 4, 1", f"v_lshlrev_b32 v{t1}, 2, v{t1}", f"v_xor_b32 v{t1}, v{t1}, v{t2}", f"v_lshlrev_b32 v{t1}, 4, v{t1}",
      f"v_mul_u32_u24 v{vW}, 3072, v{t0}", f"v_add_u32 v{vW}, v{vW}, v{t1}", f"s_lshl_b32 s45, s{sX}, 7", f"v_add_u32 v{vW}, s45, v{vW}")
    STG=40960
    def dma_groups():
        L=[]
        xf=" nt" if 'xnt' in opt else ""; wf=" nt" if 'wnt' in opt else ""
        L.append([f"s_mov_b32 m0, s46", "NOP", f"buffer_load_dwordx4 v{vX}, s[{SRD_A}:{SRD_A+3}], s47 offen{xf} lds"])
        L.append([f"s_add_u32 m0, s46, 8192", "NOP", f"buffer_load_dwordx4 v{vX2}, s[{SRD_A}:{SRD_A+3}], s47 offen{xf} lds"])
        for seg in range(3):
            L.append([f"s_add_u32 m0, s46, {16384+seg*8192-seg*1024}", "NOP", f"buffer_load_dwordx4 v{vW}, s[{SRD_B}:{SRD_B+3}], s48 offen offset:{seg*1024}{wf} lds"])
        return L
    def emit(g): A([("s_nop 0" if x=="NOP" else x) for x in g])
    A(f"s_lshl_b32 s46, s{sW}, 10", "s_mov_b32 s47, 0", "s_mov_b32 s48, 0")
    for g in dma_groups(): emit(g)
    A(f"s_add_u32 s46, s46, {STG}", "s_add_u32 s47, s47, 128", f"s_add_u32 s48, s48, {64*3072}")
    for g in dma_groups(): emit(g)
    NPF=0
    if 'nopf' not in opt:
        NPF=3
        PF=124
        A("s_lshl_b32 s42, s2, 13", f"s_lshl_b32 s43, s{sW}, 10", "s_add_u32 s42, s42, s43",
          f"buffer_load_dwordx4 {vr(PF,4)}, v24, s[{SRD_A}:{SRD_A+3}], s42 offen")
        A(f"s_lshl_b32 s42, s{sJ}, 4", f"s_lshl_b32 s44, s{sX}, 1", "s_add_u32 s42, s42, s44", f"s_and_b32 s44, s{sA}, 1", "s_add_u32 s42, s42, s44",
          "s_mul_i32 s42, s42, 12288", "s_add_u32 s42, s42, s43",
          f"buffer_load_dwordx4 {vr(PF+4,4)}, v24, s[{SRD_B}:{SRD_B+3}], s42 offen")
        A("s_add_u32 s42, s42, 8192", f"s_cmp_lt_u32 s{sW}, 4", "s_cselect_b32 s42, s42, 0x7ffffff0",
          f"buffer_load_dwordx4 {vr(PF+8,4)}, v24, s[{SRD_B}:{SRD_B+3}], s42 offen")
    A(f"s_and_b32 s34, s{sW}, 3", f"s_lshr_b32 s35, s{sW}, 2")
    PT=200; vF0=206; F0V=204
    PTF="sc1"
    if 'ptnt' in opt: PTF="nt"
    if 'ptntsc1' in opt: PTF="sc1 nt"

    A("s_mov_b32 s57, 0x7ffffff0", f"buffer_load_dwordx4 {vr(PT,4)}, v24, {W_}, s57 offen sc1")
    A(f"s_lshl_b32 s42, s{sX}, 2", "s_lshl_b32 s43, s35, 1", "s_add_u32 s42, s42, s43", f"s_lshl_b32 s43, s{sBR}, 5", "s_add_u32 s42, s42, s43",
      "s_lshl_b32 s42, s42, 16", f"s_lshl_b32 s43, s{sRB}, 2", "s_add_u32 s43, s43, s34", "s_lshl_b32 s43, s43, 10", "s_add_u32 s56, s42, s43")
    A(f"v_and_b32 v{vF0}, 31, v{lane}", f"v_lshlrev_b32 v{vF0}, 2, v{vF0}", f"v_lshrrev_b32 v{t0}, 5, v{lane}", f"v_lshl_add_u32 v{vF0}, v{t0}, 10, v{vF0}",
      f"s_lshl_b32 s58, s{sX}, 7", f"s_add_u32 s58, s58, {FL+FL_F0}", f"s_getreg_b32 s{sXCC}, hwreg(HW_REG_XCC_ID, 0, 4)")
    aX=[10,11,12,13]; aW=18; r=20
    A(f"v_lshrrev_b32 v{hh_t}, 5, v{lane}", f"v_and_b32 v{r}, 31, v{lane}", f"v_lshrrev_b32 v{t0}, 1, v{r}", f"v_and_b32 v{t0}, 7, v{t0}", "s_lshl_b32 s42, s34, 5",
      f"v_add_u32 v{t1}, s42, v{r}", f"v_lshlrev_b32 v{t1}, 7, v{t1}")
    for s_ in range(4):
        A(f"v_or_b32 v{t2}, {2*s_}, v{hh_t}", f"v_xor_b32 v{t2}, v{t2}, v{t0}", f"v_lshl_add_u32 v{aX[s_]}, v{t2}, 4, v{t1}")
    A(f"v_bfe_u32 v{t0}, v{lane}, 2, 2", f"v_lshl_add_u32 v{t1}, v{hh_t}, 3, v{t0}", f"v_lshlrev_b32 v{t1}, 7, v{t1}",
      f"v_bfe_u32 v{t2}, v{lane}, 4, 1", f"v_lshlrev_b32 v{t2}, 1, v{t2}", f"v_bfe_u32 v21, v{lane}, 1, 1", f"v_add_u32 v{t2}, v{t2}, v21",
      "s_lshl_b32 s42, s35, 2", f"v_add_u32 v{t2}, s42, v{t2}", f"v_bfe_u32 v21, v{lane}, 3, 1", "v_lshlrev_b32 v21, 2, v21",
      f"v_xor_b32 v{t2}, v{t2}, v21", f"v_lshl_add_u32 v{t1}, v{t2}, 4, v{t1}",
      f"v_and_b32 v21, 1, v{lane}", f"v_lshl_add_u32 v{t1}, v21, 3, v{t1}", f"v_add_u32 v{aW}, 16384, v{t1}")
    TQ=32; TK=48; TV=64
    XF=[80,84]; WF=[[88,92,96],[100,104,108]]
    for i in range(48): A(f"v_mov_b32 v{TQ+i}, 0")
    def reads(s_):
        b=s_%2
        if 'p1noread' in opt: return []
        L=[f"ds_read_b128 {vr(XF[b],4)}, v{aX[s_]}"]
        for seg in range(3):
            for rr in range(2):
                L.append(f"ds_read_b64_tr_b16 {vr(WF[b][seg]+2*rr,2)}, v{aW} offset:{seg*8192+(16*s_+4*rr)*128}")
        return L
    A("s_mov_b32 s49, 0", "s_mov_b32 s36, 0", f"s_mov_b32 s53, {STG}")
    A(f"s_waitcnt vmcnt({6+NPF})", "s_barrier")
    A("s_waitcnt lgkmcnt(0)", f"s_mul_i32 s{sNONCE}, s3, 0x9e3779b1", f"s_add_u32 s{sNONCE}, s{sNONCE}, 0x7f4a7c15")
    A(f"s_cmp_lg_u32 s{sW}, 0", "s_cbranch_scc1 L_f0_nf", f"s_add_u32 s42, s{sNONCE}, s{sXCC}", f"s_lshl_b32 s43, s{sI}, 2", "s_add_u32 s43, s43, s58",
      "v_mov_b32 v5, s42", "v_mov_b32 v6, 0", "s_mov_b64 exec, 1", f"buffer_store_dword v5, v6, {W_}, s43 offen sc1", "s_mov_b64 exec, -1", "L_f0_nf:")
    ST.rt("p1_data")
    A(reads(0))
    A(".p2align 3", "P1_loop:")
    A("s_add_u32 s50, s49, 2", "s_and_b32 s51, s50, 3", f"s_mul_i32 s51, s51, {STG}", f"s_lshl_b32 s46, s{sW}, 10", "s_add_u32 s46, s46, s51",
      "s_lshl_b32 s47, s50, 7", f"s_mul_i32 s48, s50, {64*3072}", "s_cmp_lt_u32 s50, 8",
      f"s_cselect_b32 s{SRD_A+2}, {2048*512*2}, 0", f"s_cselect_b32 s{SRD_B+2}, {512*1536*2}, 0")
    G=dma_groups()
    place={0:[G[0],G[1]],1:[G[2],G[3]],2:[G[4]],3:[]}
    for s_ in range(4):
        b=s_%2
        if s_<3:
            A(reads(s_+1), "s_waitcnt lgkmcnt(7)")
        else:
            A("s_add_u32 s36, s36, 1", "s_cmp_eq_u32 s36, 4", f"s_cselect_b32 s52, {(-3*STG)&0xffffffff:#x}, s53", "s_cselect_b32 s36, 0, s36")
            A("s_waitcnt lgkmcnt(0)")
            for k in range(4): A(f"v_add_u32 v{aX[k]}, s52, v{aX[k]}")
            A(f"v_add_u32 v{aW}, s52, v{aW}")
            A("s_waitcnt vmcnt(7)" if 'p1nodma' not in opt else "s_nop 0")
            if 'p1nobar' not in opt: A("s_barrier")
            if 'p1it' in opt:
                A("s_memtime s[80:81]", "s_waitcnt lgkmcnt(0)")
                for k in range(7): A(f"s_mov_b32 s{64+8+k}, s{64+9+k}")
                A(f"s_mov_b32 s{64+15}, s80")
            A(reads(0))
        mf=[mfma32(TQ, WF[b][0], XF[b], TQ), mfma32(TK, WF[b][1], XF[b], TK), mfma32(TV, XF[b], WF[b][2], TV)]
        if 'p1nomfma' in opt: mf=["s_nop 0"]*3
        mine=place[s_]
        if 'p1nodma' in opt: mine=[]
        for k in range(3):
            A(mf[k])
            if k<len(mine): emit(mine[k])
            if s_==2 and k==1:
                A("s_cmp_eq_u32 s49, 6", "s_cbranch_scc1 P1_ptflag",
                  "s_lshr_b32 s54, s49, 1", "s_lshl_b32 s54, s54, 22", "s_and_b32 s55, s49, 1", "s_lshl_b32 s55, s55, 16", "s_add_u32 s54, s54, s55", "s_add_u32 s54, s54, s56",
                  "s_cmp_lt_u32 s49, 6", "s_cselect_b32 s54, s54, s57", f"buffer_load_dwordx4 {vr(PT,4)}, v24, {W_}, s54 offen {PTF}", "P1_ptback:")
    A("s_add_u32 s49, s49, 1", "s_cmp_lt_u32 s49, 8", "s_cbranch_scc1 P1_loop")
    ST.rt("p1_loop")
    A("s_branch P1_after")
    A("P1_ptflag:", f"buffer_load_dword v{F0V}, v{vF0}, {W_}, s58 offen sc1", "s_branch P1_ptback")
    A("P1_after:")
    A("s_waitcnt vmcnt(6)", f"s_mov_b32 s42, {SPIN_MAX}")
    A("P1_chk:", f"v_subrev_u32 v{F0V+1}, s{sNONCE}, v{F0V}", f"v_cmp_gt_u32 vcc, 8, v{F0V+1}", "s_nop 1", "s_cmp_eq_u32 vcc_lo, -1", "s_cbranch_scc1 P1_chk_ok")
    A("s_sub_u32 s42, s42, 1", "s_cmp_eq_u32 s42, 0", "s_cbranch_scc1 P1_chk_ok", "s_sleep 1",
      f"buffer_load_dword v{F0V}, v{vF0}, {W_}, s58 offen sc1", "s_waitcnt vmcnt(0)", "s_branch P1_chk")
    A("P1_chk_ok:", f"v_cmp_eq_u32 vcc, s{sXCC}, v{F0V+1}", "s_nop 1", "s_cmp_eq_u32 vcc_lo, -1", f"s_cselect_b32 s{sMODE}, 1, 0")
    if 'forcesafe' in opt: A(f"s_mov_b32 s{sMODE}, 0")
    if 'p1it' in opt:
        ST.n=16; ST.flush(122); A("s_waitcnt vmcnt(0)", "s_endpgm")
    A(f"v_bfe_u32 v25, v{lane}, 4, 1", "v_lshlrev_b32 v25, 16, v25", f"v_lshl_add_u32 v25, v{hh_t}, 8, v25", f"v_and_b32 v26, 15, v{lane}", "v_lshl_add_u32 v25, v26, 4, v25")
    A(f"s_mov_b32 s44, {hex(f2u(QSCALE))}", "s_waitcnt lgkmcnt(0)")
    PK=80
    for i in range(8): A(f"v_cvt_pk_bf16_f32 v{PK+8+i}, v{TK+2*i}, v{TK+2*i+1}")
    for i in range(8): A(f"v_cvt_pk_bf16_f32 v{PK+16+i}, v{TV+2*i}, v{TV+2*i+1}")
    for i in range(16): A(f"v_mul_f32 v{TQ+i}, s44, v{TQ+i}")
    for i in range(8): A(f"v_cvt_pk_bf16_f32 v{PK+i}, v{TQ+2*i}, v{TQ+2*i+1}")
    A(f"s_add_u32 s45, s56, {KF}", f"s_add_u32 s46, s56, {KF+65536}", f"s_add_u32 s47, s56, {VF}", f"s_add_u32 s48, s56, {QF+65536}")
    A(f"s_cmp_eq_u32 s{sMODE}, 0", "s_cbranch_scc1 P1_st_safe")
    for sc,lab in (("",None),(" sc1","P1_st_safe")):
        if lab: A("s_branch P1_st_done", f"{lab}:")
        A(f"buffer_store_dwordx4 {vr(PK+8,4)}, v24, {W_}, s45 offen{sc}", f"buffer_store_dwordx4 {vr(PK+12,4)}, v24, {W_}, s46 offen{sc}")
        A(f"buffer_store_dwordx4 {vr(PK+16,4)}, v25, {W_}, s47 offen{sc}", f"buffer_store_dwordx4 {vr(PK+20,4)}, v25, {W_}, s47 offen offset:512{sc}")
        A(f"buffer_store_dwordx4 {vr(PK,4)}, v24, {W_}, s56 offen{sc}", f"buffer_store_dwordx4 {vr(PK+4,4)}, v24, {W_}, s48 offen{sc}")
    A("P1_st_done:")
    if 'fine1' in opt: ST.rt("st_issued")
    A(f"v_mov_b32 v{GA}, 0")
    for i in range(4): A(f"v_dot2_f32_bf16 v{GA}, v{GX+i}, v{GW+i}, v{GA}")
    A("s_nop 2")
    for ror in (8,4,2,1):
        A(f"v_add_f32_dpp v{GA}, v{GA}, v{GA} row_ror:{ror} row_mask:0xf bank_mask:0xf", "s_nop 1")
    A(f"v_mov_b32 v{GA+1}, v{GA}", "s_nop 1", f"v_permlane16_swap_b32 v{GA+1}, v{GA}", "s_nop 1", f"v_add_f32 v{GA}, v{GA}, v{GA+1}",
      f"v_mov_b32 v{GA+1}, v{GA}", "s_nop 1", f"v_permlane32_swap_b32 v{GA+1}, v{GA}", "s_nop 1", f"v_add_f32 v{GA}, v{GA}, v{GA+1}")
    A(f"v_mul_f32 v{GA}, {hex(f2u(-1.4426950408889634))}, v{GA}", f"v_exp_f32 v{GA}, v{GA}", "s_nop 0", f"v_add_f32 v{GA}, 1.0, v{GA}", f"v_rcp_f32 v{GA}, v{GA}",
      "s_lshl_b32 s42, s2, 3", f"s_add_u32 s42, s42, s{sW}", "s_lshl_b32 s42, s42, 2", f"s_add_u32 s42, s42, {GOFF}", f"v_mov_b32 v{GA+1}, 0", "s_mov_b64 exec, 1",
      f"buffer_store_dword v{GA}, v{GA+1}, {W_}, s42 offen sc1", "s_mov_b64 exec, -1")

def sync1(A, ST, opt):
    if 'fine1' in opt:
        ST.rt("pre_wait"); A("s_waitcnt vmcnt(0)"); ST.rt("vm0"); A("s_barrier"); ST.rt("p1_stored")
        ST.flush(122); A("s_waitcnt vmcnt(0)", "s_endpgm"); ST.on=False
    A("s_waitcnt vmcnt(0)", "s_barrier")
    ST.rt("p1_stored")
    A(f"s_lshl_b32 s42, s{sX}, 7", f"s_lshl_b32 s43, s{sI}, 2", "s_add_u32 s43, s43, s42", f"s_add_u32 s43, s43, {FL+FL_F1}", f"s_add_u32 s38, s42, {FL+FL_F1}")
    A(f"s_cmp_eq_u32 s{sMODE}, 0", "s_cbranch_scc1 L_f1_safe")
    setflag(A,"f1f",43,2,"")
    A("s_branch L_f1_done", "L_f1_safe:")
    setflag(A,"f1s",43,2," sc1")
    A("L_f1_done:")
    poll(A,"p1",38,2,3,stride=F1STR)
    A("s_barrier")
    ST.rt("p1_flags")

LANE=1
QA0=4; QA1=8; QB=12
OA0=16; OA1=32
S0=48; S1=64
P=80
KB_=88; VB_=96
MF=112; MD=128; CB=144
vKa=160; vVa=161
vG=162; vL16=163; vT=164; vT2=165; vT3=166; vNEGM=167; vM=168; vKs=169; vVs=170; vGB=171; vX0=172
VL=vX0+11
LDS_KA=0; LDS_VA=65536; LDS_KB=131072; LDS_VB=147456
def exps(S): return [f"v_exp_f32 v{S+i}, v{S+i}" for i in range(16)]
def cvts(S): return [f"v_cvt_pk_bf16_f32 v{P+i}, v{S+2*i}, v{S+2*i+1}" for i in range(8)]
MK=[f"s_mov_b64 exec, s[{sMASK}:{sMASK+1}]"]; UM=["s_mov_b64 exec, -1"]
def unit(A, Sc, QK, PV1, ld, wK, wV, PV0):
    e=exps(Sc); c=cvts(Sc)
    A(wK, QK)
    A(e[0:4], c[0], e[4:6], c[1])
    A(PV1, ld)
    A(e[6:8], c[2], e[8:10], c[3], e[10:12])
    A(wV, PV0)
    A(e[12:13], c[4], e[13:15], c[5], e[15:16], c[6], c[7])
def slow_pass(A, tag, Q, O, pass1, far, diag, n):
    A(f"v_mov_b32 v{vX0}, v{vKs}", f"v_mov_b32 v{vX0+1}, v{vVs}", "s_mov_b32 s60, 0")
    if pass1: A(f"v_mov_b32 v{vM}, {hex(NEG)}", f"v_mov_b32 v{vNEGM}, 0")
    else:
        for i in range(16): A(f"v_mov_b32 v{O+i}, 0")
    A(f"L_{tag}_loop:")
    A(f"ds_read_b128 {vr(KB_,4)}, v{vX0}")
    if not pass1: A(MK, f"ds_read_b128 {vr(VB_,4)}, v{vX0+1}", f"ds_read_b128 {vr(VB_+4,4)}, v{vX0+1} offset:512", UM)
    A("s_cmp_eq_u32 s60, 0", f"s_cselect_b32 s61, s{far}, 0", "s_cmp_lg_u32 s61, 0", f"s_cbranch_scc1 L_{tag}_far")
    A(f"s_add_u32 s61, s60, 1", f"s_cmp_eq_u32 s61, s{n}", f"s_cselect_b32 s61, s{diag}, 0", "s_cmp_lg_u32 s61, 0", f"s_cbranch_scc1 L_{tag}_diag")
    for i in range(16): A(f"v_mov_b32 v{CB+i}, v{vNEGM}")
    A(f"s_branch L_{tag}_go")
    A(f"L_{tag}_far:")
    for i in range(16): A(f"v_add_f32 v{CB+i}, v{MF+i}, v{vNEGM}")
    A(f"s_branch L_{tag}_go")
    A(f"L_{tag}_diag:")
    for i in range(16): A(f"v_add_f32 v{CB+i}, v{MD+i}, v{vNEGM}")
    A(f"L_{tag}_go:")
    A("s_waitcnt lgkmcnt(0)", "s_nop 0")
    A(mfma32(S0, KB_, Q, CB))
    A("s_nop 7","s_nop 3")
    if pass1:
        for i in range(16): A(f"v_max_f32 v{vM}, v{vM}, v{S0+i}")
    else:
        A(exps(S0), "s_nop 0", cvts(S0), "s_nop 1")
        A(mfma32(O, VB_, P, O), mfma32(O, VB_+4, P+4, O))
    A(f"v_add_u32 v{vX0}, 1024, v{vX0}", f"v_add_u32 v{vX0+1}, 1024, v{vX0+1}")
    A("s_add_u32 s60, s60, 1", f"s_cmp_lt_u32 s60, s{n}", f"s_cbranch_scc1 L_{tag}_loop")
    if pass1:
        A(f"v_mov_b32 v{vT}, v{vM}", "s_nop 1", f"v_permlane32_swap_b32 v{vT}, v{vM}", "s_nop 1",
          f"v_max_f32 v{vM}, v{vM}, v{vT}", f"v_sub_f32 v{vNEGM}, 0, v{vM}")
    else: A("s_nop 7","s_nop 3")
def bcast_l(A,O):
    A(f"v_mov_b32 v{vT}, v{O+8}", "s_nop 1", f"v_permlane32_swap_b32 v{vT}, v{O+8}", "s_nop 1", f"v_add_f32 v{O+8}, v{O+8}, v{vT}")
def check_range(A, O, okl):
    bcast_l(A,O)
    A(f"v_mov_b32 v{vT}, v{O+8}")
    for i in range(8): A(f"v_fma_f32 v{vT}, v{O+i}, 0, v{vT}")
    A(f"s_mov_b32 s44, {hex(LLO)}", f"s_mov_b32 s45, {hex(LHI)}")
    A(f"v_cmp_le_f32 s[46:47], s44, v{vT}", f"v_cmp_ge_f32 s[48:49], s45, v{vT}", "s_nop 1",
      "s_and_b64 s[46:47], s[46:47], s[48:49]", "s_cmp_eq_u64 s[46:47], -1", f"s_cbranch_scc1 {okl}")
def finalize(A, O, soff):
    A(f"v_rcp_f32 v{vT}, v{O+8}", "s_nop 0")
    for i in range(8): A(f"v_mul_f32 v{O+i}, v{O+i}, v{vT}")
    for i in range(4): A(f"v_cvt_pk_bf16_f32 v{vX0+4+i}, v{O+2*i}, v{O+2*i+1}")
    A(f"buffer_store_dwordx4 {vr(vX0+4,4)}, v{vL16}, s[{SRD_WS}:{SRD_WS+3}], s{soff} offen sc1")

def phase2(A, ST, opt):
    W_=f"s[{SRD_WS}:{SRD_WS+3}]"
    SC="" if 'plainld' in opt else " sc1"
    A(f"v_and_b32 v{LANE}, 63, v0")
    A(f"s_and_b32 s15, s{sW}, 3", f"s_lshr_b32 s16, s{sW}, 2")
    A("s_lshl_b32 s17, s15, 1", "s_add_u32 s17, s17, s16",
      f"s_lshl_b32 s18, s{sJ}, 3", "s_add_u32 s19, s18, s17",
      f"s_lshl_b32 s20, s{sH}, 16", f"s_add_u32 s21, s20, {32*65536}")
    A(f"v_lshlrev_b32 v{vL16}, 4, v{LANE}", f"v_and_b32 v{vT}, 31, v{LANE}")
    A(f"s_mov_b32 s{sMASK}, 0x0000ffff", f"s_mov_b32 s{sMASK+1}, 0x0000ffff")
    A(f"v_cmp_eq_u32 vcc, 16, v{vT}", f"v_mov_b32 v{vX0}, 0x3f803f80", "s_nop 0", f"v_cndmask_b32 v{vX0+1}, 0, v{vX0}, vcc")
    for i in range(16): A(f"v_mov_b32 v{VB_+i}, v{vX0+1}")
    hh=vT3
    A(f"v_lshrrev_b32 v{hh}, 5, v{LANE}", f"v_lshlrev_b32 v{vT2}, 2, v{hh}", f"v_sub_u32 v{vT2}, v{vT}, v{vT2}")
    A(f"v_mov_b32 v{vX0}, {hex(NEG)}")
    for g in range(4):
        for k in range(4): A(f"v_cmp_gt_i32 s[{44+2*k}:{45+2*k}], {8*g+k}, v{vT2}")
        A("s_nop 0")
        for k in range(4):
            i=4*g+k
            A(f"v_cndmask_b32 v{MF+i}, v{vX0}, 0, s[{44+2*k}:{45+2*k}]", f"v_cndmask_b32 v{MD+i}, 0, v{vX0}, s[{44+2*k}:{45+2*k}]")
    A(f"v_and_b32 v{vT}, 15, v{LANE}", f"v_lshlrev_b32 v{vT}, 4, v{vT}", f"v_lshl_add_u32 v{VL}, v{hh}, 8, v{vT}")
    A("s_lshl_b32 s43, s17, 10", f"s_add_u32 s44, s43, {LDS_KB}", f"v_add_u32 v{vKa}, s44, v{vL16}",
      f"s_add_u32 s44, s43, {LDS_VB}", f"v_add_u32 v{vVa}, s44, v{VL}")
    A("s_lshl_b32 s32, s19, 16", f"s_lshl_b32 s33, s{sH}, 10", "s_add_u32 s32, s32, s33", f"s_add_u32 s32, s32, {OF}", "s_add_u32 s33, s32, 32768")
    A("s_lshl_b32 s22, s19, 10", "s_add_u32 s22, s22, s21", f"s_add_u32 s22, s22, {QF}")
    A("s_lshl_b32 s23, s15, 1", "s_add_u32 s23, s23, s18", "s_lshl_b32 s23, s23, 10", "s_add_u32 s23, s23, s20", f"s_add_u32 s23, s23, {QF}")
    for ii in range(2):
        A(f"s_add_u32 s43, s{sW}, {8*ii}", "s_add_u32 s44, s18, s43", "s_sub_u32 s44, s44, 8", "s_max_i32 s44, s44, 0",
          "s_lshl_b32 s44, s44, 10", "s_add_u32 s44, s44, s21", f"s_add_u32 s{54+ii}, s44, {KF}")
    A(f"s_lshl_b32 s56, s{sW}, 10", "s_add_u32 s57, s56, s20", f"s_add_u32 s57, s57, {KF}")
    OBz=OA0
    for i in range(16): A(f"v_mov_b32 v{OBz+i}, 0")
    for i in range(4): A(f"v_mov_b32 v{P+4+i}, 0")
    sync1(A,ST,opt)
    A(f"buffer_load_dwordx4 {vr(QB,4)}, v{vL16}, {W_}, s22 offen{SC}")
    if 'fine2' in opt:
        A("s_waitcnt vmcnt(0)"); ST.rt("qb_landed")
    for ii in range(2):
        A(f"s_add_u32 m0, s56, {LDS_KB+8192*ii}", f"s_add_u32 s45, s{54+ii}, {VF-KF}", f"buffer_load_dwordx4 v{vL16}, {W_}, s{54+ii} offen{SC} lds")
        A(f"s_add_u32 m0, s56, {LDS_VB+8192*ii}", "s_nop 0", f"buffer_load_dwordx4 v{vL16}, {W_}, s45 offen{SC} lds")
    A(f"buffer_load_dwordx4 {vr(QA0,4)}, v{vL16}, {W_}, s23 offen{SC}", f"buffer_load_dwordx4 {vr(QA1,4)}, v{vL16}, {W_}, s23 offen offset:1024{SC}")
    def adma(m):
        return [f"s_add_u32 m0, s56, {LDS_KA+m*8192}", f"s_add_u32 s45, s57, {m*8192}", f"buffer_load_dwordx4 v{vL16}, {W_}, s45 offen{SC} lds",
                f"s_add_u32 m0, s56, {LDS_VA+m*8192}", f"s_add_u32 s45, s57, {VF-KF+m*8192}", f"buffer_load_dwordx4 v{vL16}, {W_}, s45 offen{SC} lds"]
    global ADMA; ADMA=adma
    A(f"s_cmp_lg_u32 s{sJ}, 0", "s_cbranch_scc1 A_dma_skip")
    for m in range(8): A(adma(m))
    A("s_waitcnt vmcnt(18)", "s_branch A_dma_join")
    A("A_dma_skip:", "s_waitcnt vmcnt(2)", "A_dma_join:")
    if 'fine2' in opt:
        ST.rt("own_b"); A("s_barrier"); ST.rt("b_data"); ST.flush(2); A("s_waitcnt vmcnt(0)", "s_endpgm"); ST.on=False
    OB=OA0
    A("s_barrier")
    ST.rt("b_data")
    def ldK(t,base): return [f"ds_read_b128 {vr(KB_+4*(t%2),4)}, v{base} offset:{t*1024}"]
    def ldV(t,base): return MK+[f"ds_read_b128 {vr(VB_+8*(t%2),4)}, v{base} offset:{t*1024}", f"ds_read_b128 {vr(VB_+8*(t%2)+4,4)}, v{base} offset:{t*1024+512}"]+UM
    NB=9
    A("s_mov_b32 s51, 1", f"s_cmp_eq_u32 s{sJ}, 0", "s_cselect_b32 s50, 0, 1", "s_sub_u32 s53, 8, s17", "s_cselect_b32 s53, s53, 0")
    A.L.pop()
    A(f"s_cmp_eq_u32 s{sJ}, 0", "s_cselect_b32 s53, s53, 0")
    A("s_sub_u32 s52, 9, s53")
    A("s_lshl_b32 s43, s53, 10", f"v_add_u32 v{vKs}, s43, v{vKa}", f"v_add_u32 v{vVs}, s43, v{vVa}")
    for s0 in range(NB):
        A(f"s_cmp_eq_u32 s53, {s0}", f"s_cbranch_scc1 B_pro{s0}")
    for s0 in range(NB-1,-1,-1):
        A(f"B_pro{s0}:")
        Sc=S0 if s0%2==0 else S1
        C = MF if s0==0 else (MD if s0==NB-1 else "0")
        A(ldK(s0,vKa), "s_waitcnt lgkmcnt(0)", mfma32(Sc, KB_+4*(s0%2), QB, C))
        if s0==0:
            A(ldV(0,vVa), ldK(1,vKa))
        else:
            if s0+1<NB: A(ldK(s0+1,vKa))
            A(ldV(s0,vVa))
        A("s_nop 7","s_nop 3")
        if s0!=0: A(f"s_branch B_step{s0}")
    for t in range(NB):
        A(f"B_step{t}:")
        Sc=S0 if t%2==0 else S1; Sn=S1 if t%2==0 else S0
        if t+1<NB:
            QK=[mfma32(Sn, KB_+4*((t+1)%2), QB, MD if t+1==NB-1 else "0")]
            wK=["s_waitcnt lgkmcnt(0)"] if t==0 else ["s_waitcnt lgkmcnt(2)"]
        else: QK=[]; wK=[]
        PV1=[mfma32(OB, VB_+8*((t-1)%2)+4, P+4, OB)] if t>0 else []
        ld=[]
        if t+2<NB: ld+=ldK(t+2,vKa)
        if t+1<NB: ld+=ldV(t+1,vVa)
        nld=(1 if t+2<NB else 0)+(2 if t+1<NB else 0)
        wV=[f"s_waitcnt lgkmcnt({nld})"]
        PV0=[mfma32(OB, VB_+8*(t%2), P, OB)]
        if t<8: ld=ld+ADMA(t)
        unit(A,Sc,QK,PV1,ld,wK,wV,PV0)
    A("s_nop 1", mfma32(OB, VB_+8*((NB-1)%2)+4, P+4, OB))
    A("s_nop 7","s_nop 3")
    check_range(A,OB,"B_ok")
    slow_pass(A,"bf1",QB,OB,True,50,51,52)
    slow_pass(A,"bf2",QB,OB,False,50,51,52)
    bcast_l(A,OB)
    A("B_ok:")
    finalize(A,OB,33)
    ST.rt("b_done")
    A("s_waitcnt vmcnt(1)", "s_barrier")
    ST.rt("a_start")
    if 'wbl2' in opt:
        A(f"s_cmp_lg_u32 s{sI}, 0", "s_cbranch_scc1 L_nowb", f"s_cmp_lg_u32 s{sW}, 0", "s_cbranch_scc1 L_nowb", "buffer_wbl2 sc1", "L_nowb:")
    if 'dup' in opt: A("s_mov_b32 s54, 2", "A_dup:")
    A("s_lshl_b32 s43, s16, 15", f"v_add_u32 v{vKa}, s43, v{vL16}", f"s_add_u32 s44, s43, {LDS_VA}", f"v_add_u32 v{vVa}, s44, v{VL}")
    for i in range(32): A(f"v_mov_b32 v{OA0+i}, 0")
    for i in range(4): A(f"v_mov_b32 v{P+4+i}, 0")
    Qr=[QA0,QA1]; Or=[OA0,OA1]
    A(ldK(0,vKa), ldV(0,vVa), "s_waitcnt lgkmcnt(2)", mfma32(S0, KB_, QA0, "0"))
    A("s_mov_b32 s53, 4", "s_nop 7", "s_nop 2")
    A(".p2align 3", "A_loop:")
    for pr in (3,2,1,0):
        A(f"s_cmp_eq_u32 s53, {pr+1}", f"s_cbranch_scc0 A_lp{pr}", f"s_setprio {pr}", f"A_lp{pr}:")
    NK=8
    units=[(t,qi) for t in range(NK) for qi in range(2)]
    for u,(t,qi) in enumerate(units):
        Sc=S0 if u%2==0 else S1; Sn=S1 if u%2==0 else S0
        tn,qn=(t,1) if qi==0 else (t+1,0)
        tp,qp=(t-1,1) if qi==0 else (t,0)
        QK=[mfma32(Sn, KB_+4*(tn%2), Qr[qn], "0")]
        PV1=[mfma32(Or[qp], VB_+8*(tp%2)+4, P+4, Or[qp])]
        PV0=[mfma32(Or[qi], VB_+8*(t%2), P, Or[qi])]
        ld=[];wK=[];wV=[]
        if qi==0: ld=ldK(t+1,vKa)+ldV(t+1,vVa); wV=["s_waitcnt lgkmcnt(3)"]
        else: wK=["s_waitcnt lgkmcnt(2)"]
        unit(A,Sc,QK,PV1,ld,wK,wV,PV0)
    A(f"v_add_u32 v{vKa}, {NK*1024}, v{vKa}", f"v_add_u32 v{vVa}, {NK*1024}, v{vVa}")
    A("s_sub_u32 s53, s53, 1", "s_cmp_lg_u32 s53, 0", "s_cbranch_scc1 A_loop")
    A(mfma32(OA1, VB_+8*((NK-1)%2)+4, P+4, OA1))
    A("s_waitcnt lgkmcnt(0)", "s_nop 7", "s_nop 3")
    if 'dup' in opt: A("s_sub_u32 s54, s54, 1", "s_cmp_lg_u32 s54, 0", "s_cbranch_scc1 A_dup")
    ST.rt("a_loop")
    A("s_cmp_eq_u32 s16, 0", "s_cbranch_scc1 A_X0")
    for i in range(9): A(f"v_mov_b32 v{vT}, v{OA0+i}", f"v_mov_b32 v{OA0+i}, v{OA1+i}", f"v_mov_b32 v{OA1+i}, v{vT}")
    A("A_X0:")
    A(f"s_mul_i32 s43, s{sW}, 2560", f"s_add_u32 s43, s43, {LDS_KB}", f"v_add_u32 v{vT}, s43, v{vL16}",
      f"v_lshlrev_b32 v{vT2}, 2, v{LANE}", f"v_add_u32 v{vT2}, s43, v{vT2}")
    A(f"ds_write_b128 v{vT}, {vr(OA1,4)}", f"ds_write_b128 v{vT}, {vr(OA1+4,4)} offset:1024", f"ds_write_b32 v{vT2}, v{OA1+8} offset:2048")
    A(f"s_xor_b32 s44, s{sW}, 4", "s_mul_i32 s43, s44, 2560", f"s_add_u32 s43, s43, {LDS_KB}", f"v_add_u32 v{vT}, s43, v{vL16}",
      f"v_lshlrev_b32 v{vT2}, 2, v{LANE}", f"v_add_u32 v{vT2}, s43, v{vT2}")
    A("s_waitcnt lgkmcnt(0)", "s_barrier")
    A(f"ds_read_b128 {vr(S0,4)}, v{vT}", f"ds_read_b128 {vr(S0+4,4)}, v{vT} offset:1024", f"ds_read_b32 v{S0+8}, v{vT2} offset:2048")
    A("s_waitcnt lgkmcnt(0)")
    for i in range(9): A(f"v_add_f32 v{OA0+i}, v{OA0+i}, v{S0+i}")
    check_range(A,OA0,"A_ok")
    A("s_cmp_eq_u32 s16, 0", "s_cbranch_scc1 A_F0")
    for i in range(4): A(f"v_mov_b32 v{QA0+i}, v{QA1+i}")
    A("A_F0:")
    A("s_mov_b32 s50, 0", "s_mov_b32 s51, 0", "s_mov_b32 s52, 64")
    A(f"v_add_u32 v{vKs}, {LDS_KA}, v{vL16}", f"v_add_u32 v{vVs}, {LDS_VA}, v{VL}")
    slow_pass(A,"af1",QA0,OA0,True,50,51,52)
    slow_pass(A,"af2",QA0,OA0,False,50,51,52)
    bcast_l(A,OA0)
    A("A_ok:")
    finalize(A,OA0,32)

def phase3(A, ST, opt):
    W_=f"s[{SRD_WS}:{SRD_WS+3}]"
    lane=LANE
    srd(A,SRD_A,pWOA,512*512*2); srd(A,SRD_B,pWOB,512*512*2); srd(A,SRD_C,pOUT,2048*512*2)
    A(f"s_and_b32 s34, s{sI}, 3", f"s_lshr_b32 s35, s{sI}, 2")
    A("s_barrier")
    vW=4
    A(f"v_lshrrev_b32 v5, 3, v{lane}", "v_lshlrev_b32 v5, 10, v5", f"v_bfe_u32 v6, v{lane}, 4, 1", "v_lshlrev_b32 v6, 2, v6", f"v_and_b32 v7, 7, v{lane}",
      "v_xor_b32 v6, v6, v7", "v_lshlrev_b32 v6, 4, v6", "v_add_u32 v5, v5, v6", "s_lshl_b32 s42, s35, 7", f"v_add_u32 v{vW}, s42, v5")
    A(f"s_and_b32 s43, s{sW}, 3", "s_lshl_b32 s43, s43, 17", f"s_lshl_b32 s44, s{sW}, 14")
    A(f"s_cmp_ge_u32 s{sW}, 4", "s_cbranch_scc1 P3_wB")
    for br,lab in ((0,None),(1,"P3_wB")):
        if lab: A("s_branch P3_wdone", f"{lab}:")
        S_=SRD_A if br==0 else SRD_B
        for ii in range(16):
            A(f"s_add_u32 m0, s44, {ii*1024}", f"s_add_u32 s45, s43, {ii*8192}", f"buffer_load_dwordx4 v{vW}, s[{S_}:{S_+3}], s45 offen lds")
    A("P3_wdone:")
    A("s_waitcnt vmcnt(16)", "s_barrier")
    ST.rt("o_stored")
    A(f"s_mul_i32 s42, s{sJ}, {32*FSTR}", f"s_mul_i32 s43, s{sH}, {FSTR}", "s_add_u32 s43, s43, s42", f"s_add_u32 s43, s43, {FL+FL_F2}")
    setflag(A,"f2",43,5)
    WR=128
    A(f"s_and_b32 s36, s{sW}, 1", f"s_bfe_u32 s37, s{sW}, 0x10001", f"s_lshr_b32 s38, s{sW}, 2")
    A(f"v_lshrrev_b32 v8, 5, v{lane}",
      f"v_bfe_u32 v5, v{lane}, 2, 2", "v_lshl_add_u32 v5, v8, 2, v5", "v_lshlrev_b32 v5, 7, v5",
      f"v_bfe_u32 v6, v{lane}, 4, 1", "v_lshlrev_b32 v6, 1, v6", f"v_bfe_u32 v7, v{lane}, 1, 1", "v_add_u32 v6, v6, v7",
      "s_lshl_b32 s42, s37, 2", "v_add_u32 v6, s42, v6",
      f"v_bfe_u32 v7, v{lane}, 3, 1", "v_lshlrev_b32 v7, 2, v7", "v_xor_b32 v6, v6, v7", "v_lshlrev_b32 v6, 4, v6", "v_add_u32 v5, v5, v6",
      f"v_and_b32 v7, 1, v{lane}", "v_lshlrev_b32 v7, 3, v7", "v_add_u32 v5, v5, v7",
      "s_lshl_b32 s42, s38, 16", "v_add_u32 v10, s42, v5")
    A("s_waitcnt vmcnt(0)", "s_barrier")
    ST.rt("w_landed")
    for s in range(32):
        A(f"ds_read_b64_tr_b16 {vr(WR+4*s,2)}, v10 offset:{(16*s)*128}", f"ds_read_b64_tr_b16 {vr(WR+4*s+2,2)}, v10 offset:{(16*s+8)*128}")
        if s%4==3: A("s_waitcnt lgkmcnt(4)")
    A("s_waitcnt lgkmcnt(0)")
    A(f"s_mul_i32 s42, s{sX}, {32*FSTR}", f"s_add_u32 s39, s42, {FL+FL_F2}")
    poll(A,"p2",39,5,6)
    A("s_barrier")
    ST.rt("p2_flags")
    A("s_cmp_lg_u32 s2, 0", "s_cbranch_scc1 P3_noep", f"s_mov_b32 s43, {FL+FL_EPOCH}")
    setflag(A,"ep",43,5)
    A("P3_noep:")
    A(f"v_lshlrev_b32 v3, 4, v{lane}")
    A(f"s_lshl_b32 s42, s{sX}, 3", "s_lshl_b32 s43, s34, 1", "s_add_u32 s42, s42, s43", "s_lshl_b32 s42, s42, 16", f"s_add_u32 s42, s42, {OF}")
    A("s_lshl_b32 s43, s36, 16", "s_lshl_b32 s44, s37, 15", "s_add_u32 s43, s43, s44", "s_lshl_b32 s44, s38, 12", "s_add_u32 s43, s43, s44")
    A("s_add_u32 s42, s42, s43")
    for qd in range(4):
        for ii in range(4):
            A(f"s_add_u32 m0, s43, {qd*8192+ii*1024}", f"s_add_u32 s45, s42, {qd*8192+ii*1024}", f"buffer_load_dwordx4 v3, {W_}, s45 offen sc1 lds")
    ACC=16; OFr=[32,36,40,44]
    A(f"v_and_b32 v12, 31, v{lane}", f"s_lshl_b32 s44, s{sX}, 8", "s_lshl_b32 s45, s34, 6", "s_add_u32 s44, s44, s45", "s_lshl_b32 s45, s36, 5", "s_add_u32 s44, s44, s45",
      "v_add_u32 v12, s44, v12", "v_lshlrev_b32 v13, 2, v12", f"s_mov_b32 s45, {GOFF}", f"buffer_load_dword v14, v13, {W_}, s45 offen sc1")
    for i in range(16): A(f"v_mov_b32 v{ACC+i}, 0")
    A("s_lshl_b32 s43, s36, 16", "s_lshl_b32 s44, s38, 15", "s_add_u32 s43, s43, s44", "v_add_u32 v11, s43, v3")
    for qd in range(4):
        A(f"s_waitcnt vmcnt({13-4*qd if qd<3 else 1})", "s_barrier")
        for s in range(4): A(f"ds_read_b128 {vr(OFr[s],4)}, v11 offset:{(8*qd+s)*1024}")
        for s in range(8):
            n=8*qd+s
            A(f"s_waitcnt lgkmcnt({3 if s<5 else 7-s})")
            A(mfma32(ACC, WR+4*n, OFr[s%4], ACC))
            if s<4: A(f"ds_read_b128 {vr(OFr[s%4],4)}, v11 offset:{(8*qd+s+4)*1024}")
    ST.rt("p3_mfma")
    A("s_nop 7","s_nop 3","s_barrier")
    A(f"s_lshl_b32 s43, s{sW}, 11", "v_add_u32 v5, s43, v3", f"s_xor_b32 s44, s{sW}, 4", "s_lshl_b32 s44, s44, 11", "v_add_u32 v6, s44, v3")
    A("s_cmp_eq_u32 s38, 0", "s_cbranch_scc1 P3_k0")
    for i in range(8): A(f"v_mov_b32 v7, v{ACC+i}", f"v_mov_b32 v{ACC+i}, v{ACC+8+i}", f"v_mov_b32 v{ACC+8+i}, v7")
    A("P3_k0:")
    A(f"ds_write_b128 v5, {vr(ACC+8,4)}", f"ds_write_b128 v5, {vr(ACC+12,4)} offset:1024", "s_waitcnt lgkmcnt(0)", "s_barrier")
    A(f"ds_read_b128 {vr(32,4)}, v6", f"ds_read_b128 {vr(36,4)}, v6 offset:1024", "s_waitcnt lgkmcnt(0)")
    A("s_waitcnt vmcnt(0)", "s_cmp_eq_u32 s38, 0", "s_cbranch_scc1 P3_g0")
    A("v_sub_f32 v14, 1.0, v14")
    A("P3_g0:")
    for i in range(8): A(f"v_sub_f32 v{ACC+i}, v{ACC+i}, v{32+i}")
    for i in range(8): A(f"v_fma_f32 v{ACC+i}, v14, v{ACC+i}, v{32+i}")
    PK=40
    for i in range(4): A(f"v_cvt_pk_bf16_f32 v{PK+i}, v{ACC+2*i}, v{ACC+2*i+1}")
    A("s_nop 1", f"v_permlane32_swap_b32 v{PK}, v{PK+2}", f"v_permlane32_swap_b32 v{PK+1}, v{PK+3}")
    A("v_lshlrev_b32 v5, 10, v12", "v_lshl_add_u32 v5, v8, 4, v5",
      "s_lshl_b32 s42, s35, 7", "s_lshl_b32 s43, s37, 6", "s_add_u32 s42, s42, s43", "s_lshl_b32 s43, s38, 5", "s_add_u32 s42, s42, s43")
    A(f"buffer_store_dwordx4 {vr(PK,4)}, v5, s[{SRD_C}:{SRD_C+3}], s42 offen")

def gen(opt=()):
    A=Asm(); ST=Stamps(A,'stamps' in opt)
    A(f".globl {NAME}", ".p2align 8", f".type {NAME},@function", f"{NAME}:")
    A("s_cmp_ge_u32 s2, 256", "s_cbranch_scc1 L_done")
    if 'scramble' in opt: A("s_lshr_b32 s3, s2, 3", "s_and_b32 s2, s2, 7", "s_lshl_b32 s2, s2, 5", "s_or_b32 s2, s2, s3")
    A(f"s_load_dwordx2 s[{sWS}:{sWS+1}], s[0:1], 72", "s_load_dwordx2 s[42:43], s[0:1], 0", "s_load_dwordx2 s[44:45], s[0:1], 8",
      "s_load_dwordx2 s[46:47], s[0:1], 32", "s_load_dwordx2 s[48:49], s[0:1], 48",
      f"s_load_dwordx2 s[{pWOA}:{pWOA+1}], s[0:1], 16", f"s_load_dwordx2 s[{pWOB}:{pWOB+1}], s[0:1], 40", f"s_load_dwordx2 s[{pOUT}:{pOUT+1}], s[0:1], 56")
    A(f"s_and_b32 s{sX}, s2, 7", f"s_lshr_b32 s{sI}, s2, 3", f"s_lshr_b32 s{sJ}, s{sI}, 2", f"s_and_b32 s{sA}, s{sI}, 3",
      f"s_lshr_b32 s{sBR}, s{sA}, 1", f"s_and_b32 s50, s{sA}, 1", f"s_lshl_b32 s{sRB}, s{sJ}, 1", f"s_add_u32 s{sRB}, s{sRB}, s50",
      f"s_lshl_b32 s{sH}, s{sX}, 2", f"s_add_u32 s{sH}, s{sH}, s{sA}")
    A("v_lshrrev_b32 v1, 6, v0", "v_and_b32 v2, 63, v0", "s_nop 0", f"v_readfirstlane_b32 s{sW}, v1")
    if 'pf' in opt:
        A("s_getpc_b64 s[50:51]", "L_pc:", f"s_sub_u32 s50, s50, (L_pc-{NAME})", "s_subb_u32 s51, s51, 0")
        A(f"s_lshl_b32 s52, s{sI}, 1", f"s_add_u32 s52, s52, s{sW}", "s_lshl_b32 s52, s52, 10", "v_lshlrev_b32 v3, 4, v2", "v_add_u32 v3, s52, v3")
        A(f"s_cmp_lt_u32 s{sW}, 2", "s_cbranch_scc0 L_nopf", f"s_cmp_lt_u32 s52, (L_done-{NAME}-1024)", "s_cbranch_scc0 L_nopf",
          "global_load_dwordx4 v[252:255], v3, s[50:51]", "L_nopf:")
    if 'spin60' in opt: A("s_memrealtime s[90:91]")
    A("s_waitcnt lgkmcnt(0)")
    ST.rt("start"); ST.cyc("cyc0")
    A(f"s_add_u32 s6, s{sWS}, {FL+FL_EPOCH}", f"s_addc_u32 s7, s{sWS+1}, 0", "s_load_dword s3, s[6:7], 0")
    srd(A,SRD_WS,sWS,WS_SIZE)
    srd(A,SRD_A,42,2048*512*2)
    A(f"s_cmp_eq_u32 s{sBR}, 0", "s_cselect_b32 s44, s44, s46", "s_cselect_b32 s45, s45, s47")
    srd(A,SRD_B,44,512*1536*2)
    srd(A,SRD_C,48,1024)
    phase1(A,ST,opt)
    phase2(A,ST,opt)
    phase3(A,ST,opt)
    if 'spin60' in opt:
        A("s_waitcnt vmcnt(0)", "L_spin:", "s_memrealtime s[80:81]", "s_waitcnt lgkmcnt(0)", "s_sub_u32 s80, s80, s90", "s_cmp_lt_u32 s80, 6000", "s_cbranch_scc1 L_spin")
    if ST.on: A("s_waitcnt vmcnt(0)")
    ST.rt("end"); ST.cyc("cyc1")
    ST.flush(120)
    A("L_done:", "s_endpgm")
    kd=f""".section .rodata,"a"
.p2align 6
.amdhsa_kernel {NAME}
  .amdhsa_next_free_vgpr 256
  .amdhsa_next_free_sgpr 102
  .amdhsa_accum_offset 256
  .amdhsa_group_segment_fixed_size 0
  .amdhsa_kernarg_size 80
  .amdhsa_user_sgpr_count 2
  .amdhsa_user_sgpr_kernarg_segment_ptr 1
  .amdhsa_system_sgpr_workgroup_id_x 1
.end_amdhsa_kernel
"""
    return A.text(), kd, ST.names

if __name__=='__main__':
    import sys, hazard
    out=sys.argv[1]; opt=tuple(sys.argv[2:])
    HDR=open('gated_mix__softmax_full_mha__sliding_block__prompt.s.ref').read().split('\n')
    hdr=[l for l in HDR if l.startswith(';') and 'launch' not in l.lower() and 'Override' not in l and 'grid=ceil' not in l]
    t,kd,names=gen(opt)
    s='\n'.join(hdr)+'\n'+"; @launch grid=(256,1,1) block=(512,1,1) lds=163840\n"+'.amdgcn_target "amdgcn-amd-amdhsa--gfx950"\n.text\n'+t+kd
    open(out,'w').write(s)
    print('hazards',len(hazard.check(t)),'bytes',len(s),'stamps',','.join(names))
    sys.path.insert(0,'cdna_kernels')
    import subprocess
    from cdna_launch import with_harness_metadata, address_register_problem
    open('h.s','w').write(with_harness_metadata(s,NAME,10,launch_lists=True))
    r=subprocess.run(['clang','-x','assembler','-target','amdgcn-amd-amdhsa','-mcpu=gfx950','h.s','-o','h.co'],capture_output=True,text=True)
    if r.returncode: print(r.stderr)
    else:
        print('check:',address_register_problem('h.co',NAME))
        d=subprocess.run(['llvm-objdump','-d','--mcpu=gfx950','h.co'],capture_output=True,text=True).stdout
        import re
        ad=[int(m,16) for m in re.findall(r'// ([0-9A-F]{12}):',d)]
        print('code bytes',ad[-1]-ad[0]-768)
```

```python
from asm import Asm, vr, sr, mfma32
import struct
def f2u(x): return struct.unpack('<I',struct.pack('<f',x))[0]
NAME="gated_mix__softmax_full_mha__sliding_block__prompt_kernel"
QF=0; KF=4<<20; VF=8<<20; GOFF=12<<20; OF=16<<20; FL=30<<20; WS_SIZE=31<<20
FL_EPOCH=0; FL_F0=1024; FL_F1=2048; FL_F2=8192
FSTR=16
F1STR=4
STAMP_OFF=32<<20
QSCALE=0.25*1.4426950408889634
NEG=f2u(-2.0**100); LLO=f2u(2.0**-64); LHI=f2u(2.0**64)
SPIN_MAX=1<<20
sNONCE=3; sWS=4
SRD_WS=8; SRD_A=12; SRD_B=16; SRD_C=20
sW=24; sX=25; sI=26; sJ=27; sA=28; sBR=29; sRB=30; sH=31
sMASK=40
sXCC=37; sMODE=39
pWOA=84; pWOB=86; pOUT=88

class Stamps:
    def __init__(s, A, on): s.A=A; s.on=on; s.n=0; s.names=[]
    def rt(s,name):
        if not s.on: return
        s.A("s_memrealtime s[80:81]", "s_waitcnt lgkmcnt(0)", f"s_mov_b32 s{64+s.n}, s80"); s.names.append(name); s.n+=1
    def cyc(s,name):
        if not s.on: return
        s.A("s_memtime s[80:81]", "s_waitcnt lgkmcnt(0)", f"s_mov_b32 s{64+s.n}, s80"); s.names.append(name); s.n+=1
    def flush(s, vtmp):
        if not s.on: return
        A=s.A
        A(f"s_mov_b32 s92, s{sWS}", f"s_mov_b32 s93, s{sWS+1}", "s_mov_b32 s94, 0x10000000", "s_mov_b32 s95, 0x00020000")
        A(f"s_lshl_b32 s80, s2, 3", f"s_add_u32 s80, s80, s{sW}", "s_lshl_b32 s80, s80, 6", f"s_add_u32 s80, s80, {STAMP_OFF}")
        for i in range(s.n):
            A(f"v_mov_b32 v{vtmp}, s{64+i}", f"v_mov_b32 v{vtmp+1}, {4*i}", f"buffer_store_dword v{vtmp}, v{vtmp+1}, s[92:95], s80 offen")

def srd(A, s, base, size):
    A(f"s_mov_b32 s{s}, s{base}", f"s_mov_b32 s{s+1}, s{base+1}", f"s_mov_b32 s{s+2}, {size}", f"s_mov_b32 s{s+3}, 0x00020000")

def poll(A, tag, flag_off_sgpr, vaddr, vtmp, stride=FSTR):
    A(f"s_cmp_lg_u32 s{sW}, 0", f"s_cbranch_scc1 L_{tag}_skip")
    A(f"v_and_b32 v{vaddr}, 31, v0", f"v_mul_u32_u24 v{vaddr}, {stride}, v{vaddr}", f"s_mov_b32 s42, {SPIN_MAX}")
    A(f"L_{tag}_loop:")
    A(f"buffer_load_dword v{vtmp}, v{vaddr}, s[{SRD_WS}:{SRD_WS+3}], s{flag_off_sgpr} offen sc1")
    A("s_waitcnt vmcnt(0)")
    A(f"v_cmp_ne_u32 vcc, s{sNONCE}, v{vtmp}", "s_nop 1", "s_cmp_eq_u64 vcc, 0", f"s_cbranch_scc1 L_{tag}_skip")
    A("s_sub_u32 s42, s42, 1", "s_cmp_eq_u32 s42, 0", f"s_cbranch_scc1 L_{tag}_skip", "s_sleep 1", f"s_branch L_{tag}_loop")
    A(f"L_{tag}_skip:")

def setflag(A, tag, off_sgpr, vt, sc=" sc1"):
    A(f"s_cmp_lg_u32 s{sW}, 0", f"s_cbranch_scc1 L_{tag}_nf")
    A(f"v_mov_b32 v{vt}, s{sNONCE}", f"v_mov_b32 v{vt+1}, 0", "s_mov_b64 exec, 1",
      f"buffer_store_dword v{vt}, v{vt+1}, s[{SRD_WS}:{SRD_WS+3}], s{off_sgpr} offen{sc}", "s_mov_b64 exec, -1")
    A(f"L_{tag}_nf:")

def phase1(A, ST, opt):
    lane=2; vX=3; vX2=27; vW=4; t0=5; t1=6; t2=7; hh_t=8
    SC1=" sc1"
    W_=f"s[{SRD_WS}:{SRD_WS+3}]"
    GX=112; GW=116; GA=120
    A(f"v_lshlrev_b32 v24, 4, v{lane}", "s_lshl_b32 s42, s2, 3", f"s_add_u32 s42, s42, s{sW}", "s_lshl_b32 s42, s42, 10",
      f"buffer_load_dwordx4 {vr(GX,4)}, v24, s[{SRD_A}:{SRD_A+3}], s42 offen", f"buffer_load_dwordx4 {vr(GW,4)}, v24, s[{SRD_C}:{SRD_C+3}], 0 offen")
    A(f"v_lshrrev_b32 v{t0}, 3, v{lane}", f"s_lshl_b32 s42, s{sW}, 3", f"v_add_u32 v{t0}, s42, v{t0}",
      f"v_lshrrev_b32 v{t1}, 1, v{t0}", f"v_and_b32 v{t1}, 7, v{t1}", f"v_and_b32 v{t2}, 7, v{lane}", f"v_xor_b32 v{t1}, v{t1}, v{t2}",
      f"v_lshlrev_b32 v{t1}, 4, v{t1}", f"s_lshl_b32 s43, s{sRB}, 7", f"v_add_u32 v{vX}, s43, v{t0}", f"v_lshlrev_b32 v{vX}, 10, v{vX}",
      f"v_add_u32 v{vX}, v{vX}, v{t1}", f"v_add_u32 v{vX2}, 0x10000, v{vX}")
    A(f"v_bfe_u32 v{t1}, v{lane}, 4, 1", f"v_lshlrev_b32 v{t1}, 2, v{t1}", f"v_xor_b32 v{t1}, v{t1}, v{t2}", f"v_lshlrev_b32 v{t1}, 4, v{t1}",
      f"v_mul_u32_u24 v{vW}, 3072, v{t0}", f"v_add_u32 v{vW}, v{vW}, v{t1}", f"s_lshl_b32 s45, s{sX}, 7", f"v_add_u32 v{vW}, s45, v{vW}")
    STG=40960
    def dma_groups():
        L=[]
        xf=" nt" if 'xnt' in opt else ""; wf=" nt" if 'wnt' in opt else ""
        L.append([f"s_mov_b32 m0, s46", "NOP", f"buffer_load_dwordx4 v{vX}, s[{SRD_A}:{SRD_A+3}], s47 offen{xf} lds"])
        L.append([f"s_add_u32 m0, s46, 8192", "NOP", f"buffer_load_dwordx4 v{vX2}, s[{SRD_A}:{SRD_A+3}], s47 offen{xf} lds"])
        for seg in range(3):
            L.append([f"s_add_u32 m0, s46, {16384+seg*8192-seg*1024}", "NOP", f"buffer_load_dwordx4 v{vW}, s[{SRD_B}:{SRD_B+3}], s48 offen offset:{seg*1024}{wf} lds"])
        return L
    def emit(g): A([("s_nop 0" if x=="NOP" else x) for x in g])
    A(f"s_lshl_b32 s46, s{sW}, 10", "s_mov_b32 s47, 0", "s_mov_b32 s48, 0")
    for g in dma_groups(): emit(g)
    A(f"s_add_u32 s46, s46, {STG}", "s_add_u32 s47, s47, 128", f"s_add_u32 s48, s48, {64*3072}")
    for g in dma_groups(): emit(g)
    NPF=0
    if 'pfw' in opt:
        NPF=2
        PF=208
        A(f"s_lshl_b32 s42, s{sJ}, 4", f"s_lshl_b32 s44, s{sX}, 1", "s_add_u32 s42, s42, s44", f"s_and_b32 s44, s{sA}, 1", "s_add_u32 s42, s42, s44",
          "s_mul_i32 s42, s42, 9216", f"s_lshl_b32 s43, s{sW}, 10", "s_add_u32 s42, s42, s43", f"s_add_u32 s42, s42, {128*3072}",
          f"buffer_load_dwordx4 {vr(PF,4)}, v24, s[{SRD_B}:{SRD_B+3}], s42 offen")
        A("s_add_u32 s42, s42, 8192", f"s_cmp_eq_u32 s{sW}, 0", "s_cselect_b32 s42, s42, 0x7ffffff0",
          f"buffer_load_dwordx4 {vr(PF+4,4)}, v24, s[{SRD_B}:{SRD_B+3}], s42 offen")
    A(f"s_and_b32 s34, s{sW}, 3", f"s_lshr_b32 s35, s{sW}, 2")
    PT=200; vF0=206; F0V=204
    PTF="sc1"
    if 'ptnt' in opt: PTF="nt"
    if 'ptntsc1' in opt: PTF="sc1 nt"

    A("s_mov_b32 s57, 0x7ffffff0", f"buffer_load_dwordx4 {vr(PT,4)}, v24, {W_}, s57 offen sc1")
    A(f"s_lshl_b32 s42, s{sX}, 2", "s_lshl_b32 s43, s35, 1", "s_add_u32 s42, s42, s43", f"s_lshl_b32 s43, s{sBR}, 5", "s_add_u32 s42, s42, s43",
      "s_lshl_b32 s42, s42, 16", f"s_lshl_b32 s43, s{sRB}, 2", "s_add_u32 s43, s43, s34", "s_lshl_b32 s43, s43, 10", "s_add_u32 s56, s42, s43")
    A(f"v_and_b32 v{vF0}, 31, v{lane}", f"v_lshlrev_b32 v{vF0}, 2, v{vF0}", f"v_lshrrev_b32 v{t0}, 5, v{lane}", f"v_lshl_add_u32 v{vF0}, v{t0}, 10, v{vF0}",
      f"s_lshl_b32 s58, s{sX}, 7", f"s_add_u32 s58, s58, {FL+FL_F0}", f"s_getreg_b32 s{sXCC}, hwreg(HW_REG_XCC_ID, 0, 4)")
    aX=[10,11,12,13]; aW=18; r=20
    A(f"v_lshrrev_b32 v{hh_t}, 5, v{lane}", f"v_and_b32 v{r}, 31, v{lane}", f"v_lshrrev_b32 v{t0}, 1, v{r}", f"v_and_b32 v{t0}, 7, v{t0}", "s_lshl_b32 s42, s34, 5",
      f"v_add_u32 v{t1}, s42, v{r}", f"v_lshlrev_b32 v{t1}, 7, v{t1}")
    for s_ in range(4):
        A(f"v_or_b32 v{t2}, {2*s_}, v{hh_t}", f"v_xor_b32 v{t2}, v{t2}, v{t0}", f"v_lshl_add_u32 v{aX[s_]}, v{t2}, 4, v{t1}")
    A(f"v_bfe_u32 v{t0}, v{lane}, 2, 2", f"v_lshl_add_u32 v{t1}, v{hh_t}, 3, v{t0}", f"v_lshlrev_b32 v{t1}, 7, v{t1}",
      f"v_bfe_u32 v{t2}, v{lane}, 4, 1", f"v_lshlrev_b32 v{t2}, 1, v{t2}", f"v_bfe_u32 v21, v{lane}, 1, 1", f"v_add_u32 v{t2}, v{t2}, v21",
      "s_lshl_b32 s42, s35, 2", f"v_add_u32 v{t2}, s42, v{t2}", f"v_bfe_u32 v21, v{lane}, 3, 1", "v_lshlrev_b32 v21, 2, v21",
      f"v_xor_b32 v{t2}, v{t2}, v21", f"v_lshl_add_u32 v{t1}, v{t2}, 4, v{t1}",
      f"v_and_b32 v21, 1, v{lane}", f"v_lshl_add_u32 v{t1}, v21, 3, v{t1}", f"v_add_u32 v{aW}, 16384, v{t1}")
    TQ=32; TK=48; TV=64
    XF=[80,84]; WF=[[88,92,96],[100,104,108]]
    for i in range(48): A(f"v_mov_b32 v{TQ+i}, 0")
    def reads(s_):
        b=s_%2
        if 'p1noread' in opt: return []
        L=[f"ds_read_b128 {vr(XF[b],4)}, v{aX[s_]}"]
        for seg in range(3):
            for rr in range(2):
                L.append(f"ds_read_b64_tr_b16 {vr(WF[b][seg]+2*rr,2)}, v{aW} offset:{seg*8192+(16*s_+4*rr)*128}")
        return L
    A("s_mov_b32 s49, 0", "s_mov_b32 s36, 0", f"s_mov_b32 s53, {STG}")
    A(f"s_waitcnt vmcnt({6+NPF})", "s_barrier")
    A("s_waitcnt lgkmcnt(0)", f"s_mul_i32 s{sNONCE}, s3, 0x9e3779b1", f"s_add_u32 s{sNONCE}, s{sNONCE}, 0x7f4a7c15")
    A(f"s_cmp_lg_u32 s{sW}, 0", "s_cbranch_scc1 L_f0_nf", f"s_add_u32 s42, s{sNONCE}, s{sXCC}", f"s_lshl_b32 s43, s{sI}, 2", "s_add_u32 s43, s43, s58",
      "v_mov_b32 v5, s42", "v_mov_b32 v6, 0", "s_mov_b64 exec, 1", f"buffer_store_dword v5, v6, {W_}, s43 offen sc1", "s_mov_b64 exec, -1", "L_f0_nf:")
    ST.rt("p1_data")
    A(reads(0))
    A(".p2align 3", "P1_loop:")
    A("s_add_u32 s50, s49, 2", "s_and_b32 s51, s50, 3", f"s_mul_i32 s51, s51, {STG}", f"s_lshl_b32 s46, s{sW}, 10", "s_add_u32 s46, s46, s51",
      "s_lshl_b32 s47, s50, 7", f"s_mul_i32 s48, s50, {64*3072}", "s_cmp_lt_u32 s50, 8",
      f"s_cselect_b32 s{SRD_A+2}, {2048*512*2}, 0", f"s_cselect_b32 s{SRD_B+2}, {512*1536*2}, 0")
    G=dma_groups()
    place={0:[G[0],G[1]],1:[G[2],G[3]],2:[G[4]],3:[]}
    for s_ in range(4):
        b=s_%2
        if s_<3:
            A(reads(s_+1), "s_waitcnt lgkmcnt(7)")
        else:
            A("s_add_u32 s36, s36, 1", "s_cmp_eq_u32 s36, 4", f"s_cselect_b32 s52, {(-3*STG)&0xffffffff:#x}, s53", "s_cselect_b32 s36, 0, s36")
            A("s_waitcnt lgkmcnt(0)")
            for k in range(4): A(f"v_add_u32 v{aX[k]}, s52, v{aX[k]}")
            A(f"v_add_u32 v{aW}, s52, v{aW}")
            A("s_waitcnt vmcnt(7)" if 'p1nodma' not in opt else "s_nop 0")
            if 'p1nobar' not in opt: A("s_barrier")
            if 'p1it' in opt:
                A("s_memtime s[80:81]", "s_waitcnt lgkmcnt(0)")
                for k in range(7): A(f"s_mov_b32 s{64+8+k}, s{64+9+k}")
                A(f"s_mov_b32 s{64+15}, s80")
            A(reads(0))
        mf=[mfma32(TQ, WF[b][0], XF[b], TQ), mfma32(TK, WF[b][1], XF[b], TK), mfma32(TV, XF[b], WF[b][2], TV)]
        if 'p1nomfma' in opt: mf=["s_nop 0"]*3
        mine=place[s_]
        if 'p1nodma' in opt: mine=[]
        for k in range(3):
            A(mf[k])
            if k<len(mine): emit(mine[k])
            if s_==2 and k==1:
                A("s_cmp_eq_u32 s49, 6", "s_cbranch_scc1 P1_ptflag",
                  "s_lshr_b32 s54, s49, 1", "s_lshl_b32 s54, s54, 22", "s_and_b32 s55, s49, 1", "s_lshl_b32 s55, s55, 16", "s_add_u32 s54, s54, s55", "s_add_u32 s54, s54, s56",
                  "s_cmp_lt_u32 s49, 6", "s_cselect_b32 s54, s54, s57", f"buffer_load_dwordx4 {vr(PT,4)}, v24, {W_}, s54 offen {PTF}", "P1_ptback:")
    A("s_add_u32 s49, s49, 1", "s_cmp_lt_u32 s49, 8", "s_cbranch_scc1 P1_loop")
    ST.rt("p1_loop")
    A("s_branch P1_after")
    A("P1_ptflag:", f"buffer_load_dword v{F0V}, v{vF0}, {W_}, s58 offen sc1", "s_branch P1_ptback")
    A("P1_after:")
    A("s_waitcnt vmcnt(6)", f"s_mov_b32 s42, {SPIN_MAX}")
    A("P1_chk:", f"v_subrev_u32 v{F0V+1}, s{sNONCE}, v{F0V}", f"v_cmp_gt_u32 vcc, 8, v{F0V+1}", "s_nop 1", "s_cmp_eq_u32 vcc_lo, -1", "s_cbranch_scc1 P1_chk_ok")
    A("s_sub_u32 s42, s42, 1", "s_cmp_eq_u32 s42, 0", "s_cbranch_scc1 P1_chk_ok", "s_sleep 1",
      f"buffer_load_dword v{F0V}, v{vF0}, {W_}, s58 offen sc1", "s_waitcnt vmcnt(0)", "s_branch P1_chk")
    A("P1_chk_ok:", f"v_cmp_eq_u32 vcc, s{sXCC}, v{F0V+1}", "s_nop 1", "s_cmp_eq_u32 vcc_lo, -1", f"s_cselect_b32 s{sMODE}, 1, 0")
    if 'forcesafe' in opt: A(f"s_mov_b32 s{sMODE}, 0")
    if 'p1it' in opt:
        ST.n=16; ST.flush(122); A("s_waitcnt vmcnt(0)", "s_endpgm")
    A(f"v_bfe_u32 v25, v{lane}, 4, 1", "v_lshlrev_b32 v25, 16, v25", f"v_lshl_add_u32 v25, v{hh_t}, 8, v25", f"v_and_b32 v26, 15, v{lane}", "v_lshl_add_u32 v25, v26, 4, v25")
    A(f"s_mov_b32 s44, {hex(f2u(QSCALE))}", "s_waitcnt lgkmcnt(0)")
    PK=80
    for i in range(8): A(f"v_cvt_pk_bf16_f32 v{PK+8+i}, v{TK+2*i}, v{TK+2*i+1}")
    for i in range(8): A(f"v_cvt_pk_bf16_f32 v{PK+16+i}, v{TV+2*i}, v{TV+2*i+1}")
    for i in range(16): A(f"v_mul_f32 v{TQ+i}, s44, v{TQ+i}")
    for i in range(8): A(f"v_cvt_pk_bf16_f32 v{PK+i}, v{TQ+2*i}, v{TQ+2*i+1}")
    A(f"s_add_u32 s45, s56, {KF}", f"s_add_u32 s46, s56, {KF+65536}", f"s_add_u32 s47, s56, {VF}", f"s_add_u32 s48, s56, {QF+65536}")
    A(f"s_cmp_eq_u32 s{sMODE}, 0", "s_cbranch_scc1 P1_st_safe")
    for sc,lab in (("",None),(" sc1","P1_st_safe")):
        if lab: A("s_branch P1_st_done", f"{lab}:")
        A(f"buffer_store_dwordx4 {vr(PK+8,4)}, v24, {W_}, s45 offen{sc}", f"buffer_store_dwordx4 {vr(PK+12,4)}, v24, {W_}, s46 offen{sc}")
        A(f"buffer_store_dwordx4 {vr(PK+16,4)}, v25, {W_}, s47 offen{sc}", f"buffer_store_dwordx4 {vr(PK+20,4)}, v25, {W_}, s47 offen offset:512{sc}")
        A(f"buffer_store_dwordx4 {vr(PK,4)}, v24, {W_}, s56 offen{sc}", f"buffer_store_dwordx4 {vr(PK+4,4)}, v24, {W_}, s48 offen{sc}")
    A("P1_st_done:")
    if 'fine1' in opt: ST.rt("st_issued")
    A(f"v_mov_b32 v{GA}, 0")
    for i in range(4): A(f"v_dot2_f32_bf16 v{GA}, v{GX+i}, v{GW+i}, v{GA}")
    A("s_nop 2")
    for ror in (8,4,2,1):
        A(f"v_add_f32_dpp v{GA}, v{GA}, v{GA} row_ror:{ror} row_mask:0xf bank_mask:0xf", "s_nop 1")
    A(f"v_mov_b32 v{GA+1}, v{GA}", "s_nop 1", f"v_permlane16_swap_b32 v{GA+1}, v{GA}", "s_nop 1", f"v_add_f32 v{GA}, v{GA}, v{GA+1}",
      f"v_mov_b32 v{GA+1}, v{GA}", "s_nop 1", f"v_permlane32_swap_b32 v{GA+1}, v{GA}", "s_nop 1", f"v_add_f32 v{GA}, v{GA}, v{GA+1}")
    A(f"v_mul_f32 v{GA}, {hex(f2u(-1.4426950408889634))}, v{GA}", f"v_exp_f32 v{GA}, v{GA}", "s_nop 0", f"v_add_f32 v{GA}, 1.0, v{GA}", f"v_rcp_f32 v{GA}, v{GA}",
      "s_lshl_b32 s42, s2, 3", f"s_add_u32 s42, s42, s{sW}", "s_lshl_b32 s42, s42, 2", f"s_add_u32 s42, s42, {GOFF}", f"v_mov_b32 v{GA+1}, 0", "s_mov_b64 exec, 1",
      f"buffer_store_dword v{GA}, v{GA+1}, {W_}, s42 offen sc1", "s_mov_b64 exec, -1")

def sync1(A, ST, opt):
    if 'fine1' in opt:
        ST.rt("pre_wait"); A("s_waitcnt vmcnt(0)"); ST.rt("vm0"); A("s_barrier"); ST.rt("p1_stored")
        ST.flush(122); A("s_waitcnt vmcnt(0)", "s_endpgm"); ST.on=False
    A("s_waitcnt vmcnt(0)", "s_barrier")
    ST.rt("p1_stored")
    A(f"s_lshl_b32 s42, s{sX}, 7", f"s_lshl_b32 s43, s{sI}, 2", "s_add_u32 s43, s43, s42", f"s_add_u32 s43, s43, {FL+FL_F1}", f"s_add_u32 s38, s42, {FL+FL_F1}")
    A(f"s_cmp_eq_u32 s{sMODE}, 0", "s_cbranch_scc1 L_f1_safe")
    setflag(A,"f1f",43,2,"")
    A("s_branch L_f1_done", "L_f1_safe:")
    setflag(A,"f1s",43,2," sc1")
    A("L_f1_done:")
    poll(A,"p1",38,2,3,stride=F1STR)
    A("s_barrier")
    ST.rt("p1_flags")

LANE=1
QA0=4; QA1=8; QB=12
OA0=16; OA1=32
S0=48; S1=64
P=80
KB_=88; VB_=96
MF=112; MD=128; CB=144
vKa=160; vVa=161
vG=162; vL16=163; vT=164; vT2=165; vT3=166; vNEGM=167; vM=168; vKs=169; vVs=170; vGB=171; vX0=172
VL=vX0+11
LDS_KA=0; LDS_VA=65536; LDS_KB=131072; LDS_VB=147456
def exps(S): return [f"v_exp_f32 v{S+i}, v{S+i}" for i in range(16)]
def cvts(S): return [f"v_cvt_pk_bf16_f32 v{P+i}, v{S+2*i}, v{S+2*i+1}" for i in range(8)]
MK=[f"s_mov_b64 exec, s[{sMASK}:{sMASK+1}]"]; UM=["s_mov_b64 exec, -1"]
def unit(A, Sc, QK, PV1, ld, wK, wV, PV0):
    e=exps(Sc); c=cvts(Sc)
    A(wK, QK)
    A(e[0:4], c[0], e[4:6], c[1])
    A(PV1, ld)
    A(e[6:8], c[2], e[8:10], c[3], e[10:12])
    A(wV, PV0)
    A(e[12:13], c[4], e[13:15], c[5], e[15:16], c[6], c[7])
def slow_pass(A, tag, Q, O, pass1, far, diag, n):
    A(f"v_mov_b32 v{vX0}, v{vKs}", f"v_mov_b32 v{vX0+1}, v{vVs}", "s_mov_b32 s60, 0")
    if pass1: A(f"v_mov_b32 v{vM}, {hex(NEG)}", f"v_mov_b32 v{vNEGM}, 0")
    else:
        for i in range(16): A(f"v_mov_b32 v{O+i}, 0")
    A(f"L_{tag}_loop:")
    A(f"ds_read_b128 {vr(KB_,4)}, v{vX0}")
    if not pass1: A(MK, f"ds_read_b128 {vr(VB_,4)}, v{vX0+1}", f"ds_read_b128 {vr(VB_+4,4)}, v{vX0+1} offset:512", UM)
    A("s_cmp_eq_u32 s60, 0", f"s_cselect_b32 s61, s{far}, 0", "s_cmp_lg_u32 s61, 0", f"s_cbranch_scc1 L_{tag}_far")
    A(f"s_add_u32 s61, s60, 1", f"s_cmp_eq_u32 s61, s{n}", f"s_cselect_b32 s61, s{diag}, 0", "s_cmp_lg_u32 s61, 0", f"s_cbranch_scc1 L_{tag}_diag")
    for i in range(16): A(f"v_mov_b32 v{CB+i}, v{vNEGM}")
    A(f"s_branch L_{tag}_go")
    A(f"L_{tag}_far:")
    for i in range(16): A(f"v_add_f32 v{CB+i}, v{MF+i}, v{vNEGM}")
    A(f"s_branch L_{tag}_go")
    A(f"L_{tag}_diag:")
    for i in range(16): A(f"v_add_f32 v{CB+i}, v{MD+i}, v{vNEGM}")
    A(f"L_{tag}_go:")
    A("s_waitcnt lgkmcnt(0)", "s_nop 0")
    A(mfma32(S0, KB_, Q, CB))
    A("s_nop 7","s_nop 3")
    if pass1:
        for i in range(16): A(f"v_max_f32 v{vM}, v{vM}, v{S0+i}")
    else:
        A(exps(S0), "s_nop 0", cvts(S0), "s_nop 1")
        A(mfma32(O, VB_, P, O), mfma32(O, VB_+4, P+4, O))
    A(f"v_add_u32 v{vX0}, 1024, v{vX0}", f"v_add_u32 v{vX0+1}, 1024, v{vX0+1}")
    A("s_add_u32 s60, s60, 1", f"s_cmp_lt_u32 s60, s{n}", f"s_cbranch_scc1 L_{tag}_loop")
    if pass1:
        A(f"v_mov_b32 v{vT}, v{vM}", "s_nop 1", f"v_permlane32_swap_b32 v{vT}, v{vM}", "s_nop 1",
          f"v_max_f32 v{vM}, v{vM}, v{vT}", f"v_sub_f32 v{vNEGM}, 0, v{vM}")
    else: A("s_nop 7","s_nop 3")
def bcast_l(A,O):
    A(f"v_mov_b32 v{vT}, v{O+8}", "s_nop 1", f"v_permlane32_swap_b32 v{vT}, v{O+8}", "s_nop 1", f"v_add_f32 v{O+8}, v{O+8}, v{vT}")
def check_range(A, O, okl):
    bcast_l(A,O)
    A(f"v_mov_b32 v{vT}, v{O+8}")
    for i in range(8): A(f"v_fma_f32 v{vT}, v{O+i}, 0, v{vT}")
    A(f"s_mov_b32 s44, {hex(LLO)}", f"s_mov_b32 s45, {hex(LHI)}")
    A(f"v_cmp_le_f32 s[46:47], s44, v{vT}", f"v_cmp_ge_f32 s[48:49], s45, v{vT}", "s_nop 1",
      "s_and_b64 s[46:47], s[46:47], s[48:49]", "s_cmp_eq_u64 s[46:47], -1", f"s_cbranch_scc1 {okl}")
def finalize(A, O, soff):
    A(f"v_rcp_f32 v{vT}, v{O+8}", "s_nop 0")
    for i in range(8): A(f"v_mul_f32 v{O+i}, v{O+i}, v{vT}")
    for i in range(4): A(f"v_cvt_pk_bf16_f32 v{vX0+4+i}, v{O+2*i}, v{O+2*i+1}")
    A(f"buffer_store_dwordx4 {vr(vX0+4,4)}, v{vL16}, s[{SRD_WS}:{SRD_WS+3}], s{soff} offen sc1")

def phase2(A, ST, opt):
    W_=f"s[{SRD_WS}:{SRD_WS+3}]"
    SC="" if 'plainld' in opt else " sc1"
    A(f"v_and_b32 v{LANE}, 63, v0")
    A(f"s_and_b32 s15, s{sW}, 3", f"s_lshr_b32 s16, s{sW}, 2")
    A("s_lshl_b32 s17, s15, 1", "s_add_u32 s17, s17, s16",
      f"s_lshl_b32 s18, s{sJ}, 3", "s_add_u32 s19, s18, s17",
      f"s_lshl_b32 s20, s{sH}, 16", f"s_add_u32 s21, s20, {32*65536}")
    A(f"v_lshlrev_b32 v{vL16}, 4, v{LANE}", f"v_and_b32 v{vT}, 31, v{LANE}")
    A(f"s_mov_b32 s{sMASK}, 0x0000ffff", f"s_mov_b32 s{sMASK+1}, 0x0000ffff")
    A(f"v_cmp_eq_u32 vcc, 16, v{vT}", f"v_mov_b32 v{vX0}, 0x3f803f80", "s_nop 0", f"v_cndmask_b32 v{vX0+1}, 0, v{vX0}, vcc")
    for i in range(16): A(f"v_mov_b32 v{VB_+i}, v{vX0+1}")
    hh=vT3
    A(f"v_lshrrev_b32 v{hh}, 5, v{LANE}", f"v_lshlrev_b32 v{vT2}, 2, v{hh}", f"v_sub_u32 v{vT2}, v{vT}, v{vT2}")
    A(f"v_mov_b32 v{vX0}, {hex(NEG)}")
    for g in range(4):
        for k in range(4): A(f"v_cmp_gt_i32 s[{44+2*k}:{45+2*k}], {8*g+k}, v{vT2}")
        A("s_nop 0")
        for k in range(4):
            i=4*g+k
            A(f"v_cndmask_b32 v{MF+i}, v{vX0}, 0, s[{44+2*k}:{45+2*k}]", f"v_cndmask_b32 v{MD+i}, 0, v{vX0}, s[{44+2*k}:{45+2*k}]")
    A(f"v_and_b32 v{vT}, 15, v{LANE}", f"v_lshlrev_b32 v{vT}, 4, v{vT}", f"v_lshl_add_u32 v{VL}, v{hh}, 8, v{vT}")
    A("s_lshl_b32 s43, s17, 10", f"s_add_u32 s44, s43, {LDS_KB}", f"v_add_u32 v{vKa}, s44, v{vL16}",
      f"s_add_u32 s44, s43, {LDS_VB}", f"v_add_u32 v{vVa}, s44, v{VL}")
    A("s_lshl_b32 s32, s19, 16", f"s_lshl_b32 s33, s{sH}, 10", "s_add_u32 s32, s32, s33", f"s_add_u32 s32, s32, {OF}", "s_add_u32 s33, s32, 32768")
    A("s_lshl_b32 s22, s19, 10", "s_add_u32 s22, s22, s21", f"s_add_u32 s22, s22, {QF}")
    A("s_lshl_b32 s23, s15, 1", "s_add_u32 s23, s23, s18", "s_lshl_b32 s23, s23, 10", "s_add_u32 s23, s23, s20", f"s_add_u32 s23, s23, {QF}")
    for ii in range(2):
        A(f"s_add_u32 s43, s{sW}, {8*ii}", "s_add_u32 s44, s18, s43", "s_sub_u32 s44, s44, 8", "s_max_i32 s44, s44, 0",
          "s_lshl_b32 s44, s44, 10", "s_add_u32 s44, s44, s21", f"s_add_u32 s{54+ii}, s44, {KF}")
    A(f"s_lshl_b32 s56, s{sW}, 10", "s_add_u32 s57, s56, s20", f"s_add_u32 s57, s57, {KF}")
    OBz=OA0
    for i in range(16): A(f"v_mov_b32 v{OBz+i}, 0")
    for i in range(4): A(f"v_mov_b32 v{P+4+i}, 0")
    sync1(A,ST,opt)
    A(f"buffer_load_dwordx4 {vr(QB,4)}, v{vL16}, {W_}, s22 offen{SC}")
    if 'fine2' in opt:
        A("s_waitcnt vmcnt(0)"); ST.rt("qb_landed")
    for ii in range(2):
        A(f"s_add_u32 m0, s56, {LDS_KB+8192*ii}", f"s_add_u32 s45, s{54+ii}, {VF-KF}", f"buffer_load_dwordx4 v{vL16}, {W_}, s{54+ii} offen{SC} lds")
        A(f"s_add_u32 m0, s56, {LDS_VB+8192*ii}", "s_nop 0", f"buffer_load_dwordx4 v{vL16}, {W_}, s45 offen{SC} lds")
    A(f"buffer_load_dwordx4 {vr(QA0,4)}, v{vL16}, {W_}, s23 offen{SC}", f"buffer_load_dwordx4 {vr(QA1,4)}, v{vL16}, {W_}, s23 offen offset:1024{SC}")
    def adma(m):
        return [f"s_add_u32 m0, s56, {LDS_KA+m*8192}", f"s_add_u32 s45, s57, {m*8192}", f"buffer_load_dwordx4 v{vL16}, {W_}, s45 offen{SC} lds",
                f"s_add_u32 m0, s56, {LDS_VA+m*8192}", f"s_add_u32 s45, s57, {VF-KF+m*8192}", f"buffer_load_dwordx4 v{vL16}, {W_}, s45 offen{SC} lds"]
    global ADMA; ADMA=adma
    A(f"s_cmp_lg_u32 s{sJ}, 0", "s_cbranch_scc1 A_dma_skip")
    for m in range(8): A(adma(m))
    A("s_waitcnt vmcnt(18)", "s_branch A_dma_join")
    A("A_dma_skip:", "s_waitcnt vmcnt(2)", "A_dma_join:")
    if 'fine2' in opt:
        ST.rt("own_b"); A("s_barrier"); ST.rt("b_data"); ST.flush(2); A("s_waitcnt vmcnt(0)", "s_endpgm"); ST.on=False
    OB=OA0
    A("s_barrier")
    ST.rt("b_data")
    def ldK(t,base): return [f"ds_read_b128 {vr(KB_+4*(t%2),4)}, v{base} offset:{t*1024}"]
    def ldV(t,base): return MK+[f"ds_read_b128 {vr(VB_+8*(t%2),4)}, v{base} offset:{t*1024}", f"ds_read_b128 {vr(VB_+8*(t%2)+4,4)}, v{base} offset:{t*1024+512}"]+UM
    NB=9
    A("s_mov_b32 s51, 1", f"s_cmp_eq_u32 s{sJ}, 0", "s_cselect_b32 s50, 0, 1", "s_sub_u32 s53, 8, s17", "s_cselect_b32 s53, s53, 0")
    A.L.pop()
    A(f"s_cmp_eq_u32 s{sJ}, 0", "s_cselect_b32 s53, s53, 0")
    A("s_sub_u32 s52, 9, s53")
    A("s_lshl_b32 s43, s53, 10", f"v_add_u32 v{vKs}, s43, v{vKa}", f"v_add_u32 v{vVs}, s43, v{vVa}")
    for s0 in range(NB):
        A(f"s_cmp_eq_u32 s53, {s0}", f"s_cbranch_scc1 B_pro{s0}")
    for s0 in range(NB-1,-1,-1):
        A(f"B_pro{s0}:")
        Sc=S0 if s0%2==0 else S1
        C = MF if s0==0 else (MD if s0==NB-1 else "0")
        A(ldK(s0,vKa), "s_waitcnt lgkmcnt(0)", mfma32(Sc, KB_+4*(s0%2), QB, C))
        if s0==0:
            A(ldV(0,vVa), ldK(1,vKa))
        else:
            if s0+1<NB: A(ldK(s0+1,vKa))
            A(ldV(s0,vVa))
        A("s_nop 7","s_nop 3")
        if s0!=0: A(f"s_branch B_step{s0}")
    for t in range(NB):
        A(f"B_step{t}:")
        Sc=S0 if t%2==0 else S1; Sn=S1 if t%2==0 else S0
        if t+1<NB:
            QK=[mfma32(Sn, KB_+4*((t+1)%2), QB, MD if t+1==NB-1 else "0")]
            wK=["s_waitcnt lgkmcnt(0)"] if t==0 else ["s_waitcnt lgkmcnt(2)"]
        else: QK=[]; wK=[]
        PV1=[mfma32(OB, VB_+8*((t-1)%2)+4, P+4, OB)] if t>0 else []
        ld=[]
        if t+2<NB: ld+=ldK(t+2,vKa)
        if t+1<NB: ld+=ldV(t+1,vVa)
        nld=(1 if t+2<NB else 0)+(2 if t+1<NB else 0)
        wV=[f"s_waitcnt lgkmcnt({nld})"]
        PV0=[mfma32(OB, VB_+8*(t%2), P, OB)]
        if t<8: ld=ld+ADMA(t)
        unit(A,Sc,QK,PV1,ld,wK,wV,PV0)
    A("s_nop 1", mfma32(OB, VB_+8*((NB-1)%2)+4, P+4, OB))
    A("s_nop 7","s_nop 3")
    check_range(A,OB,"B_ok")
    slow_pass(A,"bf1",QB,OB,True,50,51,52)
    slow_pass(A,"bf2",QB,OB,False,50,51,52)
    bcast_l(A,OB)
    A("B_ok:")
    finalize(A,OB,33)
    ST.rt("b_done")
    A("s_waitcnt vmcnt(1)", "s_barrier")
    ST.rt("a_start")
    if 'wbl2' in opt:
        A(f"s_cmp_lg_u32 s{sI}, 0", "s_cbranch_scc1 L_nowb", f"s_cmp_lg_u32 s{sW}, 0", "s_cbranch_scc1 L_nowb", "buffer_wbl2 sc1", "L_nowb:")
    if 'dup' in opt: A("s_mov_b32 s54, 2", "A_dup:")
    A("s_lshl_b32 s43, s16, 15", f"v_add_u32 v{vKa}, s43, v{vL16}", f"s_add_u32 s44, s43, {LDS_VA}", f"v_add_u32 v{vVa}, s44, v{VL}")
    for i in range(32): A(f"v_mov_b32 v{OA0+i}, 0")
    for i in range(4): A(f"v_mov_b32 v{P+4+i}, 0")
    Qr=[QA0,QA1]; Or=[OA0,OA1]
    A(ldK(0,vKa), ldV(0,vVa), "s_waitcnt lgkmcnt(2)", mfma32(S0, KB_, QA0, "0"))
    A("s_mov_b32 s53, 4", "s_nop 7", "s_nop 2")
    A(".p2align 3", "A_loop:")
    for pr in (3,2,1,0):
        A(f"s_cmp_eq_u32 s53, {pr+1}", f"s_cbranch_scc0 A_lp{pr}", f"s_setprio {pr}", f"A_lp{pr}:")
    NK=8
    units=[(t,qi) for t in range(NK) for qi in range(2)]
    for u,(t,qi) in enumerate(units):
        Sc=S0 if u%2==0 else S1; Sn=S1 if u%2==0 else S0
        tn,qn=(t,1) if qi==0 else (t+1,0)
        tp,qp=(t-1,1) if qi==0 else (t,0)
        QK=[mfma32(Sn, KB_+4*(tn%2), Qr[qn], "0")]
        PV1=[mfma32(Or[qp], VB_+8*(tp%2)+4, P+4, Or[qp])]
        PV0=[mfma32(Or[qi], VB_+8*(t%2), P, Or[qi])]
        ld=[];wK=[];wV=[]
        if qi==0: ld=ldK(t+1,vKa)+ldV(t+1,vVa); wV=["s_waitcnt lgkmcnt(3)"]
        else: wK=["s_waitcnt lgkmcnt(2)"]
        unit(A,Sc,QK,PV1,ld,wK,wV,PV0)
    A(f"v_add_u32 v{vKa}, {NK*1024}, v{vKa}", f"v_add_u32 v{vVa}, {NK*1024}, v{vVa}")
    A("s_sub_u32 s53, s53, 1", "s_cmp_lg_u32 s53, 0", "s_cbranch_scc1 A_loop")
    A(mfma32(OA1, VB_+8*((NK-1)%2)+4, P+4, OA1))
    A("s_waitcnt lgkmcnt(0)", "s_nop 7", "s_nop 3")
    if 'dup' in opt: A("s_sub_u32 s54, s54, 1", "s_cmp_lg_u32 s54, 0", "s_cbranch_scc1 A_dup")
    ST.rt("a_loop")
    A("s_cmp_eq_u32 s16, 0", "s_cbranch_scc1 A_X0")
    for i in range(9): A(f"v_mov_b32 v{vT}, v{OA0+i}", f"v_mov_b32 v{OA0+i}, v{OA1+i}", f"v_mov_b32 v{OA1+i}, v{vT}")
    A("A_X0:")
    A(f"s_mul_i32 s43, s{sW}, 2560", f"s_add_u32 s43, s43, {LDS_KB}", f"v_add_u32 v{vT}, s43, v{vL16}",
      f"v_lshlrev_b32 v{vT2}, 2, v{LANE}", f"v_add_u32 v{vT2}, s43, v{vT2}")
    A(f"ds_write_b128 v{vT}, {vr(OA1,4)}", f"ds_write_b128 v{vT}, {vr(OA1+4,4)} offset:1024", f"ds_write_b32 v{vT2}, v{OA1+8} offset:2048")
    A(f"s_xor_b32 s44, s{sW}, 4", "s_mul_i32 s43, s44, 2560", f"s_add_u32 s43, s43, {LDS_KB}", f"v_add_u32 v{vT}, s43, v{vL16}",
      f"v_lshlrev_b32 v{vT2}, 2, v{LANE}", f"v_add_u32 v{vT2}, s43, v{vT2}")
    A("s_waitcnt lgkmcnt(0)", "s_barrier")
    A(f"ds_read_b128 {vr(S0,4)}, v{vT}", f"ds_read_b128 {vr(S0+4,4)}, v{vT} offset:1024", f"ds_read_b32 v{S0+8}, v{vT2} offset:2048")
    A("s_waitcnt lgkmcnt(0)")
    for i in range(9): A(f"v_add_f32 v{OA0+i}, v{OA0+i}, v{S0+i}")
    check_range(A,OA0,"A_ok")
    A("s_cmp_eq_u32 s16, 0", "s_cbranch_scc1 A_F0")
    for i in range(4): A(f"v_mov_b32 v{QA0+i}, v{QA1+i}")
    A("A_F0:")
    A("s_mov_b32 s50, 0", "s_mov_b32 s51, 0", "s_mov_b32 s52, 64")
    A(f"v_add_u32 v{vKs}, {LDS_KA}, v{vL16}", f"v_add_u32 v{vVs}, {LDS_VA}, v{VL}")
    slow_pass(A,"af1",QA0,OA0,True,50,51,52)
    slow_pass(A,"af2",QA0,OA0,False,50,51,52)
    bcast_l(A,OA0)
    A("A_ok:")
    finalize(A,OA0,32)

def phase3(A, ST, opt):
    W_=f"s[{SRD_WS}:{SRD_WS+3}]"
    lane=LANE
    srd(A,SRD_A,pWOA,512*512*2); srd(A,SRD_B,pWOB,512*512*2); srd(A,SRD_C,pOUT,2048*512*2)
    A(f"s_and_b32 s34, s{sI}, 3", f"s_lshr_b32 s35, s{sI}, 2")
    A("s_barrier")
    vW=4
    A(f"v_lshrrev_b32 v5, 3, v{lane}", "v_lshlrev_b32 v5, 10, v5", f"v_bfe_u32 v6, v{lane}, 4, 1", "v_lshlrev_b32 v6, 2, v6", f"v_and_b32 v7, 7, v{lane}",
      "v_xor_b32 v6, v6, v7", "v_lshlrev_b32 v6, 4, v6", "v_add_u32 v5, v5, v6", "s_lshl_b32 s42, s35, 7", f"v_add_u32 v{vW}, s42, v5")
    A(f"s_and_b32 s43, s{sW}, 3", "s_lshl_b32 s43, s43, 17", f"s_lshl_b32 s44, s{sW}, 14")
    A(f"s_cmp_ge_u32 s{sW}, 4", "s_cbranch_scc1 P3_wB")
    for br,lab in ((0,None),(1,"P3_wB")):
        if lab: A("s_branch P3_wdone", f"{lab}:")
        S_=SRD_A if br==0 else SRD_B
        for ii in range(16):
            A(f"s_add_u32 m0, s44, {ii*1024}", f"s_add_u32 s45, s43, {ii*8192}", f"buffer_load_dwordx4 v{vW}, s[{S_}:{S_+3}], s45 offen lds")
    A("P3_wdone:")
    A("s_waitcnt vmcnt(16)", "s_barrier")
    ST.rt("o_stored")
    A(f"s_mul_i32 s42, s{sJ}, {32*FSTR}", f"s_mul_i32 s43, s{sH}, {FSTR}", "s_add_u32 s43, s43, s42", f"s_add_u32 s43, s43, {FL+FL_F2}")
    setflag(A,"f2",43,5)
    WR=128
    A(f"s_and_b32 s36, s{sW}, 1", f"s_bfe_u32 s37, s{sW}, 0x10001", f"s_lshr_b32 s38, s{sW}, 2")
    A(f"v_lshrrev_b32 v8, 5, v{lane}",
      f"v_bfe_u32 v5, v{lane}, 2, 2", "v_lshl_add_u32 v5, v8, 2, v5", "v_lshlrev_b32 v5, 7, v5",
      f"v_bfe_u32 v6, v{lane}, 4, 1", "v_lshlrev_b32 v6, 1, v6", f"v_bfe_u32 v7, v{lane}, 1, 1", "v_add_u32 v6, v6, v7",
      "s_lshl_b32 s42, s37, 2", "v_add_u32 v6, s42, v6",
      f"v_bfe_u32 v7, v{lane}, 3, 1", "v_lshlrev_b32 v7, 2, v7", "v_xor_b32 v6, v6, v7", "v_lshlrev_b32 v6, 4, v6", "v_add_u32 v5, v5, v6",
      f"v_and_b32 v7, 1, v{lane}", "v_lshlrev_b32 v7, 3, v7", "v_add_u32 v5, v5, v7",
      "s_lshl_b32 s42, s38, 16", "v_add_u32 v10, s42, v5")
    A("s_waitcnt vmcnt(0)", "s_barrier")
    ST.rt("w_landed")
    for s in range(32):
        A(f"ds_read_b64_tr_b16 {vr(WR+4*s,2)}, v10 offset:{(16*s)*128}", f"ds_read_b64_tr_b16 {vr(WR+4*s+2,2)}, v10 offset:{(16*s+8)*128}")
        if s%4==3: A("s_waitcnt lgkmcnt(4)")
    A("s_waitcnt lgkmcnt(0)")
    A(f"s_mul_i32 s42, s{sX}, {32*FSTR}", f"s_add_u32 s39, s42, {FL+FL_F2}")
    poll(A,"p2",39,5,6)
    A("s_barrier")
    ST.rt("p2_flags")
    A("s_cmp_lg_u32 s2, 0", "s_cbranch_scc1 P3_noep", f"s_mov_b32 s43, {FL+FL_EPOCH}")
    setflag(A,"ep",43,5)
    A("P3_noep:")
    A(f"v_lshlrev_b32 v3, 4, v{lane}")
    A(f"s_lshl_b32 s42, s{sX}, 3", "s_lshl_b32 s43, s34, 1", "s_add_u32 s42, s42, s43", "s_lshl_b32 s42, s42, 16", f"s_add_u32 s42, s42, {OF}")
    A("s_lshl_b32 s43, s36, 16", "s_lshl_b32 s44, s37, 15", "s_add_u32 s43, s43, s44", "s_lshl_b32 s44, s38, 12", "s_add_u32 s43, s43, s44")
    A("s_add_u32 s42, s42, s43")
    for qd in range(4):
        for ii in range(4):
            A(f"s_add_u32 m0, s43, {qd*8192+ii*1024}", f"s_add_u32 s45, s42, {qd*8192+ii*1024}", f"buffer_load_dwordx4 v3, {W_}, s45 offen sc1 lds")
    ACC=16; OFr=[32,36,40,44]
    A(f"v_and_b32 v12, 31, v{lane}", f"s_lshl_b32 s44, s{sX}, 8", "s_lshl_b32 s45, s34, 6", "s_add_u32 s44, s44, s45", "s_lshl_b32 s45, s36, 5", "s_add_u32 s44, s44, s45",
      "v_add_u32 v12, s44, v12", "v_lshlrev_b32 v13, 2, v12", f"s_mov_b32 s45, {GOFF}", f"buffer_load_dword v14, v13, {W_}, s45 offen sc1")
    for i in range(16): A(f"v_mov_b32 v{ACC+i}, 0")
    A("s_lshl_b32 s43, s36, 16", "s_lshl_b32 s44, s38, 15", "s_add_u32 s43, s43, s44", "v_add_u32 v11, s43, v3")
    for qd in range(4):
        A(f"s_waitcnt vmcnt({13-4*qd if qd<3 else 1})", "s_barrier")
        for s in range(4): A(f"ds_read_b128 {vr(OFr[s],4)}, v11 offset:{(8*qd+s)*1024}")
        for s in range(8):
            n=8*qd+s
            A(f"s_waitcnt lgkmcnt({3 if s<5 else 7-s})")
            A(mfma32(ACC, WR+4*n, OFr[s%4], ACC))
            if s<4: A(f"ds_read_b128 {vr(OFr[s%4],4)}, v11 offset:{(8*qd+s+4)*1024}")
    ST.rt("p3_mfma")
    A("s_nop 7","s_nop 3","s_barrier")
    A(f"s_lshl_b32 s43, s{sW}, 11", "v_add_u32 v5, s43, v3", f"s_xor_b32 s44, s{sW}, 4", "s_lshl_b32 s44, s44, 11", "v_add_u32 v6, s44, v3")
    A("s_cmp_eq_u32 s38, 0", "s_cbranch_scc1 P3_k0")
    for i in range(8): A(f"v_mov_b32 v7, v{ACC+i}", f"v_mov_b32 v{ACC+i}, v{ACC+8+i}", f"v_mov_b32 v{ACC+8+i}, v7")
    A("P3_k0:")
    A(f"ds_write_b128 v5, {vr(ACC+8,4)}", f"ds_write_b128 v5, {vr(ACC+12,4)} offset:1024", "s_waitcnt lgkmcnt(0)", "s_barrier")
    A(f"ds_read_b128 {vr(32,4)}, v6", f"ds_read_b128 {vr(36,4)}, v6 offset:1024", "s_waitcnt lgkmcnt(0)")
    A("s_waitcnt vmcnt(0)", "s_cmp_eq_u32 s38, 0", "s_cbranch_scc1 P3_g0")
    A("v_sub_f32 v14, 1.0, v14")
    A("P3_g0:")
    for i in range(8): A(f"v_sub_f32 v{ACC+i}, v{ACC+i}, v{32+i}")
    for i in range(8): A(f"v_fma_f32 v{ACC+i}, v14, v{ACC+i}, v{32+i}")
    PK=40
    for i in range(4): A(f"v_cvt_pk_bf16_f32 v{PK+i}, v{ACC+2*i}, v{ACC+2*i+1}")
    A("s_nop 1", f"v_permlane32_swap_b32 v{PK}, v{PK+2}", f"v_permlane32_swap_b32 v{PK+1}, v{PK+3}")
    A("v_lshlrev_b32 v5, 10, v12", "v_lshl_add_u32 v5, v8, 4, v5",
      "s_lshl_b32 s42, s35, 7", "s_lshl_b32 s43, s37, 6", "s_add_u32 s42, s42, s43", "s_lshl_b32 s43, s38, 5", "s_add_u32 s42, s42, s43")
    A(f"buffer_store_dwordx4 {vr(PK,4)}, v5, s[{SRD_C}:{SRD_C+3}], s42 offen")

def gen(opt=()):
    A=Asm(); ST=Stamps(A,'stamps' in opt)
    A(f".globl {NAME}", ".p2align 8", f".type {NAME},@function", f"{NAME}:")
    A("s_cmp_ge_u32 s2, 256", "s_cbranch_scc1 L_done")
    if 'scramble' in opt: A("s_lshr_b32 s3, s2, 3", "s_and_b32 s2, s2, 7", "s_lshl_b32 s2, s2, 5", "s_or_b32 s2, s2, s3")
    A(f"s_load_dwordx2 s[{sWS}:{sWS+1}], s[0:1], 72", "s_load_dwordx2 s[42:43], s[0:1], 0", "s_load_dwordx2 s[44:45], s[0:1], 8",
      "s_load_dwordx2 s[46:47], s[0:1], 32", "s_load_dwordx2 s[48:49], s[0:1], 48",
      f"s_load_dwordx2 s[{pWOA}:{pWOA+1}], s[0:1], 16", f"s_load_dwordx2 s[{pWOB}:{pWOB+1}], s[0:1], 40", f"s_load_dwordx2 s[{pOUT}:{pOUT+1}], s[0:1], 56")
    rot=[int(o[3:]) for o in opt if o.startswith('rot')]
    if rot: A(f"s_add_u32 s{sX}, s2, {rot[0]}", f"s_and_b32 s{sX}, s{sX}, 7")
    else: A(f"s_and_b32 s{sX}, s2, 7")
    A(f"s_lshr_b32 s{sI}, s2, 3", f"s_lshr_b32 s{sJ}, s{sI}, 2", f"s_and_b32 s{sA}, s{sI}, 3",
      f"s_lshr_b32 s{sBR}, s{sA}, 1", f"s_and_b32 s50, s{sA}, 1", f"s_lshl_b32 s{sRB}, s{sJ}, 1", f"s_add_u32 s{sRB}, s{sRB}, s50",
      f"s_lshl_b32 s{sH}, s{sX}, 2", f"s_add_u32 s{sH}, s{sH}, s{sA}")
    A("v_lshrrev_b32 v1, 6, v0", "v_and_b32 v2, 63, v0", "s_nop 0", f"v_readfirstlane_b32 s{sW}, v1")
    if 'pf' in opt:
        A("s_getpc_b64 s[50:51]", "L_pc:", f"s_sub_u32 s50, s50, (L_pc-{NAME})", "s_subb_u32 s51, s51, 0")
        A(f"s_lshl_b32 s52, s{sI}, 1", f"s_add_u32 s52, s52, s{sW}", "s_lshl_b32 s52, s52, 10", "v_lshlrev_b32 v3, 4, v2", "v_add_u32 v3, s52, v3")
        A(f"s_cmp_lt_u32 s{sW}, 2", "s_cbranch_scc0 L_nopf", f"s_cmp_lt_u32 s52, (L_done-{NAME}-1024)", "s_cbranch_scc0 L_nopf",
          "global_load_dwordx4 v[252:255], v3, s[50:51]", "L_nopf:")
    if 'spin60' in opt: A("s_memrealtime s[90:91]")
    A("s_waitcnt lgkmcnt(0)")
    ST.rt("start"); ST.cyc("cyc0")
    A(f"s_add_u32 s6, s{sWS}, {FL+FL_EPOCH}", f"s_addc_u32 s7, s{sWS+1}, 0", "s_load_dword s3, s[6:7], 0")
    srd(A,SRD_WS,sWS,WS_SIZE)
    srd(A,SRD_A,42,2048*512*2)
    A(f"s_cmp_eq_u32 s{sBR}, 0", "s_cselect_b32 s44, s44, s46", "s_cselect_b32 s45, s45, s47")
    srd(A,SRD_B,44,512*1536*2)
    srd(A,SRD_C,48,1024)
    phase1(A,ST,opt)
    phase2(A,ST,opt)
    phase3(A,ST,opt)
    if 'spin60' in opt:
        A("s_waitcnt vmcnt(0)", "L_spin:", "s_memrealtime s[80:81]", "s_waitcnt lgkmcnt(0)", "s_sub_u32 s80, s80, s90", "s_cmp_lt_u32 s80, 6000", "s_cbranch_scc1 L_spin")
    if ST.on: A("s_waitcnt vmcnt(0)")
    ST.rt("end"); ST.cyc("cyc1")
    ST.flush(120)
    A("L_done:", "s_endpgm")
    kd=f""".section .rodata,"a"
.p2align 6
.amdhsa_kernel {NAME}
  .amdhsa_next_free_vgpr 256
  .amdhsa_next_free_sgpr 102
  .amdhsa_accum_offset 256
  .amdhsa_group_segment_fixed_size 0
  .amdhsa_kernarg_size 80
  .amdhsa_user_sgpr_count 2
  .amdhsa_user_sgpr_kernarg_segment_ptr 1
  .amdhsa_system_sgpr_workgroup_id_x 1
.end_amdhsa_kernel
"""
    return A.text(), kd, ST.names

if __name__=='__main__':
    import sys, hazard
    out=sys.argv[1]; opt=tuple(sys.argv[2:])
    HDR=open('gated_mix__softmax_full_mha__sliding_block__prompt.s.ref').read().split('\n')
    hdr=[l for l in HDR if l.startswith(';') and 'launch' not in l.lower() and 'Override' not in l and 'grid=ceil' not in l]
    t,kd,names=gen(opt)
    s='\n'.join(hdr)+'\n'+"; @launch grid=(256,1,1) block=(512,1,1) lds=163840\n"+'.amdgcn_target "amdgcn-amd-amdhsa--gfx950"\n.text\n'+t+kd
    open(out,'w').write(s)
    print('hazards',len(hazard.check(t)),'bytes',len(s),'stamps',','.join(names))
    sys.path.insert(0,'cdna_kernels')
    import subprocess
    from cdna_launch import with_harness_metadata, address_register_problem
    open('h.s','w').write(with_harness_metadata(s,NAME,10,launch_lists=True))
    r=subprocess.run(['clang','-x','assembler','-target','amdgcn-amd-amdhsa','-mcpu=gfx950','h.s','-o','h.co'],capture_output=True,text=True)
    if r.returncode: print(r.stderr)
    else:
        print('check:',address_register_problem('h.co',NAME))
        d=subprocess.run(['llvm-objdump','-d','--mcpu=gfx950','h.co'],capture_output=True,text=True).stdout
        import re
        ad=[int(m,16) for m in re.findall(r'// ([0-9A-F]{12}):',d)]
        print('code bytes',ad[-1]-ad[0]-768)
```

```python
from asm import Asm, vr, sr, mfma32
import struct
def f2u(x): return struct.unpack('<I',struct.pack('<f',x))[0]
NAME="gated_mix__softmax_full_mha__sliding_block__prompt_kernel"
QF=0; KF=4<<20; VF=8<<20; GOFF=12<<20; OF=16<<20; FL=30<<20; WS_SIZE=31<<20
FL_EPOCH=0; FL_F0=1024; FL_F1=2048; FL_F2=8192; FL_F2B=16384; FL_F2A=32768
FSTR=16
F1STR=4
STAMP_OFF=32<<20
QSCALE=0.25*1.4426950408889634
NEG=f2u(-2.0**100); LLO=f2u(2.0**-64); LHI=f2u(2.0**64)
SPIN_MAX=1<<20
sNONCE=3; sWS=4
SRD_WS=8; SRD_A=12; SRD_B=16; SRD_C=20
sW=24; sX=25; sI=26; sJ=27; sA=28; sBR=29; sRB=30; sH=31
sMASK=40
sXCC=37; sMODE=39
pWOA=84; pWOB=86; pOUT=88

class Stamps:
    def __init__(s, A, on): s.A=A; s.on=on; s.n=0; s.names=[]; s.skip=('p1_stored',)
    def rt(s,name):
        if not s.on or name in s.skip: return
        s.A("s_memrealtime s[80:81]", "s_waitcnt lgkmcnt(0)", f"s_mov_b32 s{64+s.n}, s80"); s.names.append(name); s.n+=1
    def cyc(s,name):
        if not s.on: return
        s.A("s_memtime s[80:81]", "s_waitcnt lgkmcnt(0)", f"s_mov_b32 s{64+s.n}, s80"); s.names.append(name); s.n+=1
    def flush(s, vtmp):
        if not s.on: return
        A=s.A
        A(f"s_mov_b32 s92, s{sWS}", f"s_mov_b32 s93, s{sWS+1}", "s_mov_b32 s94, 0x10000000", "s_mov_b32 s95, 0x00020000")
        A(f"s_lshl_b32 s80, s2, 3", f"s_add_u32 s80, s80, s{sW}", "s_lshl_b32 s80, s80, 6", f"s_add_u32 s80, s80, {STAMP_OFF}")
        for i in range(s.n):
            A(f"v_mov_b32 v{vtmp}, s{64+i}", f"v_mov_b32 v{vtmp+1}, {4*i}", f"buffer_store_dword v{vtmp}, v{vtmp+1}, s[92:95], s80 offen")

def srd(A, s, base, size):
    A(f"s_mov_b32 s{s}, s{base}", f"s_mov_b32 s{s+1}, s{base+1}", f"s_mov_b32 s{s+2}, {size}", f"s_mov_b32 s{s+3}, 0x00020000")

def poll(A, tag, flag_off_sgpr, vaddr, vtmp, stride=FSTR):
    A(f"s_cmp_lg_u32 s{sW}, 0", f"s_cbranch_scc1 L_{tag}_skip")
    A(f"v_and_b32 v{vaddr}, 31, v0", f"v_mul_u32_u24 v{vaddr}, {stride}, v{vaddr}", f"s_mov_b32 s42, {SPIN_MAX}")
    A(f"L_{tag}_loop:")
    A(f"buffer_load_dword v{vtmp}, v{vaddr}, s[{SRD_WS}:{SRD_WS+3}], s{flag_off_sgpr} offen sc1")
    A("s_waitcnt vmcnt(0)")
    A(f"v_cmp_ne_u32 vcc, s{sNONCE}, v{vtmp}", "s_nop 1", "s_cmp_eq_u64 vcc, 0", f"s_cbranch_scc1 L_{tag}_skip")
    A("s_sub_u32 s42, s42, 1", "s_cmp_eq_u32 s42, 0", f"s_cbranch_scc1 L_{tag}_skip", "s_sleep 1", f"s_branch L_{tag}_loop")
    A(f"L_{tag}_skip:")

def setflag(A, tag, off_sgpr, vt, sc=" sc1"):
    A(f"s_cmp_lg_u32 s{sW}, 0", f"s_cbranch_scc1 L_{tag}_nf")
    A(f"v_mov_b32 v{vt}, s{sNONCE}", f"v_mov_b32 v{vt+1}, 0", "s_mov_b64 exec, 1",
      f"buffer_store_dword v{vt}, v{vt+1}, s[{SRD_WS}:{SRD_WS+3}], s{off_sgpr} offen{sc}", "s_mov_b64 exec, -1")
    A(f"L_{tag}_nf:")

def mfma16(d,a,b,c): return f"v_mfma_f32_16x16x32_bf16 {vr(d,4)}, {vr(a,4)}, {vr(b,4)}, {vr(c,4)}"
def phase1(A, ST, opt):
    lane=2; vX=3; vX2=27; vW=4; t0=5; t1=6; t2=7; g_t=8
    W_=f"s[{SRD_WS}:{SRD_WS+3}]"
    GX=192; GW=196; GA=120
    PT=200; vF0=206; F0V=204
    PTF="sc1 nt"
    DIST=3
    A(f"v_lshlrev_b32 v24, 4, v{lane}", "s_lshl_b32 s42, s2, 3", f"s_add_u32 s42, s42, s{sW}", "s_lshl_b32 s42, s42, 10",
      f"buffer_load_dwordx4 {vr(GX,4)}, v24, s[{SRD_A}:{SRD_A+3}], s42 offen", f"buffer_load_dwordx4 {vr(GW,4)}, v24, s[{SRD_C}:{SRD_C+3}], 0 offen")
    A(f"v_lshrrev_b32 v{t0}, 3, v{lane}", f"s_lshl_b32 s42, s{sW}, 3", f"v_add_u32 v{t0}, s42, v{t0}",
      f"v_bfe_u32 v{t1}, v{t0}, 1, 3", f"v_and_b32 v{t2}, 7, v{lane}", f"v_xor_b32 v{t1}, v{t1}, v{t2}",
      f"s_lshl_b32 s43, s{sRB}, 7", f"v_add_u32 v{vX}, s43, v{t0}", f"v_lshlrev_b32 v{vX}, 10, v{vX}",
      f"v_lshl_add_u32 v{vX}, v{t1}, 4, v{vX}", f"v_add_u32 v{vX2}, 0x10000, v{vX}")
    A(f"v_bfe_u32 v{t1}, v{lane}, 4, 1", f"s_and_b32 s42, s{sW}, 1", "s_lshl_b32 s42, s42, 1", f"v_or_b32 v{t1}, s42, v{t1}", f"v_lshlrev_b32 v{t1}, 1, v{t1}",
      f"v_xor_b32 v{t1}, v{t1}, v{t2}", f"v_mul_u32_u24 v{vW}, 3072, v{t0}", f"v_lshl_add_u32 v{vW}, v{t1}, 4, v{vW}",
      f"s_lshl_b32 s45, s{sX}, 7", f"v_add_u32 v{vW}, s45, v{vW}")
    STG=40960
    def dma_groups():
        L=[]
        L.append([f"s_mov_b32 m0, s46", "NOP", f"buffer_load_dwordx4 v{vX}, s[{SRD_A}:{SRD_A+3}], s47 offen lds"])
        L.append([f"s_add_u32 m0, s46, 8192", "NOP", f"buffer_load_dwordx4 v{vX2}, s[{SRD_A}:{SRD_A+3}], s47 offen lds"])
        for seg in range(3):
            L.append([f"s_add_u32 m0, s46, {16384+seg*8192-seg*1024}", "NOP", f"buffer_load_dwordx4 v{vW}, s[{SRD_B}:{SRD_B+3}], s48 offen offset:{seg*1024} lds"])
        return L
    def emit(g): A([("s_nop 0" if x=="NOP" else x) for x in g])
    A(f"s_lshl_b32 s46, s{sW}, 10", "s_mov_b32 s47, 0", "s_mov_b32 s48, 0")
    for g in dma_groups(): emit(g)
    A(f"s_add_u32 s46, s46, {STG}", "s_add_u32 s47, s47, 128", f"s_add_u32 s48, s48, {64*3072}")
    for g in dma_groups(): emit(g)
    A(f"s_and_b32 s34, s{sW}, 1", f"s_lshr_b32 s35, s{sW}, 1")
    A(f"s_lshl_b32 s42, s{sX}, 2", "s_add_u32 s42, s42, s35", f"s_lshl_b32 s43, s{sBR}, 5", "s_add_u32 s42, s42, s43",
      "s_lshl_b32 s42, s42, 16", f"s_lshl_b32 s43, s{sRB}, 1", "s_add_u32 s43, s43, s34", "s_lshl_b32 s43, s43, 11", "s_add_u32 s56, s42, s43")
    vPT=207
    A(f"v_lshrrev_b32 v{t0}, 4, v{lane}", f"v_lshlrev_b32 v{vPT}, 22, v{t0}", f"v_bfe_u32 v{t0}, v{lane}, 3, 1", f"v_lshl_add_u32 v{vPT}, v{t0}, 10, v{vPT}",
      f"v_and_b32 v{t0}, 7, v{lane}", f"v_lshl_add_u32 v{vPT}, v{t0}, 7, v{vPT}", f"v_cmp_gt_u32 vcc, 48, v{lane}", f"v_mov_b32 v{t0}, 0x7ffffff0", "s_nop 0",
      f"v_cndmask_b32 v{vPT}, v{t0}, v{vPT}, vcc")
    A(f"v_and_b32 v{vF0}, 31, v{lane}", f"v_lshlrev_b32 v{vF0}, 2, v{vF0}", f"v_lshrrev_b32 v{t0}, 5, v{lane}", f"v_lshl_add_u32 v{vF0}, v{t0}, 10, v{vF0}",
      f"s_lshl_b32 s58, s{sX}, 7", f"s_add_u32 s58, s58, {FL+FL_F0}", f"s_getreg_b32 s{sXCC}, hwreg(HW_REG_XCC_ID, 0, 4)")
    aX=[10,11]; aW=18; m=20
    A(f"v_lshrrev_b32 v{g_t}, 4, v{lane}", f"v_and_b32 v{m}, 15, v{lane}", f"v_lshrrev_b32 v{t0}, 1, v{m}",
      "s_lshl_b32 s42, s34, 6", f"v_add_u32 v{t1}, s42, v{m}", f"v_lshlrev_b32 v{t1}, 7, v{t1}")
    for s_ in range(2):
        A(f"v_or_b32 v{t2}, {4*s_}, v{g_t}", f"v_xor_b32 v{t2}, v{t2}, v{t0}", f"v_lshl_add_u32 v{aX[s_]}, v{t2}, 4, v{t1}")
    A(f"v_bfe_u32 v{t0}, v{lane}, 2, 2", f"v_lshl_add_u32 v{t1}, v{g_t}, 3, v{t0}", f"v_lshlrev_b32 v{t1}, 7, v{t1}",
      f"v_bfe_u32 v{t2}, v{lane}, 3, 1", f"v_bfe_u32 v21, v{lane}, 4, 1", f"v_lshl_or_b32 v{t2}, v21, 1, v{t2}", f"v_lshlrev_b32 v{t2}, 1, v{t2}",
      f"v_bfe_u32 v21, v{lane}, 1, 1", "s_lshl_b32 s42, s35, 1", "v_or_b32 v21, s42, v21", f"v_xor_b32 v{t2}, v{t2}, v21",
      f"v_lshl_add_u32 v{t1}, v{t2}, 4, v{t1}", f"v_and_b32 v21, 1, v{lane}", f"v_lshl_add_u32 v{t1}, v21, 3, v{t1}", f"v_add_u32 v{aW}, 16384, v{t1}")
    TQ=32; TK=48; TV=64
    XF=[80,96]; WF=[[112,116,120+4],[128,132,136]]
    WF=[[112,116,124],[128,132,136]]
    for i in range(48): A(f"v_mov_b32 v{TQ+i}, 0")
    def reads(s_):
        b=s_%2
        if 'p1noread' in opt: return []
        def w(seg): return [f"ds_read_b64_tr_b16 {vr(WF[b][seg]+2*rr,2)}, v{aW} offset:{seg*8192+(32*s_+4*rr)*128}" for rr in range(2)]
        def x(rt): return [f"ds_read_b128 {vr(XF[b]+4*rt,4)}, v{aX[s_]} offset:{rt*2048}"]
        return w(0)+x(0)+x(1)+w(1)+x(2)+x(3)+w(2)
    def mfmas(b):
        L=[]
        for rt in (0,1): L.append(mfma16(TQ+4*rt, WF[b][0], XF[b]+4*rt, TQ+4*rt))
        for rt in (0,1): L.append(mfma16(TK+4*rt, WF[b][1], XF[b]+4*rt, TK+4*rt))
        for rt in (2,3): L.append(mfma16(TQ+4*rt, WF[b][0], XF[b]+4*rt, TQ+4*rt))
        for rt in (2,3): L.append(mfma16(TK+4*rt, WF[b][1], XF[b]+4*rt, TK+4*rt))
        for rt in range(4): L.append(mfma16(TV+4*rt, XF[b]+4*rt, WF[b][2], TV+4*rt))
        if 'p1nomfma' in opt: L=["s_nop 0"]*12
        return L
    A("s_mov_b32 s49, 0", "s_mov_b32 s36, 0", f"s_mov_b32 s53, {STG}")
    if 'stag' not in opt: A("s_mov_b32 s60, 0")
    else: A(f"s_lshr_b32 s60, s{sW}, 2")
    A("s_cmp_eq_u32 s60, 0", "s_cselect_b32 s59, 5, 0", "s_cselect_b32 s61, 0, 5")
    A("s_waitcnt vmcnt(5)", "s_barrier")
    A("s_waitcnt lgkmcnt(0)", f"s_mul_i32 s{sNONCE}, s3, 0x9e3779b1", f"s_add_u32 s{sNONCE}, s{sNONCE}, 0x7f4a7c15")
    ST.rt("p1_data")
    A(reads(0))
    A(f"s_add_u32 s46, s46, {STG}", "s_add_u32 s47, s47, 128", f"s_add_u32 s48, s48, {64*3072}")
    for g in dma_groups(): emit(g)
    A(f"s_cmp_lg_u32 s{sW}, 0", "s_cbranch_scc1 L_f0_nf", f"s_add_u32 s42, s{sNONCE}, s{sXCC}", f"s_lshl_b32 s43, s{sI}, 2", "s_add_u32 s43, s43, s58",
      "v_mov_b32 v5, s42", "v_mov_b32 v6, 0", "s_mov_b64 exec, 1", f"buffer_store_dword v5, v6, {W_}, s43 offen sc1", "s_mov_b64 exec, -1", "L_f0_nf:")
    A(".p2align 3", "P1_loop:")
    A(f"s_add_u32 s50, s49, {DIST}", "s_and_b32 s51, s50, 3", f"s_mul_i32 s51, s51, {STG}", f"s_lshl_b32 s46, s{sW}, 10", "s_add_u32 s46, s46, s51",
      "s_lshl_b32 s47, s50, 7", f"s_mul_i32 s48, s50, {64*3072}")
    G=dma_groups()
    need=[2,3,5,5,6,7,7,7,9,9,9,9]
    STAG=False
    def dmablock(tag, cond_skip):
        A(cond_skip)
        if 'p1nodma' not in opt:
            for g in G: emit(g)
        A("s_cmp_eq_u32 s49, 3", f"s_cbranch_scc1 P1_ptflag{tag}", f"P1_nodma{tag}:")
    mf=mfmas(0); rd=reads(1)
    prev=-1
    for k in range(12):
        if need[k]>prev:
            A(f"s_waitcnt lgkmcnt({(9-need[k])+min(k,10)})"); prev=need[k]
        A(mf[k])
        if k<10 and rd: A(rd[k])
        if k==6: dmablock("A", ["s_cmp_ge_u32 s49, s59", "s_cbranch_scc1 P1_nodmaA"])
    mf=mfmas(1); rd=reads(0)
    A("s_add_u32 s36, s36, 1", "s_cmp_eq_u32 s36, 4", f"s_cselect_b32 s52, {(-3*STG)&0xffffffff:#x}, s53", "s_cselect_b32 s36, 0, s36")
    prev=-1
    NB4=4
    for k in range(NB4):
        if need[k]>prev:
            A(f"s_waitcnt lgkmcnt({9-need[k]})"); prev=need[k]
        A(mf[k])
    A("s_waitcnt lgkmcnt(0)")
    for k in range(2): A(f"v_add_u32 v{aX[k]}, s52, v{aX[k]}")
    A(f"v_add_u32 v{aW}, s52, v{aW}")
    A("s_cmp_eq_u32 s49, 5", "s_cbranch_scc1 P1_drain", "s_cmp_gt_u32 s49, 5", "s_cbranch_scc1 P1_bar", "s_waitcnt vmcnt(10)",
      "s_cmp_eq_u32 s60, 0", "s_cbranch_scc1 P1_bar", "s_waitcnt vmcnt(5)", "P1_bar:", "s_barrier")
    if 'p1it' in opt:
        A("s_memtime s[80:81]", "s_waitcnt lgkmcnt(0)")
        for k in range(7): A(f"s_mov_b32 s{64+8+k}, s{64+9+k}")
        A(f"s_mov_b32 s{64+15}, s80")
    slots=[2,2,1,1,1,1,1,1]
    r_=0
    for k in range(NB4,12):
        A(mf[k])
        n=slots[k-NB4]
        if rd: A(rd[r_:r_+n])
        r_+=n
        if k==7: dmablock("B", ["s_cmp_ge_u32 s49, s61", "s_cbranch_scc1 P1_nodmaB"])
    A("s_add_u32 s49, s49, 1", "s_cmp_lt_u32 s49, 8", "s_cbranch_scc1 P1_loop")
    ST.rt("p1_loop")
    if 'p1it' in opt:
        ST.n=16; ST.flush(210); A("s_waitcnt vmcnt(0)", "s_endpgm")
    A("s_branch P1_after")
    for tag in "AB": A(f"P1_ptflag{tag}:", f"buffer_load_dword v{F0V}, v{vF0}, {W_}, s58 offen sc1", f"s_branch P1_nodma{tag}")
    A("P1_drain:", "s_waitcnt vmcnt(0)", f"buffer_load_dword v{PT}, v{vPT}, {W_}, s56 offen {PTF}", "s_branch P1_bar")
    A("P1_after:")
    A(f"s_mov_b32 s42, {SPIN_MAX}")
    A("P1_chk:", f"v_subrev_u32 v{F0V+1}, s{sNONCE}, v{F0V}", f"v_cmp_gt_u32 vcc, 8, v{F0V+1}", "s_nop 1", "s_cmp_eq_u32 vcc_lo, -1", "s_cbranch_scc1 P1_chk_ok")
    A("s_sub_u32 s42, s42, 1", "s_cmp_eq_u32 s42, 0", "s_cbranch_scc1 P1_chk_ok", "s_sleep 1",
      f"buffer_load_dword v{F0V}, v{vF0}, {W_}, s58 offen sc1", "s_waitcnt vmcnt(0)", "s_branch P1_chk")
    A("P1_chk_ok:", f"v_cmp_eq_u32 vcc, s{sXCC}, v{F0V+1}", "s_nop 1", "s_cmp_eq_u32 vcc_lo, -1", f"s_cselect_b32 s{sMODE}, 1, 0")
    if 'forcesafe' in opt: A(f"s_mov_b32 s{sMODE}, 0")
    A(f"s_mov_b32 s44, {hex(f2u(QSCALE))}", "s_waitcnt lgkmcnt(0)")
    PK=80
    for t in range(2):
        for i in range(4): A(f"v_cvt_pk_bf16_f32 v{PK+4*t+i}, v{TK+8*t+2*i}, v{TK+8*t+2*i+1}")
    for t in range(2):
        for i in range(4): A(f"v_cvt_pk_bf16_f32 v{PK+8+4*t+i}, v{TV+8*t+2*i}, v{TV+8*t+2*i+1}")
    for i in range(16): A(f"v_mul_f32 v{TQ+i}, s44, v{TQ+i}")
    for t in range(2): A(f"v_permlane16_swap_b32 v{PK+4*t}, v{PK+4*t+2}", f"v_permlane16_swap_b32 v{PK+4*t+1}, v{PK+4*t+3}")
    for t in range(2):
        for i in range(4): A(f"v_cvt_pk_bf16_f32 v{PK+16+4*t+i}, v{TQ+8*t+2*i}, v{TQ+8*t+2*i+1}")
    for t in range(2): A(f"v_permlane32_swap_b32 v{PK+8+4*t}, v{PK+8+4*t+2}", f"v_permlane32_swap_b32 v{PK+8+4*t+1}, v{PK+8+4*t+3}")
    for t in range(2): A(f"v_permlane16_swap_b32 v{PK+16+4*t}, v{PK+16+4*t+2}", f"v_permlane16_swap_b32 v{PK+16+4*t+1}, v{PK+16+4*t+3}")
    A(f"s_add_u32 s45, s56, {KF}", f"s_add_u32 s47, s56, {VF}")
    A(f"s_cmp_eq_u32 s{sMODE}, 0", "s_cbranch_scc1 P1_st_safe")
    for sc,lab in (("",None),(" sc1","P1_st_safe")):
        if lab: A("s_branch P1_st_done", f"{lab}:")
        A(f"buffer_store_dwordx4 {vr(PK,4)}, v24, {W_}, s45 offen{sc}", f"buffer_store_dwordx4 {vr(PK+4,4)}, v24, {W_}, s45 offen offset:1024{sc}")
        A(f"buffer_store_dwordx4 {vr(PK+8,4)}, v24, {W_}, s47 offen{sc}", f"buffer_store_dwordx4 {vr(PK+12,4)}, v24, {W_}, s47 offen offset:1024{sc}")
        A(f"buffer_store_dwordx4 {vr(PK+16,4)}, v24, {W_}, s56 offen{sc}", f"buffer_store_dwordx4 {vr(PK+20,4)}, v24, {W_}, s56 offen offset:1024{sc}")
    A("P1_st_done:")
    if 'fine1' in opt: ST.rt("st_issued")
    A(f"v_mov_b32 v{GA}, 0")
    for i in range(4): A(f"v_dot2_f32_bf16 v{GA}, v{GX+i}, v{GW+i}, v{GA}")
    A("s_nop 2")
    for ror in (8,4,2,1):
        A(f"v_add_f32_dpp v{GA}, v{GA}, v{GA} row_ror:{ror} row_mask:0xf bank_mask:0xf", "s_nop 1")
    A(f"v_mov_b32 v{GA+1}, v{GA}", "s_nop 1", f"v_permlane16_swap_b32 v{GA+1}, v{GA}", "s_nop 1", f"v_add_f32 v{GA}, v{GA}, v{GA+1}",
      f"v_mov_b32 v{GA+1}, v{GA}", "s_nop 1", f"v_permlane32_swap_b32 v{GA+1}, v{GA}", "s_nop 1", f"v_add_f32 v{GA}, v{GA}, v{GA+1}")
    A(f"v_mul_f32 v{GA}, {hex(f2u(-1.4426950408889634))}, v{GA}", f"v_exp_f32 v{GA}, v{GA}", "s_nop 0", f"v_add_f32 v{GA}, 1.0, v{GA}", f"v_rcp_f32 v{GA}, v{GA}",
      "s_lshl_b32 s42, s2, 3", f"s_add_u32 s42, s42, s{sW}", "s_lshl_b32 s42, s42, 2", f"s_add_u32 s42, s42, {GOFF}", f"v_mov_b32 v{GA+1}, 0", "s_mov_b64 exec, 1",
      f"buffer_store_dword v{GA}, v{GA+1}, {W_}, s42 offen sc1", "s_mov_b64 exec, -1")

def sync1(A, ST, opt):
    if 'fine1' in opt:
        ST.rt("pre_wait"); A("s_waitcnt vmcnt(0)"); ST.rt("vm0"); A("s_barrier"); ST.rt("p1_stored")
        ST.flush(122); A("s_waitcnt vmcnt(0)", "s_endpgm"); ST.on=False
    A("s_waitcnt vmcnt(0)", "s_barrier")
    ST.rt("p1_stored")
    A(f"s_lshl_b32 s42, s{sX}, 7", f"s_lshl_b32 s43, s{sI}, 2", "s_add_u32 s43, s43, s42", f"s_add_u32 s43, s43, {FL+FL_F1}", f"s_add_u32 s38, s42, {FL+FL_F1}")
    A(f"s_cmp_eq_u32 s{sMODE}, 0", "s_cbranch_scc1 L_f1_safe")
    setflag(A,"f1f",43,2,"")
    A("s_branch L_f1_done", "L_f1_safe:")
    setflag(A,"f1s",43,2," sc1")
    A("L_f1_done:")
    poll(A,"p1",38,2,3,stride=F1STR)
    A("s_barrier")
    ST.rt("p1_flags")

LANE=1
QA0=4; QA1=8; QB=12
OA0=16; OA1=32
S0=48; S1=64
P=80
KB_=88; VB_=96
MF=112; MD=128; CB=144
vKa=160; vVa=161
vG=162; vL16=163; vT=164; vT2=165; vT3=166; vNEGM=167; vM=168; vKs=169; vVs=170; vGB=171; vX0=172
VL=vX0+11
LDS_KA=0; LDS_VA=65536; LDS_KB=131072; LDS_VB=147456
def exps(S): return [f"v_exp_f32 v{S+i}, v{S+i}" for i in range(16)]
def cvts(S): return [f"v_cvt_pk_bf16_f32 v{P+i}, v{S+2*i}, v{S+2*i+1}" for i in range(8)]
MK=[f"s_mov_b64 exec, s[{sMASK}:{sMASK+1}]"]; UM=["s_mov_b64 exec, -1"]
def unit(A, Sc, QK, PV1, ld, wK, wV, PV0):
    e=exps(Sc); c=cvts(Sc)
    A(wK, QK)
    A(e[0:4], c[0], e[4:6], c[1])
    A(PV1, ld)
    A(e[6:8], c[2], e[8:10], c[3], e[10:12])
    A(wV, PV0)
    A(e[12:13], c[4], e[13:15], c[5], e[15:16], c[6], c[7])
def slow_pass(A, tag, Q, O, pass1, far, diag, n):
    A(f"v_mov_b32 v{vX0}, v{vKs}", f"v_mov_b32 v{vX0+1}, v{vVs}", "s_mov_b32 s60, 0")
    if pass1: A(f"v_mov_b32 v{vM}, {hex(NEG)}", f"v_mov_b32 v{vNEGM}, 0")
    else:
        for i in range(16): A(f"v_mov_b32 v{O+i}, 0")
    A(f"L_{tag}_loop:")
    A(f"ds_read_b128 {vr(KB_,4)}, v{vX0}")
    if not pass1: A(MK, f"ds_read_b128 {vr(VB_,4)}, v{vX0+1}", f"ds_read_b128 {vr(VB_+4,4)}, v{vX0+1} offset:512", UM)
    A("s_cmp_eq_u32 s60, 0", f"s_cselect_b32 s61, s{far}, 0", "s_cmp_lg_u32 s61, 0", f"s_cbranch_scc1 L_{tag}_far")
    A(f"s_add_u32 s61, s60, 1", f"s_cmp_eq_u32 s61, s{n}", f"s_cselect_b32 s61, s{diag}, 0", "s_cmp_lg_u32 s61, 0", f"s_cbranch_scc1 L_{tag}_diag")
    for i in range(16): A(f"v_mov_b32 v{CB+i}, v{vNEGM}")
    A(f"s_branch L_{tag}_go")
    A(f"L_{tag}_far:")
    for i in range(16): A(f"v_add_f32 v{CB+i}, v{MF+i}, v{vNEGM}")
    A(f"s_branch L_{tag}_go")
    A(f"L_{tag}_diag:")
    for i in range(16): A(f"v_add_f32 v{CB+i}, v{MD+i}, v{vNEGM}")
    A(f"L_{tag}_go:")
    A("s_waitcnt lgkmcnt(0)", "s_nop 0")
    A(mfma32(S0, KB_, Q, CB))
    A("s_nop 7","s_nop 3")
    if pass1:
        for i in range(16): A(f"v_max_f32 v{vM}, v{vM}, v{S0+i}")
    else:
        A(exps(S0), "s_nop 0", cvts(S0), "s_nop 1")
        A(mfma32(O, VB_, P, O), mfma32(O, VB_+4, P+4, O))
    A(f"v_add_u32 v{vX0}, 1024, v{vX0}", f"v_add_u32 v{vX0+1}, 1024, v{vX0+1}")
    A("s_add_u32 s60, s60, 1", f"s_cmp_lt_u32 s60, s{n}", f"s_cbranch_scc1 L_{tag}_loop")
    if pass1:
        A(f"v_mov_b32 v{vT}, v{vM}", "s_nop 1", f"v_permlane32_swap_b32 v{vT}, v{vM}", "s_nop 1",
          f"v_max_f32 v{vM}, v{vM}, v{vT}", f"v_sub_f32 v{vNEGM}, 0, v{vM}")
    else: A("s_nop 7","s_nop 3")
def bcast_l(A,O):
    A(f"v_mov_b32 v{vT}, v{O+8}", "s_nop 1", f"v_permlane32_swap_b32 v{vT}, v{O+8}", "s_nop 1", f"v_add_f32 v{O+8}, v{O+8}, v{vT}")
def check_range(A, O, okl):
    bcast_l(A,O)
    A(f"v_mov_b32 v{vT}, v{O+8}")
    for i in range(8): A(f"v_fma_f32 v{vT}, v{O+i}, 0, v{vT}")
    A(f"s_mov_b32 s44, {hex(LLO)}", f"s_mov_b32 s45, {hex(LHI)}")
    A(f"v_cmp_le_f32 s[46:47], s44, v{vT}", f"v_cmp_ge_f32 s[48:49], s45, v{vT}", "s_nop 1",
      "s_and_b64 s[46:47], s[46:47], s[48:49]", "s_cmp_eq_u64 s[46:47], -1", f"s_cbranch_scc1 {okl}")
def finalize(A, O, soff):
    A(f"v_rcp_f32 v{vT}, v{O+8}", "s_nop 0")
    for i in range(8): A(f"v_mul_f32 v{O+i}, v{O+i}, v{vT}")
    for i in range(4): A(f"v_cvt_pk_bf16_f32 v{vX0+4+i}, v{O+2*i}, v{O+2*i+1}")
    A(f"buffer_store_dwordx4 {vr(vX0+4,4)}, v{vL16}, s[{SRD_WS}:{SRD_WS+3}], s{soff} offen sc1")

def phase2(A, ST, opt):
    W_=f"s[{SRD_WS}:{SRD_WS+3}]"
    SC="" if 'plainld' in opt else " sc1"
    A(f"v_and_b32 v{LANE}, 63, v0")
    A(f"s_and_b32 s15, s{sW}, 3", f"s_lshr_b32 s16, s{sW}, 2")
    A("s_lshl_b32 s17, s15, 1", "s_add_u32 s17, s17, s16",
      f"s_lshl_b32 s18, s{sJ}, 3", "s_add_u32 s19, s18, s17",
      f"s_lshl_b32 s20, s{sH}, 16", f"s_add_u32 s21, s20, {32*65536}")
    A(f"v_lshlrev_b32 v{vL16}, 4, v{LANE}", f"v_and_b32 v{vT}, 31, v{LANE}")
    A(f"s_mov_b32 s{sMASK}, 0x0000ffff", f"s_mov_b32 s{sMASK+1}, 0x0000ffff")
    A(f"v_cmp_eq_u32 vcc, 16, v{vT}", f"v_mov_b32 v{vX0}, 0x3f803f80", "s_nop 0", f"v_cndmask_b32 v{vX0+1}, 0, v{vX0}, vcc")
    for i in range(16): A(f"v_mov_b32 v{VB_+i}, v{vX0+1}")
    hh=vT3
    A(f"v_lshrrev_b32 v{hh}, 5, v{LANE}", f"v_lshlrev_b32 v{vT2}, 2, v{hh}", f"v_sub_u32 v{vT2}, v{vT}, v{vT2}")
    A(f"v_mov_b32 v{vX0}, {hex(NEG)}")
    for g in range(4):
        for k in range(4): A(f"v_cmp_gt_i32 s[{44+2*k}:{45+2*k}], {8*g+k}, v{vT2}")
        A("s_nop 0")
        for k in range(4):
            i=4*g+k
            A(f"v_cndmask_b32 v{MF+i}, v{vX0}, 0, s[{44+2*k}:{45+2*k}]", f"v_cndmask_b32 v{MD+i}, 0, v{vX0}, s[{44+2*k}:{45+2*k}]")
    A(f"v_and_b32 v{vT}, 15, v{LANE}", f"v_lshlrev_b32 v{vT}, 4, v{vT}", f"v_lshl_add_u32 v{VL}, v{hh}, 8, v{vT}")
    A("s_lshl_b32 s43, s17, 10", f"s_add_u32 s44, s43, {LDS_KB}", f"v_add_u32 v{vKa}, s44, v{vL16}",
      f"s_add_u32 s44, s43, {LDS_VB}", f"v_add_u32 v{vVa}, s44, v{VL}")
    A("s_lshl_b32 s32, s19, 16", f"s_lshl_b32 s33, s{sH}, 10", "s_add_u32 s32, s32, s33", f"s_add_u32 s32, s32, {OF}", "s_add_u32 s33, s32, 32768")
    A("s_lshl_b32 s22, s19, 10", "s_add_u32 s22, s22, s21", f"s_add_u32 s22, s22, {QF}")
    A("s_lshl_b32 s23, s15, 1", "s_add_u32 s23, s23, s18", "s_lshl_b32 s23, s23, 10", "s_add_u32 s23, s23, s20", f"s_add_u32 s23, s23, {QF}")
    for ii in range(2):
        A(f"s_add_u32 s43, s{sW}, {8*ii}", "s_add_u32 s44, s18, s43", "s_sub_u32 s44, s44, 8", "s_max_i32 s44, s44, 0",
          "s_lshl_b32 s44, s44, 10", "s_add_u32 s44, s44, s21", f"s_add_u32 s{54+ii}, s44, {KF}")
    A(f"s_lshl_b32 s56, s{sW}, 10", "s_add_u32 s57, s56, s20", f"s_add_u32 s57, s57, {KF}")
    OBz=OA0
    for i in range(16): A(f"v_mov_b32 v{OBz+i}, 0")
    for i in range(4): A(f"v_mov_b32 v{P+4+i}, 0")
    sync1(A,ST,opt)
    A(f"buffer_load_dwordx4 {vr(QB,4)}, v{vL16}, {W_}, s22 offen{SC}")
    if 'fine2' in opt:
        A("s_waitcnt vmcnt(0)"); ST.rt("qb_landed")
    for ii in range(2):
        A(f"s_add_u32 m0, s56, {LDS_KB+8192*ii}", f"s_add_u32 s45, s{54+ii}, {VF-KF}", f"buffer_load_dwordx4 v{vL16}, {W_}, s{54+ii} offen{SC} lds")
        A(f"s_add_u32 m0, s56, {LDS_VB+8192*ii}", "s_nop 0", f"buffer_load_dwordx4 v{vL16}, {W_}, s45 offen{SC} lds")
    A(f"buffer_load_dwordx4 {vr(QA0,4)}, v{vL16}, {W_}, s23 offen{SC}", f"buffer_load_dwordx4 {vr(QA1,4)}, v{vL16}, {W_}, s23 offen offset:1024{SC}")
    def adma(m):
        return [f"s_add_u32 m0, s56, {LDS_KA+m*8192}", f"s_add_u32 s45, s57, {m*8192}", f"buffer_load_dwordx4 v{vL16}, {W_}, s45 offen{SC} lds",
                f"s_add_u32 m0, s56, {LDS_VA+m*8192}", f"s_add_u32 s45, s57, {VF-KF+m*8192}", f"buffer_load_dwordx4 v{vL16}, {W_}, s45 offen{SC} lds"]
    global ADMA; ADMA=adma
    A(f"s_cmp_lg_u32 s{sJ}, 0", "s_cbranch_scc1 A_dma_skip")
    for m in range(8): A(adma(m))
    A("s_waitcnt vmcnt(18)", "s_branch A_dma_join")
    A("A_dma_skip:", "s_waitcnt vmcnt(2)", "A_dma_join:")
    if 'fine2' in opt:
        ST.rt("own_b"); A("s_barrier"); ST.rt("b_data"); ST.flush(2); A("s_waitcnt vmcnt(0)", "s_endpgm"); ST.on=False
    OB=OA0
    A("s_barrier")
    ST.rt("b_data")
    def ldK(t,base): return [f"ds_read_b128 {vr(KB_+4*(t%2),4)}, v{base} offset:{t*1024}"]
    def ldV(t,base): return MK+[f"ds_read_b128 {vr(VB_+8*(t%2),4)}, v{base} offset:{t*1024}", f"ds_read_b128 {vr(VB_+8*(t%2)+4,4)}, v{base} offset:{t*1024+512}"]+UM
    NB=9
    A("s_mov_b32 s51, 1", f"s_cmp_eq_u32 s{sJ}, 0", "s_cselect_b32 s50, 0, 1", "s_sub_u32 s53, 8, s17", "s_cselect_b32 s53, s53, 0")
    A.L.pop()
    A(f"s_cmp_eq_u32 s{sJ}, 0", "s_cselect_b32 s53, s53, 0")
    A("s_sub_u32 s52, 9, s53")
    A("s_lshl_b32 s43, s53, 10", f"v_add_u32 v{vKs}, s43, v{vKa}", f"v_add_u32 v{vVs}, s43, v{vVa}")
    for s0 in range(NB):
        A(f"s_cmp_eq_u32 s53, {s0}", f"s_cbranch_scc1 B_pro{s0}")
    for s0 in range(NB-1,-1,-1):
        A(f"B_pro{s0}:")
        Sc=S0 if s0%2==0 else S1
        C = MF if s0==0 else (MD if s0==NB-1 else "0")
        A(ldK(s0,vKa), "s_waitcnt lgkmcnt(0)", mfma32(Sc, KB_+4*(s0%2), QB, C))
        if s0==0:
            A(ldV(0,vVa), ldK(1,vKa))
        else:
            if s0+1<NB: A(ldK(s0+1,vKa))
            A(ldV(s0,vVa))
        A("s_nop 7","s_nop 3")
        if s0!=0: A(f"s_branch B_step{s0}")
    for t in range(NB):
        A(f"B_step{t}:")
        Sc=S0 if t%2==0 else S1; Sn=S1 if t%2==0 else S0
        if t+1<NB:
            QK=[mfma32(Sn, KB_+4*((t+1)%2), QB, MD if t+1==NB-1 else "0")]
            wK=["s_waitcnt lgkmcnt(0)"] if t==0 else ["s_waitcnt lgkmcnt(2)"]
        else: QK=[]; wK=[]
        PV1=[mfma32(OB, VB_+8*((t-1)%2)+4, P+4, OB)] if t>0 else []
        ld=[]
        if t+2<NB: ld+=ldK(t+2,vKa)
        if t+1<NB: ld+=ldV(t+1,vVa)
        nld=(1 if t+2<NB else 0)+(2 if t+1<NB else 0)
        wV=[f"s_waitcnt lgkmcnt({nld})"]
        PV0=[mfma32(OB, VB_+8*(t%2), P, OB)]
        if t<8: ld=ld+ADMA(t)
        unit(A,Sc,QK,PV1,ld,wK,wV,PV0)
    A("s_nop 1", mfma32(OB, VB_+8*((NB-1)%2)+4, P+4, OB))
    A("s_nop 7","s_nop 3")
    check_range(A,OB,"B_ok")
    slow_pass(A,"bf1",QB,OB,True,50,51,52)
    slow_pass(A,"bf2",QB,OB,False,50,51,52)
    bcast_l(A,OB)
    A("B_ok:")
    finalize(A,OB,33)
    ST.rt("b_done")
    A("s_waitcnt vmcnt(1)", "s_barrier")
    ST.rt("a_start")
    if 'dup' in opt: A("s_mov_b32 s54, 2", "A_dup:")
    A("s_lshl_b32 s43, s16, 15", f"v_add_u32 v{vKa}, s43, v{vL16}", f"s_add_u32 s44, s43, {LDS_VA}", f"v_add_u32 v{vVa}, s44, v{VL}")
    for i in range(32): A(f"v_mov_b32 v{OA0+i}, 0")
    for i in range(4): A(f"v_mov_b32 v{P+4+i}, 0")
    Qr=[QA0,QA1]; Or=[OA0,OA1]
    A(ldK(0,vKa), ldV(0,vVa), "s_waitcnt lgkmcnt(2)", mfma32(S0, KB_, QA0, "0"))
    vFv=112; vFz=113; vFa=114; vFb=115
    A(f"s_lshl_b32 s34, s{sJ}, 10", f"s_lshl_b32 s35, s{sH}, 5", "s_add_u32 s34, s34, s35", f"s_lshl_b32 s35, s{sW}, 2", "s_add_u32 s34, s34, s35",
      f"s_add_u32 s35, s34, {FL+FL_F2A}", f"s_add_u32 s34, s34, {FL+FL_F2B}")
    A(f"v_mov_b32 v{vFv}, s{sNONCE}", f"v_mov_b32 v{vFz}, 0")
    A(f"v_lshrrev_b32 v{vFa}, 1, v{LANE}", f"v_lshlrev_b32 v{vFa}, 5, v{vFa}", f"v_and_b32 v{vT}, 1, v{LANE}", f"v_lshl_add_u32 v{vFa}, v{vT}, 4, v{vFa}",
      f"s_and_b32 s36, s{sI}, 3", "s_lshl_b32 s36, s36, 2", f"v_add_u32 v{vFa}, s36, v{vFa}", f"s_lshl_b32 s36, s{sX}, 10", f"s_add_u32 s36, s36, {FL+FL_F2B}")
    A("s_mov_b32 s53, 4", "s_setprio 3", "s_nop 7", "s_nop 1")
    A(".p2align 3", "A_loop:")
    A("s_cmp_eq_u32 s53, 3", "s_cbranch_scc1 A_it1", "s_cmp_eq_u32 s53, 2", "s_cbranch_scc1 A_it2", "s_cmp_eq_u32 s53, 1", "s_cbranch_scc1 A_it3", "A_body:")
    NK=8
    units=[(t,qi) for t in range(NK) for qi in range(2)]
    for u,(t,qi) in enumerate(units):
        Sc=S0 if u%2==0 else S1; Sn=S1 if u%2==0 else S0
        tn,qn=(t,1) if qi==0 else (t+1,0)
        tp,qp=(t-1,1) if qi==0 else (t,0)
        QK=[mfma32(Sn, KB_+4*(tn%2), Qr[qn], "0")]
        PV1=[mfma32(Or[qp], VB_+8*(tp%2)+4, P+4, Or[qp])]
        PV0=[mfma32(Or[qi], VB_+8*(t%2), P, Or[qi])]
        ld=[];wK=[];wV=[]
        if qi==0: ld=ldK(t+1,vKa)+ldV(t+1,vVa); wV=["s_waitcnt lgkmcnt(3)"]
        else: wK=["s_waitcnt lgkmcnt(2)"]
        unit(A,Sc,QK,PV1,ld,wK,wV,PV0)
    A(f"v_add_u32 v{vKa}, {NK*1024}, v{vKa}", f"v_add_u32 v{vVa}, {NK*1024}, v{vVa}")
    A("s_sub_u32 s53, s53, 1", "s_cmp_lg_u32 s53, 0", "s_cbranch_scc1 A_loop")
    A("s_branch A_after")
    A("A_it1:", "s_setprio 2", "s_waitcnt vmcnt(0)", "s_mov_b64 exec, 1", f"buffer_store_dword v{vFv}, v{vFz}, {W_}, s34 offen sc1", "s_mov_b64 exec, -1")
    if 'wbl2' in opt:
        A(f"s_cmp_lg_u32 s{sI}, 0", "s_cbranch_scc1 A_body", f"s_cmp_lg_u32 s{sW}, 0", "s_cbranch_scc1 A_body", "buffer_wbl2 sc1")
    A("s_branch A_body")
    A("A_it2:", "s_setprio 1", "s_branch A_body")
    A("A_it3:", "s_setprio 0", f"buffer_load_dword v{vFb}, v{vFa}, {W_}, s36 offen sc1", "s_branch A_body")
    A("A_after:")
    A(mfma32(OA1, VB_+8*((NK-1)%2)+4, P+4, OA1))
    A("s_waitcnt lgkmcnt(0)", "s_nop 7", "s_nop 3")
    if 'dup' in opt: A("s_sub_u32 s54, s54, 1", "s_cmp_lg_u32 s54, 0", "s_cbranch_scc1 A_dup")
    ST.rt("a_loop")
    A("s_cmp_eq_u32 s16, 0", "s_cbranch_scc1 A_X0")
    for i in range(9): A(f"v_mov_b32 v{vT}, v{OA0+i}", f"v_mov_b32 v{OA0+i}, v{OA1+i}", f"v_mov_b32 v{OA1+i}, v{vT}")
    A("A_X0:")
    A(f"s_mul_i32 s43, s{sW}, 2560", f"s_add_u32 s43, s43, {LDS_KB}", f"v_add_u32 v{vT}, s43, v{vL16}",
      f"v_lshlrev_b32 v{vT2}, 2, v{LANE}", f"v_add_u32 v{vT2}, s43, v{vT2}")
    A(f"ds_write_b128 v{vT}, {vr(OA1,4)}", f"ds_write_b128 v{vT}, {vr(OA1+4,4)} offset:1024", f"ds_write_b32 v{vT2}, v{OA1+8} offset:2048")
    A(f"s_xor_b32 s44, s{sW}, 4", "s_mul_i32 s43, s44, 2560", f"s_add_u32 s43, s43, {LDS_KB}", f"v_add_u32 v{vT}, s43, v{vL16}",
      f"v_lshlrev_b32 v{vT2}, 2, v{LANE}", f"v_add_u32 v{vT2}, s43, v{vT2}")
    A("s_waitcnt lgkmcnt(0)", "s_barrier")
    A(f"ds_read_b128 {vr(S0,4)}, v{vT}", f"ds_read_b128 {vr(S0+4,4)}, v{vT} offset:1024", f"ds_read_b32 v{S0+8}, v{vT2} offset:2048")
    A("s_waitcnt lgkmcnt(0)")
    for i in range(9): A(f"v_add_f32 v{OA0+i}, v{OA0+i}, v{S0+i}")
    check_range(A,OA0,"A_ok")
    A("s_cmp_eq_u32 s16, 0", "s_cbranch_scc1 A_F0")
    for i in range(4): A(f"v_mov_b32 v{QA0+i}, v{QA1+i}")
    A("A_F0:")
    A("s_mov_b32 s50, 0", "s_mov_b32 s51, 0", "s_mov_b32 s52, 64")
    A(f"v_add_u32 v{vKs}, {LDS_KA}, v{vL16}", f"v_add_u32 v{vVs}, {LDS_VA}, v{VL}")
    slow_pass(A,"af1",QA0,OA0,True,50,51,52)
    slow_pass(A,"af2",QA0,OA0,False,50,51,52)
    bcast_l(A,OA0)
    A("A_ok:")
    finalize(A,OA0,32)

def phase3(A, ST, opt):
    W_=f"s[{SRD_WS}:{SRD_WS+3}]"
    lane=LANE
    vFv=112; vFz=113; vFa=114; vFb=115
    srd(A,SRD_A,pWOA,512*512*2); srd(A,SRD_B,pWOB,512*512*2); srd(A,SRD_C,pOUT,2048*512*2)
    A(f"s_and_b32 s50, s{sI}, 3", f"s_lshr_b32 s51, s{sI}, 2")
    A(f"s_and_b32 s52, s{sW}, 1", f"s_bfe_u32 s53, s{sW}, 0x10001", f"s_lshr_b32 s54, s{sW}, 2")
    vW=4
    A(f"v_lshrrev_b32 v5, 3, v{lane}", "v_lshlrev_b32 v5, 10, v5", f"v_bfe_u32 v6, v{lane}, 4, 1", "v_lshlrev_b32 v6, 2, v6", f"v_and_b32 v7, 7, v{lane}",
      "v_xor_b32 v6, v6, v7", "v_lshl_add_u32 v5, v6, 4, v5", "s_lshl_b32 s42, s51, 7", f"v_add_u32 v{vW}, s42, v5", f"v_lshlrev_b32 v3, 4, v{lane}")
    A(f"s_and_b32 s43, s{sW}, 3", "s_lshl_b32 s43, s43, 17", f"s_lshl_b32 s44, s{sW}, 14", f"s_cmp_ge_u32 s{sW}, 4",
      f"s_cselect_b32 s{SRD_A}, s{SRD_B}, s{SRD_A}", f"s_cselect_b32 s{SRD_A+1}, s{SRD_B+1}, s{SRD_A+1}")
    A("s_barrier")
    A("s_mov_b32 s46, 4", "P3_wdma:")
    for ii in range(4):
        A(f"s_add_u32 m0, s44, {ii*1024}", f"s_add_u32 s45, s43, {ii*8192}", f"buffer_load_dwordx4 v{vW}, s[{SRD_A}:{SRD_A+3}], s45 offen lds")
    A("s_add_u32 s44, s44, 4096", "s_add_u32 s43, s43, 32768", "s_sub_u32 s46, s46, 1", "s_cmp_lg_u32 s46, 0", "s_cbranch_scc1 P3_wdma")
    A("s_waitcnt vmcnt(17)", f"s_mov_b32 s46, {SPIN_MAX}")
    A("P3_bchk:", f"v_cmp_ne_u32 vcc, s{sNONCE}, v{vFb}", "s_nop 1", "s_cmp_eq_u64 vcc, 0", "s_cbranch_scc1 P3_bok",
      "s_sub_u32 s46, s46, 1", "s_cmp_eq_u32 s46, 0", "s_cbranch_scc1 P3_bok", "s_sleep 1",
      f"buffer_load_dword v{vFb}, v{vFa}, {W_}, s36 offen sc1", "s_waitcnt vmcnt(0)", "s_branch P3_bchk", "P3_bok:")
    OB_=128; WA=192
    A(f"s_lshl_b32 s42, s{sX}, 3", "s_lshl_b32 s43, s50, 1", "s_add_u32 s42, s42, s43", "s_lshl_b32 s55, s42, 16", f"s_add_u32 s55, s55, {OF}")
    A("s_lshl_b32 s43, s52, 16", "s_add_u32 s42, s55, s43", "s_lshl_b32 s43, s54, 14", "s_add_u32 s42, s42, s43", "s_add_u32 s42, s42, 32768")
    A("s_waitcnt vmcnt(16)")
    A("s_mov_b64 exec, 1", f"buffer_store_dword v{vFv}, v{vFz}, {W_}, s35 offen sc1", "s_mov_b64 exec, -1")
    ST.rt("o_stored")
    for n in range(16):
        if n%4==0 and n: A("s_add_u32 s42, s42, 4096")
        A(f"buffer_load_dwordx4 {vr(OB_+4*n,4)}, v3, {W_}, s42 offen offset:{(n%4)*1024} sc1")
    A(f"v_and_b32 v12, 31, v{lane}", f"s_lshl_b32 s44, s{sX}, 8", "s_lshl_b32 s45, s50, 6", "s_add_u32 s44, s44, s45", "s_lshl_b32 s45, s52, 5", "s_add_u32 s44, s44, s45",
      "v_add_u32 v12, s44, v12", "v_lshlrev_b32 v13, 2, v12", f"s_mov_b32 s45, {GOFF}", f"buffer_load_dword v14, v13, {W_}, s45 offen sc1")
    A(f"v_lshrrev_b32 v8, 5, v{lane}",
      f"v_bfe_u32 v5, v{lane}, 2, 2", "v_lshl_add_u32 v5, v8, 2, v5", "v_lshlrev_b32 v5, 7, v5",
      f"v_bfe_u32 v6, v{lane}, 4, 1", "v_lshlrev_b32 v6, 1, v6", f"v_bfe_u32 v7, v{lane}, 1, 1", "v_add_u32 v6, v6, v7",
      "s_lshl_b32 s42, s53, 2", "v_add_u32 v6, s42, v6",
      f"v_bfe_u32 v7, v{lane}, 3, 1", "v_lshlrev_b32 v7, 2, v7", "v_xor_b32 v6, v6, v7", "v_lshl_add_u32 v5, v6, 4, v5",
      f"v_and_b32 v7, 1, v{lane}", "v_lshl_add_u32 v5, v7, 3, v5",
      "s_lshl_b32 s42, s54, 15", "v_add_u32 v10, s42, v5", "v_add_u32 v11, 0x10000, v10")
    ACA=16; ACB=48; WR=[32,36,40,44]
    for i in range(16): A(f"v_mov_b32 v{ACB+i}, 0", f"v_mov_b32 v{ACA+i}, 0")
    A("s_waitcnt vmcnt(18)", "s_barrier")
    ST.rt("w_landed")
    def wrd(dst, base, n): return [f"ds_read_b64_tr_b16 {vr(dst,2)}, v{base} offset:{(16*n)*128}", f"ds_read_b64_tr_b16 {vr(dst+2,2)}, v{base} offset:{(16*n+8)*128}"]
    for n in range(3): A(wrd(WR[n],11,n))
    for n in range(16):
        if n+3<16: A(wrd(WR[(n+3)%4],11,n+3))
        A(f"s_waitcnt lgkmcnt({2*min(3,15-n)}) vmcnt({16-n})")
        A(mfma32(ACB, WR[n%4], OB_+4*n, ACB))
    for n in range(16):
        A(wrd(WA+4*n,10,n))
        if n%4==3: A("s_waitcnt lgkmcnt(4)")
    A("s_waitcnt lgkmcnt(0)")
    ST.rt("b_half")
    A(f"s_add_u32 s36, s36, {FL_F2A-FL_F2B}")
    A(f"s_cmp_lg_u32 s{sW}, 0", "s_cbranch_scc1 P3_askip", f"s_mov_b32 s46, {SPIN_MAX}")
    A("P3_achk:", f"buffer_load_dword v{vFb}, v{vFa}, {W_}, s36 offen sc1", "s_waitcnt vmcnt(0)",
      f"v_cmp_ne_u32 vcc, s{sNONCE}, v{vFb}", "s_nop 1", "s_cmp_eq_u64 vcc, 0", "s_cbranch_scc1 P3_askip",
      "s_sub_u32 s46, s46, 1", "s_cmp_eq_u32 s46, 0", "s_cbranch_scc1 P3_askip", "s_branch P3_achk", "P3_askip:")
    A("s_barrier")
    ST.rt("p2_flags")
    A("s_cmp_lg_u32 s2, 0", "s_cbranch_scc1 P3_noep", f"s_mov_b32 s43, {FL+FL_EPOCH}")
    setflag(A,"ep",43,5)
    A("P3_noep:")
    A("s_lshl_b32 s43, s52, 15", "s_lshl_b32 s44, s53, 14", "s_add_u32 s43, s43, s44", "s_lshl_b32 s44, s54, 12", "s_add_u32 s43, s43, s44", "s_add_u32 s43, s43, 0x10000")
    A("s_lshl_b32 s42, s52, 16", "s_add_u32 s42, s42, s55", "s_lshl_b32 s44, s53, 14", "s_add_u32 s42, s42, s44", "s_lshl_b32 s44, s54, 12", "s_add_u32 s42, s42, s44")
    for r in range(2):
        for ii in range(4):
            A(f"s_add_u32 m0, s43, {r*8192+ii*1024}", f"s_add_u32 s45, s42, {r*8192+ii*1024}", f"buffer_load_dwordx4 v3, {W_}, s45 offen sc1 lds")
    OFr=[64,68,72,76]
    A("s_lshl_b32 s43, s52, 15", "s_lshl_b32 s44, s54, 14", "s_add_u32 s43, s43, s44", "s_add_u32 s43, s43, 0x10000", "v_add_u32 v11, s43, v3")
    for r in range(2):
        A(f"s_waitcnt vmcnt({4-4*r})", "s_barrier")
        for s_ in range(4): A(f"ds_read_b128 {vr(OFr[s_],4)}, v11 offset:{(8*r+s_)*1024}")
        for s_ in range(8):
            n=8*r+s_
            A(f"s_waitcnt lgkmcnt({3 if s_<5 else 7-s_})")
            A(mfma32(ACA, WA+4*n, OFr[s_%4], ACA))
            if s_<4: A(f"ds_read_b128 {vr(OFr[s_%4],4)}, v11 offset:{(8*r+s_+4)*1024}")
    ST.rt("p3_mfma")
    A("s_nop 7","s_nop 3")
    for i in range(16): A(f"v_sub_f32 v{ACA+i}, v{ACA+i}, v{ACB+i}")
    for i in range(16): A(f"v_fma_f32 v{ACA+i}, v14, v{ACA+i}, v{ACB+i}")
    ACC=ACA
    A(f"s_lshl_b32 s43, s{sW}, 11", "v_add_u32 v5, s43, v3", f"s_xor_b32 s44, s{sW}, 4", "s_lshl_b32 s44, s44, 11", "v_add_u32 v6, s44, v3")
    A("s_cmp_eq_u32 s54, 0", "s_cbranch_scc1 P3_k0")
    for i in range(8): A(f"v_mov_b32 v7, v{ACC+i}", f"v_mov_b32 v{ACC+i}, v{ACC+8+i}", f"v_mov_b32 v{ACC+8+i}, v7")
    A("P3_k0:")
    A(f"ds_write_b128 v5, {vr(ACC+8,4)}", f"ds_write_b128 v5, {vr(ACC+12,4)} offset:1024", "s_waitcnt lgkmcnt(0)", "s_barrier")
    A(f"ds_read_b128 {vr(32,4)}, v6", f"ds_read_b128 {vr(36,4)}, v6 offset:1024", "s_waitcnt lgkmcnt(0)")
    for i in range(8): A(f"v_add_f32 v{ACC+i}, v{ACC+i}, v{32+i}")
    PK=40
    for i in range(4): A(f"v_cvt_pk_bf16_f32 v{PK+i}, v{ACC+2*i}, v{ACC+2*i+1}")
    A("s_nop 1", f"v_permlane32_swap_b32 v{PK}, v{PK+2}", f"v_permlane32_swap_b32 v{PK+1}, v{PK+3}")
    A("v_lshlrev_b32 v5, 10, v12", "v_lshl_add_u32 v5, v8, 4, v5",
      "s_lshl_b32 s42, s51, 7", "s_lshl_b32 s43, s53, 6", "s_add_u32 s42, s42, s43", "s_lshl_b32 s43, s54, 5", "s_add_u32 s42, s42, s43")
    A(f"buffer_store_dwordx4 {vr(PK,4)}, v5, s[{SRD_C}:{SRD_C+3}], s42 offen")

def gen(opt=()):
    A=Asm(); ST=Stamps(A,'stamps' in opt)
    A(f".globl {NAME}", ".p2align 8", f".type {NAME},@function", f"{NAME}:")
    A("s_cmp_ge_u32 s2, 256", "s_cbranch_scc1 L_done")
    if 'scramble' in opt: A("s_lshr_b32 s3, s2, 3", "s_and_b32 s2, s2, 7", "s_lshl_b32 s2, s2, 5", "s_or_b32 s2, s2, s3")
    A(f"s_load_dwordx2 s[{sWS}:{sWS+1}], s[0:1], 72", "s_load_dwordx2 s[42:43], s[0:1], 0", "s_load_dwordx2 s[44:45], s[0:1], 8",
      "s_load_dwordx2 s[46:47], s[0:1], 32", "s_load_dwordx2 s[48:49], s[0:1], 48",
      f"s_load_dwordx2 s[{pWOA}:{pWOA+1}], s[0:1], 16", f"s_load_dwordx2 s[{pWOB}:{pWOB+1}], s[0:1], 40", f"s_load_dwordx2 s[{pOUT}:{pOUT+1}], s[0:1], 56")
    rot=[int(o[3:]) for o in opt if o.startswith('rot')]
    if rot: A(f"s_add_u32 s{sX}, s2, {rot[0]}", f"s_and_b32 s{sX}, s{sX}, 7")
    else: A(f"s_and_b32 s{sX}, s2, 7")
    A(f"s_lshr_b32 s{sI}, s2, 3", f"s_lshr_b32 s{sJ}, s{sI}, 2", f"s_and_b32 s{sA}, s{sI}, 3",
      f"s_lshr_b32 s{sBR}, s{sA}, 1", f"s_and_b32 s50, s{sA}, 1", f"s_lshl_b32 s{sRB}, s{sJ}, 1", f"s_add_u32 s{sRB}, s{sRB}, s50",
      f"s_lshl_b32 s{sH}, s{sX}, 2", f"s_add_u32 s{sH}, s{sH}, s{sA}")
    A("v_lshrrev_b32 v1, 6, v0", "v_and_b32 v2, 63, v0", "s_nop 0", f"v_readfirstlane_b32 s{sW}, v1")
    if 'pf' in opt:
        A("s_getpc_b64 s[50:51]", "L_pc:", f"s_sub_u32 s50, s50, (L_pc-{NAME})", "s_subb_u32 s51, s51, 0")
        A(f"s_lshl_b32 s52, s{sI}, 1", f"s_add_u32 s52, s52, s{sW}", "s_lshl_b32 s52, s52, 10", "v_lshlrev_b32 v3, 4, v2", "v_add_u32 v3, s52, v3")
        A(f"s_cmp_lt_u32 s{sW}, 2", "s_cbranch_scc0 L_nopf", f"s_cmp_lt_u32 s52, (L_done-{NAME}-1024)", "s_cbranch_scc0 L_nopf",
          "global_load_dwordx4 v[252:255], v3, s[50:51]", "L_nopf:")
    if 'spin60' in opt: A("s_memrealtime s[90:91]")
    A("s_waitcnt lgkmcnt(0)")
    ST.rt("start"); ST.cyc("cyc0")
    A(f"s_add_u32 s6, s{sWS}, {FL+FL_EPOCH}", f"s_addc_u32 s7, s{sWS+1}, 0", "s_load_dword s3, s[6:7], 0")
    srd(A,SRD_WS,sWS,WS_SIZE)
    srd(A,SRD_A,42,2048*512*2)
    A(f"s_cmp_eq_u32 s{sBR}, 0", "s_cselect_b32 s44, s44, s46", "s_cselect_b32 s45, s45, s47")
    srd(A,SRD_B,44,512*1536*2)
    srd(A,SRD_C,48,1024)
    phase1(A,ST,opt)
    phase2(A,ST,opt)
    phase3(A,ST,opt)
    if 'spin60' in opt:
        A("s_waitcnt vmcnt(0)", "L_spin:", "s_memrealtime s[80:81]", "s_waitcnt lgkmcnt(0)", "s_sub_u32 s80, s80, s90", "s_cmp_lt_u32 s80, 6000", "s_cbranch_scc1 L_spin")
    if ST.on: A("s_waitcnt vmcnt(0)")
    ST.rt("end"); ST.cyc("cyc1")
    ST.flush(120)
    A("L_done:", "s_endpgm")
    kd=f""".section .rodata,"a"
.p2align 6
.amdhsa_kernel {NAME}
  .amdhsa_next_free_vgpr 256
  .amdhsa_next_free_sgpr 102
  .amdhsa_accum_offset 256
  .amdhsa_group_segment_fixed_size 0
  .amdhsa_kernarg_size 80
  .amdhsa_user_sgpr_count 2
  .amdhsa_user_sgpr_kernarg_segment_ptr 1
  .amdhsa_system_sgpr_workgroup_id_x 1
.end_amdhsa_kernel
"""
    return A.text(), kd, ST.names

if __name__=='__main__':
    import sys, hazard
    out=sys.argv[1]; opt=tuple(sys.argv[2:])
    HDR=open('gated_mix__softmax_full_mha__sliding_block__prompt.s.ref').read().split('\n')
    hdr=[l for l in HDR if l.startswith(';') and 'launch' not in l.lower() and 'Override' not in l and 'grid=ceil' not in l]
    t,kd,names=gen(opt)
    s='\n'.join(hdr)+'\n'+"; @launch grid=(256,1,1) block=(512,1,1) lds=163840\n"+'.amdgcn_target "amdgcn-amd-amdhsa--gfx950"\n.text\n'+t+kd
    open(out,'w').write(s)
    print('hazards',len(hazard.check(t)),'bytes',len(s),'stamps',','.join(names))
    sys.path.insert(0,'cdna_kernels')
    import subprocess
    from cdna_launch import with_harness_metadata, address_register_problem
    open('h.s','w').write(with_harness_metadata(s,NAME,10,launch_lists=True))
    r=subprocess.run(['clang','-x','assembler','-target','amdgcn-amd-amdhsa','-mcpu=gfx950','h.s','-o','h.co'],capture_output=True,text=True)
    if r.returncode: print(r.stderr)
    else:
        print('check:',address_register_problem('h.co',NAME))
        d=subprocess.run(['llvm-objdump','-d','--mcpu=gfx950','h.co'],capture_output=True,text=True).stdout
        import re
        ad=[int(m,16) for m in re.findall(r'// ([0-9A-F]{12}):',d)]
        print('code bytes',ad[-1]-ad[0]-768)
```

```python
from asm import Asm, vr, sr, mfma32
import struct
def f2u(x): return struct.unpack('<I',struct.pack('<f',x))[0]
NAME="gated_mix__softmax_full_mha__sliding_block__prompt_kernel"
QF=0; KF=4<<20; VF=8<<20; GOFF=12<<20; OF=16<<20; FL=30<<20; WS_SIZE=31<<20
FL_EPOCH=0; FL_F0=1024; FL_F1=2048; FL_F2=8192; FL_F2B=16384; FL_F2A=32768
FSTR=16
F1STR=4
STAMP_OFF=32<<20
QSCALE=0.25*1.4426950408889634
NEG=f2u(-2.0**100); LLO=f2u(2.0**-64); LHI=f2u(2.0**64)
SPIN_MAX=1<<20
sNONCE=3; sWS=4
SRD_WS=8; SRD_A=12; SRD_B=16; SRD_C=20; SRD_PT=56
sW=24; sX=25; sI=26; sJ=27; sA=28; sBR=29; sRB=30; sH=31
sMASK=40
sXCC=37; sMODE=39
pWOA=84; pWOB=86; pOUT=88

class Stamps:
    def __init__(s, A, on): s.A=A; s.on=on; s.n=0; s.names=[]; s.skip=('p1_stored',)
    def rt(s,name):
        if not s.on or name in s.skip: return
        s.A("s_memrealtime s[80:81]", "s_waitcnt lgkmcnt(0)", f"s_mov_b32 s{64+s.n}, s80"); s.names.append(name); s.n+=1
    def cyc(s,name):
        if not s.on: return
        s.A("s_memtime s[80:81]", "s_waitcnt lgkmcnt(0)", f"s_mov_b32 s{64+s.n}, s80"); s.names.append(name); s.n+=1
    def flush(s, vtmp):
        if not s.on: return
        A=s.A
        A(f"s_mov_b32 s92, s{sWS}", f"s_mov_b32 s93, s{sWS+1}", "s_mov_b32 s94, 0x10000000", "s_mov_b32 s95, 0x00020000")
        A(f"s_lshl_b32 s80, s2, 3", f"s_add_u32 s80, s80, s{sW}", "s_lshl_b32 s80, s80, 6", f"s_add_u32 s80, s80, {STAMP_OFF}")
        for i in range(s.n):
            A(f"v_mov_b32 v{vtmp}, s{64+i}", f"v_mov_b32 v{vtmp+1}, {4*i}", f"buffer_store_dword v{vtmp}, v{vtmp+1}, s[92:95], s80 offen")

def srd(A, s, base, size):
    A(f"s_mov_b32 s{s}, s{base}", f"s_mov_b32 s{s+1}, s{base+1}", f"s_mov_b32 s{s+2}, {size}", f"s_mov_b32 s{s+3}, 0x00020000")

def poll(A, tag, flag_off_sgpr, vaddr, vtmp, stride=FSTR):
    A(f"s_cmp_lg_u32 s{sW}, 0", f"s_cbranch_scc1 L_{tag}_skip")
    A(f"v_and_b32 v{vaddr}, 31, v0", f"v_mul_u32_u24 v{vaddr}, {stride}, v{vaddr}", f"s_mov_b32 s42, {SPIN_MAX}")
    A(f"L_{tag}_loop:")
    A(f"buffer_load_dword v{vtmp}, v{vaddr}, s[{SRD_WS}:{SRD_WS+3}], s{flag_off_sgpr} offen sc1")
    A("s_waitcnt vmcnt(0)")
    A(f"v_cmp_ne_u32 vcc, s{sNONCE}, v{vtmp}", "s_nop 1", "s_cmp_eq_u64 vcc, 0", f"s_cbranch_scc1 L_{tag}_skip")
    A("s_sub_u32 s42, s42, 1", "s_cmp_eq_u32 s42, 0", f"s_cbranch_scc1 L_{tag}_skip", "s_sleep 1", f"s_branch L_{tag}_loop")
    A(f"L_{tag}_skip:")

def setflag(A, tag, off_sgpr, vt, sc=" sc1"):
    A(f"s_cmp_lg_u32 s{sW}, 0", f"s_cbranch_scc1 L_{tag}_nf")
    A(f"v_mov_b32 v{vt}, s{sNONCE}", f"v_mov_b32 v{vt+1}, 0", "s_mov_b64 exec, 1",
      f"buffer_store_dword v{vt}, v{vt+1}, s[{SRD_WS}:{SRD_WS+3}], s{off_sgpr} offen{sc}", "s_mov_b64 exec, -1")
    A(f"L_{tag}_nf:")

def mfma16(d,a,b,c): return f"v_mfma_f32_16x16x32_bf16 {vr(d,4)}, {vr(a,4)}, {vr(b,4)}, {vr(c,4)}"
def phase1(A, ST, opt):
    lane=2; vX=3; vX2=27; vW=4; t0=5; t1=6; t2=7; g_t=8
    W_=f"s[{SRD_WS}:{SRD_WS+3}]"
    GX=192; GW=196; GA=120
    PT=200; vF0=206; F0V=204
    PTF="sc1 nt"
    DIST=3
    A(f"v_lshlrev_b32 v24, 4, v{lane}", "s_lshl_b32 s42, s2, 3", f"s_add_u32 s42, s42, s{sW}", "s_lshl_b32 s42, s42, 10",
      f"buffer_load_dwordx4 {vr(GX,4)}, v24, s[{SRD_A}:{SRD_A+3}], s42 offen", f"buffer_load_dwordx4 {vr(GW,4)}, v24, s[{SRD_C}:{SRD_C+3}], 0 offen")
    A(f"v_lshrrev_b32 v{t0}, 3, v{lane}", f"s_lshl_b32 s42, s{sW}, 3", f"v_add_u32 v{t0}, s42, v{t0}",
      f"v_bfe_u32 v{t1}, v{t0}, 1, 3", f"v_and_b32 v{t2}, 7, v{lane}", f"v_xor_b32 v{t1}, v{t1}, v{t2}",
      f"s_lshl_b32 s43, s{sRB}, 7", f"v_add_u32 v{vX}, s43, v{t0}", f"v_lshlrev_b32 v{vX}, 10, v{vX}",
      f"v_lshl_add_u32 v{vX}, v{t1}, 4, v{vX}", f"v_add_u32 v{vX2}, 0x10000, v{vX}")
    A(f"v_bfe_u32 v{t1}, v{lane}, 4, 1", f"s_and_b32 s42, s{sW}, 1", "s_lshl_b32 s42, s42, 1", f"v_or_b32 v{t1}, s42, v{t1}", f"v_lshlrev_b32 v{t1}, 1, v{t1}",
      f"v_xor_b32 v{t1}, v{t1}, v{t2}", f"v_mul_u32_u24 v{vW}, 3072, v{t0}", f"v_lshl_add_u32 v{vW}, v{t1}, 4, v{vW}",
      f"s_lshl_b32 s45, s{sX}, 7", f"v_add_u32 v{vW}, s45, v{vW}")
    STG=40960
    def dma_groups():
        L=[]
        L.append([f"s_mov_b32 m0, s46", "NOP", f"buffer_load_dwordx4 v{vX}, s[{SRD_A}:{SRD_A+3}], s47 offen lds"])
        L.append([f"s_add_u32 m0, s46, 8192", "NOP", f"buffer_load_dwordx4 v{vX2}, s[{SRD_A}:{SRD_A+3}], s47 offen lds"])
        for seg in range(3):
            L.append([f"s_add_u32 m0, s46, {16384+seg*8192-seg*1024}", "NOP", f"buffer_load_dwordx4 v{vW}, s[{SRD_B}:{SRD_B+3}], s48 offen offset:{seg*1024} lds"])
        return L
    def emit(g): A([("s_nop 0" if x=="NOP" else x) for x in g])
    A(f"s_lshl_b32 s46, s{sW}, 10", "s_mov_b32 s47, 0", "s_mov_b32 s48, 0")
    for g in dma_groups(): emit(g)
    A(f"s_add_u32 s46, s46, {STG}", "s_add_u32 s47, s47, 128", f"s_add_u32 s48, s48, {64*3072}")
    for g in dma_groups(): emit(g)
    A(f"s_and_b32 s34, s{sW}, 1", f"s_lshr_b32 s35, s{sW}, 1")
    A(f"s_lshl_b32 s42, s{sX}, 2", "s_add_u32 s42, s42, s35", f"s_lshl_b32 s43, s{sBR}, 5", "s_add_u32 s42, s42, s43",
      "s_lshl_b32 s42, s42, 16", f"s_lshl_b32 s43, s{sRB}, 1", "s_add_u32 s43, s43, s34", "s_lshl_b32 s43, s43, 11", "s_add_u32 s56, s42, s43")
    vPT=207
    A(f"v_lshrrev_b32 v{t0}, 4, v{lane}", f"v_lshlrev_b32 v{vPT}, 22, v{t0}", f"v_bfe_u32 v{t0}, v{lane}, 3, 1", f"v_lshl_add_u32 v{vPT}, v{t0}, 10, v{vPT}",
      f"v_and_b32 v{t0}, 7, v{lane}", f"v_lshl_add_u32 v{vPT}, v{t0}, 7, v{vPT}", f"v_cmp_gt_u32 vcc, 48, v{lane}", f"v_mov_b32 v{t0}, 0x7ffffff0", "s_nop 0",
      f"v_cndmask_b32 v{vPT}, v{t0}, v{vPT}, vcc")
    A(f"v_and_b32 v{vF0}, 31, v{lane}", f"v_lshlrev_b32 v{vF0}, 2, v{vF0}", f"v_lshrrev_b32 v{t0}, 5, v{lane}", f"v_lshl_add_u32 v{vF0}, v{t0}, 10, v{vF0}",
      f"s_lshl_b32 s58, s{sX}, 7", f"s_add_u32 s58, s58, {FL+FL_F0}", f"s_getreg_b32 s{sXCC}, hwreg(HW_REG_XCC_ID, 0, 4)")
    aX=[10,11]; aW=18; m=20
    A(f"v_lshrrev_b32 v{g_t}, 4, v{lane}", f"v_and_b32 v{m}, 15, v{lane}", f"v_lshrrev_b32 v{t0}, 1, v{m}",
      "s_lshl_b32 s42, s34, 6", f"v_add_u32 v{t1}, s42, v{m}", f"v_lshlrev_b32 v{t1}, 7, v{t1}")
    for s_ in range(2):
        A(f"v_or_b32 v{t2}, {4*s_}, v{g_t}", f"v_xor_b32 v{t2}, v{t2}, v{t0}", f"v_lshl_add_u32 v{aX[s_]}, v{t2}, 4, v{t1}")
    A(f"v_bfe_u32 v{t0}, v{lane}, 2, 2", f"v_lshl_add_u32 v{t1}, v{g_t}, 3, v{t0}", f"v_lshlrev_b32 v{t1}, 7, v{t1}",
      f"v_bfe_u32 v{t2}, v{lane}, 3, 1", f"v_bfe_u32 v21, v{lane}, 4, 1", f"v_lshl_or_b32 v{t2}, v21, 1, v{t2}", f"v_lshlrev_b32 v{t2}, 1, v{t2}",
      f"v_bfe_u32 v21, v{lane}, 1, 1", "s_lshl_b32 s42, s35, 1", "v_or_b32 v21, s42, v21", f"v_xor_b32 v{t2}, v{t2}, v21",
      f"v_lshl_add_u32 v{t1}, v{t2}, 4, v{t1}", f"v_and_b32 v21, 1, v{lane}", f"v_lshl_add_u32 v{t1}, v21, 3, v{t1}", f"v_add_u32 v{aW}, 16384, v{t1}")
    TQ=32; TK=48; TV=64
    XF=[80,96]; WF=[[112,116,120+4],[128,132,136]]
    WF=[[112,116,124],[128,132,136]]
    for i in range(48): A(f"v_mov_b32 v{TQ+i}, 0")
    def reads(s_):
        b=s_%2
        if 'p1noread' in opt: return []
        def w(seg): return [f"ds_read_b64_tr_b16 {vr(WF[b][seg]+2*rr,2)}, v{aW} offset:{seg*8192+(32*s_+4*rr)*128}" for rr in range(2)]
        def x(rt): return [f"ds_read_b128 {vr(XF[b]+4*rt,4)}, v{aX[s_]} offset:{rt*2048}"]
        return w(0)+x(0)+x(1)+w(1)+x(2)+x(3)+w(2)
    def mfmas(b):
        L=[]
        for rt in (0,1): L.append(mfma16(TQ+4*rt, WF[b][0], XF[b]+4*rt, TQ+4*rt))
        for rt in (0,1): L.append(mfma16(TK+4*rt, WF[b][1], XF[b]+4*rt, TK+4*rt))
        for rt in (2,3): L.append(mfma16(TQ+4*rt, WF[b][0], XF[b]+4*rt, TQ+4*rt))
        for rt in (2,3): L.append(mfma16(TK+4*rt, WF[b][1], XF[b]+4*rt, TK+4*rt))
        for rt in range(4): L.append(mfma16(TV+4*rt, XF[b]+4*rt, WF[b][2], TV+4*rt))
        if 'p1nomfma' in opt: L=["s_nop 0"]*12
        return L
    A("s_mov_b32 s49, 0", "s_mov_b32 s36, 0", f"s_mov_b32 s53, {STG}")
    if 'stag' not in opt: A("s_mov_b32 s60, 0")
    else: A(f"s_lshr_b32 s60, s{sW}, 2")
    A("s_cmp_eq_u32 s60, 0", "s_cselect_b32 s59, 5, 0", "s_cselect_b32 s61, 0, 5")
    A("s_waitcnt vmcnt(5)", "s_barrier")
    A("s_waitcnt lgkmcnt(0)", f"s_mul_i32 s{sNONCE}, s3, 0x9e3779b1", f"s_add_u32 s{sNONCE}, s{sNONCE}, 0x7f4a7c15")
    ST.rt("p1_data")
    A(reads(0))
    A(f"s_add_u32 s46, s46, {STG}", "s_add_u32 s47, s47, 128", f"s_add_u32 s48, s48, {64*3072}")
    for g in dma_groups(): emit(g)
    A(f"s_cmp_lg_u32 s{sW}, 0", "s_cbranch_scc1 L_f0_nf", f"s_add_u32 s42, s{sNONCE}, s{sXCC}", f"s_lshl_b32 s43, s{sI}, 2", "s_add_u32 s43, s43, s58",
      "v_mov_b32 v5, s42", "v_mov_b32 v6, 0", "s_mov_b64 exec, 1", f"buffer_store_dword v5, v6, {W_}, s43 offen sc1", "s_mov_b64 exec, -1", "L_f0_nf:")
    A(".p2align 3", "P1_loop:")
    A(f"s_add_u32 s50, s49, {DIST}", "s_and_b32 s51, s50, 3", f"s_mul_i32 s51, s51, {STG}", f"s_lshl_b32 s46, s{sW}, 10", "s_add_u32 s46, s46, s51",
      "s_lshl_b32 s47, s50, 7", f"s_mul_i32 s48, s50, {64*3072}")
    G=dma_groups()
    need=[2,3,5,5,6,7,7,7,9,9,9,9]
    STAG=False
    def dmablock(tag, cond_skip):
        A(cond_skip)
        if 'p1nodma' not in opt:
            for g in G: emit(g)
        A("s_cmp_eq_u32 s49, 3", f"s_cbranch_scc1 P1_ptflag{tag}", f"P1_nodma{tag}:")
    mf=mfmas(0); rd=reads(1)
    prev=-1
    for k in range(12):
        if need[k]>prev:
            A(f"s_waitcnt lgkmcnt({(9-need[k])+min(k,10)})"); prev=need[k]
        A(mf[k])
        if k<10 and rd: A(rd[k])
        if k==6: dmablock("A", ["s_cmp_ge_u32 s49, s59", "s_cbranch_scc1 P1_nodmaA"])
    mf=mfmas(1); rd=reads(0)
    A("s_add_u32 s36, s36, 1", "s_cmp_eq_u32 s36, 4", f"s_cselect_b32 s52, {(-3*STG)&0xffffffff:#x}, s53", "s_cselect_b32 s36, 0, s36")
    prev=-1
    NB4=4
    for k in range(NB4):
        if need[k]>prev:
            A(f"s_waitcnt lgkmcnt({9-need[k]})"); prev=need[k]
        A(mf[k])
    A("s_waitcnt lgkmcnt(0)")
    for k in range(2): A(f"v_add_u32 v{aX[k]}, s52, v{aX[k]}")
    A(f"v_add_u32 v{aW}, s52, v{aW}")
    A("s_cmp_eq_u32 s49, 5", "s_cbranch_scc1 P1_drain", "s_cmp_gt_u32 s49, 5", "s_cbranch_scc1 P1_bar", "s_waitcnt vmcnt(10)",
      "s_cmp_eq_u32 s60, 0", "s_cbranch_scc1 P1_bar", "s_waitcnt vmcnt(5)", "P1_bar:", "s_barrier")
    if 'p1it' in opt:
        A("s_memtime s[80:81]", "s_waitcnt lgkmcnt(0)")
        for k in range(7): A(f"s_mov_b32 s{64+8+k}, s{64+9+k}")
        A(f"s_mov_b32 s{64+15}, s80")
    slots=[2,2,1,1,1,1,1,1]
    r_=0
    for k in range(NB4,12):
        A(mf[k])
        n=slots[k-NB4]
        if rd: A(rd[r_:r_+n])
        r_+=n
        if k==7: dmablock("B", ["s_cmp_ge_u32 s49, s61", "s_cbranch_scc1 P1_nodmaB"])
    A("s_add_u32 s49, s49, 1", "s_cmp_lt_u32 s49, 8", "s_cbranch_scc1 P1_loop")
    ST.rt("p1_loop")
    if 'p1it' in opt:
        ST.n=16; ST.flush(210); A("s_waitcnt vmcnt(0)", "s_endpgm")
    A("s_branch P1_after")
    for tag in "AB": A(f"P1_ptflag{tag}:", f"buffer_load_dword v{F0V}, v{vF0}, {W_}, s58 offen sc1", f"s_branch P1_nodma{tag}")
    A("P1_drain:", "s_waitcnt vmcnt(0)", f"buffer_load_dword v{PT}, v{vPT}, {W_}, s56 offen {PTF}", "s_branch P1_bar")
    A("P1_after:")
    A(f"s_mov_b32 s42, {SPIN_MAX}")
    A("P1_chk:", f"v_subrev_u32 v{F0V+1}, s{sNONCE}, v{F0V}", f"v_cmp_gt_u32 vcc, 8, v{F0V+1}", "s_nop 1", "s_cmp_eq_u32 vcc_lo, -1", "s_cbranch_scc1 P1_chk_ok")
    A("s_sub_u32 s42, s42, 1", "s_cmp_eq_u32 s42, 0", "s_cbranch_scc1 P1_chk_ok", "s_sleep 1",
      f"buffer_load_dword v{F0V}, v{vF0}, {W_}, s58 offen sc1", "s_waitcnt vmcnt(0)", "s_branch P1_chk")
    A("P1_chk_ok:", f"v_cmp_eq_u32 vcc, s{sXCC}, v{F0V+1}", "s_nop 1", "s_cmp_eq_u32 vcc_lo, -1", f"s_cselect_b32 s{sMODE}, 1, 0")
    if 'forcesafe' in opt: A(f"s_mov_b32 s{sMODE}, 0")
    A(f"s_mov_b32 s44, {hex(f2u(QSCALE))}", "s_waitcnt lgkmcnt(0)")
    PK=80
    for t in range(2):
        for i in range(4): A(f"v_cvt_pk_bf16_f32 v{PK+4*t+i}, v{TK+8*t+2*i}, v{TK+8*t+2*i+1}")
    for t in range(2):
        for i in range(4): A(f"v_cvt_pk_bf16_f32 v{PK+8+4*t+i}, v{TV+8*t+2*i}, v{TV+8*t+2*i+1}")
    for i in range(16): A(f"v_mul_f32 v{TQ+i}, s44, v{TQ+i}")
    for t in range(2): A(f"v_permlane16_swap_b32 v{PK+4*t}, v{PK+4*t+2}", f"v_permlane16_swap_b32 v{PK+4*t+1}, v{PK+4*t+3}")
    for t in range(2):
        for i in range(4): A(f"v_cvt_pk_bf16_f32 v{PK+16+4*t+i}, v{TQ+8*t+2*i}, v{TQ+8*t+2*i+1}")
    for t in range(2): A(f"v_permlane32_swap_b32 v{PK+8+4*t}, v{PK+8+4*t+2}", f"v_permlane32_swap_b32 v{PK+8+4*t+1}, v{PK+8+4*t+3}")
    for t in range(2): A(f"v_permlane16_swap_b32 v{PK+16+4*t}, v{PK+16+4*t+2}", f"v_permlane16_swap_b32 v{PK+16+4*t+1}, v{PK+16+4*t+3}")
    A(f"s_add_u32 s45, s56, {KF}", f"s_add_u32 s47, s56, {VF}")
    A(f"s_cmp_eq_u32 s{sMODE}, 0", "s_cbranch_scc1 P1_st_safe")
    for sc,lab in (("",None),(" sc1","P1_st_safe")):
        if lab: A("s_branch P1_st_done", f"{lab}:")
        A(f"buffer_store_dwordx4 {vr(PK,4)}, v24, {W_}, s45 offen{sc}", f"buffer_store_dwordx4 {vr(PK+4,4)}, v24, {W_}, s45 offen offset:1024{sc}")
        A(f"buffer_store_dwordx4 {vr(PK+8,4)}, v24, {W_}, s47 offen{sc}", f"buffer_store_dwordx4 {vr(PK+12,4)}, v24, {W_}, s47 offen offset:1024{sc}")
        A(f"buffer_store_dwordx4 {vr(PK+16,4)}, v24, {W_}, s56 offen{sc}", f"buffer_store_dwordx4 {vr(PK+20,4)}, v24, {W_}, s56 offen offset:1024{sc}")
    A("P1_st_done:")
    if 'fine1' in opt: ST.rt("st_issued")
    A(f"v_mov_b32 v{GA}, 0")
    for i in range(4): A(f"v_dot2_f32_bf16 v{GA}, v{GX+i}, v{GW+i}, v{GA}")
    A("s_nop 2")
    for ror in (8,4,2,1):
        A(f"v_add_f32_dpp v{GA}, v{GA}, v{GA} row_ror:{ror} row_mask:0xf bank_mask:0xf", "s_nop 1")
    A(f"v_mov_b32 v{GA+1}, v{GA}", "s_nop 1", f"v_permlane16_swap_b32 v{GA+1}, v{GA}", "s_nop 1", f"v_add_f32 v{GA}, v{GA}, v{GA+1}",
      f"v_mov_b32 v{GA+1}, v{GA}", "s_nop 1", f"v_permlane32_swap_b32 v{GA+1}, v{GA}", "s_nop 1", f"v_add_f32 v{GA}, v{GA}, v{GA+1}")
    A(f"v_mul_f32 v{GA}, {hex(f2u(-1.4426950408889634))}, v{GA}", f"v_exp_f32 v{GA}, v{GA}", "s_nop 0", f"v_add_f32 v{GA}, 1.0, v{GA}", f"v_rcp_f32 v{GA}, v{GA}",
      "s_lshl_b32 s42, s2, 3", f"s_add_u32 s42, s42, s{sW}", "s_lshl_b32 s42, s42, 2", f"s_add_u32 s42, s42, {GOFF}", f"v_mov_b32 v{GA+1}, 0", "s_mov_b64 exec, 1",
      f"buffer_store_dword v{GA}, v{GA+1}, {W_}, s42 offen sc1", "s_mov_b64 exec, -1")

def sync1(A, ST, opt):
    if 'fine1' in opt:
        ST.rt("pre_wait"); A("s_waitcnt vmcnt(0)"); ST.rt("vm0"); A("s_barrier"); ST.rt("p1_stored")
        ST.flush(122); A("s_waitcnt vmcnt(0)", "s_endpgm"); ST.on=False
    A("s_waitcnt vmcnt(0)", "s_barrier")
    ST.rt("p1_stored")
    A(f"s_lshl_b32 s42, s{sX}, 7", f"s_lshl_b32 s43, s{sI}, 2", "s_add_u32 s43, s43, s42", f"s_add_u32 s43, s43, {FL+FL_F1}", f"s_add_u32 s38, s42, {FL+FL_F1}")
    A(f"s_cmp_eq_u32 s{sMODE}, 0", "s_cbranch_scc1 L_f1_safe")
    setflag(A,"f1f",43,2,"")
    A("s_branch L_f1_done", "L_f1_safe:")
    setflag(A,"f1s",43,2," sc1")
    A("L_f1_done:")
    poll(A,"p1",38,2,3,stride=F1STR)
    A("s_barrier")
    ST.rt("p1_flags")

LANE=1
QA0=4; QA1=8; QB=12
OA0=16; OA1=32
S0=48; S1=64
P=80
KB_=88; VB_=96
MF=112; MD=128; CB=144
vKa=160; vVa=161
vG=162; vL16=163; vT=164; vT2=165; vT3=166; vNEGM=167; vM=168; vKs=169; vVs=170; vGB=171; vX0=172
VL=vX0+11
LDS_KA=0; LDS_VA=65536; LDS_KB=131072; LDS_VB=147456
def exps(S): return [f"v_exp_f32 v{S+i}, v{S+i}" for i in range(16)]
def cvts(S): return [f"v_cvt_pk_bf16_f32 v{P+i}, v{S+2*i}, v{S+2*i+1}" for i in range(8)]
MK=[f"s_mov_b64 exec, s[{sMASK}:{sMASK+1}]"]; UM=["s_mov_b64 exec, -1"]
def unit(A, Sc, QK, PV1, ld, wK, wV, PV0):
    e=exps(Sc); c=cvts(Sc)
    A(wK, QK)
    A(e[0:4], c[0], e[4:6], c[1])
    A(PV1, ld)
    A(e[6:8], c[2], e[8:10], c[3], e[10:12])
    A(wV, PV0)
    A(e[12:13], c[4], e[13:15], c[5], e[15:16], c[6], c[7])
def slow_pass(A, tag, Q, O, pass1, far, diag, n):
    A(f"v_mov_b32 v{vX0}, v{vKs}", f"v_mov_b32 v{vX0+1}, v{vVs}", "s_mov_b32 s60, 0")
    if pass1: A(f"v_mov_b32 v{vM}, {hex(NEG)}", f"v_mov_b32 v{vNEGM}, 0")
    else:
        for i in range(16): A(f"v_mov_b32 v{O+i}, 0")
    A(f"L_{tag}_loop:")
    A(f"ds_read_b128 {vr(KB_,4)}, v{vX0}")
    if not pass1: A(MK, f"ds_read_b128 {vr(VB_,4)}, v{vX0+1}", f"ds_read_b128 {vr(VB_+4,4)}, v{vX0+1} offset:512", UM)
    A("s_cmp_eq_u32 s60, 0", f"s_cselect_b32 s61, s{far}, 0", "s_cmp_lg_u32 s61, 0", f"s_cbranch_scc1 L_{tag}_far")
    A(f"s_add_u32 s61, s60, 1", f"s_cmp_eq_u32 s61, s{n}", f"s_cselect_b32 s61, s{diag}, 0", "s_cmp_lg_u32 s61, 0", f"s_cbranch_scc1 L_{tag}_diag")
    for i in range(16): A(f"v_mov_b32 v{CB+i}, v{vNEGM}")
    A(f"s_branch L_{tag}_go")
    A(f"L_{tag}_far:")
    for i in range(16): A(f"v_add_f32 v{CB+i}, v{MF+i}, v{vNEGM}")
    A(f"s_branch L_{tag}_go")
    A(f"L_{tag}_diag:")
    for i in range(16): A(f"v_add_f32 v{CB+i}, v{MD+i}, v{vNEGM}")
    A(f"L_{tag}_go:")
    A("s_waitcnt lgkmcnt(0)", "s_nop 0")
    A(mfma32(S0, KB_, Q, CB))
    A("s_nop 7","s_nop 3")
    if pass1:
        for i in range(16): A(f"v_max_f32 v{vM}, v{vM}, v{S0+i}")
    else:
        A(exps(S0), "s_nop 0", cvts(S0), "s_nop 1")
        A(mfma32(O, VB_, P, O), mfma32(O, VB_+4, P+4, O))
    A(f"v_add_u32 v{vX0}, 1024, v{vX0}", f"v_add_u32 v{vX0+1}, 1024, v{vX0+1}")
    A("s_add_u32 s60, s60, 1", f"s_cmp_lt_u32 s60, s{n}", f"s_cbranch_scc1 L_{tag}_loop")
    if pass1:
        A(f"v_mov_b32 v{vT}, v{vM}", "s_nop 1", f"v_permlane32_swap_b32 v{vT}, v{vM}", "s_nop 1",
          f"v_max_f32 v{vM}, v{vM}, v{vT}", f"v_sub_f32 v{vNEGM}, 0, v{vM}")
    else: A("s_nop 7","s_nop 3")
def bcast_l(A,O):
    A(f"v_mov_b32 v{vT}, v{O+8}", "s_nop 1", f"v_permlane32_swap_b32 v{vT}, v{O+8}", "s_nop 1", f"v_add_f32 v{O+8}, v{O+8}, v{vT}")
def check_range(A, O, okl):
    bcast_l(A,O)
    A(f"v_mov_b32 v{vT}, v{O+8}")
    for i in range(8): A(f"v_fma_f32 v{vT}, v{O+i}, 0, v{vT}")
    A(f"s_mov_b32 s44, {hex(LLO)}", f"s_mov_b32 s45, {hex(LHI)}")
    A(f"v_cmp_le_f32 s[46:47], s44, v{vT}", f"v_cmp_ge_f32 s[48:49], s45, v{vT}", "s_nop 1",
      "s_and_b64 s[46:47], s[46:47], s[48:49]", "s_cmp_eq_u64 s[46:47], -1", f"s_cbranch_scc1 {okl}")
def finalize(A, O, soff):
    A(f"v_rcp_f32 v{vT}, v{O+8}", "s_nop 0")
    for i in range(8): A(f"v_mul_f32 v{O+i}, v{O+i}, v{vT}")
    for i in range(4): A(f"v_cvt_pk_bf16_f32 v{vX0+4+i}, v{O+2*i}, v{O+2*i+1}")
    A(f"buffer_store_dwordx4 {vr(vX0+4,4)}, v{vL16}, s[{SRD_WS}:{SRD_WS+3}], s{soff} offen sc1")

def phase2(A, ST, opt):
    W_=f"s[{SRD_WS}:{SRD_WS+3}]"
    SC="" if 'plainld' in opt else " sc1"
    A(f"v_and_b32 v{LANE}, 63, v0")
    A(f"s_and_b32 s15, s{sW}, 3", f"s_lshr_b32 s16, s{sW}, 2")
    A("s_lshl_b32 s17, s15, 1", "s_add_u32 s17, s17, s16",
      f"s_lshl_b32 s18, s{sJ}, 3", "s_add_u32 s19, s18, s17",
      f"s_lshl_b32 s20, s{sH}, 16", f"s_add_u32 s21, s20, {32*65536}")
    A(f"v_lshlrev_b32 v{vL16}, 4, v{LANE}", f"v_and_b32 v{vT}, 31, v{LANE}")
    A(f"s_mov_b32 s{sMASK}, 0x0000ffff", f"s_mov_b32 s{sMASK+1}, 0x0000ffff")
    A(f"v_cmp_eq_u32 vcc, 16, v{vT}", f"v_mov_b32 v{vX0}, 0x3f803f80", "s_nop 0", f"v_cndmask_b32 v{vX0+1}, 0, v{vX0}, vcc")
    for i in range(16): A(f"v_mov_b32 v{VB_+i}, v{vX0+1}")
    hh=vT3
    A(f"v_lshrrev_b32 v{hh}, 5, v{LANE}", f"v_lshlrev_b32 v{vT2}, 2, v{hh}", f"v_sub_u32 v{vT2}, v{vT}, v{vT2}")
    A(f"v_mov_b32 v{vX0}, {hex(NEG)}")
    for g in range(4):
        for k in range(4): A(f"v_cmp_gt_i32 s[{44+2*k}:{45+2*k}], {8*g+k}, v{vT2}")
        A("s_nop 0")
        for k in range(4):
            i=4*g+k
            A(f"v_cndmask_b32 v{MF+i}, v{vX0}, 0, s[{44+2*k}:{45+2*k}]", f"v_cndmask_b32 v{MD+i}, 0, v{vX0}, s[{44+2*k}:{45+2*k}]")
    A(f"v_and_b32 v{vT}, 15, v{LANE}", f"v_lshlrev_b32 v{vT}, 4, v{vT}", f"v_lshl_add_u32 v{VL}, v{hh}, 8, v{vT}")
    A("s_lshl_b32 s43, s17, 10", f"s_add_u32 s44, s43, {LDS_KB}", f"v_add_u32 v{vKa}, s44, v{vL16}",
      f"s_add_u32 s44, s43, {LDS_VB}", f"v_add_u32 v{vVa}, s44, v{VL}")
    A("s_lshl_b32 s32, s19, 16", f"s_lshl_b32 s33, s{sH}, 10", "s_add_u32 s32, s32, s33", f"s_add_u32 s32, s32, {OF}", "s_add_u32 s33, s32, 32768")
    A("s_lshl_b32 s22, s19, 10", "s_add_u32 s22, s22, s21", f"s_add_u32 s22, s22, {QF}")
    A("s_lshl_b32 s23, s19, 10", "s_add_u32 s23, s23, s20", f"s_add_u32 s23, s23, {QF}", "s_xor_b32 s14, s19, 1", "s_lshl_b32 s14, s14, 10", "s_add_u32 s14, s14, s20", f"s_add_u32 s14, s14, {QF}")
    for ii in range(2):
        A(f"s_add_u32 s43, s{sW}, {8*ii}", "s_add_u32 s44, s18, s43", "s_sub_u32 s44, s44, 8", "s_max_i32 s44, s44, 0",
          "s_lshl_b32 s44, s44, 10", "s_add_u32 s44, s44, s21", f"s_add_u32 s{54+ii}, s44, {KF}")
    A(f"s_lshl_b32 s56, s{sW}, 10", "s_add_u32 s57, s56, s20", f"s_add_u32 s57, s57, {KF}")
    OBz=OA0
    for i in range(16): A(f"v_mov_b32 v{OBz+i}, 0")
    for i in range(4): A(f"v_mov_b32 v{P+4+i}, 0")
    sync1(A,ST,opt)
    A(f"buffer_load_dwordx4 {vr(QB,4)}, v{vL16}, {W_}, s22 offen{SC}")
    if 'fine2' in opt:
        A("s_waitcnt vmcnt(0)"); ST.rt("qb_landed")
    for ii in range(2):
        A(f"s_add_u32 m0, s56, {LDS_KB+8192*ii}", f"s_add_u32 s45, s{54+ii}, {VF-KF}", f"buffer_load_dwordx4 v{vL16}, {W_}, s{54+ii} offen{SC} lds")
        A(f"s_add_u32 m0, s56, {LDS_VB+8192*ii}", "s_nop 0", f"buffer_load_dwordx4 v{vL16}, {W_}, s45 offen{SC} lds")
    A(f"buffer_load_dwordx4 {vr(QA0,4)}, v{vL16}, {W_}, s23 offen{SC}", f"buffer_load_dwordx4 {vr(QA1,4)}, v{vL16}, {W_}, s14 offen{SC}")
    def adma(m):
        return [f"s_add_u32 m0, s56, {LDS_KA+m*8192}", f"s_add_u32 s45, s57, {m*8192}", f"buffer_load_dwordx4 v{vL16}, {W_}, s45 offen{SC} lds",
                f"s_add_u32 m0, s56, {LDS_VA+m*8192}", f"s_add_u32 s45, s57, {VF-KF+m*8192}", f"buffer_load_dwordx4 v{vL16}, {W_}, s45 offen{SC} lds"]
    global ADMA; ADMA=adma
    A(f"s_cmp_lg_u32 s{sJ}, 0", "s_cbranch_scc1 A_dma_skip")
    for m in range(8): A(adma(m))
    A("s_waitcnt vmcnt(18)", "s_branch A_dma_join")
    A("A_dma_skip:", "s_waitcnt vmcnt(2)", "A_dma_join:")
    if 'fine2' in opt:
        ST.rt("own_b"); A("s_barrier"); ST.rt("b_data"); ST.flush(2); A("s_waitcnt vmcnt(0)", "s_endpgm"); ST.on=False
    OB=OA0
    A("s_barrier")
    ST.rt("b_data")
    def ldK(t,base): return [f"ds_read_b128 {vr(KB_+4*(t%2),4)}, v{base} offset:{t*1024}"]
    def ldV(t,base): return MK+[f"ds_read_b128 {vr(VB_+8*(t%2),4)}, v{base} offset:{t*1024}", f"ds_read_b128 {vr(VB_+8*(t%2)+4,4)}, v{base} offset:{t*1024+512}"]+UM
    NB=9
    A("s_mov_b32 s51, 1", f"s_cmp_eq_u32 s{sJ}, 0", "s_cselect_b32 s50, 0, 1", "s_sub_u32 s53, 8, s17", "s_cselect_b32 s53, s53, 0")
    A.L.pop()
    A(f"s_cmp_eq_u32 s{sJ}, 0", "s_cselect_b32 s53, s53, 0")
    A("s_sub_u32 s52, 9, s53")
    A("s_lshl_b32 s43, s53, 10", f"v_add_u32 v{vKs}, s43, v{vKa}", f"v_add_u32 v{vVs}, s43, v{vVa}")
    for s0 in range(NB):
        A(f"s_cmp_eq_u32 s53, {s0}", f"s_cbranch_scc1 B_pro{s0}")
    for s0 in range(NB-1,-1,-1):
        A(f"B_pro{s0}:")
        Sc=S0 if s0%2==0 else S1
        C = MF if s0==0 else (MD if s0==NB-1 else "0")
        A(ldK(s0,vKa), "s_waitcnt lgkmcnt(0)", mfma32(Sc, KB_+4*(s0%2), QB, C))
        if s0==0:
            A(ldV(0,vVa), ldK(1,vKa))
        else:
            if s0+1<NB: A(ldK(s0+1,vKa))
            A(ldV(s0,vVa))
        A("s_nop 7","s_nop 3")
        if s0!=0: A(f"s_branch B_step{s0}")
    for t in range(NB):
        A(f"B_step{t}:")
        Sc=S0 if t%2==0 else S1; Sn=S1 if t%2==0 else S0
        if t+1<NB:
            QK=[mfma32(Sn, KB_+4*((t+1)%2), QB, MD if t+1==NB-1 else "0")]
            wK=["s_waitcnt lgkmcnt(0)"] if t==0 else ["s_waitcnt lgkmcnt(2)"]
        else: QK=[]; wK=[]
        PV1=[mfma32(OB, VB_+8*((t-1)%2)+4, P+4, OB)] if t>0 else []
        ld=[]
        if t+2<NB: ld+=ldK(t+2,vKa)
        if t+1<NB: ld+=ldV(t+1,vVa)
        nld=(1 if t+2<NB else 0)+(2 if t+1<NB else 0)
        wV=[f"s_waitcnt lgkmcnt({nld})"]
        PV0=[mfma32(OB, VB_+8*(t%2), P, OB)]
        if t<8: ld=ld+ADMA(t)
        unit(A,Sc,QK,PV1,ld,wK,wV,PV0)
    A("s_nop 1", mfma32(OB, VB_+8*((NB-1)%2)+4, P+4, OB))
    A("s_nop 7","s_nop 3")
    check_range(A,OB,"B_ok")
    slow_pass(A,"bf1",QB,OB,True,50,51,52)
    slow_pass(A,"bf2",QB,OB,False,50,51,52)
    bcast_l(A,OB)
    A("B_ok:")
    finalize(A,OB,33)
    ST.rt("b_done")
    A("s_waitcnt vmcnt(1)", "s_barrier")
    ST.rt("a_start")
    if 'dup' in opt: A("s_mov_b32 s54, 2", "A_dup:")
    A("s_lshl_b32 s43, s16, 15", f"v_add_u32 v{vKa}, s43, v{vL16}", f"s_add_u32 s44, s43, {LDS_VA}", f"v_add_u32 v{vVa}, s44, v{VL}")
    for i in range(32): A(f"v_mov_b32 v{OA0+i}, 0")
    for i in range(4): A(f"v_mov_b32 v{P+4+i}, 0")
    Qr=[QA0,QA1]; Or=[OA0,OA1]
    A(ldK(0,vKa), ldV(0,vVa), "s_waitcnt lgkmcnt(2)", mfma32(S0, KB_, QA0, "0"))
    vFv=112; vFz=113; vFa=114; vFb=115
    A(f"s_lshl_b32 s34, s{sJ}, 10", f"s_lshl_b32 s35, s{sH}, 5", "s_add_u32 s34, s34, s35", f"s_lshl_b32 s35, s{sW}, 2", "s_add_u32 s34, s34, s35",
      f"s_add_u32 s35, s34, {FL+FL_F2A}", f"s_add_u32 s34, s34, {FL+FL_F2B}")
    A(f"v_mov_b32 v{vFv}, s{sNONCE}", f"v_mov_b32 v{vFz}, 0")
    A(f"v_lshrrev_b32 v{vFa}, 1, v{LANE}", f"v_lshlrev_b32 v{vFa}, 5, v{vFa}", f"v_and_b32 v{vT}, 1, v{LANE}", f"v_lshl_add_u32 v{vFa}, v{vT}, 4, v{vFa}",
      f"s_and_b32 s36, s{sI}, 3", "s_lshl_b32 s36, s36, 2", f"v_add_u32 v{vFa}, s36, v{vFa}", f"s_lshl_b32 s36, s{sX}, 10", f"s_add_u32 s36, s36, {FL+FL_F2B}")
    A("s_mov_b32 s53, 4", "s_setprio 3", "s_nop 7", "s_nop 1")
    A(".p2align 3", "A_loop:")
    A("s_cmp_eq_u32 s53, 3", "s_cbranch_scc1 A_it1", "s_cmp_eq_u32 s53, 2", "s_cbranch_scc1 A_it2", "s_cmp_eq_u32 s53, 1", "s_cbranch_scc1 A_it3", "A_body:")
    NK=8
    units=[(t,qi) for t in range(NK) for qi in range(2)]
    for u,(t,qi) in enumerate(units):
        Sc=S0 if u%2==0 else S1; Sn=S1 if u%2==0 else S0
        tn,qn=(t,1) if qi==0 else (t+1,0)
        tp,qp=(t-1,1) if qi==0 else (t,0)
        QK=[mfma32(Sn, KB_+4*(tn%2), Qr[qn], "0")]
        PV1=[mfma32(Or[qp], VB_+8*(tp%2)+4, P+4, Or[qp])]
        PV0=[mfma32(Or[qi], VB_+8*(t%2), P, Or[qi])]
        ld=[];wK=[];wV=[]
        if qi==0: ld=ldK(t+1,vKa)+ldV(t+1,vVa); wV=["s_waitcnt lgkmcnt(3)"]
        else: wK=["s_waitcnt lgkmcnt(2)"]
        unit(A,Sc,QK,PV1,ld,wK,wV,PV0)
    A(f"v_add_u32 v{vKa}, {NK*1024}, v{vKa}", f"v_add_u32 v{vVa}, {NK*1024}, v{vVa}")
    A("s_sub_u32 s53, s53, 1", "s_cmp_lg_u32 s53, 0", "s_cbranch_scc1 A_loop")
    A("s_branch A_after")
    A("A_it1:", "s_setprio 2", "s_waitcnt vmcnt(0)", "s_mov_b64 exec, 1", f"buffer_store_dword v{vFv}, v{vFz}, {W_}, s34 offen sc1", "s_mov_b64 exec, -1")
    if 'wbl2' in opt:
        A(f"s_cmp_lg_u32 s{sI}, 0", "s_cbranch_scc1 A_body", f"s_cmp_lg_u32 s{sW}, 0", "s_cbranch_scc1 A_body", "buffer_wbl2 sc1")
    A("s_branch A_body")
    A("A_it2:", "s_setprio 1")
    if 'nopt3' not in opt:
        vP=116
        A(f"s_and_b32 s44, s{sI}, 3", f"s_lshr_b32 s45, s{sI}, 2", "s_and_b32 s46, s44, 1", "s_lshl_b32 s46, s46, 8", f"s_lshl_b32 s47, s{sW}, 5", "s_add_u32 s46, s46, s47",
          f"v_and_b32 v{vP}, 31, v{LANE}", f"v_add_u32 v{vP}, s46, v{vP}", f"v_lshlrev_b32 v{vP}, 10, v{vP}", "s_lshl_b32 s45, s45, 7",
          "s_cmp_lt_u32 s44, 2", f"s_cselect_b32 s48, s{pWOA}, s{pWOB}", f"s_cselect_b32 s49, s{pWOA+1}, s{pWOB+1}")
        A(f"s_mov_b32 s{SRD_PT}, s48", f"s_mov_b32 s{SRD_PT+1}, s49", f"s_mov_b32 s{SRD_PT+2}, {512*512*2}", f"s_mov_b32 s{SRD_PT+3}, 0x00020000",
          f"buffer_load_dword v{vP+1}, v{vP}, s[{SRD_PT}:{SRD_PT+3}], s45 offen")
        if 'noptout' not in opt:
            A(f"s_lshl_b32 s46, s{sX}, 8", "s_lshl_b32 s47, s44, 6", "s_add_u32 s46, s46, s47", f"s_lshl_b32 s47, s{sW}, 3", "s_add_u32 s46, s46, s47",
              f"v_and_b32 v{vP}, 7, v{LANE}", f"v_add_u32 v{vP}, s46, v{vP}", f"v_lshlrev_b32 v{vP}, 10, v{vP}",
              f"s_mov_b32 s{SRD_PT}, s{pOUT}", f"s_mov_b32 s{SRD_PT+1}, s{pOUT+1}", f"s_mov_b32 s{SRD_PT+2}, {2048*512*2}", f"s_mov_b32 s{SRD_PT+3}, 0x00020000",
              f"buffer_load_dword v{vP+2}, v{vP}, s[{SRD_PT}:{SRD_PT+3}], s45 offen")
    A("s_branch A_body")
    A("A_it3:", "s_setprio 0", f"buffer_load_dword v{vFb}, v{vFa}, {W_}, s36 offen sc1", "s_branch A_body")
    A("A_after:")
    A(mfma32(OA1, VB_+8*((NK-1)%2)+4, P+4, OA1))
    A("s_waitcnt lgkmcnt(0)", "s_nop 7", "s_nop 3")
    if 'dup' in opt: A("s_sub_u32 s54, s54, 1", "s_cmp_lg_u32 s54, 0", "s_cbranch_scc1 A_dup")
    ST.rt("a_loop")
    A(f"s_mul_i32 s43, s{sW}, 2560", f"s_add_u32 s43, s43, {LDS_KB}", f"v_add_u32 v{vT}, s43, v{vL16}",
      f"v_lshlrev_b32 v{vT2}, 2, v{LANE}", f"v_add_u32 v{vT2}, s43, v{vT2}")
    A(f"ds_write_b128 v{vT}, {vr(OA1,4)}", f"ds_write_b128 v{vT}, {vr(OA1+4,4)} offset:1024", f"ds_write_b32 v{vT2}, v{OA1+8} offset:2048")
    A(f"s_xor_b32 s44, s{sW}, 4", "s_mul_i32 s43, s44, 2560", f"s_add_u32 s43, s43, {LDS_KB}", f"v_add_u32 v{vT}, s43, v{vL16}",
      f"v_lshlrev_b32 v{vT2}, 2, v{LANE}", f"v_add_u32 v{vT2}, s43, v{vT2}")
    A("s_waitcnt lgkmcnt(0)", "s_barrier")
    A(f"ds_read_b128 {vr(S0,4)}, v{vT}", f"ds_read_b128 {vr(S0+4,4)}, v{vT} offset:1024", f"ds_read_b32 v{S0+8}, v{vT2} offset:2048")
    A("s_waitcnt lgkmcnt(0)")
    for i in range(9): A(f"v_add_f32 v{OA0+i}, v{OA0+i}, v{S0+i}")
    check_range(A,OA0,"A_ok")
    A("s_mov_b32 s50, 0", "s_mov_b32 s51, 0", "s_mov_b32 s52, 64")
    A(f"v_add_u32 v{vKs}, {LDS_KA}, v{vL16}", f"v_add_u32 v{vVs}, {LDS_VA}, v{VL}")
    slow_pass(A,"af1",QA0,OA0,True,50,51,52)
    slow_pass(A,"af2",QA0,OA0,False,50,51,52)
    bcast_l(A,OA0)
    A("A_ok:")
    finalize(A,OA0,32)

def phase3(A, ST, opt):
    W_=f"s[{SRD_WS}:{SRD_WS+3}]"
    lane=LANE
    vFv=112; vFz=113; vFa=114; vFb=115
    srd(A,SRD_A,pWOA,512*512*2); srd(A,SRD_B,pWOB,512*512*2); srd(A,SRD_C,pOUT,2048*512*2)
    A(f"s_and_b32 s50, s{sI}, 3", f"s_lshr_b32 s51, s{sI}, 2")
    A(f"s_and_b32 s52, s{sW}, 1", f"s_bfe_u32 s53, s{sW}, 0x10001", f"s_lshr_b32 s54, s{sW}, 2")
    vW=4
    A(f"v_lshrrev_b32 v5, 3, v{lane}", "v_lshlrev_b32 v5, 10, v5", f"v_bfe_u32 v6, v{lane}, 4, 1", "v_lshlrev_b32 v6, 2, v6", f"v_and_b32 v7, 7, v{lane}",
      "v_xor_b32 v6, v6, v7", "v_lshl_add_u32 v5, v6, 4, v5", "s_lshl_b32 s42, s51, 7", f"v_add_u32 v{vW}, s42, v5", f"v_lshlrev_b32 v3, 4, v{lane}")
    A(f"s_and_b32 s43, s{sW}, 3", "s_lshl_b32 s43, s43, 17", f"s_lshl_b32 s44, s{sW}, 14", f"s_cmp_ge_u32 s{sW}, 4",
      f"s_cselect_b32 s{SRD_A}, s{SRD_B}, s{SRD_A}", f"s_cselect_b32 s{SRD_A+1}, s{SRD_B+1}, s{SRD_A+1}")
    A("s_barrier")
    A("s_mov_b32 s46, 4", "P3_wdma:")
    for ii in range(4):
        A(f"s_add_u32 m0, s44, {ii*1024}", f"s_add_u32 s45, s43, {ii*8192}", f"buffer_load_dwordx4 v{vW}, s[{SRD_A}:{SRD_A+3}], s45 offen lds")
    A("s_add_u32 s44, s44, 4096", "s_add_u32 s43, s43, 32768", "s_sub_u32 s46, s46, 1", "s_cmp_lg_u32 s46, 0", "s_cbranch_scc1 P3_wdma")
    A("s_waitcnt vmcnt(17)", f"s_mov_b32 s46, {SPIN_MAX}")
    A("P3_bchk:", f"v_cmp_ne_u32 vcc, s{sNONCE}, v{vFb}", "s_nop 1", "s_cmp_eq_u64 vcc, 0", "s_cbranch_scc1 P3_bok",
      "s_sub_u32 s46, s46, 1", "s_cmp_eq_u32 s46, 0", "s_cbranch_scc1 P3_bok", "s_sleep 1",
      f"buffer_load_dword v{vFb}, v{vFa}, {W_}, s36 offen sc1", "s_waitcnt vmcnt(0)", "s_branch P3_bchk", "P3_bok:")
    OB_=128; WA=192
    A(f"s_lshl_b32 s42, s{sX}, 3", "s_lshl_b32 s43, s50, 1", "s_add_u32 s42, s42, s43", "s_lshl_b32 s55, s42, 16", f"s_add_u32 s55, s55, {OF}")
    A("s_lshl_b32 s43, s52, 16", "s_add_u32 s42, s55, s43", "s_lshl_b32 s43, s54, 14", "s_add_u32 s42, s42, s43", "s_add_u32 s42, s42, 32768")
    A("s_waitcnt vmcnt(16)")
    A("s_mov_b64 exec, 1", f"buffer_store_dword v{vFv}, v{vFz}, {W_}, s35 offen sc1", "s_mov_b64 exec, -1")
    ST.rt("o_stored")
    for n in range(16):
        if n%4==0 and n: A("s_add_u32 s42, s42, 4096")
        A(f"buffer_load_dwordx4 {vr(OB_+4*n,4)}, v3, {W_}, s42 offen offset:{(n%4)*1024} sc1")
    A(f"v_and_b32 v12, 31, v{lane}", f"s_lshl_b32 s44, s{sX}, 8", "s_lshl_b32 s45, s50, 6", "s_add_u32 s44, s44, s45", "s_lshl_b32 s45, s52, 5", "s_add_u32 s44, s44, s45",
      "v_add_u32 v12, s44, v12", "v_lshlrev_b32 v13, 2, v12", f"s_mov_b32 s45, {GOFF}", f"buffer_load_dword v14, v13, {W_}, s45 offen sc1")
    A(f"v_lshrrev_b32 v8, 5, v{lane}",
      f"v_bfe_u32 v5, v{lane}, 2, 2", "v_lshl_add_u32 v5, v8, 2, v5", "v_lshlrev_b32 v5, 7, v5",
      f"v_bfe_u32 v6, v{lane}, 4, 1", "v_lshlrev_b32 v6, 1, v6", f"v_bfe_u32 v7, v{lane}, 1, 1", "v_add_u32 v6, v6, v7",
      "s_lshl_b32 s42, s53, 2", "v_add_u32 v6, s42, v6",
      f"v_bfe_u32 v7, v{lane}, 3, 1", "v_lshlrev_b32 v7, 2, v7", "v_xor_b32 v6, v6, v7", "v_lshl_add_u32 v5, v6, 4, v5",
      f"v_and_b32 v7, 1, v{lane}", "v_lshl_add_u32 v5, v7, 3, v5",
      "s_lshl_b32 s42, s54, 15", "v_add_u32 v10, s42, v5", "v_add_u32 v11, 0x10000, v10")
    ACA=16; ACB=48; WR=[32,36,40,44]
    for i in range(16): A(f"v_mov_b32 v{ACB+i}, 0", f"v_mov_b32 v{ACA+i}, 0")
    A("s_waitcnt vmcnt(18)", "s_barrier")
    ST.rt("w_landed")
    def wrd(dst, base, n): return [f"ds_read_b64_tr_b16 {vr(dst,2)}, v{base} offset:{(16*n)*128}", f"ds_read_b64_tr_b16 {vr(dst+2,2)}, v{base} offset:{(16*n+8)*128}"]
    for n in range(3): A(wrd(WR[n],11,n))
    for n in range(16):
        if n+3<16: A(wrd(WR[(n+3)%4],11,n+3))
        A(f"s_waitcnt lgkmcnt({2*min(3,15-n)}) vmcnt({16-n})")
        A(mfma32(ACB, WR[n%4], OB_+4*n, ACB))
    for n in range(16):
        A(wrd(WA+4*n,10,n))
        if n%4==3: A("s_waitcnt lgkmcnt(4)")
    A("s_waitcnt lgkmcnt(0)")
    ST.rt("b_half")
    A(f"s_add_u32 s36, s36, {FL_F2A-FL_F2B}")
    A(f"s_cmp_lg_u32 s{sW}, 0", "s_cbranch_scc1 P3_askip", f"s_mov_b32 s46, {SPIN_MAX}")
    A("P3_achk:", f"buffer_load_dword v{vFb}, v{vFa}, {W_}, s36 offen sc1", "s_waitcnt vmcnt(0)",
      f"v_cmp_ne_u32 vcc, s{sNONCE}, v{vFb}", "s_nop 1", "s_cmp_eq_u64 vcc, 0", "s_cbranch_scc1 P3_askip",
      "s_sub_u32 s46, s46, 1", "s_cmp_eq_u32 s46, 0", "s_cbranch_scc1 P3_askip", "s_branch P3_achk", "P3_askip:")
    A("s_barrier")
    ST.rt("p2_flags")
    A("s_cmp_lg_u32 s2, 0", "s_cbranch_scc1 P3_noep", f"s_mov_b32 s43, {FL+FL_EPOCH}")
    setflag(A,"ep",43,5)
    A("P3_noep:")
    A("s_lshl_b32 s43, s52, 15", "s_lshl_b32 s44, s53, 14", "s_add_u32 s43, s43, s44", "s_lshl_b32 s44, s54, 12", "s_add_u32 s43, s43, s44", "s_add_u32 s43, s43, 0x10000")
    A("s_lshl_b32 s42, s52, 16", "s_add_u32 s42, s42, s55", "s_lshl_b32 s44, s53, 14", "s_add_u32 s42, s42, s44", "s_lshl_b32 s44, s54, 12", "s_add_u32 s42, s42, s44")
    for r in range(2):
        for ii in range(4):
            A(f"s_add_u32 m0, s43, {r*8192+ii*1024}", f"s_add_u32 s45, s42, {r*8192+ii*1024}", f"buffer_load_dwordx4 v3, {W_}, s45 offen sc1 lds")
    OFr=[64,68,72,76]
    A("s_lshl_b32 s43, s52, 15", "s_lshl_b32 s44, s54, 14", "s_add_u32 s43, s43, s44", "s_add_u32 s43, s43, 0x10000", "v_add_u32 v11, s43, v3")
    for r in range(2):
        A(f"s_waitcnt vmcnt({4-4*r})", "s_barrier")
        for s_ in range(4): A(f"ds_read_b128 {vr(OFr[s_],4)}, v11 offset:{(8*r+s_)*1024}")
        for s_ in range(8):
            n=8*r+s_
            A(f"s_waitcnt lgkmcnt({3 if s_<5 else 7-s_})")
            A(mfma32(ACA, WA+4*n, OFr[s_%4], ACA))
            if s_<4: A(f"ds_read_b128 {vr(OFr[s_%4],4)}, v11 offset:{(8*r+s_+4)*1024}")
    ST.rt("p3_mfma")
    A("s_nop 7","s_nop 3")
    for i in range(16): A(f"v_sub_f32 v{ACA+i}, v{ACA+i}, v{ACB+i}")
    for i in range(16): A(f"v_fma_f32 v{ACA+i}, v14, v{ACA+i}, v{ACB+i}")
    ACC=ACA
    A(f"s_lshl_b32 s43, s{sW}, 11", "v_add_u32 v5, s43, v3", f"s_xor_b32 s44, s{sW}, 4", "s_lshl_b32 s44, s44, 11", "v_add_u32 v6, s44, v3")
    PK=40
    A("s_cmp_eq_u32 s54, 0", "s_cbranch_scc0 P3_k1")
    for kq,lab in ((0,None),(1,"P3_k1")):
        if lab: A("s_branch P3_kdone", f"{lab}:")
        own=ACC+8*kq; oth=ACC+8*(1-kq)
        A(f"ds_write_b128 v5, {vr(oth,4)}", f"ds_write_b128 v5, {vr(oth+4,4)} offset:1024", "s_waitcnt lgkmcnt(0)", "s_barrier")
        A(f"ds_read_b128 {vr(32,4)}, v6", f"ds_read_b128 {vr(36,4)}, v6 offset:1024", "s_waitcnt lgkmcnt(0)")
        for i in range(8): A(f"v_add_f32 v{own+i}, v{own+i}, v{32+i}")
        for i in range(4): A(f"v_cvt_pk_bf16_f32 v{PK+i}, v{own+2*i}, v{own+2*i+1}")
    A("P3_kdone:")
    A("s_nop 1", f"v_permlane32_swap_b32 v{PK}, v{PK+2}", f"v_permlane32_swap_b32 v{PK+1}, v{PK+3}")
    A("v_lshlrev_b32 v5, 10, v12", "v_lshl_add_u32 v5, v8, 4, v5",
      "s_lshl_b32 s42, s51, 7", "s_lshl_b32 s43, s53, 6", "s_add_u32 s42, s42, s43", "s_lshl_b32 s43, s54, 5", "s_add_u32 s42, s42, s43")
    A(f"buffer_store_dwordx4 {vr(PK,4)}, v5, s[{SRD_C}:{SRD_C+3}], s42 offen")

def gen(opt=()):
    A=Asm(); ST=Stamps(A,'stamps' in opt)
    A(f".globl {NAME}", ".p2align 8", f".type {NAME},@function", f"{NAME}:")
    A("s_cmp_ge_u32 s2, 256", "s_cbranch_scc1 L_done")
    if 'scramble' in opt: A("s_lshr_b32 s3, s2, 3", "s_and_b32 s2, s2, 7", "s_lshl_b32 s2, s2, 5", "s_or_b32 s2, s2, s3")
    A(f"s_load_dwordx2 s[{sWS}:{sWS+1}], s[0:1], 72", "s_load_dwordx2 s[42:43], s[0:1], 0", "s_load_dwordx2 s[44:45], s[0:1], 8",
      "s_load_dwordx2 s[46:47], s[0:1], 32", "s_load_dwordx2 s[48:49], s[0:1], 48",
      f"s_load_dwordx2 s[{pWOA}:{pWOA+1}], s[0:1], 16", f"s_load_dwordx2 s[{pWOB}:{pWOB+1}], s[0:1], 40", f"s_load_dwordx2 s[{pOUT}:{pOUT+1}], s[0:1], 56")
    rot=[int(o[3:]) for o in opt if o.startswith('rot')]
    if rot: A(f"s_add_u32 s{sX}, s2, {rot[0]}", f"s_and_b32 s{sX}, s{sX}, 7")
    else: A(f"s_and_b32 s{sX}, s2, 7")
    A(f"s_lshr_b32 s{sI}, s2, 3", f"s_lshr_b32 s{sJ}, s{sI}, 2", f"s_and_b32 s{sA}, s{sI}, 3",
      f"s_lshr_b32 s{sBR}, s{sA}, 1", f"s_and_b32 s50, s{sA}, 1", f"s_lshl_b32 s{sRB}, s{sJ}, 1", f"s_add_u32 s{sRB}, s{sRB}, s50",
      f"s_lshl_b32 s{sH}, s{sX}, 2", f"s_add_u32 s{sH}, s{sH}, s{sA}")
    A("v_lshrrev_b32 v1, 6, v0", "v_and_b32 v2, 63, v0", "s_nop 0", f"v_readfirstlane_b32 s{sW}, v1")
    if 'pf' in opt:
        A("s_getpc_b64 s[50:51]", "L_pc:", f"s_sub_u32 s50, s50, (L_pc-{NAME})", "s_subb_u32 s51, s51, 0")
        A(f"s_lshl_b32 s52, s{sI}, 1", f"s_add_u32 s52, s52, s{sW}", "s_lshl_b32 s52, s52, 10", "v_lshlrev_b32 v3, 4, v2", "v_add_u32 v3, s52, v3")
        A(f"s_cmp_lt_u32 s{sW}, 2", "s_cbranch_scc0 L_nopf", f"s_cmp_lt_u32 s52, (L_done-{NAME}-1024)", "s_cbranch_scc0 L_nopf",
          "global_load_dwordx4 v[252:255], v3, s[50:51]", "L_nopf:")
    if 'spin60' in opt: A("s_memrealtime s[90:91]")
    A("s_waitcnt lgkmcnt(0)")
    ST.rt("start"); ST.cyc("cyc0")
    A(f"s_add_u32 s6, s{sWS}, {FL+FL_EPOCH}", f"s_addc_u32 s7, s{sWS+1}, 0", "s_load_dword s3, s[6:7], 0")
    srd(A,SRD_WS,sWS,WS_SIZE)
    srd(A,SRD_A,42,2048*512*2)
    A(f"s_cmp_eq_u32 s{sBR}, 0", "s_cselect_b32 s44, s44, s46", "s_cselect_b32 s45, s45, s47")
    srd(A,SRD_B,44,512*1536*2)
    srd(A,SRD_C,48,1024)
    phase1(A,ST,opt)
    phase2(A,ST,opt)
    phase3(A,ST,opt)
    if 'spin60' in opt:
        A("s_waitcnt vmcnt(0)", "L_spin:", "s_memrealtime s[80:81]", "s_waitcnt lgkmcnt(0)", "s_sub_u32 s80, s80, s90", "s_cmp_lt_u32 s80, 6000", "s_cbranch_scc1 L_spin")
    if ST.on: A("s_waitcnt vmcnt(0)")
    ST.rt("end"); ST.cyc("cyc1")
    ST.flush(120)
    A("L_done:", "s_endpgm")
    kd=f""".section .rodata,"a"
.p2align 6
.amdhsa_kernel {NAME}
  .amdhsa_next_free_vgpr 256
  .amdhsa_next_free_sgpr 102
  .amdhsa_accum_offset 256
  .amdhsa_group_segment_fixed_size 0
  .amdhsa_kernarg_size 80
  .amdhsa_user_sgpr_count 2
  .amdhsa_user_sgpr_kernarg_segment_ptr 1
  .amdhsa_system_sgpr_workgroup_id_x 1
.end_amdhsa_kernel
"""
    return A.text(), kd, ST.names

if __name__=='__main__':
    import sys, hazard
    out=sys.argv[1]; opt=tuple(sys.argv[2:])
    HDR=open('gated_mix__softmax_full_mha__sliding_block__prompt.s.ref').read().split('\n')
    hdr=[l for l in HDR if l.startswith(';') and 'launch' not in l.lower() and 'Override' not in l and 'grid=ceil' not in l]
    t,kd,names=gen(opt)
    s='\n'.join(hdr)+'\n'+"; @launch grid=(256,1,1) block=(512,1,1) lds=163840\n"+'.amdgcn_target "amdgcn-amd-amdhsa--gfx950"\n.text\n'+t+kd
    open(out,'w').write(s)
    print('hazards',len(hazard.check(t)),'bytes',len(s),'stamps',','.join(names))
    sys.path.insert(0,'cdna_kernels')
    import subprocess
    from cdna_launch import with_harness_metadata, address_register_problem
    open('h.s','w').write(with_harness_metadata(s,NAME,10,launch_lists=True))
    r=subprocess.run(['clang','-x','assembler','-target','amdgcn-amd-amdhsa','-mcpu=gfx950','h.s','-o','h.co'],capture_output=True,text=True)
    if r.returncode: print(r.stderr)
    else:
        print('check:',address_register_problem('h.co',NAME))
        d=subprocess.run(['llvm-objdump','-d','--mcpu=gfx950','h.co'],capture_output=True,text=True).stdout
        import re
        ad=[int(m,16) for m in re.findall(r'// ([0-9A-F]{12}):',d)]
        print('code bytes',ad[-1]-ad[0]-768)
```

```python
from asm import Asm, vr, sr, mfma32
import struct
def f2u(x): return struct.unpack('<I',struct.pack('<f',x))[0]
NAME="gated_mix__softmax_full_mha__sliding_block__prompt_kernel"
QF=0; KF=4<<20; VF=8<<20; GOFF=12<<20; OF=16<<20; FL=30<<20; WS_SIZE=31<<20
FL_EPOCH=0; FL_F0=1024; FL_F1=2048; FL_F2=8192; FL_F2B=16384; FL_F2A=32768
FSTR=16
F1STR=4
STAMP_OFF=32<<20
QSCALE=0.25*1.4426950408889634
NEG=f2u(-2.0**100); LLO=f2u(2.0**-64); LHI=f2u(2.0**64)
SPIN_MAX=1<<20
sNONCE=3; sWS=4
SRD_WS=8; SRD_A=12; SRD_B=16; SRD_C=20; SRD_PT=56
sW=24; sX=25; sI=26; sJ=27; sA=28; sBR=29; sRB=30; sH=31
sMASK=40
sXCC=37; sMODE=39
pWOA=84; pWOB=86; pOUT=88

class Stamps:
    def __init__(s, A, on): s.A=A; s.on=on; s.n=0; s.names=[]; s.skip=('p1_stored',)
    def rt(s,name):
        if not s.on or name in s.skip: return
        s.A("s_memrealtime s[80:81]", "s_waitcnt lgkmcnt(0)", f"s_mov_b32 s{64+s.n}, s80"); s.names.append(name); s.n+=1
    def cyc(s,name):
        if not s.on: return
        s.A("s_memtime s[80:81]", "s_waitcnt lgkmcnt(0)", f"s_mov_b32 s{64+s.n}, s80"); s.names.append(name); s.n+=1
    def flush(s, vtmp):
        if not s.on: return
        A=s.A
        A(f"s_mov_b32 s92, s{sWS}", f"s_mov_b32 s93, s{sWS+1}", "s_mov_b32 s94, 0x10000000", "s_mov_b32 s95, 0x00020000")
        A(f"s_lshl_b32 s80, s2, 3", f"s_add_u32 s80, s80, s{sW}", "s_lshl_b32 s80, s80, 6", f"s_add_u32 s80, s80, {STAMP_OFF}")
        for i in range(s.n):
            A(f"v_mov_b32 v{vtmp}, s{64+i}", f"v_mov_b32 v{vtmp+1}, {4*i}", f"buffer_store_dword v{vtmp}, v{vtmp+1}, s[92:95], s80 offen")

def srd(A, s, base, size):
    A(f"s_mov_b32 s{s}, s{base}", f"s_mov_b32 s{s+1}, s{base+1}", f"s_mov_b32 s{s+2}, {size}", f"s_mov_b32 s{s+3}, 0x00020000")

def poll(A, tag, flag_off_sgpr, vaddr, vtmp, stride=FSTR):
    A(f"s_cmp_lg_u32 s{sW}, 0", f"s_cbranch_scc1 L_{tag}_skip")
    A(f"v_and_b32 v{vaddr}, 31, v0", f"v_mul_u32_u24 v{vaddr}, {stride}, v{vaddr}", f"s_mov_b32 s42, {SPIN_MAX}")
    A(f"L_{tag}_loop:")
    A(f"buffer_load_dword v{vtmp}, v{vaddr}, s[{SRD_WS}:{SRD_WS+3}], s{flag_off_sgpr} offen sc1")
    A("s_waitcnt vmcnt(0)")
    A(f"v_cmp_ne_u32 vcc, s{sNONCE}, v{vtmp}", "s_nop 1", "s_cmp_eq_u64 vcc, 0", f"s_cbranch_scc1 L_{tag}_skip")
    A("s_sub_u32 s42, s42, 1", "s_cmp_eq_u32 s42, 0", f"s_cbranch_scc1 L_{tag}_skip", "s_sleep 1", f"s_branch L_{tag}_loop")
    A(f"L_{tag}_skip:")

def setflag(A, tag, off_sgpr, vt, sc=" sc1"):
    A(f"s_cmp_lg_u32 s{sW}, 0", f"s_cbranch_scc1 L_{tag}_nf")
    A(f"v_mov_b32 v{vt}, s{sNONCE}", f"v_mov_b32 v{vt+1}, 0", "s_mov_b64 exec, 1",
      f"buffer_store_dword v{vt}, v{vt+1}, s[{SRD_WS}:{SRD_WS+3}], s{off_sgpr} offen{sc}", "s_mov_b64 exec, -1")
    A(f"L_{tag}_nf:")

def mfma16(d,a,b,c): return f"v_mfma_f32_16x16x32_bf16 {vr(d,4)}, {vr(a,4)}, {vr(b,4)}, {vr(c,4)}"
def phase1(A, ST, opt):
    lane=2; vX=3; vX2=27; vW=4; t0=5; t1=6; t2=7; g_t=8
    W_=f"s[{SRD_WS}:{SRD_WS+3}]"
    GX=192; GW=196; GA=120
    PT=200; vF0=206; F0V=204
    PTF="sc1 nt"
    DIST=3
    A(f"v_lshlrev_b32 v24, 4, v{lane}")
    A(f"v_lshrrev_b32 v{t0}, 3, v{lane}", f"s_lshl_b32 s42, s{sW}, 3", f"v_add_u32 v{t0}, s42, v{t0}",
      f"v_bfe_u32 v{t1}, v{t0}, 1, 3", f"v_and_b32 v{t2}, 7, v{lane}", f"v_xor_b32 v{t1}, v{t1}, v{t2}",
      f"s_lshl_b32 s43, s{sRB}, 7", f"v_add_u32 v{vX}, s43, v{t0}", f"v_lshlrev_b32 v{vX}, 10, v{vX}",
      f"v_lshl_add_u32 v{vX}, v{t1}, 4, v{vX}", f"v_add_u32 v{vX2}, 0x10000, v{vX}")
    A(f"v_bfe_u32 v{t1}, v{lane}, 4, 1", f"s_and_b32 s42, s{sW}, 1", "s_lshl_b32 s42, s42, 1", f"v_or_b32 v{t1}, s42, v{t1}", f"v_lshlrev_b32 v{t1}, 1, v{t1}",
      f"v_xor_b32 v{t1}, v{t1}, v{t2}", f"v_mul_u32_u24 v{vW}, 3072, v{t0}", f"v_lshl_add_u32 v{vW}, v{t1}, 4, v{vW}",
      f"s_lshl_b32 s45, s{sX}, 7", f"v_add_u32 v{vW}, s45, v{vW}")
    STG=40960
    def dma_groups():
        L=[]
        L.append([f"s_mov_b32 m0, s46", "NOP", f"buffer_load_dwordx4 v{vX}, s[{SRD_A}:{SRD_A+3}], s47 offen lds"])
        L.append([f"s_add_u32 m0, s46, 8192", "NOP", f"buffer_load_dwordx4 v{vX2}, s[{SRD_A}:{SRD_A+3}], s47 offen lds"])
        for seg in range(3):
            L.append([f"s_add_u32 m0, s46, {16384+seg*8192-seg*1024}", "NOP", f"buffer_load_dwordx4 v{vW}, s[{SRD_B}:{SRD_B+3}], s48 offen offset:{seg*1024} lds"])
        return L
    def emit(g): A([("s_nop 0" if x=="NOP" else x) for x in g])
    A(f"s_lshl_b32 s46, s{sW}, 10", "s_mov_b32 s47, 0", "s_mov_b32 s48, 0")
    for g in dma_groups(): emit(g)
    A(f"s_add_u32 s46, s46, {STG}", "s_add_u32 s47, s47, 128", f"s_add_u32 s48, s48, {64*3072}")
    for g in dma_groups(): emit(g)
    A(f"s_lshl_b32 s62, s{sJ}, 8", f"s_and_b32 s42, s{sW}, 3", "s_lshl_b32 s42, s42, 6", "s_add_u32 s62, s62, s42", f"s_lshl_b32 s42, s{sH}, 1", "s_add_u32 s62, s62, s42",
      f"s_lshr_b32 s42, s{sW}, 2", "s_add_u32 s62, s62, s42", "s_lshl_b32 s42, s62, 10",
      f"buffer_load_dwordx4 {vr(GX,4)}, v24, s[{SRD_A}:{SRD_A+3}], s42 offen", f"buffer_load_dwordx4 {vr(GW,4)}, v24, s[{SRD_C}:{SRD_C+3}], 0 offen")
    A(f"s_and_b32 s34, s{sW}, 1", f"s_lshr_b32 s35, s{sW}, 1")
    A(f"s_lshl_b32 s42, s{sX}, 2", "s_add_u32 s42, s42, s35", f"s_lshl_b32 s43, s{sBR}, 5", "s_add_u32 s42, s42, s43",
      "s_lshl_b32 s42, s42, 16", f"s_lshl_b32 s43, s{sRB}, 1", "s_add_u32 s43, s43, s34", "s_lshl_b32 s43, s43, 11", "s_add_u32 s56, s42, s43")
    vPT=207
    A(f"v_lshrrev_b32 v{t0}, 4, v{lane}", f"v_lshlrev_b32 v{vPT}, 22, v{t0}", f"v_bfe_u32 v{t0}, v{lane}, 3, 1", f"v_lshl_add_u32 v{vPT}, v{t0}, 10, v{vPT}",
      f"v_and_b32 v{t0}, 7, v{lane}", f"v_lshl_add_u32 v{vPT}, v{t0}, 7, v{vPT}", f"v_cmp_gt_u32 vcc, 48, v{lane}", f"v_mov_b32 v{t0}, 0x7ffffff0", "s_nop 0",
      f"v_cndmask_b32 v{vPT}, v{t0}, v{vPT}, vcc")
    A(f"v_and_b32 v{vF0}, 31, v{lane}", f"v_lshlrev_b32 v{vF0}, 2, v{vF0}", f"v_lshrrev_b32 v{t0}, 5, v{lane}", f"v_lshl_add_u32 v{vF0}, v{t0}, 10, v{vF0}",
      f"s_lshl_b32 s58, s{sX}, 7", f"s_add_u32 s58, s58, {FL+FL_F0}", f"s_getreg_b32 s{sXCC}, hwreg(HW_REG_XCC_ID, 0, 4)")
    aX=[10,11]; aW=18; m=20
    A(f"v_lshrrev_b32 v{g_t}, 4, v{lane}", f"v_and_b32 v{m}, 15, v{lane}", f"v_lshrrev_b32 v{t0}, 1, v{m}",
      "s_lshl_b32 s42, s34, 6", f"v_add_u32 v{t1}, s42, v{m}", f"v_lshlrev_b32 v{t1}, 7, v{t1}")
    for s_ in range(2):
        A(f"v_or_b32 v{t2}, {4*s_}, v{g_t}", f"v_xor_b32 v{t2}, v{t2}, v{t0}", f"v_lshl_add_u32 v{aX[s_]}, v{t2}, 4, v{t1}")
    A(f"v_bfe_u32 v{t0}, v{lane}, 2, 2", f"v_lshl_add_u32 v{t1}, v{g_t}, 3, v{t0}", f"v_lshlrev_b32 v{t1}, 7, v{t1}",
      f"v_bfe_u32 v{t2}, v{lane}, 3, 1", f"v_bfe_u32 v21, v{lane}, 4, 1", f"v_lshl_or_b32 v{t2}, v21, 1, v{t2}", f"v_lshlrev_b32 v{t2}, 1, v{t2}",
      f"v_bfe_u32 v21, v{lane}, 1, 1", "s_lshl_b32 s42, s35, 1", "v_or_b32 v21, s42, v21", f"v_xor_b32 v{t2}, v{t2}, v21",
      f"v_lshl_add_u32 v{t1}, v{t2}, 4, v{t1}", f"v_and_b32 v21, 1, v{lane}", f"v_lshl_add_u32 v{t1}, v21, 3, v{t1}", f"v_add_u32 v{aW}, 16384, v{t1}")
    TQ=32; TK=48; TV=64
    XF=[80,96]; WF=[[112,116,120+4],[128,132,136]]
    WF=[[112,116,124],[128,132,136]]
    for i in range(48): A(f"v_mov_b32 v{TQ+i}, 0")
    def reads(s_):
        b=s_%2
        if 'p1noread' in opt: return []
        def w(seg): return [f"ds_read_b64_tr_b16 {vr(WF[b][seg]+2*rr,2)}, v{aW} offset:{seg*8192+(32*s_+4*rr)*128}" for rr in range(2)]
        def x(rt): return [f"ds_read_b128 {vr(XF[b]+4*rt,4)}, v{aX[s_]} offset:{rt*2048}"]
        return w(0)+x(0)+x(1)+w(1)+x(2)+x(3)+w(2)
    def mfmas(b):
        L=[]
        for rt in (0,1): L.append(mfma16(TQ+4*rt, WF[b][0], XF[b]+4*rt, TQ+4*rt))
        for rt in (0,1): L.append(mfma16(TK+4*rt, WF[b][1], XF[b]+4*rt, TK+4*rt))
        for rt in (2,3): L.append(mfma16(TQ+4*rt, WF[b][0], XF[b]+4*rt, TQ+4*rt))
        for rt in (2,3): L.append(mfma16(TK+4*rt, WF[b][1], XF[b]+4*rt, TK+4*rt))
        for rt in range(4): L.append(mfma16(TV+4*rt, XF[b]+4*rt, WF[b][2], TV+4*rt))
        if 'p1nomfma' in opt: L=["s_nop 0"]*12
        return L
    A("s_mov_b32 s49, 0", "s_mov_b32 s36, 0", f"s_mov_b32 s53, {STG}")
    if 'stag' not in opt: A("s_mov_b32 s60, 0")
    else: A(f"s_lshr_b32 s60, s{sW}, 2")
    A("s_cmp_eq_u32 s60, 0", "s_cselect_b32 s59, 5, 0", "s_cselect_b32 s61, 0, 5")
    A("s_waitcnt vmcnt(7)", "s_barrier")
    A("s_waitcnt lgkmcnt(0)", f"s_mul_i32 s{sNONCE}, s3, 0x9e3779b1", f"s_add_u32 s{sNONCE}, s{sNONCE}, 0x7f4a7c15")
    ST.rt("p1_data")
    A(reads(0))
    A(f"s_add_u32 s46, s46, {STG}", "s_add_u32 s47, s47, 128", f"s_add_u32 s48, s48, {64*3072}")
    for g in dma_groups(): emit(g)
    A(f"s_cmp_lg_u32 s{sW}, 0", "s_cbranch_scc1 L_f0_nf", f"s_add_u32 s42, s{sNONCE}, s{sXCC}", f"s_lshl_b32 s43, s{sI}, 2", "s_add_u32 s43, s43, s58",
      "v_mov_b32 v5, s42", "v_mov_b32 v6, 0", "s_mov_b64 exec, 1", f"buffer_store_dword v5, v6, {W_}, s43 offen sc1", "s_mov_b64 exec, -1", "L_f0_nf:")
    A(".p2align 3", "P1_loop:")
    A(f"s_add_u32 s50, s49, {DIST}", "s_and_b32 s51, s50, 3", f"s_mul_i32 s51, s51, {STG}", f"s_lshl_b32 s46, s{sW}, 10", "s_add_u32 s46, s46, s51",
      "s_lshl_b32 s47, s50, 7", f"s_mul_i32 s48, s50, {64*3072}")
    G=dma_groups()
    need=[2,3,5,5,6,7,7,7,9,9,9,9]
    STAG=False
    def dmablock(tag, cond_skip):
        A(cond_skip)
        if 'p1nodma' not in opt:
            for g in G: emit(g)
        A("s_cmp_eq_u32 s49, 3", f"s_cbranch_scc1 P1_ptflag{tag}", f"P1_nodma{tag}:")
    mf=mfmas(0); rd=reads(1)
    prev=-1
    for k in range(12):
        if need[k]>prev:
            A(f"s_waitcnt lgkmcnt({(9-need[k])+min(k,10)})"); prev=need[k]
        A(mf[k])
        if k<10 and rd: A(rd[k])
        if k==6: dmablock("A", ["s_cmp_ge_u32 s49, s59", "s_cbranch_scc1 P1_nodmaA"])
    mf=mfmas(1); rd=reads(0)
    A("s_add_u32 s36, s36, 1", "s_cmp_eq_u32 s36, 4", f"s_cselect_b32 s52, {(-3*STG)&0xffffffff:#x}, s53", "s_cselect_b32 s36, 0, s36")
    prev=-1
    NB4=4
    for k in range(NB4):
        if need[k]>prev:
            A(f"s_waitcnt lgkmcnt({9-need[k]})"); prev=need[k]
        A(mf[k])
    A("s_waitcnt lgkmcnt(0)")
    for k in range(2): A(f"v_add_u32 v{aX[k]}, s52, v{aX[k]}")
    A(f"v_add_u32 v{aW}, s52, v{aW}")
    A("s_cmp_eq_u32 s49, 5", "s_cbranch_scc1 P1_drain", "s_cmp_gt_u32 s49, 5", "s_cbranch_scc1 P1_bar", "s_waitcnt vmcnt(10)",
      "s_cmp_eq_u32 s60, 0", "s_cbranch_scc1 P1_bar", "s_waitcnt vmcnt(5)", "P1_bar:", "s_barrier")
    if 'p1it' in opt:
        A("s_memtime s[80:81]", "s_waitcnt lgkmcnt(0)")
        for k in range(7): A(f"s_mov_b32 s{64+8+k}, s{64+9+k}")
        A(f"s_mov_b32 s{64+15}, s80")
    slots=[2,2,1,1,1,1,1,1]
    r_=0
    for k in range(NB4,12):
        A(mf[k])
        n=slots[k-NB4]
        if rd: A(rd[r_:r_+n])
        r_+=n
        if k==7: dmablock("B", ["s_cmp_ge_u32 s49, s61", "s_cbranch_scc1 P1_nodmaB"])
    A("s_add_u32 s49, s49, 1", "s_cmp_lt_u32 s49, 8", "s_cbranch_scc1 P1_loop")
    ST.rt("p1_loop")
    if 'p1it' in opt:
        ST.n=16; ST.flush(210); A("s_waitcnt vmcnt(0)", "s_endpgm")
    A("s_branch P1_after")
    for tag in "AB": A(f"P1_ptflag{tag}:", f"buffer_load_dword v{F0V}, v{vF0}, {W_}, s58 offen sc1", f"s_branch P1_nodma{tag}")
    A("P1_drain:", "s_waitcnt vmcnt(0)", f"buffer_load_dword v{PT}, v{vPT}, {W_}, s56 offen {PTF}", "s_branch P1_bar")
    A("P1_after:")
    A(f"s_mov_b32 s42, {SPIN_MAX}")
    A("P1_chk:", f"v_subrev_u32 v{F0V+1}, s{sNONCE}, v{F0V}", f"v_cmp_gt_u32 vcc, 8, v{F0V+1}", "s_nop 1", "s_cmp_eq_u32 vcc_lo, -1", "s_cbranch_scc1 P1_chk_ok")
    A("s_sub_u32 s42, s42, 1", "s_cmp_eq_u32 s42, 0", "s_cbranch_scc1 P1_chk_ok", "s_sleep 1",
      f"buffer_load_dword v{F0V}, v{vF0}, {W_}, s58 offen sc1", "s_waitcnt vmcnt(0)", "s_branch P1_chk")
    A("P1_chk_ok:", f"v_cmp_eq_u32 vcc, s{sXCC}, v{F0V+1}", "s_nop 1", "s_cmp_eq_u32 vcc_lo, -1", f"s_cselect_b32 s{sMODE}, 1, 0")
    if 'forcesafe' in opt: A(f"s_mov_b32 s{sMODE}, 0")
    if 'fine3' in opt: ST.rt("mode")
    A(f"s_mov_b32 s44, {hex(f2u(QSCALE))}", "s_waitcnt lgkmcnt(0)")
    PK=80
    for t in range(2):
        for i in range(4): A(f"v_cvt_pk_bf16_f32 v{PK+4*t+i}, v{TK+8*t+2*i}, v{TK+8*t+2*i+1}")
    for t in range(2):
        for i in range(4): A(f"v_cvt_pk_bf16_f32 v{PK+8+4*t+i}, v{TV+8*t+2*i}, v{TV+8*t+2*i+1}")
    for i in range(16): A(f"v_mul_f32 v{TQ+i}, s44, v{TQ+i}")
    for t in range(2): A(f"v_permlane16_swap_b32 v{PK+4*t}, v{PK+4*t+2}", f"v_permlane16_swap_b32 v{PK+4*t+1}, v{PK+4*t+3}")
    for t in range(2):
        for i in range(4): A(f"v_cvt_pk_bf16_f32 v{PK+16+4*t+i}, v{TQ+8*t+2*i}, v{TQ+8*t+2*i+1}")
    for t in range(2): A(f"v_permlane32_swap_b32 v{PK+8+4*t}, v{PK+8+4*t+2}", f"v_permlane32_swap_b32 v{PK+8+4*t+1}, v{PK+8+4*t+3}")
    for t in range(2): A(f"v_permlane16_swap_b32 v{PK+16+4*t}, v{PK+16+4*t+2}", f"v_permlane16_swap_b32 v{PK+16+4*t+1}, v{PK+16+4*t+3}")
    A(f"s_add_u32 s45, s56, {KF}", f"s_add_u32 s47, s56, {VF}")
    A(f"s_cmp_eq_u32 s{sMODE}, 0", "s_cbranch_scc1 P1_st_safe")
    for sc,lab in (("",None),(" sc1","P1_st_safe")):
        if lab: A("s_branch P1_st_done", f"{lab}:")
        A(f"buffer_store_dwordx4 {vr(PK,4)}, v24, {W_}, s45 offen{sc}", f"buffer_store_dwordx4 {vr(PK+4,4)}, v24, {W_}, s45 offen offset:1024{sc}")
        A(f"buffer_store_dwordx4 {vr(PK+8,4)}, v24, {W_}, s47 offen{sc}", f"buffer_store_dwordx4 {vr(PK+12,4)}, v24, {W_}, s47 offen offset:1024{sc}")
        A(f"buffer_store_dwordx4 {vr(PK+16,4)}, v24, {W_}, s56 offen{sc}", f"buffer_store_dwordx4 {vr(PK+20,4)}, v24, {W_}, s56 offen offset:1024{sc}")
    A("P1_st_done:")
    if 'fine3' in opt: ST.rt("st_iss")

def gate(A):
    W_=f"s[{SRD_WS}:{SRD_WS+3}]"
    GX=192; GW=196; GA=208
    A(f"v_mov_b32 v{GA}, 0")
    for i in range(4): A(f"v_dot2_f32_bf16 v{GA}, v{GX+i}, v{GW+i}, v{GA}")
    A("s_nop 2")
    for ror in (8,4,2,1):
        A(f"v_add_f32_dpp v{GA}, v{GA}, v{GA} row_ror:{ror} row_mask:0xf bank_mask:0xf", "s_nop 1")
    A(f"v_mov_b32 v{GA+1}, v{GA}", "s_nop 1", f"v_permlane16_swap_b32 v{GA+1}, v{GA}", "s_nop 1", f"v_add_f32 v{GA}, v{GA}, v{GA+1}",
      f"v_mov_b32 v{GA+1}, v{GA}", "s_nop 1", f"v_permlane32_swap_b32 v{GA+1}, v{GA}", "s_nop 1", f"v_add_f32 v{GA}, v{GA}, v{GA+1}")
    A(f"v_mul_f32 v{GA}, {hex(f2u(-1.4426950408889634))}, v{GA}", f"v_exp_f32 v{GA}, v{GA}", "s_nop 0", f"v_add_f32 v{GA}, 1.0, v{GA}", f"v_rcp_f32 v{GA}, v{GA}",
      "s_lshl_b32 s62, s62, 2", f"s_add_u32 s62, s62, {GOFF}", f"v_mov_b32 v{GA+1}, 0")
def gate_store(A):
    A("s_mov_b64 exec, 1", f"buffer_store_dword v208, v209, s[{SRD_WS}:{SRD_WS+3}], s62 offen sc1", "s_mov_b64 exec, -1")

def publish1(A, ST, opt):
    if 'fine3' in opt:
        A("s_waitcnt vmcnt(0)"); ST.rt("vm0")
    A("s_waitcnt vmcnt(0)", "s_barrier")
    if 'fine3' in opt: ST.rt("bar1")
    ST.rt("p1_stored")
    A(f"s_lshl_b32 s42, s{sX}, 7", f"s_lshl_b32 s43, s{sI}, 2", "s_add_u32 s43, s43, s42", f"s_add_u32 s43, s43, {FL+FL_F1}", f"s_add_u32 s38, s42, {FL+FL_F1}")
    A(f"s_cmp_eq_u32 s{sMODE}, 0", "s_cbranch_scc1 L_f1_safe")
    setflag(A,"f1f",43,5,"")
    A("s_branch L_f1_done", "L_f1_safe:")
    setflag(A,"f1s",43,5," sc1")
    A("L_f1_done:")
def sync1(A, ST, opt):
    if 'fine3' in opt: ST.rt("prolog")
    poll(A,"p1",38,2,3,stride=F1STR)
    A("s_barrier")
    ST.rt("p1_flags")

LANE=1
QA0=4; QA1=8; QB=12
OA0=16; OA1=32
S0=48; S1=64
P=80
KB_=88; VB_=210
MF=140; MD=156; CB=96
vKa=172; vVa=173
vL16=174; vT=175; vT2=176; vT3=177; vNEGM=178; vM=179; vKs=180; vVs=181; vX0=182; vPK=184
VL=188
LDS_KA=0; LDS_VA=65536; LDS_KB=131072; LDS_VB=147456
def exps(S): return [f"v_exp_f32 v{S+i}, v{S+i}" for i in range(16)]
def cvts(S): return [f"v_cvt_pk_bf16_f32 v{P+i}, v{S+2*i}, v{S+2*i+1}" for i in range(8)]
MK=[f"s_mov_b64 exec, s[{sMASK}:{sMASK+1}]"]; UM=["s_mov_b64 exec, -1"]
def unit(A, Sc, QK, PV1, ld, wK, wV, PV0):
    e=exps(Sc); c=cvts(Sc)
    A(wK, QK)
    A(e[0:4], c[0], e[4:6], c[1])
    A(PV1, ld)
    A(e[6:8], c[2], e[8:10], c[3], e[10:12])
    A(wV, PV0)
    A(e[12:13], c[4], e[13:15], c[5], e[15:16], c[6], c[7])
def slow_pass(A, tag, Q, O, pass1, far, diag, n):
    A(f"v_mov_b32 v{vX0}, v{vKs}", f"v_mov_b32 v{vX0+1}, v{vVs}", "s_mov_b32 s60, 0")
    if pass1: A(f"v_mov_b32 v{vM}, {hex(NEG)}", f"v_mov_b32 v{vNEGM}, 0")
    else:
        for i in range(16): A(f"v_mov_b32 v{O+i}, 0")
    A(f"L_{tag}_loop:")
    A(f"ds_read_b128 {vr(KB_,4)}, v{vX0}")
    if not pass1: A(MK, f"ds_read_b128 {vr(VB_,4)}, v{vX0+1}", f"ds_read_b128 {vr(VB_+4,4)}, v{vX0+1} offset:512", UM)
    A("s_cmp_eq_u32 s60, 0", f"s_cselect_b32 s61, s{far}, 0", "s_cmp_lg_u32 s61, 0", f"s_cbranch_scc1 L_{tag}_far")
    A(f"s_add_u32 s61, s60, 1", f"s_cmp_eq_u32 s61, s{n}", f"s_cselect_b32 s61, s{diag}, 0", "s_cmp_lg_u32 s61, 0", f"s_cbranch_scc1 L_{tag}_diag")
    for i in range(16): A(f"v_mov_b32 v{CB+i}, v{vNEGM}")
    A(f"s_branch L_{tag}_go")
    A(f"L_{tag}_far:")
    for i in range(16): A(f"v_add_f32 v{CB+i}, v{MF+i}, v{vNEGM}")
    A(f"s_branch L_{tag}_go")
    A(f"L_{tag}_diag:")
    for i in range(16): A(f"v_add_f32 v{CB+i}, v{MD+i}, v{vNEGM}")
    A(f"L_{tag}_go:")
    A("s_waitcnt lgkmcnt(0)", "s_nop 0")
    A(mfma32(S0, KB_, Q, CB))
    A("s_nop 7","s_nop 3")
    if pass1:
        for i in range(16): A(f"v_max_f32 v{vM}, v{vM}, v{S0+i}")
    else:
        A(exps(S0), "s_nop 0", cvts(S0), "s_nop 1")
        A(mfma32(O, VB_, P, O), mfma32(O, VB_+4, P+4, O))
    A(f"v_add_u32 v{vX0}, 1024, v{vX0}", f"v_add_u32 v{vX0+1}, 1024, v{vX0+1}")
    A("s_add_u32 s60, s60, 1", f"s_cmp_lt_u32 s60, s{n}", f"s_cbranch_scc1 L_{tag}_loop")
    if pass1:
        A(f"v_mov_b32 v{vT}, v{vM}", "s_nop 1", f"v_permlane32_swap_b32 v{vT}, v{vM}", "s_nop 1",
          f"v_max_f32 v{vM}, v{vM}, v{vT}", f"v_sub_f32 v{vNEGM}, 0, v{vM}")
    else: A("s_nop 7","s_nop 3")
def bcast_l(A,O):
    A(f"v_mov_b32 v{vT}, v{O+8}", "s_nop 1", f"v_permlane32_swap_b32 v{vT}, v{O+8}", "s_nop 1", f"v_add_f32 v{O+8}, v{O+8}, v{vT}")
def check_range(A, O, okl):
    bcast_l(A,O)
    A(f"v_mov_b32 v{vT}, v{O+8}")
    for i in range(8): A(f"v_fma_f32 v{vT}, v{O+i}, 0, v{vT}")
    A(f"s_mov_b32 s44, {hex(LLO)}", f"s_mov_b32 s45, {hex(LHI)}")
    A(f"v_cmp_le_f32 s[46:47], s44, v{vT}", f"v_cmp_ge_f32 s[48:49], s45, v{vT}", "s_nop 1",
      "s_and_b64 s[46:47], s[46:47], s[48:49]", "s_cmp_eq_u64 s[46:47], -1", f"s_cbranch_scc1 {okl}")
def finalize(A, O, soff):
    A(f"v_rcp_f32 v{vT}, v{O+8}", "s_nop 0")
    for i in range(8): A(f"v_mul_f32 v{O+i}, v{O+i}, v{vT}")
    for i in range(4): A(f"v_cvt_pk_bf16_f32 v{vPK+i}, v{O+2*i}, v{O+2*i+1}")
    A(f"buffer_store_dwordx4 {vr(vPK,4)}, v{vL16}, s[{SRD_WS}:{SRD_WS+3}], s{soff} offen sc1")

def early2(A):
    A(f"v_and_b32 v{LANE}, 63, v0")
    A(f"v_lshlrev_b32 v{vL16}, 4, v{LANE}", f"v_and_b32 v{vT}, 31, v{LANE}")
    A(f"s_mov_b32 s{sMASK}, 0x0000ffff", f"s_mov_b32 s{sMASK+1}, 0x0000ffff")
    A(f"v_cmp_eq_u32 vcc, 16, v{vT}", f"v_mov_b32 v{vX0}, 0x3f803f80", "s_nop 0", f"v_cndmask_b32 v{vX0+1}, 0, v{vX0}, vcc")
    for i in range(16): A(f"v_mov_b32 v{VB_+i}, v{vX0+1}")
    hh=vT3; MS=[82,90,96,98]
    A(f"v_lshrrev_b32 v{hh}, 5, v{LANE}", f"v_lshlrev_b32 v{vT2}, 2, v{hh}", f"v_sub_u32 v{vT2}, v{vT}, v{vT2}")
    A(f"v_mov_b32 v{vX0}, {hex(NEG)}")
    for g in range(4):
        for k in range(4): A(f"v_cmp_gt_i32 s[{MS[k]}:{MS[k]+1}], {8*g+k}, v{vT2}")
        A("s_nop 0")
        for k in range(4):
            i=4*g+k
            A(f"v_cndmask_b32 v{MF+i}, v{vX0}, 0, s[{MS[k]}:{MS[k]+1}]", f"v_cndmask_b32 v{MD+i}, 0, v{vX0}, s[{MS[k]}:{MS[k]+1}]")
    A(f"v_and_b32 v{vT}, 15, v{LANE}", f"v_lshlrev_b32 v{vT}, 4, v{vT}", f"v_lshl_add_u32 v{VL}, v{hh}, 8, v{vT}")

def phase2(A, ST, opt):
    W_=f"s[{SRD_WS}:{SRD_WS+3}]"
    SC="" if 'plainld' in opt else " sc1"
    early2(A)
    A(f"s_and_b32 s15, s{sW}, 3", f"s_lshr_b32 s16, s{sW}, 2")
    A("s_lshl_b32 s17, s15, 1", "s_add_u32 s17, s17, s16",
      f"s_lshl_b32 s18, s{sJ}, 3", "s_add_u32 s19, s18, s17",
      f"s_lshl_b32 s20, s{sH}, 16", f"s_add_u32 s21, s20, {32*65536}")
    A("s_lshl_b32 s43, s17, 10", f"s_add_u32 s44, s43, {LDS_KB}", f"v_add_u32 v{vKa}, s44, v{vL16}",
      f"s_add_u32 s44, s43, {LDS_VB}", f"v_add_u32 v{vVa}, s44, v{VL}")
    A("s_lshl_b32 s32, s19, 16", f"s_lshl_b32 s33, s{sH}, 10", "s_add_u32 s32, s32, s33", f"s_add_u32 s32, s32, {OF}", "s_add_u32 s33, s32, 32768")
    A("s_lshl_b32 s22, s19, 10", "s_add_u32 s22, s22, s21", f"s_add_u32 s22, s22, {QF}")
    A("s_lshl_b32 s23, s19, 10", "s_add_u32 s23, s23, s20", f"s_add_u32 s23, s23, {QF}", "s_xor_b32 s14, s19, 1", "s_lshl_b32 s14, s14, 10", "s_add_u32 s14, s14, s20", f"s_add_u32 s14, s14, {QF}")
    for ii in range(2):
        A(f"s_add_u32 s43, s{sW}, {8*ii}", "s_add_u32 s44, s18, s43", "s_sub_u32 s44, s44, 8", "s_max_i32 s44, s44, 0",
          "s_lshl_b32 s44, s44, 10", "s_add_u32 s44, s44, s21", f"s_add_u32 s{54+ii}, s44, {KF}")
    A(f"s_lshl_b32 s56, s{sW}, 10", "s_add_u32 s57, s56, s20", f"s_add_u32 s57, s57, {KF}")
    publish1(A,ST,opt)
    OBz=OA0
    for i in range(16): A(f"v_mov_b32 v{OBz+i}, 0")
    for i in range(4): A(f"v_mov_b32 v{P+4+i}, 0")
    gate(A)
    sync1(A,ST,opt)
    A(f"buffer_load_dwordx4 {vr(QB,4)}, v{vL16}, {W_}, s22 offen{SC}")
    if 'fine2' in opt:
        A("s_waitcnt vmcnt(0)"); ST.rt("qb_landed")
    for ii in range(2):
        A(f"s_add_u32 m0, s56, {LDS_KB+8192*ii}", f"s_add_u32 s45, s{54+ii}, {VF-KF}", f"buffer_load_dwordx4 v{vL16}, {W_}, s{54+ii} offen{SC} lds")
        A(f"s_add_u32 m0, s56, {LDS_VB+8192*ii}", "s_nop 0", f"buffer_load_dwordx4 v{vL16}, {W_}, s45 offen{SC} lds")
    A(f"buffer_load_dwordx4 {vr(QA0,4)}, v{vL16}, {W_}, s23 offen{SC}", f"buffer_load_dwordx4 {vr(QA1,4)}, v{vL16}, {W_}, s14 offen{SC}")
    def adma(m):
        return [f"s_add_u32 m0, s56, {LDS_KA+m*8192}", f"s_add_u32 s45, s57, {m*8192}", f"buffer_load_dwordx4 v{vL16}, {W_}, s45 offen{SC} lds",
                f"s_add_u32 m0, s56, {LDS_VA+m*8192}", f"s_add_u32 s45, s57, {VF-KF+m*8192}", f"buffer_load_dwordx4 v{vL16}, {W_}, s45 offen{SC} lds"]
    global ADMA; ADMA=adma
    A("s_waitcnt vmcnt(2)")
    OB=OA0
    if 'fine3' in opt: ST.rt("own_b")
    A("s_barrier")
    ST.rt("b_data")
    if 'fine3' in opt:
        ST.flush(2); A("s_waitcnt vmcnt(0)", "s_endpgm"); ST.on=False
    def ldK(t,base): return [f"ds_read_b128 {vr(KB_+4*(t%2),4)}, v{base} offset:{t*1024}"]
    def ldV(t,base): return MK+[f"ds_read_b128 {vr(VB_+8*(t%2),4)}, v{base} offset:{t*1024}", f"ds_read_b128 {vr(VB_+8*(t%2)+4,4)}, v{base} offset:{t*1024+512}"]+UM
    NB=9
    A("s_mov_b32 s51, 1", f"s_cmp_eq_u32 s{sJ}, 0", "s_cselect_b32 s50, 0, 1", "s_sub_u32 s53, 8, s17", "s_cselect_b32 s53, s53, 0")
    A.L.pop()
    A(f"s_cmp_eq_u32 s{sJ}, 0", "s_cselect_b32 s53, s53, 0")
    A("s_sub_u32 s52, 9, s53")
    A("s_lshl_b32 s43, s53, 10", f"v_add_u32 v{vKs}, s43, v{vKa}", f"v_add_u32 v{vVs}, s43, v{vVa}")
    A("s_cmp_eq_u32 s53, 0", "s_cbranch_scc1 B_pro0", "s_mov_b32 s58, s56", "s_mov_b32 s59, s57", "s_mov_b32 s60, s53", "B_skipdma:")
    A(f"s_add_u32 m0, s58, {LDS_KA}", f"s_add_u32 s45, s59, {VF-KF}", f"buffer_load_dwordx4 v{vL16}, {W_}, s59 offen{SC} lds",
      f"s_add_u32 m0, s58, {LDS_VA}", "s_add_u32 s58, s58, 8192", f"buffer_load_dwordx4 v{vL16}, {W_}, s45 offen{SC} lds",
      "s_add_u32 s59, s59, 8192", "s_sub_u32 s60, s60, 1", "s_cmp_lg_u32 s60, 0", "s_cbranch_scc1 B_skipdma")
    for s0 in range(1,NB):
        A(f"s_cmp_eq_u32 s53, {s0}", f"s_cbranch_scc1 B_pro{s0}")
    for s0 in range(NB-1,-1,-1):
        A(f"B_pro{s0}:")
        Sc=S0 if s0%2==0 else S1
        C = MF if s0==0 else (MD if s0==NB-1 else "0")
        A(ldK(s0,vKa), "s_waitcnt lgkmcnt(0)", mfma32(Sc, KB_+4*(s0%2), QB, C))
        if s0==0:
            A(ldV(0,vVa), ldK(1,vKa))
        else:
            if s0+1<NB: A(ldK(s0+1,vKa))
            A(ldV(s0,vVa))
        A("s_nop 7","s_nop 3")
        if s0!=0: A(f"s_branch B_step{s0}")
    for t in range(NB):
        A(f"B_step{t}:")
        Sc=S0 if t%2==0 else S1; Sn=S1 if t%2==0 else S0
        if t+1<NB:
            QK=[mfma32(Sn, KB_+4*((t+1)%2), QB, MD if t+1==NB-1 else "0")]
            wK=["s_waitcnt lgkmcnt(0)"] if t==0 else ["s_waitcnt lgkmcnt(2)"]
        else: QK=[]; wK=[]
        PV1=[mfma32(OB, VB_+8*((t-1)%2)+4, P+4, OB)] if t>0 else []
        ld=[]
        if t+2<NB: ld+=ldK(t+2,vKa)
        if t+1<NB: ld+=ldV(t+1,vVa)
        nld=(1 if t+2<NB else 0)+(2 if t+1<NB else 0)
        wV=[f"s_waitcnt lgkmcnt({nld})"]
        PV0=[mfma32(OB, VB_+8*(t%2), P, OB)]
        if t<8: ld=ld+ADMA(t)
        unit(A,Sc,QK,PV1,ld,wK,wV,PV0)
    A("s_nop 1", mfma32(OB, VB_+8*((NB-1)%2)+4, P+4, OB))
    A("s_nop 7","s_nop 3")
    check_range(A,OB,"B_ok")
    slow_pass(A,"bf1",QB,OB,True,50,51,52)
    slow_pass(A,"bf2",QB,OB,False,50,51,52)
    bcast_l(A,OB)
    A("B_ok:")
    finalize(A,OB,33)
    ST.rt("b_done")
    A("s_waitcnt vmcnt(1)", "s_barrier")
    ST.rt("a_start")
    gate_store(A)
    if 'dup' in opt: A("s_mov_b32 s54, 2", "A_dup:")
    A("s_lshl_b32 s43, s16, 15", f"v_add_u32 v{vKa}, s43, v{vL16}", f"s_add_u32 s44, s43, {LDS_VA}", f"v_add_u32 v{vVa}, s44, v{VL}")
    for i in range(32): A(f"v_mov_b32 v{OA0+i}, 0")
    for i in range(4): A(f"v_mov_b32 v{P+4+i}, 0")
    Qr=[QA0,QA1]; Or=[OA0,OA1]
    A(ldK(0,vKa), ldV(0,vVa), "s_waitcnt lgkmcnt(2)", mfma32(S0, KB_, QA0, "0"))
    vFv=112; vFz=113; vFa=114; vFb=115
    A(f"s_lshl_b32 s34, s{sJ}, 10", f"s_lshl_b32 s35, s{sH}, 5", "s_add_u32 s34, s34, s35", f"s_lshl_b32 s35, s{sW}, 2", "s_add_u32 s34, s34, s35",
      f"s_add_u32 s35, s34, {FL+FL_F2A}", f"s_add_u32 s34, s34, {FL+FL_F2B}")
    A(f"v_mov_b32 v{vFv}, s{sNONCE}", f"v_mov_b32 v{vFz}, 0")
    A(f"v_lshrrev_b32 v{vFa}, 1, v{LANE}", f"v_lshlrev_b32 v{vFa}, 5, v{vFa}", f"v_and_b32 v{vT}, 1, v{LANE}", f"v_lshl_add_u32 v{vFa}, v{vT}, 4, v{vFa}",
      f"s_and_b32 s36, s{sI}, 3", "s_lshl_b32 s36, s36, 2", f"v_add_u32 v{vFa}, s36, v{vFa}", f"s_lshl_b32 s36, s{sX}, 10", f"s_add_u32 s36, s36, {FL+FL_F2B}")
    A("s_mov_b32 s53, 4", "s_setprio 3", "s_nop 7", "s_nop 1")
    A(".p2align 3", "A_loop:")
    A("s_cmp_eq_u32 s53, 3", "s_cbranch_scc1 A_it1", "s_cmp_eq_u32 s53, 2", "s_cbranch_scc1 A_it2", "s_cmp_eq_u32 s53, 1", "s_cbranch_scc1 A_it3", "A_body:")
    NK=8
    units=[(t,qi) for t in range(NK) for qi in range(2)]
    for u,(t,qi) in enumerate(units):
        Sc=S0 if u%2==0 else S1; Sn=S1 if u%2==0 else S0
        tn,qn=(t,1) if qi==0 else (t+1,0)
        tp,qp=(t-1,1) if qi==0 else (t,0)
        QK=[mfma32(Sn, KB_+4*(tn%2), Qr[qn], "0")]
        PV1=[mfma32(Or[qp], VB_+8*(tp%2)+4, P+4, Or[qp])]
        PV0=[mfma32(Or[qi], VB_+8*(t%2), P, Or[qi])]
        ld=[];wK=[];wV=[]
        if qi==0: ld=ldK(t+1,vKa)+ldV(t+1,vVa); wV=["s_waitcnt lgkmcnt(3)"]
        else: wK=["s_waitcnt lgkmcnt(2)"]
        unit(A,Sc,QK,PV1,ld,wK,wV,PV0)
    A(f"v_add_u32 v{vKa}, {NK*1024}, v{vKa}", f"v_add_u32 v{vVa}, {NK*1024}, v{vVa}")
    A("s_sub_u32 s53, s53, 1", "s_cmp_lg_u32 s53, 0", "s_cbranch_scc1 A_loop")
    A("s_branch A_after")
    A("A_it1:", "s_setprio 2", "s_waitcnt vmcnt(0)", "s_mov_b64 exec, 1", f"buffer_store_dword v{vFv}, v{vFz}, {W_}, s34 offen sc1", "s_mov_b64 exec, -1")
    if 'wbl2' in opt:
        A(f"s_cmp_lg_u32 s{sI}, 0", "s_cbranch_scc1 A_body", f"s_cmp_lg_u32 s{sW}, 0", "s_cbranch_scc1 A_body", "buffer_wbl2 sc1")
    A("s_branch A_body")
    A("A_it2:", "s_setprio 1")
    if 'nopt3' not in opt:
        vP=116
        A(f"s_and_b32 s44, s{sI}, 3", f"s_lshr_b32 s45, s{sI}, 2", "s_and_b32 s46, s44, 1", "s_lshl_b32 s46, s46, 8", f"s_lshl_b32 s47, s{sW}, 5", "s_add_u32 s46, s46, s47",
          f"v_and_b32 v{vP}, 31, v{LANE}", f"v_add_u32 v{vP}, s46, v{vP}", f"v_lshlrev_b32 v{vP}, 10, v{vP}", "s_lshl_b32 s45, s45, 7",
          "s_cmp_lt_u32 s44, 2", f"s_cselect_b32 s48, s{pWOA}, s{pWOB}", f"s_cselect_b32 s49, s{pWOA+1}, s{pWOB+1}")
        A(f"s_mov_b32 s{SRD_PT}, s48", f"s_mov_b32 s{SRD_PT+1}, s49", f"s_mov_b32 s{SRD_PT+2}, {512*512*2}", f"s_mov_b32 s{SRD_PT+3}, 0x00020000",
          f"buffer_load_dword v{vP+1}, v{vP}, s[{SRD_PT}:{SRD_PT+3}], s45 offen")
        if 'ptout' in opt:
            A(f"s_lshl_b32 s46, s{sX}, 8", "s_lshl_b32 s47, s44, 6", "s_add_u32 s46, s46, s47", f"s_lshl_b32 s47, s{sW}, 3", "s_add_u32 s46, s46, s47",
              f"v_and_b32 v{vP}, 7, v{LANE}", f"v_add_u32 v{vP}, s46, v{vP}", f"v_lshlrev_b32 v{vP}, 10, v{vP}",
              f"s_mov_b32 s{SRD_PT}, s{pOUT}", f"s_mov_b32 s{SRD_PT+1}, s{pOUT+1}", f"s_mov_b32 s{SRD_PT+2}, {2048*512*2}", f"s_mov_b32 s{SRD_PT+3}, 0x00020000",
              f"buffer_load_dword v{vP+2}, v{vP}, s[{SRD_PT}:{SRD_PT+3}], s45 offen")
    A("s_branch A_body")
    A("A_it3:", "s_setprio 0", f"buffer_load_dword v{vFb}, v{vFa}, {W_}, s36 offen sc1", "s_branch A_body")
    A("A_after:")
    A(mfma32(OA1, VB_+8*((NK-1)%2)+4, P+4, OA1))
    A("s_waitcnt lgkmcnt(0)", "s_nop 7", "s_nop 3")
    if 'dup' in opt: A("s_sub_u32 s54, s54, 1", "s_cmp_lg_u32 s54, 0", "s_cbranch_scc1 A_dup")
    ST.rt("a_loop")
    A(f"s_mul_i32 s43, s{sW}, 2560", f"s_add_u32 s43, s43, {LDS_KB}", f"v_add_u32 v{vT}, s43, v{vL16}",
      f"v_lshlrev_b32 v{vT2}, 2, v{LANE}", f"v_add_u32 v{vT2}, s43, v{vT2}")
    A(f"ds_write_b128 v{vT}, {vr(OA1,4)}", f"ds_write_b128 v{vT}, {vr(OA1+4,4)} offset:1024", f"ds_write_b32 v{vT2}, v{OA1+8} offset:2048")
    A(f"s_xor_b32 s44, s{sW}, 4", "s_mul_i32 s43, s44, 2560", f"s_add_u32 s43, s43, {LDS_KB}", f"v_add_u32 v{vT}, s43, v{vL16}",
      f"v_lshlrev_b32 v{vT2}, 2, v{LANE}", f"v_add_u32 v{vT2}, s43, v{vT2}")
    A("s_waitcnt lgkmcnt(0)", "s_barrier")
    A(f"ds_read_b128 {vr(S0,4)}, v{vT}", f"ds_read_b128 {vr(S0+4,4)}, v{vT} offset:1024", f"ds_read_b32 v{S0+8}, v{vT2} offset:2048")
    A("s_waitcnt lgkmcnt(0)")
    for i in range(9): A(f"v_add_f32 v{OA0+i}, v{OA0+i}, v{S0+i}")
    check_range(A,OA0,"A_ok")
    A("s_mov_b32 s50, 0", "s_mov_b32 s51, 0", "s_mov_b32 s52, 64")
    A(f"v_add_u32 v{vKs}, {LDS_KA}, v{vL16}", f"v_add_u32 v{vVs}, {LDS_VA}, v{VL}")
    slow_pass(A,"af1",QA0,OA0,True,50,51,52)
    slow_pass(A,"af2",QA0,OA0,False,50,51,52)
    bcast_l(A,OA0)
    A("A_ok:")
    finalize(A,OA0,32)

def phase3(A, ST, opt):
    W_=f"s[{SRD_WS}:{SRD_WS+3}]"
    lane=LANE
    vFv=112; vFz=113; vFa=114; vFb=115
    srd(A,SRD_A,pWOA,512*512*2); srd(A,SRD_B,pWOB,512*512*2); srd(A,SRD_C,pOUT,2048*512*2)
    SA=f"s[{SRD_A}:{SRD_A+3}]"; SB=f"s[{SRD_B}:{SRD_B+3}]"
    A(f"s_and_b32 s50, s{sI}, 3", f"s_lshr_b32 s51, s{sI}, 2")
    A(f"s_and_b32 s52, s{sW}, 1", f"s_bfe_u32 s53, s{sW}, 0x10001", f"s_lshr_b32 s54, s{sW}, 2")
    vW=4
    A(f"v_lshrrev_b32 v5, 3, v{lane}", "v_lshlrev_b32 v5, 10, v5", f"v_bfe_u32 v6, v{lane}, 4, 1", "v_lshlrev_b32 v6, 2, v6", f"v_and_b32 v7, 7, v{lane}",
      "v_xor_b32 v6, v6, v7", "v_lshl_add_u32 v5, v6, 4, v5", "s_lshl_b32 s42, s51, 7", f"v_add_u32 v{vW}, s42, v5", f"v_lshlrev_b32 v3, 4, v{lane}")
    A(f"s_lshl_b32 s42, s{sX}, 3", "s_lshl_b32 s43, s50, 1", "s_add_u32 s42, s42, s43", "s_lshl_b32 s55, s42, 16", f"s_add_u32 s55, s55, {OF}",
      "s_lshl_b32 s43, s53, 14", "s_lshl_b32 s44, s54, 12", "s_add_u32 s43, s43, s44",
      "s_lshl_b32 s56, s52, 15", "s_add_u32 s56, s56, s43", "s_add_u32 s56, s56, 0x10000",
      "s_lshl_b32 s57, s52, 16", "s_add_u32 s57, s57, s43", "s_add_u32 s57, s57, s55")
    def odma(br):
        L=[]
        for r in range(2):
            for ii in range(4):
                L+= [f"s_add_u32 m0, s56, {r*8192+ii*1024}", f"s_add_u32 s45, s57, {br*32768+r*8192+ii*1024}", f"buffer_load_dwordx4 v3, {W_}, s45 offen sc1 lds"]
        return L
    def wdma(S_, n, lds0, row0_sgpr_expr):
        L=[]
        for ii in range(n):
            L+= [f"s_add_u32 m0, s58, {lds0+ii*1024}", f"s_add_u32 s45, s59, {ii*8192}", f"buffer_load_dwordx4 v{vW}, {S_}, s45 offen lds"]
        return L
    A(f"s_lshl_b32 s58, s{sW}, 13", f"s_lshl_b32 s59, s{sW}, 16")
    A("s_barrier")
    A(wdma(SB,8,0,None))
    A("s_waitcnt vmcnt(9)", f"s_mov_b32 s46, {SPIN_MAX}")
    A("P3_bchk:", f"v_cmp_ne_u32 vcc, s{sNONCE}, v{vFb}", "s_nop 1", "s_cmp_eq_u64 vcc, 0", "s_cbranch_scc1 P3_bok",
      "s_sub_u32 s46, s46, 1", "s_cmp_eq_u32 s46, 0", "s_cbranch_scc1 P3_bok", "s_sleep 1",
      f"buffer_load_dword v{vFb}, v{vFa}, {W_}, s36 offen sc1", "s_waitcnt vmcnt(0)", "s_branch P3_bchk", "P3_bok:")
    A(odma(1))
    A("s_waitcnt vmcnt(16)")
    A("s_mov_b64 exec, 1", f"buffer_store_dword v{vFv}, v{vFz}, {W_}, s35 offen sc1", "s_mov_b64 exec, -1")
    ST.rt("o_stored")
    A(f"v_and_b32 v12, 31, v{lane}", f"s_lshl_b32 s44, s{sX}, 8", "s_lshl_b32 s45, s50, 6", "s_add_u32 s44, s44, s45", "s_lshl_b32 s45, s52, 5", "s_add_u32 s44, s44, s45",
      "v_add_u32 v12, s44, v12", "v_lshlrev_b32 v13, 2, v12", f"s_mov_b32 s45, {GOFF}", f"buffer_load_dword v14, v13, {W_}, s45 offen sc1")
    A(f"s_lshl_b32 s58, s{sW}, 12", f"s_lshl_b32 s59, s{sW}, 15")
    A(wdma(SA,4,131072,None))
    A(f"v_lshrrev_b32 v8, 5, v{lane}",
      f"v_bfe_u32 v5, v{lane}, 2, 2", "v_lshl_add_u32 v5, v8, 2, v5", "v_lshlrev_b32 v5, 7, v5",
      f"v_bfe_u32 v6, v{lane}, 4, 1", "v_lshlrev_b32 v6, 1, v6", f"v_bfe_u32 v7, v{lane}, 1, 1", "v_add_u32 v6, v6, v7",
      "s_lshl_b32 s42, s53, 2", "v_add_u32 v6, s42, v6",
      f"v_bfe_u32 v7, v{lane}, 3, 1", "v_lshlrev_b32 v7, 2, v7", "v_xor_b32 v6, v6, v7", "v_lshl_add_u32 v5, v6, 4, v5",
      f"v_and_b32 v7, 1, v{lane}", "v_lshl_add_u32 v5, v7, 3, v5",
      "s_lshl_b32 s42, s54, 15", "v_add_u32 v10, s42, v5")
    A("s_cmp_eq_u32 s54, 0", "s_cselect_b32 s42, 0x20000, 0", "v_add_u32 v9, s42, v5")
    A("s_lshl_b32 s43, s52, 15", "s_lshl_b32 s44, s54, 14", "s_add_u32 s43, s43, s44", "s_add_u32 s43, s43, 0x10000", "v_add_u32 v11, s43, v3")
    ACA=16; ACB=48; WR=[32,36,40,44]; OFr=[64,68,72,76]; WA=128
    for i in range(16): A(f"v_mov_b32 v{ACB+i}, 0", f"v_mov_b32 v{ACA+i}, 0")
    A("s_waitcnt vmcnt(6)", "s_barrier")
    ST.rt("w_landed")
    def wrd(dst, base, n): return [f"ds_read_b64_tr_b16 {vr(dst,2)}, v{base} offset:{(16*n)*128}", f"ds_read_b64_tr_b16 {vr(dst+2,2)}, v{base} offset:{(16*n+8)*128}"]
    def rd3(n): return wrd(WR[n%4],10,n)+[f"ds_read_b128 {vr(OFr[n%4],4)}, v11 offset:{n*1024}"]
    for n in range(3): A(rd3(n))
    for n in range(16):
        if n+3<16: A(rd3(n+3))
        A(f"s_waitcnt lgkmcnt({3*min(3,15-n)})")
        A(mfma32(ACB, WR[n%4], OFr[n%4], ACB))
    ST.rt("b_half")
    A("s_waitcnt vmcnt(0)", "s_barrier")
    A(f"s_add_u32 s59, s59, {256*1024}")
    A(wdma(SA,4,0,None))
    A(f"s_add_u32 s36, s36, {FL_F2A-FL_F2B}")
    A(f"s_cmp_lg_u32 s{sW}, 0", "s_cbranch_scc1 P3_askip", f"s_mov_b32 s46, {SPIN_MAX}")
    A("P3_achk:", f"buffer_load_dword v{vFb}, v{vFa}, {W_}, s36 offen sc1", "s_waitcnt vmcnt(0)",
      f"v_cmp_ne_u32 vcc, s{sNONCE}, v{vFb}", "s_nop 1", "s_cmp_eq_u64 vcc, 0", "s_cbranch_scc1 P3_askip",
      "s_sub_u32 s46, s46, 1", "s_cmp_eq_u32 s46, 0", "s_cbranch_scc1 P3_askip", "s_branch P3_achk", "P3_askip:")
    A("s_waitcnt vmcnt(0)", "s_barrier")
    ST.rt("p2_flags")
    A(odma(0))
    A("s_cmp_lg_u32 s2, 0", "s_cbranch_scc1 P3_noep", f"s_mov_b32 s43, {FL+FL_EPOCH}")
    setflag(A,"ep",43,5)
    A("P3_noep:")
    for n in range(16):
        A(wrd(WA+4*n,9,n))
        if n%4==3: A("s_waitcnt lgkmcnt(4)")
    for r in range(2):
        A(f"s_waitcnt vmcnt({4-4*r}) lgkmcnt(0)", "s_barrier")
        for s_ in range(4): A(f"ds_read_b128 {vr(OFr[s_],4)}, v11 offset:{(8*r+s_)*1024}")
        for s_ in range(8):
            n=8*r+s_
            A(f"s_waitcnt lgkmcnt({3 if s_<5 else 7-s_})")
            A(mfma32(ACA, WA+4*n, OFr[s_%4], ACA))
            if s_<4: A(f"ds_read_b128 {vr(OFr[s_%4],4)}, v11 offset:{(8*r+s_+4)*1024}")
    ST.rt("p3_mfma")
    A("s_nop 7","s_nop 3")
    for i in range(16): A(f"v_sub_f32 v{ACA+i}, v{ACA+i}, v{ACB+i}")
    for i in range(16): A(f"v_fma_f32 v{ACA+i}, v14, v{ACA+i}, v{ACB+i}")
    ACC=ACA
    A(f"s_lshl_b32 s43, s{sW}, 11", "v_add_u32 v5, s43, v3", f"s_xor_b32 s44, s{sW}, 4", "s_lshl_b32 s44, s44, 11", "v_add_u32 v6, s44, v3")
    PK=40
    A("s_cmp_eq_u32 s54, 0", "s_cbranch_scc0 P3_k1")
    for kq,lab in ((0,None),(1,"P3_k1")):
        if lab: A("s_branch P3_kdone", f"{lab}:")
        own=ACC+8*kq; oth=ACC+8*(1-kq)
        A(f"ds_write_b128 v5, {vr(oth,4)}", f"ds_write_b128 v5, {vr(oth+4,4)} offset:1024", "s_waitcnt lgkmcnt(0)", "s_barrier")
        A(f"ds_read_b128 {vr(32,4)}, v6", f"ds_read_b128 {vr(36,4)}, v6 offset:1024", "s_waitcnt lgkmcnt(0)")
        for i in range(8): A(f"v_add_f32 v{own+i}, v{own+i}, v{32+i}")
        for i in range(4): A(f"v_cvt_pk_bf16_f32 v{PK+i}, v{own+2*i}, v{own+2*i+1}")
    A("P3_kdone:")
    A("s_nop 1", f"v_permlane32_swap_b32 v{PK}, v{PK+2}", f"v_permlane32_swap_b32 v{PK+1}, v{PK+3}")
    A("v_lshlrev_b32 v5, 10, v12", "v_lshl_add_u32 v5, v8, 4, v5",
      "s_lshl_b32 s42, s51, 7", "s_lshl_b32 s43, s53, 6", "s_add_u32 s42, s42, s43", "s_lshl_b32 s43, s54, 5", "s_add_u32 s42, s42, s43")
    A(f"buffer_store_dwordx4 {vr(PK,4)}, v5, s[{SRD_C}:{SRD_C+3}], s42 offen")

def gen(opt=()):
    A=Asm(); ST=Stamps(A,'stamps' in opt)
    A(f".globl {NAME}", ".p2align 8", f".type {NAME},@function", f"{NAME}:")
    A("s_cmp_ge_u32 s2, 256", "s_cbranch_scc1 L_done")
    if 'scramble' in opt: A("s_lshr_b32 s3, s2, 3", "s_and_b32 s2, s2, 7", "s_lshl_b32 s2, s2, 5", "s_or_b32 s2, s2, s3")
    A(f"s_load_dwordx2 s[{sWS}:{sWS+1}], s[0:1], 72", "s_load_dwordx2 s[42:43], s[0:1], 0", "s_load_dwordx2 s[44:45], s[0:1], 8",
      "s_load_dwordx2 s[46:47], s[0:1], 32", "s_load_dwordx2 s[48:49], s[0:1], 48",
      f"s_load_dwordx2 s[{pWOA}:{pWOA+1}], s[0:1], 16", f"s_load_dwordx2 s[{pWOB}:{pWOB+1}], s[0:1], 40", f"s_load_dwordx2 s[{pOUT}:{pOUT+1}], s[0:1], 56")
    rot=[int(o[3:]) for o in opt if o.startswith('rot')]
    if rot: A(f"s_add_u32 s{sX}, s2, {rot[0]}", f"s_and_b32 s{sX}, s{sX}, 7")
    else: A(f"s_and_b32 s{sX}, s2, 7")
    A(f"s_lshr_b32 s{sI}, s2, 3", f"s_lshr_b32 s{sJ}, s{sI}, 2", f"s_and_b32 s{sA}, s{sI}, 3",
      f"s_lshr_b32 s{sBR}, s{sA}, 1", f"s_and_b32 s50, s{sA}, 1", f"s_lshl_b32 s{sRB}, s{sJ}, 1", f"s_add_u32 s{sRB}, s{sRB}, s50",
      f"s_lshl_b32 s{sH}, s{sX}, 2", f"s_add_u32 s{sH}, s{sH}, s{sA}")
    A("v_lshrrev_b32 v1, 6, v0", "v_and_b32 v2, 63, v0", "s_nop 0", f"v_readfirstlane_b32 s{sW}, v1")
    if 'pf' in opt:
        A("s_getpc_b64 s[50:51]", "L_pc:", f"s_sub_u32 s50, s50, (L_pc-{NAME})", "s_subb_u32 s51, s51, 0")
        A(f"s_lshl_b32 s52, s{sI}, 1", f"s_add_u32 s52, s52, s{sW}", "s_lshl_b32 s52, s52, 10", "v_lshlrev_b32 v3, 4, v2", "v_add_u32 v3, s52, v3")
        A(f"s_cmp_lt_u32 s{sW}, 2", "s_cbranch_scc0 L_nopf", f"s_cmp_lt_u32 s52, (L_done-{NAME}-1024)", "s_cbranch_scc0 L_nopf",
          "global_load_dwordx4 v[252:255], v3, s[50:51]", "L_nopf:")
    if 'spin60' in opt: A("s_memrealtime s[90:91]")
    A("s_waitcnt lgkmcnt(0)")
    ST.rt("start"); ST.cyc("cyc0")
    A(f"s_add_u32 s6, s{sWS}, {FL+FL_EPOCH}", f"s_addc_u32 s7, s{sWS+1}, 0", "s_load_dword s3, s[6:7], 0")
    srd(A,SRD_WS,sWS,WS_SIZE)
    srd(A,SRD_A,42,2048*512*2)
    A(f"s_cmp_eq_u32 s{sBR}, 0", "s_cselect_b32 s44, s44, s46", "s_cselect_b32 s45, s45, s47")
    srd(A,SRD_B,44,512*1536*2)
    srd(A,SRD_C,48,1024)
    phase1(A,ST,opt)
    phase2(A,ST,opt)
    phase3(A,ST,opt)
    if 'spin60' in opt:
        A("s_waitcnt vmcnt(0)", "L_spin:", "s_memrealtime s[80:81]", "s_waitcnt lgkmcnt(0)", "s_sub_u32 s80, s80, s90", "s_cmp_lt_u32 s80, 6000", "s_cbranch_scc1 L_spin")
    if ST.on: A("s_waitcnt vmcnt(0)")
    ST.rt("end"); ST.cyc("cyc1")
    ST.flush(120)
    A("L_done:", "s_endpgm")
    kd=f""".section .rodata,"a"
.p2align 6
.amdhsa_kernel {NAME}
  .amdhsa_next_free_vgpr 256
  .amdhsa_next_free_sgpr 102
  .amdhsa_accum_offset 256
  .amdhsa_group_segment_fixed_size 0
  .amdhsa_kernarg_size 80
  .amdhsa_user_sgpr_count 2
  .amdhsa_user_sgpr_kernarg_segment_ptr 1
  .amdhsa_system_sgpr_workgroup_id_x 1
.end_amdhsa_kernel
"""
    return A.text(), kd, ST.names

if __name__=='__main__':
    import sys, hazard
    out=sys.argv[1]; opt=tuple(sys.argv[2:])
    HDR=open('gated_mix__softmax_full_mha__sliding_block__prompt.s.ref').read().split('\n')
    hdr=[l for l in HDR if l.startswith(';') and 'launch' not in l.lower() and 'Override' not in l and 'grid=ceil' not in l]
    t,kd,names=gen(opt)
    s='\n'.join(hdr)+'\n'+"; @launch grid=(256,1,1) block=(512,1,1) lds=163840\n"+'.amdgcn_target "amdgcn-amd-amdhsa--gfx950"\n.text\n'+t+kd
    open(out,'w').write(s)
    print('hazards',len(hazard.check(t)),'bytes',len(s),'stamps',','.join(names))
    sys.path.insert(0,'cdna_kernels')
    import subprocess
    from cdna_launch import with_harness_metadata, address_register_problem
    open('h.s','w').write(with_harness_metadata(s,NAME,10,launch_lists=True))
    r=subprocess.run(['clang','-x','assembler','-target','amdgcn-amd-amdhsa','-mcpu=gfx950','h.s','-o','h.co'],capture_output=True,text=True)
    if r.returncode: print(r.stderr)
    else:
        print('check:',address_register_problem('h.co',NAME))
        d=subprocess.run(['llvm-objdump','-d','--mcpu=gfx950','h.co'],capture_output=True,text=True).stdout
        import re
        ad=[int(m,16) for m in re.findall(r'// ([0-9A-F]{12}):',d)]
        print('code bytes',ad[-1]-ad[0]-768)
```

```python
from asm import Asm, vr, sr, mfma32
import struct
def f2u(x): return struct.unpack('<I',struct.pack('<f',x))[0]
NAME="gated_mix__softmax_full_mha__sliding_block__prompt_kernel"
QF=0; KF=4<<20; VF=8<<20; GOFF=12<<20; OF=16<<20; FL=30<<20; WS_SIZE=31<<20
FL_EPOCH=0; FL_F0=1024; FL_F1=2048; FL_F2=8192; FL_F2B=16384; FL_F2A=32768
FSTR=16
F1STR=4
STAMP_OFF=32<<20
QSCALE=0.25*1.4426950408889634
NEG=f2u(-2.0**100); LLO=f2u(2.0**-64); LHI=f2u(2.0**64)
SPIN_MAX=1<<20
sNONCE=3; sWS=4
SRD_WS=8; SRD_A=12; SRD_B=16; SRD_C=20; SRD_PT=56
sW=24; sX=25; sI=26; sJ=27; sA=28; sBR=29; sRB=30; sH=31
sMASK=40
sXCC=37; sMODE=39
pWOA=84; pWOB=86; pOUT=88

class Stamps:
    def __init__(s, A, on): s.A=A; s.on=on; s.n=0; s.names=[]; s.skip=('p1_stored',)
    def rt(s,name):
        if not s.on or name in s.skip: return
        s.A("s_memrealtime s[80:81]", "s_waitcnt lgkmcnt(0)", f"s_mov_b32 s{64+s.n}, s80"); s.names.append(name); s.n+=1
    def cyc(s,name):
        if not s.on: return
        s.A("s_memtime s[80:81]", "s_waitcnt lgkmcnt(0)", f"s_mov_b32 s{64+s.n}, s80"); s.names.append(name); s.n+=1
    def flush(s, vtmp):
        if not s.on: return
        A=s.A
        A(f"s_mov_b32 s92, s{sWS}", f"s_mov_b32 s93, s{sWS+1}", "s_mov_b32 s94, 0x10000000", "s_mov_b32 s95, 0x00020000")
        A(f"s_lshl_b32 s80, s2, 3", f"s_add_u32 s80, s80, s{sW}", "s_lshl_b32 s80, s80, 6", f"s_add_u32 s80, s80, {STAMP_OFF}")
        for i in range(s.n):
            A(f"v_mov_b32 v{vtmp}, s{64+i}", f"v_mov_b32 v{vtmp+1}, {4*i}", f"buffer_store_dword v{vtmp}, v{vtmp+1}, s[92:95], s80 offen")

def srd(A, s, base, size):
    A(f"s_mov_b32 s{s}, s{base}", f"s_mov_b32 s{s+1}, s{base+1}", f"s_mov_b32 s{s+2}, {size}", f"s_mov_b32 s{s+3}, 0x00020000")

def poll(A, tag, flag_off_sgpr, vaddr, vtmp, stride=FSTR):
    A(f"s_cmp_lg_u32 s{sW}, 0", f"s_cbranch_scc1 L_{tag}_skip")
    A(f"v_and_b32 v{vaddr}, 31, v0", f"v_mul_u32_u24 v{vaddr}, {stride}, v{vaddr}", f"s_mov_b32 s42, {SPIN_MAX}")
    A(f"L_{tag}_loop:")
    A(f"buffer_load_dword v{vtmp}, v{vaddr}, s[{SRD_WS}:{SRD_WS+3}], s{flag_off_sgpr} offen sc1")
    A("s_waitcnt vmcnt(0)")
    A(f"v_cmp_ne_u32 vcc, s{sNONCE}, v{vtmp}", "s_nop 1", "s_cmp_eq_u64 vcc, 0", f"s_cbranch_scc1 L_{tag}_skip")
    A("s_sub_u32 s42, s42, 1", "s_cmp_eq_u32 s42, 0", f"s_cbranch_scc1 L_{tag}_skip", "s_sleep 1", f"s_branch L_{tag}_loop")
    A(f"L_{tag}_skip:")

def setflag(A, tag, off_sgpr, vt, sc=" sc1"):
    A(f"s_cmp_lg_u32 s{sW}, 0", f"s_cbranch_scc1 L_{tag}_nf")
    A(f"v_mov_b32 v{vt}, s{sNONCE}", f"v_mov_b32 v{vt+1}, 0", "s_mov_b64 exec, 1",
      f"buffer_store_dword v{vt}, v{vt+1}, s[{SRD_WS}:{SRD_WS+3}], s{off_sgpr} offen{sc}", "s_mov_b64 exec, -1")
    A(f"L_{tag}_nf:")

def mfma16(d,a,b,c): return f"v_mfma_f32_16x16x32_bf16 {vr(d,4)}, {vr(a,4)}, {vr(b,4)}, {vr(c,4)}"
def phase1(A, ST, opt):
    lane=2; vX=3; vW=4; t0=5; t1=6; t2=7; g_t=8
    W_=f"s[{SRD_WS}:{SRD_WS+3}]"
    GX=232; GW=236
    PT=240; F0V=244; vF0=246; vPT=247
    PTF="sc1 nt"
    if 'ptsc1' in opt: PTF="sc1"
    if 'ptplain' in opt: PTF=""
    PTC=int([o[3:] for o in opt if o.startswith('ptc')][0]) if any(o.startswith('ptc') for o in opt) else 5
    if 'nopt1' in opt: PTC=99
    STG=40960
    A(f"v_lshlrev_b32 v24, 4, v{lane}")
    A(f"s_cmp_ge_u32 s{sW}, 4", "s_cbranch_scc1 P1_loader")
    n_save=ST.n; names_save=list(ST.names)
    def gate_loads():
        A(f"s_lshl_b32 s62, s{sJ}, 8", f"s_and_b32 s42, s{sW}, 3", "s_lshl_b32 s42, s42, 6", "s_add_u32 s62, s62, s42", f"s_lshl_b32 s42, s{sH}, 1", "s_add_u32 s62, s62, s42",
          f"s_lshr_b32 s42, s{sW}, 2", "s_add_u32 s62, s62, s42", "s_lshl_b32 s42, s62, 10",
          f"buffer_load_dwordx4 {vr(GX,4)}, v24, s[{SRD_A}:{SRD_A+3}], s42 offen", f"buffer_load_dwordx4 {vr(GW,4)}, v24, s[{SRD_C}:{SRD_C+3}], 0 offen")
    gate_loads()
    A(f"s_and_b32 s34, s{sW}, 1", f"s_lshr_b32 s35, s{sW}, 1")
    A(f"s_lshl_b32 s42, s{sX}, 2", "s_lshl_b32 s43, s35, 1", "s_add_u32 s42, s42, s43", f"s_lshl_b32 s43, s{sBR}, 5", "s_add_u32 s42, s42, s43",
      "s_lshl_b32 s42, s42, 16", f"s_lshl_b32 s43, s{sRB}, 1", "s_add_u32 s43, s43, s34", "s_lshl_b32 s43, s43, 11", "s_add_u32 s56, s42, s43")
    A(f"v_and_b32 v{vF0}, 31, v{lane}", f"v_lshlrev_b32 v{vF0}, 2, v{vF0}", f"v_lshrrev_b32 v{t0}, 5, v{lane}", f"v_lshl_add_u32 v{vF0}, v{t0}, 10, v{vF0}",
      f"s_lshl_b32 s58, s{sX}, 7", f"s_add_u32 s58, s58, {FL+FL_F0}", f"s_getreg_b32 s{sXCC}, hwreg(HW_REG_XCC_ID, 0, 4)")
    aX=[10,11]; aW=[18,19]; m=20
    A(f"v_lshrrev_b32 v{g_t}, 4, v{lane}", f"v_and_b32 v{m}, 15, v{lane}", f"v_lshrrev_b32 v{t0}, 1, v{m}",
      "s_lshl_b32 s42, s34, 6", f"v_add_u32 v{t1}, s42, v{m}", f"v_lshlrev_b32 v{t1}, 7, v{t1}")
    for s_ in range(2):
        A(f"v_or_b32 v{t2}, {4*s_}, v{g_t}", f"v_xor_b32 v{t2}, v{t2}, v{t0}", f"v_lshl_add_u32 v{aX[s_]}, v{t2}, 4, v{t1}")
    A(f"v_bfe_u32 v{t0}, v{lane}, 2, 2", f"v_lshl_add_u32 v{t1}, v{g_t}, 3, v{t0}", f"v_lshlrev_b32 v{t1}, 7, v{t1}",
      f"v_and_b32 v21, 1, v{lane}", f"v_lshl_add_u32 v{t1}, v21, 3, v{t1}", f"v_add_u32 v{t1}, 16384, v{t1}",
      f"v_bfe_u32 v{t2}, v{lane}, 3, 1", f"v_bfe_u32 v21, v{lane}, 4, 1", f"v_lshl_or_b32 v{t2}, v21, 1, v{t2}", f"v_lshlrev_b32 v{t2}, 1, v{t2}",
      f"v_bfe_u32 v21, v{lane}, 1, 1", "s_lshl_b32 s42, s35, 2", "v_or_b32 v21, s42, v21")
    for hd in range(2):
        A(f"v_or_b32 v22, {2*hd}, v21", f"v_xor_b32 v22, v{t2}, v22", f"v_lshl_add_u32 v{aW[hd]}, v22, 4, v{t1}")
    def l2pf():
        if 'nol2pf' not in opt:
            C0=int([o[2:] for o in opt if o.startswith('c0')][0]) if any(o.startswith('c0') for o in opt) else 3
            NCH=8-C0
            vq=240
            A(f"s_lshl_b32 s42, s{sRB}, 7", f"s_lshl_b32 s43, s{sBR}, 6", "s_add_u32 s42, s42, s43", f"s_lshl_b32 s43, s{sW}, 4", "s_add_u32 s42, s42, s43",
              f"v_add_u32 v{vq}, s42, v{m}", f"v_lshlrev_b32 v{vq}, 10, v{vq}", f"v_lshl_add_u32 v{vq}, v{g_t}, 7, v{vq}", f"s_movk_i32 s43, {128*C0}",
              f"buffer_load_dword v{vq+2}, v{vq}, s[{SRD_A}:{SRD_A+3}], s43 offen sc1" if 'pfx' in opt else "s_nop 0")
            if NCH>4 and 'pfx' in opt: A(f"buffer_load_dword v{vq+3}, v{vq}, s[{SRD_A}:{SRD_A+3}], s43 offen offset:512 sc1")
            A(f"v_mul_u32_u24 v{vq}, 43, v{lane}", f"v_lshrrev_b32 v{vq}, 7, v{vq}", f"v_mul_u32_u24 v{vq+1}, 3, v{vq}", f"v_sub_u32 v{vq+1}, v{lane}, v{vq+1}",
              f"s_mul_i32 s42, s{sRB}, {4*NCH}", f"s_mul_i32 s43, s{sW}, {NCH}", "s_add_u32 s42, s42, s43", f"s_add_u32 s42, s42, {64*C0}",
              f"v_add_u32 v{vq}, s42, v{vq}", f"v_mul_u32_u24 v{vq}, 3072, v{vq}", f"v_lshl_add_u32 v{vq}, v{vq+1}, 10, v{vq}",
              f"v_cmp_gt_u32 vcc, {3*NCH}, v{lane}", f"v_mov_b32 v{vq+1}, 0x7ff00000", f"s_lshl_b32 s43, s{sX}, 7", f"v_cndmask_b32 v{vq}, v{vq+1}, v{vq}, vcc",
              f"buffer_load_dword v{vq+2}, v{vq}, s[{SRD_B}:{SRD_B+3}], s43 offen sc1{'' if 'nownt' in opt else ' nt'}")
    if 'pfearly' in opt: l2pf()
    def T(hd,a,rt): return 32+48*hd+16*a+4*rt
    XF=[128,144]; WF=[[160,164,168],[172,176,180]]
    for i in range(96): A(f"v_mov_b32 v{32+i}, 0")
    def wrd(hd,a,s_):
        if 'p1noread' in opt: return ["s_nop 0","s_nop 0"]
        return [f"ds_read_b64_tr_b16 {vr(WF[hd][a]+2*rr,2)}, v{aW[hd]} offset:{a*8192+(32*s_+4*rr)*128}" for rr in range(2)]
    def xrd(s_,rt):
        if 'p1noread' in opt: return ["s_nop 0"]
        return [f"ds_read_b128 {vr(XF[s_]+4*rt,4)}, v{aX[s_]} offset:{rt*2048}"]
    def setA(s_): return wrd(0,0,s_)+xrd(s_,0)+xrd(s_,1)+wrd(0,1,s_)+xrd(s_,2)+xrd(s_,3)+wrd(0,2,s_)
    def setB(s_): return wrd(1,0,s_)+wrd(1,1,s_)+wrd(1,2,s_)
    def mf(hd,s_):
        x=XF[s_]; w=WF[hd]; L=[]
        for rt in (0,1): L.append(mfma16(T(hd,0,rt), w[0], x+4*rt, T(hd,0,rt)))
        for rt in (0,1): L.append(mfma16(T(hd,1,rt), w[1], x+4*rt, T(hd,1,rt)))
        for rt in (2,3): L.append(mfma16(T(hd,0,rt), w[0], x+4*rt, T(hd,0,rt)))
        for rt in (2,3): L.append(mfma16(T(hd,1,rt), w[1], x+4*rt, T(hd,1,rt)))
        for rt in range(4): L.append(mfma16(T(hd,2,rt), x+4*rt, w[2], T(hd,2,rt)))
        return L
    needA=[2,3,5,5,6,7,7,7,9,9,9,9]; needB=[1,1,3,3,3,3,3,3,5,5,5,5]
    def half(mfs, need, nold, new, pre=None, at=None):
        prev=-1; issued=0
        for k in range(12):
            if need[k]>prev:
                A(f"s_waitcnt lgkmcnt({(nold-1-need[k])+issued})"); prev=need[k]
            if pre and k==pre[0]: pre[1]()
            A(mfs[k])
            if k>=at and issued<len(new):
                n=1 if (len(new)-issued)<=(12-k-1) else 2
                n=min(n,len(new)-issued)
                A(new[issued:issued+n]); issued+=n
        assert issued==len(new)
    A("s_mov_b32 s49, 0", "s_mov_b32 s36, 0", f"s_mov_b32 s53, {STG}")
    A("s_barrier")
    A("s_waitcnt lgkmcnt(0)", f"s_mul_i32 s{sNONCE}, s3, 0x9e3779b1", f"s_add_u32 s{sNONCE}, s{sNONCE}, 0x7f4a7c15")
    ST.rt("p1_data")
    A(setA(0))
    if 'pfearly' not in opt: l2pf()
    A(f"s_cmp_lg_u32 s{sW}, 0", "s_cbranch_scc1 L_f0_nf", f"s_add_u32 s42, s{sNONCE}, s{sXCC}", f"s_lshl_b32 s43, s{sI}, 2", "s_add_u32 s43, s43, s58",
      "v_mov_b32 v5, s42", "v_mov_b32 v6, 0", "s_mov_b64 exec, 1", f"buffer_store_dword v5, v6, {W_}, s43 offen sc1", "s_mov_b64 exec, -1", "L_f0_nf:")
    A(".p2align 3", "P1_loop:")
    half(mf(0,0), needA, 10, setB(0), at=2)
    half(mf(1,0), needB, 6, setA(1), at=1)
    half(mf(0,1), needA, 10, setB(1), at=2)
    def boundary():
        A("s_add_u32 s36, s36, 1", "s_cmp_eq_u32 s36, 4", f"s_cselect_b32 s52, {(-3*STG)&0xffffffff:#x}, s53", "s_cselect_b32 s36, 0, s36", "s_waitcnt lgkmcnt(0)")
        for r in aX+aW: A(f"v_add_u32 v{r}, s52, v{r}")
        A("s_cmp_eq_u32 s49, 4", "s_cbranch_scc1 P1_f0ld", "P1_f0back:", "s_barrier")
        if 'p1it' in opt:
            A("s_memtime s[80:81]", "s_waitcnt lgkmcnt(0)")
            for k in range(7): A(f"s_mov_b32 s{64+8+k}, s{64+9+k}")
            A(f"s_mov_b32 s{64+15}, s80")
    half(mf(1,1), needB, 6, setA(0), pre=(3,boundary), at=3)
    A("s_add_u32 s49, s49, 1", "s_cmp_lt_u32 s49, 8", "s_cbranch_scc1 P1_loop")
    ST.rt("p1_loop")
    if 'p1it' in opt:
        ST.n=16; ST.flush(210); A("s_waitcnt vmcnt(0)", "s_endpgm")
    A("s_branch P1_after")
    A("P1_f0ld:", f"buffer_load_dword v{F0V}, v{vF0}, {W_}, s58 offen sc1", "s_branch P1_f0back")
    A("P1_after:")
    A("s_waitcnt vmcnt(0)", f"s_mov_b32 s42, {SPIN_MAX}")
    A("P1_chk:", f"v_subrev_u32 v{F0V+1}, s{sNONCE}, v{F0V}", f"v_cmp_gt_u32 vcc, 8, v{F0V+1}", "s_nop 1", "s_cmp_eq_u32 vcc_lo, -1", "s_cbranch_scc1 P1_chk_ok")
    A("s_sub_u32 s42, s42, 1", "s_cmp_eq_u32 s42, 0", "s_cbranch_scc1 P1_chk_ok", "s_sleep 1",
      f"buffer_load_dword v{F0V}, v{vF0}, {W_}, s58 offen sc1", "s_waitcnt vmcnt(0)", "s_branch P1_chk")
    A("P1_chk_ok:", f"v_cmp_eq_u32 vcc, s{sXCC}, v{F0V+1}", "s_nop 1", "s_cmp_eq_u32 vcc_lo, -1", f"s_cselect_b32 s{sMODE}, 1, 0")
    if 'forcesafe' in opt: A(f"s_mov_b32 s{sMODE}, 0")
    if 'fine3' in opt: ST.rt("mode")
    A(f"s_mov_b32 s44, {hex(f2u(QSCALE))}", "s_waitcnt lgkmcnt(0)")
    for hd in range(2):
        PK=128+24*hd
        TQ,TK,TV=T(hd,0,0),T(hd,1,0),T(hd,2,0)
        for t in range(2):
            for i in range(4): A(f"v_cvt_pk_bf16_f32 v{PK+4*t+i}, v{TK+8*t+2*i}, v{TK+8*t+2*i+1}")
        for t in range(2):
            for i in range(4): A(f"v_cvt_pk_bf16_f32 v{PK+8+4*t+i}, v{TV+8*t+2*i}, v{TV+8*t+2*i+1}")
        for i in range(16): A(f"v_mul_f32 v{TQ+i}, s44, v{TQ+i}")
        for t in range(2): A(f"v_permlane16_swap_b32 v{PK+4*t}, v{PK+4*t+2}", f"v_permlane16_swap_b32 v{PK+4*t+1}, v{PK+4*t+3}")
        for t in range(2):
            for i in range(4): A(f"v_cvt_pk_bf16_f32 v{PK+16+4*t+i}, v{TQ+8*t+2*i}, v{TQ+8*t+2*i+1}")
        for t in range(2): A(f"v_permlane32_swap_b32 v{PK+8+4*t}, v{PK+8+4*t+2}", f"v_permlane32_swap_b32 v{PK+8+4*t+1}, v{PK+8+4*t+3}")
        for t in range(2): A(f"v_permlane16_swap_b32 v{PK+16+4*t}, v{PK+16+4*t+2}", f"v_permlane16_swap_b32 v{PK+16+4*t+1}, v{PK+16+4*t+3}")
        A(f"s_add_u32 s46, s56, {hd*65536}", f"s_add_u32 s45, s46, {KF}", f"s_add_u32 s47, s46, {VF}")
        A(f"s_cmp_eq_u32 s{sMODE}, 0", f"s_cbranch_scc1 P1_st_safe{hd}")
        for sc,lab in (("",None),(" sc1",f"P1_st_safe{hd}")):
            if lab: A(f"s_branch P1_st_done{hd}", f"{lab}:")
            A(f"buffer_store_dwordx4 {vr(PK,4)}, v24, {W_}, s45 offen{sc}", f"buffer_store_dwordx4 {vr(PK+4,4)}, v24, {W_}, s45 offen offset:1024{sc}")
            A(f"buffer_store_dwordx4 {vr(PK+8,4)}, v24, {W_}, s47 offen{sc}", f"buffer_store_dwordx4 {vr(PK+12,4)}, v24, {W_}, s47 offen offset:1024{sc}")
            A(f"buffer_store_dwordx4 {vr(PK+16,4)}, v24, {W_}, s46 offen{sc}", f"buffer_store_dwordx4 {vr(PK+20,4)}, v24, {W_}, s46 offen offset:1024{sc}")
        A(f"P1_st_done{hd}:")
    A("s_branch P1_join")
    A("P1_loader:")
    n_end=ST.n; names_end=list(ST.names); ST.n=n_save; ST.names=list(names_save)
    A(f"s_and_b32 s34, s{sW}, 3")
    A(f"v_lshrrev_b32 v{t0}, 3, v{lane}", f"v_and_b32 v{t2}, 7, v{lane}", f"v_lshrrev_b32 v{t1}, 4, v{lane}", f"v_xor_b32 v{t1}, v{t1}, v{t2}",
      f"s_lshl_b32 s42, s{sRB}, 7", "s_lshl_b32 s43, s34, 5", "s_add_u32 s42, s42, s43", f"v_add_u32 v{vX}, s42, v{t0}", f"v_lshlrev_b32 v{vX}, 10, v{vX}",
      f"v_xor_b32 v9, 4, v{t1}", f"v_lshl_add_u32 v9, v9, 4, v{vX}", f"v_add_u32 v9, 8192, v9", f"v_lshl_add_u32 v{vX}, v{t1}, 4, v{vX}")
    A(f"v_add_u32 v10, 0x4000, v{vX}", "v_add_u32 v11, 0x4000, v9")
    A(f"v_bfe_u32 v{t1}, v{lane}, 4, 1", f"v_lshlrev_b32 v{t1}, 1, v{t1}", f"v_xor_b32 v{t1}, v{t1}, v{t2}",
      "s_lshl_b32 s43, s34, 4", f"v_add_u32 v{t0}, s43, v{t0}", f"v_mul_u32_u24 v{vW}, 3072, v{t0}", f"s_lshl_b32 s45, s{sX}, 7", f"v_add_u32 v{vW}, s45, v{vW}",
      f"v_xor_b32 v12, 4, v{t1}", f"v_lshl_add_u32 v12, v12, 4, v{vW}", f"v_add_u32 v12, {8*3072}, v12", f"v_lshl_add_u32 v{vW}, v{t1}, 4, v{vW}")
    def dmas():
        L=[]
        xs=[vX,9,10,11]
        for ii in range(4):
            L.append([f"s_add_u32 m0, s46, {ii*1024}", "NOP", f"buffer_load_dwordx4 v{xs[ii]}, s[{SRD_A}:{SRD_A+3}], s47 offen{' nt' if 'xnt' in opt else ''} lds"])
        for seg in range(3):
            for ii in range(2):
                L.append([f"s_add_u32 m0, s57, {16384+seg*8192+ii*1024-seg*1024}", "NOP", f"buffer_load_dwordx4 v{[vW,12][ii]}, s[{SRD_B}:{SRD_B+3}], s48 offen offset:{seg*1024}{'' if 'nownt' in opt else ' nt'} lds"])
        return L
    def issue():
        A("s_and_b32 s51, s50, 3", f"s_mul_i32 s51, s51, {STG}", "s_lshl_b32 s46, s34, 12", "s_add_u32 s46, s46, s51", "s_lshl_b32 s57, s34, 11", "s_add_u32 s57, s57, s51",
          "s_lshl_b32 s47, s50, 7", f"s_mul_i32 s48, s50, {64*3072}")
        if 'p1nodma' not in opt:
            for g in dmas(): A([("s_nop 0" if x=="NOP" else x) for x in g])
        A("s_add_u32 s50, s50, 1")
    A("s_mov_b32 s50, 0", "s_mov_b32 s49, 0")
    A("P1_lpro:")
    issue()
    A("s_cmp_lt_u32 s50, 2", "s_cbranch_scc1 P1_lpro")
    gate_loads()
    A("s_waitcnt vmcnt(12)", "s_barrier")
    A("s_waitcnt lgkmcnt(0)", f"s_mul_i32 s{sNONCE}, s3, 0x9e3779b1", f"s_add_u32 s{sNONCE}, s{sNONCE}, 0x7f4a7c15")
    ST.rt("p1_data")
    A(f"v_lshrrev_b32 v{t0}, 4, v{lane}", f"v_lshlrev_b32 v{vPT}, 22, v{t0}", f"v_bfe_u32 v{t0}, v{lane}, 3, 1", f"v_lshl_add_u32 v{vPT}, v{t0}, 10, v{vPT}",
      f"v_and_b32 v{t0}, 7, v{lane}", f"v_lshl_add_u32 v{vPT}, v{t0}, 7, v{vPT}", f"v_cmp_gt_u32 vcc, 48, v{lane}", f"v_mov_b32 v{t0}, 0x7ff00000", "s_nop 0",
      f"v_cndmask_b32 v{vPT}, v{t0}, v{vPT}, vcc")
    A("s_and_b32 s42, s34, 1", "s_lshr_b32 s43, s34, 1",
      f"s_lshl_b32 s44, s{sX}, 2", "s_lshl_b32 s43, s43, 1", "s_add_u32 s44, s44, s43", f"s_lshl_b32 s43, s{sBR}, 5", "s_add_u32 s44, s44, s43", "s_lshl_b32 s44, s44, 16",
      f"s_lshl_b32 s43, s{sRB}, 1", "s_add_u32 s43, s43, s42", "s_lshl_b32 s43, s43, 11", "s_add_u32 s56, s44, s43")
    issue_lbl="P1_lloop"
    A("P1_lpro2:")
    issue()
    A("s_cmp_lt_u32 s50, 4", "s_cbranch_scc1 P1_lpro2")
    A("P1_lloop:")
    A("s_cmp_lt_u32 s49, 5", "s_cbranch_scc0 P1_ltail", "s_waitcnt vmcnt(20)", "s_branch P1_lbar")
    A("P1_ltail:", "s_cmp_eq_u32 s49, 5", "s_cbranch_scc0 P1_ltail2", "s_waitcnt vmcnt(10)", "s_branch P1_lbar")
    A("P1_ltail2:", "s_cmp_eq_u32 s49, 6", "s_cbranch_scc0 P1_lbar", f"s_waitcnt vmcnt({2 if PTC==5 else 0})")
    A("P1_lbar:", "s_barrier")
    A("s_cmp_lt_u32 s50, 8", "s_cbranch_scc0 P1_lnoiss")
    issue()
    A("P1_lnoiss:")
    A(f"s_cmp_eq_u32 s49, {PTC}", "s_cbranch_scc0 P1_lnopt", "s_add_u32 s42, s56, 65536",
      f"buffer_load_dword v{PT}, v{vPT}, {W_}, s56 offen {PTF}", f"buffer_load_dword v{PT+1}, v{vPT}, {W_}, s42 offen {PTF}", "P1_lnopt:")
    A("s_add_u32 s49, s49, 1", "s_cmp_lt_u32 s49, 8", "s_cbranch_scc1 P1_lloop")
    ST.rt("p1_loop")
    if 'p1it' in opt:
        A("s_waitcnt vmcnt(0)", "s_endpgm")
    if 'fine3' in opt: ST.rt("mode")
    A(f"s_mov_b32 s{sMODE}, 0")
    A("P1_join:")
    assert ST.n==n_end or 'p1it' in opt
    if 'fine3' in opt: ST.rt("st_iss")

def gate(A):
    W_=f"s[{SRD_WS}:{SRD_WS+3}]"
    GX=232; GW=236; GA=250
    A(f"v_mov_b32 v{GA}, 0")
    for i in range(4): A(f"v_dot2_f32_bf16 v{GA}, v{GX+i}, v{GW+i}, v{GA}")
    A("s_nop 2")
    for ror in (8,4,2,1):
        A(f"v_add_f32_dpp v{GA}, v{GA}, v{GA} row_ror:{ror} row_mask:0xf bank_mask:0xf", "s_nop 1")
    A(f"v_mov_b32 v{GA+1}, v{GA}", "s_nop 1", f"v_permlane16_swap_b32 v{GA+1}, v{GA}", "s_nop 1", f"v_add_f32 v{GA}, v{GA}, v{GA+1}",
      f"v_mov_b32 v{GA+1}, v{GA}", "s_nop 1", f"v_permlane32_swap_b32 v{GA+1}, v{GA}", "s_nop 1", f"v_add_f32 v{GA}, v{GA}, v{GA+1}")
    A(f"v_mul_f32 v{GA}, {hex(f2u(-1.4426950408889634))}, v{GA}", f"v_exp_f32 v{GA}, v{GA}", "s_nop 0", f"v_add_f32 v{GA}, 1.0, v{GA}", f"v_rcp_f32 v{GA}, v{GA}",
      "s_lshl_b32 s62, s62, 2", f"s_add_u32 s62, s62, {GOFF}", f"v_mov_b32 v{GA+1}, 0")
def gate_store(A):
    A("s_mov_b64 exec, 1", f"buffer_store_dword v250, v251, s[{SRD_WS}:{SRD_WS+3}], s62 offen sc1", "s_mov_b64 exec, -1")

def publish1(A, ST, opt):
    if 'fine3' in opt:
        A("s_waitcnt vmcnt(0)"); ST.rt("vm0")
    A("s_waitcnt vmcnt(0)", "s_barrier")
    if 'fine3' in opt: ST.rt("bar1")
    ST.rt("p1_stored")
    A(f"s_lshl_b32 s42, s{sX}, 7", f"s_lshl_b32 s43, s{sI}, 2", "s_add_u32 s43, s43, s42", f"s_add_u32 s43, s43, {FL+FL_F1}", f"s_add_u32 s38, s42, {FL+FL_F1}")
    A(f"s_cmp_eq_u32 s{sMODE}, 0", "s_cbranch_scc1 L_f1_safe")
    setflag(A,"f1f",43,5,"")
    A("s_branch L_f1_done", "L_f1_safe:")
    setflag(A,"f1s",43,5," sc1")
    A("L_f1_done:")
def sync1(A, ST, opt):
    if 'fine3' in opt: ST.rt("prolog")
    poll(A,"p1",38,2,3,stride=F1STR)
    A("s_barrier")
    ST.rt("p1_flags")

LANE=1
QA0=4; QA1=8; QB=12
OA0=16; OA1=32
S0=48; S1=64
P=80
KB_=88; VB_=210
MF=140; MD=156; CB=96
vKa=172; vVa=173
vL16=174; vT=175; vT2=176; vT3=177; vNEGM=178; vM=179; vKs=180; vVs=181; vX0=182; vPK=184
VL=188
LDS_KA=0; LDS_VA=65536; LDS_KB=131072; LDS_VB=147456
def exps(S): return [f"v_exp_f32 v{S+i}, v{S+i}" for i in range(16)]
def cvts(S): return [f"v_cvt_pk_bf16_f32 v{P+i}, v{S+2*i}, v{S+2*i+1}" for i in range(8)]
MK=[f"s_mov_b64 exec, s[{sMASK}:{sMASK+1}]"]; UM=["s_mov_b64 exec, -1"]
def unit(A, Sc, QK, PV1, ld, wK, wV, PV0):
    e=exps(Sc); c=cvts(Sc)
    A(wK, QK)
    A(e[0:4], c[0], e[4:6], c[1])
    A(PV1, ld)
    A(e[6:8], c[2], e[8:10], c[3], e[10:12])
    A(wV, PV0)
    A(e[12:13], c[4], e[13:15], c[5], e[15:16], c[6], c[7])
def slow_pass(A, tag, Q, O, pass1, far, diag, n):
    A(f"v_mov_b32 v{vX0}, v{vKs}", f"v_mov_b32 v{vX0+1}, v{vVs}", "s_mov_b32 s60, 0")
    if pass1: A(f"v_mov_b32 v{vM}, {hex(NEG)}", f"v_mov_b32 v{vNEGM}, 0")
    else:
        for i in range(16): A(f"v_mov_b32 v{O+i}, 0")
    A(f"L_{tag}_loop:")
    A(f"ds_read_b128 {vr(KB_,4)}, v{vX0}")
    if not pass1: A(MK, f"ds_read_b128 {vr(VB_,4)}, v{vX0+1}", f"ds_read_b128 {vr(VB_+4,4)}, v{vX0+1} offset:512", UM)
    A("s_cmp_eq_u32 s60, 0", f"s_cselect_b32 s61, s{far}, 0", "s_cmp_lg_u32 s61, 0", f"s_cbranch_scc1 L_{tag}_far")
    A(f"s_add_u32 s61, s60, 1", f"s_cmp_eq_u32 s61, s{n}", f"s_cselect_b32 s61, s{diag}, 0", "s_cmp_lg_u32 s61, 0", f"s_cbranch_scc1 L_{tag}_diag")
    for i in range(16): A(f"v_mov_b32 v{CB+i}, v{vNEGM}")
    A(f"s_branch L_{tag}_go")
    A(f"L_{tag}_far:")
    for i in range(16): A(f"v_add_f32 v{CB+i}, v{MF+i}, v{vNEGM}")
    A(f"s_branch L_{tag}_go")
    A(f"L_{tag}_diag:")
    for i in range(16): A(f"v_add_f32 v{CB+i}, v{MD+i}, v{vNEGM}")
    A(f"L_{tag}_go:")
    A("s_waitcnt lgkmcnt(0)", "s_nop 0")
    A(mfma32(S0, KB_, Q, CB))
    A("s_nop 7","s_nop 3")
    if pass1:
        for i in range(16): A(f"v_max_f32 v{vM}, v{vM}, v{S0+i}")
    else:
        A(exps(S0), "s_nop 0", cvts(S0), "s_nop 1")
        A(mfma32(O, VB_, P, O), mfma32(O, VB_+4, P+4, O))
    A(f"v_add_u32 v{vX0}, 1024, v{vX0}", f"v_add_u32 v{vX0+1}, 1024, v{vX0+1}")
    A("s_add_u32 s60, s60, 1", f"s_cmp_lt_u32 s60, s{n}", f"s_cbranch_scc1 L_{tag}_loop")
    if pass1:
        A(f"v_mov_b32 v{vT}, v{vM}", "s_nop 1", f"v_permlane32_swap_b32 v{vT}, v{vM}", "s_nop 1",
          f"v_max_f32 v{vM}, v{vM}, v{vT}", f"v_sub_f32 v{vNEGM}, 0, v{vM}")
    else: A("s_nop 7","s_nop 3")
def bcast_l(A,O):
    A(f"v_mov_b32 v{vT}, v{O+8}", "s_nop 1", f"v_permlane32_swap_b32 v{vT}, v{O+8}", "s_nop 1", f"v_add_f32 v{O+8}, v{O+8}, v{vT}")
def check_range(A, O, okl):
    bcast_l(A,O)
    A(f"v_mov_b32 v{vT}, v{O+8}")
    for i in range(8): A(f"v_fma_f32 v{vT}, v{O+i}, 0, v{vT}")
    A(f"s_mov_b32 s44, {hex(LLO)}", f"s_mov_b32 s45, {hex(LHI)}")
    A(f"v_cmp_le_f32 s[46:47], s44, v{vT}", f"v_cmp_ge_f32 s[48:49], s45, v{vT}", "s_nop 1",
      "s_and_b64 s[46:47], s[46:47], s[48:49]", "s_cmp_eq_u64 s[46:47], -1", f"s_cbranch_scc1 {okl}")
def finalize(A, O, soff):
    A(f"v_rcp_f32 v{vT}, v{O+8}", "s_nop 0")
    for i in range(8): A(f"v_mul_f32 v{O+i}, v{O+i}, v{vT}")
    for i in range(4): A(f"v_cvt_pk_bf16_f32 v{vPK+i}, v{O+2*i}, v{O+2*i+1}")
    A(f"buffer_store_dwordx4 {vr(vPK,4)}, v{vL16}, s[{SRD_WS}:{SRD_WS+3}], s{soff} offen sc1")

def early2(A):
    A(f"v_and_b32 v{LANE}, 63, v0")
    A(f"v_lshlrev_b32 v{vL16}, 4, v{LANE}", f"v_and_b32 v{vT}, 31, v{LANE}")
    A(f"s_mov_b32 s{sMASK}, 0x0000ffff", f"s_mov_b32 s{sMASK+1}, 0x0000ffff")
    A(f"v_cmp_eq_u32 vcc, 16, v{vT}", f"v_mov_b32 v{vX0}, 0x3f803f80", "s_nop 0", f"v_cndmask_b32 v{vX0+1}, 0, v{vX0}, vcc")
    for i in range(16): A(f"v_mov_b32 v{VB_+i}, v{vX0+1}")
    hh=vT3; MS=[82,90,96,98]
    A(f"v_lshrrev_b32 v{hh}, 5, v{LANE}", f"v_lshlrev_b32 v{vT2}, 2, v{hh}", f"v_sub_u32 v{vT2}, v{vT}, v{vT2}")
    A(f"v_mov_b32 v{vX0}, {hex(NEG)}")
    for g in range(4):
        for k in range(4): A(f"v_cmp_gt_i32 s[{MS[k]}:{MS[k]+1}], {8*g+k}, v{vT2}")
        A("s_nop 0")
        for k in range(4):
            i=4*g+k
            A(f"v_cndmask_b32 v{MF+i}, v{vX0}, 0, s[{MS[k]}:{MS[k]+1}]", f"v_cndmask_b32 v{MD+i}, 0, v{vX0}, s[{MS[k]}:{MS[k]+1}]")
    A(f"v_and_b32 v{vT}, 15, v{LANE}", f"v_lshlrev_b32 v{vT}, 4, v{vT}", f"v_lshl_add_u32 v{VL}, v{hh}, 8, v{vT}")

def phase2(A, ST, opt):
    W_=f"s[{SRD_WS}:{SRD_WS+3}]"
    SC="" if 'plainld' in opt else " sc1"
    early2(A)
    A(f"s_and_b32 s15, s{sW}, 3", f"s_lshr_b32 s16, s{sW}, 2")
    A("s_lshl_b32 s17, s15, 1", "s_add_u32 s17, s17, s16",
      f"s_lshl_b32 s18, s{sJ}, 3", "s_add_u32 s19, s18, s17",
      f"s_lshl_b32 s20, s{sH}, 16", f"s_add_u32 s21, s20, {32*65536}")
    A("s_lshl_b32 s43, s17, 10", f"s_add_u32 s44, s43, {LDS_KB}", f"v_add_u32 v{vKa}, s44, v{vL16}",
      f"s_add_u32 s44, s43, {LDS_VB}", f"v_add_u32 v{vVa}, s44, v{VL}")
    A("s_lshl_b32 s32, s19, 16", f"s_lshl_b32 s33, s{sH}, 10", "s_add_u32 s32, s32, s33", f"s_add_u32 s32, s32, {OF}", "s_add_u32 s33, s32, 32768")
    A("s_lshl_b32 s22, s19, 10", "s_add_u32 s22, s22, s21", f"s_add_u32 s22, s22, {QF}")
    A("s_lshl_b32 s23, s19, 10", "s_add_u32 s23, s23, s20", f"s_add_u32 s23, s23, {QF}", "s_xor_b32 s14, s19, 1", "s_lshl_b32 s14, s14, 10", "s_add_u32 s14, s14, s20", f"s_add_u32 s14, s14, {QF}")
    for ii in range(2):
        A(f"s_add_u32 s43, s{sW}, {8*ii}", "s_add_u32 s44, s18, s43", "s_sub_u32 s44, s44, 8", "s_max_i32 s44, s44, 0",
          "s_lshl_b32 s44, s44, 10", "s_add_u32 s44, s44, s21", f"s_add_u32 s{54+ii}, s44, {KF}")
    A(f"s_lshl_b32 s56, s{sW}, 10", "s_add_u32 s57, s56, s20", f"s_add_u32 s57, s57, {KF}")
    publish1(A,ST,opt)
    OBz=OA0
    for i in range(16): A(f"v_mov_b32 v{OBz+i}, 0")
    for i in range(4): A(f"v_mov_b32 v{P+4+i}, 0")
    gate(A)
    sync1(A,ST,opt)
    A(f"buffer_load_dwordx4 {vr(QB,4)}, v{vL16}, {W_}, s22 offen{SC}")
    if 'fine2' in opt:
        A("s_waitcnt vmcnt(0)"); ST.rt("qb_landed")
    for ii in range(2):
        A(f"s_add_u32 m0, s56, {LDS_KB+8192*ii}", f"s_add_u32 s45, s{54+ii}, {VF-KF}", f"buffer_load_dwordx4 v{vL16}, {W_}, s{54+ii} offen{SC} lds")
        A(f"s_add_u32 m0, s56, {LDS_VB+8192*ii}", "s_nop 0", f"buffer_load_dwordx4 v{vL16}, {W_}, s45 offen{SC} lds")
    A(f"buffer_load_dwordx4 {vr(QA0,4)}, v{vL16}, {W_}, s23 offen{SC}", f"buffer_load_dwordx4 {vr(QA1,4)}, v{vL16}, {W_}, s14 offen{SC}")
    def adma(m):
        return [f"s_add_u32 m0, s56, {LDS_KA+m*8192}", f"s_add_u32 s45, s57, {m*8192}", f"buffer_load_dwordx4 v{vL16}, {W_}, s45 offen{SC} lds",
                f"s_add_u32 m0, s56, {LDS_VA+m*8192}", f"s_add_u32 s45, s57, {VF-KF+m*8192}", f"buffer_load_dwordx4 v{vL16}, {W_}, s45 offen{SC} lds"]
    global ADMA; ADMA=adma
    A("s_waitcnt vmcnt(2)")
    OB=OA0
    if 'fine3' in opt: ST.rt("own_b")
    A("s_barrier")
    ST.rt("b_data")
    if 'fine3' in opt:
        ST.flush(2); A("s_waitcnt vmcnt(0)", "s_endpgm"); ST.on=False
    def ldK(t,base): return [f"ds_read_b128 {vr(KB_+4*(t%2),4)}, v{base} offset:{t*1024}"]
    def ldV(t,base): return MK+[f"ds_read_b128 {vr(VB_+8*(t%2),4)}, v{base} offset:{t*1024}", f"ds_read_b128 {vr(VB_+8*(t%2)+4,4)}, v{base} offset:{t*1024+512}"]+UM
    NB=9
    A("s_mov_b32 s51, 1", f"s_cmp_eq_u32 s{sJ}, 0", "s_cselect_b32 s50, 0, 1", "s_sub_u32 s53, 8, s17", "s_cselect_b32 s53, s53, 0")
    A.L.pop()
    A(f"s_cmp_eq_u32 s{sJ}, 0", "s_cselect_b32 s53, s53, 0")
    A("s_sub_u32 s52, 9, s53")
    A("s_lshl_b32 s43, s53, 10", f"v_add_u32 v{vKs}, s43, v{vKa}", f"v_add_u32 v{vVs}, s43, v{vVa}")
    A("s_cmp_eq_u32 s53, 0", "s_cbranch_scc1 B_pro0", "s_mov_b32 s58, s56", "s_mov_b32 s59, s57", "s_mov_b32 s60, s53", "B_skipdma:")
    A(f"s_add_u32 m0, s58, {LDS_KA}", f"s_add_u32 s45, s59, {VF-KF}", f"buffer_load_dwordx4 v{vL16}, {W_}, s59 offen{SC} lds",
      f"s_add_u32 m0, s58, {LDS_VA}", "s_add_u32 s58, s58, 8192", f"buffer_load_dwordx4 v{vL16}, {W_}, s45 offen{SC} lds",
      "s_add_u32 s59, s59, 8192", "s_sub_u32 s60, s60, 1", "s_cmp_lg_u32 s60, 0", "s_cbranch_scc1 B_skipdma")
    for s0 in range(1,NB):
        A(f"s_cmp_eq_u32 s53, {s0}", f"s_cbranch_scc1 B_pro{s0}")
    for s0 in range(NB-1,-1,-1):
        A(f"B_pro{s0}:")
        Sc=S0 if s0%2==0 else S1
        C = MF if s0==0 else (MD if s0==NB-1 else "0")
        A(ldK(s0,vKa), "s_waitcnt lgkmcnt(0)", mfma32(Sc, KB_+4*(s0%2), QB, C))
        if s0==0:
            A(ldV(0,vVa), ldK(1,vKa))
        else:
            if s0+1<NB: A(ldK(s0+1,vKa))
            A(ldV(s0,vVa))
        A("s_nop 7","s_nop 3")
        if s0!=0: A(f"s_branch B_step{s0}")
    for t in range(NB):
        A(f"B_step{t}:")
        Sc=S0 if t%2==0 else S1; Sn=S1 if t%2==0 else S0
        if t+1<NB:
            QK=[mfma32(Sn, KB_+4*((t+1)%2), QB, MD if t+1==NB-1 else "0")]
            wK=["s_waitcnt lgkmcnt(0)"] if t==0 else ["s_waitcnt lgkmcnt(2)"]
        else: QK=[]; wK=[]
        PV1=[mfma32(OB, VB_+8*((t-1)%2)+4, P+4, OB)] if t>0 else []
        ld=[]
        if t+2<NB: ld+=ldK(t+2,vKa)
        if t+1<NB: ld+=ldV(t+1,vVa)
        nld=(1 if t+2<NB else 0)+(2 if t+1<NB else 0)
        wV=[f"s_waitcnt lgkmcnt({nld})"]
        PV0=[mfma32(OB, VB_+8*(t%2), P, OB)]
        if t<8: ld=ld+ADMA(t)
        unit(A,Sc,QK,PV1,ld,wK,wV,PV0)
    A("s_nop 1", mfma32(OB, VB_+8*((NB-1)%2)+4, P+4, OB))
    A("s_nop 7","s_nop 3")
    check_range(A,OB,"B_ok")
    slow_pass(A,"bf1",QB,OB,True,50,51,52)
    slow_pass(A,"bf2",QB,OB,False,50,51,52)
    bcast_l(A,OB)
    A("B_ok:")
    finalize(A,OB,33)
    ST.rt("b_done")
    A("s_waitcnt vmcnt(1)", "s_barrier")
    ST.rt("a_start")
    gate_store(A)
    if 'dup' in opt: A("s_mov_b32 s54, 2", "A_dup:")
    A("s_lshl_b32 s43, s16, 15", f"v_add_u32 v{vKa}, s43, v{vL16}", f"s_add_u32 s44, s43, {LDS_VA}", f"v_add_u32 v{vVa}, s44, v{VL}")
    for i in range(32): A(f"v_mov_b32 v{OA0+i}, 0")
    for i in range(4): A(f"v_mov_b32 v{P+4+i}, 0")
    Qr=[QA0,QA1]; Or=[OA0,OA1]
    A(ldK(0,vKa), ldV(0,vVa), "s_waitcnt lgkmcnt(2)", mfma32(S0, KB_, QA0, "0"))
    vFv=112; vFz=113; vFa=114; vFb=115
    A(f"s_lshl_b32 s34, s{sJ}, 10", f"s_lshl_b32 s35, s{sH}, 5", "s_add_u32 s34, s34, s35", f"s_lshl_b32 s35, s{sW}, 2", "s_add_u32 s34, s34, s35",
      f"s_add_u32 s35, s34, {FL+FL_F2A}", f"s_add_u32 s34, s34, {FL+FL_F2B}")
    A(f"v_mov_b32 v{vFv}, s{sNONCE}", f"v_mov_b32 v{vFz}, 0")
    A(f"v_lshrrev_b32 v{vFa}, 1, v{LANE}", f"v_lshlrev_b32 v{vFa}, 5, v{vFa}", f"v_and_b32 v{vT}, 1, v{LANE}", f"v_lshl_add_u32 v{vFa}, v{vT}, 4, v{vFa}",
      f"s_and_b32 s36, s{sI}, 3", "s_lshl_b32 s36, s36, 2", f"v_add_u32 v{vFa}, s36, v{vFa}", f"s_lshl_b32 s36, s{sX}, 10", f"s_add_u32 s36, s36, {FL+FL_F2B}")
    A("s_mov_b32 s53, 4", "s_setprio 3", "s_nop 7", "s_nop 1")
    A(".p2align 3", "A_loop:")
    A("s_cmp_eq_u32 s53, 3", "s_cbranch_scc1 A_it1", "s_cmp_eq_u32 s53, 2", "s_cbranch_scc1 A_it2", "s_cmp_eq_u32 s53, 1", "s_cbranch_scc1 A_it3", "A_body:")
    NK=8
    units=[(t,qi) for t in range(NK) for qi in range(2)]
    for u,(t,qi) in enumerate(units):
        Sc=S0 if u%2==0 else S1; Sn=S1 if u%2==0 else S0
        tn,qn=(t,1) if qi==0 else (t+1,0)
        tp,qp=(t-1,1) if qi==0 else (t,0)
        QK=[mfma32(Sn, KB_+4*(tn%2), Qr[qn], "0")]
        PV1=[mfma32(Or[qp], VB_+8*(tp%2)+4, P+4, Or[qp])]
        PV0=[mfma32(Or[qi], VB_+8*(t%2), P, Or[qi])]
        ld=[];wK=[];wV=[]
        if qi==0: ld=ldK(t+1,vKa)+ldV(t+1,vVa); wV=["s_waitcnt lgkmcnt(3)"]
        else: wK=["s_waitcnt lgkmcnt(2)"]
        unit(A,Sc,QK,PV1,ld,wK,wV,PV0)
    A(f"v_add_u32 v{vKa}, {NK*1024}, v{vKa}", f"v_add_u32 v{vVa}, {NK*1024}, v{vVa}")
    A("s_sub_u32 s53, s53, 1", "s_cmp_lg_u32 s53, 0", "s_cbranch_scc1 A_loop")
    A("s_branch A_after")
    A("A_it1:", "s_setprio 2", "s_waitcnt vmcnt(0)", "s_mov_b64 exec, 1", f"buffer_store_dword v{vFv}, v{vFz}, {W_}, s34 offen sc1", "s_mov_b64 exec, -1")
    if 'wbl2' in opt:
        A(f"s_cmp_lg_u32 s{sI}, 0", "s_cbranch_scc1 A_body", f"s_cmp_lg_u32 s{sW}, 0", "s_cbranch_scc1 A_body", "buffer_wbl2 sc1")
    A("s_branch A_body")
    A("A_it2:", "s_setprio 1")
    if 'nopt3' not in opt:
        vP=116
        A(f"s_and_b32 s44, s{sI}, 3", f"s_lshr_b32 s45, s{sI}, 2", "s_and_b32 s46, s44, 1", "s_lshl_b32 s46, s46, 8", f"s_lshl_b32 s47, s{sW}, 5", "s_add_u32 s46, s46, s47",
          f"v_and_b32 v{vP}, 31, v{LANE}", f"v_add_u32 v{vP}, s46, v{vP}", f"v_lshlrev_b32 v{vP}, 10, v{vP}", "s_lshl_b32 s45, s45, 7",
          "s_cmp_lt_u32 s44, 2", f"s_cselect_b32 s48, s{pWOA}, s{pWOB}", f"s_cselect_b32 s49, s{pWOA+1}, s{pWOB+1}")
        A(f"s_mov_b32 s{SRD_PT}, s48", f"s_mov_b32 s{SRD_PT+1}, s49", f"s_mov_b32 s{SRD_PT+2}, {512*512*2}", f"s_mov_b32 s{SRD_PT+3}, 0x00020000",
          f"buffer_load_dword v{vP+1}, v{vP}, s[{SRD_PT}:{SRD_PT+3}], s45 offen")
        if 'ptout' in opt:
            A(f"s_lshl_b32 s46, s{sX}, 8", "s_lshl_b32 s47, s44, 6", "s_add_u32 s46, s46, s47", f"s_lshl_b32 s47, s{sW}, 3", "s_add_u32 s46, s46, s47",
              f"v_and_b32 v{vP}, 7, v{LANE}", f"v_add_u32 v{vP}, s46, v{vP}", f"v_lshlrev_b32 v{vP}, 10, v{vP}",
              f"s_mov_b32 s{SRD_PT}, s{pOUT}", f"s_mov_b32 s{SRD_PT+1}, s{pOUT+1}", f"s_mov_b32 s{SRD_PT+2}, {2048*512*2}", f"s_mov_b32 s{SRD_PT+3}, 0x00020000",
              f"buffer_load_dword v{vP+2}, v{vP}, s[{SRD_PT}:{SRD_PT+3}], s45 offen")
    A("s_branch A_body")
    A("A_it3:", "s_setprio 0", f"buffer_load_dword v{vFb}, v{vFa}, {W_}, s36 offen sc1", "s_branch A_body")
    A("A_after:")
    A(mfma32(OA1, VB_+8*((NK-1)%2)+4, P+4, OA1))
    A("s_waitcnt lgkmcnt(0)", "s_nop 7", "s_nop 3")
    if 'dup' in opt: A("s_sub_u32 s54, s54, 1", "s_cmp_lg_u32 s54, 0", "s_cbranch_scc1 A_dup")
    ST.rt("a_loop")
    A(f"s_mul_i32 s43, s{sW}, 2560", f"s_add_u32 s43, s43, {LDS_KB}", f"v_add_u32 v{vT}, s43, v{vL16}",
      f"v_lshlrev_b32 v{vT2}, 2, v{LANE}", f"v_add_u32 v{vT2}, s43, v{vT2}")
    A(f"ds_write_b128 v{vT}, {vr(OA1,4)}", f"ds_write_b128 v{vT}, {vr(OA1+4,4)} offset:1024", f"ds_write_b32 v{vT2}, v{OA1+8} offset:2048")
    A(f"s_xor_b32 s44, s{sW}, 4", "s_mul_i32 s43, s44, 2560", f"s_add_u32 s43, s43, {LDS_KB}", f"v_add_u32 v{vT}, s43, v{vL16}",
      f"v_lshlrev_b32 v{vT2}, 2, v{LANE}", f"v_add_u32 v{vT2}, s43, v{vT2}")
    A("s_waitcnt lgkmcnt(0)", "s_barrier")
    A(f"ds_read_b128 {vr(S0,4)}, v{vT}", f"ds_read_b128 {vr(S0+4,4)}, v{vT} offset:1024", f"ds_read_b32 v{S0+8}, v{vT2} offset:2048")
    A("s_waitcnt lgkmcnt(0)")
    for i in range(9): A(f"v_add_f32 v{OA0+i}, v{OA0+i}, v{S0+i}")
    check_range(A,OA0,"A_ok")
    A("s_mov_b32 s50, 0", "s_mov_b32 s51, 0", "s_mov_b32 s52, 64")
    A(f"v_add_u32 v{vKs}, {LDS_KA}, v{vL16}", f"v_add_u32 v{vVs}, {LDS_VA}, v{VL}")
    slow_pass(A,"af1",QA0,OA0,True,50,51,52)
    slow_pass(A,"af2",QA0,OA0,False,50,51,52)
    bcast_l(A,OA0)
    A("A_ok:")
    finalize(A,OA0,32)

def phase3(A, ST, opt):
    W_=f"s[{SRD_WS}:{SRD_WS+3}]"
    lane=LANE
    vFv=112; vFz=113; vFa=114; vFb=115
    srd(A,SRD_A,pWOA,512*512*2); srd(A,SRD_B,pWOB,512*512*2); srd(A,SRD_C,pOUT,2048*512*2)
    SA=f"s[{SRD_A}:{SRD_A+3}]"; SB=f"s[{SRD_B}:{SRD_B+3}]"
    A(f"s_and_b32 s50, s{sI}, 3", f"s_lshr_b32 s51, s{sI}, 2")
    A(f"s_and_b32 s52, s{sW}, 1", f"s_bfe_u32 s53, s{sW}, 0x10001", f"s_lshr_b32 s54, s{sW}, 2")
    vW=4
    A(f"v_lshrrev_b32 v5, 3, v{lane}", "v_lshlrev_b32 v5, 10, v5", f"v_bfe_u32 v6, v{lane}, 4, 1", "v_lshlrev_b32 v6, 2, v6", f"v_and_b32 v7, 7, v{lane}",
      "v_xor_b32 v6, v6, v7", "v_lshl_add_u32 v5, v6, 4, v5", "s_lshl_b32 s42, s51, 7", f"v_add_u32 v{vW}, s42, v5", f"v_lshlrev_b32 v3, 4, v{lane}")
    A(f"s_lshl_b32 s42, s{sX}, 3", "s_lshl_b32 s43, s50, 1", "s_add_u32 s42, s42, s43", "s_lshl_b32 s55, s42, 16", f"s_add_u32 s55, s55, {OF}",
      "s_lshl_b32 s43, s53, 14", "s_lshl_b32 s44, s54, 12", "s_add_u32 s43, s43, s44",
      "s_lshl_b32 s56, s52, 15", "s_add_u32 s56, s56, s43", "s_add_u32 s56, s56, 0x10000",
      "s_lshl_b32 s57, s52, 16", "s_add_u32 s57, s57, s43", "s_add_u32 s57, s57, s55")
    def odma(br):
        L=[]
        for r in range(2):
            for ii in range(4):
                L+= [f"s_add_u32 m0, s56, {r*8192+ii*1024}", f"s_add_u32 s45, s57, {br*32768+r*8192+ii*1024}", f"buffer_load_dwordx4 v3, {W_}, s45 offen sc1 lds"]
        return L
    def wdma(S_, n, lds0, row0_sgpr_expr):
        L=[]
        for ii in range(n):
            L+= [f"s_add_u32 m0, s58, {lds0+ii*1024}", f"s_add_u32 s45, s59, {ii*8192}", f"buffer_load_dwordx4 v{vW}, {S_}, s45 offen lds"]
        return L
    A(f"s_lshl_b32 s58, s{sW}, 13", f"s_lshl_b32 s59, s{sW}, 16")
    A("s_barrier")
    A(wdma(SB,8,0,None))
    A("s_waitcnt vmcnt(9)", f"s_mov_b32 s46, {SPIN_MAX}")
    A("P3_bchk:", f"v_cmp_ne_u32 vcc, s{sNONCE}, v{vFb}", "s_nop 1", "s_cmp_eq_u64 vcc, 0", "s_cbranch_scc1 P3_bok",
      "s_sub_u32 s46, s46, 1", "s_cmp_eq_u32 s46, 0", "s_cbranch_scc1 P3_bok", "s_sleep 1",
      f"buffer_load_dword v{vFb}, v{vFa}, {W_}, s36 offen sc1", "s_waitcnt vmcnt(0)", "s_branch P3_bchk", "P3_bok:")
    A(odma(1))
    A("s_waitcnt vmcnt(16)")
    A("s_mov_b64 exec, 1", f"buffer_store_dword v{vFv}, v{vFz}, {W_}, s35 offen sc1", "s_mov_b64 exec, -1")
    ST.rt("o_stored")
    A(f"v_and_b32 v12, 31, v{lane}", f"s_lshl_b32 s44, s{sX}, 8", "s_lshl_b32 s45, s50, 6", "s_add_u32 s44, s44, s45", "s_lshl_b32 s45, s52, 5", "s_add_u32 s44, s44, s45",
      "v_add_u32 v12, s44, v12", "v_lshlrev_b32 v13, 2, v12", f"s_mov_b32 s45, {GOFF}", f"buffer_load_dword v14, v13, {W_}, s45 offen sc1")
    A(f"s_lshl_b32 s58, s{sW}, 12", f"s_lshl_b32 s59, s{sW}, 15")
    A(wdma(SA,4,131072,None))
    A(f"v_lshrrev_b32 v8, 5, v{lane}",
      f"v_bfe_u32 v5, v{lane}, 2, 2", "v_lshl_add_u32 v5, v8, 2, v5", "v_lshlrev_b32 v5, 7, v5",
      f"v_bfe_u32 v6, v{lane}, 4, 1", "v_lshlrev_b32 v6, 1, v6", f"v_bfe_u32 v7, v{lane}, 1, 1", "v_add_u32 v6, v6, v7",
      "s_lshl_b32 s42, s53, 2", "v_add_u32 v6, s42, v6",
      f"v_bfe_u32 v7, v{lane}, 3, 1", "v_lshlrev_b32 v7, 2, v7", "v_xor_b32 v6, v6, v7", "v_lshl_add_u32 v5, v6, 4, v5",
      f"v_and_b32 v7, 1, v{lane}", "v_lshl_add_u32 v5, v7, 3, v5",
      "s_lshl_b32 s42, s54, 15", "v_add_u32 v10, s42, v5")
    A("s_cmp_eq_u32 s54, 0", "s_cselect_b32 s42, 0x20000, 0", "v_add_u32 v9, s42, v5")
    A("s_lshl_b32 s43, s52, 15", "s_lshl_b32 s44, s54, 14", "s_add_u32 s43, s43, s44", "s_add_u32 s43, s43, 0x10000", "v_add_u32 v11, s43, v3")
    ACA=16; ACB=48; WR=[32,36,40,44]; OFr=[64,68,72,76]; WA=128
    for i in range(16): A(f"v_mov_b32 v{ACB+i}, 0", f"v_mov_b32 v{ACA+i}, 0")
    A("s_waitcnt vmcnt(6)", "s_barrier")
    ST.rt("w_landed")
    def wrd(dst, base, n): return [f"ds_read_b64_tr_b16 {vr(dst,2)}, v{base} offset:{(16*n)*128}", f"ds_read_b64_tr_b16 {vr(dst+2,2)}, v{base} offset:{(16*n+8)*128}"]
    def rd3(n): return wrd(WR[n%4],10,n)+[f"ds_read_b128 {vr(OFr[n%4],4)}, v11 offset:{n*1024}"]
    for n in range(3): A(rd3(n))
    for n in range(16):
        if n+3<16: A(rd3(n+3))
        A(f"s_waitcnt lgkmcnt({3*min(3,15-n)})")
        A(mfma32(ACB, WR[n%4], OFr[n%4], ACB))
    ST.rt("b_half")
    A("s_waitcnt vmcnt(0)", "s_barrier")
    A(f"s_add_u32 s59, s59, {256*1024}")
    A(wdma(SA,4,0,None))
    A(f"s_add_u32 s36, s36, {FL_F2A-FL_F2B}")
    A(f"s_cmp_lg_u32 s{sW}, 0", "s_cbranch_scc1 P3_askip", f"s_mov_b32 s46, {SPIN_MAX}")
    A("P3_achk:", f"buffer_load_dword v{vFb}, v{vFa}, {W_}, s36 offen sc1", "s_waitcnt vmcnt(0)",
      f"v_cmp_ne_u32 vcc, s{sNONCE}, v{vFb}", "s_nop 1", "s_cmp_eq_u64 vcc, 0", "s_cbranch_scc1 P3_askip",
      "s_sub_u32 s46, s46, 1", "s_cmp_eq_u32 s46, 0", "s_cbranch_scc1 P3_askip", "s_branch P3_achk", "P3_askip:")
    A("s_waitcnt vmcnt(0)", "s_barrier")
    ST.rt("p2_flags")
    A(odma(0))
    A("s_cmp_lg_u32 s2, 0", "s_cbranch_scc1 P3_noep", f"s_mov_b32 s43, {FL+FL_EPOCH}")
    setflag(A,"ep",43,5)
    A("P3_noep:")
    for n in range(16):
        A(wrd(WA+4*n,9,n))
        if n%4==3: A("s_waitcnt lgkmcnt(4)")
    for r in range(2):
        A(f"s_waitcnt vmcnt({4-4*r}) lgkmcnt(0)", "s_barrier")
        for s_ in range(4): A(f"ds_read_b128 {vr(OFr[s_],4)}, v11 offset:{(8*r+s_)*1024}")
        for s_ in range(8):
            n=8*r+s_
            A(f"s_waitcnt lgkmcnt({3 if s_<5 else 7-s_})")
            A(mfma32(ACA, WA+4*n, OFr[s_%4], ACA))
            if s_<4: A(f"ds_read_b128 {vr(OFr[s_%4],4)}, v11 offset:{(8*r+s_+4)*1024}")
    ST.rt("p3_mfma")
    A("s_nop 7","s_nop 3")
    for i in range(16): A(f"v_sub_f32 v{ACA+i}, v{ACA+i}, v{ACB+i}")
    for i in range(16): A(f"v_fma_f32 v{ACA+i}, v14, v{ACA+i}, v{ACB+i}")
    ACC=ACA
    A(f"s_lshl_b32 s43, s{sW}, 11", "v_add_u32 v5, s43, v3", f"s_xor_b32 s44, s{sW}, 4", "s_lshl_b32 s44, s44, 11", "v_add_u32 v6, s44, v3")
    PK=40
    A("s_cmp_eq_u32 s54, 0", "s_cbranch_scc0 P3_k1")
    for kq,lab in ((0,None),(1,"P3_k1")):
        if lab: A("s_branch P3_kdone", f"{lab}:")
        own=ACC+8*kq; oth=ACC+8*(1-kq)
        A(f"ds_write_b128 v5, {vr(oth,4)}", f"ds_write_b128 v5, {vr(oth+4,4)} offset:1024", "s_waitcnt lgkmcnt(0)", "s_barrier")
        A(f"ds_read_b128 {vr(32,4)}, v6", f"ds_read_b128 {vr(36,4)}, v6 offset:1024", "s_waitcnt lgkmcnt(0)")
        for i in range(8): A(f"v_add_f32 v{own+i}, v{own+i}, v{32+i}")
        for i in range(4): A(f"v_cvt_pk_bf16_f32 v{PK+i}, v{own+2*i}, v{own+2*i+1}")
    A("P3_kdone:")
    A("s_nop 1", f"v_permlane32_swap_b32 v{PK}, v{PK+2}", f"v_permlane32_swap_b32 v{PK+1}, v{PK+3}")
    A("v_lshlrev_b32 v5, 10, v12", "v_lshl_add_u32 v5, v8, 4, v5",
      "s_lshl_b32 s42, s51, 7", "s_lshl_b32 s43, s53, 6", "s_add_u32 s42, s42, s43", "s_lshl_b32 s43, s54, 5", "s_add_u32 s42, s42, s43")
    A(f"buffer_store_dwordx4 {vr(PK,4)}, v5, s[{SRD_C}:{SRD_C+3}], s42 offen" + (" sc1" if 'outsc1' in opt else "") + (" nt" if 'outnt' in opt else ""))

def gen(opt=()):
    A=Asm(); ST=Stamps(A,'stamps' in opt)
    A(f".globl {NAME}", ".p2align 8", f".type {NAME},@function", f"{NAME}:")
    A("s_cmp_ge_u32 s2, 256", "s_cbranch_scc1 L_done")
    if 'scramble' in opt: A("s_lshr_b32 s3, s2, 3", "s_and_b32 s2, s2, 7", "s_lshl_b32 s2, s2, 5", "s_or_b32 s2, s2, s3")
    A(f"s_load_dwordx2 s[{sWS}:{sWS+1}], s[0:1], 72", "s_load_dwordx2 s[42:43], s[0:1], 0", "s_load_dwordx2 s[44:45], s[0:1], 8",
      "s_load_dwordx2 s[46:47], s[0:1], 32", "s_load_dwordx2 s[48:49], s[0:1], 48",
      f"s_load_dwordx2 s[{pWOA}:{pWOA+1}], s[0:1], 16", f"s_load_dwordx2 s[{pWOB}:{pWOB+1}], s[0:1], 40", f"s_load_dwordx2 s[{pOUT}:{pOUT+1}], s[0:1], 56")
    rot=[int(o[3:]) for o in opt if o.startswith('rot')]
    if rot: A(f"s_add_u32 s{sX}, s2, {rot[0]}", f"s_and_b32 s{sX}, s{sX}, 7")
    else: A(f"s_and_b32 s{sX}, s2, 7")
    A(f"s_lshr_b32 s{sI}, s2, 3", f"s_lshr_b32 s{sJ}, s{sI}, 2", f"s_and_b32 s{sA}, s{sI}, 3",
      f"s_lshr_b32 s{sBR}, s{sA}, 1", f"s_and_b32 s50, s{sA}, 1", f"s_lshl_b32 s{sRB}, s{sJ}, 1", f"s_add_u32 s{sRB}, s{sRB}, s50",
      f"s_lshl_b32 s{sH}, s{sX}, 2", f"s_add_u32 s{sH}, s{sH}, s{sA}")
    A("v_lshrrev_b32 v1, 6, v0", "v_and_b32 v2, 63, v0", "s_nop 0", f"v_readfirstlane_b32 s{sW}, v1")
    if 'pf' in opt:
        A("s_getpc_b64 s[50:51]", "L_pc:", f"s_sub_u32 s50, s50, (L_pc-{NAME})", "s_subb_u32 s51, s51, 0")
        A(f"s_lshl_b32 s52, s{sI}, 1", f"s_add_u32 s52, s52, s{sW}", "s_lshl_b32 s52, s52, 10", "v_lshlrev_b32 v3, 4, v2", "v_add_u32 v3, s52, v3")
        A(f"s_cmp_lt_u32 s{sW}, 2", "s_cbranch_scc0 L_nopf", f"s_cmp_lt_u32 s52, (L_done-{NAME}-1024)", "s_cbranch_scc0 L_nopf",
          "global_load_dwordx4 v[252:255], v3, s[50:51]", "L_nopf:")
    if 'spin60' in opt: A("s_memrealtime s[90:91]")
    A("s_waitcnt lgkmcnt(0)")
    wb=[int(o[2:]) for o in opt if o.startswith('wb') and o[2:].isdigit()]
    if wb: A(f"s_add_u32 s{sWS}, s{sWS}, {wb[0]<<20}", f"s_addc_u32 s{sWS+1}, s{sWS+1}, 0")
    ST.rt("start"); ST.cyc("cyc0")
    A(f"s_add_u32 s6, s{sWS}, {FL+FL_EPOCH}", f"s_addc_u32 s7, s{sWS+1}, 0", "s_load_dword s3, s[6:7], 0")
    srd(A,SRD_WS,sWS,WS_SIZE)
    srd(A,SRD_A,42,2048*512*2)
    A(f"s_cmp_eq_u32 s{sBR}, 0", "s_cselect_b32 s44, s44, s46", "s_cselect_b32 s45, s45, s47")
    srd(A,SRD_B,44,512*1536*2)
    srd(A,SRD_C,48,1024)
    phase1(A,ST,opt)
    phase2(A,ST,opt)
    phase3(A,ST,opt)
    if 'spin60' in opt:
        A("s_waitcnt vmcnt(0)", "L_spin:", "s_memrealtime s[80:81]", "s_waitcnt lgkmcnt(0)", "s_sub_u32 s80, s80, s90", "s_cmp_lt_u32 s80, 6000", "s_cbranch_scc1 L_spin")
    if ST.on: A("s_waitcnt vmcnt(0)")
    ST.rt("end"); ST.cyc("cyc1")
    ST.flush(120)
    A("L_done:", "s_endpgm")
    kd=f""".section .rodata,"a"
.p2align 6
.amdhsa_kernel {NAME}
  .amdhsa_next_free_vgpr 256
  .amdhsa_next_free_sgpr 102
  .amdhsa_accum_offset 256
  .amdhsa_group_segment_fixed_size 0
  .amdhsa_kernarg_size 80
  .amdhsa_user_sgpr_count 2
  .amdhsa_user_sgpr_kernarg_segment_ptr 1
  .amdhsa_system_sgpr_workgroup_id_x 1
.end_amdhsa_kernel
"""
    return A.text(), kd, ST.names

if __name__=='__main__':
    import sys, hazard
    out=sys.argv[1]; opt=tuple(sys.argv[2:])
    HDR=open('gated_mix__softmax_full_mha__sliding_block__prompt.s.ref').read().split('\n')
    hdr=[l for l in HDR if l.startswith(';') and 'launch' not in l.lower() and 'Override' not in l and 'grid=ceil' not in l]
    t,kd,names=gen(opt)
    s='\n'.join(hdr)+'\n'+"; @launch grid=(256,1,1) block=(512,1,1) lds=163840\n"+'.amdgcn_target "amdgcn-amd-amdhsa--gfx950"\n.text\n'+t+kd
    open(out,'w').write(s)
    print('hazards',len(hazard.check(t)),'bytes',len(s),'stamps',','.join(names))
    sys.path.insert(0,'cdna_kernels')
    import subprocess
    from cdna_launch import with_harness_metadata, address_register_problem
    open('h.s','w').write(with_harness_metadata(s,NAME,10,launch_lists=True))
    r=subprocess.run(['clang','-x','assembler','-target','amdgcn-amd-amdhsa','-mcpu=gfx950','h.s','-o','h.co'],capture_output=True,text=True)
    if r.returncode: print(r.stderr)
    else:
        print('check:',address_register_problem('h.co',NAME))
        d=subprocess.run(['llvm-objdump','-d','--mcpu=gfx950','h.co'],capture_output=True,text=True).stdout
        import re
        ad=[int(m,16) for m in re.findall(r'// ([0-9A-F]{12}):',d)]
        print('code bytes',ad[-1]-ad[0]-768)
```

```python
from asm import Asm, vr, sr, mfma32
import struct
def f2u(x): return struct.unpack('<I',struct.pack('<f',x))[0]
NAME="gated_mix__softmax_full_mha__sliding_block__prompt_kernel"
QF=0; KF=4<<20; VF=8<<20; GOFF=12<<20; OF=16<<20; FL=30<<20; WS_SIZE=31<<20
FL_EPOCH=0; FL_F0=1024; FL_F1=2048; FL_F2=8192; FL_F2B=16384; FL_F2A=32768
FSTR=16
F1STR=4
STAMP_OFF=32<<20
QSCALE=0.25*1.4426950408889634
NEG=f2u(-2.0**100); LLO=f2u(2.0**-64); LHI=f2u(2.0**64)
SPIN_MAX=1<<20
sNONCE=3; sWS=4
SRD_WS=8; SRD_A=12; SRD_B=16; SRD_C=20; SRD_PT=56
sW=24; sX=25; sI=26; sJ=27; sA=28; sBR=29; sRB=30; sH=31
sMASK=40
sXCC=37; sMODE=39
pWOA=84; pWOB=86; pOUT=88

class Stamps:
    def __init__(s, A, on): s.A=A; s.on=on; s.n=0; s.names=[]; s.skip=('p1_stored',); s.probe=None
    def rt(s,name):
        if s.probe==name:
            s.A("s_memrealtime s[100:101]", "s_waitcnt lgkmcnt(0)")
        if not s.on or name in s.skip: return
        s.A("s_memrealtime s[80:81]", "s_waitcnt lgkmcnt(0)", f"s_mov_b32 s{64+s.n}, s80"); s.names.append(name); s.n+=1
    def cyc(s,name):
        if not s.on: return
        s.A("s_memtime s[80:81]", "s_waitcnt lgkmcnt(0)", f"s_mov_b32 s{64+s.n}, s80"); s.names.append(name); s.n+=1
    def flush(s, vtmp):
        if not s.on: return
        A=s.A
        A(f"s_mov_b32 s92, s{sWS}", f"s_mov_b32 s93, s{sWS+1}", "s_mov_b32 s94, 0x10000000", "s_mov_b32 s95, 0x00020000")
        A(f"s_lshl_b32 s80, s2, 3", f"s_add_u32 s80, s80, s{sW}", "s_lshl_b32 s80, s80, 6", f"s_add_u32 s80, s80, {STAMP_OFF}")
        for i in range(s.n):
            A(f"v_mov_b32 v{vtmp}, s{64+i}", f"v_mov_b32 v{vtmp+1}, {4*i}", f"buffer_store_dword v{vtmp}, v{vtmp+1}, s[92:95], s80 offen")

def srd(A, s, base, size):
    A(f"s_mov_b32 s{s}, s{base}", f"s_mov_b32 s{s+1}, s{base+1}", f"s_mov_b32 s{s+2}, {size}", f"s_mov_b32 s{s+3}, 0x00020000")

def poll(A, tag, flag_off_sgpr, vaddr, vtmp, stride=FSTR):
    A(f"s_cmp_lg_u32 s{sW}, 0", f"s_cbranch_scc1 L_{tag}_skip")
    A(f"v_and_b32 v{vaddr}, 31, v0", f"v_mul_u32_u24 v{vaddr}, {stride}, v{vaddr}", f"s_mov_b32 s42, {SPIN_MAX}")
    A(f"L_{tag}_loop:")
    A(f"buffer_load_dword v{vtmp}, v{vaddr}, s[{SRD_WS}:{SRD_WS+3}], s{flag_off_sgpr} offen sc1")
    A("s_waitcnt vmcnt(0)")
    A(f"v_cmp_ne_u32 vcc, s{sNONCE}, v{vtmp}", "s_nop 1", "s_cmp_eq_u64 vcc, 0", f"s_cbranch_scc1 L_{tag}_skip")
    A("s_sub_u32 s42, s42, 1", "s_cmp_eq_u32 s42, 0", f"s_cbranch_scc1 L_{tag}_skip", "s_sleep 1", f"s_branch L_{tag}_loop")
    A(f"L_{tag}_skip:")

def setflag(A, tag, off_sgpr, vt, sc=" sc1"):
    A(f"s_cmp_lg_u32 s{sW}, 0", f"s_cbranch_scc1 L_{tag}_nf")
    A(f"v_mov_b32 v{vt}, s{sNONCE}", f"v_mov_b32 v{vt+1}, 0", "s_mov_b64 exec, 1",
      f"buffer_store_dword v{vt}, v{vt+1}, s[{SRD_WS}:{SRD_WS+3}], s{off_sgpr} offen{sc}", "s_mov_b64 exec, -1")
    A(f"L_{tag}_nf:")

def mfma16(d,a,b,c): return f"v_mfma_f32_16x16x32_bf16 {vr(d,4)}, {vr(a,4)}, {vr(b,4)}, {vr(c,4)}"
def phase1(A, ST, opt):
    lane=2; vX=3; vW=4; t0=5; t1=6; t2=7; g_t=8
    W_=f"s[{SRD_WS}:{SRD_WS+3}]"
    GX=232; GW=236
    PT=240; F0V=244; vF0=246; vPT=247
    PTF="sc1 nt"
    if 'ptsc1' in opt: PTF="sc1"
    if 'ptplain' in opt: PTF=""
    PTC=int([o[3:] for o in opt if o.startswith('ptc')][0]) if any(o.startswith('ptc') for o in opt) else 5
    if 'nopt1' in opt: PTC=99
    STG=40960
    A(f"v_lshlrev_b32 v24, 4, v{lane}")
    A(f"s_cmp_ge_u32 s{sW}, 4", "s_cbranch_scc1 P1_loader")
    n_save=ST.n; names_save=list(ST.names)
    def gate_loads():
        A(f"s_lshl_b32 s62, s{sJ}, 8", f"s_and_b32 s42, s{sW}, 3", "s_lshl_b32 s42, s42, 6", "s_add_u32 s62, s62, s42", f"s_lshl_b32 s42, s{sH}, 1", "s_add_u32 s62, s62, s42",
          f"s_lshr_b32 s42, s{sW}, 2", "s_add_u32 s62, s62, s42", "s_lshl_b32 s42, s62, 10",
          f"buffer_load_dwordx4 {vr(GX,4)}, v24, s[{SRD_A}:{SRD_A+3}], s42 offen", f"buffer_load_dwordx4 {vr(GW,4)}, v24, s[{SRD_C}:{SRD_C+3}], 0 offen")
    gate_loads()
    A(f"s_and_b32 s34, s{sW}, 1", f"s_lshr_b32 s35, s{sW}, 1")
    A(f"s_lshl_b32 s42, s{sX}, 2", "s_lshl_b32 s43, s35, 1", "s_add_u32 s42, s42, s43", f"s_lshl_b32 s43, s{sBR}, 5", "s_add_u32 s42, s42, s43",
      "s_lshl_b32 s42, s42, 16", f"s_lshl_b32 s43, s{sRB}, 1", "s_add_u32 s43, s43, s34", "s_lshl_b32 s43, s43, 11", "s_add_u32 s56, s42, s43")
    A(f"v_and_b32 v{vF0}, 31, v{lane}", f"v_lshlrev_b32 v{vF0}, 2, v{vF0}", f"v_lshrrev_b32 v{t0}, 5, v{lane}", f"v_lshl_add_u32 v{vF0}, v{t0}, 10, v{vF0}",
      f"s_lshl_b32 s58, s{sX}, 7", f"s_add_u32 s58, s58, {FL+FL_F0}", f"s_getreg_b32 s{sXCC}, hwreg(HW_REG_XCC_ID, 0, 4)")
    aX=[10,11]; aW=[18,19]; m=20
    A(f"v_lshrrev_b32 v{g_t}, 4, v{lane}", f"v_and_b32 v{m}, 15, v{lane}", f"v_lshrrev_b32 v{t0}, 1, v{m}",
      "s_lshl_b32 s42, s34, 6", f"v_add_u32 v{t1}, s42, v{m}", f"v_lshlrev_b32 v{t1}, 7, v{t1}")
    for s_ in range(2):
        A(f"v_or_b32 v{t2}, {4*s_}, v{g_t}", f"v_xor_b32 v{t2}, v{t2}, v{t0}", f"v_lshl_add_u32 v{aX[s_]}, v{t2}, 4, v{t1}")
    A(f"v_bfe_u32 v{t0}, v{lane}, 2, 2", f"v_lshl_add_u32 v{t1}, v{g_t}, 3, v{t0}", f"v_lshlrev_b32 v{t1}, 7, v{t1}",
      f"v_and_b32 v21, 1, v{lane}", f"v_lshl_add_u32 v{t1}, v21, 3, v{t1}", f"v_add_u32 v{t1}, 16384, v{t1}",
      f"v_bfe_u32 v{t2}, v{lane}, 3, 1", f"v_bfe_u32 v21, v{lane}, 4, 1", f"v_lshl_or_b32 v{t2}, v21, 1, v{t2}", f"v_lshlrev_b32 v{t2}, 1, v{t2}",
      f"v_bfe_u32 v21, v{lane}, 1, 1", "s_lshl_b32 s42, s35, 2", "v_or_b32 v21, s42, v21")
    for hd in range(2):
        A(f"v_or_b32 v22, {2*hd}, v21", f"v_xor_b32 v22, v{t2}, v22", f"v_lshl_add_u32 v{aW[hd]}, v22, 4, v{t1}")
    def l2pf():
        if 'nol2pf' not in opt:
            C0=int([o[2:] for o in opt if o.startswith('c0')][0]) if any(o.startswith('c0') for o in opt) else 3
            NCH=8-C0
            vq=240
            A(f"s_lshl_b32 s42, s{sRB}, 7", f"s_lshl_b32 s43, s{sBR}, 6", "s_add_u32 s42, s42, s43", f"s_lshl_b32 s43, s{sW}, 4", "s_add_u32 s42, s42, s43",
              f"v_add_u32 v{vq}, s42, v{m}", f"v_lshlrev_b32 v{vq}, 10, v{vq}", f"v_lshl_add_u32 v{vq}, v{g_t}, 7, v{vq}", f"s_movk_i32 s43, {128*C0}",
              f"buffer_load_dword v{vq+2}, v{vq}, s[{SRD_A}:{SRD_A+3}], s43 offen sc1" if 'pfx' in opt else "s_nop 0")
            if NCH>4 and 'pfx' in opt: A(f"buffer_load_dword v{vq+3}, v{vq}, s[{SRD_A}:{SRD_A+3}], s43 offen offset:512 sc1")
            A(f"v_mul_u32_u24 v{vq}, 43, v{lane}", f"v_lshrrev_b32 v{vq}, 7, v{vq}", f"v_mul_u32_u24 v{vq+1}, 3, v{vq}", f"v_sub_u32 v{vq+1}, v{lane}, v{vq+1}",
              f"s_mul_i32 s42, s{sRB}, {4*NCH}", f"s_mul_i32 s43, s{sW}, {NCH}", "s_add_u32 s42, s42, s43", f"s_add_u32 s42, s42, {64*C0}",
              f"v_add_u32 v{vq}, s42, v{vq}", f"v_mul_u32_u24 v{vq}, 3072, v{vq}", f"v_lshl_add_u32 v{vq}, v{vq+1}, 10, v{vq}",
              f"v_cmp_gt_u32 vcc, {3*NCH}, v{lane}", f"v_mov_b32 v{vq+1}, 0x7ff00000", f"s_lshl_b32 s43, s{sX}, 7", f"v_cndmask_b32 v{vq}, v{vq+1}, v{vq}, vcc",
              f"buffer_load_dword v{vq+2}, v{vq}, s[{SRD_B}:{SRD_B+3}], s43 offen sc1{'' if 'nownt' in opt else ' nt'}")
    if 'pfearly' in opt: l2pf()
    def T(hd,a,rt): return 32+48*hd+16*a+4*rt
    XF=[128,144]; WF=[[160,164,168],[172,176,180]]
    for i in range(96): A(f"v_mov_b32 v{32+i}, 0")
    def wrd(hd,a,s_):
        if 'p1noread' in opt: return ["s_nop 0","s_nop 0"]
        return [f"ds_read_b64_tr_b16 {vr(WF[hd][a]+2*rr,2)}, v{aW[hd]} offset:{a*8192+(32*s_+4*rr)*128}" for rr in range(2)]
    def xrd(s_,rt):
        if 'p1noread' in opt: return ["s_nop 0"]
        return [f"ds_read_b128 {vr(XF[s_]+4*rt,4)}, v{aX[s_]} offset:{rt*2048}"]
    def setA(s_): return wrd(0,0,s_)+xrd(s_,0)+xrd(s_,1)+wrd(0,1,s_)+xrd(s_,2)+xrd(s_,3)+wrd(0,2,s_)
    def setB(s_): return wrd(1,0,s_)+wrd(1,1,s_)+wrd(1,2,s_)
    def mf(hd,s_):
        x=XF[s_]; w=WF[hd]; L=[]
        for rt in (0,1): L.append(mfma16(T(hd,0,rt), w[0], x+4*rt, T(hd,0,rt)))
        for rt in (0,1): L.append(mfma16(T(hd,1,rt), w[1], x+4*rt, T(hd,1,rt)))
        for rt in (2,3): L.append(mfma16(T(hd,0,rt), w[0], x+4*rt, T(hd,0,rt)))
        for rt in (2,3): L.append(mfma16(T(hd,1,rt), w[1], x+4*rt, T(hd,1,rt)))
        for rt in range(4): L.append(mfma16(T(hd,2,rt), x+4*rt, w[2], T(hd,2,rt)))
        return L
    needA=[2,3,5,5,6,7,7,7,9,9,9,9]; needB=[1,1,3,3,3,3,3,3,5,5,5,5]
    def half(mfs, need, nold, new, pre=None, at=None):
        prev=-1; issued=0
        for k in range(12):
            if need[k]>prev:
                A(f"s_waitcnt lgkmcnt({(nold-1-need[k])+issued})"); prev=need[k]
            if pre and k==pre[0]: pre[1]()
            A(mfs[k])
            if k>=at and issued<len(new):
                n=1 if (len(new)-issued)<=(12-k-1) else 2
                n=min(n,len(new)-issued)
                A(new[issued:issued+n]); issued+=n
        assert issued==len(new)
    A("s_mov_b32 s49, 0", "s_mov_b32 s36, 0", f"s_mov_b32 s53, {STG}")
    A("s_barrier")
    A("s_waitcnt lgkmcnt(0)", f"s_mul_i32 s{sNONCE}, s3, 0x9e3779b1", f"s_add_u32 s{sNONCE}, s{sNONCE}, 0x7f4a7c15")
    ST.rt("p1_data")
    A(setA(0))
    if 'pfearly' not in opt: l2pf()
    A(f"s_cmp_lg_u32 s{sW}, 0", "s_cbranch_scc1 L_f0_nf", f"s_add_u32 s42, s{sNONCE}, s{sXCC}", f"s_lshl_b32 s43, s{sI}, 2", "s_add_u32 s43, s43, s58",
      "v_mov_b32 v5, s42", "v_mov_b32 v6, 0", "s_mov_b64 exec, 1", f"buffer_store_dword v5, v6, {W_}, s43 offen sc1", "s_mov_b64 exec, -1", "L_f0_nf:")
    A(".p2align 3", "P1_loop:")
    half(mf(0,0), needA, 10, setB(0), at=2)
    half(mf(1,0), needB, 6, setA(1), at=1)
    half(mf(0,1), needA, 10, setB(1), at=2)
    def boundary():
        A("s_add_u32 s36, s36, 1", "s_cmp_eq_u32 s36, 4", f"s_cselect_b32 s52, {(-3*STG)&0xffffffff:#x}, s53", "s_cselect_b32 s36, 0, s36", "s_waitcnt lgkmcnt(0)")
        for r in aX+aW: A(f"v_add_u32 v{r}, s52, v{r}")
        A("s_cmp_eq_u32 s49, 4", "s_cbranch_scc1 P1_f0ld", "P1_f0back:", "s_barrier")
        if 'p1it' in opt:
            A("s_memtime s[80:81]", "s_waitcnt lgkmcnt(0)")
            for k in range(7): A(f"s_mov_b32 s{64+8+k}, s{64+9+k}")
            A(f"s_mov_b32 s{64+15}, s80")
    half(mf(1,1), needB, 6, setA(0), pre=(3,boundary), at=3)
    A("s_add_u32 s49, s49, 1", "s_cmp_lt_u32 s49, 8", "s_cbranch_scc1 P1_loop")
    ST.rt("p1_loop")
    if 'p1it' in opt:
        ST.n=16; ST.flush(210); A("s_waitcnt vmcnt(0)", "s_endpgm")
    A("s_branch P1_after")
    A("P1_f0ld:", f"buffer_load_dword v{F0V}, v{vF0}, {W_}, s58 offen sc1", "s_branch P1_f0back")
    A("P1_after:")
    A("s_waitcnt vmcnt(0)", f"s_mov_b32 s42, {SPIN_MAX}")
    A("P1_chk:", f"v_subrev_u32 v{F0V+1}, s{sNONCE}, v{F0V}", f"v_cmp_gt_u32 vcc, 8, v{F0V+1}", "s_nop 1", "s_cmp_eq_u32 vcc_lo, -1", "s_cbranch_scc1 P1_chk_ok")
    A("s_sub_u32 s42, s42, 1", "s_cmp_eq_u32 s42, 0", "s_cbranch_scc1 P1_chk_ok", "s_sleep 1",
      f"buffer_load_dword v{F0V}, v{vF0}, {W_}, s58 offen sc1", "s_waitcnt vmcnt(0)", "s_branch P1_chk")
    A("P1_chk_ok:", f"v_cmp_eq_u32 vcc, s{sXCC}, v{F0V+1}", "s_nop 1", "s_cmp_eq_u32 vcc_lo, -1", f"s_cselect_b32 s{sMODE}, 1, 0")
    if 'forcesafe' in opt: A(f"s_mov_b32 s{sMODE}, 0")
    if 'fine3' in opt: ST.rt("mode")
    A(f"s_mov_b32 s44, {hex(f2u(QSCALE))}", "s_waitcnt lgkmcnt(0)")
    for hd in range(2):
        PK=128+24*hd
        TQ,TK,TV=T(hd,0,0),T(hd,1,0),T(hd,2,0)
        for t in range(2):
            for i in range(4): A(f"v_cvt_pk_bf16_f32 v{PK+4*t+i}, v{TK+8*t+2*i}, v{TK+8*t+2*i+1}")
        for t in range(2):
            for i in range(4): A(f"v_cvt_pk_bf16_f32 v{PK+8+4*t+i}, v{TV+8*t+2*i}, v{TV+8*t+2*i+1}")
        for i in range(16): A(f"v_mul_f32 v{TQ+i}, s44, v{TQ+i}")
        for t in range(2): A(f"v_permlane16_swap_b32 v{PK+4*t}, v{PK+4*t+2}", f"v_permlane16_swap_b32 v{PK+4*t+1}, v{PK+4*t+3}")
        for t in range(2):
            for i in range(4): A(f"v_cvt_pk_bf16_f32 v{PK+16+4*t+i}, v{TQ+8*t+2*i}, v{TQ+8*t+2*i+1}")
        for t in range(2): A(f"v_permlane32_swap_b32 v{PK+8+4*t}, v{PK+8+4*t+2}", f"v_permlane32_swap_b32 v{PK+8+4*t+1}, v{PK+8+4*t+3}")
        for t in range(2): A(f"v_permlane16_swap_b32 v{PK+16+4*t}, v{PK+16+4*t+2}", f"v_permlane16_swap_b32 v{PK+16+4*t+1}, v{PK+16+4*t+3}")
        A(f"s_add_u32 s46, s56, {hd*65536}", f"s_add_u32 s45, s46, {KF}", f"s_add_u32 s47, s46, {VF}")
        A(f"s_cmp_eq_u32 s{sMODE}, 0", f"s_cbranch_scc1 P1_st_safe{hd}")
        for sc,lab in (("",None),(" sc1",f"P1_st_safe{hd}")):
            if lab: A(f"s_branch P1_st_done{hd}", f"{lab}:")
            A(f"buffer_store_dwordx4 {vr(PK,4)}, v24, {W_}, s45 offen{sc}", f"buffer_store_dwordx4 {vr(PK+4,4)}, v24, {W_}, s45 offen offset:1024{sc}")
            A(f"buffer_store_dwordx4 {vr(PK+8,4)}, v24, {W_}, s47 offen{sc}", f"buffer_store_dwordx4 {vr(PK+12,4)}, v24, {W_}, s47 offen offset:1024{sc}")
            A(f"buffer_store_dwordx4 {vr(PK+16,4)}, v24, {W_}, s46 offen{sc}", f"buffer_store_dwordx4 {vr(PK+20,4)}, v24, {W_}, s46 offen offset:1024{sc}")
        A(f"P1_st_done{hd}:")
    A("s_branch P1_join")
    A("P1_loader:")
    n_end=ST.n; names_end=list(ST.names); ST.n=n_save; ST.names=list(names_save)
    A(f"s_and_b32 s34, s{sW}, 3")
    A(f"v_lshrrev_b32 v{t0}, 3, v{lane}", f"v_and_b32 v{t2}, 7, v{lane}", f"v_lshrrev_b32 v{t1}, 4, v{lane}", f"v_xor_b32 v{t1}, v{t1}, v{t2}",
      f"s_lshl_b32 s42, s{sRB}, 7", "s_lshl_b32 s43, s34, 5", "s_add_u32 s42, s42, s43", f"v_add_u32 v{vX}, s42, v{t0}", f"v_lshlrev_b32 v{vX}, 10, v{vX}",
      f"v_xor_b32 v9, 4, v{t1}", f"v_lshl_add_u32 v9, v9, 4, v{vX}", f"v_add_u32 v9, 8192, v9", f"v_lshl_add_u32 v{vX}, v{t1}, 4, v{vX}")
    A(f"v_add_u32 v10, 0x4000, v{vX}", "v_add_u32 v11, 0x4000, v9")
    A(f"v_bfe_u32 v{t1}, v{lane}, 4, 1", f"v_lshlrev_b32 v{t1}, 1, v{t1}", f"v_xor_b32 v{t1}, v{t1}, v{t2}",
      "s_lshl_b32 s43, s34, 4", f"v_add_u32 v{t0}, s43, v{t0}", f"v_mul_u32_u24 v{vW}, 3072, v{t0}", f"s_lshl_b32 s45, s{sX}, 7", f"v_add_u32 v{vW}, s45, v{vW}",
      f"v_xor_b32 v12, 4, v{t1}", f"v_lshl_add_u32 v12, v12, 4, v{vW}", f"v_add_u32 v12, {8*3072}, v12", f"v_lshl_add_u32 v{vW}, v{t1}, 4, v{vW}")
    def dmas():
        L=[]
        xs=[vX,9,10,11]
        for ii in range(4):
            L.append([f"s_add_u32 m0, s46, {ii*1024}", "NOP", f"buffer_load_dwordx4 v{xs[ii]}, s[{SRD_A}:{SRD_A+3}], s47 offen{' nt' if 'xnt' in opt else ''} lds"])
        for seg in range(3):
            for ii in range(2):
                L.append([f"s_add_u32 m0, s57, {16384+seg*8192+ii*1024-seg*1024}", "NOP", f"buffer_load_dwordx4 v{[vW,12][ii]}, s[{SRD_B}:{SRD_B+3}], s48 offen offset:{seg*1024}{'' if 'nownt' in opt else ' nt'} lds"])
        return L
    def issue():
        A("s_and_b32 s51, s50, 3", f"s_mul_i32 s51, s51, {STG}", "s_lshl_b32 s46, s34, 12", "s_add_u32 s46, s46, s51", "s_lshl_b32 s57, s34, 11", "s_add_u32 s57, s57, s51",
          "s_lshl_b32 s47, s50, 7", f"s_mul_i32 s48, s50, {64*3072}")
        if 'p1nodma' not in opt:
            for g in dmas(): A([("s_nop 0" if x=="NOP" else x) for x in g])
        A("s_add_u32 s50, s50, 1")
    A("s_mov_b32 s50, 0", "s_mov_b32 s49, 0")
    A("P1_lpro:")
    issue()
    A("s_cmp_lt_u32 s50, 2", "s_cbranch_scc1 P1_lpro")
    gate_loads()
    A("s_waitcnt vmcnt(12)", "s_barrier")
    A("s_waitcnt lgkmcnt(0)", f"s_mul_i32 s{sNONCE}, s3, 0x9e3779b1", f"s_add_u32 s{sNONCE}, s{sNONCE}, 0x7f4a7c15")
    ST.rt("p1_data")
    A(f"v_lshrrev_b32 v{t0}, 4, v{lane}", f"v_lshlrev_b32 v{vPT}, 22, v{t0}", f"v_bfe_u32 v{t0}, v{lane}, 3, 1", f"v_lshl_add_u32 v{vPT}, v{t0}, 10, v{vPT}",
      f"v_and_b32 v{t0}, 7, v{lane}", f"v_lshl_add_u32 v{vPT}, v{t0}, 7, v{vPT}", f"v_cmp_gt_u32 vcc, 48, v{lane}", f"v_mov_b32 v{t0}, 0x7ff00000", "s_nop 0",
      f"v_cndmask_b32 v{vPT}, v{t0}, v{vPT}, vcc")
    A("s_and_b32 s42, s34, 1", "s_lshr_b32 s43, s34, 1",
      f"s_lshl_b32 s44, s{sX}, 2", "s_lshl_b32 s43, s43, 1", "s_add_u32 s44, s44, s43", f"s_lshl_b32 s43, s{sBR}, 5", "s_add_u32 s44, s44, s43", "s_lshl_b32 s44, s44, 16",
      f"s_lshl_b32 s43, s{sRB}, 1", "s_add_u32 s43, s43, s42", "s_lshl_b32 s43, s43, 11", "s_add_u32 s56, s44, s43")
    issue_lbl="P1_lloop"
    A("P1_lpro2:")
    issue()
    A("s_cmp_lt_u32 s50, 4", "s_cbranch_scc1 P1_lpro2")
    A("P1_lloop:")
    A("s_cmp_lt_u32 s49, 5", "s_cbranch_scc0 P1_ltail", "s_waitcnt vmcnt(20)", "s_branch P1_lbar")
    A("P1_ltail:", "s_cmp_eq_u32 s49, 5", "s_cbranch_scc0 P1_ltail2", "s_waitcnt vmcnt(10)", "s_branch P1_lbar")
    A("P1_ltail2:", "s_cmp_eq_u32 s49, 6", "s_cbranch_scc0 P1_lbar", f"s_waitcnt vmcnt({2 if PTC==5 else 0})")
    A("P1_lbar:", "s_barrier")
    A("s_cmp_lt_u32 s50, 8", "s_cbranch_scc0 P1_lnoiss")
    issue()
    A("P1_lnoiss:")
    A(f"s_cmp_eq_u32 s49, {PTC}", "s_cbranch_scc0 P1_lnopt", "s_add_u32 s42, s56, 65536",
      f"buffer_load_dword v{PT}, v{vPT}, {W_}, s56 offen {PTF}", f"buffer_load_dword v{PT+1}, v{vPT}, {W_}, s42 offen {PTF}", "P1_lnopt:")
    A("s_add_u32 s49, s49, 1", "s_cmp_lt_u32 s49, 8", "s_cbranch_scc1 P1_lloop")
    ST.rt("p1_loop")
    if 'p1it' in opt:
        A("s_waitcnt vmcnt(0)", "s_endpgm")
    if 'fine3' in opt: ST.rt("mode")
    A(f"s_mov_b32 s{sMODE}, 0")
    A("P1_join:")
    assert ST.n==n_end or 'p1it' in opt
    if 'fine3' in opt: ST.rt("st_iss")

def gate(A):
    W_=f"s[{SRD_WS}:{SRD_WS+3}]"
    GX=232; GW=236; GA=250
    A(f"v_mov_b32 v{GA}, 0")
    for i in range(4): A(f"v_dot2_f32_bf16 v{GA}, v{GX+i}, v{GW+i}, v{GA}")
    A("s_nop 2")
    for ror in (8,4,2,1):
        A(f"v_add_f32_dpp v{GA}, v{GA}, v{GA} row_ror:{ror} row_mask:0xf bank_mask:0xf", "s_nop 1")
    A(f"v_mov_b32 v{GA+1}, v{GA}", "s_nop 1", f"v_permlane16_swap_b32 v{GA+1}, v{GA}", "s_nop 1", f"v_add_f32 v{GA}, v{GA}, v{GA+1}",
      f"v_mov_b32 v{GA+1}, v{GA}", "s_nop 1", f"v_permlane32_swap_b32 v{GA+1}, v{GA}", "s_nop 1", f"v_add_f32 v{GA}, v{GA}, v{GA+1}")
    A(f"v_mul_f32 v{GA}, {hex(f2u(-1.4426950408889634))}, v{GA}", f"v_exp_f32 v{GA}, v{GA}", "s_nop 0", f"v_add_f32 v{GA}, 1.0, v{GA}", f"v_rcp_f32 v{GA}, v{GA}",
      "s_lshl_b32 s62, s62, 2", f"s_add_u32 s62, s62, {GOFF}", f"v_mov_b32 v{GA+1}, 0")
def gate_store(A):
    A("s_mov_b64 exec, 1", f"buffer_store_dword v250, v251, s[{SRD_WS}:{SRD_WS+3}], s62 offen sc1", "s_mov_b64 exec, -1")

def publish1(A, ST, opt):
    if 'fine3' in opt:
        A("s_waitcnt vmcnt(0)"); ST.rt("vm0")
    A("s_waitcnt vmcnt(0)", "s_barrier")
    if 'fine3' in opt: ST.rt("bar1")
    ST.rt("p1_stored")
    A(f"s_lshl_b32 s42, s{sX}, 7", f"s_lshl_b32 s43, s{sI}, 2", "s_add_u32 s43, s43, s42", f"s_add_u32 s43, s43, {FL+FL_F1}", f"s_add_u32 s38, s42, {FL+FL_F1}")
    A(f"s_cmp_eq_u32 s{sMODE}, 0", "s_cbranch_scc1 L_f1_safe")
    setflag(A,"f1f",43,5,"")
    A("s_branch L_f1_done", "L_f1_safe:")
    setflag(A,"f1s",43,5," sc1")
    A("L_f1_done:")
def sync1(A, ST, opt):
    if 'fine3' in opt: ST.rt("prolog")
    poll(A,"p1",38,2,3,stride=F1STR)
    A("s_barrier")
    ST.rt("p1_flags")

LANE=1
QA0=4; QA1=8; QB=12
OA0=16; OA1=32
S0=48; S1=64
P=80
KB_=88; VB_=210
MF=140; MD=156; CB=96
vKa=172; vVa=173
vL16=174; vT=175; vT2=176; vT3=177; vNEGM=178; vM=179; vKs=180; vVs=181; vX0=182; vPK=184
VL=188
LDS_KA=0; LDS_VA=65536; LDS_KB=131072; LDS_VB=147456
def exps(S): return [f"v_exp_f32 v{S+i}, v{S+i}" for i in range(16)]
def cvts(S): return [f"v_cvt_pk_bf16_f32 v{P+i}, v{S+2*i}, v{S+2*i+1}" for i in range(8)]
MK=[f"s_mov_b64 exec, s[{sMASK}:{sMASK+1}]"]; UM=["s_mov_b64 exec, -1"]
def unit(A, Sc, QK, PV1, ld, wK, wV, PV0):
    e=exps(Sc); c=cvts(Sc)
    A(wK, QK)
    A(e[0:4], c[0], e[4:6], c[1])
    A(PV1, ld)
    A(e[6:8], c[2], e[8:10], c[3], e[10:12])
    A(wV, PV0)
    A(e[12:13], c[4], e[13:15], c[5], e[15:16], c[6], c[7])
def slow_pass(A, tag, Q, O, pass1, far, diag, n):
    A(f"v_mov_b32 v{vX0}, v{vKs}", f"v_mov_b32 v{vX0+1}, v{vVs}", "s_mov_b32 s60, 0")
    if pass1: A(f"v_mov_b32 v{vM}, {hex(NEG)}", f"v_mov_b32 v{vNEGM}, 0")
    else:
        for i in range(16): A(f"v_mov_b32 v{O+i}, 0")
    A(f"L_{tag}_loop:")
    A(f"ds_read_b128 {vr(KB_,4)}, v{vX0}")
    if not pass1: A(MK, f"ds_read_b128 {vr(VB_,4)}, v{vX0+1}", f"ds_read_b128 {vr(VB_+4,4)}, v{vX0+1} offset:512", UM)
    A("s_cmp_eq_u32 s60, 0", f"s_cselect_b32 s61, s{far}, 0", "s_cmp_lg_u32 s61, 0", f"s_cbranch_scc1 L_{tag}_far")
    A(f"s_add_u32 s61, s60, 1", f"s_cmp_eq_u32 s61, s{n}", f"s_cselect_b32 s61, s{diag}, 0", "s_cmp_lg_u32 s61, 0", f"s_cbranch_scc1 L_{tag}_diag")
    for i in range(16): A(f"v_mov_b32 v{CB+i}, v{vNEGM}")
    A(f"s_branch L_{tag}_go")
    A(f"L_{tag}_far:")
    for i in range(16): A(f"v_add_f32 v{CB+i}, v{MF+i}, v{vNEGM}")
    A(f"s_branch L_{tag}_go")
    A(f"L_{tag}_diag:")
    for i in range(16): A(f"v_add_f32 v{CB+i}, v{MD+i}, v{vNEGM}")
    A(f"L_{tag}_go:")
    A("s_waitcnt lgkmcnt(0)", "s_nop 0")
    A(mfma32(S0, KB_, Q, CB))
    A("s_nop 7","s_nop 3")
    if pass1:
        for i in range(16): A(f"v_max_f32 v{vM}, v{vM}, v{S0+i}")
    else:
        A(exps(S0), "s_nop 0", cvts(S0), "s_nop 1")
        A(mfma32(O, VB_, P, O), mfma32(O, VB_+4, P+4, O))
    A(f"v_add_u32 v{vX0}, 1024, v{vX0}", f"v_add_u32 v{vX0+1}, 1024, v{vX0+1}")
    A("s_add_u32 s60, s60, 1", f"s_cmp_lt_u32 s60, s{n}", f"s_cbranch_scc1 L_{tag}_loop")
    if pass1:
        A(f"v_mov_b32 v{vT}, v{vM}", "s_nop 1", f"v_permlane32_swap_b32 v{vT}, v{vM}", "s_nop 1",
          f"v_max_f32 v{vM}, v{vM}, v{vT}", f"v_sub_f32 v{vNEGM}, 0, v{vM}")
    else: A("s_nop 7","s_nop 3")
def bcast_l(A,O):
    A(f"v_mov_b32 v{vT}, v{O+8}", "s_nop 1", f"v_permlane32_swap_b32 v{vT}, v{O+8}", "s_nop 1", f"v_add_f32 v{O+8}, v{O+8}, v{vT}")
def check_range(A, O, okl):
    bcast_l(A,O)
    A(f"v_mov_b32 v{vT}, v{O+8}")
    for i in range(8): A(f"v_fma_f32 v{vT}, v{O+i}, 0, v{vT}")
    A(f"s_mov_b32 s44, {hex(LLO)}", f"s_mov_b32 s45, {hex(LHI)}")
    A(f"v_cmp_le_f32 s[46:47], s44, v{vT}", f"v_cmp_ge_f32 s[48:49], s45, v{vT}", "s_nop 1",
      "s_and_b64 s[46:47], s[46:47], s[48:49]", "s_cmp_eq_u64 s[46:47], -1", f"s_cbranch_scc1 {okl}")
def finalize(A, O, soff):
    A(f"v_rcp_f32 v{vT}, v{O+8}", "s_nop 0")
    for i in range(8): A(f"v_mul_f32 v{O+i}, v{O+i}, v{vT}")
    for i in range(4): A(f"v_cvt_pk_bf16_f32 v{vPK+i}, v{O+2*i}, v{O+2*i+1}")
    A(f"buffer_store_dwordx4 {vr(vPK,4)}, v{vL16}, s[{SRD_WS}:{SRD_WS+3}], s{soff} offen sc1")

def early2(A):
    A(f"v_and_b32 v{LANE}, 63, v0")
    A(f"v_lshlrev_b32 v{vL16}, 4, v{LANE}", f"v_and_b32 v{vT}, 31, v{LANE}")
    A(f"s_mov_b32 s{sMASK}, 0x0000ffff", f"s_mov_b32 s{sMASK+1}, 0x0000ffff")
    A(f"v_cmp_eq_u32 vcc, 16, v{vT}", f"v_mov_b32 v{vX0}, 0x3f803f80", "s_nop 0", f"v_cndmask_b32 v{vX0+1}, 0, v{vX0}, vcc")
    for i in range(16): A(f"v_mov_b32 v{VB_+i}, v{vX0+1}")
    hh=vT3; MS=[82,90,96,98]
    A(f"v_lshrrev_b32 v{hh}, 5, v{LANE}", f"v_lshlrev_b32 v{vT2}, 2, v{hh}", f"v_sub_u32 v{vT2}, v{vT}, v{vT2}")
    A(f"v_mov_b32 v{vX0}, {hex(NEG)}")
    for g in range(4):
        for k in range(4): A(f"v_cmp_gt_i32 s[{MS[k]}:{MS[k]+1}], {8*g+k}, v{vT2}")
        A("s_nop 0")
        for k in range(4):
            i=4*g+k
            A(f"v_cndmask_b32 v{MF+i}, v{vX0}, 0, s[{MS[k]}:{MS[k]+1}]", f"v_cndmask_b32 v{MD+i}, 0, v{vX0}, s[{MS[k]}:{MS[k]+1}]")
    A(f"v_and_b32 v{vT}, 15, v{LANE}", f"v_lshlrev_b32 v{vT}, 4, v{vT}", f"v_lshl_add_u32 v{VL}, v{hh}, 8, v{vT}")

def phase2(A, ST, opt):
    W_=f"s[{SRD_WS}:{SRD_WS+3}]"
    SC="" if 'plainld' in opt else " sc1"
    early2(A)
    A(f"s_and_b32 s15, s{sW}, 3", f"s_lshr_b32 s16, s{sW}, 2")
    A("s_lshl_b32 s17, s15, 1", "s_add_u32 s17, s17, s16",
      f"s_lshl_b32 s18, s{sJ}, 3", "s_add_u32 s19, s18, s17",
      f"s_lshl_b32 s20, s{sH}, 16", f"s_add_u32 s21, s20, {32*65536}")
    A("s_lshl_b32 s43, s17, 10", f"s_add_u32 s44, s43, {LDS_KB}", f"v_add_u32 v{vKa}, s44, v{vL16}",
      f"s_add_u32 s44, s43, {LDS_VB}", f"v_add_u32 v{vVa}, s44, v{VL}")
    A("s_lshl_b32 s32, s19, 16", f"s_lshl_b32 s33, s{sH}, 10", "s_add_u32 s32, s32, s33", f"s_add_u32 s32, s32, {OF}", "s_add_u32 s33, s32, 32768")
    A("s_lshl_b32 s22, s19, 10", "s_add_u32 s22, s22, s21", f"s_add_u32 s22, s22, {QF}")
    A("s_lshl_b32 s23, s19, 10", "s_add_u32 s23, s23, s20", f"s_add_u32 s23, s23, {QF}", "s_xor_b32 s14, s19, 1", "s_lshl_b32 s14, s14, 10", "s_add_u32 s14, s14, s20", f"s_add_u32 s14, s14, {QF}")
    for ii in range(2):
        A(f"s_add_u32 s43, s{sW}, {8*ii}", "s_add_u32 s44, s18, s43", "s_sub_u32 s44, s44, 8", "s_max_i32 s44, s44, 0",
          "s_lshl_b32 s44, s44, 10", "s_add_u32 s44, s44, s21", f"s_add_u32 s{54+ii}, s44, {KF}")
    A(f"s_lshl_b32 s56, s{sW}, 10", "s_add_u32 s57, s56, s20", f"s_add_u32 s57, s57, {KF}")
    publish1(A,ST,opt)
    OBz=OA0
    for i in range(16): A(f"v_mov_b32 v{OBz+i}, 0")
    for i in range(4): A(f"v_mov_b32 v{P+4+i}, 0")
    gate(A)
    sync1(A,ST,opt)
    A(f"buffer_load_dwordx4 {vr(QB,4)}, v{vL16}, {W_}, s22 offen{SC}")
    if 'fine2' in opt:
        A("s_waitcnt vmcnt(0)"); ST.rt("qb_landed")
    for ii in range(2):
        A(f"s_add_u32 m0, s56, {LDS_KB+8192*ii}", f"s_add_u32 s45, s{54+ii}, {VF-KF}", f"buffer_load_dwordx4 v{vL16}, {W_}, s{54+ii} offen{SC} lds")
        A(f"s_add_u32 m0, s56, {LDS_VB+8192*ii}", "s_nop 0", f"buffer_load_dwordx4 v{vL16}, {W_}, s45 offen{SC} lds")
    A(f"buffer_load_dwordx4 {vr(QA0,4)}, v{vL16}, {W_}, s23 offen{SC}", f"buffer_load_dwordx4 {vr(QA1,4)}, v{vL16}, {W_}, s14 offen{SC}")
    def adma(m):
        return [f"s_add_u32 m0, s56, {LDS_KA+m*8192}", f"s_add_u32 s45, s57, {m*8192}", f"buffer_load_dwordx4 v{vL16}, {W_}, s45 offen{SC} lds",
                f"s_add_u32 m0, s56, {LDS_VA+m*8192}", f"s_add_u32 s45, s57, {VF-KF+m*8192}", f"buffer_load_dwordx4 v{vL16}, {W_}, s45 offen{SC} lds"]
    global ADMA; ADMA=adma
    A("s_waitcnt vmcnt(2)")
    OB=OA0
    if 'fine3' in opt: ST.rt("own_b")
    A("s_barrier")
    ST.rt("b_data")
    if 'fine3' in opt:
        ST.flush(2); A("s_waitcnt vmcnt(0)", "s_endpgm"); ST.on=False
    def ldK(t,base): return [f"ds_read_b128 {vr(KB_+4*(t%2),4)}, v{base} offset:{t*1024}"]
    def ldV(t,base): return MK+[f"ds_read_b128 {vr(VB_+8*(t%2),4)}, v{base} offset:{t*1024}", f"ds_read_b128 {vr(VB_+8*(t%2)+4,4)}, v{base} offset:{t*1024+512}"]+UM
    NB=9
    A("s_mov_b32 s51, 1", f"s_cmp_eq_u32 s{sJ}, 0", "s_cselect_b32 s50, 0, 1", "s_sub_u32 s53, 8, s17", "s_cselect_b32 s53, s53, 0")
    A.L.pop()
    A(f"s_cmp_eq_u32 s{sJ}, 0", "s_cselect_b32 s53, s53, 0")
    A("s_sub_u32 s52, 9, s53")
    A("s_lshl_b32 s43, s53, 10", f"v_add_u32 v{vKs}, s43, v{vKa}", f"v_add_u32 v{vVs}, s43, v{vVa}")
    A("s_cmp_eq_u32 s53, 0", "s_cbranch_scc1 B_pro0", "s_mov_b32 s58, s56", "s_mov_b32 s59, s57", "s_mov_b32 s60, s53", "B_skipdma:")
    A(f"s_add_u32 m0, s58, {LDS_KA}", f"s_add_u32 s45, s59, {VF-KF}", f"buffer_load_dwordx4 v{vL16}, {W_}, s59 offen{SC} lds",
      f"s_add_u32 m0, s58, {LDS_VA}", "s_add_u32 s58, s58, 8192", f"buffer_load_dwordx4 v{vL16}, {W_}, s45 offen{SC} lds",
      "s_add_u32 s59, s59, 8192", "s_sub_u32 s60, s60, 1", "s_cmp_lg_u32 s60, 0", "s_cbranch_scc1 B_skipdma")
    for s0 in range(1,NB):
        A(f"s_cmp_eq_u32 s53, {s0}", f"s_cbranch_scc1 B_pro{s0}")
    for s0 in range(NB-1,-1,-1):
        A(f"B_pro{s0}:")
        Sc=S0 if s0%2==0 else S1
        C = MF if s0==0 else (MD if s0==NB-1 else "0")
        A(ldK(s0,vKa), "s_waitcnt lgkmcnt(0)", mfma32(Sc, KB_+4*(s0%2), QB, C))
        if s0==0:
            A(ldV(0,vVa), ldK(1,vKa))
        else:
            if s0+1<NB: A(ldK(s0+1,vKa))
            A(ldV(s0,vVa))
        A("s_nop 7","s_nop 3")
        if s0!=0: A(f"s_branch B_step{s0}")
    for t in range(NB):
        A(f"B_step{t}:")
        Sc=S0 if t%2==0 else S1; Sn=S1 if t%2==0 else S0
        if t+1<NB:
            QK=[mfma32(Sn, KB_+4*((t+1)%2), QB, MD if t+1==NB-1 else "0")]
            wK=["s_waitcnt lgkmcnt(0)"] if t==0 else ["s_waitcnt lgkmcnt(2)"]
        else: QK=[]; wK=[]
        PV1=[mfma32(OB, VB_+8*((t-1)%2)+4, P+4, OB)] if t>0 else []
        ld=[]
        if t+2<NB: ld+=ldK(t+2,vKa)
        if t+1<NB: ld+=ldV(t+1,vVa)
        nld=(1 if t+2<NB else 0)+(2 if t+1<NB else 0)
        wV=[f"s_waitcnt lgkmcnt({nld})"]
        PV0=[mfma32(OB, VB_+8*(t%2), P, OB)]
        if t<8: ld=ld+ADMA(t)
        unit(A,Sc,QK,PV1,ld,wK,wV,PV0)
    A("s_nop 1", mfma32(OB, VB_+8*((NB-1)%2)+4, P+4, OB))
    A("s_nop 7","s_nop 3")
    check_range(A,OB,"B_ok")
    slow_pass(A,"bf1",QB,OB,True,50,51,52)
    slow_pass(A,"bf2",QB,OB,False,50,51,52)
    bcast_l(A,OB)
    A("B_ok:")
    finalize(A,OB,33)
    ST.rt("b_done")
    A("s_waitcnt vmcnt(1)", "s_barrier")
    ST.rt("a_start")
    gate_store(A)
    if 'dup' in opt: A("s_mov_b32 s54, 2", "A_dup:")
    A("s_lshl_b32 s43, s16, 15", f"v_add_u32 v{vKa}, s43, v{vL16}", f"s_add_u32 s44, s43, {LDS_VA}", f"v_add_u32 v{vVa}, s44, v{VL}")
    for i in range(32): A(f"v_mov_b32 v{OA0+i}, 0")
    for i in range(4): A(f"v_mov_b32 v{P+4+i}, 0")
    Qr=[QA0,QA1]; Or=[OA0,OA1]
    A(ldK(0,vKa), ldV(0,vVa), "s_waitcnt lgkmcnt(2)", mfma32(S0, KB_, QA0, "0"))
    vFv=112; vFz=113; vFa=114; vFb=115
    A(f"s_lshl_b32 s34, s{sJ}, 10", f"s_lshl_b32 s35, s{sH}, 5", "s_add_u32 s34, s34, s35", f"s_lshl_b32 s35, s{sW}, 2", "s_add_u32 s34, s34, s35",
      f"s_add_u32 s35, s34, {FL+FL_F2A}", f"s_add_u32 s34, s34, {FL+FL_F2B}")
    A(f"v_mov_b32 v{vFv}, s{sNONCE}", f"v_mov_b32 v{vFz}, 0")
    A(f"v_lshrrev_b32 v{vFa}, 1, v{LANE}", f"v_lshlrev_b32 v{vFa}, 5, v{vFa}", f"v_and_b32 v{vT}, 1, v{LANE}", f"v_lshl_add_u32 v{vFa}, v{vT}, 4, v{vFa}",
      f"s_and_b32 s36, s{sI}, 3", "s_lshl_b32 s36, s36, 2", f"v_add_u32 v{vFa}, s36, v{vFa}", f"s_lshl_b32 s36, s{sX}, 10", f"s_add_u32 s36, s36, {FL+FL_F2B}")
    A("s_mov_b32 s53, 4", "s_setprio 3", "s_nop 7", "s_nop 1")
    A(".p2align 3", "A_loop:")
    A("s_cmp_eq_u32 s53, 3", "s_cbranch_scc1 A_it1", "s_cmp_eq_u32 s53, 2", "s_cbranch_scc1 A_it2", "s_cmp_eq_u32 s53, 1", "s_cbranch_scc1 A_it3", "A_body:")
    NK=8
    units=[(t,qi) for t in range(NK) for qi in range(2)]
    for u,(t,qi) in enumerate(units):
        Sc=S0 if u%2==0 else S1; Sn=S1 if u%2==0 else S0
        tn,qn=(t,1) if qi==0 else (t+1,0)
        tp,qp=(t-1,1) if qi==0 else (t,0)
        QK=[mfma32(Sn, KB_+4*(tn%2), Qr[qn], "0")]
        PV1=[mfma32(Or[qp], VB_+8*(tp%2)+4, P+4, Or[qp])]
        PV0=[mfma32(Or[qi], VB_+8*(t%2), P, Or[qi])]
        ld=[];wK=[];wV=[]
        if qi==0: ld=ldK(t+1,vKa)+ldV(t+1,vVa); wV=["s_waitcnt lgkmcnt(3)"]
        else: wK=["s_waitcnt lgkmcnt(2)"]
        unit(A,Sc,QK,PV1,ld,wK,wV,PV0)
    A(f"v_add_u32 v{vKa}, {NK*1024}, v{vKa}", f"v_add_u32 v{vVa}, {NK*1024}, v{vVa}")
    A("s_sub_u32 s53, s53, 1", "s_cmp_lg_u32 s53, 0", "s_cbranch_scc1 A_loop")
    A("s_branch A_after")
    A("A_it1:", "s_setprio 2", "s_waitcnt vmcnt(0)", "s_mov_b64 exec, 1", f"buffer_store_dword v{vFv}, v{vFz}, {W_}, s34 offen sc1", "s_mov_b64 exec, -1")
    if 'wbl2' in opt:
        A(f"s_cmp_lg_u32 s{sI}, 0", "s_cbranch_scc1 A_body", f"s_cmp_lg_u32 s{sW}, 0", "s_cbranch_scc1 A_body", "buffer_wbl2 sc1")
    A("s_branch A_body")
    A("A_it2:", "s_setprio 1")
    if 'nopt3' not in opt:
        vP=116
        A(f"s_and_b32 s44, s{sI}, 3", f"s_lshr_b32 s45, s{sI}, 2", "s_and_b32 s46, s44, 1", "s_lshl_b32 s46, s46, 8", f"s_lshl_b32 s47, s{sW}, 5", "s_add_u32 s46, s46, s47",
          f"v_and_b32 v{vP}, 31, v{LANE}", f"v_add_u32 v{vP}, s46, v{vP}", f"v_lshlrev_b32 v{vP}, 10, v{vP}", "s_lshl_b32 s45, s45, 7",
          "s_cmp_lt_u32 s44, 2", f"s_cselect_b32 s48, s{pWOA}, s{pWOB}", f"s_cselect_b32 s49, s{pWOA+1}, s{pWOB+1}")
        A(f"s_mov_b32 s{SRD_PT}, s48", f"s_mov_b32 s{SRD_PT+1}, s49", f"s_mov_b32 s{SRD_PT+2}, {512*512*2}", f"s_mov_b32 s{SRD_PT+3}, 0x00020000",
          f"buffer_load_dword v{vP+1}, v{vP}, s[{SRD_PT}:{SRD_PT+3}], s45 offen")
        if 'ptout' in opt:
            A(f"s_lshl_b32 s46, s{sX}, 8", "s_lshl_b32 s47, s44, 6", "s_add_u32 s46, s46, s47", f"s_lshl_b32 s47, s{sW}, 3", "s_add_u32 s46, s46, s47",
              f"v_and_b32 v{vP}, 7, v{LANE}", f"v_add_u32 v{vP}, s46, v{vP}", f"v_lshlrev_b32 v{vP}, 10, v{vP}",
              f"s_mov_b32 s{SRD_PT}, s{pOUT}", f"s_mov_b32 s{SRD_PT+1}, s{pOUT+1}", f"s_mov_b32 s{SRD_PT+2}, {2048*512*2}", f"s_mov_b32 s{SRD_PT+3}, 0x00020000",
              f"buffer_load_dword v{vP+2}, v{vP}, s[{SRD_PT}:{SRD_PT+3}], s45 offen")
    A("s_branch A_body")
    A("A_it3:", "s_setprio 0", f"buffer_load_dword v{vFb}, v{vFa}, {W_}, s36 offen sc1", "s_branch A_body")
    A("A_after:")
    A(mfma32(OA1, VB_+8*((NK-1)%2)+4, P+4, OA1))
    A("s_waitcnt lgkmcnt(0)", "s_nop 7", "s_nop 3")
    if 'dup' in opt: A("s_sub_u32 s54, s54, 1", "s_cmp_lg_u32 s54, 0", "s_cbranch_scc1 A_dup")
    ST.rt("a_loop")
    A(f"s_mul_i32 s43, s{sW}, 2560", f"s_add_u32 s43, s43, {LDS_KB}", f"v_add_u32 v{vT}, s43, v{vL16}",
      f"v_lshlrev_b32 v{vT2}, 2, v{LANE}", f"v_add_u32 v{vT2}, s43, v{vT2}")
    A(f"ds_write_b128 v{vT}, {vr(OA1,4)}", f"ds_write_b128 v{vT}, {vr(OA1+4,4)} offset:1024", f"ds_write_b32 v{vT2}, v{OA1+8} offset:2048")
    A(f"s_xor_b32 s44, s{sW}, 4", "s_mul_i32 s43, s44, 2560", f"s_add_u32 s43, s43, {LDS_KB}", f"v_add_u32 v{vT}, s43, v{vL16}",
      f"v_lshlrev_b32 v{vT2}, 2, v{LANE}", f"v_add_u32 v{vT2}, s43, v{vT2}")
    A("s_waitcnt lgkmcnt(0)", "s_barrier")
    A(f"ds_read_b128 {vr(S0,4)}, v{vT}", f"ds_read_b128 {vr(S0+4,4)}, v{vT} offset:1024", f"ds_read_b32 v{S0+8}, v{vT2} offset:2048")
    A("s_waitcnt lgkmcnt(0)")
    for i in range(9): A(f"v_add_f32 v{OA0+i}, v{OA0+i}, v{S0+i}")
    check_range(A,OA0,"A_ok")
    A("s_mov_b32 s50, 0", "s_mov_b32 s51, 0", "s_mov_b32 s52, 64")
    A(f"v_add_u32 v{vKs}, {LDS_KA}, v{vL16}", f"v_add_u32 v{vVs}, {LDS_VA}, v{VL}")
    slow_pass(A,"af1",QA0,OA0,True,50,51,52)
    slow_pass(A,"af2",QA0,OA0,False,50,51,52)
    bcast_l(A,OA0)
    A("A_ok:")
    finalize(A,OA0,32)

def phase3(A, ST, opt):
    W_=f"s[{SRD_WS}:{SRD_WS+3}]"
    lane=LANE
    vFv=112; vFz=113; vFa=114; vFb=115
    srd(A,SRD_A,pWOA,512*512*2); srd(A,SRD_B,pWOB,512*512*2); srd(A,SRD_C,pOUT,2048*512*2)
    SA=f"s[{SRD_A}:{SRD_A+3}]"; SB=f"s[{SRD_B}:{SRD_B+3}]"
    A(f"s_and_b32 s50, s{sI}, 3", f"s_lshr_b32 s51, s{sI}, 2")
    A(f"s_and_b32 s52, s{sW}, 1", f"s_bfe_u32 s53, s{sW}, 0x10001", f"s_lshr_b32 s54, s{sW}, 2")
    vW=4
    A(f"v_lshrrev_b32 v5, 3, v{lane}", "v_lshlrev_b32 v5, 10, v5", f"v_bfe_u32 v6, v{lane}, 4, 1", "v_lshlrev_b32 v6, 2, v6", f"v_and_b32 v7, 7, v{lane}",
      "v_xor_b32 v6, v6, v7", "v_lshl_add_u32 v5, v6, 4, v5", "s_lshl_b32 s42, s51, 7", f"v_add_u32 v{vW}, s42, v5", f"v_lshlrev_b32 v3, 4, v{lane}")
    A(f"s_lshl_b32 s42, s{sX}, 3", "s_lshl_b32 s43, s50, 1", "s_add_u32 s42, s42, s43", "s_lshl_b32 s55, s42, 16", f"s_add_u32 s55, s55, {OF}",
      "s_lshl_b32 s43, s53, 14", "s_lshl_b32 s44, s54, 12", "s_add_u32 s43, s43, s44",
      "s_lshl_b32 s56, s52, 15", "s_add_u32 s56, s56, s43", "s_add_u32 s56, s56, 0x10000",
      "s_lshl_b32 s57, s52, 16", "s_add_u32 s57, s57, s43", "s_add_u32 s57, s57, s55")
    def odma(br):
        L=[]
        for r in range(2):
            for ii in range(4):
                L+= [f"s_add_u32 m0, s56, {r*8192+ii*1024}", f"s_add_u32 s45, s57, {br*32768+r*8192+ii*1024}", f"buffer_load_dwordx4 v3, {W_}, s45 offen sc1 lds"]
        return L
    def wdma(S_, n, lds0, row0_sgpr_expr):
        L=[]
        for ii in range(n):
            L+= [f"s_add_u32 m0, s58, {lds0+ii*1024}", f"s_add_u32 s45, s59, {ii*8192}", f"buffer_load_dwordx4 v{vW}, {S_}, s45 offen lds"]
        return L
    A(f"s_lshl_b32 s58, s{sW}, 13", f"s_lshl_b32 s59, s{sW}, 16")
    A("s_barrier")
    A(wdma(SB,8,0,None))
    A("s_waitcnt vmcnt(9)", f"s_mov_b32 s46, {SPIN_MAX}")
    A("P3_bchk:", f"v_cmp_ne_u32 vcc, s{sNONCE}, v{vFb}", "s_nop 1", "s_cmp_eq_u64 vcc, 0", "s_cbranch_scc1 P3_bok",
      "s_sub_u32 s46, s46, 1", "s_cmp_eq_u32 s46, 0", "s_cbranch_scc1 P3_bok", "s_sleep 1",
      f"buffer_load_dword v{vFb}, v{vFa}, {W_}, s36 offen sc1", "s_waitcnt vmcnt(0)", "s_branch P3_bchk", "P3_bok:")
    A(odma(1))
    A("s_waitcnt vmcnt(16)")
    A("s_mov_b64 exec, 1", f"buffer_store_dword v{vFv}, v{vFz}, {W_}, s35 offen sc1", "s_mov_b64 exec, -1")
    ST.rt("o_stored")
    A(f"v_and_b32 v12, 31, v{lane}", f"s_lshl_b32 s44, s{sX}, 8", "s_lshl_b32 s45, s50, 6", "s_add_u32 s44, s44, s45", "s_lshl_b32 s45, s52, 5", "s_add_u32 s44, s44, s45",
      "v_add_u32 v12, s44, v12", "v_lshlrev_b32 v13, 2, v12", f"s_mov_b32 s45, {GOFF}", f"buffer_load_dword v14, v13, {W_}, s45 offen sc1")
    A(f"s_lshl_b32 s58, s{sW}, 12", f"s_lshl_b32 s59, s{sW}, 15")
    A(wdma(SA,4,131072,None))
    A(f"v_lshrrev_b32 v8, 5, v{lane}",
      f"v_bfe_u32 v5, v{lane}, 2, 2", "v_lshl_add_u32 v5, v8, 2, v5", "v_lshlrev_b32 v5, 7, v5",
      f"v_bfe_u32 v6, v{lane}, 4, 1", "v_lshlrev_b32 v6, 1, v6", f"v_bfe_u32 v7, v{lane}, 1, 1", "v_add_u32 v6, v6, v7",
      "s_lshl_b32 s42, s53, 2", "v_add_u32 v6, s42, v6",
      f"v_bfe_u32 v7, v{lane}, 3, 1", "v_lshlrev_b32 v7, 2, v7", "v_xor_b32 v6, v6, v7", "v_lshl_add_u32 v5, v6, 4, v5",
      f"v_and_b32 v7, 1, v{lane}", "v_lshl_add_u32 v5, v7, 3, v5",
      "s_lshl_b32 s42, s54, 15", "v_add_u32 v10, s42, v5")
    A("s_cmp_eq_u32 s54, 0", "s_cselect_b32 s42, 0x20000, 0", "v_add_u32 v9, s42, v5")
    A("s_lshl_b32 s43, s52, 15", "s_lshl_b32 s44, s54, 14", "s_add_u32 s43, s43, s44", "s_add_u32 s43, s43, 0x10000", "v_add_u32 v11, s43, v3")
    ACA=16; ACB=48; WR=[32,36,40,44]; OFr=[64,68,72,76]; WA=128
    for i in range(16): A(f"v_mov_b32 v{ACB+i}, 0", f"v_mov_b32 v{ACA+i}, 0")
    A("s_waitcnt vmcnt(6)", "s_barrier")
    ST.rt("w_landed")
    def wrd(dst, base, n): return [f"ds_read_b64_tr_b16 {vr(dst,2)}, v{base} offset:{(16*n)*128}", f"ds_read_b64_tr_b16 {vr(dst+2,2)}, v{base} offset:{(16*n+8)*128}"]
    def rd3(n): return wrd(WR[n%4],10,n)+[f"ds_read_b128 {vr(OFr[n%4],4)}, v11 offset:{n*1024}"]
    for n in range(3): A(rd3(n))
    for n in range(16):
        if n+3<16: A(rd3(n+3))
        A(f"s_waitcnt lgkmcnt({3*min(3,15-n)})")
        A(mfma32(ACB, WR[n%4], OFr[n%4], ACB))
    ST.rt("b_half")
    A("s_waitcnt vmcnt(0)", "s_barrier")
    A(f"s_add_u32 s59, s59, {256*1024}")
    A(wdma(SA,4,0,None))
    A(f"s_add_u32 s36, s36, {FL_F2A-FL_F2B}")
    A(f"s_cmp_lg_u32 s{sW}, 0", "s_cbranch_scc1 P3_askip", f"s_mov_b32 s46, {SPIN_MAX}")
    A("P3_achk:", f"buffer_load_dword v{vFb}, v{vFa}, {W_}, s36 offen sc1", "s_waitcnt vmcnt(0)",
      f"v_cmp_ne_u32 vcc, s{sNONCE}, v{vFb}", "s_nop 1", "s_cmp_eq_u64 vcc, 0", "s_cbranch_scc1 P3_askip",
      "s_sub_u32 s46, s46, 1", "s_cmp_eq_u32 s46, 0", "s_cbranch_scc1 P3_askip", "s_branch P3_achk", "P3_askip:")
    A("s_waitcnt vmcnt(0)", "s_barrier")
    ST.rt("p2_flags")
    A(odma(0))
    A("s_cmp_lg_u32 s2, 0", "s_cbranch_scc1 P3_noep", f"s_mov_b32 s43, {FL+FL_EPOCH}")
    setflag(A,"ep",43,5)
    A("P3_noep:")
    for n in range(16):
        A(wrd(WA+4*n,9,n))
        if n%4==3: A("s_waitcnt lgkmcnt(4)")
    for r in range(2):
        A(f"s_waitcnt vmcnt({4-4*r}) lgkmcnt(0)", "s_barrier")
        for s_ in range(4): A(f"ds_read_b128 {vr(OFr[s_],4)}, v11 offset:{(8*r+s_)*1024}")
        for s_ in range(8):
            n=8*r+s_
            A(f"s_waitcnt lgkmcnt({3 if s_<5 else 7-s_})")
            A(mfma32(ACA, WA+4*n, OFr[s_%4], ACA))
            if s_<4: A(f"ds_read_b128 {vr(OFr[s_%4],4)}, v11 offset:{(8*r+s_+4)*1024}")
    ST.rt("p3_mfma")
    A("s_nop 7","s_nop 3")
    for i in range(16): A(f"v_sub_f32 v{ACA+i}, v{ACA+i}, v{ACB+i}")
    for i in range(16): A(f"v_fma_f32 v{ACA+i}, v14, v{ACA+i}, v{ACB+i}")
    ACC=ACA
    A(f"s_lshl_b32 s43, s{sW}, 11", "v_add_u32 v5, s43, v3", f"s_xor_b32 s44, s{sW}, 4", "s_lshl_b32 s44, s44, 11", "v_add_u32 v6, s44, v3")
    PK=40
    A("s_cmp_eq_u32 s54, 0", "s_cbranch_scc0 P3_k1")
    for kq,lab in ((0,None),(1,"P3_k1")):
        if lab: A("s_branch P3_kdone", f"{lab}:")
        own=ACC+8*kq; oth=ACC+8*(1-kq)
        A(f"ds_write_b128 v5, {vr(oth,4)}", f"ds_write_b128 v5, {vr(oth+4,4)} offset:1024", "s_waitcnt lgkmcnt(0)", "s_barrier")
        A(f"ds_read_b128 {vr(32,4)}, v6", f"ds_read_b128 {vr(36,4)}, v6 offset:1024", "s_waitcnt lgkmcnt(0)")
        for i in range(8): A(f"v_add_f32 v{own+i}, v{own+i}, v{32+i}")
        for i in range(4): A(f"v_cvt_pk_bf16_f32 v{PK+i}, v{own+2*i}, v{own+2*i+1}")
    A("P3_kdone:")
    A("s_nop 1", f"v_permlane32_swap_b32 v{PK}, v{PK+2}", f"v_permlane32_swap_b32 v{PK+1}, v{PK+3}")
    A("v_lshlrev_b32 v5, 10, v12", "v_lshl_add_u32 v5, v8, 4, v5",
      "s_lshl_b32 s42, s51, 7", "s_lshl_b32 s43, s53, 6", "s_add_u32 s42, s42, s43", "s_lshl_b32 s43, s54, 5", "s_add_u32 s42, s42, s43")
    A(f"buffer_store_dwordx4 {vr(PK,4)}, v5, s[{SRD_C}:{SRD_C+3}], s42 offen" + (" sc1" if 'outsc1' in opt else "") + (" nt" if 'outnt' in opt else ""))

def gen(opt=()):
    A=Asm(); ST=Stamps(A,'stamps' in opt)
    pr=[o[6:] for o in opt if o.startswith('probe=')]
    if pr: ST.probe=pr[0]
    A(f".globl {NAME}", ".p2align 8", f".type {NAME},@function", f"{NAME}:")
    A("s_cmp_ge_u32 s2, 256", "s_cbranch_scc1 L_done")
    if 'scramble' in opt: A("s_lshr_b32 s3, s2, 3", "s_and_b32 s2, s2, 7", "s_lshl_b32 s2, s2, 5", "s_or_b32 s2, s2, s3")
    A(f"s_load_dwordx2 s[{sWS}:{sWS+1}], s[0:1], 72", "s_load_dwordx2 s[42:43], s[0:1], 0", "s_load_dwordx2 s[44:45], s[0:1], 8",
      "s_load_dwordx2 s[46:47], s[0:1], 32", "s_load_dwordx2 s[48:49], s[0:1], 48",
      f"s_load_dwordx2 s[{pWOA}:{pWOA+1}], s[0:1], 16", f"s_load_dwordx2 s[{pWOB}:{pWOB+1}], s[0:1], 40", f"s_load_dwordx2 s[{pOUT}:{pOUT+1}], s[0:1], 56")
    rot=[int(o[3:]) for o in opt if o.startswith('rot')]
    if rot: A(f"s_add_u32 s{sX}, s2, {rot[0]}", f"s_and_b32 s{sX}, s{sX}, 7")
    else: A(f"s_and_b32 s{sX}, s2, 7")
    A(f"s_lshr_b32 s{sI}, s2, 3", f"s_lshr_b32 s{sJ}, s{sI}, 2", f"s_and_b32 s{sA}, s{sI}, 3",
      f"s_lshr_b32 s{sBR}, s{sA}, 1", f"s_and_b32 s50, s{sA}, 1", f"s_lshl_b32 s{sRB}, s{sJ}, 1", f"s_add_u32 s{sRB}, s{sRB}, s50",
      f"s_lshl_b32 s{sH}, s{sX}, 2", f"s_add_u32 s{sH}, s{sH}, s{sA}")
    A("v_lshrrev_b32 v1, 6, v0", "v_and_b32 v2, 63, v0", "s_nop 0", f"v_readfirstlane_b32 s{sW}, v1")
    if 'pf' in opt:
        A("s_getpc_b64 s[50:51]", "L_pc:", f"s_sub_u32 s50, s50, (L_pc-{NAME})", "s_subb_u32 s51, s51, 0")
        A(f"s_lshl_b32 s52, s{sI}, 1", f"s_add_u32 s52, s52, s{sW}", "s_lshl_b32 s52, s52, 10", "v_lshlrev_b32 v3, 4, v2", "v_add_u32 v3, s52, v3")
        A(f"s_cmp_lt_u32 s{sW}, 2", "s_cbranch_scc0 L_nopf", f"s_cmp_lt_u32 s52, (L_done-{NAME}-1024)", "s_cbranch_scc0 L_nopf",
          "global_load_dwordx4 v[252:255], v3, s[50:51]", "L_nopf:")
    if 'spin60' in opt: A("s_memrealtime s[90:91]")
    A("s_waitcnt lgkmcnt(0)")
    wb=[int(o[2:]) for o in opt if o.startswith('wb') and o[2:].isdigit()]
    if wb: A(f"s_add_u32 s{sWS}, s{sWS}, {wb[0]<<20}", f"s_addc_u32 s{sWS+1}, s{sWS+1}, 0")
    ST.rt("start"); ST.cyc("cyc0")
    A(f"s_add_u32 s6, s{sWS}, {FL+FL_EPOCH}", f"s_addc_u32 s7, s{sWS+1}, 0", "s_load_dword s3, s[6:7], 0")
    srd(A,SRD_WS,sWS,WS_SIZE)
    srd(A,SRD_A,42,2048*512*2)
    A(f"s_cmp_eq_u32 s{sBR}, 0", "s_cselect_b32 s44, s44, s46", "s_cselect_b32 s45, s45, s47")
    srd(A,SRD_B,44,512*1536*2)
    srd(A,SRD_C,48,1024)
    phase1(A,ST,opt)
    phase2(A,ST,opt)
    phase3(A,ST,opt)
    if pr:
        A("s_waitcnt vmcnt(0)", "L_probe:", "s_memrealtime s[80:81]", "s_waitcnt lgkmcnt(0)", "s_sub_u32 s80, s80, s100", "s_cmp_lt_u32 s80, 6000", "s_cbranch_scc1 L_probe")
    if 'spin60' in opt:
        A("s_waitcnt vmcnt(0)", "L_spin:", "s_memrealtime s[80:81]", "s_waitcnt lgkmcnt(0)", "s_sub_u32 s80, s80, s90", "s_cmp_lt_u32 s80, 6000", "s_cbranch_scc1 L_spin")
    if ST.on: A("s_waitcnt vmcnt(0)")
    ST.rt("end"); ST.cyc("cyc1")
    ST.flush(120)
    A("L_done:", "s_endpgm")
    kd=f""".section .rodata,"a"
.p2align 6
.amdhsa_kernel {NAME}
  .amdhsa_next_free_vgpr 256
  .amdhsa_next_free_sgpr 102
  .amdhsa_accum_offset 256
  .amdhsa_group_segment_fixed_size 0
  .amdhsa_kernarg_size 80
  .amdhsa_user_sgpr_count 2
  .amdhsa_user_sgpr_kernarg_segment_ptr 1
  .amdhsa_system_sgpr_workgroup_id_x 1
.end_amdhsa_kernel
"""
    return A.text(), kd, ST.names

if __name__=='__main__':
    import sys, hazard
    out=sys.argv[1]; opt=tuple(sys.argv[2:])
    HDR=open('gated_mix__softmax_full_mha__sliding_block__prompt.s.ref').read().split('\n')
    hdr=[l for l in HDR if l.startswith(';') and 'launch' not in l.lower() and 'Override' not in l and 'grid=ceil' not in l]
    t,kd,names=gen(opt)
    s='\n'.join(hdr)+'\n'+"; @launch grid=(256,1,1) block=(512,1,1) lds=163840\n"+'.amdgcn_target "amdgcn-amd-amdhsa--gfx950"\n.text\n'+t+kd
    open(out,'w').write(s)
    print('hazards',len(hazard.check(t)),'bytes',len(s),'stamps',','.join(names))
    sys.path.insert(0,'cdna_kernels')
    import subprocess
    from cdna_launch import with_harness_metadata, address_register_problem
    open('h.s','w').write(with_harness_metadata(s,NAME,10,launch_lists=True))
    r=subprocess.run(['clang','-x','assembler','-target','amdgcn-amd-amdhsa','-mcpu=gfx950','h.s','-o','h.co'],capture_output=True,text=True)
    if r.returncode: print(r.stderr)
    else:
        print('check:',address_register_problem('h.co',NAME))
        d=subprocess.run(['llvm-objdump','-d','--mcpu=gfx950','h.co'],capture_output=True,text=True).stdout
        import re
        ad=[int(m,16) for m in re.findall(r'// ([0-9A-F]{12}):',d)]
        print('code bytes',ad[-1]-ad[0]-768)
```

```python
from asm import Asm, vr, sr, mfma32
import struct
def f2u(x): return struct.unpack('<I',struct.pack('<f',x))[0]
NAME="gated_mix__softmax_full_mha__sliding_block__prompt_kernel"
QF=0; KF=4<<20; VF=8<<20; GOFF=12<<20; OF=16<<20; FL=30<<20; WS_SIZE=31<<20
FL_EPOCH=0; FL_F0=1024; FL_F1=2048; FL_F2=8192; FL_F2B=16384; FL_F2A=32768
FSTR=16
F1STR=4
STAMP_OFF=32<<20
QSCALE=0.25*1.4426950408889634
NEG=f2u(-2.0**100); LLO=f2u(2.0**-64); LHI=f2u(2.0**64)
SPIN_MAX=1<<20
sNONCE=3; sWS=4
SRD_WS=8; SRD_A=12; SRD_B=16; SRD_C=20; SRD_PT=56
sW=24; sX=25; sI=26; sJ=27; sA=28; sBR=29; sRB=30; sH=31
sMASK=40
sXCC=37; sMODE=39
pWOA=84; pWOB=86; pOUT=88

class Stamps:
    def __init__(s, A, on): s.A=A; s.on=on; s.n=0; s.names=[]; s.skip=('p1_stored',); s.probe=None; s.cp=None
    def rt(s,name):
        if s.cp and name==s.cp[0]: s.A("s_memtime s[96:97]", "s_waitcnt lgkmcnt(0)", "s_mov_b32 s63, s96")
        if s.cp and name==s.cp[1]: s.A("s_memtime s[96:97]", "s_waitcnt lgkmcnt(0)", "s_sub_u32 s63, s96, s63")
        if s.probe==name:
            s.A("s_memrealtime s[100:101]", "s_waitcnt lgkmcnt(0)")
        if not s.on or name in s.skip: return
        s.A("s_memrealtime s[80:81]", "s_waitcnt lgkmcnt(0)", f"s_mov_b32 s{64+s.n}, s80"); s.names.append(name); s.n+=1
    def cyc(s,name):
        if not s.on: return
        s.A("s_memtime s[80:81]", "s_waitcnt lgkmcnt(0)", f"s_mov_b32 s{64+s.n}, s80"); s.names.append(name); s.n+=1
    def flush(s, vtmp):
        if not s.on: return
        A=s.A
        A(f"s_mov_b32 s92, s{sWS}", f"s_mov_b32 s93, s{sWS+1}", "s_mov_b32 s94, 0x10000000", "s_mov_b32 s95, 0x00020000")
        A(f"s_lshl_b32 s80, s2, 3", f"s_add_u32 s80, s80, s{sW}", "s_lshl_b32 s80, s80, 6", f"s_add_u32 s80, s80, {STAMP_OFF}")
        for i in range(s.n):
            A(f"v_mov_b32 v{vtmp}, s{64+i}", f"v_mov_b32 v{vtmp+1}, {4*i}", f"buffer_store_dword v{vtmp}, v{vtmp+1}, s[92:95], s80 offen")

def srd(A, s, base, size):
    A(f"s_mov_b32 s{s}, s{base}", f"s_mov_b32 s{s+1}, s{base+1}", f"s_mov_b32 s{s+2}, {size}", f"s_mov_b32 s{s+3}, 0x00020000")

def poll(A, tag, flag_off_sgpr, vaddr, vtmp, stride=FSTR):
    A(f"s_cmp_lg_u32 s{sW}, 0", f"s_cbranch_scc1 L_{tag}_skip")
    A(f"v_and_b32 v{vaddr}, 31, v0", f"v_mul_u32_u24 v{vaddr}, {stride}, v{vaddr}", f"s_mov_b32 s42, {SPIN_MAX}")
    A(f"L_{tag}_loop:")
    A(f"buffer_load_dword v{vtmp}, v{vaddr}, s[{SRD_WS}:{SRD_WS+3}], s{flag_off_sgpr} offen sc1")
    A("s_waitcnt vmcnt(0)")
    A(f"v_cmp_ne_u32 vcc, s{sNONCE}, v{vtmp}", "s_nop 1", "s_cmp_eq_u64 vcc, 0", f"s_cbranch_scc1 L_{tag}_skip")
    A("s_sub_u32 s42, s42, 1", "s_cmp_eq_u32 s42, 0", f"s_cbranch_scc1 L_{tag}_skip", "s_sleep 1", f"s_branch L_{tag}_loop")
    A(f"L_{tag}_skip:")

def setflag(A, tag, off_sgpr, vt, sc=" sc1"):
    A(f"s_cmp_lg_u32 s{sW}, 0", f"s_cbranch_scc1 L_{tag}_nf")
    A(f"v_mov_b32 v{vt}, s{sNONCE}", f"v_mov_b32 v{vt+1}, 0", "s_mov_b64 exec, 1",
      f"buffer_store_dword v{vt}, v{vt+1}, s[{SRD_WS}:{SRD_WS+3}], s{off_sgpr} offen{sc}", "s_mov_b64 exec, -1")
    A(f"L_{tag}_nf:")

def mfma16(d,a,b,c): return f"v_mfma_f32_16x16x32_bf16 {vr(d,4)}, {vr(a,4)}, {vr(b,4)}, {vr(c,4)}"
def phase1(A, ST, opt):
    lane=2; vX=3; vW=4; t0=5; t1=6; t2=7; g_t=8
    W_=f"s[{SRD_WS}:{SRD_WS+3}]"
    GX=232; GW=236
    PT=240; F0V=244; vF0=246; vPT=247
    PTF="sc1 nt"
    if 'ptsc1' in opt: PTF="sc1"
    if 'ptplain' in opt: PTF=""
    PTC=int([o[3:] for o in opt if o.startswith('ptc')][0]) if any(o.startswith('ptc') for o in opt) else 5
    if 'nopt1' in opt: PTC=99
    STG=40960
    A(f"v_lshlrev_b32 v24, 4, v{lane}")
    A(f"s_cmp_ge_u32 s{sW}, 4", "s_cbranch_scc1 P1_loader")
    n_save=ST.n; names_save=list(ST.names)
    def gate_loads():
        A(f"s_lshl_b32 s62, s{sJ}, 8", f"s_and_b32 s42, s{sW}, 3", "s_lshl_b32 s42, s42, 6", "s_add_u32 s62, s62, s42", f"s_lshl_b32 s42, s{sH}, 1", "s_add_u32 s62, s62, s42",
          f"s_lshr_b32 s42, s{sW}, 2", "s_add_u32 s62, s62, s42", "s_lshl_b32 s42, s62, 10",
          f"buffer_load_dwordx4 {vr(GX,4)}, v24, s[{SRD_A}:{SRD_A+3}], s42 offen", f"buffer_load_dwordx4 {vr(GW,4)}, v24, s[{SRD_C}:{SRD_C+3}], 0 offen")
    gate_loads()
    if 'tlbw' in opt:
        sh=int([o[4:] for o in opt if o.startswith('tlbs')][0]) if any(o.startswith('tlbs') for o in opt) else 16
        A(f"v_lshlrev_b32 v241, {sh}, v{lane}", f"s_lshl_b32 s42, s{sX}, 7", f"buffer_load_dword v242, v241, s[{SRD_B}:{SRD_B+3}], s42 offen sc1")
    A(f"s_and_b32 s34, s{sW}, 1", f"s_lshr_b32 s35, s{sW}, 1")
    A(f"s_lshl_b32 s42, s{sX}, 2", "s_lshl_b32 s43, s35, 1", "s_add_u32 s42, s42, s43", f"s_lshl_b32 s43, s{sBR}, 5", "s_add_u32 s42, s42, s43",
      "s_lshl_b32 s42, s42, 16", f"s_lshl_b32 s43, s{sRB}, 1", "s_add_u32 s43, s43, s34", "s_lshl_b32 s43, s43, 11", "s_add_u32 s56, s42, s43")
    A(f"v_and_b32 v{vF0}, 31, v{lane}", f"v_lshlrev_b32 v{vF0}, 2, v{vF0}", f"v_lshrrev_b32 v{t0}, 5, v{lane}", f"v_lshl_add_u32 v{vF0}, v{t0}, 10, v{vF0}",
      f"s_lshl_b32 s58, s{sX}, 7", f"s_add_u32 s58, s58, {FL+FL_F0}", f"s_getreg_b32 s{sXCC}, hwreg(HW_REG_XCC_ID, 0, 4)")
    aX=[10,11]; aW=[18,19]; m=20
    A(f"v_lshrrev_b32 v{g_t}, 4, v{lane}", f"v_and_b32 v{m}, 15, v{lane}", f"v_lshrrev_b32 v{t0}, 1, v{m}",
      "s_lshl_b32 s42, s34, 6", f"v_add_u32 v{t1}, s42, v{m}", f"v_lshlrev_b32 v{t1}, 7, v{t1}")
    for s_ in range(2):
        A(f"v_or_b32 v{t2}, {4*s_}, v{g_t}", f"v_xor_b32 v{t2}, v{t2}, v{t0}", f"v_lshl_add_u32 v{aX[s_]}, v{t2}, 4, v{t1}")
    A(f"v_bfe_u32 v{t0}, v{lane}, 2, 2", f"v_lshl_add_u32 v{t1}, v{g_t}, 3, v{t0}", f"v_lshlrev_b32 v{t1}, 7, v{t1}",
      f"v_and_b32 v21, 1, v{lane}", f"v_lshl_add_u32 v{t1}, v21, 3, v{t1}", f"v_add_u32 v{t1}, 16384, v{t1}",
      f"v_bfe_u32 v{t2}, v{lane}, 3, 1", f"v_bfe_u32 v21, v{lane}, 4, 1", f"v_lshl_or_b32 v{t2}, v21, 1, v{t2}", f"v_lshlrev_b32 v{t2}, 1, v{t2}",
      f"v_bfe_u32 v21, v{lane}, 1, 1", "s_lshl_b32 s42, s35, 2", "v_or_b32 v21, s42, v21")
    for hd in range(2):
        A(f"v_or_b32 v22, {2*hd}, v21", f"v_xor_b32 v22, v{t2}, v22", f"v_lshl_add_u32 v{aW[hd]}, v22, 4, v{t1}")
    def l2pf():
        if 'nol2pf' not in opt:
            C0=int([o[2:] for o in opt if o.startswith('c0')][0]) if any(o.startswith('c0') for o in opt) else 3
            NCH=8-C0
            vq=240
            A(f"s_lshl_b32 s42, s{sRB}, 7", f"s_lshl_b32 s43, s{sBR}, 6", "s_add_u32 s42, s42, s43", f"s_lshl_b32 s43, s{sW}, 4", "s_add_u32 s42, s42, s43",
              f"v_add_u32 v{vq}, s42, v{m}", f"v_lshlrev_b32 v{vq}, 10, v{vq}", f"v_lshl_add_u32 v{vq}, v{g_t}, 7, v{vq}", f"s_movk_i32 s43, {128*C0}",
              f"buffer_load_dword v{vq+2}, v{vq}, s[{SRD_A}:{SRD_A+3}], s43 offen sc1" if 'pfx' in opt else "s_nop 0")
            if NCH>4 and 'pfx' in opt: A(f"buffer_load_dword v{vq+3}, v{vq}, s[{SRD_A}:{SRD_A+3}], s43 offen offset:512 sc1")
            A(f"v_mul_u32_u24 v{vq}, 43, v{lane}", f"v_lshrrev_b32 v{vq}, 7, v{vq}", f"v_mul_u32_u24 v{vq+1}, 3, v{vq}", f"v_sub_u32 v{vq+1}, v{lane}, v{vq+1}",
              f"s_mul_i32 s42, s{sRB}, {4*NCH}", f"s_mul_i32 s43, s{sW}, {NCH}", "s_add_u32 s42, s42, s43", f"s_add_u32 s42, s42, {64*C0}",
              f"v_add_u32 v{vq}, s42, v{vq}", f"v_mul_u32_u24 v{vq}, 3072, v{vq}", f"v_lshl_add_u32 v{vq}, v{vq+1}, 10, v{vq}",
              f"v_cmp_gt_u32 vcc, {3*NCH}, v{lane}", f"v_mov_b32 v{vq+1}, 0x7ff00000", f"s_lshl_b32 s43, s{sX}, 7", f"v_cndmask_b32 v{vq}, v{vq+1}, v{vq}, vcc",
              f"buffer_load_dword v{vq+2}, v{vq}, s[{SRD_B}:{SRD_B+3}], s43 offen sc1{'' if 'nownt' in opt else ' nt'}")
    if 'pfearly' in opt: l2pf()
    def T(hd,a,rt): return 32+48*hd+16*a+4*rt
    XF=[128,144]; WF=[[160,164,168],[172,176,180]]
    for i in range(96): A(f"v_mov_b32 v{32+i}, 0")
    def wrd(hd,a,s_):
        if 'p1noread' in opt: return ["s_nop 0","s_nop 0"]
        return [f"ds_read_b64_tr_b16 {vr(WF[hd][a]+2*rr,2)}, v{aW[hd]} offset:{a*8192+(32*s_+4*rr)*128}" for rr in range(2)]
    def xrd(s_,rt):
        if 'p1noread' in opt: return ["s_nop 0"]
        return [f"ds_read_b128 {vr(XF[s_]+4*rt,4)}, v{aX[s_]} offset:{rt*2048}"]
    def setA(s_): return wrd(0,0,s_)+xrd(s_,0)+xrd(s_,1)+wrd(0,1,s_)+xrd(s_,2)+xrd(s_,3)+wrd(0,2,s_)
    def setB(s_): return wrd(1,0,s_)+wrd(1,1,s_)+wrd(1,2,s_)
    def mf(hd,s_):
        x=XF[s_]; w=WF[hd]; L=[]
        for rt in (0,1): L.append(mfma16(T(hd,0,rt), w[0], x+4*rt, T(hd,0,rt)))
        for rt in (0,1): L.append(mfma16(T(hd,1,rt), w[1], x+4*rt, T(hd,1,rt)))
        for rt in (2,3): L.append(mfma16(T(hd,0,rt), w[0], x+4*rt, T(hd,0,rt)))
        for rt in (2,3): L.append(mfma16(T(hd,1,rt), w[1], x+4*rt, T(hd,1,rt)))
        for rt in range(4): L.append(mfma16(T(hd,2,rt), x+4*rt, w[2], T(hd,2,rt)))
        return L
    needA=[2,3,5,5,6,7,7,7,9,9,9,9]; needB=[1,1,3,3,3,3,3,3,5,5,5,5]
    def half(mfs, need, nold, new, pre=None, at=None):
        prev=-1; issued=0
        for k in range(12):
            if need[k]>prev:
                A(f"s_waitcnt lgkmcnt({(nold-1-need[k])+issued})"); prev=need[k]
            if pre and k==pre[0]: pre[1]()
            A(mfs[k])
            if k>=at and issued<len(new):
                n=1 if (len(new)-issued)<=(12-k-1) else 2
                n=min(n,len(new)-issued)
                A(new[issued:issued+n]); issued+=n
        assert issued==len(new)
    A("s_mov_b32 s49, 0", "s_mov_b32 s36, 0", f"s_mov_b32 s53, {STG}")
    A("s_barrier")
    A("s_waitcnt lgkmcnt(0)", f"s_mul_i32 s{sNONCE}, s3, 0x9e3779b1", f"s_add_u32 s{sNONCE}, s{sNONCE}, 0x7f4a7c15")
    ST.rt("p1_data")
    A(setA(0))
    if 'pfearly' not in opt: l2pf()
    A(f"s_cmp_lg_u32 s{sW}, 0", "s_cbranch_scc1 L_f0_nf", f"s_add_u32 s42, s{sNONCE}, s{sXCC}", f"s_lshl_b32 s43, s{sI}, 2", "s_add_u32 s43, s43, s58",
      "v_mov_b32 v5, s42", "v_mov_b32 v6, 0", "s_mov_b64 exec, 1", f"buffer_store_dword v5, v6, {W_}, s43 offen sc1", "s_mov_b64 exec, -1", "L_f0_nf:")
    A(".p2align 3", "P1_loop:")
    half(mf(0,0), needA, 10, setB(0), at=2)
    half(mf(1,0), needB, 6, setA(1), at=1)
    half(mf(0,1), needA, 10, setB(1), at=2)
    def boundary():
        A("s_add_u32 s36, s36, 1", "s_cmp_eq_u32 s36, 4", f"s_cselect_b32 s52, {(-3*STG)&0xffffffff:#x}, s53", "s_cselect_b32 s36, 0, s36", "s_waitcnt lgkmcnt(0)")
        for r in aX+aW: A(f"v_add_u32 v{r}, s52, v{r}")
        A("s_cmp_eq_u32 s49, 4", "s_cbranch_scc1 P1_f0ld", "P1_f0back:", "s_barrier")
        if ST.probe and ST.probe.startswith('it'):
            A(f"s_cmp_eq_u32 s49, {ST.probe[2:]}", "s_cbranch_scc0 P1_noprobe", "s_memrealtime s[100:101]", "s_waitcnt lgkmcnt(0)", "P1_noprobe:")
        if 'p1it' in opt:
            A("s_memtime s[80:81]", "s_waitcnt lgkmcnt(0)")
            for k in range(7): A(f"s_mov_b32 s{64+8+k}, s{64+9+k}")
            A(f"s_mov_b32 s{64+15}, s80")
    half(mf(1,1), needB, 6, setA(0), pre=(3,boundary), at=3)
    A("s_add_u32 s49, s49, 1", "s_cmp_lt_u32 s49, 8", "s_cbranch_scc1 P1_loop")
    ST.rt("p1_loop")
    if 'p1it' in opt:
        ST.n=16; ST.flush(210); A("s_waitcnt vmcnt(0)", "s_endpgm")
    A("s_branch P1_after")
    A("P1_f0ld:", f"buffer_load_dword v{F0V}, v{vF0}, {W_}, s58 offen sc1", "s_branch P1_f0back")
    A("P1_after:")
    A("s_waitcnt vmcnt(0)", f"s_mov_b32 s42, {SPIN_MAX}")
    A("P1_chk:", f"v_subrev_u32 v{F0V+1}, s{sNONCE}, v{F0V}", f"v_cmp_gt_u32 vcc, 8, v{F0V+1}", "s_nop 1", "s_cmp_eq_u32 vcc_lo, -1", "s_cbranch_scc1 P1_chk_ok")
    A("s_sub_u32 s42, s42, 1", "s_cmp_eq_u32 s42, 0", "s_cbranch_scc1 P1_chk_ok", "s_sleep 1",
      f"buffer_load_dword v{F0V}, v{vF0}, {W_}, s58 offen sc1", "s_waitcnt vmcnt(0)", "s_branch P1_chk")
    A("P1_chk_ok:", f"v_cmp_eq_u32 vcc, s{sXCC}, v{F0V+1}", "s_nop 1", "s_cmp_eq_u32 vcc_lo, -1", f"s_cselect_b32 s{sMODE}, 1, 0")
    if 'forcesafe' in opt: A(f"s_mov_b32 s{sMODE}, 0")
    if 'fine3' in opt: ST.rt("mode")
    A(f"s_mov_b32 s44, {hex(f2u(QSCALE))}", "s_waitcnt lgkmcnt(0)")
    for hd in range(2):
        PK=128+24*hd
        TQ,TK,TV=T(hd,0,0),T(hd,1,0),T(hd,2,0)
        for t in range(2):
            for i in range(4): A(f"v_cvt_pk_bf16_f32 v{PK+4*t+i}, v{TK+8*t+2*i}, v{TK+8*t+2*i+1}")
        for t in range(2):
            for i in range(4): A(f"v_cvt_pk_bf16_f32 v{PK+8+4*t+i}, v{TV+8*t+2*i}, v{TV+8*t+2*i+1}")
        for i in range(16): A(f"v_mul_f32 v{TQ+i}, s44, v{TQ+i}")
        for t in range(2): A(f"v_permlane16_swap_b32 v{PK+4*t}, v{PK+4*t+2}", f"v_permlane16_swap_b32 v{PK+4*t+1}, v{PK+4*t+3}")
        for t in range(2):
            for i in range(4): A(f"v_cvt_pk_bf16_f32 v{PK+16+4*t+i}, v{TQ+8*t+2*i}, v{TQ+8*t+2*i+1}")
        for t in range(2): A(f"v_permlane32_swap_b32 v{PK+8+4*t}, v{PK+8+4*t+2}", f"v_permlane32_swap_b32 v{PK+8+4*t+1}, v{PK+8+4*t+3}")
        for t in range(2): A(f"v_permlane16_swap_b32 v{PK+16+4*t}, v{PK+16+4*t+2}", f"v_permlane16_swap_b32 v{PK+16+4*t+1}, v{PK+16+4*t+3}")
        A(f"s_add_u32 s46, s56, {hd*65536}", f"s_add_u32 s45, s46, {KF}", f"s_add_u32 s47, s46, {VF}")
        A(f"s_cmp_eq_u32 s{sMODE}, 0", f"s_cbranch_scc1 P1_st_safe{hd}")
        for sc,lab in (("",None),(" sc1",f"P1_st_safe{hd}")):
            if lab: A(f"s_branch P1_st_done{hd}", f"{lab}:")
            A(f"buffer_store_dwordx4 {vr(PK,4)}, v24, {W_}, s45 offen{sc}", f"buffer_store_dwordx4 {vr(PK+4,4)}, v24, {W_}, s45 offen offset:1024{sc}")
            A(f"buffer_store_dwordx4 {vr(PK+8,4)}, v24, {W_}, s47 offen{sc}", f"buffer_store_dwordx4 {vr(PK+12,4)}, v24, {W_}, s47 offen offset:1024{sc}")
            A(f"buffer_store_dwordx4 {vr(PK+16,4)}, v24, {W_}, s46 offen{sc}", f"buffer_store_dwordx4 {vr(PK+20,4)}, v24, {W_}, s46 offen offset:1024{sc}")
        A(f"P1_st_done{hd}:")
    A("s_branch P1_join")
    A("P1_loader:")
    n_end=ST.n; names_end=list(ST.names); ST.n=n_save; ST.names=list(names_save)
    A(f"s_and_b32 s34, s{sW}, 3")
    A(f"v_lshrrev_b32 v{t0}, 3, v{lane}", f"v_and_b32 v{t2}, 7, v{lane}", f"v_lshrrev_b32 v{t1}, 4, v{lane}", f"v_xor_b32 v{t1}, v{t1}, v{t2}",
      f"s_lshl_b32 s42, s{sRB}, 7", "s_lshl_b32 s43, s34, 5", "s_add_u32 s42, s42, s43", f"v_add_u32 v{vX}, s42, v{t0}", f"v_lshlrev_b32 v{vX}, 10, v{vX}",
      f"v_xor_b32 v9, 4, v{t1}", f"v_lshl_add_u32 v9, v9, 4, v{vX}", f"v_add_u32 v9, 8192, v9", f"v_lshl_add_u32 v{vX}, v{t1}, 4, v{vX}")
    A(f"v_add_u32 v10, 0x4000, v{vX}", "v_add_u32 v11, 0x4000, v9")
    A(f"v_bfe_u32 v{t1}, v{lane}, 4, 1", f"v_lshlrev_b32 v{t1}, 1, v{t1}", f"v_xor_b32 v{t1}, v{t1}, v{t2}",
      "s_lshl_b32 s43, s34, 4", f"v_add_u32 v{t0}, s43, v{t0}", f"v_mul_u32_u24 v{vW}, 3072, v{t0}", f"s_lshl_b32 s45, s{sX}, 7", f"v_add_u32 v{vW}, s45, v{vW}",
      f"v_xor_b32 v12, 4, v{t1}", f"v_lshl_add_u32 v12, v12, 4, v{vW}", f"v_add_u32 v12, {8*3072}, v12", f"v_lshl_add_u32 v{vW}, v{t1}, 4, v{vW}")
    def dmas():
        L=[]
        xs=[vX,9,10,11]
        for ii in range(4):
            L.append([f"s_add_u32 m0, s46, {ii*1024}", "NOP", f"buffer_load_dwordx4 v{xs[ii]}, s[{SRD_A}:{SRD_A+3}], s47 offen{' nt' if 'xnt' in opt else ''} lds"])
        for seg in range(3):
            for ii in range(2):
                L.append([f"s_add_u32 m0, s57, {16384+seg*8192+ii*1024-seg*1024}", "NOP", f"buffer_load_dwordx4 v{[vW,12][ii]}, s[{SRD_B}:{SRD_B+3}], s48 offen offset:{seg*1024}{'' if 'nownt' in opt else ' nt'} lds"])
        return L
    def issue():
        A("s_and_b32 s51, s50, 3", f"s_mul_i32 s51, s51, {STG}", "s_lshl_b32 s46, s34, 12", "s_add_u32 s46, s46, s51", "s_lshl_b32 s57, s34, 11", "s_add_u32 s57, s57, s51",
          "s_lshl_b32 s47, s50, 7", f"s_mul_i32 s48, s50, {64*3072}")
        if 'p1nodma' not in opt:
            for g in dmas(): A([("s_nop 0" if x=="NOP" else x) for x in g])
        A("s_add_u32 s50, s50, 1")
    A("s_mov_b32 s50, 0", "s_mov_b32 s49, 0")
    A("P1_lpro:")
    issue()
    A("s_cmp_lt_u32 s50, 2", "s_cbranch_scc1 P1_lpro")
    gate_loads()
    A("s_waitcnt vmcnt(12)", "s_barrier")
    A("s_waitcnt lgkmcnt(0)", f"s_mul_i32 s{sNONCE}, s3, 0x9e3779b1", f"s_add_u32 s{sNONCE}, s{sNONCE}, 0x7f4a7c15")
    ST.rt("p1_data")
    A(f"v_lshrrev_b32 v{t0}, 4, v{lane}", f"v_lshlrev_b32 v{vPT}, 22, v{t0}", f"v_bfe_u32 v{t0}, v{lane}, 3, 1", f"v_lshl_add_u32 v{vPT}, v{t0}, 10, v{vPT}",
      f"v_and_b32 v{t0}, 7, v{lane}", f"v_lshl_add_u32 v{vPT}, v{t0}, 7, v{vPT}", f"v_cmp_gt_u32 vcc, 48, v{lane}", f"v_mov_b32 v{t0}, 0x7ff00000", "s_nop 0",
      f"v_cndmask_b32 v{vPT}, v{t0}, v{vPT}, vcc")
    A("s_and_b32 s42, s34, 1", "s_lshr_b32 s43, s34, 1",
      f"s_lshl_b32 s44, s{sX}, 2", "s_lshl_b32 s43, s43, 1", "s_add_u32 s44, s44, s43", f"s_lshl_b32 s43, s{sBR}, 5", "s_add_u32 s44, s44, s43", "s_lshl_b32 s44, s44, 16",
      f"s_lshl_b32 s43, s{sRB}, 1", "s_add_u32 s43, s43, s42", "s_lshl_b32 s43, s43, 11", "s_add_u32 s56, s44, s43")
    issue_lbl="P1_lloop"
    A("P1_lpro2:")
    issue()
    A("s_cmp_lt_u32 s50, 4", "s_cbranch_scc1 P1_lpro2")
    A("P1_lloop:")
    A("s_cmp_lt_u32 s49, 5", "s_cbranch_scc0 P1_ltail", "s_waitcnt vmcnt(20)", "s_branch P1_lbar")
    A("P1_ltail:", "s_cmp_eq_u32 s49, 5", "s_cbranch_scc0 P1_ltail2", "s_waitcnt vmcnt(10)", "s_branch P1_lbar")
    A("P1_ltail2:", "s_cmp_eq_u32 s49, 6", "s_cbranch_scc0 P1_lbar", f"s_waitcnt vmcnt({2 if PTC==5 else 0})")
    A("P1_lbar:", "s_barrier")
    if ST.probe and ST.probe.startswith('it'):
        A(f"s_cmp_eq_u32 s49, {ST.probe[2:]}", "s_cbranch_scc0 P1_lnoprobe", "s_memrealtime s[100:101]", "s_waitcnt lgkmcnt(0)", "P1_lnoprobe:")
    A("s_cmp_lt_u32 s50, 8", "s_cbranch_scc0 P1_lnoiss")
    issue()
    A("P1_lnoiss:")
    A(f"s_cmp_eq_u32 s49, {PTC}", "s_cbranch_scc0 P1_lnopt", "s_add_u32 s42, s56, 65536",
      f"buffer_load_dword v{PT}, v{vPT}, {W_}, s56 offen {PTF}", f"buffer_load_dword v{PT+1}, v{vPT}, {W_}, s42 offen {PTF}", "P1_lnopt:")
    A("s_add_u32 s49, s49, 1", "s_cmp_lt_u32 s49, 8", "s_cbranch_scc1 P1_lloop")
    ST.rt("p1_loop")
    if 'p1it' in opt:
        A("s_waitcnt vmcnt(0)", "s_endpgm")
    if 'fine3' in opt: ST.rt("mode")
    A(f"s_mov_b32 s{sMODE}, 0")
    A("P1_join:")
    assert ST.n==n_end or 'p1it' in opt
    if 'fine3' in opt: ST.rt("st_iss")

def gate(A):
    W_=f"s[{SRD_WS}:{SRD_WS+3}]"
    GX=232; GW=236; GA=250
    A(f"v_mov_b32 v{GA}, 0")
    for i in range(4): A(f"v_dot2_f32_bf16 v{GA}, v{GX+i}, v{GW+i}, v{GA}")
    A("s_nop 2")
    for ror in (8,4,2,1):
        A(f"v_add_f32_dpp v{GA}, v{GA}, v{GA} row_ror:{ror} row_mask:0xf bank_mask:0xf", "s_nop 1")
    A(f"v_mov_b32 v{GA+1}, v{GA}", "s_nop 1", f"v_permlane16_swap_b32 v{GA+1}, v{GA}", "s_nop 1", f"v_add_f32 v{GA}, v{GA}, v{GA+1}",
      f"v_mov_b32 v{GA+1}, v{GA}", "s_nop 1", f"v_permlane32_swap_b32 v{GA+1}, v{GA}", "s_nop 1", f"v_add_f32 v{GA}, v{GA}, v{GA+1}")
    A(f"v_mul_f32 v{GA}, {hex(f2u(-1.4426950408889634))}, v{GA}", f"v_exp_f32 v{GA}, v{GA}", "s_nop 0", f"v_add_f32 v{GA}, 1.0, v{GA}", f"v_rcp_f32 v{GA}, v{GA}",
      "s_lshl_b32 s62, s62, 2", f"s_add_u32 s62, s62, {GOFF}", f"v_mov_b32 v{GA+1}, 0")
def gate_store(A):
    A("s_mov_b64 exec, 1", f"buffer_store_dword v250, v251, s[{SRD_WS}:{SRD_WS+3}], s62 offen sc1", "s_mov_b64 exec, -1")

def publish1(A, ST, opt):
    if 'fine3' in opt:
        A("s_waitcnt vmcnt(0)"); ST.rt("vm0")
    A("s_waitcnt vmcnt(0)", "s_barrier")
    if 'fine3' in opt: ST.rt("bar1")
    ST.rt("p1_stored")
    A(f"s_lshl_b32 s42, s{sX}, 7", f"s_lshl_b32 s43, s{sI}, 2", "s_add_u32 s43, s43, s42", f"s_add_u32 s43, s43, {FL+FL_F1}", f"s_add_u32 s38, s42, {FL+FL_F1}")
    A(f"s_cmp_eq_u32 s{sMODE}, 0", "s_cbranch_scc1 L_f1_safe")
    setflag(A,"f1f",43,5,"")
    A("s_branch L_f1_done", "L_f1_safe:")
    setflag(A,"f1s",43,5," sc1")
    A("L_f1_done:")
def sync1(A, ST, opt):
    if 'fine3' in opt: ST.rt("prolog")
    poll(A,"p1",38,2,3,stride=F1STR)
    A("s_barrier")
    ST.rt("p1_flags")

LANE=1
QA0=4; QA1=8; QB=12
OA0=16; OA1=32
S0=48; S1=64
P=80
KB_=88; VB_=210
MF=140; MD=156; CB=96
vKa=172; vVa=173
vL16=174; vT=175; vT2=176; vT3=177; vNEGM=178; vM=179; vKs=180; vVs=181; vX0=182; vPK=184
VL=188
LDS_KA=0; LDS_VA=65536; LDS_KB=131072; LDS_VB=147456
def exps(S): return [f"v_exp_f32 v{S+i}, v{S+i}" for i in range(16)]
def cvts(S): return [f"v_cvt_pk_bf16_f32 v{P+i}, v{S+2*i}, v{S+2*i+1}" for i in range(8)]
MK=[f"s_mov_b64 exec, s[{sMASK}:{sMASK+1}]"]; UM=["s_mov_b64 exec, -1"]
def unit(A, Sc, QK, PV1, ld, wK, wV, PV0):
    e=exps(Sc); c=cvts(Sc)
    A(wK, QK)
    A(e[0:4], c[0], e[4:6], c[1])
    A(PV1, ld)
    A(e[6:8], c[2], e[8:10], c[3], e[10:12])
    A(wV, PV0)
    A(e[12:13], c[4], e[13:15], c[5], e[15:16], c[6], c[7])
def slow_pass(A, tag, Q, O, pass1, far, diag, n):
    A(f"v_mov_b32 v{vX0}, v{vKs}", f"v_mov_b32 v{vX0+1}, v{vVs}", "s_mov_b32 s60, 0")
    if pass1: A(f"v_mov_b32 v{vM}, {hex(NEG)}", f"v_mov_b32 v{vNEGM}, 0")
    else:
        for i in range(16): A(f"v_mov_b32 v{O+i}, 0")
    A(f"L_{tag}_loop:")
    A(f"ds_read_b128 {vr(KB_,4)}, v{vX0}")
    if not pass1: A(MK, f"ds_read_b128 {vr(VB_,4)}, v{vX0+1}", f"ds_read_b128 {vr(VB_+4,4)}, v{vX0+1} offset:512", UM)
    A("s_cmp_eq_u32 s60, 0", f"s_cselect_b32 s61, s{far}, 0", "s_cmp_lg_u32 s61, 0", f"s_cbranch_scc1 L_{tag}_far")
    A(f"s_add_u32 s61, s60, 1", f"s_cmp_eq_u32 s61, s{n}", f"s_cselect_b32 s61, s{diag}, 0", "s_cmp_lg_u32 s61, 0", f"s_cbranch_scc1 L_{tag}_diag")
    for i in range(16): A(f"v_mov_b32 v{CB+i}, v{vNEGM}")
    A(f"s_branch L_{tag}_go")
    A(f"L_{tag}_far:")
    for i in range(16): A(f"v_add_f32 v{CB+i}, v{MF+i}, v{vNEGM}")
    A(f"s_branch L_{tag}_go")
    A(f"L_{tag}_diag:")
    for i in range(16): A(f"v_add_f32 v{CB+i}, v{MD+i}, v{vNEGM}")
    A(f"L_{tag}_go:")
    A("s_waitcnt lgkmcnt(0)", "s_nop 0")
    A(mfma32(S0, KB_, Q, CB))
    A("s_nop 7","s_nop 3")
    if pass1:
        for i in range(16): A(f"v_max_f32 v{vM}, v{vM}, v{S0+i}")
    else:
        A(exps(S0), "s_nop 0", cvts(S0), "s_nop 1")
        A(mfma32(O, VB_, P, O), mfma32(O, VB_+4, P+4, O))
    A(f"v_add_u32 v{vX0}, 1024, v{vX0}", f"v_add_u32 v{vX0+1}, 1024, v{vX0+1}")
    A("s_add_u32 s60, s60, 1", f"s_cmp_lt_u32 s60, s{n}", f"s_cbranch_scc1 L_{tag}_loop")
    if pass1:
        A(f"v_mov_b32 v{vT}, v{vM}", "s_nop 1", f"v_permlane32_swap_b32 v{vT}, v{vM}", "s_nop 1",
          f"v_max_f32 v{vM}, v{vM}, v{vT}", f"v_sub_f32 v{vNEGM}, 0, v{vM}")
    else: A("s_nop 7","s_nop 3")
def bcast_l(A,O):
    A(f"v_mov_b32 v{vT}, v{O+8}", "s_nop 1", f"v_permlane32_swap_b32 v{vT}, v{O+8}", "s_nop 1", f"v_add_f32 v{O+8}, v{O+8}, v{vT}")
def check_range(A, O, okl):
    bcast_l(A,O)
    A(f"v_mov_b32 v{vT}, v{O+8}")
    for i in range(8): A(f"v_fma_f32 v{vT}, v{O+i}, 0, v{vT}")
    A(f"s_mov_b32 s44, {hex(LLO)}", f"s_mov_b32 s45, {hex(LHI)}")
    A(f"v_cmp_le_f32 s[46:47], s44, v{vT}", f"v_cmp_ge_f32 s[48:49], s45, v{vT}", "s_nop 1",
      "s_and_b64 s[46:47], s[46:47], s[48:49]", "s_cmp_eq_u64 s[46:47], -1", f"s_cbranch_scc1 {okl}")
def finalize(A, O, soff):
    A(f"v_rcp_f32 v{vT}, v{O+8}", "s_nop 0")
    for i in range(8): A(f"v_mul_f32 v{O+i}, v{O+i}, v{vT}")
    for i in range(4): A(f"v_cvt_pk_bf16_f32 v{vPK+i}, v{O+2*i}, v{O+2*i+1}")
    A(f"buffer_store_dwordx4 {vr(vPK,4)}, v{vL16}, s[{SRD_WS}:{SRD_WS+3}], s{soff} offen sc1")

def early2(A):
    A(f"v_and_b32 v{LANE}, 63, v0")
    A(f"v_lshlrev_b32 v{vL16}, 4, v{LANE}", f"v_and_b32 v{vT}, 31, v{LANE}")
    A(f"s_mov_b32 s{sMASK}, 0x0000ffff", f"s_mov_b32 s{sMASK+1}, 0x0000ffff")
    A(f"v_cmp_eq_u32 vcc, 16, v{vT}", f"v_mov_b32 v{vX0}, 0x3f803f80", "s_nop 0", f"v_cndmask_b32 v{vX0+1}, 0, v{vX0}, vcc")
    for i in range(16): A(f"v_mov_b32 v{VB_+i}, v{vX0+1}")
    hh=vT3; MS=[82,90,96,98]
    A(f"v_lshrrev_b32 v{hh}, 5, v{LANE}", f"v_lshlrev_b32 v{vT2}, 2, v{hh}", f"v_sub_u32 v{vT2}, v{vT}, v{vT2}")
    A(f"v_mov_b32 v{vX0}, {hex(NEG)}")
    for g in range(4):
        for k in range(4): A(f"v_cmp_gt_i32 s[{MS[k]}:{MS[k]+1}], {8*g+k}, v{vT2}")
        A("s_nop 0")
        for k in range(4):
            i=4*g+k
            A(f"v_cndmask_b32 v{MF+i}, v{vX0}, 0, s[{MS[k]}:{MS[k]+1}]", f"v_cndmask_b32 v{MD+i}, 0, v{vX0}, s[{MS[k]}:{MS[k]+1}]")
    A(f"v_and_b32 v{vT}, 15, v{LANE}", f"v_lshlrev_b32 v{vT}, 4, v{vT}", f"v_lshl_add_u32 v{VL}, v{hh}, 8, v{vT}")

def phase2(A, ST, opt):
    W_=f"s[{SRD_WS}:{SRD_WS+3}]"
    SC="" if 'plainld' in opt else " sc1"
    early2(A)
    A(f"s_and_b32 s15, s{sW}, 3", f"s_lshr_b32 s16, s{sW}, 2")
    A("s_lshl_b32 s17, s15, 1", "s_add_u32 s17, s17, s16",
      f"s_lshl_b32 s18, s{sJ}, 3", "s_add_u32 s19, s18, s17",
      f"s_lshl_b32 s20, s{sH}, 16", f"s_add_u32 s21, s20, {32*65536}")
    A("s_lshl_b32 s43, s17, 10", f"s_add_u32 s44, s43, {LDS_KB}", f"v_add_u32 v{vKa}, s44, v{vL16}",
      f"s_add_u32 s44, s43, {LDS_VB}", f"v_add_u32 v{vVa}, s44, v{VL}")
    A("s_lshl_b32 s32, s19, 16", f"s_lshl_b32 s33, s{sH}, 10", "s_add_u32 s32, s32, s33", f"s_add_u32 s32, s32, {OF}", "s_add_u32 s33, s32, 32768")
    A("s_lshl_b32 s22, s19, 10", "s_add_u32 s22, s22, s21", f"s_add_u32 s22, s22, {QF}")
    A("s_lshl_b32 s23, s19, 10", "s_add_u32 s23, s23, s20", f"s_add_u32 s23, s23, {QF}", "s_xor_b32 s14, s19, 1", "s_lshl_b32 s14, s14, 10", "s_add_u32 s14, s14, s20", f"s_add_u32 s14, s14, {QF}")
    for ii in range(2):
        A(f"s_add_u32 s43, s{sW}, {8*ii}", "s_add_u32 s44, s18, s43", "s_sub_u32 s44, s44, 8", "s_max_i32 s44, s44, 0",
          "s_lshl_b32 s44, s44, 10", "s_add_u32 s44, s44, s21", f"s_add_u32 s{54+ii}, s44, {KF}")
    A(f"s_lshl_b32 s56, s{sW}, 10", "s_add_u32 s57, s56, s20", f"s_add_u32 s57, s57, {KF}")
    publish1(A,ST,opt)
    OBz=OA0
    for i in range(16): A(f"v_mov_b32 v{OBz+i}, 0")
    for i in range(4): A(f"v_mov_b32 v{P+4+i}, 0")
    gate(A)
    sync1(A,ST,opt)
    A(f"buffer_load_dwordx4 {vr(QB,4)}, v{vL16}, {W_}, s22 offen{SC}")
    if 'fine2' in opt:
        A("s_waitcnt vmcnt(0)"); ST.rt("qb_landed")
    for ii in range(2):
        A(f"s_add_u32 m0, s56, {LDS_KB+8192*ii}", f"s_add_u32 s45, s{54+ii}, {VF-KF}", f"buffer_load_dwordx4 v{vL16}, {W_}, s{54+ii} offen{SC} lds")
        A(f"s_add_u32 m0, s56, {LDS_VB+8192*ii}", "s_nop 0", f"buffer_load_dwordx4 v{vL16}, {W_}, s45 offen{SC} lds")
    A(f"buffer_load_dwordx4 {vr(QA0,4)}, v{vL16}, {W_}, s23 offen{SC}", f"buffer_load_dwordx4 {vr(QA1,4)}, v{vL16}, {W_}, s14 offen{SC}")
    def adma(m):
        return [f"s_add_u32 m0, s56, {LDS_KA+m*8192}", f"s_add_u32 s45, s57, {m*8192}", f"buffer_load_dwordx4 v{vL16}, {W_}, s45 offen{SC} lds",
                f"s_add_u32 m0, s56, {LDS_VA+m*8192}", f"s_add_u32 s45, s57, {VF-KF+m*8192}", f"buffer_load_dwordx4 v{vL16}, {W_}, s45 offen{SC} lds"]
    global ADMA; ADMA=adma
    A("s_waitcnt vmcnt(2)")
    OB=OA0
    if 'fine3' in opt: ST.rt("own_b")
    A("s_barrier")
    ST.rt("b_data")
    if 'fine3' in opt:
        ST.flush(2); A("s_waitcnt vmcnt(0)", "s_endpgm"); ST.on=False
    def ldK(t,base): return [f"ds_read_b128 {vr(KB_+4*(t%2),4)}, v{base} offset:{t*1024}"]
    def ldV(t,base): return MK+[f"ds_read_b128 {vr(VB_+8*(t%2),4)}, v{base} offset:{t*1024}", f"ds_read_b128 {vr(VB_+8*(t%2)+4,4)}, v{base} offset:{t*1024+512}"]+UM
    NB=9
    A("s_mov_b32 s51, 1", f"s_cmp_eq_u32 s{sJ}, 0", "s_cselect_b32 s50, 0, 1", "s_sub_u32 s53, 8, s17", "s_cselect_b32 s53, s53, 0")
    A.L.pop()
    A(f"s_cmp_eq_u32 s{sJ}, 0", "s_cselect_b32 s53, s53, 0")
    A("s_sub_u32 s52, 9, s53")
    A("s_lshl_b32 s43, s53, 10", f"v_add_u32 v{vKs}, s43, v{vKa}", f"v_add_u32 v{vVs}, s43, v{vVa}")
    A("s_cmp_eq_u32 s53, 0", "s_cbranch_scc1 B_pro0", "s_mov_b32 s58, s56", "s_mov_b32 s59, s57", "s_mov_b32 s60, s53", "B_skipdma:")
    A(f"s_add_u32 m0, s58, {LDS_KA}", f"s_add_u32 s45, s59, {VF-KF}", f"buffer_load_dwordx4 v{vL16}, {W_}, s59 offen{SC} lds",
      f"s_add_u32 m0, s58, {LDS_VA}", "s_add_u32 s58, s58, 8192", f"buffer_load_dwordx4 v{vL16}, {W_}, s45 offen{SC} lds",
      "s_add_u32 s59, s59, 8192", "s_sub_u32 s60, s60, 1", "s_cmp_lg_u32 s60, 0", "s_cbranch_scc1 B_skipdma")
    for s0 in range(1,NB):
        A(f"s_cmp_eq_u32 s53, {s0}", f"s_cbranch_scc1 B_pro{s0}")
    for s0 in range(NB-1,-1,-1):
        A(f"B_pro{s0}:")
        Sc=S0 if s0%2==0 else S1
        C = MF if s0==0 else (MD if s0==NB-1 else "0")
        A(ldK(s0,vKa), "s_waitcnt lgkmcnt(0)", mfma32(Sc, KB_+4*(s0%2), QB, C))
        if s0==0:
            A(ldV(0,vVa), ldK(1,vKa))
        else:
            if s0+1<NB: A(ldK(s0+1,vKa))
            A(ldV(s0,vVa))
        A("s_nop 7","s_nop 3")
        if s0!=0: A(f"s_branch B_step{s0}")
    for t in range(NB):
        A(f"B_step{t}:")
        Sc=S0 if t%2==0 else S1; Sn=S1 if t%2==0 else S0
        if t+1<NB:
            QK=[mfma32(Sn, KB_+4*((t+1)%2), QB, MD if t+1==NB-1 else "0")]
            wK=["s_waitcnt lgkmcnt(0)"] if t==0 else ["s_waitcnt lgkmcnt(2)"]
        else: QK=[]; wK=[]
        PV1=[mfma32(OB, VB_+8*((t-1)%2)+4, P+4, OB)] if t>0 else []
        ld=[]
        if t+2<NB: ld+=ldK(t+2,vKa)
        if t+1<NB: ld+=ldV(t+1,vVa)
        nld=(1 if t+2<NB else 0)+(2 if t+1<NB else 0)
        wV=[f"s_waitcnt lgkmcnt({nld})"]
        PV0=[mfma32(OB, VB_+8*(t%2), P, OB)]
        if t<8: ld=ld+ADMA(t)
        unit(A,Sc,QK,PV1,ld,wK,wV,PV0)
    A("s_nop 1", mfma32(OB, VB_+8*((NB-1)%2)+4, P+4, OB))
    A("s_nop 7","s_nop 3")
    check_range(A,OB,"B_ok")
    slow_pass(A,"bf1",QB,OB,True,50,51,52)
    slow_pass(A,"bf2",QB,OB,False,50,51,52)
    bcast_l(A,OB)
    A("B_ok:")
    finalize(A,OB,33)
    ST.rt("b_done")
    A("s_waitcnt vmcnt(1)", "s_barrier")
    ST.rt("a_start")
    gate_store(A)
    if 'dup' in opt: A("s_mov_b32 s54, 2", "A_dup:")
    A("s_lshl_b32 s43, s16, 15", f"v_add_u32 v{vKa}, s43, v{vL16}", f"s_add_u32 s44, s43, {LDS_VA}", f"v_add_u32 v{vVa}, s44, v{VL}")
    for i in range(32): A(f"v_mov_b32 v{OA0+i}, 0")
    for i in range(4): A(f"v_mov_b32 v{P+4+i}, 0")
    Qr=[QA0,QA1]; Or=[OA0,OA1]
    A(ldK(0,vKa), ldV(0,vVa), "s_waitcnt lgkmcnt(2)", mfma32(S0, KB_, QA0, "0"))
    vFv=112; vFz=113; vFa=114; vFb=115
    A(f"s_lshl_b32 s34, s{sJ}, 10", f"s_lshl_b32 s35, s{sH}, 5", "s_add_u32 s34, s34, s35", f"s_lshl_b32 s35, s{sW}, 2", "s_add_u32 s34, s34, s35",
      f"s_add_u32 s35, s34, {FL+FL_F2A}", f"s_add_u32 s34, s34, {FL+FL_F2B}")
    A(f"v_mov_b32 v{vFv}, s{sNONCE}", f"v_mov_b32 v{vFz}, 0")
    A(f"v_lshrrev_b32 v{vFa}, 1, v{LANE}", f"v_lshlrev_b32 v{vFa}, 5, v{vFa}", f"v_and_b32 v{vT}, 1, v{LANE}", f"v_lshl_add_u32 v{vFa}, v{vT}, 4, v{vFa}",
      f"s_and_b32 s36, s{sI}, 3", "s_lshl_b32 s36, s36, 2", f"v_add_u32 v{vFa}, s36, v{vFa}", f"s_lshl_b32 s36, s{sX}, 10", f"s_add_u32 s36, s36, {FL+FL_F2B}")
    A("s_mov_b32 s53, 4", "s_setprio 3", "s_nop 7", "s_nop 1")
    A(".p2align 3", "A_loop:")
    A("s_cmp_eq_u32 s53, 3", "s_cbranch_scc1 A_it1", "s_cmp_eq_u32 s53, 2", "s_cbranch_scc1 A_it2", "s_cmp_eq_u32 s53, 1", "s_cbranch_scc1 A_it3", "A_body:")
    NK=8
    units=[(t,qi) for t in range(NK) for qi in range(2)]
    for u,(t,qi) in enumerate(units):
        Sc=S0 if u%2==0 else S1; Sn=S1 if u%2==0 else S0
        tn,qn=(t,1) if qi==0 else (t+1,0)
        tp,qp=(t-1,1) if qi==0 else (t,0)
        QK=[mfma32(Sn, KB_+4*(tn%2), Qr[qn], "0")]
        PV1=[mfma32(Or[qp], VB_+8*(tp%2)+4, P+4, Or[qp])]
        PV0=[mfma32(Or[qi], VB_+8*(t%2), P, Or[qi])]
        ld=[];wK=[];wV=[]
        if qi==0: ld=ldK(t+1,vKa)+ldV(t+1,vVa); wV=["s_waitcnt lgkmcnt(3)"]
        else: wK=["s_waitcnt lgkmcnt(2)"]
        unit(A,Sc,QK,PV1,ld,wK,wV,PV0)
    A(f"v_add_u32 v{vKa}, {NK*1024}, v{vKa}", f"v_add_u32 v{vVa}, {NK*1024}, v{vVa}")
    A("s_sub_u32 s53, s53, 1", "s_cmp_lg_u32 s53, 0", "s_cbranch_scc1 A_loop")
    A("s_branch A_after")
    A("A_it1:", "s_setprio 2", "s_waitcnt vmcnt(0)", "s_mov_b64 exec, 1", f"buffer_store_dword v{vFv}, v{vFz}, {W_}, s34 offen sc1", "s_mov_b64 exec, -1")
    if 'wbl2' in opt:
        A(f"s_cmp_lg_u32 s{sI}, 0", "s_cbranch_scc1 A_body", f"s_cmp_lg_u32 s{sW}, 0", "s_cbranch_scc1 A_body", "buffer_wbl2 sc1")
    A("s_branch A_body")
    A("A_it2:", "s_setprio 1")
    if 'nopt3' not in opt:
        vP=116
        A(f"s_and_b32 s44, s{sI}, 3", f"s_lshr_b32 s45, s{sI}, 2", "s_and_b32 s46, s44, 1", "s_lshl_b32 s46, s46, 8", f"s_lshl_b32 s47, s{sW}, 5", "s_add_u32 s46, s46, s47",
          f"v_and_b32 v{vP}, 31, v{LANE}", f"v_add_u32 v{vP}, s46, v{vP}", f"v_lshlrev_b32 v{vP}, 10, v{vP}", "s_lshl_b32 s45, s45, 7",
          "s_cmp_lt_u32 s44, 2", f"s_cselect_b32 s48, s{pWOA}, s{pWOB}", f"s_cselect_b32 s49, s{pWOA+1}, s{pWOB+1}")
        A(f"s_mov_b32 s{SRD_PT}, s48", f"s_mov_b32 s{SRD_PT+1}, s49", f"s_mov_b32 s{SRD_PT+2}, {512*512*2}", f"s_mov_b32 s{SRD_PT+3}, 0x00020000",
          f"buffer_load_dword v{vP+1}, v{vP}, s[{SRD_PT}:{SRD_PT+3}], s45 offen")
        if 'ptout' in opt:
            A(f"s_lshl_b32 s46, s{sX}, 8", "s_lshl_b32 s47, s44, 6", "s_add_u32 s46, s46, s47", f"s_lshl_b32 s47, s{sW}, 3", "s_add_u32 s46, s46, s47",
              f"v_and_b32 v{vP}, 7, v{LANE}", f"v_add_u32 v{vP}, s46, v{vP}", f"v_lshlrev_b32 v{vP}, 10, v{vP}",
              f"s_mov_b32 s{SRD_PT}, s{pOUT}", f"s_mov_b32 s{SRD_PT+1}, s{pOUT+1}", f"s_mov_b32 s{SRD_PT+2}, {2048*512*2}", f"s_mov_b32 s{SRD_PT+3}, 0x00020000",
              f"buffer_load_dword v{vP+2}, v{vP}, s[{SRD_PT}:{SRD_PT+3}], s45 offen")
    A("s_branch A_body")
    A("A_it3:", "s_setprio 0", f"buffer_load_dword v{vFb}, v{vFa}, {W_}, s36 offen sc1", "s_branch A_body")
    A("A_after:")
    A(mfma32(OA1, VB_+8*((NK-1)%2)+4, P+4, OA1))
    A("s_waitcnt lgkmcnt(0)", "s_nop 7", "s_nop 3")
    if 'dup' in opt: A("s_sub_u32 s54, s54, 1", "s_cmp_lg_u32 s54, 0", "s_cbranch_scc1 A_dup")
    ST.rt("a_loop")
    A(f"s_mul_i32 s43, s{sW}, 2560", f"s_add_u32 s43, s43, {LDS_KB}", f"v_add_u32 v{vT}, s43, v{vL16}",
      f"v_lshlrev_b32 v{vT2}, 2, v{LANE}", f"v_add_u32 v{vT2}, s43, v{vT2}")
    A(f"ds_write_b128 v{vT}, {vr(OA1,4)}", f"ds_write_b128 v{vT}, {vr(OA1+4,4)} offset:1024", f"ds_write_b32 v{vT2}, v{OA1+8} offset:2048")
    A(f"s_xor_b32 s44, s{sW}, 4", "s_mul_i32 s43, s44, 2560", f"s_add_u32 s43, s43, {LDS_KB}", f"v_add_u32 v{vT}, s43, v{vL16}",
      f"v_lshlrev_b32 v{vT2}, 2, v{LANE}", f"v_add_u32 v{vT2}, s43, v{vT2}")
    A("s_waitcnt lgkmcnt(0)", "s_barrier")
    A(f"ds_read_b128 {vr(S0,4)}, v{vT}", f"ds_read_b128 {vr(S0+4,4)}, v{vT} offset:1024", f"ds_read_b32 v{S0+8}, v{vT2} offset:2048")
    A("s_waitcnt lgkmcnt(0)")
    for i in range(9): A(f"v_add_f32 v{OA0+i}, v{OA0+i}, v{S0+i}")
    check_range(A,OA0,"A_ok")
    A("s_mov_b32 s50, 0", "s_mov_b32 s51, 0", "s_mov_b32 s52, 64")
    A(f"v_add_u32 v{vKs}, {LDS_KA}, v{vL16}", f"v_add_u32 v{vVs}, {LDS_VA}, v{VL}")
    slow_pass(A,"af1",QA0,OA0,True,50,51,52)
    slow_pass(A,"af2",QA0,OA0,False,50,51,52)
    bcast_l(A,OA0)
    A("A_ok:")
    finalize(A,OA0,32)

def phase3(A, ST, opt):
    W_=f"s[{SRD_WS}:{SRD_WS+3}]"
    lane=LANE
    vFv=112; vFz=113; vFa=114; vFb=115
    srd(A,SRD_A,pWOA,512*512*2); srd(A,SRD_B,pWOB,512*512*2); srd(A,SRD_C,pOUT,2048*512*2)
    SA=f"s[{SRD_A}:{SRD_A+3}]"; SB=f"s[{SRD_B}:{SRD_B+3}]"
    A(f"s_and_b32 s50, s{sI}, 3", f"s_lshr_b32 s51, s{sI}, 2")
    A(f"s_and_b32 s52, s{sW}, 1", f"s_bfe_u32 s53, s{sW}, 0x10001", f"s_lshr_b32 s54, s{sW}, 2")
    vW=4
    A(f"v_lshrrev_b32 v5, 3, v{lane}", "v_lshlrev_b32 v5, 10, v5", f"v_bfe_u32 v6, v{lane}, 4, 1", "v_lshlrev_b32 v6, 2, v6", f"v_and_b32 v7, 7, v{lane}",
      "v_xor_b32 v6, v6, v7", "v_lshl_add_u32 v5, v6, 4, v5", "s_lshl_b32 s42, s51, 7", f"v_add_u32 v{vW}, s42, v5", f"v_lshlrev_b32 v3, 4, v{lane}")
    A(f"s_lshl_b32 s42, s{sX}, 3", "s_lshl_b32 s43, s50, 1", "s_add_u32 s42, s42, s43", "s_lshl_b32 s55, s42, 16", f"s_add_u32 s55, s55, {OF}",
      "s_lshl_b32 s43, s53, 14", "s_lshl_b32 s44, s54, 12", "s_add_u32 s43, s43, s44",
      "s_lshl_b32 s56, s52, 15", "s_add_u32 s56, s56, s43", "s_add_u32 s56, s56, 0x10000",
      "s_lshl_b32 s57, s52, 16", "s_add_u32 s57, s57, s43", "s_add_u32 s57, s57, s55")
    def odma(br):
        L=[]
        for r in range(2):
            for ii in range(4):
                L+= [f"s_add_u32 m0, s56, {r*8192+ii*1024}", f"s_add_u32 s45, s57, {br*32768+r*8192+ii*1024}", f"buffer_load_dwordx4 v3, {W_}, s45 offen sc1 lds"]
        return L
    def wdma(S_, n, lds0, row0_sgpr_expr):
        L=[]
        for ii in range(n):
            L+= [f"s_add_u32 m0, s58, {lds0+ii*1024}", f"s_add_u32 s45, s59, {ii*8192}", f"buffer_load_dwordx4 v{vW}, {S_}, s45 offen lds"]
        return L
    A(f"s_lshl_b32 s58, s{sW}, 13", f"s_lshl_b32 s59, s{sW}, 16")
    A("s_barrier")
    A(wdma(SB,8,0,None))
    A("s_waitcnt vmcnt(9)", f"s_mov_b32 s46, {SPIN_MAX}")
    A("P3_bchk:", f"v_cmp_ne_u32 vcc, s{sNONCE}, v{vFb}", "s_nop 1", "s_cmp_eq_u64 vcc, 0", "s_cbranch_scc1 P3_bok",
      "s_sub_u32 s46, s46, 1", "s_cmp_eq_u32 s46, 0", "s_cbranch_scc1 P3_bok", "s_sleep 1",
      f"buffer_load_dword v{vFb}, v{vFa}, {W_}, s36 offen sc1", "s_waitcnt vmcnt(0)", "s_branch P3_bchk", "P3_bok:")
    A(odma(1))
    A("s_waitcnt vmcnt(16)")
    A("s_mov_b64 exec, 1", f"buffer_store_dword v{vFv}, v{vFz}, {W_}, s35 offen sc1", "s_mov_b64 exec, -1")
    ST.rt("o_stored")
    A(f"v_and_b32 v12, 31, v{lane}", f"s_lshl_b32 s44, s{sX}, 8", "s_lshl_b32 s45, s50, 6", "s_add_u32 s44, s44, s45", "s_lshl_b32 s45, s52, 5", "s_add_u32 s44, s44, s45",
      "v_add_u32 v12, s44, v12", "v_lshlrev_b32 v13, 2, v12", f"s_mov_b32 s45, {GOFF}", f"buffer_load_dword v14, v13, {W_}, s45 offen sc1")
    A(f"s_lshl_b32 s58, s{sW}, 12", f"s_lshl_b32 s59, s{sW}, 15")
    A(wdma(SA,4,131072,None))
    A(f"v_lshrrev_b32 v8, 5, v{lane}",
      f"v_bfe_u32 v5, v{lane}, 2, 2", "v_lshl_add_u32 v5, v8, 2, v5", "v_lshlrev_b32 v5, 7, v5",
      f"v_bfe_u32 v6, v{lane}, 4, 1", "v_lshlrev_b32 v6, 1, v6", f"v_bfe_u32 v7, v{lane}, 1, 1", "v_add_u32 v6, v6, v7",
      "s_lshl_b32 s42, s53, 2", "v_add_u32 v6, s42, v6",
      f"v_bfe_u32 v7, v{lane}, 3, 1", "v_lshlrev_b32 v7, 2, v7", "v_xor_b32 v6, v6, v7", "v_lshl_add_u32 v5, v6, 4, v5",
      f"v_and_b32 v7, 1, v{lane}", "v_lshl_add_u32 v5, v7, 3, v5",
      "s_lshl_b32 s42, s54, 15", "v_add_u32 v10, s42, v5")
    A("s_cmp_eq_u32 s54, 0", "s_cselect_b32 s42, 0x20000, 0", "v_add_u32 v9, s42, v5")
    A("s_lshl_b32 s43, s52, 15", "s_lshl_b32 s44, s54, 14", "s_add_u32 s43, s43, s44", "s_add_u32 s43, s43, 0x10000", "v_add_u32 v11, s43, v3")
    ACA=16; ACB=48; WR=[32,36,40,44]; OFr=[64,68,72,76]; WA=128
    for i in range(16): A(f"v_mov_b32 v{ACB+i}, 0", f"v_mov_b32 v{ACA+i}, 0")
    A("s_waitcnt vmcnt(6)", "s_barrier")
    ST.rt("w_landed")
    def wrd(dst, base, n): return [f"ds_read_b64_tr_b16 {vr(dst,2)}, v{base} offset:{(16*n)*128}", f"ds_read_b64_tr_b16 {vr(dst+2,2)}, v{base} offset:{(16*n+8)*128}"]
    def rd3(n): return wrd(WR[n%4],10,n)+[f"ds_read_b128 {vr(OFr[n%4],4)}, v11 offset:{n*1024}"]
    for n in range(3): A(rd3(n))
    for n in range(16):
        if n+3<16: A(rd3(n+3))
        A(f"s_waitcnt lgkmcnt({3*min(3,15-n)})")
        A(mfma32(ACB, WR[n%4], OFr[n%4], ACB))
    ST.rt("b_half")
    A("s_waitcnt vmcnt(0)", "s_barrier")
    A(f"s_add_u32 s59, s59, {256*1024}")
    A(wdma(SA,4,0,None))
    A(f"s_add_u32 s36, s36, {FL_F2A-FL_F2B}")
    A(f"s_cmp_lg_u32 s{sW}, 0", "s_cbranch_scc1 P3_askip", f"s_mov_b32 s46, {SPIN_MAX}")
    A("P3_achk:", f"buffer_load_dword v{vFb}, v{vFa}, {W_}, s36 offen sc1", "s_waitcnt vmcnt(0)",
      f"v_cmp_ne_u32 vcc, s{sNONCE}, v{vFb}", "s_nop 1", "s_cmp_eq_u64 vcc, 0", "s_cbranch_scc1 P3_askip",
      "s_sub_u32 s46, s46, 1", "s_cmp_eq_u32 s46, 0", "s_cbranch_scc1 P3_askip", "s_branch P3_achk", "P3_askip:")
    A("s_waitcnt vmcnt(0)", "s_barrier")
    ST.rt("p2_flags")
    A(odma(0))
    A("s_cmp_lg_u32 s2, 0", "s_cbranch_scc1 P3_noep", f"s_mov_b32 s43, {FL+FL_EPOCH}")
    setflag(A,"ep",43,5)
    A("P3_noep:")
    for n in range(16):
        A(wrd(WA+4*n,9,n))
        if n%4==3: A("s_waitcnt lgkmcnt(4)")
    for r in range(2):
        A(f"s_waitcnt vmcnt({4-4*r}) lgkmcnt(0)", "s_barrier")
        for s_ in range(4): A(f"ds_read_b128 {vr(OFr[s_],4)}, v11 offset:{(8*r+s_)*1024}")
        for s_ in range(8):
            n=8*r+s_
            A(f"s_waitcnt lgkmcnt({3 if s_<5 else 7-s_})")
            A(mfma32(ACA, WA+4*n, OFr[s_%4], ACA))
            if s_<4: A(f"ds_read_b128 {vr(OFr[s_%4],4)}, v11 offset:{(8*r+s_+4)*1024}")
    ST.rt("p3_mfma")
    A("s_nop 7","s_nop 3")
    for i in range(16): A(f"v_sub_f32 v{ACA+i}, v{ACA+i}, v{ACB+i}")
    for i in range(16): A(f"v_fma_f32 v{ACA+i}, v14, v{ACA+i}, v{ACB+i}")
    ACC=ACA
    A(f"s_lshl_b32 s43, s{sW}, 11", "v_add_u32 v5, s43, v3", f"s_xor_b32 s44, s{sW}, 4", "s_lshl_b32 s44, s44, 11", "v_add_u32 v6, s44, v3")
    PK=40
    A("s_cmp_eq_u32 s54, 0", "s_cbranch_scc0 P3_k1")
    for kq,lab in ((0,None),(1,"P3_k1")):
        if lab: A("s_branch P3_kdone", f"{lab}:")
        own=ACC+8*kq; oth=ACC+8*(1-kq)
        A(f"ds_write_b128 v5, {vr(oth,4)}", f"ds_write_b128 v5, {vr(oth+4,4)} offset:1024", "s_waitcnt lgkmcnt(0)", "s_barrier")
        A(f"ds_read_b128 {vr(32,4)}, v6", f"ds_read_b128 {vr(36,4)}, v6 offset:1024", "s_waitcnt lgkmcnt(0)")
        for i in range(8): A(f"v_add_f32 v{own+i}, v{own+i}, v{32+i}")
        for i in range(4): A(f"v_cvt_pk_bf16_f32 v{PK+i}, v{own+2*i}, v{own+2*i+1}")
    A("P3_kdone:")
    A("s_nop 1", f"v_permlane32_swap_b32 v{PK}, v{PK+2}", f"v_permlane32_swap_b32 v{PK+1}, v{PK+3}")
    A("v_lshlrev_b32 v5, 10, v12", "v_lshl_add_u32 v5, v8, 4, v5",
      "s_lshl_b32 s42, s51, 7", "s_lshl_b32 s43, s53, 6", "s_add_u32 s42, s42, s43", "s_lshl_b32 s43, s54, 5", "s_add_u32 s42, s42, s43")
    A(f"buffer_store_dwordx4 {vr(PK,4)}, v5, s[{SRD_C}:{SRD_C+3}], s42 offen" + (" sc1" if 'outsc1' in opt else "") + (" nt" if 'outnt' in opt else ""))

def gen(opt=()):
    A=Asm(); ST=Stamps(A,'stamps' in opt)
    pr=[o[6:] for o in opt if o.startswith('probe=')]
    if pr: ST.probe=pr[0]
    cy=[o[4:] for o in opt if o.startswith('cyc=')]
    if cy: ST.cp=cy[0].split(':')
    A(f".globl {NAME}", ".p2align 8", f".type {NAME},@function", f"{NAME}:")
    A("s_cmp_ge_u32 s2, 256", "s_cbranch_scc1 L_done")
    if 'scramble' in opt: A("s_lshr_b32 s3, s2, 3", "s_and_b32 s2, s2, 7", "s_lshl_b32 s2, s2, 5", "s_or_b32 s2, s2, s3")
    A(f"s_load_dwordx2 s[{sWS}:{sWS+1}], s[0:1], 72", "s_load_dwordx2 s[42:43], s[0:1], 0", "s_load_dwordx2 s[44:45], s[0:1], 8",
      "s_load_dwordx2 s[46:47], s[0:1], 32", "s_load_dwordx2 s[48:49], s[0:1], 48",
      f"s_load_dwordx2 s[{pWOA}:{pWOA+1}], s[0:1], 16", f"s_load_dwordx2 s[{pWOB}:{pWOB+1}], s[0:1], 40", f"s_load_dwordx2 s[{pOUT}:{pOUT+1}], s[0:1], 56")
    rot=[int(o[3:]) for o in opt if o.startswith('rot')]
    if rot: A(f"s_add_u32 s{sX}, s2, {rot[0]}", f"s_and_b32 s{sX}, s{sX}, 7")
    else: A(f"s_and_b32 s{sX}, s2, 7")
    A(f"s_lshr_b32 s{sI}, s2, 3", f"s_lshr_b32 s{sJ}, s{sI}, 2", f"s_and_b32 s{sA}, s{sI}, 3",
      f"s_lshr_b32 s{sBR}, s{sA}, 1", f"s_and_b32 s50, s{sA}, 1", f"s_lshl_b32 s{sRB}, s{sJ}, 1", f"s_add_u32 s{sRB}, s{sRB}, s50",
      f"s_lshl_b32 s{sH}, s{sX}, 2", f"s_add_u32 s{sH}, s{sH}, s{sA}")
    A("v_lshrrev_b32 v1, 6, v0", "v_and_b32 v2, 63, v0", "s_nop 0", f"v_readfirstlane_b32 s{sW}, v1")
    if 'pf' in opt:
        A("s_getpc_b64 s[50:51]", "L_pc:", f"s_sub_u32 s50, s50, (L_pc-{NAME})", "s_subb_u32 s51, s51, 0")
        A(f"s_lshl_b32 s52, s{sI}, 1", f"s_add_u32 s52, s52, s{sW}", "s_lshl_b32 s52, s52, 10", "v_lshlrev_b32 v3, 4, v2", "v_add_u32 v3, s52, v3")
        A(f"s_cmp_lt_u32 s{sW}, 2", "s_cbranch_scc0 L_nopf", f"s_cmp_lt_u32 s52, (L_done-{NAME}-1024)", "s_cbranch_scc0 L_nopf",
          "global_load_dwordx4 v[252:255], v3, s[50:51]", "L_nopf:")
    if 'spin60' in opt: A("s_memrealtime s[90:91]")
    A("s_waitcnt lgkmcnt(0)")
    wb=[int(o[2:]) for o in opt if o.startswith('wb') and o[2:].isdigit()]
    if wb: A(f"s_add_u32 s{sWS}, s{sWS}, {wb[0]<<20}", f"s_addc_u32 s{sWS+1}, s{sWS+1}, 0")
    ST.rt("start"); ST.cyc("cyc0")
    A(f"s_add_u32 s6, s{sWS}, {FL+FL_EPOCH}", f"s_addc_u32 s7, s{sWS+1}, 0", "s_load_dword s3, s[6:7], 0")
    srd(A,SRD_WS,sWS,WS_SIZE)
    srd(A,SRD_A,42,2048*512*2)
    A(f"s_cmp_eq_u32 s{sBR}, 0", "s_cselect_b32 s44, s44, s46", "s_cselect_b32 s45, s45, s47")
    srd(A,SRD_B,44,512*1536*2)
    srd(A,SRD_C,48,1024)
    phase1(A,ST,opt)
    phase2(A,ST,opt)
    phase3(A,ST,opt)
    if pr:
        A("s_waitcnt vmcnt(0)", "L_probe:", "s_memrealtime s[80:81]", "s_waitcnt lgkmcnt(0)", "s_sub_u32 s80, s80, s100", *(["s_lshr_b32 s81, s63, 2", "s_add_u32 s81, s81, 6000", "s_cmp_lt_u32 s80, s81"] if cy else ["s_cmp_lt_u32 s80, 6000"]), "s_cbranch_scc1 L_probe")
    if 'spin60' in opt:
        A("s_waitcnt vmcnt(0)", "L_spin:", "s_memrealtime s[80:81]", "s_waitcnt lgkmcnt(0)", "s_sub_u32 s80, s80, s90", "s_cmp_lt_u32 s80, 6000", "s_cbranch_scc1 L_spin")
    if ST.on: A("s_waitcnt vmcnt(0)")
    ST.rt("end"); ST.cyc("cyc1")
    ST.flush(120)
    A("L_done:", "s_endpgm")
    kd=f""".section .rodata,"a"
.p2align 6
.amdhsa_kernel {NAME}
  .amdhsa_next_free_vgpr 256
  .amdhsa_next_free_sgpr 102
  .amdhsa_accum_offset 256
  .amdhsa_group_segment_fixed_size 0
  .amdhsa_kernarg_size 80
  .amdhsa_user_sgpr_count 2
  .amdhsa_user_sgpr_kernarg_segment_ptr 1
  .amdhsa_system_sgpr_workgroup_id_x 1
.end_amdhsa_kernel
"""
    return A.text(), kd, ST.names

if __name__=='__main__':
    import sys, hazard
    out=sys.argv[1]; opt=tuple(sys.argv[2:])
    HDR=open('gated_mix__softmax_full_mha__sliding_block__prompt.s.ref').read().split('\n')
    hdr=[l for l in HDR if l.startswith(';') and 'launch' not in l.lower() and 'Override' not in l and 'grid=ceil' not in l]
    t,kd,names=gen(opt)
    s='\n'.join(hdr)+'\n'+"; @launch grid=(256,1,1) block=(512,1,1) lds=163840\n"+'.amdgcn_target "amdgcn-amd-amdhsa--gfx950"\n.text\n'+t+kd
    open(out,'w').write(s)
    print('hazards',len(hazard.check(t)),'bytes',len(s),'stamps',','.join(names))
    sys.path.insert(0,'cdna_kernels')
    import subprocess
    from cdna_launch import with_harness_metadata, address_register_problem
    open('h.s','w').write(with_harness_metadata(s,NAME,10,launch_lists=True))
    r=subprocess.run(['clang','-x','assembler','-target','amdgcn-amd-amdhsa','-mcpu=gfx950','h.s','-o','h.co'],capture_output=True,text=True)
    if r.returncode: print(r.stderr)
    else:
        print('check:',address_register_problem('h.co',NAME))
        d=subprocess.run(['llvm-objdump','-d','--mcpu=gfx950','h.co'],capture_output=True,text=True).stdout
        import re
        ad=[int(m,16) for m in re.findall(r'// ([0-9A-F]{12}):',d)]
        print('code bytes',ad[-1]-ad[0]-768)
```

```python
from asm import Asm, vr, sr, mfma32
import struct
def f2u(x): return struct.unpack('<I',struct.pack('<f',x))[0]
NAME="gated_mix__softmax_full_mha__sliding_block__prompt_kernel"
QF=0; KF=4<<20; VF=8<<20; GOFF=12<<20; OF=16<<20; FL=30<<20; WS_SIZE=31<<20
FL_EPOCH=0; FL_F0=1024; FL_F1=2048; FL_F2=8192; FL_F2B=16384; FL_F2A=32768
FSTR=16
F1STR=4
STAMP_OFF=32<<20
QSCALE=0.25*1.4426950408889634
NEG=f2u(-2.0**100); LLO=f2u(2.0**-64); LHI=f2u(2.0**64)
SPIN_MAX=1<<20
sNONCE=3; sWS=4
SRD_WS=8; SRD_A=12; SRD_B=16; SRD_C=20; SRD_PT=56
sW=24; sX=25; sI=26; sJ=27; sA=28; sBR=29; sRB=30; sH=31
sMASK=40
sXCC=37; sMODE=39
pWOA=84; pWOB=86; pOUT=88

class Stamps:
    def __init__(s, A, on): s.A=A; s.on=on; s.n=0; s.names=[]; s.skip=('p1_stored',); s.probe=None; s.cp=None
    def rt(s,name):
        if s.cp and name==s.cp[0]: s.A("s_memtime s[96:97]", "s_waitcnt lgkmcnt(0)", "s_mov_b32 s63, s96")
        if s.cp and name==s.cp[1]: s.A("s_memtime s[96:97]", "s_waitcnt lgkmcnt(0)", "s_sub_u32 s63, s96, s63")
        if s.probe==name:
            s.A("s_memrealtime s[100:101]", "s_waitcnt lgkmcnt(0)")
        if not s.on or name in s.skip: return
        s.A("s_memrealtime s[80:81]", "s_waitcnt lgkmcnt(0)", f"s_mov_b32 s{64+s.n}, s80"); s.names.append(name); s.n+=1
    def cyc(s,name):
        if not s.on: return
        s.A("s_memtime s[80:81]", "s_waitcnt lgkmcnt(0)", f"s_mov_b32 s{64+s.n}, s80"); s.names.append(name); s.n+=1
    def flush(s, vtmp):
        if not s.on: return
        A=s.A
        A(f"s_mov_b32 s92, s{sWS}", f"s_mov_b32 s93, s{sWS+1}", "s_mov_b32 s94, 0x10000000", "s_mov_b32 s95, 0x00020000")
        A(f"s_lshl_b32 s80, s2, 3", f"s_add_u32 s80, s80, s{sW}", "s_lshl_b32 s80, s80, 6", f"s_add_u32 s80, s80, {STAMP_OFF}")
        for i in range(s.n):
            A(f"v_mov_b32 v{vtmp}, s{64+i}", f"v_mov_b32 v{vtmp+1}, {4*i}", f"buffer_store_dword v{vtmp}, v{vtmp+1}, s[92:95], s80 offen")

def srd(A, s, base, size):
    A(f"s_mov_b32 s{s}, s{base}", f"s_mov_b32 s{s+1}, s{base+1}", f"s_mov_b32 s{s+2}, {size}", f"s_mov_b32 s{s+3}, 0x00020000")

def poll(A, tag, flag_off_sgpr, vaddr, vtmp, stride=FSTR):
    A(f"s_cmp_lg_u32 s{sW}, 0", f"s_cbranch_scc1 L_{tag}_skip")
    A(f"v_and_b32 v{vaddr}, 31, v0", f"v_mul_u32_u24 v{vaddr}, {stride}, v{vaddr}", f"s_mov_b32 s42, {SPIN_MAX}")
    A(f"L_{tag}_loop:")
    A(f"buffer_load_dword v{vtmp}, v{vaddr}, s[{SRD_WS}:{SRD_WS+3}], s{flag_off_sgpr} offen sc1")
    A("s_waitcnt vmcnt(0)")
    A(f"v_cmp_ne_u32 vcc, s{sNONCE}, v{vtmp}", "s_nop 1", "s_cmp_eq_u64 vcc, 0", f"s_cbranch_scc1 L_{tag}_skip")
    A("s_sub_u32 s42, s42, 1", "s_cmp_eq_u32 s42, 0", f"s_cbranch_scc1 L_{tag}_skip", "s_sleep 1", f"s_branch L_{tag}_loop")
    A(f"L_{tag}_skip:")

def setflag(A, tag, off_sgpr, vt, sc=" sc1"):
    A(f"s_cmp_lg_u32 s{sW}, 0", f"s_cbranch_scc1 L_{tag}_nf")
    A(f"v_mov_b32 v{vt}, s{sNONCE}", f"v_mov_b32 v{vt+1}, 0", "s_mov_b64 exec, 1",
      f"buffer_store_dword v{vt}, v{vt+1}, s[{SRD_WS}:{SRD_WS+3}], s{off_sgpr} offen{sc}", "s_mov_b64 exec, -1")
    A(f"L_{tag}_nf:")

def mfma16(d,a,b,c): return f"v_mfma_f32_16x16x32_bf16 {vr(d,4)}, {vr(a,4)}, {vr(b,4)}, {vr(c,4)}"
def phase1(A, ST, opt):
    lane=2; vX=3; vW=4; t0=5; t1=6; t2=7; g_t=8
    W_=f"s[{SRD_WS}:{SRD_WS+3}]"
    GX=232; GW=236
    PT=240; F0V=244; vF0=246; vPT=247
    PTF="sc1"
    if 'ptnt' in opt: PTF="sc1 nt"
    if 'ptplain' in opt: PTF=""
    PTC=int([o[3:] for o in opt if o.startswith('ptc')][0]) if any(o.startswith('ptc') for o in opt) else 5
    if 'nopt1' in opt: PTC=99
    STG=40960
    A(f"v_lshlrev_b32 v24, 4, v{lane}")
    A(f"s_cmp_ge_u32 s{sW}, 4", "s_cbranch_scc1 P1_loader")
    n_save=ST.n; names_save=list(ST.names)
    def gate_loads():
        A(f"s_lshl_b32 s62, s{sJ}, 8", f"s_and_b32 s42, s{sW}, 3", "s_lshl_b32 s42, s42, 6", "s_add_u32 s62, s62, s42", f"s_lshl_b32 s42, s{sH}, 1", "s_add_u32 s62, s62, s42",
          f"s_lshr_b32 s42, s{sW}, 2", "s_add_u32 s62, s62, s42", "s_lshl_b32 s42, s62, 10",
          f"buffer_load_dwordx4 {vr(GX,4)}, v24, s[{SRD_A}:{SRD_A+3}], s42 offen", f"buffer_load_dwordx4 {vr(GW,4)}, v24, s[{SRD_C}:{SRD_C+3}], 0 offen")
    gate_loads()
    if 'tlbw' in opt:
        sh=int([o[4:] for o in opt if o.startswith('tlbs')][0]) if any(o.startswith('tlbs') for o in opt) else 16
        A(f"v_lshlrev_b32 v241, {sh}, v{lane}", f"s_lshl_b32 s42, s{sX}, 7", f"buffer_load_dword v242, v241, s[{SRD_B}:{SRD_B+3}], s42 offen sc1")
    A(f"s_and_b32 s34, s{sW}, 1", f"s_lshr_b32 s35, s{sW}, 1")
    A(f"s_lshl_b32 s42, s{sX}, 2", "s_lshl_b32 s43, s35, 1", "s_add_u32 s42, s42, s43", f"s_lshl_b32 s43, s{sBR}, 5", "s_add_u32 s42, s42, s43",
      "s_lshl_b32 s42, s42, 16", f"s_lshl_b32 s43, s{sRB}, 1", "s_add_u32 s43, s43, s34", "s_lshl_b32 s43, s43, 11", "s_add_u32 s56, s42, s43")
    A(f"v_and_b32 v{vF0}, 31, v{lane}", f"v_lshlrev_b32 v{vF0}, 2, v{vF0}", f"v_lshrrev_b32 v{t0}, 5, v{lane}", f"v_lshl_add_u32 v{vF0}, v{t0}, 10, v{vF0}",
      f"s_lshl_b32 s58, s{sX}, 7", f"s_add_u32 s58, s58, {FL+FL_F0}", f"s_getreg_b32 s{sXCC}, hwreg(HW_REG_XCC_ID, 0, 4)")
    aX=[10,11]; aW=[18,19]; m=20
    A(f"v_lshrrev_b32 v{g_t}, 4, v{lane}", f"v_and_b32 v{m}, 15, v{lane}", f"v_lshrrev_b32 v{t0}, 1, v{m}",
      "s_lshl_b32 s42, s34, 6", f"v_add_u32 v{t1}, s42, v{m}", f"v_lshlrev_b32 v{t1}, 7, v{t1}")
    for s_ in range(2):
        A(f"v_or_b32 v{t2}, {4*s_}, v{g_t}", f"v_xor_b32 v{t2}, v{t2}, v{t0}", f"v_lshl_add_u32 v{aX[s_]}, v{t2}, 4, v{t1}")
    A(f"v_bfe_u32 v{t0}, v{lane}, 2, 2", f"v_lshl_add_u32 v{t1}, v{g_t}, 3, v{t0}", f"v_lshlrev_b32 v{t1}, 7, v{t1}",
      f"v_and_b32 v21, 1, v{lane}", f"v_lshl_add_u32 v{t1}, v21, 3, v{t1}", f"v_add_u32 v{t1}, 16384, v{t1}",
      f"v_bfe_u32 v{t2}, v{lane}, 3, 1", f"v_bfe_u32 v21, v{lane}, 4, 1", f"v_lshl_or_b32 v{t2}, v21, 1, v{t2}", f"v_lshlrev_b32 v{t2}, 1, v{t2}",
      f"v_bfe_u32 v21, v{lane}, 1, 1", "s_lshl_b32 s42, s35, 2", "v_or_b32 v21, s42, v21")
    for hd in range(2):
        A(f"v_or_b32 v22, {2*hd}, v21", f"v_xor_b32 v22, v{t2}, v22", f"v_lshl_add_u32 v{aW[hd]}, v22, 4, v{t1}")
    def l2pf():
        if 'l2pf' in opt:
            C0=int([o[2:] for o in opt if o.startswith('c0')][0]) if any(o.startswith('c0') for o in opt) else 3
            NCH=8-C0
            vq=240
            A(f"s_lshl_b32 s42, s{sRB}, 7", f"s_lshl_b32 s43, s{sBR}, 6", "s_add_u32 s42, s42, s43", f"s_lshl_b32 s43, s{sW}, 4", "s_add_u32 s42, s42, s43",
              f"v_add_u32 v{vq}, s42, v{m}", f"v_lshlrev_b32 v{vq}, 10, v{vq}", f"v_lshl_add_u32 v{vq}, v{g_t}, 7, v{vq}", f"s_movk_i32 s43, {128*C0}",
              f"buffer_load_dword v{vq+2}, v{vq}, s[{SRD_A}:{SRD_A+3}], s43 offen sc1" if 'pfx' in opt else "s_nop 0")
            if NCH>4 and 'pfx' in opt: A(f"buffer_load_dword v{vq+3}, v{vq}, s[{SRD_A}:{SRD_A+3}], s43 offen offset:512 sc1")
            A(f"v_mul_u32_u24 v{vq}, 43, v{lane}", f"v_lshrrev_b32 v{vq}, 7, v{vq}", f"v_mul_u32_u24 v{vq+1}, 3, v{vq}", f"v_sub_u32 v{vq+1}, v{lane}, v{vq+1}",
              f"s_mul_i32 s42, s{sRB}, {4*NCH}", f"s_mul_i32 s43, s{sW}, {NCH}", "s_add_u32 s42, s42, s43", f"s_add_u32 s42, s42, {64*C0}",
              f"v_add_u32 v{vq}, s42, v{vq}", f"v_mul_u32_u24 v{vq}, 3072, v{vq}", f"v_lshl_add_u32 v{vq}, v{vq+1}, 10, v{vq}",
              f"v_cmp_gt_u32 vcc, {3*NCH}, v{lane}", f"v_mov_b32 v{vq+1}, 0x7ff00000", f"s_lshl_b32 s43, s{sX}, 7", f"v_cndmask_b32 v{vq}, v{vq+1}, v{vq}, vcc",
              f"buffer_load_dword v{vq+2}, v{vq}, s[{SRD_B}:{SRD_B+3}], s43 offen sc1{' nt' if 'wnt' in opt else ''}")
    if 'pfearly' in opt: l2pf()
    def T(hd,a,rt): return 32+48*hd+16*a+4*rt
    XF=[128,144]; WF=[[160,164,168],[172,176,180]]
    for i in range(96): A(f"v_mov_b32 v{32+i}, 0")
    def wrd(hd,a,s_):
        if 'p1noread' in opt: return ["s_nop 0","s_nop 0"]
        return [f"ds_read_b64_tr_b16 {vr(WF[hd][a]+2*rr,2)}, v{aW[hd]} offset:{a*8192+(32*s_+4*rr)*128}" for rr in range(2)]
    def xrd(s_,rt):
        if 'p1noread' in opt: return ["s_nop 0"]
        return [f"ds_read_b128 {vr(XF[s_]+4*rt,4)}, v{aX[s_]} offset:{rt*2048}"]
    def setA(s_): return wrd(0,0,s_)+xrd(s_,0)+xrd(s_,1)+wrd(0,1,s_)+xrd(s_,2)+xrd(s_,3)+wrd(0,2,s_)
    def setB(s_): return wrd(1,0,s_)+wrd(1,1,s_)+wrd(1,2,s_)
    def mf(hd,s_):
        x=XF[s_]; w=WF[hd]; L=[]
        for rt in (0,1): L.append(mfma16(T(hd,0,rt), w[0], x+4*rt, T(hd,0,rt)))
        for rt in (0,1): L.append(mfma16(T(hd,1,rt), w[1], x+4*rt, T(hd,1,rt)))
        for rt in (2,3): L.append(mfma16(T(hd,0,rt), w[0], x+4*rt, T(hd,0,rt)))
        for rt in (2,3): L.append(mfma16(T(hd,1,rt), w[1], x+4*rt, T(hd,1,rt)))
        for rt in range(4): L.append(mfma16(T(hd,2,rt), x+4*rt, w[2], T(hd,2,rt)))
        return L
    needA=[2,3,5,5,6,7,7,7,9,9,9,9]; needB=[1,1,3,3,3,3,3,3,5,5,5,5]
    def half(mfs, need, nold, new, pre=None, at=None):
        prev=-1; issued=0
        for k in range(12):
            if need[k]>prev:
                A(f"s_waitcnt lgkmcnt({(nold-1-need[k])+issued})"); prev=need[k]
            if pre and k==pre[0]: pre[1]()
            A(mfs[k])
            if k>=at and issued<len(new):
                n=1 if (len(new)-issued)<=(12-k-1) else 2
                n=min(n,len(new)-issued)
                A(new[issued:issued+n]); issued+=n
        assert issued==len(new)
    A("s_mov_b32 s49, 0", "s_mov_b32 s36, 0", f"s_mov_b32 s53, {STG}")
    A("s_barrier")
    A("s_waitcnt lgkmcnt(0)", f"s_mul_i32 s{sNONCE}, s3, 0x9e3779b1", f"s_add_u32 s{sNONCE}, s{sNONCE}, 0x7f4a7c15")
    ST.rt("p1_data")
    A(setA(0))
    if 'pfearly' not in opt: l2pf()
    A(f"s_cmp_lg_u32 s{sW}, 0", "s_cbranch_scc1 L_f0_nf", f"s_add_u32 s42, s{sNONCE}, s{sXCC}", f"s_lshl_b32 s43, s{sI}, 2", "s_add_u32 s43, s43, s58",
      "v_mov_b32 v5, s42", "v_mov_b32 v6, 0", "s_mov_b64 exec, 1", f"buffer_store_dword v5, v6, {W_}, s43 offen sc1", "s_mov_b64 exec, -1", "L_f0_nf:")
    A(".p2align 3", "P1_loop:")
    half(mf(0,0), needA, 10, setB(0), at=2)
    half(mf(1,0), needB, 6, setA(1), at=1)
    half(mf(0,1), needA, 10, setB(1), at=2)
    def boundary():
        A("s_add_u32 s36, s36, 1", "s_cmp_eq_u32 s36, 4", f"s_cselect_b32 s52, {(-3*STG)&0xffffffff:#x}, s53", "s_cselect_b32 s36, 0, s36", "s_waitcnt lgkmcnt(0)")
        for r in aX+aW: A(f"v_add_u32 v{r}, s52, v{r}")
        A("s_cmp_eq_u32 s49, 4", "s_cbranch_scc1 P1_f0ld", "P1_f0back:", "s_barrier")
        if ST.probe and ST.probe.startswith('it'):
            A(f"s_cmp_eq_u32 s49, {ST.probe[2:]}", "s_cbranch_scc0 P1_noprobe", "s_memrealtime s[100:101]", "s_waitcnt lgkmcnt(0)", "P1_noprobe:")
        if 'p1it' in opt:
            A("s_memtime s[80:81]", "s_waitcnt lgkmcnt(0)")
            for k in range(7): A(f"s_mov_b32 s{64+8+k}, s{64+9+k}")
            A(f"s_mov_b32 s{64+15}, s80")
    half(mf(1,1), needB, 6, setA(0), pre=(3,boundary), at=3)
    A("s_add_u32 s49, s49, 1", "s_cmp_lt_u32 s49, 8", "s_cbranch_scc1 P1_loop")
    ST.rt("p1_loop")
    if 'p1it' in opt:
        ST.n=16; ST.flush(210); A("s_waitcnt vmcnt(0)", "s_endpgm")
    A("s_branch P1_after")
    A("P1_f0ld:", f"buffer_load_dword v{F0V}, v{vF0}, {W_}, s58 offen sc1", "s_branch P1_f0back")
    A("P1_after:")
    A("s_waitcnt vmcnt(0)", f"s_mov_b32 s42, {SPIN_MAX}")
    A("P1_chk:", f"v_subrev_u32 v{F0V+1}, s{sNONCE}, v{F0V}", f"v_cmp_gt_u32 vcc, 8, v{F0V+1}", "s_nop 1", "s_cmp_eq_u32 vcc_lo, -1", "s_cbranch_scc1 P1_chk_ok")
    A("s_sub_u32 s42, s42, 1", "s_cmp_eq_u32 s42, 0", "s_cbranch_scc1 P1_chk_ok", "s_sleep 1",
      f"buffer_load_dword v{F0V}, v{vF0}, {W_}, s58 offen sc1", "s_waitcnt vmcnt(0)", "s_branch P1_chk")
    A("P1_chk_ok:", f"v_cmp_eq_u32 vcc, s{sXCC}, v{F0V+1}", "s_nop 1", "s_cmp_eq_u32 vcc_lo, -1", f"s_cselect_b32 s{sMODE}, 1, 0")
    if 'forcesafe' in opt: A(f"s_mov_b32 s{sMODE}, 0")
    if 'fine3' in opt: ST.rt("mode")
    A(f"s_mov_b32 s44, {hex(f2u(QSCALE))}", "s_waitcnt lgkmcnt(0)")
    for hd in range(2):
        PK=128+24*hd
        TQ,TK,TV=T(hd,0,0),T(hd,1,0),T(hd,2,0)
        for t in range(2):
            for i in range(4): A(f"v_cvt_pk_bf16_f32 v{PK+4*t+i}, v{TK+8*t+2*i}, v{TK+8*t+2*i+1}")
        for t in range(2):
            for i in range(4): A(f"v_cvt_pk_bf16_f32 v{PK+8+4*t+i}, v{TV+8*t+2*i}, v{TV+8*t+2*i+1}")
        for i in range(16): A(f"v_mul_f32 v{TQ+i}, s44, v{TQ+i}")
        for t in range(2): A(f"v_permlane16_swap_b32 v{PK+4*t}, v{PK+4*t+2}", f"v_permlane16_swap_b32 v{PK+4*t+1}, v{PK+4*t+3}")
        for t in range(2):
            for i in range(4): A(f"v_cvt_pk_bf16_f32 v{PK+16+4*t+i}, v{TQ+8*t+2*i}, v{TQ+8*t+2*i+1}")
        for t in range(2): A(f"v_permlane32_swap_b32 v{PK+8+4*t}, v{PK+8+4*t+2}", f"v_permlane32_swap_b32 v{PK+8+4*t+1}, v{PK+8+4*t+3}")
        for t in range(2): A(f"v_permlane16_swap_b32 v{PK+16+4*t}, v{PK+16+4*t+2}", f"v_permlane16_swap_b32 v{PK+16+4*t+1}, v{PK+16+4*t+3}")
        A(f"s_add_u32 s46, s56, {hd*65536}", f"s_add_u32 s45, s46, {KF}", f"s_add_u32 s47, s46, {VF}")
        A(f"s_cmp_eq_u32 s{sMODE}, 0", f"s_cbranch_scc1 P1_st_safe{hd}")
        for sc,lab in (("",None),(" sc1",f"P1_st_safe{hd}")):
            if lab: A(f"s_branch P1_st_done{hd}", f"{lab}:")
            A(f"buffer_store_dwordx4 {vr(PK,4)}, v24, {W_}, s45 offen{sc}", f"buffer_store_dwordx4 {vr(PK+4,4)}, v24, {W_}, s45 offen offset:1024{sc}")
            A(f"buffer_store_dwordx4 {vr(PK+8,4)}, v24, {W_}, s47 offen{sc}", f"buffer_store_dwordx4 {vr(PK+12,4)}, v24, {W_}, s47 offen offset:1024{sc}")
            A(f"buffer_store_dwordx4 {vr(PK+16,4)}, v24, {W_}, s46 offen{sc}", f"buffer_store_dwordx4 {vr(PK+20,4)}, v24, {W_}, s46 offen offset:1024{sc}")
        A(f"P1_st_done{hd}:")
    A("s_branch P1_join")
    A("P1_loader:")
    n_end=ST.n; names_end=list(ST.names); ST.n=n_save; ST.names=list(names_save)
    A(f"s_and_b32 s34, s{sW}, 3")
    A(f"v_lshrrev_b32 v{t0}, 3, v{lane}", f"v_and_b32 v{t2}, 7, v{lane}", f"v_lshrrev_b32 v{t1}, 4, v{lane}", f"v_xor_b32 v{t1}, v{t1}, v{t2}",
      f"s_lshl_b32 s42, s{sRB}, 7", "s_lshl_b32 s43, s34, 5", "s_add_u32 s42, s42, s43", f"v_add_u32 v{vX}, s42, v{t0}", f"v_lshlrev_b32 v{vX}, 10, v{vX}",
      f"v_xor_b32 v9, 4, v{t1}", f"v_lshl_add_u32 v9, v9, 4, v{vX}", f"v_add_u32 v9, 8192, v9", f"v_lshl_add_u32 v{vX}, v{t1}, 4, v{vX}")
    A(f"v_add_u32 v10, 0x4000, v{vX}", "v_add_u32 v11, 0x4000, v9")
    A(f"v_bfe_u32 v{t1}, v{lane}, 4, 1", f"v_lshlrev_b32 v{t1}, 1, v{t1}", f"v_xor_b32 v{t1}, v{t1}, v{t2}",
      "s_lshl_b32 s43, s34, 4", f"v_add_u32 v{t0}, s43, v{t0}", f"v_mul_u32_u24 v{vW}, 3072, v{t0}", *([f"s_add_u32 s45, s{sX}, 2", "s_and_b32 s45, s45, 7", "s_lshl_b32 s45, s45, 7"] if 'wcol2' in opt else [f"s_lshl_b32 s45, s{sX}, 7"]), f"v_add_u32 v{vW}, s45, v{vW}",
      f"v_xor_b32 v12, 4, v{t1}", f"v_lshl_add_u32 v12, v12, 4, v{vW}", f"v_add_u32 v12, {8*3072}, v12", f"v_lshl_add_u32 v{vW}, v{t1}, 4, v{vW}")
    def dmas():
        L=[]
        xs=[vX,9,10,11]
        for ii in range(4):
            L.append([f"s_add_u32 m0, s46, {ii*1024}", "NOP", f"buffer_load_dwordx4 v{xs[ii]}, s[{SRD_A}:{SRD_A+3}], s47 offen{' nt' if 'xnt' in opt else ''} lds"])
        for seg in range(3):
            for ii in range(2):
                L.append([f"s_add_u32 m0, s57, {16384+seg*8192+ii*1024-seg*1024}", "NOP", f"buffer_load_dwordx4 v{[vW,12][ii]}, s[{SRD_B}:{SRD_B+3}], s48 offen offset:{seg*1024}{' nt' if 'wnt' in opt else ''} lds"])
        return L
    def issue():
        A("s_and_b32 s51, s50, 3", f"s_mul_i32 s51, s51, {STG}", "s_lshl_b32 s46, s34, 12", "s_add_u32 s46, s46, s51", "s_lshl_b32 s57, s34, 11", "s_add_u32 s57, s57, s51",
          *(["s_add_u32 s59, s50, s60", "s_and_b32 s59, s59, 7", "s_lshl_b32 s47, s59, 7", f"s_mul_i32 s48, s59, {64*3072}"] if True else ["s_lshl_b32 s47, s50, 7", f"s_mul_i32 s48, s50, {64*3072}"]))
        if 'p1nodma' not in opt:
            for g in dmas(): A([("s_nop 0" if x=="NOP" else x) for x in g])
        A("s_add_u32 s50, s50, 1")
    if 'krot1' in opt: A(f"s_and_b32 s60, s{sRB}, 7")
    elif 'krot2' in opt: A(f"s_lshl_b32 s60, s{sBR}, 2", f"s_add_u32 s60, s60, s{sRB}")
    elif 'krot3' in opt: A(f"s_lshr_b32 s60, s{sRB}, 1", f"s_lshl_b32 s59, s{sBR}, 2", "s_add_u32 s60, s60, s59")
    elif 'krot4' in opt: A(f"s_lshr_b32 s60, s{sRB}, 1", f"s_add_u32 s60, s60, s{sX}")
    elif 'krot0' in opt: A("s_mov_b32 s60, 0")
    elif 'krotrb' in opt or True: A(f"s_lshr_b32 s60, s{sRB}, 1")
    elif 'krotx' in opt: A(f"s_mov_b32 s60, s{sX}")
    elif 'krotbr' in opt: A(f"s_lshl_b32 s60, s{sBR}, 2")
    A("s_mov_b32 s50, 0", "s_mov_b32 s49, 0")
    A("P1_lpro:")
    issue()
    A("s_cmp_lt_u32 s50, 2", "s_cbranch_scc1 P1_lpro")
    gate_loads()
    A("s_waitcnt vmcnt(12)", "s_barrier")
    A("s_waitcnt lgkmcnt(0)", f"s_mul_i32 s{sNONCE}, s3, 0x9e3779b1", f"s_add_u32 s{sNONCE}, s{sNONCE}, 0x7f4a7c15")
    ST.rt("p1_data")
    A(f"v_lshrrev_b32 v{t0}, 4, v{lane}", f"v_lshlrev_b32 v{vPT}, 22, v{t0}", f"v_bfe_u32 v{t0}, v{lane}, 3, 1", f"v_lshl_add_u32 v{vPT}, v{t0}, 10, v{vPT}",
      f"v_and_b32 v{t0}, 7, v{lane}", f"v_lshl_add_u32 v{vPT}, v{t0}, 7, v{vPT}", f"v_cmp_gt_u32 vcc, 48, v{lane}", f"v_mov_b32 v{t0}, 0x7ff00000", "s_nop 0",
      f"v_cndmask_b32 v{vPT}, v{t0}, v{vPT}, vcc")
    A("s_and_b32 s42, s34, 1", "s_lshr_b32 s43, s34, 1",
      f"s_lshl_b32 s44, s{sX}, 2", "s_lshl_b32 s43, s43, 1", "s_add_u32 s44, s44, s43", f"s_lshl_b32 s43, s{sBR}, 5", "s_add_u32 s44, s44, s43", "s_lshl_b32 s44, s44, 16",
      f"s_lshl_b32 s43, s{sRB}, 1", "s_add_u32 s43, s43, s42", "s_lshl_b32 s43, s43, 11", "s_add_u32 s56, s44, s43")
    issue_lbl="P1_lloop"
    A("P1_lpro2:")
    issue()
    A("s_cmp_lt_u32 s50, 4", "s_cbranch_scc1 P1_lpro2")
    A("P1_lloop:")
    A("s_cmp_lt_u32 s49, 5", "s_cbranch_scc0 P1_ltail", "s_waitcnt vmcnt(20)", "s_branch P1_lbar")
    A("P1_ltail:", "s_cmp_eq_u32 s49, 5", "s_cbranch_scc0 P1_ltail2", "s_waitcnt vmcnt(10)", "s_branch P1_lbar")
    A("P1_ltail2:", "s_cmp_eq_u32 s49, 6", "s_cbranch_scc0 P1_lbar", f"s_waitcnt vmcnt({2 if PTC==5 else 0})")
    A("P1_lbar:", "s_barrier")
    if ST.probe and ST.probe.startswith('it'):
        A(f"s_cmp_eq_u32 s49, {ST.probe[2:]}", "s_cbranch_scc0 P1_lnoprobe", "s_memrealtime s[100:101]", "s_waitcnt lgkmcnt(0)", "P1_lnoprobe:")
    A("s_cmp_lt_u32 s50, 8", "s_cbranch_scc0 P1_lnoiss")
    issue()
    A("P1_lnoiss:")
    A(f"s_cmp_eq_u32 s49, {PTC}", "s_cbranch_scc0 P1_lnopt", "s_add_u32 s42, s56, 65536",
      f"buffer_load_dword v{PT}, v{vPT}, {W_}, s56 offen {PTF}", f"buffer_load_dword v{PT+1}, v{vPT}, {W_}, s42 offen {PTF}", "P1_lnopt:")
    A("s_add_u32 s49, s49, 1", "s_cmp_lt_u32 s49, 8", "s_cbranch_scc1 P1_lloop")
    ST.rt("p1_loop")
    if 'p1it' in opt:
        A("s_waitcnt vmcnt(0)", "s_endpgm")
    if 'fine3' in opt: ST.rt("mode")
    A(f"s_mov_b32 s{sMODE}, 0")
    A("P1_join:")
    assert ST.n==n_end or 'p1it' in opt
    if 'fine3' in opt: ST.rt("st_iss")

def gate(A):
    W_=f"s[{SRD_WS}:{SRD_WS+3}]"
    GX=232; GW=236; GA=250
    A(f"v_mov_b32 v{GA}, 0")
    for i in range(4): A(f"v_dot2_f32_bf16 v{GA}, v{GX+i}, v{GW+i}, v{GA}")
    A("s_nop 2")
    for ror in (8,4,2,1):
        A(f"v_add_f32_dpp v{GA}, v{GA}, v{GA} row_ror:{ror} row_mask:0xf bank_mask:0xf", "s_nop 1")
    A(f"v_mov_b32 v{GA+1}, v{GA}", "s_nop 1", f"v_permlane16_swap_b32 v{GA+1}, v{GA}", "s_nop 1", f"v_add_f32 v{GA}, v{GA}, v{GA+1}",
      f"v_mov_b32 v{GA+1}, v{GA}", "s_nop 1", f"v_permlane32_swap_b32 v{GA+1}, v{GA}", "s_nop 1", f"v_add_f32 v{GA}, v{GA}, v{GA+1}")
    A(f"v_mul_f32 v{GA}, {hex(f2u(-1.4426950408889634))}, v{GA}", f"v_exp_f32 v{GA}, v{GA}", "s_nop 0", f"v_add_f32 v{GA}, 1.0, v{GA}", f"v_rcp_f32 v{GA}, v{GA}",
      "s_lshl_b32 s62, s62, 2", f"s_add_u32 s62, s62, {GOFF}", f"v_mov_b32 v{GA+1}, 0")
def gate_store(A):
    A("s_mov_b64 exec, 1", f"buffer_store_dword v250, v251, s[{SRD_WS}:{SRD_WS+3}], s62 offen sc1", "s_mov_b64 exec, -1")

def publish1(A, ST, opt):
    if 'fine3' in opt:
        A("s_waitcnt vmcnt(0)"); ST.rt("vm0")
    A("s_waitcnt vmcnt(0)", "s_barrier")
    if 'fine3' in opt: ST.rt("bar1")
    ST.rt("p1_stored")
    A(f"s_lshl_b32 s42, s{sX}, 7", f"s_lshl_b32 s43, s{sI}, 2", "s_add_u32 s43, s43, s42", f"s_add_u32 s43, s43, {FL+FL_F1}", f"s_add_u32 s38, s42, {FL+FL_F1}")
    A(f"s_cmp_eq_u32 s{sMODE}, 0", "s_cbranch_scc1 L_f1_safe")
    setflag(A,"f1f",43,5,"")
    A("s_branch L_f1_done", "L_f1_safe:")
    setflag(A,"f1s",43,5," sc1")
    A("L_f1_done:")
def sync1(A, ST, opt):
    if 'fine3' in opt: ST.rt("prolog")
    poll(A,"p1",38,2,3,stride=F1STR)
    A("s_barrier")
    ST.rt("p1_flags")

LANE=1
QA0=4; QA1=8; QB=12
OA0=16; OA1=32
S0=48; S1=64
P=80
KB_=88; VB_=210
MF=140; MD=156; CB=96
vKa=172; vVa=173
vL16=174; vT=175; vT2=176; vT3=177; vNEGM=178; vM=179; vKs=180; vVs=181; vX0=182; vPK=184
VL=188
LDS_KA=0; LDS_VA=65536; LDS_KB=131072; LDS_VB=147456
def exps(S): return [f"v_exp_f32 v{S+i}, v{S+i}" for i in range(16)]
def cvts(S): return [f"v_cvt_pk_bf16_f32 v{P+i}, v{S+2*i}, v{S+2*i+1}" for i in range(8)]
MK=[f"s_mov_b64 exec, s[{sMASK}:{sMASK+1}]"]; UM=["s_mov_b64 exec, -1"]
def unit(A, Sc, QK, PV1, ld, wK, wV, PV0):
    e=exps(Sc); c=cvts(Sc)
    A(wK, QK)
    A(e[0:4], c[0], e[4:6], c[1])
    A(PV1, ld)
    A(e[6:8], c[2], e[8:10], c[3], e[10:12])
    A(wV, PV0)
    A(e[12:13], c[4], e[13:15], c[5], e[15:16], c[6], c[7])
def slow_pass(A, tag, Q, O, pass1, far, diag, n):
    A(f"v_mov_b32 v{vX0}, v{vKs}", f"v_mov_b32 v{vX0+1}, v{vVs}", "s_mov_b32 s60, 0")
    if pass1: A(f"v_mov_b32 v{vM}, {hex(NEG)}", f"v_mov_b32 v{vNEGM}, 0")
    else:
        for i in range(16): A(f"v_mov_b32 v{O+i}, 0")
    A(f"L_{tag}_loop:")
    A(f"ds_read_b128 {vr(KB_,4)}, v{vX0}")
    if not pass1: A(MK, f"ds_read_b128 {vr(VB_,4)}, v{vX0+1}", f"ds_read_b128 {vr(VB_+4,4)}, v{vX0+1} offset:512", UM)
    A("s_cmp_eq_u32 s60, 0", f"s_cselect_b32 s61, s{far}, 0", "s_cmp_lg_u32 s61, 0", f"s_cbranch_scc1 L_{tag}_far")
    A(f"s_add_u32 s61, s60, 1", f"s_cmp_eq_u32 s61, s{n}", f"s_cselect_b32 s61, s{diag}, 0", "s_cmp_lg_u32 s61, 0", f"s_cbranch_scc1 L_{tag}_diag")
    for i in range(16): A(f"v_mov_b32 v{CB+i}, v{vNEGM}")
    A(f"s_branch L_{tag}_go")
    A(f"L_{tag}_far:")
    for i in range(16): A(f"v_add_f32 v{CB+i}, v{MF+i}, v{vNEGM}")
    A(f"s_branch L_{tag}_go")
    A(f"L_{tag}_diag:")
    for i in range(16): A(f"v_add_f32 v{CB+i}, v{MD+i}, v{vNEGM}")
    A(f"L_{tag}_go:")
    A("s_waitcnt lgkmcnt(0)", "s_nop 0")
    A(mfma32(S0, KB_, Q, CB))
    A("s_nop 7","s_nop 3")
    if pass1:
        for i in range(16): A(f"v_max_f32 v{vM}, v{vM}, v{S0+i}")
    else:
        A(exps(S0), "s_nop 0", cvts(S0), "s_nop 1")
        A(mfma32(O, VB_, P, O), mfma32(O, VB_+4, P+4, O))
    A(f"v_add_u32 v{vX0}, 1024, v{vX0}", f"v_add_u32 v{vX0+1}, 1024, v{vX0+1}")
    A("s_add_u32 s60, s60, 1", f"s_cmp_lt_u32 s60, s{n}", f"s_cbranch_scc1 L_{tag}_loop")
    if pass1:
        A(f"v_mov_b32 v{vT}, v{vM}", "s_nop 1", f"v_permlane32_swap_b32 v{vT}, v{vM}", "s_nop 1",
          f"v_max_f32 v{vM}, v{vM}, v{vT}", f"v_sub_f32 v{vNEGM}, 0, v{vM}")
    else: A("s_nop 7","s_nop 3")
def bcast_l(A,O):
    A(f"v_mov_b32 v{vT}, v{O+8}", "s_nop 1", f"v_permlane32_swap_b32 v{vT}, v{O+8}", "s_nop 1", f"v_add_f32 v{O+8}, v{O+8}, v{vT}")
def check_range(A, O, okl):
    bcast_l(A,O)
    A(f"v_mov_b32 v{vT}, v{O+8}")
    for i in range(8): A(f"v_fma_f32 v{vT}, v{O+i}, 0, v{vT}")
    A(f"s_mov_b32 s44, {hex(LLO)}", f"s_mov_b32 s45, {hex(LHI)}")
    A(f"v_cmp_le_f32 s[46:47], s44, v{vT}", f"v_cmp_ge_f32 s[48:49], s45, v{vT}", "s_nop 1",
      "s_and_b64 s[46:47], s[46:47], s[48:49]", "s_cmp_eq_u64 s[46:47], -1", f"s_cbranch_scc1 {okl}")
def finalize(A, O, soff):
    A(f"v_rcp_f32 v{vT}, v{O+8}", "s_nop 0")
    for i in range(8): A(f"v_mul_f32 v{O+i}, v{O+i}, v{vT}")
    for i in range(4): A(f"v_cvt_pk_bf16_f32 v{vPK+i}, v{O+2*i}, v{O+2*i+1}")
    A(f"buffer_store_dwordx4 {vr(vPK,4)}, v{vL16}, s[{SRD_WS}:{SRD_WS+3}], s{soff} offen sc1")

def early2(A):
    A(f"v_and_b32 v{LANE}, 63, v0")
    A(f"v_lshlrev_b32 v{vL16}, 4, v{LANE}", f"v_and_b32 v{vT}, 31, v{LANE}")
    A(f"s_mov_b32 s{sMASK}, 0x0000ffff", f"s_mov_b32 s{sMASK+1}, 0x0000ffff")
    A(f"v_cmp_eq_u32 vcc, 16, v{vT}", f"v_mov_b32 v{vX0}, 0x3f803f80", "s_nop 0", f"v_cndmask_b32 v{vX0+1}, 0, v{vX0}, vcc")
    for i in range(16): A(f"v_mov_b32 v{VB_+i}, v{vX0+1}")
    hh=vT3; MS=[82,90,96,98]
    A(f"v_lshrrev_b32 v{hh}, 5, v{LANE}", f"v_lshlrev_b32 v{vT2}, 2, v{hh}", f"v_sub_u32 v{vT2}, v{vT}, v{vT2}")
    A(f"v_mov_b32 v{vX0}, {hex(NEG)}")
    for g in range(4):
        for k in range(4): A(f"v_cmp_gt_i32 s[{MS[k]}:{MS[k]+1}], {8*g+k}, v{vT2}")
        A("s_nop 0")
        for k in range(4):
            i=4*g+k
            A(f"v_cndmask_b32 v{MF+i}, v{vX0}, 0, s[{MS[k]}:{MS[k]+1}]", f"v_cndmask_b32 v{MD+i}, 0, v{vX0}, s[{MS[k]}:{MS[k]+1}]")
    A(f"v_and_b32 v{vT}, 15, v{LANE}", f"v_lshlrev_b32 v{vT}, 4, v{vT}", f"v_lshl_add_u32 v{VL}, v{hh}, 8, v{vT}")

def phase2(A, ST, opt):
    W_=f"s[{SRD_WS}:{SRD_WS+3}]"
    SC="" if 'plainld' in opt else " sc1"
    early2(A)
    A(f"s_and_b32 s15, s{sW}, 3", f"s_lshr_b32 s16, s{sW}, 2")
    A("s_lshl_b32 s17, s15, 1", "s_add_u32 s17, s17, s16",
      f"s_lshl_b32 s18, s{sJ}, 3", "s_add_u32 s19, s18, s17",
      f"s_lshl_b32 s20, s{sH}, 16", f"s_add_u32 s21, s20, {32*65536}")
    A("s_lshl_b32 s43, s17, 10", f"s_add_u32 s44, s43, {LDS_KB}", f"v_add_u32 v{vKa}, s44, v{vL16}",
      f"s_add_u32 s44, s43, {LDS_VB}", f"v_add_u32 v{vVa}, s44, v{VL}")
    A("s_lshl_b32 s32, s19, 16", f"s_lshl_b32 s33, s{sH}, 10", "s_add_u32 s32, s32, s33", f"s_add_u32 s32, s32, {OF}", "s_add_u32 s33, s32, 32768")
    A("s_lshl_b32 s22, s19, 10", "s_add_u32 s22, s22, s21", f"s_add_u32 s22, s22, {QF}")
    A("s_lshl_b32 s23, s19, 10", "s_add_u32 s23, s23, s20", f"s_add_u32 s23, s23, {QF}", "s_xor_b32 s14, s19, 1", "s_lshl_b32 s14, s14, 10", "s_add_u32 s14, s14, s20", f"s_add_u32 s14, s14, {QF}")
    for ii in range(2):
        A(f"s_add_u32 s43, s{sW}, {8*ii}", "s_add_u32 s44, s18, s43", "s_sub_u32 s44, s44, 8", "s_max_i32 s44, s44, 0",
          "s_lshl_b32 s44, s44, 10", "s_add_u32 s44, s44, s21", f"s_add_u32 s{54+ii}, s44, {KF}")
    A(f"s_lshl_b32 s56, s{sW}, 10", "s_add_u32 s57, s56, s20", f"s_add_u32 s57, s57, {KF}")
    publish1(A,ST,opt)
    OBz=OA0
    for i in range(16): A(f"v_mov_b32 v{OBz+i}, 0")
    for i in range(4): A(f"v_mov_b32 v{P+4+i}, 0")
    gate(A)
    sync1(A,ST,opt)
    A(f"buffer_load_dwordx4 {vr(QB,4)}, v{vL16}, {W_}, s22 offen{SC}")
    if 'fine2' in opt:
        A("s_waitcnt vmcnt(0)"); ST.rt("qb_landed")
    for ii in range(2):
        A(f"s_add_u32 m0, s56, {LDS_KB+8192*ii}", f"s_add_u32 s45, s{54+ii}, {VF-KF}", f"buffer_load_dwordx4 v{vL16}, {W_}, s{54+ii} offen{SC} lds")
        A(f"s_add_u32 m0, s56, {LDS_VB+8192*ii}", "s_nop 0", f"buffer_load_dwordx4 v{vL16}, {W_}, s45 offen{SC} lds")
    A(f"buffer_load_dwordx4 {vr(QA0,4)}, v{vL16}, {W_}, s23 offen{SC}", f"buffer_load_dwordx4 {vr(QA1,4)}, v{vL16}, {W_}, s14 offen{SC}")
    def adma(m):
        return [f"s_add_u32 m0, s56, {LDS_KA+m*8192}", f"s_add_u32 s45, s57, {m*8192}", f"buffer_load_dwordx4 v{vL16}, {W_}, s45 offen{SC} lds",
                f"s_add_u32 m0, s56, {LDS_VA+m*8192}", f"s_add_u32 s45, s57, {VF-KF+m*8192}", f"buffer_load_dwordx4 v{vL16}, {W_}, s45 offen{SC} lds"]
    global ADMA; ADMA=adma
    A("s_waitcnt vmcnt(2)")
    OB=OA0
    if 'fine3' in opt: ST.rt("own_b")
    A("s_barrier")
    ST.rt("b_data")
    if 'fine3' in opt:
        ST.flush(2); A("s_waitcnt vmcnt(0)", "s_endpgm"); ST.on=False
    def ldK(t,base): return [f"ds_read_b128 {vr(KB_+4*(t%2),4)}, v{base} offset:{t*1024}"]
    def ldV(t,base): return MK+[f"ds_read_b128 {vr(VB_+8*(t%2),4)}, v{base} offset:{t*1024}", f"ds_read_b128 {vr(VB_+8*(t%2)+4,4)}, v{base} offset:{t*1024+512}"]+UM
    NB=9
    A("s_mov_b32 s51, 1", f"s_cmp_eq_u32 s{sJ}, 0", "s_cselect_b32 s50, 0, 1", "s_sub_u32 s53, 8, s17", "s_cselect_b32 s53, s53, 0")
    A.L.pop()
    A(f"s_cmp_eq_u32 s{sJ}, 0", "s_cselect_b32 s53, s53, 0")
    A("s_sub_u32 s52, 9, s53")
    A("s_lshl_b32 s43, s53, 10", f"v_add_u32 v{vKs}, s43, v{vKa}", f"v_add_u32 v{vVs}, s43, v{vVa}")
    A("s_cmp_eq_u32 s53, 0", "s_cbranch_scc1 B_pro0", "s_mov_b32 s58, s56", "s_mov_b32 s59, s57", "s_mov_b32 s60, s53", "B_skipdma:")
    A(f"s_add_u32 m0, s58, {LDS_KA}", f"s_add_u32 s45, s59, {VF-KF}", f"buffer_load_dwordx4 v{vL16}, {W_}, s59 offen{SC} lds",
      f"s_add_u32 m0, s58, {LDS_VA}", "s_add_u32 s58, s58, 8192", f"buffer_load_dwordx4 v{vL16}, {W_}, s45 offen{SC} lds",
      "s_add_u32 s59, s59, 8192", "s_sub_u32 s60, s60, 1", "s_cmp_lg_u32 s60, 0", "s_cbranch_scc1 B_skipdma")
    for s0 in range(1,NB):
        A(f"s_cmp_eq_u32 s53, {s0}", f"s_cbranch_scc1 B_pro{s0}")
    for s0 in range(NB-1,-1,-1):
        A(f"B_pro{s0}:")
        Sc=S0 if s0%2==0 else S1
        C = MF if s0==0 else (MD if s0==NB-1 else "0")
        A(ldK(s0,vKa), "s_waitcnt lgkmcnt(0)", mfma32(Sc, KB_+4*(s0%2), QB, C))
        if s0==0:
            A(ldV(0,vVa), ldK(1,vKa))
        else:
            if s0+1<NB: A(ldK(s0+1,vKa))
            A(ldV(s0,vVa))
        A("s_nop 7","s_nop 3")
        if s0!=0: A(f"s_branch B_step{s0}")
    for t in range(NB):
        A(f"B_step{t}:")
        Sc=S0 if t%2==0 else S1; Sn=S1 if t%2==0 else S0
        if t+1<NB:
            QK=[mfma32(Sn, KB_+4*((t+1)%2), QB, MD if t+1==NB-1 else "0")]
            wK=["s_waitcnt lgkmcnt(0)"] if t==0 else ["s_waitcnt lgkmcnt(2)"]
        else: QK=[]; wK=[]
        PV1=[mfma32(OB, VB_+8*((t-1)%2)+4, P+4, OB)] if t>0 else []
        ld=[]
        if t+2<NB: ld+=ldK(t+2,vKa)
        if t+1<NB: ld+=ldV(t+1,vVa)
        nld=(1 if t+2<NB else 0)+(2 if t+1<NB else 0)
        wV=[f"s_waitcnt lgkmcnt({nld})"]
        PV0=[mfma32(OB, VB_+8*(t%2), P, OB)]
        if t<8: ld=ld+ADMA(t)
        unit(A,Sc,QK,PV1,ld,wK,wV,PV0)
    A("s_nop 1", mfma32(OB, VB_+8*((NB-1)%2)+4, P+4, OB))
    A("s_nop 7","s_nop 3")
    check_range(A,OB,"B_ok")
    slow_pass(A,"bf1",QB,OB,True,50,51,52)
    slow_pass(A,"bf2",QB,OB,False,50,51,52)
    bcast_l(A,OB)
    A("B_ok:")
    finalize(A,OB,33)
    ST.rt("b_done")
    A("s_waitcnt vmcnt(1)", "s_barrier")
    ST.rt("a_start")
    gate_store(A)
    if 'dup' in opt: A("s_mov_b32 s54, 2", "A_dup:")
    A("s_lshl_b32 s43, s16, 15", f"v_add_u32 v{vKa}, s43, v{vL16}", f"s_add_u32 s44, s43, {LDS_VA}", f"v_add_u32 v{vVa}, s44, v{VL}")
    for i in range(32): A(f"v_mov_b32 v{OA0+i}, 0")
    for i in range(4): A(f"v_mov_b32 v{P+4+i}, 0")
    Qr=[QA0,QA1]; Or=[OA0,OA1]
    A(ldK(0,vKa), ldV(0,vVa), "s_waitcnt lgkmcnt(2)", mfma32(S0, KB_, QA0, "0"))
    vFv=112; vFz=113; vFa=114; vFb=115
    A(f"s_lshl_b32 s34, s{sJ}, 10", f"s_lshl_b32 s35, s{sH}, 5", "s_add_u32 s34, s34, s35", f"s_lshl_b32 s35, s{sW}, 2", "s_add_u32 s34, s34, s35",
      f"s_add_u32 s35, s34, {FL+FL_F2A}", f"s_add_u32 s34, s34, {FL+FL_F2B}")
    A(f"v_mov_b32 v{vFv}, s{sNONCE}", f"v_mov_b32 v{vFz}, 0")
    A(f"v_lshrrev_b32 v{vFa}, 1, v{LANE}", f"v_lshlrev_b32 v{vFa}, 5, v{vFa}", f"v_and_b32 v{vT}, 1, v{LANE}", f"v_lshl_add_u32 v{vFa}, v{vT}, 4, v{vFa}",
      f"s_and_b32 s36, s{sI}, 3", "s_lshl_b32 s36, s36, 2", f"v_add_u32 v{vFa}, s36, v{vFa}", f"s_lshl_b32 s36, s{sX}, 10", f"s_add_u32 s36, s36, {FL+FL_F2B}")
    A("s_mov_b32 s53, 4", "s_setprio 3", "s_nop 7", "s_nop 1")
    A(".p2align 3", "A_loop:")
    A("s_cmp_eq_u32 s53, 3", "s_cbranch_scc1 A_it1", "s_cmp_eq_u32 s53, 2", "s_cbranch_scc1 A_it2", "s_cmp_eq_u32 s53, 1", "s_cbranch_scc1 A_it3", "A_body:")
    NK=8
    units=[(t,qi) for t in range(NK) for qi in range(2)]
    for u,(t,qi) in enumerate(units):
        Sc=S0 if u%2==0 else S1; Sn=S1 if u%2==0 else S0
        tn,qn=(t,1) if qi==0 else (t+1,0)
        tp,qp=(t-1,1) if qi==0 else (t,0)
        QK=[mfma32(Sn, KB_+4*(tn%2), Qr[qn], "0")]
        PV1=[mfma32(Or[qp], VB_+8*(tp%2)+4, P+4, Or[qp])]
        PV0=[mfma32(Or[qi], VB_+8*(t%2), P, Or[qi])]
        ld=[];wK=[];wV=[]
        if qi==0: ld=ldK(t+1,vKa)+ldV(t+1,vVa); wV=["s_waitcnt lgkmcnt(3)"]
        else: wK=["s_waitcnt lgkmcnt(2)"]
        unit(A,Sc,QK,PV1,ld,wK,wV,PV0)
    A(f"v_add_u32 v{vKa}, {NK*1024}, v{vKa}", f"v_add_u32 v{vVa}, {NK*1024}, v{vVa}")
    A("s_sub_u32 s53, s53, 1", "s_cmp_lg_u32 s53, 0", "s_cbranch_scc1 A_loop")
    A("s_branch A_after")
    A("A_it1:", "s_setprio 2", "s_waitcnt vmcnt(0)", "s_mov_b64 exec, 1", f"buffer_store_dword v{vFv}, v{vFz}, {W_}, s34 offen sc1", "s_mov_b64 exec, -1")
    if 'wbl2' in opt:
        A(f"s_cmp_lg_u32 s{sI}, 0", "s_cbranch_scc1 A_body", f"s_cmp_lg_u32 s{sW}, 0", "s_cbranch_scc1 A_body", "buffer_wbl2 sc1")
    A("s_branch A_body")
    A("A_it2:", "s_setprio 1")
    if 'nopt3' not in opt:
        vP=116
        A(f"s_and_b32 s44, s{sI}, 3", f"s_lshr_b32 s45, s{sI}, 2", "s_and_b32 s46, s44, 1", "s_lshl_b32 s46, s46, 8", f"s_lshl_b32 s47, s{sW}, 5", "s_add_u32 s46, s46, s47",
          f"v_and_b32 v{vP}, 31, v{LANE}", f"v_add_u32 v{vP}, s46, v{vP}", f"v_lshlrev_b32 v{vP}, 10, v{vP}", "s_lshl_b32 s45, s45, 7",
          "s_cmp_lt_u32 s44, 2", f"s_cselect_b32 s48, s{pWOA}, s{pWOB}", f"s_cselect_b32 s49, s{pWOA+1}, s{pWOB+1}")
        A(f"s_mov_b32 s{SRD_PT}, s48", f"s_mov_b32 s{SRD_PT+1}, s49", f"s_mov_b32 s{SRD_PT+2}, {512*512*2}", f"s_mov_b32 s{SRD_PT+3}, 0x00020000",
          f"buffer_load_dword v{vP+1}, v{vP}, s[{SRD_PT}:{SRD_PT+3}], s45 offen")
        if 'ptout' in opt:
            A(f"s_lshl_b32 s46, s{sX}, 8", "s_lshl_b32 s47, s44, 6", "s_add_u32 s46, s46, s47", f"s_lshl_b32 s47, s{sW}, 3", "s_add_u32 s46, s46, s47",
              f"v_and_b32 v{vP}, 7, v{LANE}", f"v_add_u32 v{vP}, s46, v{vP}", f"v_lshlrev_b32 v{vP}, 10, v{vP}",
              f"s_mov_b32 s{SRD_PT}, s{pOUT}", f"s_mov_b32 s{SRD_PT+1}, s{pOUT+1}", f"s_mov_b32 s{SRD_PT+2}, {2048*512*2}", f"s_mov_b32 s{SRD_PT+3}, 0x00020000",
              f"buffer_load_dword v{vP+2}, v{vP}, s[{SRD_PT}:{SRD_PT+3}], s45 offen")
    A("s_branch A_body")
    A("A_it3:", "s_setprio 0", f"buffer_load_dword v{vFb}, v{vFa}, {W_}, s36 offen sc1", "s_branch A_body")
    A("A_after:")
    A(mfma32(OA1, VB_+8*((NK-1)%2)+4, P+4, OA1))
    A("s_waitcnt lgkmcnt(0)", "s_nop 7", "s_nop 3")
    if 'dup' in opt: A("s_sub_u32 s54, s54, 1", "s_cmp_lg_u32 s54, 0", "s_cbranch_scc1 A_dup")
    ST.rt("a_loop")
    A(f"s_mul_i32 s43, s{sW}, 2560", f"s_add_u32 s43, s43, {LDS_KB}", f"v_add_u32 v{vT}, s43, v{vL16}",
      f"v_lshlrev_b32 v{vT2}, 2, v{LANE}", f"v_add_u32 v{vT2}, s43, v{vT2}")
    A(f"ds_write_b128 v{vT}, {vr(OA1,4)}", f"ds_write_b128 v{vT}, {vr(OA1+4,4)} offset:1024", f"ds_write_b32 v{vT2}, v{OA1+8} offset:2048")
    A(f"s_xor_b32 s44, s{sW}, 4", "s_mul_i32 s43, s44, 2560", f"s_add_u32 s43, s43, {LDS_KB}", f"v_add_u32 v{vT}, s43, v{vL16}",
      f"v_lshlrev_b32 v{vT2}, 2, v{LANE}", f"v_add_u32 v{vT2}, s43, v{vT2}")
    A("s_waitcnt lgkmcnt(0)", "s_barrier")
    A(f"ds_read_b128 {vr(S0,4)}, v{vT}", f"ds_read_b128 {vr(S0+4,4)}, v{vT} offset:1024", f"ds_read_b32 v{S0+8}, v{vT2} offset:2048")
    A("s_waitcnt lgkmcnt(0)")
    for i in range(9): A(f"v_add_f32 v{OA0+i}, v{OA0+i}, v{S0+i}")
    check_range(A,OA0,"A_ok")
    A("s_mov_b32 s50, 0", "s_mov_b32 s51, 0", "s_mov_b32 s52, 64")
    A(f"v_add_u32 v{vKs}, {LDS_KA}, v{vL16}", f"v_add_u32 v{vVs}, {LDS_VA}, v{VL}")
    slow_pass(A,"af1",QA0,OA0,True,50,51,52)
    slow_pass(A,"af2",QA0,OA0,False,50,51,52)
    bcast_l(A,OA0)
    A("A_ok:")
    finalize(A,OA0,32)

def phase3(A, ST, opt):
    W_=f"s[{SRD_WS}:{SRD_WS+3}]"
    lane=LANE
    vFv=112; vFz=113; vFa=114; vFb=115
    srd(A,SRD_A,pWOA,512*512*2); srd(A,SRD_B,pWOB,512*512*2); srd(A,SRD_C,pOUT,2048*512*2)
    SA=f"s[{SRD_A}:{SRD_A+3}]"; SB=f"s[{SRD_B}:{SRD_B+3}]"
    A(f"s_and_b32 s50, s{sI}, 3", f"s_lshr_b32 s51, s{sI}, 2")
    A(f"s_and_b32 s52, s{sW}, 1", f"s_bfe_u32 s53, s{sW}, 0x10001", f"s_lshr_b32 s54, s{sW}, 2")
    vW=4
    A(f"v_lshrrev_b32 v5, 3, v{lane}", "v_lshlrev_b32 v5, 10, v5", f"v_bfe_u32 v6, v{lane}, 4, 1", "v_lshlrev_b32 v6, 2, v6", f"v_and_b32 v7, 7, v{lane}",
      "v_xor_b32 v6, v6, v7", "v_lshl_add_u32 v5, v6, 4, v5", "s_lshl_b32 s42, s51, 7", f"v_add_u32 v{vW}, s42, v5", f"v_lshlrev_b32 v3, 4, v{lane}")
    A(f"s_lshl_b32 s42, s{sX}, 3", "s_lshl_b32 s43, s50, 1", "s_add_u32 s42, s42, s43", "s_lshl_b32 s55, s42, 16", f"s_add_u32 s55, s55, {OF}",
      "s_lshl_b32 s43, s53, 14", "s_lshl_b32 s44, s54, 12", "s_add_u32 s43, s43, s44",
      "s_lshl_b32 s56, s52, 15", "s_add_u32 s56, s56, s43", "s_add_u32 s56, s56, 0x10000",
      "s_lshl_b32 s57, s52, 16", "s_add_u32 s57, s57, s43", "s_add_u32 s57, s57, s55")
    def odma(br):
        L=[]
        for r in range(2):
            for ii in range(4):
                L+= [f"s_add_u32 m0, s56, {r*8192+ii*1024}", f"s_add_u32 s45, s57, {br*32768+r*8192+ii*1024}", f"buffer_load_dwordx4 v3, {W_}, s45 offen sc1 lds"]
        return L
    def wdma(S_, n, lds0, row0_sgpr_expr):
        L=[]
        for ii in range(n):
            L+= [f"s_add_u32 m0, s58, {lds0+ii*1024}", f"s_add_u32 s45, s59, {ii*8192}", f"buffer_load_dwordx4 v{vW}, {S_}, s45 offen lds"]
        return L
    A(f"s_lshl_b32 s58, s{sW}, 13", f"s_lshl_b32 s59, s{sW}, 16")
    A("s_barrier")
    A(wdma(SB,8,0,None))
    A("s_waitcnt vmcnt(9)", f"s_mov_b32 s46, {SPIN_MAX}")
    A("P3_bchk:", f"v_cmp_ne_u32 vcc, s{sNONCE}, v{vFb}", "s_nop 1", "s_cmp_eq_u64 vcc, 0", "s_cbranch_scc1 P3_bok",
      "s_sub_u32 s46, s46, 1", "s_cmp_eq_u32 s46, 0", "s_cbranch_scc1 P3_bok", "s_sleep 1",
      f"buffer_load_dword v{vFb}, v{vFa}, {W_}, s36 offen sc1", "s_waitcnt vmcnt(0)", "s_branch P3_bchk", "P3_bok:")
    A(odma(1))
    A("s_waitcnt vmcnt(16)")
    A("s_mov_b64 exec, 1", f"buffer_store_dword v{vFv}, v{vFz}, {W_}, s35 offen sc1", "s_mov_b64 exec, -1")
    ST.rt("o_stored")
    A(f"v_and_b32 v12, 31, v{lane}", f"s_lshl_b32 s44, s{sX}, 8", "s_lshl_b32 s45, s50, 6", "s_add_u32 s44, s44, s45", "s_lshl_b32 s45, s52, 5", "s_add_u32 s44, s44, s45",
      "v_add_u32 v12, s44, v12", "v_lshlrev_b32 v13, 2, v12", f"s_mov_b32 s45, {GOFF}", f"buffer_load_dword v14, v13, {W_}, s45 offen sc1")
    A(f"s_lshl_b32 s58, s{sW}, 12", f"s_lshl_b32 s59, s{sW}, 15")
    A(wdma(SA,4,131072,None))
    A(f"v_lshrrev_b32 v8, 5, v{lane}",
      f"v_bfe_u32 v5, v{lane}, 2, 2", "v_lshl_add_u32 v5, v8, 2, v5", "v_lshlrev_b32 v5, 7, v5",
      f"v_bfe_u32 v6, v{lane}, 4, 1", "v_lshlrev_b32 v6, 1, v6", f"v_bfe_u32 v7, v{lane}, 1, 1", "v_add_u32 v6, v6, v7",
      "s_lshl_b32 s42, s53, 2", "v_add_u32 v6, s42, v6",
      f"v_bfe_u32 v7, v{lane}, 3, 1", "v_lshlrev_b32 v7, 2, v7", "v_xor_b32 v6, v6, v7", "v_lshl_add_u32 v5, v6, 4, v5",
      f"v_and_b32 v7, 1, v{lane}", "v_lshl_add_u32 v5, v7, 3, v5",
      "s_lshl_b32 s42, s54, 15", "v_add_u32 v10, s42, v5")
    A("s_cmp_eq_u32 s54, 0", "s_cselect_b32 s42, 0x20000, 0", "v_add_u32 v9, s42, v5")
    A("s_lshl_b32 s43, s52, 15", "s_lshl_b32 s44, s54, 14", "s_add_u32 s43, s43, s44", "s_add_u32 s43, s43, 0x10000", "v_add_u32 v11, s43, v3")
    ACA=16; ACB=48; WR=[32,36,40,44]; OFr=[64,68,72,76]; WA=128
    for i in range(16): A(f"v_mov_b32 v{ACB+i}, 0", f"v_mov_b32 v{ACA+i}, 0")
    A("s_waitcnt vmcnt(6)", "s_barrier")
    ST.rt("w_landed")
    def wrd(dst, base, n): return [f"ds_read_b64_tr_b16 {vr(dst,2)}, v{base} offset:{(16*n)*128}", f"ds_read_b64_tr_b16 {vr(dst+2,2)}, v{base} offset:{(16*n+8)*128}"]
    def rd3(n): return wrd(WR[n%4],10,n)+[f"ds_read_b128 {vr(OFr[n%4],4)}, v11 offset:{n*1024}"]
    for n in range(3): A(rd3(n))
    for n in range(16):
        if n+3<16: A(rd3(n+3))
        A(f"s_waitcnt lgkmcnt({3*min(3,15-n)})")
        A(mfma32(ACB, WR[n%4], OFr[n%4], ACB))
    ST.rt("b_half")
    A("s_waitcnt vmcnt(0)", "s_barrier")
    A(f"s_add_u32 s59, s59, {256*1024}")
    A(wdma(SA,4,0,None))
    A(f"s_add_u32 s36, s36, {FL_F2A-FL_F2B}")
    A(f"s_cmp_lg_u32 s{sW}, 0", "s_cbranch_scc1 P3_askip", f"s_mov_b32 s46, {SPIN_MAX}")
    A("P3_achk:", f"buffer_load_dword v{vFb}, v{vFa}, {W_}, s36 offen sc1", "s_waitcnt vmcnt(0)",
      f"v_cmp_ne_u32 vcc, s{sNONCE}, v{vFb}", "s_nop 1", "s_cmp_eq_u64 vcc, 0", "s_cbranch_scc1 P3_askip",
      "s_sub_u32 s46, s46, 1", "s_cmp_eq_u32 s46, 0", "s_cbranch_scc1 P3_askip", "s_branch P3_achk", "P3_askip:")
    A("s_waitcnt vmcnt(0)", "s_barrier")
    ST.rt("p2_flags")
    A(odma(0))
    A("s_cmp_lg_u32 s2, 0", "s_cbranch_scc1 P3_noep", f"s_mov_b32 s43, {FL+FL_EPOCH}")
    setflag(A,"ep",43,5)
    A("P3_noep:")
    for n in range(16):
        A(wrd(WA+4*n,9,n))
        if n%4==3: A("s_waitcnt lgkmcnt(4)")
    for r in range(2):
        A(f"s_waitcnt vmcnt({4-4*r}) lgkmcnt(0)", "s_barrier")
        for s_ in range(4): A(f"ds_read_b128 {vr(OFr[s_],4)}, v11 offset:{(8*r+s_)*1024}")
        for s_ in range(8):
            n=8*r+s_
            A(f"s_waitcnt lgkmcnt({3 if s_<5 else 7-s_})")
            A(mfma32(ACA, WA+4*n, OFr[s_%4], ACA))
            if s_<4: A(f"ds_read_b128 {vr(OFr[s_%4],4)}, v11 offset:{(8*r+s_+4)*1024}")
    ST.rt("p3_mfma")
    A("s_nop 7","s_nop 3")
    for i in range(16): A(f"v_sub_f32 v{ACA+i}, v{ACA+i}, v{ACB+i}")
    for i in range(16): A(f"v_fma_f32 v{ACA+i}, v14, v{ACA+i}, v{ACB+i}")
    ACC=ACA
    A(f"s_lshl_b32 s43, s{sW}, 11", "v_add_u32 v5, s43, v3", f"s_xor_b32 s44, s{sW}, 4", "s_lshl_b32 s44, s44, 11", "v_add_u32 v6, s44, v3")
    PK=40
    A("s_cmp_eq_u32 s54, 0", "s_cbranch_scc0 P3_k1")
    for kq,lab in ((0,None),(1,"P3_k1")):
        if lab: A("s_branch P3_kdone", f"{lab}:")
        own=ACC+8*kq; oth=ACC+8*(1-kq)
        A(f"ds_write_b128 v5, {vr(oth,4)}", f"ds_write_b128 v5, {vr(oth+4,4)} offset:1024", "s_waitcnt lgkmcnt(0)", "s_barrier")
        A(f"ds_read_b128 {vr(32,4)}, v6", f"ds_read_b128 {vr(36,4)}, v6 offset:1024", "s_waitcnt lgkmcnt(0)")
        for i in range(8): A(f"v_add_f32 v{own+i}, v{own+i}, v{32+i}")
        for i in range(4): A(f"v_cvt_pk_bf16_f32 v{PK+i}, v{own+2*i}, v{own+2*i+1}")
    A("P3_kdone:")
    A("s_nop 1", f"v_permlane32_swap_b32 v{PK}, v{PK+2}", f"v_permlane32_swap_b32 v{PK+1}, v{PK+3}")
    A("v_lshlrev_b32 v5, 10, v12", "v_lshl_add_u32 v5, v8, 4, v5",
      "s_lshl_b32 s42, s51, 7", "s_lshl_b32 s43, s53, 6", "s_add_u32 s42, s42, s43", "s_lshl_b32 s43, s54, 5", "s_add_u32 s42, s42, s43")
    A(f"buffer_store_dwordx4 {vr(PK,4)}, v5, s[{SRD_C}:{SRD_C+3}], s42 offen" + (" sc1" if 'outsc1' in opt else "") + (" nt" if 'outnt' in opt else ""))

def gen(opt=()):
    A=Asm(); ST=Stamps(A,'stamps' in opt)
    pr=[o[6:] for o in opt if o.startswith('probe=')]
    if pr: ST.probe=pr[0]
    cy=[o[4:] for o in opt if o.startswith('cyc=')]
    if cy: ST.cp=cy[0].split(':')
    A(f".globl {NAME}", ".p2align 8", f".type {NAME},@function", f"{NAME}:")
    A("s_cmp_ge_u32 s2, 256", "s_cbranch_scc1 L_done")
    if 'scramble' in opt: A("s_lshr_b32 s3, s2, 3", "s_and_b32 s2, s2, 7", "s_lshl_b32 s2, s2, 5", "s_or_b32 s2, s2, s3")
    A(f"s_load_dwordx2 s[{sWS}:{sWS+1}], s[0:1], 72", "s_load_dwordx2 s[42:43], s[0:1], 0", "s_load_dwordx2 s[44:45], s[0:1], 8",
      "s_load_dwordx2 s[46:47], s[0:1], 32", "s_load_dwordx2 s[48:49], s[0:1], 48",
      f"s_load_dwordx2 s[{pWOA}:{pWOA+1}], s[0:1], 16", f"s_load_dwordx2 s[{pWOB}:{pWOB+1}], s[0:1], 40", f"s_load_dwordx2 s[{pOUT}:{pOUT+1}], s[0:1], 56")
    rot=[int(o[3:]) for o in opt if o.startswith('rot')]
    if rot: A(f"s_add_u32 s{sX}, s2, {rot[0]}", f"s_and_b32 s{sX}, s{sX}, 7")
    else: A(f"s_and_b32 s{sX}, s2, 7")
    A(f"s_lshr_b32 s{sI}, s2, 3", f"s_lshr_b32 s{sJ}, s{sI}, 2", f"s_and_b32 s{sA}, s{sI}, 3",
      f"s_lshr_b32 s{sBR}, s{sA}, 1", f"s_and_b32 s50, s{sA}, 1", f"s_lshl_b32 s{sRB}, s{sJ}, 1", f"s_add_u32 s{sRB}, s{sRB}, s50",
      f"s_lshl_b32 s{sH}, s{sX}, 2", f"s_add_u32 s{sH}, s{sH}, s{sA}")
    A("v_lshrrev_b32 v1, 6, v0", "v_and_b32 v2, 63, v0", "s_nop 0", f"v_readfirstlane_b32 s{sW}, v1")
    if 'pf' in opt:
        A("s_getpc_b64 s[50:51]", "L_pc:", f"s_sub_u32 s50, s50, (L_pc-{NAME})", "s_subb_u32 s51, s51, 0")
        A(f"s_lshl_b32 s52, s{sI}, 1", f"s_add_u32 s52, s52, s{sW}", "s_lshl_b32 s52, s52, 10", "v_lshlrev_b32 v3, 4, v2", "v_add_u32 v3, s52, v3")
        A(f"s_cmp_lt_u32 s{sW}, 2", "s_cbranch_scc0 L_nopf", f"s_cmp_lt_u32 s52, (L_done-{NAME}-1024)", "s_cbranch_scc0 L_nopf",
          "global_load_dwordx4 v[252:255], v3, s[50:51]", "L_nopf:")
    if 'spin60' in opt: A("s_memrealtime s[90:91]")
    A("s_waitcnt lgkmcnt(0)")
    wb=[int(o[2:]) for o in opt if o.startswith('wb') and o[2:].isdigit()]
    if wb: A(f"s_add_u32 s{sWS}, s{sWS}, {wb[0]<<20}", f"s_addc_u32 s{sWS+1}, s{sWS+1}, 0")
    ST.rt("start"); ST.cyc("cyc0")
    A(f"s_add_u32 s6, s{sWS}, {FL+FL_EPOCH}", f"s_addc_u32 s7, s{sWS+1}, 0", "s_load_dword s3, s[6:7], 0")
    srd(A,SRD_WS,sWS,WS_SIZE)
    srd(A,SRD_A,42,2048*512*2)
    A(f"s_cmp_eq_u32 s{sBR}, 0", "s_cselect_b32 s44, s44, s46", "s_cselect_b32 s45, s45, s47")
    srd(A,SRD_B,44,512*1536*2)
    srd(A,SRD_C,48,1024)
    phase1(A,ST,opt)
    phase2(A,ST,opt)
    phase3(A,ST,opt)
    if pr:
        A("s_waitcnt vmcnt(0)", "L_probe:", "s_memrealtime s[80:81]", "s_waitcnt lgkmcnt(0)", "s_sub_u32 s80, s80, s100", *(["s_lshr_b32 s81, s63, 2", "s_add_u32 s81, s81, 6000", "s_cmp_lt_u32 s80, s81"] if cy else ["s_cmp_lt_u32 s80, 6000"]), "s_cbranch_scc1 L_probe")
    if 'spin60' in opt:
        A("s_waitcnt vmcnt(0)", "L_spin:", "s_memrealtime s[80:81]", "s_waitcnt lgkmcnt(0)", "s_sub_u32 s80, s80, s90", "s_cmp_lt_u32 s80, 6000", "s_cbranch_scc1 L_spin")
    if ST.on: A("s_waitcnt vmcnt(0)")
    ST.rt("end"); ST.cyc("cyc1")
    ST.flush(120)
    A("L_done:", "s_endpgm")
    kd=f""".section .rodata,"a"
.p2align 6
.amdhsa_kernel {NAME}
  .amdhsa_next_free_vgpr 256
  .amdhsa_next_free_sgpr 102
  .amdhsa_accum_offset 256
  .amdhsa_group_segment_fixed_size 0
  .amdhsa_kernarg_size 80
  .amdhsa_user_sgpr_count 2
  .amdhsa_user_sgpr_kernarg_segment_ptr 1
  .amdhsa_system_sgpr_workgroup_id_x 1
.end_amdhsa_kernel
"""
    return A.text(), kd, ST.names

if __name__=='__main__':
    import sys, hazard
    out=sys.argv[1]; opt=tuple(sys.argv[2:])
    HDR=open('gated_mix__softmax_full_mha__sliding_block__prompt.s.ref').read().split('\n')
    hdr=[l for l in HDR if l.startswith(';') and 'launch' not in l.lower() and 'Override' not in l and 'grid=ceil' not in l]
    t,kd,names=gen(opt)
    s='\n'.join(hdr)+'\n'+"; @launch grid=(256,1,1) block=(512,1,1) lds=163840\n"+'.amdgcn_target "amdgcn-amd-amdhsa--gfx950"\n.text\n'+t+kd
    open(out,'w').write(s)
    print('hazards',len(hazard.check(t)),'bytes',len(s),'stamps',','.join(names))
    sys.path.insert(0,'cdna_kernels')
    import subprocess
    from cdna_launch import with_harness_metadata, address_register_problem
    open('h.s','w').write(with_harness_metadata(s,NAME,10,launch_lists=True))
    r=subprocess.run(['clang','-x','assembler','-target','amdgcn-amd-amdhsa','-mcpu=gfx950','h.s','-o','h.co'],capture_output=True,text=True)
    if r.returncode: print(r.stderr)
    else:
        print('check:',address_register_problem('h.co',NAME))
        d=subprocess.run(['llvm-objdump','-d','--mcpu=gfx950','h.co'],capture_output=True,text=True).stdout
        import re
        ad=[int(m,16) for m in re.findall(r'// ([0-9A-F]{12}):',d)]
        print('code bytes',ad[-1]-ad[0]-768)
```

```python
from asm import Asm, vr, sr, mfma32
import struct
def f2u(x): return struct.unpack('<I',struct.pack('<f',x))[0]
NAME="gated_mix__softmax_full_mha__sliding_block__prompt_kernel"
QF=0; KF=4<<20; VF=8<<20; GOFF=12<<20; OF=16<<20; FL=30<<20; WS_SIZE=31<<20
FL_EPOCH=0; FL_F0=1024; FL_F1=2048; FL_F2=8192; FL_F2B=16384; FL_F2A=32768
FSTR=16
F1STR=4
STAMP_OFF=32<<20
QSCALE=0.25*1.4426950408889634
NEG=f2u(-2.0**100); LLO=f2u(2.0**-64); LHI=f2u(2.0**64)
SPIN_MAX=1<<20
sNONCE=3; sWS=4
SRD_WS=8; SRD_A=12; SRD_B=16; SRD_C=20; SRD_PT=56
sW=24; sX=25; sI=26; sJ=27; sA=28; sBR=29; sRB=30; sH=31
sMASK=40
sXCC=37; sMODE=39
pWOA=84; pWOB=86; pOUT=88

class Stamps:
    def __init__(s, A, on): s.A=A; s.on=on; s.n=0; s.names=[]; s.skip=('p1_stored',); s.probe=None; s.cp=None
    def rt(s,name):
        if s.cp and name==s.cp[0]: s.A("s_memtime s[96:97]", "s_waitcnt lgkmcnt(0)", "s_mov_b32 s63, s96")
        if s.cp and name==s.cp[1]: s.A("s_memtime s[96:97]", "s_waitcnt lgkmcnt(0)", "s_sub_u32 s63, s96, s63")
        if s.probe==name:
            s.A("s_memrealtime s[100:101]", "s_waitcnt lgkmcnt(0)")
        if not s.on or name in s.skip: return
        s.A("s_memrealtime s[80:81]", "s_waitcnt lgkmcnt(0)", f"s_mov_b32 s{64+s.n}, s80"); s.names.append(name); s.n+=1
    def cyc(s,name):
        if not s.on: return
        s.A("s_memtime s[80:81]", "s_waitcnt lgkmcnt(0)", f"s_mov_b32 s{64+s.n}, s80"); s.names.append(name); s.n+=1
    def flush(s, vtmp):
        if not s.on: return
        A=s.A
        A(f"s_mov_b32 s92, s{sWS}", f"s_mov_b32 s93, s{sWS+1}", "s_mov_b32 s94, 0x10000000", "s_mov_b32 s95, 0x00020000")
        A(f"s_lshl_b32 s80, s2, 3", f"s_add_u32 s80, s80, s{sW}", "s_lshl_b32 s80, s80, 6", f"s_add_u32 s80, s80, {STAMP_OFF}")
        for i in range(s.n):
            A(f"v_mov_b32 v{vtmp}, s{64+i}", f"v_mov_b32 v{vtmp+1}, {4*i}", f"buffer_store_dword v{vtmp}, v{vtmp+1}, s[92:95], s80 offen")

def srd(A, s, base, size):
    A(f"s_mov_b32 s{s}, s{base}", f"s_mov_b32 s{s+1}, s{base+1}", f"s_mov_b32 s{s+2}, {size}", f"s_mov_b32 s{s+3}, 0x00020000")

def poll(A, tag, flag_off_sgpr, vaddr, vtmp, stride=FSTR):
    A(f"s_cmp_lg_u32 s{sW}, 0", f"s_cbranch_scc1 L_{tag}_skip")
    A(f"v_and_b32 v{vaddr}, 31, v0", f"v_mul_u32_u24 v{vaddr}, {stride}, v{vaddr}", f"s_mov_b32 s42, {SPIN_MAX}")
    A(f"L_{tag}_loop:")
    A(f"buffer_load_dword v{vtmp}, v{vaddr}, s[{SRD_WS}:{SRD_WS+3}], s{flag_off_sgpr} offen sc1")
    A("s_waitcnt vmcnt(0)")
    A(f"v_cmp_ne_u32 vcc, s{sNONCE}, v{vtmp}", "s_nop 1", "s_cmp_eq_u64 vcc, 0", f"s_cbranch_scc1 L_{tag}_skip")
    A("s_sub_u32 s42, s42, 1", "s_cmp_eq_u32 s42, 0", f"s_cbranch_scc1 L_{tag}_skip", "s_sleep 1", f"s_branch L_{tag}_loop")
    A(f"L_{tag}_skip:")

def setflag(A, tag, off_sgpr, vt, sc=" sc1"):
    A(f"s_cmp_lg_u32 s{sW}, 0", f"s_cbranch_scc1 L_{tag}_nf")
    A(f"v_mov_b32 v{vt}, s{sNONCE}", f"v_mov_b32 v{vt+1}, 0", "s_mov_b64 exec, 1",
      f"buffer_store_dword v{vt}, v{vt+1}, s[{SRD_WS}:{SRD_WS+3}], s{off_sgpr} offen{sc}", "s_mov_b64 exec, -1")
    A(f"L_{tag}_nf:")

def mfma16(d,a,b,c): return f"v_mfma_f32_16x16x32_bf16 {vr(d,4)}, {vr(a,4)}, {vr(b,4)}, {vr(c,4)}"
def phase1(A, ST, opt):
    lane=2; vX=3; vW=4; t0=5; t1=6; t2=7; g_t=8
    W_=f"s[{SRD_WS}:{SRD_WS+3}]"
    GX=232; GW=236
    PT=240; F0V=244; vF0=246; vPT=247
    PTF="sc1"
    if 'ptnt' in opt: PTF="sc1 nt"
    if 'ptplain' in opt: PTF=""
    PTC=int([o[3:] for o in opt if o.startswith('ptc')][0]) if any(o.startswith('ptc') for o in opt) else 5
    if 'nopt1' in opt: PTC=99
    STG=40960
    A(f"v_lshlrev_b32 v24, 4, v{lane}")
    A(f"s_cmp_ge_u32 s{sW}, 4", "s_cbranch_scc1 P1_loader")
    n_save=ST.n; names_save=list(ST.names)
    def gate_loads():
        A(f"s_lshl_b32 s62, s{sJ}, 8", f"s_and_b32 s42, s{sW}, 3", "s_lshl_b32 s42, s42, 6", "s_add_u32 s62, s62, s42", f"s_lshl_b32 s42, s{sH}, 1", "s_add_u32 s62, s62, s42",
          f"s_lshr_b32 s42, s{sW}, 2", "s_add_u32 s62, s62, s42", "s_lshl_b32 s42, s62, 10",
          f"buffer_load_dwordx4 {vr(GX,4)}, v24, s[{SRD_A}:{SRD_A+3}], s42 offen", f"buffer_load_dwordx4 {vr(GW,4)}, v24, s[{SRD_C}:{SRD_C+3}], 0 offen")
    gate_loads()
    if 'tlbw' in opt:
        sh=int([o[4:] for o in opt if o.startswith('tlbs')][0]) if any(o.startswith('tlbs') for o in opt) else 16
        A(f"v_lshlrev_b32 v241, {sh}, v{lane}", f"s_lshl_b32 s42, s{sX}, 7", f"buffer_load_dword v242, v241, s[{SRD_B}:{SRD_B+3}], s42 offen sc1")
    A(f"s_and_b32 s34, s{sW}, 1", f"s_lshr_b32 s35, s{sW}, 1")
    A(f"s_lshl_b32 s42, s{sX}, 2", "s_lshl_b32 s43, s35, 1", "s_add_u32 s42, s42, s43", f"s_lshl_b32 s43, s{sBR}, 5", "s_add_u32 s42, s42, s43",
      "s_lshl_b32 s42, s42, 16", f"s_lshl_b32 s43, s{sRB}, 1", "s_add_u32 s43, s43, s34", "s_lshl_b32 s43, s43, 11", "s_add_u32 s56, s42, s43")
    A(f"v_and_b32 v{vF0}, 31, v{lane}", f"v_lshlrev_b32 v{vF0}, 2, v{vF0}", f"v_lshrrev_b32 v{t0}, 5, v{lane}", f"v_lshl_add_u32 v{vF0}, v{t0}, 10, v{vF0}",
      f"s_lshl_b32 s58, s{sX}, 7", f"s_add_u32 s58, s58, {FL+FL_F0}", f"s_getreg_b32 s{sXCC}, hwreg(HW_REG_XCC_ID, 0, 4)")
    aX=[10,11]; aW=[18,19]; m=20
    A(f"v_lshrrev_b32 v{g_t}, 4, v{lane}", f"v_and_b32 v{m}, 15, v{lane}", f"v_lshrrev_b32 v{t0}, 1, v{m}",
      "s_lshl_b32 s42, s34, 6", f"v_add_u32 v{t1}, s42, v{m}", f"v_lshlrev_b32 v{t1}, 7, v{t1}")
    for s_ in range(2):
        A(f"v_or_b32 v{t2}, {4*s_}, v{g_t}", f"v_xor_b32 v{t2}, v{t2}, v{t0}", f"v_lshl_add_u32 v{aX[s_]}, v{t2}, 4, v{t1}")
    A(f"v_bfe_u32 v{t0}, v{lane}, 2, 2", f"v_lshl_add_u32 v{t1}, v{g_t}, 3, v{t0}", f"v_lshlrev_b32 v{t1}, 7, v{t1}",
      f"v_and_b32 v21, 1, v{lane}", f"v_lshl_add_u32 v{t1}, v21, 3, v{t1}", f"v_add_u32 v{t1}, 16384, v{t1}",
      f"v_bfe_u32 v{t2}, v{lane}, 3, 1", f"v_bfe_u32 v21, v{lane}, 4, 1", f"v_lshl_or_b32 v{t2}, v21, 1, v{t2}", f"v_lshlrev_b32 v{t2}, 1, v{t2}",
      f"v_bfe_u32 v21, v{lane}, 1, 1", "s_lshl_b32 s42, s35, 2", "v_or_b32 v21, s42, v21")
    for hd in range(2):
        A(f"v_or_b32 v22, {2*hd}, v21", f"v_xor_b32 v22, v{t2}, v22", f"v_lshl_add_u32 v{aW[hd]}, v22, 4, v{t1}")
    def l2pf():
        if 'l2pf' in opt:
            C0=int([o[2:] for o in opt if o.startswith('c0')][0]) if any(o.startswith('c0') for o in opt) else 3
            NCH=8-C0
            vq=240
            A(f"s_lshl_b32 s42, s{sRB}, 7", f"s_lshl_b32 s43, s{sBR}, 6", "s_add_u32 s42, s42, s43", f"s_lshl_b32 s43, s{sW}, 4", "s_add_u32 s42, s42, s43",
              f"v_add_u32 v{vq}, s42, v{m}", f"v_lshlrev_b32 v{vq}, 10, v{vq}", f"v_lshl_add_u32 v{vq}, v{g_t}, 7, v{vq}", f"s_movk_i32 s43, {128*C0}",
              f"buffer_load_dword v{vq+2}, v{vq}, s[{SRD_A}:{SRD_A+3}], s43 offen sc1" if 'pfx' in opt else "s_nop 0")
            if NCH>4 and 'pfx' in opt: A(f"buffer_load_dword v{vq+3}, v{vq}, s[{SRD_A}:{SRD_A+3}], s43 offen offset:512 sc1")
            A(f"v_mul_u32_u24 v{vq}, 43, v{lane}", f"v_lshrrev_b32 v{vq}, 7, v{vq}", f"v_mul_u32_u24 v{vq+1}, 3, v{vq}", f"v_sub_u32 v{vq+1}, v{lane}, v{vq+1}",
              f"s_mul_i32 s42, s{sRB}, {4*NCH}", f"s_mul_i32 s43, s{sW}, {NCH}", "s_add_u32 s42, s42, s43", f"s_add_u32 s42, s42, {64*C0}",
              f"v_add_u32 v{vq}, s42, v{vq}", f"v_mul_u32_u24 v{vq}, 3072, v{vq}", f"v_lshl_add_u32 v{vq}, v{vq+1}, 10, v{vq}",
              f"v_cmp_gt_u32 vcc, {3*NCH}, v{lane}", f"v_mov_b32 v{vq+1}, 0x7ff00000", f"s_lshl_b32 s43, s{sX}, 7", f"v_cndmask_b32 v{vq}, v{vq+1}, v{vq}, vcc",
              f"buffer_load_dword v{vq+2}, v{vq}, s[{SRD_B}:{SRD_B+3}], s43 offen sc1{' nt' if 'wnt' in opt else ''}")
    if 'pfearly' in opt: l2pf()
    def T(hd,a,rt): return 32+48*hd+16*a+4*rt
    XF=[128,144]; WF=[[160,164,168],[172,176,180]]
    for i in range(96): A(f"v_mov_b32 v{32+i}, 0")
    def wrd(hd,a,s_):
        if 'p1noread' in opt: return ["s_nop 0","s_nop 0"]
        return [f"ds_read_b64_tr_b16 {vr(WF[hd][a]+2*rr,2)}, v{aW[hd]} offset:{a*8192+(32*s_+4*rr)*128}" for rr in range(2)]
    def xrd(s_,rt):
        if 'p1noread' in opt: return ["s_nop 0"]
        return [f"ds_read_b128 {vr(XF[s_]+4*rt,4)}, v{aX[s_]} offset:{rt*2048}"]
    def setA(s_): return wrd(0,0,s_)+xrd(s_,0)+xrd(s_,1)+wrd(0,1,s_)+xrd(s_,2)+xrd(s_,3)+wrd(0,2,s_)
    def setB(s_): return wrd(1,0,s_)+wrd(1,1,s_)+wrd(1,2,s_)
    def mf(hd,s_):
        x=XF[s_]; w=WF[hd]; L=[]
        for rt in (0,1): L.append(mfma16(T(hd,0,rt), w[0], x+4*rt, T(hd,0,rt)))
        for rt in (0,1): L.append(mfma16(T(hd,1,rt), w[1], x+4*rt, T(hd,1,rt)))
        for rt in (2,3): L.append(mfma16(T(hd,0,rt), w[0], x+4*rt, T(hd,0,rt)))
        for rt in (2,3): L.append(mfma16(T(hd,1,rt), w[1], x+4*rt, T(hd,1,rt)))
        for rt in range(4): L.append(mfma16(T(hd,2,rt), x+4*rt, w[2], T(hd,2,rt)))
        return L
    needA=[2,3,5,5,6,7,7,7,9,9,9,9]; needB=[1,1,3,3,3,3,3,3,5,5,5,5]
    def half(mfs, need, nold, new, pre=None, at=None):
        prev=-1; issued=0
        for k in range(12):
            if need[k]>prev:
                A(f"s_waitcnt lgkmcnt({(nold-1-need[k])+issued})"); prev=need[k]
            if pre and k==pre[0]: pre[1]()
            A(mfs[k])
            if k>=at and issued<len(new):
                n=1 if (len(new)-issued)<=(12-k-1) else 2
                n=min(n,len(new)-issued)
                A(new[issued:issued+n]); issued+=n
        assert issued==len(new)
    A("s_mov_b32 s49, 0", "s_mov_b32 s36, 0", f"s_mov_b32 s53, {STG}")
    A("s_barrier")
    A("s_waitcnt lgkmcnt(0)", f"s_mul_i32 s{sNONCE}, s3, 0x9e3779b1", f"s_add_u32 s{sNONCE}, s{sNONCE}, 0x7f4a7c15")
    ST.rt("p1_data")
    A(setA(0))
    if 'pfearly' not in opt: l2pf()
    if 'nocodepf' not in opt:
        A(f"s_cmp_lg_u32 s{sW}, 1", "s_cbranch_scc1 L_nocpf", "s_getpc_b64 s[42:43]", "L_cpf_pc:", "s_add_u32 s42, s42, (P1_after-L_cpf_pc)", "s_addc_u32 s43, s43, 0",
          f"v_lshlrev_b32 v241, 7, v{lane}", "v_min_u32 v242, (L_done-P1_after-8192), v241")
        A("v_min_u32 v243, (L_done-P1_after), v241", "global_load_dword v240, v243, s[42:43]",
          "v_add_u32 v243, 8192, v242", "global_load_dword v240, v243, s[42:43]", "L_nocpf:")
    A(f"s_cmp_lg_u32 s{sW}, 0", "s_cbranch_scc1 L_f0_nf", f"s_add_u32 s42, s{sNONCE}, s{sXCC}", f"s_lshl_b32 s43, s{sI}, 2", "s_add_u32 s43, s43, s58",
      "v_mov_b32 v5, s42", "v_mov_b32 v6, 0", "s_mov_b64 exec, 1", f"buffer_store_dword v5, v6, {W_}, s43 offen sc1", "s_mov_b64 exec, -1", "L_f0_nf:")
    A(".p2align 3", "P1_loop:")
    half(mf(0,0), needA, 10, setB(0), at=2)
    half(mf(1,0), needB, 6, setA(1), at=1)
    half(mf(0,1), needA, 10, setB(1), at=2)
    def boundary():
        A("s_add_u32 s36, s36, 1", "s_cmp_eq_u32 s36, 4", f"s_cselect_b32 s52, {(-3*STG)&0xffffffff:#x}, s53", "s_cselect_b32 s36, 0, s36", "s_waitcnt lgkmcnt(0)")
        for r in aX+aW: A(f"v_add_u32 v{r}, s52, v{r}")
        A("s_cmp_eq_u32 s49, 4", "s_cbranch_scc1 P1_f0ld", "P1_f0back:", "s_barrier")
        if ST.probe and ST.probe.startswith('it'):
            A(f"s_cmp_eq_u32 s49, {ST.probe[2:]}", "s_cbranch_scc0 P1_noprobe", "s_memrealtime s[100:101]", "s_waitcnt lgkmcnt(0)", "P1_noprobe:")
        if 'p1it' in opt:
            A("s_memtime s[80:81]", "s_waitcnt lgkmcnt(0)")
            for k in range(7): A(f"s_mov_b32 s{64+8+k}, s{64+9+k}")
            A(f"s_mov_b32 s{64+15}, s80")
    half(mf(1,1), needB, 6, setA(0), pre=(3,boundary), at=3)
    A("s_add_u32 s49, s49, 1", "s_cmp_lt_u32 s49, 8", "s_cbranch_scc1 P1_loop")
    ST.rt("p1_loop")
    if 'p1it' in opt:
        ST.n=16; ST.flush(210); A("s_waitcnt vmcnt(0)", "s_endpgm")
    A("s_branch P1_after")
    A("P1_f0ld:", f"buffer_load_dword v{F0V}, v{vF0}, {W_}, s58 offen sc1", "s_branch P1_f0back")
    A("P1_after:")
    A("s_waitcnt vmcnt(0)", f"s_mov_b32 s42, {SPIN_MAX}")
    A("P1_chk:", f"v_subrev_u32 v{F0V+1}, s{sNONCE}, v{F0V}", f"v_cmp_gt_u32 vcc, 8, v{F0V+1}", "s_nop 1", "s_cmp_eq_u32 vcc_lo, -1", "s_cbranch_scc1 P1_chk_ok")
    A("s_sub_u32 s42, s42, 1", "s_cmp_eq_u32 s42, 0", "s_cbranch_scc1 P1_chk_ok", "s_sleep 1",
      f"buffer_load_dword v{F0V}, v{vF0}, {W_}, s58 offen sc1", "s_waitcnt vmcnt(0)", "s_branch P1_chk")
    A("P1_chk_ok:", f"v_cmp_eq_u32 vcc, s{sXCC}, v{F0V+1}", "s_nop 1", "s_cmp_eq_u32 vcc_lo, -1", f"s_cselect_b32 s{sMODE}, 1, 0")
    if 'forcesafe' in opt: A(f"s_mov_b32 s{sMODE}, 0")
    if 'fine3' in opt: ST.rt("mode")
    A(f"s_mov_b32 s44, {hex(f2u(QSCALE))}", "s_waitcnt lgkmcnt(0)")
    for hd in range(2):
        PK=128+24*hd
        TQ,TK,TV=T(hd,0,0),T(hd,1,0),T(hd,2,0)
        for t in range(2):
            for i in range(4): A(f"v_cvt_pk_bf16_f32 v{PK+4*t+i}, v{TK+8*t+2*i}, v{TK+8*t+2*i+1}")
        for t in range(2):
            for i in range(4): A(f"v_cvt_pk_bf16_f32 v{PK+8+4*t+i}, v{TV+8*t+2*i}, v{TV+8*t+2*i+1}")
        for i in range(16): A(f"v_mul_f32 v{TQ+i}, s44, v{TQ+i}")
        for t in range(2): A(f"v_permlane16_swap_b32 v{PK+4*t}, v{PK+4*t+2}", f"v_permlane16_swap_b32 v{PK+4*t+1}, v{PK+4*t+3}")
        for t in range(2):
            for i in range(4): A(f"v_cvt_pk_bf16_f32 v{PK+16+4*t+i}, v{TQ+8*t+2*i}, v{TQ+8*t+2*i+1}")
        for t in range(2): A(f"v_permlane32_swap_b32 v{PK+8+4*t}, v{PK+8+4*t+2}", f"v_permlane32_swap_b32 v{PK+8+4*t+1}, v{PK+8+4*t+3}")
        for t in range(2): A(f"v_permlane16_swap_b32 v{PK+16+4*t}, v{PK+16+4*t+2}", f"v_permlane16_swap_b32 v{PK+16+4*t+1}, v{PK+16+4*t+3}")
        A(f"s_add_u32 s46, s56, {hd*65536}", f"s_add_u32 s45, s46, {KF}", f"s_add_u32 s47, s46, {VF}")
        A(f"s_cmp_eq_u32 s{sMODE}, 0", f"s_cbranch_scc1 P1_st_safe{hd}")
        for sc,lab in (("",None),(" sc1",f"P1_st_safe{hd}")):
            if lab: A(f"s_branch P1_st_done{hd}", f"{lab}:")
            A(f"buffer_store_dwordx4 {vr(PK,4)}, v24, {W_}, s45 offen{sc}", f"buffer_store_dwordx4 {vr(PK+4,4)}, v24, {W_}, s45 offen offset:1024{sc}")
            A(f"buffer_store_dwordx4 {vr(PK+8,4)}, v24, {W_}, s47 offen{sc}", f"buffer_store_dwordx4 {vr(PK+12,4)}, v24, {W_}, s47 offen offset:1024{sc}")
            A(f"buffer_store_dwordx4 {vr(PK+16,4)}, v24, {W_}, s46 offen{sc}", f"buffer_store_dwordx4 {vr(PK+20,4)}, v24, {W_}, s46 offen offset:1024{sc}")
        A(f"P1_st_done{hd}:")
    A("s_branch P1_join")
    A("P1_loader:")
    n_end=ST.n; names_end=list(ST.names); ST.n=n_save; ST.names=list(names_save)
    A(f"s_and_b32 s34, s{sW}, 3")
    A(f"v_lshrrev_b32 v{t0}, 3, v{lane}", f"v_and_b32 v{t2}, 7, v{lane}", f"v_lshrrev_b32 v{t1}, 4, v{lane}", f"v_xor_b32 v{t1}, v{t1}, v{t2}",
      f"s_lshl_b32 s42, s{sRB}, 7", "s_lshl_b32 s43, s34, 5", "s_add_u32 s42, s42, s43", f"v_add_u32 v{vX}, s42, v{t0}", f"v_lshlrev_b32 v{vX}, 10, v{vX}",
      f"v_xor_b32 v9, 4, v{t1}", f"v_lshl_add_u32 v9, v9, 4, v{vX}", f"v_add_u32 v9, 8192, v9", f"v_lshl_add_u32 v{vX}, v{t1}, 4, v{vX}")
    A(f"v_add_u32 v10, 0x4000, v{vX}", "v_add_u32 v11, 0x4000, v9")
    A(f"v_bfe_u32 v{t1}, v{lane}, 4, 1", f"v_lshlrev_b32 v{t1}, 1, v{t1}", f"v_xor_b32 v{t1}, v{t1}, v{t2}",
      "s_lshl_b32 s43, s34, 4", f"v_add_u32 v{t0}, s43, v{t0}", f"v_mul_u32_u24 v{vW}, 3072, v{t0}", *([f"s_add_u32 s45, s{sX}, 2", "s_and_b32 s45, s45, 7", "s_lshl_b32 s45, s45, 7"] if 'wcol2' in opt else [f"s_lshl_b32 s45, s{sX}, 7"]), f"v_add_u32 v{vW}, s45, v{vW}",
      f"v_xor_b32 v12, 4, v{t1}", f"v_lshl_add_u32 v12, v12, 4, v{vW}", f"v_add_u32 v12, {8*3072}, v12", f"v_lshl_add_u32 v{vW}, v{t1}, 4, v{vW}")
    def dmas():
        L=[]
        xs=[vX,9,10,11]
        for ii in range(4):
            L.append([f"s_add_u32 m0, s46, {ii*1024}", "NOP", f"buffer_load_dwordx4 v{xs[ii]}, s[{SRD_A}:{SRD_A+3}], s47 offen{' nt' if 'xnt' in opt else ''} lds"])
        for seg in range(3):
            for ii in range(2):
                L.append([f"s_add_u32 m0, s57, {16384+seg*8192+ii*1024-seg*1024}", "NOP", f"buffer_load_dwordx4 v{[vW,12][ii]}, s[{SRD_B}:{SRD_B+3}], s48 offen offset:{seg*1024}{' nt' if 'wnt' in opt else ''} lds"])
        return L
    def issue():
        A("s_and_b32 s51, s50, 3", f"s_mul_i32 s51, s51, {STG}", "s_lshl_b32 s46, s34, 12", "s_add_u32 s46, s46, s51", "s_lshl_b32 s57, s34, 11", "s_add_u32 s57, s57, s51",
          *(["s_add_u32 s59, s50, s60", "s_and_b32 s59, s59, 7", "s_lshl_b32 s47, s59, 7", f"s_mul_i32 s48, s59, {64*3072}"] if True else ["s_lshl_b32 s47, s50, 7", f"s_mul_i32 s48, s50, {64*3072}"]))
        if 'p1nodma' not in opt:
            for g in dmas(): A([("s_nop 0" if x=="NOP" else x) for x in g])
        A("s_add_u32 s50, s50, 1")
    if 'krot1' in opt: A(f"s_and_b32 s60, s{sRB}, 7")
    elif 'krot2' in opt: A(f"s_lshl_b32 s60, s{sBR}, 2", f"s_add_u32 s60, s60, s{sRB}")
    elif 'krot3' in opt: A(f"s_lshr_b32 s60, s{sRB}, 1", f"s_lshl_b32 s59, s{sBR}, 2", "s_add_u32 s60, s60, s59")
    elif 'krot4' in opt: A(f"s_lshr_b32 s60, s{sRB}, 1", f"s_add_u32 s60, s60, s{sX}")
    elif 'krot0' in opt: A("s_mov_b32 s60, 0")
    elif 'krotrb' in opt: A(f"s_lshr_b32 s60, s{sRB}, 1")
    else: A(f"s_lshr_b32 s60, s{sRB}, 1", f"s_add_u32 s60, s60, s{sX}")
    A("s_mov_b32 s50, 0", "s_mov_b32 s49, 0")
    A("P1_lpro:")
    issue()
    A("s_cmp_lt_u32 s50, 2", "s_cbranch_scc1 P1_lpro")
    gate_loads()
    A("s_waitcnt vmcnt(12)", "s_barrier")
    A("s_waitcnt lgkmcnt(0)", f"s_mul_i32 s{sNONCE}, s3, 0x9e3779b1", f"s_add_u32 s{sNONCE}, s{sNONCE}, 0x7f4a7c15")
    ST.rt("p1_data")
    A(f"v_lshrrev_b32 v{t0}, 4, v{lane}", f"v_lshlrev_b32 v{vPT}, 22, v{t0}", f"v_bfe_u32 v{t0}, v{lane}, 3, 1", f"v_lshl_add_u32 v{vPT}, v{t0}, 10, v{vPT}",
      f"v_and_b32 v{t0}, 7, v{lane}", f"v_lshl_add_u32 v{vPT}, v{t0}, 7, v{vPT}", f"v_cmp_gt_u32 vcc, 48, v{lane}", f"v_mov_b32 v{t0}, 0x7ff00000", "s_nop 0",
      f"v_cndmask_b32 v{vPT}, v{t0}, v{vPT}, vcc")
    A("s_and_b32 s42, s34, 1", "s_lshr_b32 s43, s34, 1",
      f"s_lshl_b32 s44, s{sX}, 2", "s_lshl_b32 s43, s43, 1", "s_add_u32 s44, s44, s43", f"s_lshl_b32 s43, s{sBR}, 5", "s_add_u32 s44, s44, s43", "s_lshl_b32 s44, s44, 16",
      f"s_lshl_b32 s43, s{sRB}, 1", "s_add_u32 s43, s43, s42", "s_lshl_b32 s43, s43, 11", "s_add_u32 s56, s44, s43")
    issue_lbl="P1_lloop"
    A("P1_lpro2:")
    issue()
    A("s_cmp_lt_u32 s50, 4", "s_cbranch_scc1 P1_lpro2")
    A("P1_lloop:")
    A("s_cmp_lt_u32 s49, 5", "s_cbranch_scc0 P1_ltail", "s_waitcnt vmcnt(20)", "s_branch P1_lbar")
    A("P1_ltail:", "s_cmp_eq_u32 s49, 5", "s_cbranch_scc0 P1_ltail2", "s_waitcnt vmcnt(10)", "s_branch P1_lbar")
    A("P1_ltail2:", "s_cmp_eq_u32 s49, 6", "s_cbranch_scc0 P1_lbar", f"s_waitcnt vmcnt({2 if PTC==5 else 0})")
    A("P1_lbar:", "s_barrier")
    if ST.probe and ST.probe.startswith('it'):
        A(f"s_cmp_eq_u32 s49, {ST.probe[2:]}", "s_cbranch_scc0 P1_lnoprobe", "s_memrealtime s[100:101]", "s_waitcnt lgkmcnt(0)", "P1_lnoprobe:")
    A("s_cmp_lt_u32 s50, 8", "s_cbranch_scc0 P1_lnoiss")
    issue()
    A("P1_lnoiss:")
    A(f"s_cmp_eq_u32 s49, {PTC}", "s_cbranch_scc0 P1_lnopt", "s_add_u32 s42, s56, 65536",
      f"buffer_load_dword v{PT}, v{vPT}, {W_}, s56 offen {PTF}", f"buffer_load_dword v{PT+1}, v{vPT}, {W_}, s42 offen {PTF}", "P1_lnopt:")
    A("s_add_u32 s49, s49, 1", "s_cmp_lt_u32 s49, 8", "s_cbranch_scc1 P1_lloop")
    ST.rt("p1_loop")
    if 'p1it' in opt:
        A("s_waitcnt vmcnt(0)", "s_endpgm")
    if 'fine3' in opt: ST.rt("mode")
    A(f"s_mov_b32 s{sMODE}, 0")
    A("P1_join:")
    assert ST.n==n_end or 'p1it' in opt
    if 'fine3' in opt: ST.rt("st_iss")

def gate(A):
    W_=f"s[{SRD_WS}:{SRD_WS+3}]"
    GX=232; GW=236; GA=250
    A(f"v_mov_b32 v{GA}, 0")
    for i in range(4): A(f"v_dot2_f32_bf16 v{GA}, v{GX+i}, v{GW+i}, v{GA}")
    A("s_nop 2")
    for ror in (8,4,2,1):
        A(f"v_add_f32_dpp v{GA}, v{GA}, v{GA} row_ror:{ror} row_mask:0xf bank_mask:0xf", "s_nop 1")
    A(f"v_mov_b32 v{GA+1}, v{GA}", "s_nop 1", f"v_permlane16_swap_b32 v{GA+1}, v{GA}", "s_nop 1", f"v_add_f32 v{GA}, v{GA}, v{GA+1}",
      f"v_mov_b32 v{GA+1}, v{GA}", "s_nop 1", f"v_permlane32_swap_b32 v{GA+1}, v{GA}", "s_nop 1", f"v_add_f32 v{GA}, v{GA}, v{GA+1}")
    A(f"v_mul_f32 v{GA}, {hex(f2u(-1.4426950408889634))}, v{GA}", f"v_exp_f32 v{GA}, v{GA}", "s_nop 0", f"v_add_f32 v{GA}, 1.0, v{GA}", f"v_rcp_f32 v{GA}, v{GA}",
      "s_lshl_b32 s62, s62, 2", f"s_add_u32 s62, s62, {GOFF}", f"v_mov_b32 v{GA+1}, 0")
def gate_store(A):
    A("s_mov_b64 exec, 1", f"buffer_store_dword v250, v251, s[{SRD_WS}:{SRD_WS+3}], s62 offen sc1", "s_mov_b64 exec, -1")

def publish1(A, ST, opt):
    if 'fine3' in opt:
        A("s_waitcnt vmcnt(0)"); ST.rt("vm0")
    A("s_waitcnt vmcnt(0)", "s_barrier")
    if 'fine3' in opt: ST.rt("bar1")
    ST.rt("p1_stored")
    A(f"s_lshl_b32 s42, s{sX}, 7", f"s_lshl_b32 s43, s{sI}, 2", "s_add_u32 s43, s43, s42", f"s_add_u32 s43, s43, {FL+FL_F1}", f"s_add_u32 s38, s42, {FL+FL_F1}")
    A(f"s_cmp_eq_u32 s{sMODE}, 0", "s_cbranch_scc1 L_f1_safe")
    setflag(A,"f1f",43,5,"")
    A("s_branch L_f1_done", "L_f1_safe:")
    setflag(A,"f1s",43,5," sc1")
    A("L_f1_done:")
def sync1(A, ST, opt):
    if 'fine3' in opt: ST.rt("prolog")
    poll(A,"p1",38,2,3,stride=F1STR)
    A("s_barrier")
    ST.rt("p1_flags")

LANE=1
QA0=4; QA1=8; QB=12
OA0=16; OA1=32
S0=48; S1=64
P=80
KB_=88; VB_=210
MF=140; MD=156; CB=96
vKa=172; vVa=173
vL16=174; vT=175; vT2=176; vT3=177; vNEGM=178; vM=179; vKs=180; vVs=181; vX0=182; vPK=184
VL=188
LDS_KA=0; LDS_VA=65536; LDS_KB=131072; LDS_VB=147456
def exps(S): return [f"v_exp_f32 v{S+i}, v{S+i}" for i in range(16)]
def cvts(S): return [f"v_cvt_pk_bf16_f32 v{P+i}, v{S+2*i}, v{S+2*i+1}" for i in range(8)]
MK=[f"s_mov_b64 exec, s[{sMASK}:{sMASK+1}]"]; UM=["s_mov_b64 exec, -1"]
def unit(A, Sc, QK, PV1, ld, wK, wV, PV0):
    e=exps(Sc); c=cvts(Sc)
    A(wK, QK)
    A(e[0:4], c[0], e[4:6], c[1])
    A(PV1, ld)
    A(e[6:8], c[2], e[8:10], c[3], e[10:12])
    A(wV, PV0)
    A(e[12:13], c[4], e[13:15], c[5], e[15:16], c[6], c[7])
def slow_pass(A, tag, Q, O, pass1, far, diag, n):
    A(f"v_mov_b32 v{vX0}, v{vKs}", f"v_mov_b32 v{vX0+1}, v{vVs}", "s_mov_b32 s60, 0")
    if pass1: A(f"v_mov_b32 v{vM}, {hex(NEG)}", f"v_mov_b32 v{vNEGM}, 0")
    else:
        for i in range(16): A(f"v_mov_b32 v{O+i}, 0")
    A(f"L_{tag}_loop:")
    A(f"ds_read_b128 {vr(KB_,4)}, v{vX0}")
    if not pass1: A(MK, f"ds_read_b128 {vr(VB_,4)}, v{vX0+1}", f"ds_read_b128 {vr(VB_+4,4)}, v{vX0+1} offset:512", UM)
    A("s_cmp_eq_u32 s60, 0", f"s_cselect_b32 s61, s{far}, 0", "s_cmp_lg_u32 s61, 0", f"s_cbranch_scc1 L_{tag}_far")
    A(f"s_add_u32 s61, s60, 1", f"s_cmp_eq_u32 s61, s{n}", f"s_cselect_b32 s61, s{diag}, 0", "s_cmp_lg_u32 s61, 0", f"s_cbranch_scc1 L_{tag}_diag")
    for i in range(16): A(f"v_mov_b32 v{CB+i}, v{vNEGM}")
    A(f"s_branch L_{tag}_go")
    A(f"L_{tag}_far:")
    for i in range(16): A(f"v_add_f32 v{CB+i}, v{MF+i}, v{vNEGM}")
    A(f"s_branch L_{tag}_go")
    A(f"L_{tag}_diag:")
    for i in range(16): A(f"v_add_f32 v{CB+i}, v{MD+i}, v{vNEGM}")
    A(f"L_{tag}_go:")
    A("s_waitcnt lgkmcnt(0)", "s_nop 0")
    A(mfma32(S0, KB_, Q, CB))
    A("s_nop 7","s_nop 3")
    if pass1:
        for i in range(16): A(f"v_max_f32 v{vM}, v{vM}, v{S0+i}")
    else:
        A(exps(S0), "s_nop 0", cvts(S0), "s_nop 1")
        A(mfma32(O, VB_, P, O), mfma32(O, VB_+4, P+4, O))
    A(f"v_add_u32 v{vX0}, 1024, v{vX0}", f"v_add_u32 v{vX0+1}, 1024, v{vX0+1}")
    A("s_add_u32 s60, s60, 1", f"s_cmp_lt_u32 s60, s{n}", f"s_cbranch_scc1 L_{tag}_loop")
    if pass1:
        A(f"v_mov_b32 v{vT}, v{vM}", "s_nop 1", f"v_permlane32_swap_b32 v{vT}, v{vM}", "s_nop 1",
          f"v_max_f32 v{vM}, v{vM}, v{vT}", f"v_sub_f32 v{vNEGM}, 0, v{vM}")
    else: A("s_nop 7","s_nop 3")
def bcast_l(A,O):
    A(f"v_mov_b32 v{vT}, v{O+8}", "s_nop 1", f"v_permlane32_swap_b32 v{vT}, v{O+8}", "s_nop 1", f"v_add_f32 v{O+8}, v{O+8}, v{vT}")
def check_range(A, O, okl):
    bcast_l(A,O)
    A(f"v_mov_b32 v{vT}, v{O+8}")
    for i in range(8): A(f"v_fma_f32 v{vT}, v{O+i}, 0, v{vT}")
    A(f"s_mov_b32 s44, {hex(LLO)}", f"s_mov_b32 s45, {hex(LHI)}")
    A(f"v_cmp_le_f32 s[46:47], s44, v{vT}", f"v_cmp_ge_f32 s[48:49], s45, v{vT}", "s_nop 1",
      "s_and_b64 s[46:47], s[46:47], s[48:49]", "s_cmp_eq_u64 s[46:47], -1", f"s_cbranch_scc1 {okl}")
def finalize(A, O, soff):
    A(f"v_rcp_f32 v{vT}, v{O+8}", "s_nop 0")
    for i in range(8): A(f"v_mul_f32 v{O+i}, v{O+i}, v{vT}")
    for i in range(4): A(f"v_cvt_pk_bf16_f32 v{vPK+i}, v{O+2*i}, v{O+2*i+1}")
    A(f"buffer_store_dwordx4 {vr(vPK,4)}, v{vL16}, s[{SRD_WS}:{SRD_WS+3}], s{soff} offen sc1")

def early2(A):
    A(f"v_and_b32 v{LANE}, 63, v0")
    A(f"v_lshlrev_b32 v{vL16}, 4, v{LANE}", f"v_and_b32 v{vT}, 31, v{LANE}")
    A(f"s_mov_b32 s{sMASK}, 0x0000ffff", f"s_mov_b32 s{sMASK+1}, 0x0000ffff")
    A(f"v_cmp_eq_u32 vcc, 16, v{vT}", f"v_mov_b32 v{vX0}, 0x3f803f80", "s_nop 0", f"v_cndmask_b32 v{vX0+1}, 0, v{vX0}, vcc")
    for i in range(16): A(f"v_mov_b32 v{VB_+i}, v{vX0+1}")
    hh=vT3; MS=[82,90,96,98]
    A(f"v_lshrrev_b32 v{hh}, 5, v{LANE}", f"v_lshlrev_b32 v{vT2}, 2, v{hh}", f"v_sub_u32 v{vT2}, v{vT}, v{vT2}")
    A(f"v_mov_b32 v{vX0}, {hex(NEG)}")
    for g in range(4):
        for k in range(4): A(f"v_cmp_gt_i32 s[{MS[k]}:{MS[k]+1}], {8*g+k}, v{vT2}")
        A("s_nop 0")
        for k in range(4):
            i=4*g+k
            A(f"v_cndmask_b32 v{MF+i}, v{vX0}, 0, s[{MS[k]}:{MS[k]+1}]", f"v_cndmask_b32 v{MD+i}, 0, v{vX0}, s[{MS[k]}:{MS[k]+1}]")
    A(f"v_and_b32 v{vT}, 15, v{LANE}", f"v_lshlrev_b32 v{vT}, 4, v{vT}", f"v_lshl_add_u32 v{VL}, v{hh}, 8, v{vT}")

def phase2(A, ST, opt):
    W_=f"s[{SRD_WS}:{SRD_WS+3}]"
    SC="" if 'plainld' in opt else " sc1"
    early2(A)
    A(f"s_and_b32 s15, s{sW}, 3", f"s_lshr_b32 s16, s{sW}, 2")
    A("s_lshl_b32 s17, s15, 1", "s_add_u32 s17, s17, s16",
      f"s_lshl_b32 s18, s{sJ}, 3", "s_add_u32 s19, s18, s17",
      f"s_lshl_b32 s20, s{sH}, 16", f"s_add_u32 s21, s20, {32*65536}")
    A("s_lshl_b32 s43, s17, 10", f"s_add_u32 s44, s43, {LDS_KB}", f"v_add_u32 v{vKa}, s44, v{vL16}",
      f"s_add_u32 s44, s43, {LDS_VB}", f"v_add_u32 v{vVa}, s44, v{VL}")
    A("s_lshl_b32 s32, s19, 16", f"s_lshl_b32 s33, s{sH}, 10", "s_add_u32 s32, s32, s33", f"s_add_u32 s32, s32, {OF}", "s_add_u32 s33, s32, 32768")
    A("s_lshl_b32 s22, s19, 10", "s_add_u32 s22, s22, s21", f"s_add_u32 s22, s22, {QF}")
    A("s_lshl_b32 s23, s19, 10", "s_add_u32 s23, s23, s20", f"s_add_u32 s23, s23, {QF}", "s_xor_b32 s14, s19, 1", "s_lshl_b32 s14, s14, 10", "s_add_u32 s14, s14, s20", f"s_add_u32 s14, s14, {QF}")
    for ii in range(2):
        A(f"s_add_u32 s43, s{sW}, {8*ii}", "s_add_u32 s44, s18, s43", "s_sub_u32 s44, s44, 8", "s_max_i32 s44, s44, 0",
          "s_lshl_b32 s44, s44, 10", "s_add_u32 s44, s44, s21", f"s_add_u32 s{54+ii}, s44, {KF}")
    A(f"s_lshl_b32 s56, s{sW}, 10", "s_add_u32 s57, s56, s20", f"s_add_u32 s57, s57, {KF}")
    publish1(A,ST,opt)
    OBz=OA0
    for i in range(16): A(f"v_mov_b32 v{OBz+i}, 0")
    for i in range(4): A(f"v_mov_b32 v{P+4+i}, 0")
    gate(A)
    sync1(A,ST,opt)
    A(f"buffer_load_dwordx4 {vr(QB,4)}, v{vL16}, {W_}, s22 offen{SC}")
    if 'fine2' in opt:
        A("s_waitcnt vmcnt(0)"); ST.rt("qb_landed")
    for ii in range(2):
        A(f"s_add_u32 m0, s56, {LDS_KB+8192*ii}", f"s_add_u32 s45, s{54+ii}, {VF-KF}", f"buffer_load_dwordx4 v{vL16}, {W_}, s{54+ii} offen{SC} lds")
        A(f"s_add_u32 m0, s56, {LDS_VB+8192*ii}", "s_nop 0", f"buffer_load_dwordx4 v{vL16}, {W_}, s45 offen{SC} lds")
    A(f"buffer_load_dwordx4 {vr(QA0,4)}, v{vL16}, {W_}, s23 offen{SC}", f"buffer_load_dwordx4 {vr(QA1,4)}, v{vL16}, {W_}, s14 offen{SC}")
    def adma(m):
        return [f"s_add_u32 m0, s56, {LDS_KA+m*8192}", f"s_add_u32 s45, s57, {m*8192}", f"buffer_load_dwordx4 v{vL16}, {W_}, s45 offen{SC} lds",
                f"s_add_u32 m0, s56, {LDS_VA+m*8192}", f"s_add_u32 s45, s57, {VF-KF+m*8192}", f"buffer_load_dwordx4 v{vL16}, {W_}, s45 offen{SC} lds"]
    global ADMA; ADMA=adma
    A("s_waitcnt vmcnt(2)")
    OB=OA0
    if 'fine3' in opt: ST.rt("own_b")
    A("s_barrier")
    ST.rt("b_data")
    if 'fine3' in opt:
        ST.flush(2); A("s_waitcnt vmcnt(0)", "s_endpgm"); ST.on=False
    def ldK(t,base): return [f"ds_read_b128 {vr(KB_+4*(t%2),4)}, v{base} offset:{t*1024}"]
    def ldV(t,base): return MK+[f"ds_read_b128 {vr(VB_+8*(t%2),4)}, v{base} offset:{t*1024}", f"ds_read_b128 {vr(VB_+8*(t%2)+4,4)}, v{base} offset:{t*1024+512}"]+UM
    NB=9
    A("s_mov_b32 s51, 1", f"s_cmp_eq_u32 s{sJ}, 0", "s_cselect_b32 s50, 0, 1", "s_sub_u32 s53, 8, s17", "s_cselect_b32 s53, s53, 0")
    A.L.pop()
    A(f"s_cmp_eq_u32 s{sJ}, 0", "s_cselect_b32 s53, s53, 0")
    A("s_sub_u32 s52, 9, s53")
    A("s_lshl_b32 s43, s53, 10", f"v_add_u32 v{vKs}, s43, v{vKa}", f"v_add_u32 v{vVs}, s43, v{vVa}")
    A("s_cmp_eq_u32 s53, 0", "s_cbranch_scc1 B_pro0", "s_mov_b32 s58, s56", "s_mov_b32 s59, s57", "s_mov_b32 s60, s53", "B_skipdma:")
    A(f"s_add_u32 m0, s58, {LDS_KA}", f"s_add_u32 s45, s59, {VF-KF}", f"buffer_load_dwordx4 v{vL16}, {W_}, s59 offen{SC} lds",
      f"s_add_u32 m0, s58, {LDS_VA}", "s_add_u32 s58, s58, 8192", f"buffer_load_dwordx4 v{vL16}, {W_}, s45 offen{SC} lds",
      "s_add_u32 s59, s59, 8192", "s_sub_u32 s60, s60, 1", "s_cmp_lg_u32 s60, 0", "s_cbranch_scc1 B_skipdma")
    for s0 in range(1,NB):
        A(f"s_cmp_eq_u32 s53, {s0}", f"s_cbranch_scc1 B_pro{s0}")
    for s0 in range(NB-1,-1,-1):
        A(f"B_pro{s0}:")
        Sc=S0 if s0%2==0 else S1
        C = MF if s0==0 else (MD if s0==NB-1 else "0")
        A(ldK(s0,vKa), "s_waitcnt lgkmcnt(0)", mfma32(Sc, KB_+4*(s0%2), QB, C))
        if s0==0:
            A(ldV(0,vVa), ldK(1,vKa))
        else:
            if s0+1<NB: A(ldK(s0+1,vKa))
            A(ldV(s0,vVa))
        A("s_nop 7","s_nop 3")
        if s0!=0: A(f"s_branch B_step{s0}")
    for t in range(NB):
        A(f"B_step{t}:")
        Sc=S0 if t%2==0 else S1; Sn=S1 if t%2==0 else S0
        if t+1<NB:
            QK=[mfma32(Sn, KB_+4*((t+1)%2), QB, MD if t+1==NB-1 else "0")]
            wK=["s_waitcnt lgkmcnt(0)"] if t==0 else ["s_waitcnt lgkmcnt(2)"]
        else: QK=[]; wK=[]
        PV1=[mfma32(OB, VB_+8*((t-1)%2)+4, P+4, OB)] if t>0 else []
        ld=[]
        if t+2<NB: ld+=ldK(t+2,vKa)
        if t+1<NB: ld+=ldV(t+1,vVa)
        nld=(1 if t+2<NB else 0)+(2 if t+1<NB else 0)
        wV=[f"s_waitcnt lgkmcnt({nld})"]
        PV0=[mfma32(OB, VB_+8*(t%2), P, OB)]
        if t<8: ld=ld+ADMA(t)
        unit(A,Sc,QK,PV1,ld,wK,wV,PV0)
    A("s_nop 1", mfma32(OB, VB_+8*((NB-1)%2)+4, P+4, OB))
    A("s_nop 7","s_nop 3")
    check_range(A,OB,"B_ok")
    slow_pass(A,"bf1",QB,OB,True,50,51,52)
    slow_pass(A,"bf2",QB,OB,False,50,51,52)
    bcast_l(A,OB)
    A("B_ok:")
    finalize(A,OB,33)
    ST.rt("b_done")
    A("s_waitcnt vmcnt(1)", "s_barrier")
    ST.rt("a_start")
    gate_store(A)
    if 'dup' in opt: A("s_mov_b32 s54, 2", "A_dup:")
    A("s_lshl_b32 s43, s16, 15", f"v_add_u32 v{vKa}, s43, v{vL16}", f"s_add_u32 s44, s43, {LDS_VA}", f"v_add_u32 v{vVa}, s44, v{VL}")
    for i in range(32): A(f"v_mov_b32 v{OA0+i}, 0")
    for i in range(4): A(f"v_mov_b32 v{P+4+i}, 0")
    Qr=[QA0,QA1]; Or=[OA0,OA1]
    A(ldK(0,vKa), ldV(0,vVa), "s_waitcnt lgkmcnt(2)", mfma32(S0, KB_, QA0, "0"))
    vFv=112; vFz=113; vFa=114; vFb=115
    A(f"s_lshl_b32 s34, s{sJ}, 10", f"s_lshl_b32 s35, s{sH}, 5", "s_add_u32 s34, s34, s35", f"s_lshl_b32 s35, s{sW}, 2", "s_add_u32 s34, s34, s35",
      f"s_add_u32 s35, s34, {FL+FL_F2A}", f"s_add_u32 s34, s34, {FL+FL_F2B}")
    A(f"v_mov_b32 v{vFv}, s{sNONCE}", f"v_mov_b32 v{vFz}, 0")
    A(f"v_lshrrev_b32 v{vFa}, 1, v{LANE}", f"v_lshlrev_b32 v{vFa}, 5, v{vFa}", f"v_and_b32 v{vT}, 1, v{LANE}", f"v_lshl_add_u32 v{vFa}, v{vT}, 4, v{vFa}",
      f"s_and_b32 s36, s{sI}, 3", "s_lshl_b32 s36, s36, 2", f"v_add_u32 v{vFa}, s36, v{vFa}", f"s_lshl_b32 s36, s{sX}, 10", f"s_add_u32 s36, s36, {FL+FL_F2B}")
    A("s_mov_b32 s53, 4", "s_setprio 3", "s_nop 7", "s_nop 1")
    A(".p2align 3", "A_loop:")
    A("s_cmp_eq_u32 s53, 3", "s_cbranch_scc1 A_it1", "s_cmp_eq_u32 s53, 2", "s_cbranch_scc1 A_it2", "s_cmp_eq_u32 s53, 1", "s_cbranch_scc1 A_it3", "A_body:")
    NK=8
    units=[(t,qi) for t in range(NK) for qi in range(2)]
    for u,(t,qi) in enumerate(units):
        Sc=S0 if u%2==0 else S1; Sn=S1 if u%2==0 else S0
        tn,qn=(t,1) if qi==0 else (t+1,0)
        tp,qp=(t-1,1) if qi==0 else (t,0)
        QK=[mfma32(Sn, KB_+4*(tn%2), Qr[qn], "0")]
        PV1=[mfma32(Or[qp], VB_+8*(tp%2)+4, P+4, Or[qp])]
        PV0=[mfma32(Or[qi], VB_+8*(t%2), P, Or[qi])]
        ld=[];wK=[];wV=[]
        if qi==0: ld=ldK(t+1,vKa)+ldV(t+1,vVa); wV=["s_waitcnt lgkmcnt(3)"]
        else: wK=["s_waitcnt lgkmcnt(2)"]
        unit(A,Sc,QK,PV1,ld,wK,wV,PV0)
    A(f"v_add_u32 v{vKa}, {NK*1024}, v{vKa}", f"v_add_u32 v{vVa}, {NK*1024}, v{vVa}")
    A("s_sub_u32 s53, s53, 1", "s_cmp_lg_u32 s53, 0", "s_cbranch_scc1 A_loop")
    A("s_branch A_after")
    A("A_it1:", "s_setprio 2", "s_waitcnt vmcnt(0)", "s_mov_b64 exec, 1", f"buffer_store_dword v{vFv}, v{vFz}, {W_}, s34 offen sc1", "s_mov_b64 exec, -1")
    if 'wbl2' in opt:
        A(f"s_cmp_lg_u32 s{sI}, 0", "s_cbranch_scc1 A_body", f"s_cmp_lg_u32 s{sW}, 0", "s_cbranch_scc1 A_body", "buffer_wbl2 sc1")
    A("s_branch A_body")
    A("A_it2:", "s_setprio 1")
    if 'nopt3' not in opt:
        vP=116
        A(f"s_and_b32 s44, s{sI}, 3", f"s_lshr_b32 s45, s{sI}, 2", "s_and_b32 s46, s44, 1", "s_lshl_b32 s46, s46, 8", f"s_lshl_b32 s47, s{sW}, 5", "s_add_u32 s46, s46, s47",
          f"v_and_b32 v{vP}, 31, v{LANE}", f"v_add_u32 v{vP}, s46, v{vP}", f"v_lshlrev_b32 v{vP}, 10, v{vP}", "s_lshl_b32 s45, s45, 7",
          "s_cmp_lt_u32 s44, 2", f"s_cselect_b32 s48, s{pWOA}, s{pWOB}", f"s_cselect_b32 s49, s{pWOA+1}, s{pWOB+1}")
        A(f"s_mov_b32 s{SRD_PT}, s48", f"s_mov_b32 s{SRD_PT+1}, s49", f"s_mov_b32 s{SRD_PT+2}, {512*512*2}", f"s_mov_b32 s{SRD_PT+3}, 0x00020000",
          f"buffer_load_dword v{vP+1}, v{vP}, s[{SRD_PT}:{SRD_PT+3}], s45 offen")
        if 'ptout' in opt:
            A(f"s_lshl_b32 s46, s{sX}, 8", "s_lshl_b32 s47, s44, 6", "s_add_u32 s46, s46, s47", f"s_lshl_b32 s47, s{sW}, 3", "s_add_u32 s46, s46, s47",
              f"v_and_b32 v{vP}, 7, v{LANE}", f"v_add_u32 v{vP}, s46, v{vP}", f"v_lshlrev_b32 v{vP}, 10, v{vP}",
              f"s_mov_b32 s{SRD_PT}, s{pOUT}", f"s_mov_b32 s{SRD_PT+1}, s{pOUT+1}", f"s_mov_b32 s{SRD_PT+2}, {2048*512*2}", f"s_mov_b32 s{SRD_PT+3}, 0x00020000",
              f"buffer_load_dword v{vP+2}, v{vP}, s[{SRD_PT}:{SRD_PT+3}], s45 offen")
    A("s_branch A_body")
    A("A_it3:", "s_setprio 0", f"buffer_load_dword v{vFb}, v{vFa}, {W_}, s36 offen sc1", "s_branch A_body")
    A("A_after:")
    A(mfma32(OA1, VB_+8*((NK-1)%2)+4, P+4, OA1))
    A("s_waitcnt lgkmcnt(0)", "s_nop 7", "s_nop 3")
    if 'dup' in opt: A("s_sub_u32 s54, s54, 1", "s_cmp_lg_u32 s54, 0", "s_cbranch_scc1 A_dup")
    ST.rt("a_loop")
    A(f"s_mul_i32 s43, s{sW}, 2560", f"s_add_u32 s43, s43, {LDS_KB}", f"v_add_u32 v{vT}, s43, v{vL16}",
      f"v_lshlrev_b32 v{vT2}, 2, v{LANE}", f"v_add_u32 v{vT2}, s43, v{vT2}")
    A(f"ds_write_b128 v{vT}, {vr(OA1,4)}", f"ds_write_b128 v{vT}, {vr(OA1+4,4)} offset:1024", f"ds_write_b32 v{vT2}, v{OA1+8} offset:2048")
    A(f"s_xor_b32 s44, s{sW}, 4", "s_mul_i32 s43, s44, 2560", f"s_add_u32 s43, s43, {LDS_KB}", f"v_add_u32 v{vT}, s43, v{vL16}",
      f"v_lshlrev_b32 v{vT2}, 2, v{LANE}", f"v_add_u32 v{vT2}, s43, v{vT2}")
    A("s_waitcnt lgkmcnt(0)", "s_barrier")
    A(f"ds_read_b128 {vr(S0,4)}, v{vT}", f"ds_read_b128 {vr(S0+4,4)}, v{vT} offset:1024", f"ds_read_b32 v{S0+8}, v{vT2} offset:2048")
    A("s_waitcnt lgkmcnt(0)")
    for i in range(9): A(f"v_add_f32 v{OA0+i}, v{OA0+i}, v{S0+i}")
    check_range(A,OA0,"A_ok")
    A("s_mov_b32 s50, 0", "s_mov_b32 s51, 0", "s_mov_b32 s52, 64")
    A(f"v_add_u32 v{vKs}, {LDS_KA}, v{vL16}", f"v_add_u32 v{vVs}, {LDS_VA}, v{VL}")
    slow_pass(A,"af1",QA0,OA0,True,50,51,52)
    slow_pass(A,"af2",QA0,OA0,False,50,51,52)
    bcast_l(A,OA0)
    A("A_ok:")
    finalize(A,OA0,32)

def phase3(A, ST, opt):
    W_=f"s[{SRD_WS}:{SRD_WS+3}]"
    lane=LANE
    vFv=112; vFz=113; vFa=114; vFb=115
    srd(A,SRD_A,pWOA,512*512*2); srd(A,SRD_B,pWOB,512*512*2); srd(A,SRD_C,pOUT,2048*512*2)
    SA=f"s[{SRD_A}:{SRD_A+3}]"; SB=f"s[{SRD_B}:{SRD_B+3}]"
    A(f"s_and_b32 s50, s{sI}, 3", f"s_lshr_b32 s51, s{sI}, 2")
    A(f"s_and_b32 s52, s{sW}, 1", f"s_bfe_u32 s53, s{sW}, 0x10001", f"s_lshr_b32 s54, s{sW}, 2")
    vW=4
    A(f"v_lshrrev_b32 v5, 3, v{lane}", "v_lshlrev_b32 v5, 10, v5", f"v_bfe_u32 v6, v{lane}, 4, 1", "v_lshlrev_b32 v6, 2, v6", f"v_and_b32 v7, 7, v{lane}",
      "v_xor_b32 v6, v6, v7", "v_lshl_add_u32 v5, v6, 4, v5", "s_lshl_b32 s42, s51, 7", f"v_add_u32 v{vW}, s42, v5", f"v_lshlrev_b32 v3, 4, v{lane}")
    A(f"s_lshl_b32 s42, s{sX}, 3", "s_lshl_b32 s43, s50, 1", "s_add_u32 s42, s42, s43", "s_lshl_b32 s55, s42, 16", f"s_add_u32 s55, s55, {OF}",
      "s_lshl_b32 s43, s53, 14", "s_lshl_b32 s44, s54, 12", "s_add_u32 s43, s43, s44",
      "s_lshl_b32 s56, s52, 15", "s_add_u32 s56, s56, s43", "s_add_u32 s56, s56, 0x10000",
      "s_lshl_b32 s57, s52, 16", "s_add_u32 s57, s57, s43", "s_add_u32 s57, s57, s55")
    def odma(br):
        L=[]
        for r in range(2):
            for ii in range(4):
                L+= [f"s_add_u32 m0, s56, {r*8192+ii*1024}", f"s_add_u32 s45, s57, {br*32768+r*8192+ii*1024}", f"buffer_load_dwordx4 v3, {W_}, s45 offen sc1 lds"]
        return L
    def wdma(S_, n, lds0, row0_sgpr_expr):
        L=[]
        for ii in range(n):
            L+= [f"s_add_u32 m0, s58, {lds0+ii*1024}", f"s_add_u32 s45, s59, {ii*8192}", f"buffer_load_dwordx4 v{vW}, {S_}, s45 offen lds"]
        return L
    A(f"s_lshl_b32 s58, s{sW}, 13", f"s_lshl_b32 s59, s{sW}, 16")
    A("s_barrier")
    A(wdma(SB,8,0,None))
    A("s_waitcnt vmcnt(8)")
    A("s_mov_b64 exec, 1", f"buffer_store_dword v{vFv}, v{vFz}, {W_}, s35 offen sc1", "s_mov_b64 exec, -1")
    ST.rt("o_stored")
    A(f"s_mov_b32 s46, {SPIN_MAX}")
    A("P3_bchk:", f"v_cmp_ne_u32 vcc, s{sNONCE}, v{vFb}", "s_nop 1", "s_cmp_eq_u64 vcc, 0", "s_cbranch_scc1 P3_bok",
      "s_sub_u32 s46, s46, 1", "s_cmp_eq_u32 s46, 0", "s_cbranch_scc1 P3_bok", "s_sleep 1",
      f"buffer_load_dword v{vFb}, v{vFa}, {W_}, s36 offen sc1", "s_waitcnt vmcnt(0)", "s_branch P3_bchk", "P3_bok:")
    A(odma(1))
    A(f"v_and_b32 v12, 31, v{lane}", f"s_lshl_b32 s44, s{sX}, 8", "s_lshl_b32 s45, s50, 6", "s_add_u32 s44, s44, s45", "s_lshl_b32 s45, s52, 5", "s_add_u32 s44, s44, s45",
      "v_add_u32 v12, s44, v12", "v_lshlrev_b32 v13, 2, v12", f"s_mov_b32 s45, {GOFF}", f"buffer_load_dword v14, v13, {W_}, s45 offen sc1")
    A(f"s_lshl_b32 s58, s{sW}, 12", f"s_lshl_b32 s59, s{sW}, 15")
    A(wdma(SA,4,131072,None))
    A(f"v_lshrrev_b32 v8, 5, v{lane}",
      f"v_bfe_u32 v5, v{lane}, 2, 2", "v_lshl_add_u32 v5, v8, 2, v5", "v_lshlrev_b32 v5, 7, v5",
      f"v_bfe_u32 v6, v{lane}, 4, 1", "v_lshlrev_b32 v6, 1, v6", f"v_bfe_u32 v7, v{lane}, 1, 1", "v_add_u32 v6, v6, v7",
      "s_lshl_b32 s42, s53, 2", "v_add_u32 v6, s42, v6",
      f"v_bfe_u32 v7, v{lane}, 3, 1", "v_lshlrev_b32 v7, 2, v7", "v_xor_b32 v6, v6, v7", "v_lshl_add_u32 v5, v6, 4, v5",
      f"v_and_b32 v7, 1, v{lane}", "v_lshl_add_u32 v5, v7, 3, v5",
      "s_lshl_b32 s42, s54, 15", "v_add_u32 v10, s42, v5")
    A("s_cmp_eq_u32 s54, 0", "s_cselect_b32 s42, 0x20000, 0", "v_add_u32 v9, s42, v5")
    A("s_lshl_b32 s43, s52, 15", "s_lshl_b32 s44, s54, 14", "s_add_u32 s43, s43, s44", "s_add_u32 s43, s43, 0x10000", "v_add_u32 v11, s43, v3")
    ACA=16; ACB=48; WR=[32,36,40,44]; OFr=[64,68,72,76]; WA=128
    for i in range(16): A(f"v_mov_b32 v{ACB+i}, 0", f"v_mov_b32 v{ACA+i}, 0")
    A("s_waitcnt vmcnt(5)", "s_barrier")
    ST.rt("w_landed")
    def wrd(dst, base, n): return [f"ds_read_b64_tr_b16 {vr(dst,2)}, v{base} offset:{(16*n)*128}", f"ds_read_b64_tr_b16 {vr(dst+2,2)}, v{base} offset:{(16*n+8)*128}"]
    def rd3(n): return wrd(WR[n%4],10,n)+[f"ds_read_b128 {vr(OFr[n%4],4)}, v11 offset:{n*1024}"]
    for n in range(3): A(rd3(n))
    for n in range(16):
        if n+3<16: A(rd3(n+3))
        A(f"s_waitcnt lgkmcnt({3*min(3,15-n)})")
        A(mfma32(ACB, WR[n%4], OFr[n%4], ACB))
    ST.rt("b_half")
    A("s_waitcnt vmcnt(0)", "s_barrier")
    A(f"s_add_u32 s59, s59, {256*1024}")
    A(wdma(SA,4,0,None))
    A(f"s_add_u32 s36, s36, {FL_F2A-FL_F2B}")
    A(f"s_cmp_lg_u32 s{sW}, 0", "s_cbranch_scc1 P3_askip", f"s_mov_b32 s46, {SPIN_MAX}")
    A("P3_achk:", f"buffer_load_dword v{vFb}, v{vFa}, {W_}, s36 offen sc1", "s_waitcnt vmcnt(0)",
      f"v_cmp_ne_u32 vcc, s{sNONCE}, v{vFb}", "s_nop 1", "s_cmp_eq_u64 vcc, 0", "s_cbranch_scc1 P3_askip",
      "s_sub_u32 s46, s46, 1", "s_cmp_eq_u32 s46, 0", "s_cbranch_scc1 P3_askip", "s_branch P3_achk", "P3_askip:")
    A("s_waitcnt vmcnt(0)", "s_barrier")
    ST.rt("p2_flags")
    A(odma(0))
    A("s_cmp_lg_u32 s2, 0", "s_cbranch_scc1 P3_noep", f"s_mov_b32 s43, {FL+FL_EPOCH}")
    setflag(A,"ep",43,5)
    A("P3_noep:")
    for n in range(16):
        A(wrd(WA+4*n,9,n))
        if n%4==3: A("s_waitcnt lgkmcnt(4)")
    for r in range(2):
        A(f"s_waitcnt vmcnt({4-4*r}) lgkmcnt(0)", "s_barrier")
        for s_ in range(4): A(f"ds_read_b128 {vr(OFr[s_],4)}, v11 offset:{(8*r+s_)*1024}")
        for s_ in range(8):
            n=8*r+s_
            A(f"s_waitcnt lgkmcnt({3 if s_<5 else 7-s_})")
            A(mfma32(ACA, WA+4*n, OFr[s_%4], ACA))
            if s_<4: A(f"ds_read_b128 {vr(OFr[s_%4],4)}, v11 offset:{(8*r+s_+4)*1024}")
    ST.rt("p3_mfma")
    A("s_nop 7","s_nop 3")
    for i in range(16): A(f"v_sub_f32 v{ACA+i}, v{ACA+i}, v{ACB+i}")
    for i in range(16): A(f"v_fma_f32 v{ACA+i}, v14, v{ACA+i}, v{ACB+i}")
    ACC=ACA
    A(f"s_lshl_b32 s43, s{sW}, 11", "v_add_u32 v5, s43, v3", f"s_xor_b32 s44, s{sW}, 4", "s_lshl_b32 s44, s44, 11", "v_add_u32 v6, s44, v3")
    PK=40
    A("s_cmp_eq_u32 s54, 0", "s_cbranch_scc0 P3_k1")
    for kq,lab in ((0,None),(1,"P3_k1")):
        if lab: A("s_branch P3_kdone", f"{lab}:")
        own=ACC+8*kq; oth=ACC+8*(1-kq)
        A(f"ds_write_b128 v5, {vr(oth,4)}", f"ds_write_b128 v5, {vr(oth+4,4)} offset:1024", "s_waitcnt lgkmcnt(0)", "s_barrier")
        A(f"ds_read_b128 {vr(32,4)}, v6", f"ds_read_b128 {vr(36,4)}, v6 offset:1024", "s_waitcnt lgkmcnt(0)")
        for i in range(8): A(f"v_add_f32 v{own+i}, v{own+i}, v{32+i}")
        for i in range(4): A(f"v_cvt_pk_bf16_f32 v{PK+i}, v{own+2*i}, v{own+2*i+1}")
    A("P3_kdone:")
    A("s_nop 1", f"v_permlane32_swap_b32 v{PK}, v{PK+2}", f"v_permlane32_swap_b32 v{PK+1}, v{PK+3}")
    A("v_lshlrev_b32 v5, 10, v12", "v_lshl_add_u32 v5, v8, 4, v5",
      "s_lshl_b32 s42, s51, 7", "s_lshl_b32 s43, s53, 6", "s_add_u32 s42, s42, s43", "s_lshl_b32 s43, s54, 5", "s_add_u32 s42, s42, s43")
    A(f"buffer_store_dwordx4 {vr(PK,4)}, v5, s[{SRD_C}:{SRD_C+3}], s42 offen" + (" sc1" if 'outsc1' in opt else "") + (" nt" if 'outnt' in opt else ""))

def gen(opt=()):
    A=Asm(); ST=Stamps(A,'stamps' in opt)
    pr=[o[6:] for o in opt if o.startswith('probe=')]
    if pr: ST.probe=pr[0]
    cy=[o[4:] for o in opt if o.startswith('cyc=')]
    if cy: ST.cp=cy[0].split(':')
    A(f".globl {NAME}", ".p2align 8", f".type {NAME},@function", f"{NAME}:")
    A("s_cmp_ge_u32 s2, 256", "s_cbranch_scc1 L_done")
    if 'scramble' in opt: A("s_lshr_b32 s3, s2, 3", "s_and_b32 s2, s2, 7", "s_lshl_b32 s2, s2, 5", "s_or_b32 s2, s2, s3")
    A(f"s_load_dwordx2 s[{sWS}:{sWS+1}], s[0:1], 72", "s_load_dwordx2 s[42:43], s[0:1], 0", "s_load_dwordx2 s[44:45], s[0:1], 8",
      "s_load_dwordx2 s[46:47], s[0:1], 32", "s_load_dwordx2 s[48:49], s[0:1], 48",
      f"s_load_dwordx2 s[{pWOA}:{pWOA+1}], s[0:1], 16", f"s_load_dwordx2 s[{pWOB}:{pWOB+1}], s[0:1], 40", f"s_load_dwordx2 s[{pOUT}:{pOUT+1}], s[0:1], 56")
    rot=[int(o[3:]) for o in opt if o.startswith('rot')]
    if rot: A(f"s_add_u32 s{sX}, s2, {rot[0]}", f"s_and_b32 s{sX}, s{sX}, 7")
    else: A(f"s_and_b32 s{sX}, s2, 7")
    A(f"s_lshr_b32 s{sI}, s2, 3", f"s_lshr_b32 s{sJ}, s{sI}, 2", f"s_and_b32 s{sA}, s{sI}, 3",
      f"s_lshr_b32 s{sBR}, s{sA}, 1", f"s_and_b32 s50, s{sA}, 1", f"s_lshl_b32 s{sRB}, s{sJ}, 1", f"s_add_u32 s{sRB}, s{sRB}, s50",
      f"s_lshl_b32 s{sH}, s{sX}, 2", f"s_add_u32 s{sH}, s{sH}, s{sA}")
    A("v_lshrrev_b32 v1, 6, v0", "v_and_b32 v2, 63, v0", "s_nop 0", f"v_readfirstlane_b32 s{sW}, v1")
    if 'pf' in opt:
        A("s_getpc_b64 s[50:51]", "L_pc:", f"s_sub_u32 s50, s50, (L_pc-{NAME})", "s_subb_u32 s51, s51, 0")
        A(f"s_lshl_b32 s52, s{sI}, 1", f"s_add_u32 s52, s52, s{sW}", "s_lshl_b32 s52, s52, 10", "v_lshlrev_b32 v3, 4, v2", "v_add_u32 v3, s52, v3")
        A(f"s_cmp_lt_u32 s{sW}, 2", "s_cbranch_scc0 L_nopf", f"s_cmp_lt_u32 s52, (L_done-{NAME}-1024)", "s_cbranch_scc0 L_nopf",
          "global_load_dwordx4 v[252:255], v3, s[50:51]", "L_nopf:")
    if 'spin60' in opt: A("s_memrealtime s[90:91]")
    A("s_waitcnt lgkmcnt(0)")
    wb=[int(o[2:]) for o in opt if o.startswith('wb') and o[2:].isdigit()]
    if wb: A(f"s_add_u32 s{sWS}, s{sWS}, {wb[0]<<20}", f"s_addc_u32 s{sWS+1}, s{sWS+1}, 0")
    ST.rt("start"); ST.cyc("cyc0")
    A(f"s_add_u32 s6, s{sWS}, {FL+FL_EPOCH}", f"s_addc_u32 s7, s{sWS+1}, 0", "s_load_dword s3, s[6:7], 0")
    srd(A,SRD_WS,sWS,WS_SIZE)
    srd(A,SRD_A,42,2048*512*2)
    A(f"s_cmp_eq_u32 s{sBR}, 0", "s_cselect_b32 s44, s44, s46", "s_cselect_b32 s45, s45, s47")
    srd(A,SRD_B,44,512*1536*2)
    srd(A,SRD_C,48,1024)
    phase1(A,ST,opt)
    phase2(A,ST,opt)
    phase3(A,ST,opt)
    if pr:
        A("s_waitcnt vmcnt(0)", "L_probe:", "s_memrealtime s[80:81]", "s_waitcnt lgkmcnt(0)", "s_sub_u32 s80, s80, s100", *(["s_lshr_b32 s81, s63, 2", "s_add_u32 s81, s81, 6000", "s_cmp_lt_u32 s80, s81"] if cy else ["s_cmp_lt_u32 s80, 6000"]), "s_cbranch_scc1 L_probe")
    if 'spin60' in opt:
        A("s_waitcnt vmcnt(0)", "L_spin:", "s_memrealtime s[80:81]", "s_waitcnt lgkmcnt(0)", "s_sub_u32 s80, s80, s90", "s_cmp_lt_u32 s80, 6000", "s_cbranch_scc1 L_spin")
    if ST.on: A("s_waitcnt vmcnt(0)")
    ST.rt("end"); ST.cyc("cyc1")
    ST.flush(120)
    A("L_done:", "s_endpgm")
    kd=f""".section .rodata,"a"
.p2align 6
.amdhsa_kernel {NAME}
  .amdhsa_next_free_vgpr 256
  .amdhsa_next_free_sgpr 102
  .amdhsa_accum_offset 256
  .amdhsa_group_segment_fixed_size 0
  .amdhsa_kernarg_size 80
  .amdhsa_user_sgpr_count 2
  .amdhsa_user_sgpr_kernarg_segment_ptr 1
  .amdhsa_system_sgpr_workgroup_id_x 1
.end_amdhsa_kernel
"""
    return A.text(), kd, ST.names

if __name__=='__main__':
    import sys, hazard
    out=sys.argv[1]; opt=tuple(sys.argv[2:])
    HDR=open('gated_mix__softmax_full_mha__sliding_block__prompt.s.ref').read().split('\n')
    hdr=[l for l in HDR if l.startswith(';') and 'launch' not in l.lower() and 'Override' not in l and 'grid=ceil' not in l]
    t,kd,names=gen(opt)
    s='\n'.join(hdr)+'\n'+"; @launch grid=(256,1,1) block=(512,1,1) lds=163840\n"+'.amdgcn_target "amdgcn-amd-amdhsa--gfx950"\n.text\n'+t+kd
    open(out,'w').write(s)
    print('hazards',len(hazard.check(t)),'bytes',len(s),'stamps',','.join(names))
    sys.path.insert(0,'cdna_kernels')
    import subprocess
    from cdna_launch import with_harness_metadata, address_register_problem
    open('h.s','w').write(with_harness_metadata(s,NAME,10,launch_lists=True))
    r=subprocess.run(['clang','-x','assembler','-target','amdgcn-amd-amdhsa','-mcpu=gfx950','h.s','-o','h.co'],capture_output=True,text=True)
    if r.returncode: print(r.stderr)
    else:
        print('check:',address_register_problem('h.co',NAME))
        d=subprocess.run(['llvm-objdump','-d','--mcpu=gfx950','h.co'],capture_output=True,text=True).stdout
        import re
        ad=[int(m,16) for m in re.findall(r'// ([0-9A-F]{12}):',d)]
        print('code bytes',ad[-1]-ad[0]-768)
```

```python
from asm import Asm, vr, sr, mfma32
import struct
def f2u(x): return struct.unpack('<I',struct.pack('<f',x))[0]
NAME="gated_mix__softmax_full_mha__sliding_block__prompt_kernel"
QF=0; KF=4<<20; VF=8<<20; GOFF=12<<20; OF=16<<20; FL=30<<20; WS_SIZE=31<<20
FL_EPOCH=0; FL_F0=1024; FL_F1=2048; FL_F2=8192; FL_F2B=16384; FL_F2A=32768
FSTR=16
F1STR=4
STAMP_OFF=32<<20
QSCALE=0.25*1.4426950408889634
NEG=f2u(-2.0**100); LLO=f2u(2.0**-64); LHI=f2u(2.0**64)
SPIN_MAX=1<<20
sNONCE=3; sWS=4
SRD_WS=8; SRD_A=12; SRD_B=16; SRD_C=20; SRD_PT=56
sW=24; sX=25; sI=26; sJ=27; sA=28; sBR=29; sRB=30; sH=31
sMASK=40
sXCC=37; sMODE=39
pWOA=84; pWOB=86; pOUT=88

class Stamps:
    def __init__(s, A, on): s.A=A; s.on=on; s.n=0; s.names=[]; s.skip=('p1_stored',); s.probe=None; s.cp=None
    def rt(s,name):
        if s.cp and name==s.cp[0]: s.A("s_memtime s[96:97]", "s_waitcnt lgkmcnt(0)", "s_mov_b32 s63, s96")
        if s.cp and name==s.cp[1]: s.A("s_memtime s[96:97]", "s_waitcnt lgkmcnt(0)", "s_sub_u32 s63, s96, s63")
        if s.probe==name:
            s.A("s_memrealtime s[100:101]", "s_waitcnt lgkmcnt(0)")
        if not s.on or name in s.skip: return
        s.A("s_memrealtime s[80:81]", "s_waitcnt lgkmcnt(0)", f"s_mov_b32 s{64+s.n}, s80"); s.names.append(name); s.n+=1
    def cyc(s,name):
        if not s.on: return
        s.A("s_memtime s[80:81]", "s_waitcnt lgkmcnt(0)", f"s_mov_b32 s{64+s.n}, s80"); s.names.append(name); s.n+=1
    def flush(s, vtmp):
        if not s.on: return
        A=s.A
        A(f"s_mov_b32 s92, s{sWS}", f"s_mov_b32 s93, s{sWS+1}", "s_mov_b32 s94, 0x10000000", "s_mov_b32 s95, 0x00020000")
        A(f"s_lshl_b32 s80, s2, 3", f"s_add_u32 s80, s80, s{sW}", "s_lshl_b32 s80, s80, 6", f"s_add_u32 s80, s80, {STAMP_OFF}")
        for i in range(s.n):
            A(f"v_mov_b32 v{vtmp}, s{64+i}", f"v_mov_b32 v{vtmp+1}, {4*i}", f"buffer_store_dword v{vtmp}, v{vtmp+1}, s[92:95], s80 offen")

def srd(A, s, base, size):
    A(f"s_mov_b32 s{s}, s{base}", f"s_mov_b32 s{s+1}, s{base+1}", f"s_mov_b32 s{s+2}, {size}", f"s_mov_b32 s{s+3}, 0x00020000")

def poll(A, tag, flag_off_sgpr, vaddr, vtmp, stride=FSTR):
    A(f"s_cmp_lg_u32 s{sW}, 0", f"s_cbranch_scc1 L_{tag}_skip")
    A(f"v_and_b32 v{vaddr}, 31, v0", f"v_mul_u32_u24 v{vaddr}, {stride}, v{vaddr}", f"s_mov_b32 s42, {SPIN_MAX}")
    A(f"L_{tag}_loop:")
    A(f"buffer_load_dword v{vtmp}, v{vaddr}, s[{SRD_WS}:{SRD_WS+3}], s{flag_off_sgpr} offen sc1")
    A("s_waitcnt vmcnt(0)")
    A(f"v_cmp_ne_u32 vcc, s{sNONCE}, v{vtmp}", "s_nop 1", "s_cmp_eq_u64 vcc, 0", f"s_cbranch_scc1 L_{tag}_skip")
    A("s_sub_u32 s42, s42, 1", "s_cmp_eq_u32 s42, 0", f"s_cbranch_scc1 L_{tag}_skip", "s_sleep 1", f"s_branch L_{tag}_loop")
    A(f"L_{tag}_skip:")

def setflag(A, tag, off_sgpr, vt, sc=" sc1"):
    A(f"s_cmp_lg_u32 s{sW}, 0", f"s_cbranch_scc1 L_{tag}_nf")
    A(f"v_mov_b32 v{vt}, s{sNONCE}", f"v_mov_b32 v{vt+1}, 0", "s_mov_b64 exec, 1",
      f"buffer_store_dword v{vt}, v{vt+1}, s[{SRD_WS}:{SRD_WS+3}], s{off_sgpr} offen{sc}", "s_mov_b64 exec, -1")
    A(f"L_{tag}_nf:")

def mfma16(d,a,b,c): return f"v_mfma_f32_16x16x32_bf16 {vr(d,4)}, {vr(a,4)}, {vr(b,4)}, {vr(c,4)}"
def w_src_addr(A, v, t5, t6, t7, lane, cb_sgpr, stmp):
    A(f"v_lshrrev_b32 v{t5}, 3, v{lane}", f"v_lshlrev_b32 v{t5}, 10, v{t5}", f"v_bfe_u32 v{t6}, v{lane}, 4, 1", f"v_lshlrev_b32 v{t6}, 2, v{t6}", f"v_and_b32 v{t7}, 7, v{lane}",
      f"v_xor_b32 v{t6}, v{t6}, v{t7}", f"v_lshl_add_u32 v{t5}, v{t6}, 4, v{t5}", f"s_lshl_b32 s{stmp}, s{cb_sgpr}, 7", f"v_add_u32 v{v}, s{stmp}, v{t5}")
def w_frag_addr(A, v, t6, t7, lane, ct_sgpr, stmp):
    A(f"v_lshrrev_b32 v{t6}, 5, v{lane}", f"v_bfe_u32 v{v}, v{lane}, 2, 2", f"v_lshl_add_u32 v{v}, v{t6}, 2, v{v}", f"v_lshlrev_b32 v{v}, 7, v{v}",
      f"v_bfe_u32 v{t6}, v{lane}, 4, 1", f"v_lshlrev_b32 v{t6}, 1, v{t6}", f"v_bfe_u32 v{t7}, v{lane}, 1, 1", f"v_add_u32 v{t6}, v{t6}, v{t7}",
      f"s_lshl_b32 s{stmp}, s{ct_sgpr}, 2", f"v_add_u32 v{t6}, s{stmp}, v{t6}",
      f"v_bfe_u32 v{t7}, v{lane}, 3, 1", f"v_lshlrev_b32 v{t7}, 2, v{t7}", f"v_xor_b32 v{t6}, v{t6}, v{t7}", f"v_lshl_add_u32 v{v}, v{t6}, 4, v{v}",
      f"v_and_b32 v{t7}, 1, v{lane}", f"v_lshl_add_u32 v{v}, v{t7}, 3, v{v}")
def wrd2(dst, base, n): return [f"ds_read_b64_tr_b16 {vr(dst,2)}, v{base} offset:{(16*n)*128}", f"ds_read_b64_tr_b16 {vr(dst+2,2)}, v{base} offset:{(16*n+8)*128}"]

def phase1(A, ST, opt):
    lane=2; vX=3; vW=4; t0=5; t1=6; t2=7; g_t=8
    W_=f"s[{SRD_WS}:{SRD_WS+3}]"
    GX=232; GW=236
    PT=240; F0V=244; vF0=246; vPT=247
    PTF="sc1"
    if 'ptnt' in opt: PTF="sc1 nt"
    if 'ptplain' in opt: PTF=""
    PTC=int([o[3:] for o in opt if o.startswith('ptc')][0]) if any(o.startswith('ptc') for o in opt) else 5
    if 'nopt1' in opt: PTC=99
    STG=40960
    A(f"v_lshlrev_b32 v24, 4, v{lane}")
    A(f"s_cmp_ge_u32 s{sW}, 4", "s_cbranch_scc1 P1_loader")
    n_save=ST.n; names_save=list(ST.names)
    def gate_loads():
        A(f"s_lshl_b32 s62, s{sJ}, 8", f"s_and_b32 s42, s{sW}, 3", "s_lshl_b32 s42, s42, 6", "s_add_u32 s62, s62, s42", f"s_lshl_b32 s42, s{sH}, 1", "s_add_u32 s62, s62, s42",
          f"s_lshr_b32 s42, s{sW}, 2", "s_add_u32 s62, s62, s42", "s_lshl_b32 s42, s62, 10",
          f"buffer_load_dwordx4 {vr(GX,4)}, v24, s[{SRD_A}:{SRD_A+3}], s42 offen", f"buffer_load_dwordx4 {vr(GW,4)}, v24, s[{SRD_C}:{SRD_C+3}], 0 offen")
    gate_loads()
    if 'tlbw' in opt:
        sh=int([o[4:] for o in opt if o.startswith('tlbs')][0]) if any(o.startswith('tlbs') for o in opt) else 16
        A(f"v_lshlrev_b32 v241, {sh}, v{lane}", f"s_lshl_b32 s42, s{sX}, 7", f"buffer_load_dword v242, v241, s[{SRD_B}:{SRD_B+3}], s42 offen sc1")
    A(f"s_and_b32 s34, s{sW}, 1", f"s_lshr_b32 s35, s{sW}, 1")
    A(f"s_lshl_b32 s42, s{sX}, 2", "s_lshl_b32 s43, s35, 1", "s_add_u32 s42, s42, s43", f"s_lshl_b32 s43, s{sBR}, 5", "s_add_u32 s42, s42, s43",
      "s_lshl_b32 s42, s42, 16", f"s_lshl_b32 s43, s{sRB}, 1", "s_add_u32 s43, s43, s34", "s_lshl_b32 s43, s43, 11", "s_add_u32 s56, s42, s43")
    A(f"v_and_b32 v{vF0}, 31, v{lane}", f"v_lshlrev_b32 v{vF0}, 2, v{vF0}", f"v_lshrrev_b32 v{t0}, 5, v{lane}", f"v_lshl_add_u32 v{vF0}, v{t0}, 10, v{vF0}",
      f"s_lshl_b32 s58, s{sX}, 7", f"s_add_u32 s58, s58, {FL+FL_F0}", f"s_getreg_b32 s{sXCC}, hwreg(HW_REG_XCC_ID, 0, 4)")
    aX=[10,11]; aW=[18,19]; m=20
    A(f"v_lshrrev_b32 v{g_t}, 4, v{lane}", f"v_and_b32 v{m}, 15, v{lane}", f"v_lshrrev_b32 v{t0}, 1, v{m}",
      "s_lshl_b32 s42, s34, 6", f"v_add_u32 v{t1}, s42, v{m}", f"v_lshlrev_b32 v{t1}, 7, v{t1}")
    for s_ in range(2):
        A(f"v_or_b32 v{t2}, {4*s_}, v{g_t}", f"v_xor_b32 v{t2}, v{t2}, v{t0}", f"v_lshl_add_u32 v{aX[s_]}, v{t2}, 4, v{t1}")
    A(f"v_bfe_u32 v{t0}, v{lane}, 2, 2", f"v_lshl_add_u32 v{t1}, v{g_t}, 3, v{t0}", f"v_lshlrev_b32 v{t1}, 7, v{t1}",
      f"v_and_b32 v21, 1, v{lane}", f"v_lshl_add_u32 v{t1}, v21, 3, v{t1}", f"v_add_u32 v{t1}, 16384, v{t1}",
      f"v_bfe_u32 v{t2}, v{lane}, 3, 1", f"v_bfe_u32 v21, v{lane}, 4, 1", f"v_lshl_or_b32 v{t2}, v21, 1, v{t2}", f"v_lshlrev_b32 v{t2}, 1, v{t2}",
      f"v_bfe_u32 v21, v{lane}, 1, 1", "s_lshl_b32 s42, s35, 2", "v_or_b32 v21, s42, v21")
    for hd in range(2):
        A(f"v_or_b32 v22, {2*hd}, v21", f"v_xor_b32 v22, v{t2}, v22", f"v_lshl_add_u32 v{aW[hd]}, v22, 4, v{t1}")
    def l2pf():
        if 'l2pf' in opt:
            C0=int([o[2:] for o in opt if o.startswith('c0')][0]) if any(o.startswith('c0') for o in opt) else 3
            NCH=8-C0
            vq=240
            A(f"s_lshl_b32 s42, s{sRB}, 7", f"s_lshl_b32 s43, s{sBR}, 6", "s_add_u32 s42, s42, s43", f"s_lshl_b32 s43, s{sW}, 4", "s_add_u32 s42, s42, s43",
              f"v_add_u32 v{vq}, s42, v{m}", f"v_lshlrev_b32 v{vq}, 10, v{vq}", f"v_lshl_add_u32 v{vq}, v{g_t}, 7, v{vq}", f"s_movk_i32 s43, {128*C0}",
              f"buffer_load_dword v{vq+2}, v{vq}, s[{SRD_A}:{SRD_A+3}], s43 offen sc1" if 'pfx' in opt else "s_nop 0")
            if NCH>4 and 'pfx' in opt: A(f"buffer_load_dword v{vq+3}, v{vq}, s[{SRD_A}:{SRD_A+3}], s43 offen offset:512 sc1")
            A(f"v_mul_u32_u24 v{vq}, 43, v{lane}", f"v_lshrrev_b32 v{vq}, 7, v{vq}", f"v_mul_u32_u24 v{vq+1}, 3, v{vq}", f"v_sub_u32 v{vq+1}, v{lane}, v{vq+1}",
              f"s_mul_i32 s42, s{sRB}, {4*NCH}", f"s_mul_i32 s43, s{sW}, {NCH}", "s_add_u32 s42, s42, s43", f"s_add_u32 s42, s42, {64*C0}",
              f"v_add_u32 v{vq}, s42, v{vq}", f"v_mul_u32_u24 v{vq}, 3072, v{vq}", f"v_lshl_add_u32 v{vq}, v{vq+1}, 10, v{vq}",
              f"v_cmp_gt_u32 vcc, {3*NCH}, v{lane}", f"v_mov_b32 v{vq+1}, 0x7ff00000", f"s_lshl_b32 s43, s{sX}, 7", f"v_cndmask_b32 v{vq}, v{vq+1}, v{vq}, vcc",
              f"buffer_load_dword v{vq+2}, v{vq}, s[{SRD_B}:{SRD_B+3}], s43 offen sc1{' nt' if 'wnt' in opt else ''}")
    if 'pfearly' in opt: l2pf()
    def T(hd,a,rt): return 32+48*hd+16*a+4*rt
    XF=[128,144]; WF=[[160,164,168],[172,176,180]]
    for i in range(96): A(f"v_mov_b32 v{32+i}, 0")
    def wrd(hd,a,s_):
        if 'p1noread' in opt: return ["s_nop 0","s_nop 0"]
        return [f"ds_read_b64_tr_b16 {vr(WF[hd][a]+2*rr,2)}, v{aW[hd]} offset:{a*8192+(32*s_+4*rr)*128}" for rr in range(2)]
    def xrd(s_,rt):
        if 'p1noread' in opt: return ["s_nop 0"]
        return [f"ds_read_b128 {vr(XF[s_]+4*rt,4)}, v{aX[s_]} offset:{rt*2048}"]
    def setA(s_): return wrd(0,0,s_)+xrd(s_,0)+xrd(s_,1)+wrd(0,1,s_)+xrd(s_,2)+xrd(s_,3)+wrd(0,2,s_)
    def setB(s_): return wrd(1,0,s_)+wrd(1,1,s_)+wrd(1,2,s_)
    def mf(hd,s_):
        x=XF[s_]; w=WF[hd]; L=[]
        for rt in (0,1): L.append(mfma16(T(hd,0,rt), w[0], x+4*rt, T(hd,0,rt)))
        for rt in (0,1): L.append(mfma16(T(hd,1,rt), w[1], x+4*rt, T(hd,1,rt)))
        for rt in (2,3): L.append(mfma16(T(hd,0,rt), w[0], x+4*rt, T(hd,0,rt)))
        for rt in (2,3): L.append(mfma16(T(hd,1,rt), w[1], x+4*rt, T(hd,1,rt)))
        for rt in range(4): L.append(mfma16(T(hd,2,rt), x+4*rt, w[2], T(hd,2,rt)))
        return L
    needA=[2,3,5,5,6,7,7,7,9,9,9,9]; needB=[1,1,3,3,3,3,3,3,5,5,5,5]
    def half(mfs, need, nold, new, pre=None, at=None):
        prev=-1; issued=0
        for k in range(12):
            if need[k]>prev:
                A(f"s_waitcnt lgkmcnt({(nold-1-need[k])+issued})"); prev=need[k]
            if pre and k==pre[0]: pre[1]()
            A(mfs[k])
            if k>=at and issued<len(new):
                n=1 if (len(new)-issued)<=(12-k-1) else 2
                n=min(n,len(new)-issued)
                A(new[issued:issued+n]); issued+=n
        assert issued==len(new)
    A("s_mov_b32 s49, 0", "s_mov_b32 s36, 0", f"s_mov_b32 s53, {STG}")
    A("s_barrier")
    A("s_waitcnt lgkmcnt(0)", f"s_mul_i32 s{sNONCE}, s3, 0x9e3779b1", f"s_add_u32 s{sNONCE}, s{sNONCE}, 0x7f4a7c15")
    ST.rt("p1_data")
    A(setA(0))
    if 'pfearly' not in opt: l2pf()
    if 'codepf' in opt:
        A(f"s_cmp_lg_u32 s{sW}, 1", "s_cbranch_scc1 L_nocpf", "s_getpc_b64 s[42:43]", "L_cpf_pc:", "s_add_u32 s42, s42, (P1_after-L_cpf_pc)", "s_addc_u32 s43, s43, 0",
          f"v_lshlrev_b32 v241, 7, v{lane}", "v_min_u32 v242, (L_done-P1_after-8192), v241")
        A("v_min_u32 v243, (L_done-P1_after), v241", "global_load_dword v240, v243, s[42:43]",
          "v_add_u32 v243, 8192, v242", "global_load_dword v240, v243, s[42:43]", "L_nocpf:")
    A(f"s_cmp_lg_u32 s{sW}, 0", "s_cbranch_scc1 L_f0_nf", f"s_add_u32 s42, s{sNONCE}, s{sXCC}", f"s_lshl_b32 s43, s{sI}, 2", "s_add_u32 s43, s43, s58",
      "v_mov_b32 v5, s42", "v_mov_b32 v6, 0", "s_mov_b64 exec, 1", f"buffer_store_dword v5, v6, {W_}, s43 offen sc1", "s_mov_b64 exec, -1", "L_f0_nf:")
    A(".p2align 3", "P1_loop:")
    half(mf(0,0), needA, 10, setB(0), at=2)
    half(mf(1,0), needB, 6, setA(1), at=1)
    half(mf(0,1), needA, 10, setB(1), at=2)
    def boundary():
        A("s_add_u32 s36, s36, 1", "s_cmp_eq_u32 s36, 4", f"s_cselect_b32 s52, {(-3*STG)&0xffffffff:#x}, s53", "s_cselect_b32 s36, 0, s36", "s_waitcnt lgkmcnt(0)")
        for r in aX+aW: A(f"v_add_u32 v{r}, s52, v{r}")
        A("s_cmp_eq_u32 s49, 4", "s_cbranch_scc1 P1_f0ld", "P1_f0back:", "s_barrier")
        if ST.probe and ST.probe.startswith('it'):
            A(f"s_cmp_eq_u32 s49, {ST.probe[2:]}", "s_cbranch_scc0 P1_noprobe", "s_memrealtime s[100:101]", "s_waitcnt lgkmcnt(0)", "P1_noprobe:")
        if 'p1it' in opt:
            A("s_memtime s[80:81]", "s_waitcnt lgkmcnt(0)")
            for k in range(7): A(f"s_mov_b32 s{64+8+k}, s{64+9+k}")
            A(f"s_mov_b32 s{64+15}, s80")
    half(mf(1,1), needB, 6, setA(0), pre=(3,boundary), at=3)
    A("s_add_u32 s49, s49, 1", "s_cmp_lt_u32 s49, 8", "s_cbranch_scc1 P1_loop")
    ST.rt("p1_loop")
    if 'p1it' in opt:
        ST.n=16; ST.flush(210); A("s_waitcnt vmcnt(0)", "s_endpgm")
    A("s_branch P1_after")
    A("P1_f0ld:", f"buffer_load_dword v{F0V}, v{vF0}, {W_}, s58 offen sc1", "s_branch P1_f0back")
    A("P1_after:")
    A("s_waitcnt vmcnt(0)", f"s_mov_b32 s42, {SPIN_MAX}")
    A("P1_chk:", f"v_subrev_u32 v{F0V+1}, s{sNONCE}, v{F0V}", f"v_cmp_gt_u32 vcc, 8, v{F0V+1}", "s_nop 1", "s_cmp_eq_u32 vcc_lo, -1", "s_cbranch_scc1 P1_chk_ok")
    A("s_sub_u32 s42, s42, 1", "s_cmp_eq_u32 s42, 0", "s_cbranch_scc1 P1_chk_ok", "s_sleep 1",
      f"buffer_load_dword v{F0V}, v{vF0}, {W_}, s58 offen sc1", "s_waitcnt vmcnt(0)", "s_branch P1_chk")
    A("P1_chk_ok:", f"v_cmp_eq_u32 vcc, s{sXCC}, v{F0V+1}", "s_nop 1", "s_cmp_eq_u32 vcc_lo, -1", f"s_cselect_b32 s{sMODE}, 1, 0")
    if 'forcesafe' in opt: A(f"s_mov_b32 s{sMODE}, 0")
    if 'fine3' in opt: ST.rt("mode")
    A(f"s_mov_b32 s44, {hex(f2u(QSCALE))}", "s_waitcnt lgkmcnt(0)")
    for hd in range(2):
        PK=128+24*hd
        TQ,TK,TV=T(hd,0,0),T(hd,1,0),T(hd,2,0)
        for t in range(2):
            for i in range(4): A(f"v_cvt_pk_bf16_f32 v{PK+4*t+i}, v{TK+8*t+2*i}, v{TK+8*t+2*i+1}")
        for t in range(2):
            for i in range(4): A(f"v_cvt_pk_bf16_f32 v{PK+8+4*t+i}, v{TV+8*t+2*i}, v{TV+8*t+2*i+1}")
        for i in range(16): A(f"v_mul_f32 v{TQ+i}, s44, v{TQ+i}")
        for t in range(2): A(f"v_permlane16_swap_b32 v{PK+4*t}, v{PK+4*t+2}", f"v_permlane16_swap_b32 v{PK+4*t+1}, v{PK+4*t+3}")
        for t in range(2):
            for i in range(4): A(f"v_cvt_pk_bf16_f32 v{PK+16+4*t+i}, v{TQ+8*t+2*i}, v{TQ+8*t+2*i+1}")
        for t in range(2): A(f"v_permlane32_swap_b32 v{PK+8+4*t}, v{PK+8+4*t+2}", f"v_permlane32_swap_b32 v{PK+8+4*t+1}, v{PK+8+4*t+3}")
        for t in range(2): A(f"v_permlane16_swap_b32 v{PK+16+4*t}, v{PK+16+4*t+2}", f"v_permlane16_swap_b32 v{PK+16+4*t+1}, v{PK+16+4*t+3}")
        A(f"s_add_u32 s46, s56, {hd*65536}", f"s_add_u32 s45, s46, {KF}", f"s_add_u32 s47, s46, {VF}")
        A(f"s_cmp_eq_u32 s{sMODE}, 0", f"s_cbranch_scc1 P1_st_safe{hd}")
        for sc,lab in (("",None),(" sc1",f"P1_st_safe{hd}")):
            if lab: A(f"s_branch P1_st_done{hd}", f"{lab}:")
            A(f"buffer_store_dwordx4 {vr(PK,4)}, v24, {W_}, s45 offen{sc}", f"buffer_store_dwordx4 {vr(PK+4,4)}, v24, {W_}, s45 offen offset:1024{sc}")
            A(f"buffer_store_dwordx4 {vr(PK+8,4)}, v24, {W_}, s47 offen{sc}", f"buffer_store_dwordx4 {vr(PK+12,4)}, v24, {W_}, s47 offen offset:1024{sc}")
            A(f"buffer_store_dwordx4 {vr(PK+16,4)}, v24, {W_}, s46 offen{sc}", f"buffer_store_dwordx4 {vr(PK+20,4)}, v24, {W_}, s46 offen offset:1024{sc}")
        A(f"P1_st_done{hd}:")
    A("s_branch P1_join")
    A("P1_loader:")
    n_end=ST.n; names_end=list(ST.names); ST.n=n_save; ST.names=list(names_save)
    A(f"s_and_b32 s34, s{sW}, 3")
    A(f"v_lshrrev_b32 v{t0}, 3, v{lane}", f"v_and_b32 v{t2}, 7, v{lane}", f"v_lshrrev_b32 v{t1}, 4, v{lane}", f"v_xor_b32 v{t1}, v{t1}, v{t2}",
      f"s_lshl_b32 s42, s{sRB}, 7", "s_lshl_b32 s43, s34, 5", "s_add_u32 s42, s42, s43", f"v_add_u32 v{vX}, s42, v{t0}", f"v_lshlrev_b32 v{vX}, 10, v{vX}",
      f"v_xor_b32 v9, 4, v{t1}", f"v_lshl_add_u32 v9, v9, 4, v{vX}", f"v_add_u32 v9, 8192, v9", f"v_lshl_add_u32 v{vX}, v{t1}, 4, v{vX}")
    A(f"v_add_u32 v10, 0x4000, v{vX}", "v_add_u32 v11, 0x4000, v9")
    A(f"v_bfe_u32 v{t1}, v{lane}, 4, 1", f"v_lshlrev_b32 v{t1}, 1, v{t1}", f"v_xor_b32 v{t1}, v{t1}, v{t2}",
      "s_lshl_b32 s43, s34, 4", f"v_add_u32 v{t0}, s43, v{t0}", f"v_mul_u32_u24 v{vW}, 3072, v{t0}", *([f"s_add_u32 s45, s{sX}, 2", "s_and_b32 s45, s45, 7", "s_lshl_b32 s45, s45, 7"] if 'wcol2' in opt else [f"s_lshl_b32 s45, s{sX}, 7"]), f"v_add_u32 v{vW}, s45, v{vW}",
      f"v_xor_b32 v12, 4, v{t1}", f"v_lshl_add_u32 v12, v12, 4, v{vW}", f"v_add_u32 v12, {8*3072}, v12", f"v_lshl_add_u32 v{vW}, v{t1}, 4, v{vW}")
    def dmas():
        L=[]
        xs=[vX,9,10,11]
        for ii in range(4):
            L.append([f"s_add_u32 m0, s46, {ii*1024}", "NOP", f"buffer_load_dwordx4 v{xs[ii]}, s[{SRD_A}:{SRD_A+3}], s47 offen{' nt' if 'xnt' in opt else ''} lds"])
        for seg in range(3):
            for ii in range(2):
                L.append([f"s_add_u32 m0, s57, {16384+seg*8192+ii*1024-seg*1024}", "NOP", f"buffer_load_dwordx4 v{[vW,12][ii]}, s[{SRD_B}:{SRD_B+3}], s48 offen offset:{seg*1024}{' nt' if 'wnt' in opt else ''} lds"])
        return L
    def issue():
        A("s_and_b32 s51, s50, 3", f"s_mul_i32 s51, s51, {STG}", "s_lshl_b32 s46, s34, 12", "s_add_u32 s46, s46, s51", "s_lshl_b32 s57, s34, 11", "s_add_u32 s57, s57, s51",
          *(["s_add_u32 s59, s50, s60", "s_and_b32 s59, s59, 7", "s_lshl_b32 s47, s59, 7", f"s_mul_i32 s48, s59, {64*3072}"] if True else ["s_lshl_b32 s47, s50, 7", f"s_mul_i32 s48, s50, {64*3072}"]))
        if 'p1nodma' not in opt:
            for g in dmas(): A([("s_nop 0" if x=="NOP" else x) for x in g])
        A("s_add_u32 s50, s50, 1")
    if 'krot1' in opt: A(f"s_and_b32 s60, s{sRB}, 7")
    elif 'krot2' in opt: A(f"s_lshl_b32 s60, s{sBR}, 2", f"s_add_u32 s60, s60, s{sRB}")
    elif 'krot3' in opt: A(f"s_lshr_b32 s60, s{sRB}, 1", f"s_lshl_b32 s59, s{sBR}, 2", "s_add_u32 s60, s60, s59")
    elif 'krot4' in opt: A(f"s_lshr_b32 s60, s{sRB}, 1", f"s_add_u32 s60, s60, s{sX}")
    elif 'krot0' in opt: A("s_mov_b32 s60, 0")
    elif 'krotrb' in opt: A(f"s_lshr_b32 s60, s{sRB}, 1")
    else: A(f"s_lshr_b32 s60, s{sRB}, 1", f"s_add_u32 s60, s60, s{sX}")
    A("s_mov_b32 s50, 0", "s_mov_b32 s49, 0")
    A("P1_lpro:")
    issue()
    A("s_cmp_lt_u32 s50, 2", "s_cbranch_scc1 P1_lpro")
    gate_loads()
    A("s_waitcnt vmcnt(12)", "s_barrier")
    A("s_waitcnt lgkmcnt(0)", f"s_mul_i32 s{sNONCE}, s3, 0x9e3779b1", f"s_add_u32 s{sNONCE}, s{sNONCE}, 0x7f4a7c15")
    ST.rt("p1_data")
    A(f"v_lshrrev_b32 v{t0}, 4, v{lane}", f"v_lshlrev_b32 v{vPT}, 22, v{t0}", f"v_bfe_u32 v{t0}, v{lane}, 3, 1", f"v_lshl_add_u32 v{vPT}, v{t0}, 10, v{vPT}",
      f"v_and_b32 v{t0}, 7, v{lane}", f"v_lshl_add_u32 v{vPT}, v{t0}, 7, v{vPT}", f"v_cmp_gt_u32 vcc, 48, v{lane}", f"v_mov_b32 v{t0}, 0x7ff00000", "s_nop 0",
      f"v_cndmask_b32 v{vPT}, v{t0}, v{vPT}, vcc")
    A("s_and_b32 s42, s34, 1", "s_lshr_b32 s43, s34, 1",
      f"s_lshl_b32 s44, s{sX}, 2", "s_lshl_b32 s43, s43, 1", "s_add_u32 s44, s44, s43", f"s_lshl_b32 s43, s{sBR}, 5", "s_add_u32 s44, s44, s43", "s_lshl_b32 s44, s44, 16",
      f"s_lshl_b32 s43, s{sRB}, 1", "s_add_u32 s43, s43, s42", "s_lshl_b32 s43, s43, 11", "s_add_u32 s56, s44, s43")
    issue_lbl="P1_lloop"
    A("P1_lpro2:")
    issue()
    A("s_cmp_lt_u32 s50, 4", "s_cbranch_scc1 P1_lpro2")
    A("P1_lloop:")
    A("s_cmp_lt_u32 s49, 5", "s_cbranch_scc0 P1_ltail", "s_waitcnt vmcnt(20)", "s_branch P1_lbar")
    A("P1_ltail:", "s_cmp_eq_u32 s49, 5", "s_cbranch_scc0 P1_ltail2", "s_waitcnt vmcnt(10)", "s_branch P1_lbar")
    A("P1_ltail2:", "s_cmp_eq_u32 s49, 6", "s_cbranch_scc0 P1_lbar", f"s_waitcnt vmcnt({2 if PTC==5 else 0})")
    A("P1_lbar:", "s_barrier")
    if ST.probe and ST.probe.startswith('it'):
        A(f"s_cmp_eq_u32 s49, {ST.probe[2:]}", "s_cbranch_scc0 P1_lnoprobe", "s_memrealtime s[100:101]", "s_waitcnt lgkmcnt(0)", "P1_lnoprobe:")
    A("s_cmp_lt_u32 s50, 8", "s_cbranch_scc0 P1_lnoiss")
    issue()
    A("P1_lnoiss:")
    A(f"s_cmp_eq_u32 s49, {PTC}", "s_cbranch_scc0 P1_lnopt", "s_add_u32 s42, s56, 65536",
      f"buffer_load_dword v{PT}, v{vPT}, {W_}, s56 offen {PTF}", f"buffer_load_dword v{PT+1}, v{vPT}, {W_}, s42 offen {PTF}", "P1_lnopt:")
    A("s_add_u32 s49, s49, 1", "s_cmp_lt_u32 s49, 8", "s_cbranch_scc1 P1_lloop")
    ST.rt("p1_loop")
    if 'p1it' in opt:
        A("s_waitcnt vmcnt(0)", "s_endpgm")
    if 'fine3' in opt: ST.rt("mode")
    A(f"s_mov_b32 s{sMODE}, 0")
    A("P1_join:")
    assert ST.n==n_end or 'p1it' in opt
    if 'fine3' in opt: ST.rt("st_iss")

def gate(A):
    W_=f"s[{SRD_WS}:{SRD_WS+3}]"
    GX=232; GW=236; GA=250
    A(f"v_mov_b32 v{GA}, 0")
    for i in range(4): A(f"v_dot2_f32_bf16 v{GA}, v{GX+i}, v{GW+i}, v{GA}")
    A("s_nop 2")
    for ror in (8,4,2,1):
        A(f"v_add_f32_dpp v{GA}, v{GA}, v{GA} row_ror:{ror} row_mask:0xf bank_mask:0xf", "s_nop 1")
    A(f"v_mov_b32 v{GA+1}, v{GA}", "s_nop 1", f"v_permlane16_swap_b32 v{GA+1}, v{GA}", "s_nop 1", f"v_add_f32 v{GA}, v{GA}, v{GA+1}",
      f"v_mov_b32 v{GA+1}, v{GA}", "s_nop 1", f"v_permlane32_swap_b32 v{GA+1}, v{GA}", "s_nop 1", f"v_add_f32 v{GA}, v{GA}, v{GA+1}")
    A(f"v_mul_f32 v{GA}, {hex(f2u(-1.4426950408889634))}, v{GA}", f"v_exp_f32 v{GA}, v{GA}", "s_nop 0", f"v_add_f32 v{GA}, 1.0, v{GA}", f"v_rcp_f32 v{GA}, v{GA}",
      "s_lshl_b32 s62, s62, 2", f"s_add_u32 s62, s62, {GOFF}", f"v_mov_b32 v{GA+1}, 0")
def gate_store(A):
    A("s_mov_b64 exec, 1", f"buffer_store_dword v250, v251, s[{SRD_WS}:{SRD_WS+3}], s62 offen sc1", "s_mov_b64 exec, -1")

def publish1(A, ST, opt):
    if 'fine3' in opt:
        A("s_waitcnt vmcnt(0)"); ST.rt("vm0")
    A("s_waitcnt vmcnt(0)", "s_barrier")
    if 'fine3' in opt: ST.rt("bar1")
    ST.rt("p1_stored")
    A(f"s_lshl_b32 s42, s{sX}, 7", f"s_lshl_b32 s43, s{sI}, 2", "s_add_u32 s43, s43, s42", f"s_add_u32 s43, s43, {FL+FL_F1}", f"s_add_u32 s38, s42, {FL+FL_F1}")
    A(f"s_cmp_eq_u32 s{sMODE}, 0", "s_cbranch_scc1 L_f1_safe")
    setflag(A,"f1f",43,5,"")
    A("s_branch L_f1_done", "L_f1_safe:")
    setflag(A,"f1s",43,5," sc1")
    A("L_f1_done:")
def sync1(A, ST, opt):
    if 'fine3' in opt: ST.rt("prolog")
    poll(A,"p1",38,2,3,stride=F1STR)
    A("s_barrier")
    ST.rt("p1_flags")

LANE=1
QA0=4; QA1=8; QB=12
OA0=16; OA1=32
S0=48; S1=64
P=80
KB_=88; VB_=210
MF=140; MD=156; CB=64
WBF=[96,100,104,108,120,124,128,132,136,192,196,200,204,228,232,236]
vKa=172; vVa=173
vL16=174; vT=175; vT2=176; vT3=177; vNEGM=178; vM=179; vKs=180; vVs=181; vX0=182; vPK=184
VL=188
LDS_KA=0; LDS_VA=65536; LDS_KB=131072; LDS_VB=147456
def exps(S): return [f"v_exp_f32 v{S+i}, v{S+i}" for i in range(16)]
def cvts(S): return [f"v_cvt_pk_bf16_f32 v{P+i}, v{S+2*i}, v{S+2*i+1}" for i in range(8)]
MK=[f"s_mov_b64 exec, s[{sMASK}:{sMASK+1}]"]; UM=["s_mov_b64 exec, -1"]
def unit(A, Sc, QK, PV1, ld, wK, wV, PV0):
    e=exps(Sc); c=cvts(Sc)
    A(wK, QK)
    A(e[0:4], c[0], e[4:6], c[1])
    A(PV1, ld)
    A(e[6:8], c[2], e[8:10], c[3], e[10:12])
    A(wV, PV0)
    A(e[12:13], c[4], e[13:15], c[5], e[15:16], c[6], c[7])
def slow_pass(A, tag, Q, O, pass1, far, diag, n):
    A(f"v_mov_b32 v{vX0}, v{vKs}", f"v_mov_b32 v{vX0+1}, v{vVs}", "s_mov_b32 s60, 0")
    if pass1: A(f"v_mov_b32 v{vM}, {hex(NEG)}", f"v_mov_b32 v{vNEGM}, 0")
    else:
        for i in range(16): A(f"v_mov_b32 v{O+i}, 0")
    A(f"L_{tag}_loop:")
    A(f"ds_read_b128 {vr(KB_,4)}, v{vX0}")
    if not pass1: A(MK, f"ds_read_b128 {vr(VB_,4)}, v{vX0+1}", f"ds_read_b128 {vr(VB_+4,4)}, v{vX0+1} offset:512", UM)
    A("s_cmp_eq_u32 s60, 0", f"s_cselect_b32 s61, s{far}, 0", "s_cmp_lg_u32 s61, 0", f"s_cbranch_scc1 L_{tag}_far")
    A(f"s_add_u32 s61, s60, 1", f"s_cmp_eq_u32 s61, s{n}", f"s_cselect_b32 s61, s{diag}, 0", "s_cmp_lg_u32 s61, 0", f"s_cbranch_scc1 L_{tag}_diag")
    for i in range(16): A(f"v_mov_b32 v{CB+i}, v{vNEGM}")
    A(f"s_branch L_{tag}_go")
    A(f"L_{tag}_far:")
    for i in range(16): A(f"v_add_f32 v{CB+i}, v{MF+i}, v{vNEGM}")
    A(f"s_branch L_{tag}_go")
    A(f"L_{tag}_diag:")
    for i in range(16): A(f"v_add_f32 v{CB+i}, v{MD+i}, v{vNEGM}")
    A(f"L_{tag}_go:")
    A("s_waitcnt lgkmcnt(0)", "s_nop 0")
    A(mfma32(S0, KB_, Q, CB))
    A("s_nop 7","s_nop 3")
    if pass1:
        for i in range(16): A(f"v_max_f32 v{vM}, v{vM}, v{S0+i}")
    else:
        A(exps(S0), "s_nop 0", cvts(S0), "s_nop 1")
        A(mfma32(O, VB_, P, O), mfma32(O, VB_+4, P+4, O))
    A(f"v_add_u32 v{vX0}, 1024, v{vX0}", f"v_add_u32 v{vX0+1}, 1024, v{vX0+1}")
    A("s_add_u32 s60, s60, 1", f"s_cmp_lt_u32 s60, s{n}", f"s_cbranch_scc1 L_{tag}_loop")
    if pass1:
        A(f"v_mov_b32 v{vT}, v{vM}", "s_nop 1", f"v_permlane32_swap_b32 v{vT}, v{vM}", "s_nop 1",
          f"v_max_f32 v{vM}, v{vM}, v{vT}", f"v_sub_f32 v{vNEGM}, 0, v{vM}")
    else: A("s_nop 7","s_nop 3")
def bcast_l(A,O):
    A(f"v_mov_b32 v{vT}, v{O+8}", "s_nop 1", f"v_permlane32_swap_b32 v{vT}, v{O+8}", "s_nop 1", f"v_add_f32 v{O+8}, v{O+8}, v{vT}")
def check_range(A, O, okl):
    bcast_l(A,O)
    A(f"v_mov_b32 v{vT}, v{O+8}")
    for i in range(8): A(f"v_fma_f32 v{vT}, v{O+i}, 0, v{vT}")
    A(f"s_mov_b32 s44, {hex(LLO)}", f"s_mov_b32 s45, {hex(LHI)}")
    A(f"v_cmp_le_f32 s[46:47], s44, v{vT}", f"v_cmp_ge_f32 s[48:49], s45, v{vT}", "s_nop 1",
      "s_and_b64 s[46:47], s[46:47], s[48:49]", "s_cmp_eq_u64 s[46:47], -1", f"s_cbranch_scc1 {okl}")
def finalize(A, O, soff):
    A(f"v_rcp_f32 v{vT}, v{O+8}", "s_nop 0")
    for i in range(8): A(f"v_mul_f32 v{O+i}, v{O+i}, v{vT}")
    for i in range(4): A(f"v_cvt_pk_bf16_f32 v{vPK+i}, v{O+2*i}, v{O+2*i+1}")
    A(f"buffer_store_dwordx4 {vr(vPK,4)}, v{vL16}, s[{SRD_WS}:{SRD_WS+3}], s{soff} offen sc1")

def early2(A):
    A(f"v_and_b32 v{LANE}, 63, v0")
    A(f"v_lshlrev_b32 v{vL16}, 4, v{LANE}", f"v_and_b32 v{vT}, 31, v{LANE}")
    A(f"s_mov_b32 s{sMASK}, 0x0000ffff", f"s_mov_b32 s{sMASK+1}, 0x0000ffff")
    A(f"v_cmp_eq_u32 vcc, 16, v{vT}", f"v_mov_b32 v{vX0}, 0x3f803f80", "s_nop 0", f"v_cndmask_b32 v{vX0+1}, 0, v{vX0}, vcc")
    for i in range(16): A(f"v_mov_b32 v{VB_+i}, v{vX0+1}")
    hh=vT3; MS=[82,90,96,98]
    A(f"v_lshrrev_b32 v{hh}, 5, v{LANE}", f"v_lshlrev_b32 v{vT2}, 2, v{hh}", f"v_sub_u32 v{vT2}, v{vT}, v{vT2}")
    A(f"v_mov_b32 v{vX0}, {hex(NEG)}")
    for g in range(4):
        for k in range(4): A(f"v_cmp_gt_i32 s[{MS[k]}:{MS[k]+1}], {8*g+k}, v{vT2}")
        A("s_nop 0")
        for k in range(4):
            i=4*g+k
            A(f"v_cndmask_b32 v{MF+i}, v{vX0}, 0, s[{MS[k]}:{MS[k]+1}]", f"v_cndmask_b32 v{MD+i}, 0, v{vX0}, s[{MS[k]}:{MS[k]+1}]")
    A(f"v_and_b32 v{vT}, 15, v{LANE}", f"v_lshlrev_b32 v{vT}, 4, v{vT}", f"v_lshl_add_u32 v{VL}, v{hh}, 8, v{vT}")

def phase2(A, ST, opt):
    W_=f"s[{SRD_WS}:{SRD_WS+3}]"
    SC="" if 'plainld' in opt else " sc1"
    early2(A)
    A(f"s_and_b32 s15, s{sW}, 3", f"s_lshr_b32 s16, s{sW}, 2")
    A("s_lshl_b32 s17, s15, 1", "s_add_u32 s17, s17, s16",
      f"s_lshl_b32 s18, s{sJ}, 3", "s_add_u32 s19, s18, s17",
      f"s_lshl_b32 s20, s{sH}, 16", f"s_add_u32 s21, s20, {32*65536}")
    A("s_lshl_b32 s43, s17, 10", f"s_add_u32 s44, s43, {LDS_KB}", f"v_add_u32 v{vKa}, s44, v{vL16}",
      f"s_add_u32 s44, s43, {LDS_VB}", f"v_add_u32 v{vVa}, s44, v{VL}")
    A("s_lshl_b32 s32, s19, 16", f"s_lshl_b32 s33, s{sH}, 10", "s_add_u32 s32, s32, s33", f"s_add_u32 s32, s32, {OF}", "s_add_u32 s33, s32, 32768")
    A("s_lshl_b32 s22, s19, 10", "s_add_u32 s22, s22, s21", f"s_add_u32 s22, s22, {QF}")
    A("s_lshl_b32 s23, s19, 10", "s_add_u32 s23, s23, s20", f"s_add_u32 s23, s23, {QF}", "s_xor_b32 s14, s19, 1", "s_lshl_b32 s14, s14, 10", "s_add_u32 s14, s14, s20", f"s_add_u32 s14, s14, {QF}")
    for ii in range(2):
        A(f"s_add_u32 s43, s{sW}, {8*ii}", "s_add_u32 s44, s18, s43", "s_sub_u32 s44, s44, 8", "s_max_i32 s44, s44, 0",
          "s_lshl_b32 s44, s44, 10", "s_add_u32 s44, s44, s21", f"s_add_u32 s{54+ii}, s44, {KF}")
    A(f"s_lshl_b32 s56, s{sW}, 10", "s_add_u32 s57, s56, s20", f"s_add_u32 s57, s57, {KF}")
    publish1(A,ST,opt)
    OBz=OA0
    for i in range(16): A(f"v_mov_b32 v{OBz+i}, 0")
    for i in range(4): A(f"v_mov_b32 v{P+4+i}, 0")
    gate(A)
    sync1(A,ST,opt)
    A(f"buffer_load_dwordx4 {vr(QB,4)}, v{vL16}, {W_}, s22 offen{SC}")
    if 'fine2' in opt:
        A("s_waitcnt vmcnt(0)"); ST.rt("qb_landed")
    for ii in range(2):
        A(f"s_add_u32 m0, s56, {LDS_KB+8192*ii}", f"s_add_u32 s45, s{54+ii}, {VF-KF}", f"buffer_load_dwordx4 v{vL16}, {W_}, s{54+ii} offen{SC} lds")
        A(f"s_add_u32 m0, s56, {LDS_VB+8192*ii}", "s_nop 0", f"buffer_load_dwordx4 v{vL16}, {W_}, s45 offen{SC} lds")
    A(f"buffer_load_dwordx4 {vr(QA0,4)}, v{vL16}, {W_}, s23 offen{SC}", f"buffer_load_dwordx4 {vr(QA1,4)}, v{vL16}, {W_}, s14 offen{SC}")
    def adma(m):
        return [f"s_add_u32 m0, s56, {LDS_KA+m*8192}", f"s_add_u32 s45, s57, {m*8192}", f"buffer_load_dwordx4 v{vL16}, {W_}, s45 offen{SC} lds",
                f"s_add_u32 m0, s56, {LDS_VA+m*8192}", f"s_add_u32 s45, s57, {VF-KF+m*8192}", f"buffer_load_dwordx4 v{vL16}, {W_}, s45 offen{SC} lds"]
    global ADMA; ADMA=adma
    A("s_waitcnt vmcnt(2)")
    OB=OA0
    if 'fine3' in opt: ST.rt("own_b")
    A("s_barrier")
    ST.rt("b_data")
    if 'fine3' in opt:
        ST.flush(2); A("s_waitcnt vmcnt(0)", "s_endpgm"); ST.on=False
    def ldK(t,base): return [f"ds_read_b128 {vr(KB_+4*(t%2),4)}, v{base} offset:{t*1024}"]
    def ldV(t,base): return MK+[f"ds_read_b128 {vr(VB_+8*(t%2),4)}, v{base} offset:{t*1024}", f"ds_read_b128 {vr(VB_+8*(t%2)+4,4)}, v{base} offset:{t*1024+512}"]+UM
    NB=9
    A("s_mov_b32 s51, 1", f"s_cmp_eq_u32 s{sJ}, 0", "s_cselect_b32 s50, 0, 1", "s_sub_u32 s53, 8, s17", "s_cselect_b32 s53, s53, 0")
    A.L.pop()
    A(f"s_cmp_eq_u32 s{sJ}, 0", "s_cselect_b32 s53, s53, 0")
    A("s_sub_u32 s52, 9, s53")
    A("s_lshl_b32 s43, s53, 10", f"v_add_u32 v{vKs}, s43, v{vKa}", f"v_add_u32 v{vVs}, s43, v{vVa}")
    A("s_cmp_eq_u32 s53, 0", "s_cbranch_scc1 B_pro0", "s_mov_b32 s58, s56", "s_mov_b32 s59, s57", "s_mov_b32 s60, s53", "B_skipdma:")
    A(f"s_add_u32 m0, s58, {LDS_KA}", f"s_add_u32 s45, s59, {VF-KF}", f"buffer_load_dwordx4 v{vL16}, {W_}, s59 offen{SC} lds",
      f"s_add_u32 m0, s58, {LDS_VA}", "s_add_u32 s58, s58, 8192", f"buffer_load_dwordx4 v{vL16}, {W_}, s45 offen{SC} lds",
      "s_add_u32 s59, s59, 8192", "s_sub_u32 s60, s60, 1", "s_cmp_lg_u32 s60, 0", "s_cbranch_scc1 B_skipdma")
    for s0 in range(1,NB):
        A(f"s_cmp_eq_u32 s53, {s0}", f"s_cbranch_scc1 B_pro{s0}")
    for s0 in range(NB-1,-1,-1):
        A(f"B_pro{s0}:")
        Sc=S0 if s0%2==0 else S1
        C = MF if s0==0 else (MD if s0==NB-1 else "0")
        A(ldK(s0,vKa), "s_waitcnt lgkmcnt(0)", mfma32(Sc, KB_+4*(s0%2), QB, C))
        if s0==0:
            A(ldV(0,vVa), ldK(1,vKa))
        else:
            if s0+1<NB: A(ldK(s0+1,vKa))
            A(ldV(s0,vVa))
        A("s_nop 7","s_nop 3")
        if s0!=0: A(f"s_branch B_step{s0}")
    for t in range(NB):
        A(f"B_step{t}:")
        Sc=S0 if t%2==0 else S1; Sn=S1 if t%2==0 else S0
        if t+1<NB:
            QK=[mfma32(Sn, KB_+4*((t+1)%2), QB, MD if t+1==NB-1 else "0")]
            wK=["s_waitcnt lgkmcnt(0)"] if t==0 else ["s_waitcnt lgkmcnt(2)"]
        else: QK=[]; wK=[]
        PV1=[mfma32(OB, VB_+8*((t-1)%2)+4, P+4, OB)] if t>0 else []
        ld=[]
        if t+2<NB: ld+=ldK(t+2,vKa)
        if t+1<NB: ld+=ldV(t+1,vVa)
        nld=(1 if t+2<NB else 0)+(2 if t+1<NB else 0)
        wV=[f"s_waitcnt lgkmcnt({nld})"]
        PV0=[mfma32(OB, VB_+8*(t%2), P, OB)]
        if t<8: ld=ld+ADMA(t)
        unit(A,Sc,QK,PV1,ld,wK,wV,PV0)
    A("s_nop 1", mfma32(OB, VB_+8*((NB-1)%2)+4, P+4, OB))
    A("s_nop 7","s_nop 3")
    check_range(A,OB,"B_ok")
    slow_pass(A,"bf1",QB,OB,True,50,51,52)
    slow_pass(A,"bf2",QB,OB,False,50,51,52)
    bcast_l(A,OB)
    A("B_ok:")
    finalize(A,OB,33)
    ST.rt("b_done")
    A("s_waitcnt vmcnt(1)", "s_barrier")
    ST.rt("a_start")
    gate_store(A)
    if 'dup' in opt: A("s_mov_b32 s54, 2", "A_dup:")
    A("s_lshl_b32 s43, s16, 15", f"v_add_u32 v{vKa}, s43, v{vL16}", f"s_add_u32 s44, s43, {LDS_VA}", f"v_add_u32 v{vVa}, s44, v{VL}")
    NOMASK='novmask' in opt
    vStep=119
    if NOMASK:
        CREG=LDS_KB+22528
        t0,t1,t2,t3=120,121,122,123
        A(f"v_mul_u32_u24 v{t0}, 43, v{LANE}", f"v_lshrrev_b32 v{t0}, 7, v{t0}",
          f"v_mul_u32_u24 v{t1}, 3, v{t0}", f"v_sub_u32 v{t1}, v{LANE}, v{t1}",
          f"v_lshlrev_b32 v{t2}, 4, v{t1}", f"v_cmp_eq_u32 vcc, 2, v{t1}", f"v_lshlrev_b32 v{t0}, 9, v{t0}", "s_nop 0", f"v_cndmask_b32 v{t2}, v{t2}, 64, vcc",
          f"v_add_u32 v{t0}, v{t0}, v{t2}", f"v_add_u32 v{t0}, {CREG}, v{t0}", f"v_cmp_eq_u32 vcc, 0, v{t1}", f"v_mov_b32 v{t3}, 0x3f803f80", "s_nop 0",
          f"v_cndmask_b32 v124, 0, v{t3}, vcc", "v_mov_b32 v125, v124", "v_mov_b32 v126, v124", "v_mov_b32 v127, v124",
          f"v_cmp_gt_u32 vcc, 54, v{LANE}", "s_and_saveexec_b64 s[44:45], vcc", f"ds_write_b128 v{t0}, v[124:127]", "s_mov_b64 exec, s[44:45]")
        A(f"v_and_b32 v{t0}, 31, v{LANE}", f"v_mov_b32 v{t1}, {CREG+16}", f"v_subrev_u32 v{t2}, 20, v{t0}", f"v_cmp_gt_u32 vcc, 8, v{t2}", f"v_mov_b32 v{t3}, {CREG+64}", "s_nop 0",
          f"v_cndmask_b32 v{t1}, v{t1}, v{t3}, vcc", f"v_cmp_eq_u32 vcc, 16, v{t0}", f"v_mov_b32 v{t3}, {CREG}", "s_nop 0", f"v_cndmask_b32 v{t1}, v{t1}, v{t3}, vcc",
          f"v_cmp_gt_u32 vcc, 16, v{t0}", f"v_mov_b32 v{t3}, 8192", "s_nop 0", f"v_cndmask_b32 v{vVa}, v{t1}, v{vVa}, vcc", f"v_cndmask_b32 v{vStep}, 0, v{t3}, vcc", "s_waitcnt lgkmcnt(0)")
    def ldVA(t,base):
        if not NOMASK: return ldV(t,base)
        return [f"ds_read_b128 {vr(VB_+8*(t%2),4)}, v{base} offset:{t*1024}", f"ds_read_b128 {vr(VB_+8*(t%2)+4,4)}, v{base} offset:{t*1024+512}"]
    for i in range(32): A(f"v_mov_b32 v{OA0+i}, 0")
    for i in range(4): A(f"v_mov_b32 v{P+4+i}, 0")
    Qr=[QA0,QA1]; Or=[OA0,OA1]
    A(ldK(0,vKa), ldVA(0,vVa), "s_waitcnt lgkmcnt(2)", mfma32(S0, KB_, QA0, "0"))
    vWs=190; vWr=191
    srd(A,SRD_A,pWOB,512*512*2)
    A(f"v_lshrrev_b32 v{vWs}, 2, v{LANE}", f"v_lshlrev_b32 v{vWs}, 10, v{vWs}", f"v_and_b32 v{vT}, 3, v{LANE}", f"v_lshl_add_u32 v{vWs}, v{vT}, 4, v{vWs}",
      f"s_lshr_b32 s42, s{sI}, 2", "s_lshl_b32 s42, s42, 7", f"s_bfe_u32 s43, s{sW}, 0x10001", "s_lshl_b32 s43, s43, 6", "s_add_u32 s42, s42, s43", f"v_add_u32 v{vWs}, s42, v{vWs}",
      f"s_lshr_b32 s82, s{sW}, 2", "s_lshl_b32 s82, s82, 18",
      f"s_lshl_b32 s83, s{sW}, 12", f"s_add_u32 s83, s83, {LDS_KB}")
    A(f"v_lshrrev_b32 v{vT}, 5, v{LANE}", f"v_bfe_u32 v{vWr}, v{LANE}, 2, 2", f"v_lshl_add_u32 v{vWr}, v{vT}, 2, v{vWr}", f"v_lshlrev_b32 v{vWr}, 6, v{vWr}",
      f"v_bfe_u32 v{vT}, v{LANE}, 4, 1", f"v_lshl_add_u32 v{vWr}, v{vT}, 5, v{vWr}", f"v_and_b32 v{vT}, 3, v{LANE}", f"v_lshl_add_u32 v{vWr}, v{vT}, 3, v{vWr}", f"v_add_u32 v{vWr}, s83, v{vWr}")
    def wb_dma():
        L=[]
        for ii in range(4):
            L+=[f"s_add_u32 m0, s83, {ii*1024}", f"s_add_u32 s45, s82, {ii*16384}", f"buffer_load_dwordx4 v{vWs}, s[{SRD_A}:{SRD_A+3}], s45 offen lds"]
        return L+["s_add_u32 s82, s82, 65536"]
    def wb_read(r):
        L=["s_waitcnt vmcnt(0)"]
        for nl in range(4):
            for rr in range(2):
                L.append(f"ds_read_b64_tr_b16 {vr(WBF[4*r+nl]+2*rr,2)}, v{vWr} offset:{(16*nl+8*rr)*64}")
        return L+["s_waitcnt lgkmcnt(0)"]
    A(wb_dma())
    vFv=112; vFz=113; vFa=114; vFb=115
    A(f"s_lshl_b32 s34, s{sJ}, 10", f"s_lshl_b32 s35, s{sH}, 5", "s_add_u32 s34, s34, s35", f"s_lshl_b32 s35, s{sW}, 2", "s_add_u32 s34, s34, s35",
      f"s_add_u32 s35, s34, {FL+FL_F2A}", f"s_add_u32 s34, s34, {FL+FL_F2B}")
    A(f"v_mov_b32 v{vFv}, s{sNONCE}", f"v_mov_b32 v{vFz}, 0")
    A(f"v_lshrrev_b32 v{vFa}, 1, v{LANE}", f"v_lshlrev_b32 v{vFa}, 5, v{vFa}", f"v_and_b32 v{vT}, 1, v{LANE}", f"v_lshl_add_u32 v{vFa}, v{vT}, 4, v{vFa}",
      f"s_and_b32 s36, s{sI}, 3", "s_lshl_b32 s36, s36, 2", f"v_add_u32 v{vFa}, s36, v{vFa}", f"s_lshl_b32 s36, s{sX}, 10", f"s_add_u32 s36, s36, {FL+FL_F2B}")
    A("s_mov_b32 s53, 4", "s_setprio 3", "s_nop 7", "s_nop 1")
    A(".p2align 3", "A_loop:")
    A("s_cmp_eq_u32 s53, 3", "s_cbranch_scc1 A_it1", "s_cmp_eq_u32 s53, 2", "s_cbranch_scc1 A_it2", "s_cmp_eq_u32 s53, 1", "s_cbranch_scc1 A_it3", "A_body:")
    NK=8
    units=[(t,qi) for t in range(NK) for qi in range(2)]
    for u,(t,qi) in enumerate(units):
        Sc=S0 if u%2==0 else S1; Sn=S1 if u%2==0 else S0
        tn,qn=(t,1) if qi==0 else (t+1,0)
        tp,qp=(t-1,1) if qi==0 else (t,0)
        QK=[mfma32(Sn, KB_+4*(tn%2), Qr[qn], "0")]
        PV1=[mfma32(Or[qp], VB_+8*(tp%2)+4, P+4, Or[qp])]
        PV0=[mfma32(Or[qi], VB_+8*(t%2), P, Or[qi])]
        ld=[];wK=[];wV=[]
        if qi==0: ld=ldK(t+1,vKa)+ldVA(t+1,vVa); wV=["s_waitcnt lgkmcnt(3)"]
        else: wK=["s_waitcnt lgkmcnt(2)"]
        if u==8: A("s_cmp_ge_u32 s53, 3", "s_cbranch_scc1 A_mid", "A_midback:")
        unit(A,Sc,QK,PV1,ld,wK,wV,PV0)
    A(f"v_add_u32 v{vKa}, {NK*1024}, v{vKa}", f"v_add_u32 v{vVa}, v{vStep}, v{vVa}" if NOMASK else f"v_add_u32 v{vVa}, {NK*1024}, v{vVa}")
    A("s_sub_u32 s53, s53, 1", "s_cmp_lg_u32 s53, 0", "s_cbranch_scc1 A_loop")
    A("s_branch A_after")
    A("A_mid:", "s_cmp_eq_u32 s53, 4", "s_cbranch_scc0 A_mid1")
    A(wb_read(0), wb_dma(), "s_branch A_midback")
    A("A_mid1:", wb_read(2), wb_dma(), "s_branch A_midback")
    A("A_it1:", "s_setprio 2", wb_read(1), "s_mov_b64 exec, 1", f"buffer_store_dword v{vFv}, v{vFz}, {W_}, s34 offen sc1", "s_mov_b64 exec, -1", wb_dma(), "s_branch A_body")
    A("A_it2:", "s_setprio 1", wb_read(3))
    if 'wbl2' in opt:
        A(f"s_cmp_lg_u32 s{sI}, 0", "s_cbranch_scc1 A_nowb", f"s_cmp_lg_u32 s{sW}, 0", "s_cbranch_scc1 A_nowb", "buffer_wbl2 sc1", "A_nowb:")
    if 'nopt3' not in opt:
        vP=116
        A(f"s_and_b32 s44, s{sI}, 3", f"s_lshr_b32 s45, s{sI}, 2", "s_lshl_b32 s46, s44, 7", f"s_lshl_b32 s47, s{sW}, 4", "s_add_u32 s46, s46, s47",
          f"v_and_b32 v{vP}, 15, v{LANE}", f"v_add_u32 v{vP}, s46, v{vP}", f"v_lshlrev_b32 v{vP}, 10, v{vP}", "s_lshl_b32 s45, s45, 7")
        A(f"s_mov_b32 s{SRD_PT}, s{pWOA}", f"s_mov_b32 s{SRD_PT+1}, s{pWOA+1}", f"s_mov_b32 s{SRD_PT+2}, {512*512*2}", f"s_mov_b32 s{SRD_PT+3}, 0x00020000",
          f"buffer_load_dword v{vP+1}, v{vP}, s[{SRD_PT}:{SRD_PT+3}], s45 offen")
        if 'ptout' in opt:
            A(f"s_lshl_b32 s46, s{sX}, 8", "s_lshl_b32 s47, s44, 6", "s_add_u32 s46, s46, s47", f"s_lshl_b32 s47, s{sW}, 3", "s_add_u32 s46, s46, s47",
              f"v_and_b32 v{vP}, 7, v{LANE}", f"v_add_u32 v{vP}, s46, v{vP}", f"v_lshlrev_b32 v{vP}, 10, v{vP}",
              f"s_mov_b32 s{SRD_PT}, s{pOUT}", f"s_mov_b32 s{SRD_PT+1}, s{pOUT+1}", f"s_mov_b32 s{SRD_PT+2}, {2048*512*2}", f"s_mov_b32 s{SRD_PT+3}, 0x00020000",
              f"buffer_load_dword v{vP+2}, v{vP}, s[{SRD_PT}:{SRD_PT+3}], s45 offen")
    A("s_branch A_body")
    A("A_it3:", "s_setprio 0", f"buffer_load_dword v{vFb}, v{vFa}, {W_}, s36 offen sc1", "s_branch A_body")
    A("A_after:")
    A(mfma32(OA1, VB_+8*((NK-1)%2)+4, P+4, OA1))
    A("s_waitcnt lgkmcnt(0)", "s_nop 7", "s_nop 3")
    if 'dup' in opt: A("s_sub_u32 s54, s54, 1", "s_cmp_lg_u32 s54, 0", "s_cbranch_scc1 A_dup")
    ST.rt("a_loop")
    A(f"s_lshl_b32 s43, s{sW}, 12", f"s_add_u32 s43, s43, {LDS_KB}", f"v_add_u32 v{vT}, s43, v{vL16}",
      f"v_lshlrev_b32 v{vT2}, 2, v{LANE}", f"v_add_u32 v{vT2}, s43, v{vT2}")
    A(f"ds_write_b128 v{vT}, {vr(OA1,4)}", f"ds_write_b128 v{vT}, {vr(OA1+4,4)} offset:1024", f"ds_write_b32 v{vT2}, v{OA1+8} offset:2048")
    A(f"s_xor_b32 s44, s{sW}, 4", "s_lshl_b32 s43, s44, 12", f"s_add_u32 s43, s43, {LDS_KB}", f"v_add_u32 v{vT}, s43, v{vL16}",
      f"v_lshlrev_b32 v{vT2}, 2, v{LANE}", f"v_add_u32 v{vT2}, s43, v{vT2}")
    A("s_waitcnt lgkmcnt(0)", "s_barrier")
    A(f"ds_read_b128 {vr(S0,4)}, v{vT}", f"ds_read_b128 {vr(S0+4,4)}, v{vT} offset:1024", f"ds_read_b32 v{S0+8}, v{vT2} offset:2048")
    A("s_waitcnt lgkmcnt(0)")
    for i in range(9): A(f"v_add_f32 v{OA0+i}, v{OA0+i}, v{S0+i}")
    check_range(A,OA0,"A_ok")
    A("s_mov_b32 s50, 0", "s_mov_b32 s51, 0", "s_mov_b32 s52, 64")
    A(f"v_add_u32 v{vKs}, {LDS_KA}, v{vL16}", f"v_add_u32 v{vVs}, {LDS_VA}, v{VL}")
    slow_pass(A,"af1",QA0,OA0,True,50,51,52)
    slow_pass(A,"af2",QA0,OA0,False,50,51,52)
    bcast_l(A,OA0)
    A("A_ok:")
    finalize(A,OA0,32)

def phase3(A, ST, opt):
    W_=f"s[{SRD_WS}:{SRD_WS+3}]"
    lane=LANE
    vFv=112; vFz=113; vFa=114; vFb=115
    srd(A,SRD_A,pWOA,512*512*2); srd(A,SRD_C,pOUT,2048*512*2)
    SA=f"s[{SRD_A}:{SRD_A+3}]"
    A(f"s_and_b32 s50, s{sI}, 3", f"s_lshr_b32 s51, s{sI}, 2")
    A(f"s_and_b32 s52, s{sW}, 1", f"s_bfe_u32 s53, s{sW}, 0x10001", f"s_lshr_b32 s54, s{sW}, 2")
    A(f"v_lshlrev_b32 v3, 4, v{lane}")
    A(f"s_lshl_b32 s42, s{sX}, 3", "s_lshl_b32 s43, s50, 1", "s_add_u32 s42, s42, s43", "s_lshl_b32 s55, s42, 16", f"s_add_u32 s55, s55, {OF}",
      "s_lshl_b32 s43, s53, 14", "s_lshl_b32 s44, s54, 12", "s_add_u32 s43, s43, s44",
      "s_lshl_b32 s56, s52, 15", "s_add_u32 s56, s56, s43", "s_add_u32 s56, s56, 0x10000",
      "s_lshl_b32 s57, s52, 16", "s_add_u32 s57, s57, s43", "s_add_u32 s57, s57, s55")
    def odma(br):
        L=[]
        for r in range(2):
            for ii in range(4):
                L+= [f"s_add_u32 m0, s56, {r*8192+ii*1024}", f"s_add_u32 s45, s57, {br*32768+r*8192+ii*1024}", f"buffer_load_dwordx4 v3, {W_}, s45 offen sc1 lds"]
        return L
    A("s_waitcnt vmcnt(1)", f"s_mov_b32 s46, {SPIN_MAX}")
    A("P3_bchk:", f"v_cmp_ne_u32 vcc, s{sNONCE}, v{vFb}", "s_nop 1", "s_cmp_eq_u64 vcc, 0", "s_cbranch_scc1 P3_bok",
      "s_sub_u32 s46, s46, 1", "s_cmp_eq_u32 s46, 0", "s_cbranch_scc1 P3_bok", "s_sleep 1",
      f"buffer_load_dword v{vFb}, v{vFa}, {W_}, s36 offen sc1", "s_waitcnt vmcnt(0)", "s_branch P3_bchk", "P3_bok:")
    A("s_barrier")
    A(odma(1))
    A("s_waitcnt vmcnt(8)")
    A("s_mov_b64 exec, 1", f"buffer_store_dword v{vFv}, v{vFz}, {W_}, s35 offen sc1", "s_mov_b64 exec, -1")
    ST.rt("o_stored")
    A(f"v_and_b32 v12, 31, v{lane}", f"s_lshl_b32 s44, s{sX}, 8", "s_lshl_b32 s45, s50, 6", "s_add_u32 s44, s44, s45", "s_lshl_b32 s45, s52, 5", "s_add_u32 s44, s44, s45",
      "v_add_u32 v12, s44, v12", "v_lshlrev_b32 v13, 2, v12", f"s_mov_b32 s45, {GOFF}", f"buffer_load_dword v14, v13, {W_}, s45 offen sc1")
    vW=4
    w_src_addr(A, vW, 5, 6, 7, lane, 51, 42)
    A(f"s_lshl_b32 s58, s{sW}, 13", f"s_lshl_b32 s59, s{sW}, 16")
    for ii in range(8):
        A(f"s_add_u32 m0, s58, {ii*1024}", f"s_add_u32 s45, s59, {ii*8192}", f"buffer_load_dwordx4 v{vW}, {SA}, s45 offen lds")
    w_frag_addr(A, 9, 6, 7, lane, 53, 42)
    A(f"v_lshrrev_b32 v8, 5, v{lane}", "s_lshl_b32 s42, s54, 15", "v_add_u32 v9, s42, v9")
    A("s_lshl_b32 s43, s52, 15", "s_lshl_b32 s44, s54, 14", "s_add_u32 s43, s43, s44", "s_add_u32 s43, s43, 0x10000", "v_add_u32 v11, s43, v3")
    ACA=16; ACB=48; OFr=[64,68,72,76]; WA=128
    for i in range(16): A(f"v_mov_b32 v{ACB+i}, 0", f"v_mov_b32 v{ACA+i}, 0")
    A("s_waitcnt vmcnt(10)", "s_barrier")
    ST.rt("w_landed")
    for n in range(4): A(f"ds_read_b128 {vr(OFr[n],4)}, v11 offset:{n*1024}")
    for n in range(16):
        A(f"s_waitcnt lgkmcnt({min(3,15-n)})")
        A(mfma32(ACB, WBF[n], OFr[n%4], ACB))
        if n+4<16: A(f"ds_read_b128 {vr(OFr[n%4],4)}, v11 offset:{(n+4)*1024}")
    ST.rt("b_half")
    A(f"s_add_u32 s36, s36, {FL_F2A-FL_F2B}")
    A(f"s_cmp_lg_u32 s{sW}, 0", "s_cbranch_scc1 P3_askip", f"s_mov_b32 s46, {SPIN_MAX}")
    A("P3_achk:", f"buffer_load_dword v{vFb}, v{vFa}, {W_}, s36 offen sc1", "s_waitcnt vmcnt(0)",
      f"v_cmp_ne_u32 vcc, s{sNONCE}, v{vFb}", "s_nop 1", "s_cmp_eq_u64 vcc, 0", "s_cbranch_scc1 P3_askip",
      "s_sub_u32 s46, s46, 1", "s_cmp_eq_u32 s46, 0", "s_cbranch_scc1 P3_askip", "s_branch P3_achk", "P3_askip:")
    A("s_waitcnt vmcnt(0)", "s_barrier")
    ST.rt("p2_flags")
    A(odma(0))
    A("s_cmp_lg_u32 s2, 0", "s_cbranch_scc1 P3_noep", f"s_mov_b32 s43, {FL+FL_EPOCH}")
    setflag(A,"ep",43,5)
    A("P3_noep:")
    for n in range(16):
        A(wrd2(WA+4*n,9,n))
        if n%4==3: A("s_waitcnt lgkmcnt(4)")
    for r in range(2):
        A(f"s_waitcnt vmcnt({4-4*r}) lgkmcnt(0)", "s_barrier")
        for s_ in range(4): A(f"ds_read_b128 {vr(OFr[s_],4)}, v11 offset:{(8*r+s_)*1024}")
        for s_ in range(8):
            n=8*r+s_
            A(f"s_waitcnt lgkmcnt({3 if s_<5 else 7-s_})")
            A(mfma32(ACA, WA+4*n, OFr[s_%4], ACA))
            if s_<4: A(f"ds_read_b128 {vr(OFr[s_%4],4)}, v11 offset:{(8*r+s_+4)*1024}")
    ST.rt("p3_mfma")
    A("s_nop 7","s_nop 3")
    for i in range(16): A(f"v_sub_f32 v{ACA+i}, v{ACA+i}, v{ACB+i}")
    for i in range(16): A(f"v_fma_f32 v{ACA+i}, v14, v{ACA+i}, v{ACB+i}")
    ACC=ACA
    A(f"s_lshl_b32 s43, s{sW}, 11", "v_add_u32 v5, s43, v3", f"s_xor_b32 s44, s{sW}, 4", "s_lshl_b32 s44, s44, 11", "v_add_u32 v6, s44, v3")
    PK=40
    A("s_cmp_eq_u32 s54, 0", "s_cbranch_scc0 P3_k1")
    for kq,lab in ((0,None),(1,"P3_k1")):
        if lab: A("s_branch P3_kdone", f"{lab}:")
        own=ACC+8*kq; oth=ACC+8*(1-kq)
        A(f"ds_write_b128 v5, {vr(oth,4)}", f"ds_write_b128 v5, {vr(oth+4,4)} offset:1024", "s_waitcnt lgkmcnt(0)", "s_barrier")
        A(f"ds_read_b128 {vr(32,4)}, v6", f"ds_read_b128 {vr(36,4)}, v6 offset:1024", "s_waitcnt lgkmcnt(0)")
        for i in range(8): A(f"v_add_f32 v{own+i}, v{own+i}, v{32+i}")
        for i in range(4): A(f"v_cvt_pk_bf16_f32 v{PK+i}, v{own+2*i}, v{own+2*i+1}")
    A("P3_kdone:")
    A("s_nop 1", f"v_permlane32_swap_b32 v{PK}, v{PK+2}", f"v_permlane32_swap_b32 v{PK+1}, v{PK+3}")
    A("v_lshlrev_b32 v5, 10, v12", "v_lshl_add_u32 v5, v8, 4, v5",
      "s_lshl_b32 s42, s51, 7", "s_lshl_b32 s43, s53, 6", "s_add_u32 s42, s42, s43", "s_lshl_b32 s43, s54, 5", "s_add_u32 s42, s42, s43")
    A(f"buffer_store_dwordx4 {vr(PK,4)}, v5, s[{SRD_C}:{SRD_C+3}], s42 offen" + (" sc1" if 'outsc1' in opt else "") + (" nt" if 'outnt' in opt else ""))

def gen(opt=()):
    A=Asm(); ST=Stamps(A,'stamps' in opt)
    pr=[o[6:] for o in opt if o.startswith('probe=')]
    if pr: ST.probe=pr[0]
    cy=[o[4:] for o in opt if o.startswith('cyc=')]
    if cy: ST.cp=cy[0].split(':')
    A(f".globl {NAME}", ".p2align 8", f".type {NAME},@function", f"{NAME}:")
    A("s_cmp_ge_u32 s2, 256", "s_cbranch_scc1 L_done")
    if 'scramble' in opt: A("s_lshr_b32 s3, s2, 3", "s_and_b32 s2, s2, 7", "s_lshl_b32 s2, s2, 5", "s_or_b32 s2, s2, s3")
    A(f"s_load_dwordx2 s[{sWS}:{sWS+1}], s[0:1], 72", "s_load_dwordx2 s[42:43], s[0:1], 0", "s_load_dwordx2 s[44:45], s[0:1], 8",
      "s_load_dwordx2 s[46:47], s[0:1], 32", "s_load_dwordx2 s[48:49], s[0:1], 48",
      f"s_load_dwordx2 s[{pWOA}:{pWOA+1}], s[0:1], 16", f"s_load_dwordx2 s[{pWOB}:{pWOB+1}], s[0:1], 40", f"s_load_dwordx2 s[{pOUT}:{pOUT+1}], s[0:1], 56")
    rot=[int(o[3:]) for o in opt if o.startswith('rot')]
    if rot: A(f"s_add_u32 s{sX}, s2, {rot[0]}", f"s_and_b32 s{sX}, s{sX}, 7")
    else: A(f"s_and_b32 s{sX}, s2, 7")
    A(f"s_lshr_b32 s{sI}, s2, 3", f"s_lshr_b32 s{sJ}, s{sI}, 2", f"s_and_b32 s{sA}, s{sI}, 3",
      f"s_lshr_b32 s{sBR}, s{sA}, 1", f"s_and_b32 s50, s{sA}, 1", f"s_lshl_b32 s{sRB}, s{sJ}, 1", f"s_add_u32 s{sRB}, s{sRB}, s50",
      f"s_lshl_b32 s{sH}, s{sX}, 2", f"s_add_u32 s{sH}, s{sH}, s{sA}")
    A("v_lshrrev_b32 v1, 6, v0", "v_and_b32 v2, 63, v0", "s_nop 0", f"v_readfirstlane_b32 s{sW}, v1")
    if 'pf' in opt:
        A("s_getpc_b64 s[50:51]", "L_pc:", f"s_sub_u32 s50, s50, (L_pc-{NAME})", "s_subb_u32 s51, s51, 0")
        A(f"s_lshl_b32 s52, s{sI}, 1", f"s_add_u32 s52, s52, s{sW}", "s_lshl_b32 s52, s52, 10", "v_lshlrev_b32 v3, 4, v2", "v_add_u32 v3, s52, v3")
        A(f"s_cmp_lt_u32 s{sW}, 2", "s_cbranch_scc0 L_nopf", f"s_cmp_lt_u32 s52, (L_done-{NAME}-1024)", "s_cbranch_scc0 L_nopf",
          "global_load_dwordx4 v[252:255], v3, s[50:51]", "L_nopf:")
    if 'spin60' in opt: A("s_memrealtime s[90:91]")
    A("s_waitcnt lgkmcnt(0)")
    wb=[int(o[2:]) for o in opt if o.startswith('wb') and o[2:].isdigit()]
    if wb: A(f"s_add_u32 s{sWS}, s{sWS}, {wb[0]<<20}", f"s_addc_u32 s{sWS+1}, s{sWS+1}, 0")
    ST.rt("start"); ST.cyc("cyc0")
    A(f"s_add_u32 s6, s{sWS}, {FL+FL_EPOCH}", f"s_addc_u32 s7, s{sWS+1}, 0", "s_load_dword s3, s[6:7], 0")
    srd(A,SRD_WS,sWS,WS_SIZE)
    srd(A,SRD_A,42,2048*512*2)
    A(f"s_cmp_eq_u32 s{sBR}, 0", "s_cselect_b32 s44, s44, s46", "s_cselect_b32 s45, s45, s47")
    srd(A,SRD_B,44,512*1536*2)
    srd(A,SRD_C,48,1024)
    phase1(A,ST,opt)
    phase2(A,ST,opt)
    phase3(A,ST,opt)
    if pr:
        A("s_waitcnt vmcnt(0)", "L_probe:", "s_memrealtime s[80:81]", "s_waitcnt lgkmcnt(0)", "s_sub_u32 s80, s80, s100", *(["s_lshr_b32 s81, s63, 2", "s_add_u32 s81, s81, 6000", "s_cmp_lt_u32 s80, s81"] if cy else ["s_cmp_lt_u32 s80, 6000"]), "s_cbranch_scc1 L_probe")
    if 'spin60' in opt:
        A("s_waitcnt vmcnt(0)", "L_spin:", "s_memrealtime s[80:81]", "s_waitcnt lgkmcnt(0)", "s_sub_u32 s80, s80, s90", "s_cmp_lt_u32 s80, 6000", "s_cbranch_scc1 L_spin")
    if ST.on: A("s_waitcnt vmcnt(0)")
    ST.rt("end"); ST.cyc("cyc1")
    ST.flush(120)
    A("L_done:", "s_endpgm")
    kd=f""".section .rodata,"a"
.p2align 6
.amdhsa_kernel {NAME}
  .amdhsa_next_free_vgpr 256
  .amdhsa_next_free_sgpr 102
  .amdhsa_accum_offset 256
  .amdhsa_group_segment_fixed_size 0
  .amdhsa_kernarg_size 80
  .amdhsa_user_sgpr_count 2
  .amdhsa_user_sgpr_kernarg_segment_ptr 1
  .amdhsa_system_sgpr_workgroup_id_x 1
.end_amdhsa_kernel
"""
    return A.text(), kd, ST.names

if __name__=='__main__':
    import sys, hazard
    out=sys.argv[1]; opt=tuple(sys.argv[2:])
    HDR=open('gated_mix__softmax_full_mha__sliding_block__prompt.s.ref').read().split('\n')
    hdr=[l for l in HDR if l.startswith(';') and 'launch' not in l.lower() and 'Override' not in l and 'grid=ceil' not in l]
    t,kd,names=gen(opt)
    s='\n'.join(hdr)+'\n'+"; @launch grid=(256,1,1) block=(512,1,1) lds=163840\n"+'.amdgcn_target "amdgcn-amd-amdhsa--gfx950"\n.text\n'+t+kd
    open(out,'w').write(s)
    print('hazards',len(hazard.check(t)),'bytes',len(s),'stamps',','.join(names))
    sys.path.insert(0,'cdna_kernels')
    import subprocess
    from cdna_launch import with_harness_metadata, address_register_problem
    open('h.s','w').write(with_harness_metadata(s,NAME,10,launch_lists=True))
    r=subprocess.run(['clang','-x','assembler','-target','amdgcn-amd-amdhsa','-mcpu=gfx950','h.s','-o','h.co'],capture_output=True,text=True)
    if r.returncode: print(r.stderr)
    else:
        print('check:',address_register_problem('h.co',NAME))
        d=subprocess.run(['llvm-objdump','-d','--mcpu=gfx950','h.co'],capture_output=True,text=True).stdout
        import re
        ad=[int(m,16) for m in re.findall(r'// ([0-9A-F]{12}):',d)]
        print('code bytes',ad[-1]-ad[0]-768)
```

```python
from asm import Asm, vr, sr, mfma32
import struct
def f2u(x): return struct.unpack('<I',struct.pack('<f',x))[0]
NAME="gated_mix__softmax_full_mha__sliding_block__prompt_kernel"
QF=0; KF=4<<20; VF=8<<20; GOFF=12<<20; OF=16<<20; FL=30<<20; WS_SIZE=31<<20
FL_EPOCH=0; FL_F0=1024; FL_F1=2048; FL_F2=8192; FL_F2B=16384; FL_F2A=32768
FSTR=16
F1STR=4
STAMP_OFF=32<<20
QSCALE=0.25*1.4426950408889634
NEG=f2u(-2.0**100); LLO=f2u(2.0**-64); LHI=f2u(2.0**64)
SPIN_MAX=1<<20
sNONCE=3; sWS=4
SRD_WS=8; SRD_A=12; SRD_B=16; SRD_C=20; SRD_PT=56
sW=24; sX=25; sI=26; sJ=27; sA=28; sBR=29; sRB=30; sH=31
sMASK=40
sXCC=37; sMODE=39
pWOA=84; pWOB=86; pOUT=88

class Stamps:
    def __init__(s, A, on): s.A=A; s.on=on; s.n=0; s.names=[]; s.skip=('p1_stored','l_pre'); s.probe=None; s.cp=None
    def rt(s,name):
        if s.cp and name==s.cp[0]: s.A("s_memtime s[96:97]", "s_waitcnt lgkmcnt(0)", "s_mov_b32 s63, s96")
        if s.cp and name==s.cp[1]: s.A("s_memtime s[96:97]", "s_waitcnt lgkmcnt(0)", "s_sub_u32 s63, s96, s63")
        if s.probe==name:
            s.A("s_memrealtime s[100:101]", "s_waitcnt lgkmcnt(0)")
        if not s.on or name in s.skip: return
        s.A("s_memrealtime s[80:81]", "s_waitcnt lgkmcnt(0)", f"s_mov_b32 s{64+s.n}, s80"); s.names.append(name); s.n+=1
    def cyc(s,name):
        if not s.on: return
        s.A("s_memtime s[80:81]", "s_waitcnt lgkmcnt(0)", f"s_mov_b32 s{64+s.n}, s80"); s.names.append(name); s.n+=1
    def flush(s, vtmp):
        if not s.on: return
        A=s.A
        A(f"s_mov_b32 s92, s{sWS}", f"s_mov_b32 s93, s{sWS+1}", "s_mov_b32 s94, 0x10000000", "s_mov_b32 s95, 0x00020000")
        A(f"s_lshl_b32 s80, s2, 3", f"s_add_u32 s80, s80, s{sW}", "s_lshl_b32 s80, s80, 6", f"s_add_u32 s80, s80, {STAMP_OFF}")
        for i in range(s.n):
            A(f"v_mov_b32 v{vtmp}, s{64+i}", f"v_mov_b32 v{vtmp+1}, {4*i}", f"buffer_store_dword v{vtmp}, v{vtmp+1}, s[92:95], s80 offen")

def srd(A, s, base, size):
    A(f"s_mov_b32 s{s}, s{base}", f"s_mov_b32 s{s+1}, s{base+1}", f"s_mov_b32 s{s+2}, {size}", f"s_mov_b32 s{s+3}, 0x00020000")

def poll(A, tag, flag_off_sgpr, vaddr, vtmp, stride=FSTR):
    A(f"s_cmp_lg_u32 s{sW}, 0", f"s_cbranch_scc1 L_{tag}_skip")
    A(f"v_and_b32 v{vaddr}, 31, v0", f"v_mul_u32_u24 v{vaddr}, {stride}, v{vaddr}", f"s_mov_b32 s42, {SPIN_MAX}")
    A(f"L_{tag}_loop:")
    A(f"buffer_load_dword v{vtmp}, v{vaddr}, s[{SRD_WS}:{SRD_WS+3}], s{flag_off_sgpr} offen sc1")
    A("s_waitcnt vmcnt(0)")
    A(f"v_cmp_ne_u32 vcc, s{sNONCE}, v{vtmp}", "s_nop 1", "s_cmp_eq_u64 vcc, 0", f"s_cbranch_scc1 L_{tag}_skip")
    A("s_sub_u32 s42, s42, 1", "s_cmp_eq_u32 s42, 0", f"s_cbranch_scc1 L_{tag}_skip", "s_sleep 1", f"s_branch L_{tag}_loop")
    A(f"L_{tag}_skip:")

def setflag(A, tag, off_sgpr, vt, sc=" sc1"):
    A(f"s_cmp_lg_u32 s{sW}, 0", f"s_cbranch_scc1 L_{tag}_nf")
    A(f"v_mov_b32 v{vt}, s{sNONCE}", f"v_mov_b32 v{vt+1}, 0", "s_mov_b64 exec, 1",
      f"buffer_store_dword v{vt}, v{vt+1}, s[{SRD_WS}:{SRD_WS+3}], s{off_sgpr} offen{sc}", "s_mov_b64 exec, -1")
    A(f"L_{tag}_nf:")

def mfma16(d,a,b,c): return f"v_mfma_f32_16x16x32_bf16 {vr(d,4)}, {vr(a,4)}, {vr(b,4)}, {vr(c,4)}"
def w_src_addr(A, v, t5, t6, t7, lane, cb_sgpr, stmp):
    A(f"v_lshrrev_b32 v{t5}, 3, v{lane}", f"v_lshlrev_b32 v{t5}, 10, v{t5}", f"v_bfe_u32 v{t6}, v{lane}, 4, 1", f"v_lshlrev_b32 v{t6}, 2, v{t6}", f"v_and_b32 v{t7}, 7, v{lane}",
      f"v_xor_b32 v{t6}, v{t6}, v{t7}", f"v_lshl_add_u32 v{t5}, v{t6}, 4, v{t5}", f"s_lshl_b32 s{stmp}, s{cb_sgpr}, 7", f"v_add_u32 v{v}, s{stmp}, v{t5}")
def w_frag_addr(A, v, t6, t7, lane, ct_sgpr, stmp):
    A(f"v_lshrrev_b32 v{t6}, 5, v{lane}", f"v_bfe_u32 v{v}, v{lane}, 2, 2", f"v_lshl_add_u32 v{v}, v{t6}, 2, v{v}", f"v_lshlrev_b32 v{v}, 7, v{v}",
      f"v_bfe_u32 v{t6}, v{lane}, 4, 1", f"v_lshlrev_b32 v{t6}, 1, v{t6}", f"v_bfe_u32 v{t7}, v{lane}, 1, 1", f"v_add_u32 v{t6}, v{t6}, v{t7}",
      f"s_lshl_b32 s{stmp}, s{ct_sgpr}, 2", f"v_add_u32 v{t6}, s{stmp}, v{t6}",
      f"v_bfe_u32 v{t7}, v{lane}, 3, 1", f"v_lshlrev_b32 v{t7}, 2, v{t7}", f"v_xor_b32 v{t6}, v{t6}, v{t7}", f"v_lshl_add_u32 v{v}, v{t6}, 4, v{v}",
      f"v_and_b32 v{t7}, 1, v{lane}", f"v_lshl_add_u32 v{v}, v{t7}, 3, v{v}")
def wrd2(dst, base, n): return [f"ds_read_b64_tr_b16 {vr(dst,2)}, v{base} offset:{(16*n)*128}", f"ds_read_b64_tr_b16 {vr(dst+2,2)}, v{base} offset:{(16*n+8)*128}"]

def phase1(A, ST, opt):
    lane=2; vX=3; vW=4; t0=5; t1=6; t2=7; g_t=8
    W_=f"s[{SRD_WS}:{SRD_WS+3}]"
    GX=232; GW=236
    PT=240; F0V=244; vF0=246; vPT=247
    PTF="sc1"
    if 'ptnt' in opt: PTF="sc1 nt"
    if 'ptplain' in opt: PTF=""
    PTC=int([o[3:] for o in opt if o.startswith('ptc')][0]) if any(o.startswith('ptc') for o in opt) else 5
    if 'nopt1' in opt: PTC=99
    STG=40960
    A(f"v_lshlrev_b32 v24, 4, v{lane}")
    LF='computefirst' not in opt
    if LF: A(f"s_cmp_lt_u32 s{sW}, 4", "s_cbranch_scc1 P1_compute")
    else: A(f"s_cmp_ge_u32 s{sW}, 4", "s_cbranch_scc1 P1_loader")
    i_c0=len(A.L)
    if LF: A("P1_compute:")
    n_save=ST.n; names_save=list(ST.names)
    def gate_loads():
        A(f"s_lshl_b32 s62, s{sJ}, 8", f"s_and_b32 s42, s{sW}, 3", "s_lshl_b32 s42, s42, 6", "s_add_u32 s62, s62, s42", f"s_lshl_b32 s42, s{sH}, 1", "s_add_u32 s62, s62, s42",
          f"s_lshr_b32 s42, s{sW}, 2", "s_add_u32 s62, s62, s42", "s_lshl_b32 s42, s62, 10",
          f"buffer_load_dwordx4 {vr(GX,4)}, v24, s[{SRD_A}:{SRD_A+3}], s42 offen", f"buffer_load_dwordx4 {vr(GW,4)}, v24, s[{SRD_C}:{SRD_C+3}], 0 offen")
    gate_loads()
    if 'tlbw' in opt:
        sh=int([o[4:] for o in opt if o.startswith('tlbs')][0]) if any(o.startswith('tlbs') for o in opt) else 16
        A(f"v_lshlrev_b32 v241, {sh}, v{lane}", f"s_lshl_b32 s42, s{sX}, 7", f"buffer_load_dword v242, v241, s[{SRD_B}:{SRD_B+3}], s42 offen sc1")
    A(f"s_and_b32 s34, s{sW}, 1", f"s_lshr_b32 s35, s{sW}, 1")
    A(f"s_lshl_b32 s42, s{sX}, 2", "s_lshl_b32 s43, s35, 1", "s_add_u32 s42, s42, s43", f"s_lshl_b32 s43, s{sBR}, 5", "s_add_u32 s42, s42, s43",
      "s_lshl_b32 s42, s42, 16", f"s_lshl_b32 s43, s{sRB}, 1", "s_add_u32 s43, s43, s34", "s_lshl_b32 s43, s43, 11", "s_add_u32 s56, s42, s43")
    A(f"v_and_b32 v{vF0}, 31, v{lane}", f"v_lshlrev_b32 v{vF0}, 2, v{vF0}", f"v_lshrrev_b32 v{t0}, 5, v{lane}", f"v_lshl_add_u32 v{vF0}, v{t0}, 10, v{vF0}",
      f"s_lshl_b32 s58, s{sX}, 7", f"s_add_u32 s58, s58, {FL+FL_F0}", f"s_getreg_b32 s{sXCC}, hwreg(HW_REG_XCC_ID, 0, 4)")
    aX=[10,11]; aW=[18,19]; m=20
    A(f"v_lshrrev_b32 v{g_t}, 4, v{lane}", f"v_and_b32 v{m}, 15, v{lane}", f"v_lshrrev_b32 v{t0}, 1, v{m}",
      "s_lshl_b32 s42, s34, 6", f"v_add_u32 v{t1}, s42, v{m}", f"v_lshlrev_b32 v{t1}, 7, v{t1}")
    for s_ in range(2):
        A(f"v_or_b32 v{t2}, {4*s_}, v{g_t}", f"v_xor_b32 v{t2}, v{t2}, v{t0}", f"v_lshl_add_u32 v{aX[s_]}, v{t2}, 4, v{t1}")
    A(f"v_bfe_u32 v{t0}, v{lane}, 2, 2", f"v_lshl_add_u32 v{t1}, v{g_t}, 3, v{t0}", f"v_lshlrev_b32 v{t1}, 7, v{t1}",
      f"v_and_b32 v21, 1, v{lane}", f"v_lshl_add_u32 v{t1}, v21, 3, v{t1}", f"v_add_u32 v{t1}, 16384, v{t1}",
      f"v_bfe_u32 v{t2}, v{lane}, 3, 1", f"v_bfe_u32 v21, v{lane}, 4, 1", f"v_lshl_or_b32 v{t2}, v21, 1, v{t2}", f"v_lshlrev_b32 v{t2}, 1, v{t2}",
      f"v_bfe_u32 v21, v{lane}, 1, 1", "s_lshl_b32 s42, s35, 2", "v_or_b32 v21, s42, v21")
    for hd in range(2):
        A(f"v_or_b32 v22, {2*hd}, v21", f"v_xor_b32 v22, v{t2}, v22", f"v_lshl_add_u32 v{aW[hd]}, v22, 4, v{t1}")
    def l2pf():
        if 'l2pf' in opt:
            C0=int([o[2:] for o in opt if o.startswith('c0')][0]) if any(o.startswith('c0') for o in opt) else 3
            NCH=8-C0
            vq=240
            A(f"s_lshl_b32 s42, s{sRB}, 7", f"s_lshl_b32 s43, s{sBR}, 6", "s_add_u32 s42, s42, s43", f"s_lshl_b32 s43, s{sW}, 4", "s_add_u32 s42, s42, s43",
              f"v_add_u32 v{vq}, s42, v{m}", f"v_lshlrev_b32 v{vq}, 10, v{vq}", f"v_lshl_add_u32 v{vq}, v{g_t}, 7, v{vq}", f"s_movk_i32 s43, {128*C0}",
              f"buffer_load_dword v{vq+2}, v{vq}, s[{SRD_A}:{SRD_A+3}], s43 offen sc1" if 'pfx' in opt else "s_nop 0")
            if NCH>4 and 'pfx' in opt: A(f"buffer_load_dword v{vq+3}, v{vq}, s[{SRD_A}:{SRD_A+3}], s43 offen offset:512 sc1")
            A(f"v_mul_u32_u24 v{vq}, 43, v{lane}", f"v_lshrrev_b32 v{vq}, 7, v{vq}", f"v_mul_u32_u24 v{vq+1}, 3, v{vq}", f"v_sub_u32 v{vq+1}, v{lane}, v{vq+1}",
              f"s_mul_i32 s42, s{sRB}, {4*NCH}", f"s_mul_i32 s43, s{sW}, {NCH}", "s_add_u32 s42, s42, s43", f"s_add_u32 s42, s42, {64*C0}",
              f"v_add_u32 v{vq}, s42, v{vq}", f"v_mul_u32_u24 v{vq}, 3072, v{vq}", f"v_lshl_add_u32 v{vq}, v{vq+1}, 10, v{vq}",
              f"v_cmp_gt_u32 vcc, {3*NCH}, v{lane}", f"v_mov_b32 v{vq+1}, 0x7ff00000", f"s_lshl_b32 s43, s{sX}, 7", f"v_cndmask_b32 v{vq}, v{vq+1}, v{vq}, vcc",
              f"buffer_load_dword v{vq+2}, v{vq}, s[{SRD_B}:{SRD_B+3}], s43 offen sc1{' nt' if 'wnt' in opt else ''}")
    if 'pfearly' in opt: l2pf()
    def T(hd,a,rt): return 32+48*hd+16*a+4*rt
    XF=[128,144]; WF=[[160,164,168],[172,176,180]]
    for i in range(96): A(f"v_mov_b32 v{32+i}, 0")
    def wrd(hd,a,s_):
        if 'p1noread' in opt: return ["s_nop 0","s_nop 0"]
        return [f"ds_read_b64_tr_b16 {vr(WF[hd][a]+2*rr,2)}, v{aW[hd]} offset:{a*8192+(32*s_+4*rr)*128}" for rr in range(2)]
    def xrd(s_,rt):
        if 'p1noread' in opt: return ["s_nop 0"]
        return [f"ds_read_b128 {vr(XF[s_]+4*rt,4)}, v{aX[s_]} offset:{rt*2048}"]
    def setA(s_): return wrd(0,0,s_)+xrd(s_,0)+xrd(s_,1)+wrd(0,1,s_)+xrd(s_,2)+xrd(s_,3)+wrd(0,2,s_)
    def setB(s_): return wrd(1,0,s_)+wrd(1,1,s_)+wrd(1,2,s_)
    def mf(hd,s_):
        x=XF[s_]; w=WF[hd]; L=[]
        for rt in (0,1): L.append(mfma16(T(hd,0,rt), w[0], x+4*rt, T(hd,0,rt)))
        for rt in (0,1): L.append(mfma16(T(hd,1,rt), w[1], x+4*rt, T(hd,1,rt)))
        for rt in (2,3): L.append(mfma16(T(hd,0,rt), w[0], x+4*rt, T(hd,0,rt)))
        for rt in (2,3): L.append(mfma16(T(hd,1,rt), w[1], x+4*rt, T(hd,1,rt)))
        for rt in range(4): L.append(mfma16(T(hd,2,rt), x+4*rt, w[2], T(hd,2,rt)))
        return L
    needA=[2,3,5,5,6,7,7,7,9,9,9,9]; needB=[1,1,3,3,3,3,3,3,5,5,5,5]
    def half(mfs, need, nold, new, pre=None, at=None):
        prev=-1; issued=0
        for k in range(12):
            if need[k]>prev:
                A(f"s_waitcnt lgkmcnt({(nold-1-need[k])+issued})"); prev=need[k]
            if pre and k==pre[0]: pre[1]()
            A(mfs[k])
            if k>=at and issued<len(new):
                n=1 if (len(new)-issued)<=(12-k-1) else 2
                n=min(n,len(new)-issued)
                A(new[issued:issued+n]); issued+=n
        assert issued==len(new)
    A("s_mov_b32 s49, 0", "s_mov_b32 s36, 0", f"s_mov_b32 s53, {STG}")
    A("s_barrier")
    A("s_waitcnt lgkmcnt(0)", f"s_mul_i32 s{sNONCE}, s3, 0x9e3779b1", f"s_add_u32 s{sNONCE}, s{sNONCE}, 0x7f4a7c15")
    ST.rt("p1_data")
    A(setA(0))
    if 'pfearly' not in opt: l2pf()
    if 'codepf' in opt:
        A(f"s_cmp_lg_u32 s{sW}, 1", "s_cbranch_scc1 L_nocpf", "s_getpc_b64 s[42:43]", "L_cpf_pc:", "s_add_u32 s42, s42, (P1_after-L_cpf_pc)", "s_addc_u32 s43, s43, 0",
          f"v_lshlrev_b32 v241, 7, v{lane}", "v_min_u32 v242, (L_done-P1_after-8192), v241")
        A("v_min_u32 v243, (L_done-P1_after), v241", "global_load_dword v240, v243, s[42:43]",
          "v_add_u32 v243, 8192, v242", "global_load_dword v240, v243, s[42:43]", "L_nocpf:")
    A(f"s_cmp_lg_u32 s{sW}, 0", "s_cbranch_scc1 L_f0_nf", f"s_add_u32 s42, s{sNONCE}, s{sXCC}", f"s_lshl_b32 s43, s{sI}, 2", "s_add_u32 s43, s43, s58",
      "v_mov_b32 v5, s42", "v_mov_b32 v6, 0", "s_mov_b64 exec, 1", f"buffer_store_dword v5, v6, {W_}, s43 offen sc1", "s_mov_b64 exec, -1", "L_f0_nf:")
    A(".p2align 3", "P1_loop:")
    half(mf(0,0), needA, 10, setB(0), at=2)
    half(mf(1,0), needB, 6, setA(1), at=1)
    half(mf(0,1), needA, 10, setB(1), at=2)
    def boundary():
        A("s_add_u32 s36, s36, 1", "s_cmp_eq_u32 s36, 4", f"s_cselect_b32 s52, {(-3*STG)&0xffffffff:#x}, s53", "s_cselect_b32 s36, 0, s36", "s_waitcnt lgkmcnt(0)")
        for r in aX+aW: A(f"v_add_u32 v{r}, s52, v{r}")
        A("s_cmp_eq_u32 s49, 4", "s_cbranch_scc1 P1_f0ld", "P1_f0back:", "s_barrier")
        if ST.probe and ST.probe.startswith('it'):
            A(f"s_cmp_eq_u32 s49, {ST.probe[2:]}", "s_cbranch_scc0 P1_noprobe", "s_memrealtime s[100:101]", "s_waitcnt lgkmcnt(0)", "P1_noprobe:")
        if 'p1it' in opt:
            A("s_memtime s[80:81]", "s_waitcnt lgkmcnt(0)")
            for k in range(7): A(f"s_mov_b32 s{64+8+k}, s{64+9+k}")
            A(f"s_mov_b32 s{64+15}, s80")
    half(mf(1,1), needB, 6, setA(0), pre=(3,boundary), at=3)
    A("s_add_u32 s49, s49, 1", "s_cmp_lt_u32 s49, 8", "s_cbranch_scc1 P1_loop")
    ST.rt("p1_loop")
    if 'p1it' in opt:
        ST.n=16; ST.flush(210); A("s_waitcnt vmcnt(0)", "s_endpgm")
    A("s_branch P1_after")
    A("P1_f0ld:", f"buffer_load_dword v{F0V}, v{vF0}, {W_}, s58 offen sc1", "s_branch P1_f0back")
    A("P1_after:")
    A("s_waitcnt vmcnt(0)", f"s_mov_b32 s42, {SPIN_MAX}")
    A("P1_chk:", f"v_subrev_u32 v{F0V+1}, s{sNONCE}, v{F0V}", f"v_cmp_gt_u32 vcc, 8, v{F0V+1}", "s_nop 1", "s_cmp_eq_u32 vcc_lo, -1", "s_cbranch_scc1 P1_chk_ok")
    A("s_sub_u32 s42, s42, 1", "s_cmp_eq_u32 s42, 0", "s_cbranch_scc1 P1_chk_ok", "s_sleep 1",
      f"buffer_load_dword v{F0V}, v{vF0}, {W_}, s58 offen sc1", "s_waitcnt vmcnt(0)", "s_branch P1_chk")
    A("P1_chk_ok:", f"v_cmp_eq_u32 vcc, s{sXCC}, v{F0V+1}", "s_nop 1", "s_cmp_eq_u32 vcc_lo, -1", f"s_cselect_b32 s{sMODE}, 1, 0")
    if 'forcesafe' in opt: A(f"s_mov_b32 s{sMODE}, 0")
    if 'fine3' in opt: ST.rt("mode")
    A(f"s_mov_b32 s44, {hex(f2u(QSCALE))}", "s_waitcnt lgkmcnt(0)")
    for hd in range(2):
        PK=128+24*hd
        TQ,TK,TV=T(hd,0,0),T(hd,1,0),T(hd,2,0)
        for t in range(2):
            for i in range(4): A(f"v_cvt_pk_bf16_f32 v{PK+4*t+i}, v{TK+8*t+2*i}, v{TK+8*t+2*i+1}")
        for t in range(2):
            for i in range(4): A(f"v_cvt_pk_bf16_f32 v{PK+8+4*t+i}, v{TV+8*t+2*i}, v{TV+8*t+2*i+1}")
        for i in range(16): A(f"v_mul_f32 v{TQ+i}, s44, v{TQ+i}")
        for t in range(2): A(f"v_permlane16_swap_b32 v{PK+4*t}, v{PK+4*t+2}", f"v_permlane16_swap_b32 v{PK+4*t+1}, v{PK+4*t+3}")
        for t in range(2):
            for i in range(4): A(f"v_cvt_pk_bf16_f32 v{PK+16+4*t+i}, v{TQ+8*t+2*i}, v{TQ+8*t+2*i+1}")
        for t in range(2): A(f"v_permlane32_swap_b32 v{PK+8+4*t}, v{PK+8+4*t+2}", f"v_permlane32_swap_b32 v{PK+8+4*t+1}, v{PK+8+4*t+3}")
        for t in range(2): A(f"v_permlane16_swap_b32 v{PK+16+4*t}, v{PK+16+4*t+2}", f"v_permlane16_swap_b32 v{PK+16+4*t+1}, v{PK+16+4*t+3}")
        A(f"s_add_u32 s46, s56, {hd*65536}", f"s_add_u32 s45, s46, {KF}", f"s_add_u32 s47, s46, {VF}")
        A(f"s_cmp_eq_u32 s{sMODE}, 0", f"s_cbranch_scc1 P1_st_safe{hd}")
        for sc,lab in (("",None),(" sc1",f"P1_st_safe{hd}")):
            if lab: A(f"s_branch P1_st_done{hd}", f"{lab}:")
            A(f"buffer_store_dwordx4 {vr(PK,4)}, v24, {W_}, s45 offen{sc}", f"buffer_store_dwordx4 {vr(PK+4,4)}, v24, {W_}, s45 offen offset:1024{sc}")
            A(f"buffer_store_dwordx4 {vr(PK+8,4)}, v24, {W_}, s47 offen{sc}", f"buffer_store_dwordx4 {vr(PK+12,4)}, v24, {W_}, s47 offen offset:1024{sc}")
            A(f"buffer_store_dwordx4 {vr(PK+16,4)}, v24, {W_}, s46 offen{sc}", f"buffer_store_dwordx4 {vr(PK+20,4)}, v24, {W_}, s46 offen offset:1024{sc}")
        A(f"P1_st_done{hd}:")
    if not LF: A("s_branch P1_join")
    i_l0=len(A.L)
    A("P1_loader:")
    n_end=ST.n; names_end=list(ST.names); ST.n=n_save; ST.names=list(names_save)
    A(f"s_and_b32 s34, s{sW}, 3")
    A(f"v_lshrrev_b32 v{t0}, 3, v{lane}", f"v_and_b32 v{t2}, 7, v{lane}", f"v_lshrrev_b32 v{t1}, 4, v{lane}", f"v_xor_b32 v{t1}, v{t1}, v{t2}",
      f"s_lshl_b32 s42, s{sRB}, 7", "s_lshl_b32 s43, s34, 5", "s_add_u32 s42, s42, s43", f"v_add_u32 v{vX}, s42, v{t0}", f"v_lshlrev_b32 v{vX}, 10, v{vX}",
      f"v_xor_b32 v9, 4, v{t1}", f"v_lshl_add_u32 v9, v9, 4, v{vX}", f"v_add_u32 v9, 8192, v9", f"v_lshl_add_u32 v{vX}, v{t1}, 4, v{vX}")
    A(f"v_add_u32 v10, 0x4000, v{vX}", "v_add_u32 v11, 0x4000, v9")
    A(f"v_bfe_u32 v{t1}, v{lane}, 4, 1", f"v_lshlrev_b32 v{t1}, 1, v{t1}", f"v_xor_b32 v{t1}, v{t1}, v{t2}",
      "s_lshl_b32 s43, s34, 4", f"v_add_u32 v{t0}, s43, v{t0}", f"v_mul_u32_u24 v{vW}, 3072, v{t0}", *([f"s_add_u32 s45, s{sX}, 2", "s_and_b32 s45, s45, 7", "s_lshl_b32 s45, s45, 7"] if 'wcol2' in opt else [f"s_lshl_b32 s45, s{sX}, 7"]), f"v_add_u32 v{vW}, s45, v{vW}",
      f"v_xor_b32 v12, 4, v{t1}", f"v_lshl_add_u32 v12, v12, 4, v{vW}", f"v_add_u32 v12, {8*3072}, v12", f"v_lshl_add_u32 v{vW}, v{t1}, 4, v{vW}")
    def dmas():
        L=[]
        xs=[vX,9,10,11]
        for ii in range(4):
            L.append([f"s_add_u32 m0, s46, {ii*1024}", "NOP", f"buffer_load_dwordx4 v{xs[ii]}, s[{SRD_A}:{SRD_A+3}], s47 offen{' nt' if 'xnt' in opt else ''} lds"])
        for seg in range(3):
            for ii in range(2):
                L.append([f"s_add_u32 m0, s57, {16384+seg*8192+ii*1024-seg*1024}", "NOP", f"buffer_load_dwordx4 v{[vW,12][ii]}, s[{SRD_B}:{SRD_B+3}], s48 offen offset:{seg*1024}{' nt' if 'wnt' in opt else ''} lds"])
        return L
    def issue():
        A("s_and_b32 s51, s50, 3", f"s_mul_i32 s51, s51, {STG}", "s_lshl_b32 s46, s34, 12", "s_add_u32 s46, s46, s51", "s_lshl_b32 s57, s34, 11", "s_add_u32 s57, s57, s51",
          *(["s_add_u32 s59, s50, s60", "s_and_b32 s59, s59, 7", "s_lshl_b32 s47, s59, 7", f"s_mul_i32 s48, s59, {64*3072}"] if True else ["s_lshl_b32 s47, s50, 7", f"s_mul_i32 s48, s50, {64*3072}"]))
        if 'p1nodma' not in opt:
            for g in dmas(): A([("s_nop 0" if x=="NOP" else x) for x in g])
        A("s_add_u32 s50, s50, 1")
    if 'krot1' in opt: A(f"s_and_b32 s60, s{sRB}, 7")
    elif 'krot2' in opt: A(f"s_lshl_b32 s60, s{sBR}, 2", f"s_add_u32 s60, s60, s{sRB}")
    elif 'krot3' in opt: A(f"s_lshr_b32 s60, s{sRB}, 1", f"s_lshl_b32 s59, s{sBR}, 2", "s_add_u32 s60, s60, s59")
    elif 'krot4' in opt: A(f"s_lshr_b32 s60, s{sRB}, 1", f"s_add_u32 s60, s60, s{sX}")
    elif 'krot0' in opt: A("s_mov_b32 s60, 0")
    elif 'krotrb' in opt: A(f"s_lshr_b32 s60, s{sRB}, 1")
    else: A(f"s_lshr_b32 s60, s{sRB}, 1", f"s_add_u32 s60, s60, s{sX}")
    A("s_mov_b32 s50, 0", "s_mov_b32 s49, 0")
    ST.rt("l_pre")
    A("P1_lpro:")
    issue()
    A("s_cmp_lt_u32 s50, 2", "s_cbranch_scc1 P1_lpro")
    gate_loads()
    A("s_waitcnt vmcnt(12)", "s_barrier")
    A("s_waitcnt lgkmcnt(0)", f"s_mul_i32 s{sNONCE}, s3, 0x9e3779b1", f"s_add_u32 s{sNONCE}, s{sNONCE}, 0x7f4a7c15")
    ST.rt("p1_data")
    A(f"v_lshrrev_b32 v{t0}, 4, v{lane}", f"v_lshlrev_b32 v{vPT}, 22, v{t0}", f"v_bfe_u32 v{t0}, v{lane}, 3, 1", f"v_lshl_add_u32 v{vPT}, v{t0}, 10, v{vPT}",
      f"v_and_b32 v{t0}, 7, v{lane}", f"v_lshl_add_u32 v{vPT}, v{t0}, 7, v{vPT}", f"v_cmp_gt_u32 vcc, 48, v{lane}", f"v_mov_b32 v{t0}, 0x7ff00000", "s_nop 0",
      f"v_cndmask_b32 v{vPT}, v{t0}, v{vPT}, vcc")
    A("s_and_b32 s42, s34, 1", "s_lshr_b32 s43, s34, 1",
      f"s_lshl_b32 s44, s{sX}, 2", "s_lshl_b32 s43, s43, 1", "s_add_u32 s44, s44, s43", f"s_lshl_b32 s43, s{sBR}, 5", "s_add_u32 s44, s44, s43", "s_lshl_b32 s44, s44, 16",
      f"s_lshl_b32 s43, s{sRB}, 1", "s_add_u32 s43, s43, s42", "s_lshl_b32 s43, s43, 11", "s_add_u32 s56, s44, s43")
    issue_lbl="P1_lloop"
    A("P1_lpro2:")
    issue()
    A("s_cmp_lt_u32 s50, 4", "s_cbranch_scc1 P1_lpro2")
    A("P1_lloop:")
    A("s_cmp_lt_u32 s49, 5", "s_cbranch_scc0 P1_ltail", "s_waitcnt vmcnt(20)", "s_branch P1_lbar")
    A("P1_ltail:", "s_cmp_eq_u32 s49, 5", "s_cbranch_scc0 P1_ltail2", "s_waitcnt vmcnt(10)", "s_branch P1_lbar")
    A("P1_ltail2:", "s_cmp_eq_u32 s49, 6", "s_cbranch_scc0 P1_lbar", f"s_waitcnt vmcnt({2 if PTC==5 else 0})")
    A("P1_lbar:", "s_barrier")
    if ST.probe and ST.probe.startswith('it'):
        A(f"s_cmp_eq_u32 s49, {ST.probe[2:]}", "s_cbranch_scc0 P1_lnoprobe", "s_memrealtime s[100:101]", "s_waitcnt lgkmcnt(0)", "P1_lnoprobe:")
    A("s_cmp_lt_u32 s50, 8", "s_cbranch_scc0 P1_lnoiss")
    issue()
    A("P1_lnoiss:")
    A(f"s_cmp_eq_u32 s49, {PTC}", "s_cbranch_scc0 P1_lnopt", "s_add_u32 s42, s56, 65536",
      f"buffer_load_dword v{PT}, v{vPT}, {W_}, s56 offen {PTF}", f"buffer_load_dword v{PT+1}, v{vPT}, {W_}, s42 offen {PTF}", "P1_lnopt:")
    A("s_add_u32 s49, s49, 1", "s_cmp_lt_u32 s49, 8", "s_cbranch_scc1 P1_lloop")
    ST.rt("p1_loop")
    if 'p1it' in opt:
        A("s_waitcnt vmcnt(0)", "s_endpgm")
    if 'fine3' in opt: ST.rt("mode")
    A(f"s_mov_b32 s{sMODE}, 0")
    if LF:
        A("s_branch P1_join")
        A.L[i_c0:]=A.L[i_l0:]+A.L[i_c0:i_l0]
    A("P1_join:", "s_nop 1")
    assert ST.n==n_end or 'p1it' in opt
    if 'fine3' in opt: ST.rt("st_iss")

def gate(A):
    W_=f"s[{SRD_WS}:{SRD_WS+3}]"
    GX=232; GW=236; GA=250
    A(f"v_mov_b32 v{GA}, 0")
    for i in range(4): A(f"v_dot2_f32_bf16 v{GA}, v{GX+i}, v{GW+i}, v{GA}")
    A("s_nop 2")
    for ror in (8,4,2,1):
        A(f"v_add_f32_dpp v{GA}, v{GA}, v{GA} row_ror:{ror} row_mask:0xf bank_mask:0xf", "s_nop 1")
    A(f"v_mov_b32 v{GA+1}, v{GA}", "s_nop 1", f"v_permlane16_swap_b32 v{GA+1}, v{GA}", "s_nop 1", f"v_add_f32 v{GA}, v{GA}, v{GA+1}",
      f"v_mov_b32 v{GA+1}, v{GA}", "s_nop 1", f"v_permlane32_swap_b32 v{GA+1}, v{GA}", "s_nop 1", f"v_add_f32 v{GA}, v{GA}, v{GA+1}")
    A(f"v_mul_f32 v{GA}, {hex(f2u(-1.4426950408889634))}, v{GA}", f"v_exp_f32 v{GA}, v{GA}", "s_nop 0", f"v_add_f32 v{GA}, 1.0, v{GA}", f"v_rcp_f32 v{GA}, v{GA}",
      "s_lshl_b32 s62, s62, 2", f"s_add_u32 s62, s62, {GOFF}", f"v_mov_b32 v{GA+1}, 0")
def gate_store(A):
    A("s_mov_b64 exec, 1", f"buffer_store_dword v250, v251, s[{SRD_WS}:{SRD_WS+3}], s62 offen sc1", "s_mov_b64 exec, -1")

def publish1(A, ST, opt):
    if 'fine3' in opt:
        A("s_waitcnt vmcnt(0)"); ST.rt("vm0")
    A("s_waitcnt vmcnt(0)", "s_barrier")
    if 'fine3' in opt: ST.rt("bar1")
    ST.rt("p1_stored")
    A(f"s_lshl_b32 s42, s{sX}, 7", f"s_lshl_b32 s43, s{sI}, 2", "s_add_u32 s43, s43, s42", f"s_add_u32 s43, s43, {FL+FL_F1}", f"s_add_u32 s38, s42, {FL+FL_F1}")
    A(f"s_cmp_eq_u32 s{sMODE}, 0", "s_cbranch_scc1 L_f1_safe")
    setflag(A,"f1f",43,5,"")
    A("s_branch L_f1_done", "L_f1_safe:")
    setflag(A,"f1s",43,5," sc1")
    A("L_f1_done:")
def sync1(A, ST, opt):
    if 'fine3' in opt: ST.rt("prolog")
    poll(A,"p1",38,2,3,stride=F1STR)
    A("s_barrier")
    ST.rt("p1_flags")

LANE=1
QA0=4; QA1=8; QB=12
OA0=16; OA1=32
S0=48; S1=64
P=80
KB_=88; VB_=210
MF=140; MD=156; CB=64
WBF=[96,100,104,108,120,124,128,132,136,192,196,200,204,228,232,236]
vKa=172; vVa=173
vL16=174; vT=175; vT2=176; vT3=177; vNEGM=178; vM=179; vKs=180; vVs=181; vX0=182; vPK=184
VL=188
LDS_KA=0; LDS_VA=65536; LDS_KB=131072; LDS_VB=147456
def exps(S): return [f"v_exp_f32 v{S+i}, v{S+i}" for i in range(16)]
def cvts(S): return [f"v_cvt_pk_bf16_f32 v{P+i}, v{S+2*i}, v{S+2*i+1}" for i in range(8)]
MK=[f"s_mov_b64 exec, s[{sMASK}:{sMASK+1}]"]; UM=["s_mov_b64 exec, -1"]
def unit(A, Sc, QK, PV1, ld, wK, wV, PV0):
    e=exps(Sc); c=cvts(Sc)
    A(wK, QK)
    A(e[0:4], c[0], e[4:6], c[1])
    A(PV1, ld)
    A(e[6:8], c[2], e[8:10], c[3], e[10:12])
    A(wV, PV0)
    A(e[12:13], c[4], e[13:15], c[5], e[15:16], c[6], c[7])
def slow_pass(A, tag, Q, O, pass1, far, diag, n):
    A(f"v_mov_b32 v{vX0}, v{vKs}", f"v_mov_b32 v{vX0+1}, v{vVs}", "s_mov_b32 s60, 0")
    if pass1: A(f"v_mov_b32 v{vM}, {hex(NEG)}", f"v_mov_b32 v{vNEGM}, 0")
    else:
        for i in range(16): A(f"v_mov_b32 v{O+i}, 0")
    A(f"L_{tag}_loop:")
    A(f"ds_read_b128 {vr(KB_,4)}, v{vX0}")
    if not pass1: A(MK, f"ds_read_b128 {vr(VB_,4)}, v{vX0+1}", f"ds_read_b128 {vr(VB_+4,4)}, v{vX0+1} offset:512", UM)
    A("s_cmp_eq_u32 s60, 0", f"s_cselect_b32 s61, s{far}, 0", "s_cmp_lg_u32 s61, 0", f"s_cbranch_scc1 L_{tag}_far")
    A(f"s_add_u32 s61, s60, 1", f"s_cmp_eq_u32 s61, s{n}", f"s_cselect_b32 s61, s{diag}, 0", "s_cmp_lg_u32 s61, 0", f"s_cbranch_scc1 L_{tag}_diag")
    for i in range(16): A(f"v_mov_b32 v{CB+i}, v{vNEGM}")
    A(f"s_branch L_{tag}_go")
    A(f"L_{tag}_far:")
    for i in range(16): A(f"v_add_f32 v{CB+i}, v{MF+i}, v{vNEGM}")
    A(f"s_branch L_{tag}_go")
    A(f"L_{tag}_diag:")
    for i in range(16): A(f"v_add_f32 v{CB+i}, v{MD+i}, v{vNEGM}")
    A(f"L_{tag}_go:")
    A("s_waitcnt lgkmcnt(0)", "s_nop 0")
    A(mfma32(S0, KB_, Q, CB))
    A("s_nop 7","s_nop 3")
    if pass1:
        for i in range(16): A(f"v_max_f32 v{vM}, v{vM}, v{S0+i}")
    else:
        A(exps(S0), "s_nop 0", cvts(S0), "s_nop 1")
        A(mfma32(O, VB_, P, O), mfma32(O, VB_+4, P+4, O))
    A(f"v_add_u32 v{vX0}, 1024, v{vX0}", f"v_add_u32 v{vX0+1}, 1024, v{vX0+1}")
    A("s_add_u32 s60, s60, 1", f"s_cmp_lt_u32 s60, s{n}", f"s_cbranch_scc1 L_{tag}_loop")
    if pass1:
        A(f"v_mov_b32 v{vT}, v{vM}", "s_nop 1", f"v_permlane32_swap_b32 v{vT}, v{vM}", "s_nop 1",
          f"v_max_f32 v{vM}, v{vM}, v{vT}", f"v_sub_f32 v{vNEGM}, 0, v{vM}")
    else: A("s_nop 7","s_nop 3")
def bcast_l(A,O):
    A(f"v_mov_b32 v{vT}, v{O+8}", "s_nop 1", f"v_permlane32_swap_b32 v{vT}, v{O+8}", "s_nop 1", f"v_add_f32 v{O+8}, v{O+8}, v{vT}")
def check_range(A, O, okl):
    bcast_l(A,O)
    A(f"v_mov_b32 v{vT}, v{O+8}")
    for i in range(8): A(f"v_fma_f32 v{vT}, v{O+i}, 0, v{vT}")
    A(f"s_mov_b32 s44, {hex(LLO)}", f"s_mov_b32 s45, {hex(LHI)}")
    A(f"v_cmp_le_f32 s[46:47], s44, v{vT}", f"v_cmp_ge_f32 s[48:49], s45, v{vT}", "s_nop 1",
      "s_and_b64 s[46:47], s[46:47], s[48:49]", "s_cmp_eq_u64 s[46:47], -1", f"s_cbranch_scc1 {okl}")
def finalize(A, O, soff):
    A(f"v_rcp_f32 v{vT}, v{O+8}", "s_nop 0")
    for i in range(8): A(f"v_mul_f32 v{O+i}, v{O+i}, v{vT}")
    for i in range(4): A(f"v_cvt_pk_bf16_f32 v{vPK+i}, v{O+2*i}, v{O+2*i+1}")
    A(f"buffer_store_dwordx4 {vr(vPK,4)}, v{vL16}, s[{SRD_WS}:{SRD_WS+3}], s{soff} offen sc1")

def early2(A):
    A(f"v_and_b32 v{LANE}, 63, v0")
    A(f"v_lshlrev_b32 v{vL16}, 4, v{LANE}", f"v_and_b32 v{vT}, 31, v{LANE}")
    A(f"s_mov_b32 s{sMASK}, 0x0000ffff", f"s_mov_b32 s{sMASK+1}, 0x0000ffff")
    A(f"v_cmp_eq_u32 vcc, 16, v{vT}", f"v_mov_b32 v{vX0}, 0x3f803f80", "s_nop 0", f"v_cndmask_b32 v{vX0+1}, 0, v{vX0}, vcc")
    for i in range(16): A(f"v_mov_b32 v{VB_+i}, v{vX0+1}")
    hh=vT3; MS=[82,90,96,98]
    A(f"v_lshrrev_b32 v{hh}, 5, v{LANE}", f"v_lshlrev_b32 v{vT2}, 2, v{hh}", f"v_sub_u32 v{vT2}, v{vT}, v{vT2}")
    A(f"v_mov_b32 v{vX0}, {hex(NEG)}")
    for g in range(4):
        for k in range(4): A(f"v_cmp_gt_i32 s[{MS[k]}:{MS[k]+1}], {8*g+k}, v{vT2}")
        A("s_nop 0")
        for k in range(4):
            i=4*g+k
            A(f"v_cndmask_b32 v{MF+i}, v{vX0}, 0, s[{MS[k]}:{MS[k]+1}]", f"v_cndmask_b32 v{MD+i}, 0, v{vX0}, s[{MS[k]}:{MS[k]+1}]")
    A(f"v_and_b32 v{vT}, 15, v{LANE}", f"v_lshlrev_b32 v{vT}, 4, v{vT}", f"v_lshl_add_u32 v{VL}, v{hh}, 8, v{vT}")

def phase2(A, ST, opt):
    W_=f"s[{SRD_WS}:{SRD_WS+3}]"
    SC="" if 'plainld' in opt else " sc1"
    early2(A)
    A(f"s_and_b32 s15, s{sW}, 3", f"s_lshr_b32 s16, s{sW}, 2")
    A("s_lshl_b32 s17, s15, 1", "s_add_u32 s17, s17, s16",
      f"s_lshl_b32 s18, s{sJ}, 3", "s_add_u32 s19, s18, s17",
      f"s_lshl_b32 s20, s{sH}, 16", f"s_add_u32 s21, s20, {32*65536}")
    A("s_lshl_b32 s43, s17, 10", f"s_add_u32 s44, s43, {LDS_KB}", f"v_add_u32 v{vKa}, s44, v{vL16}",
      f"s_add_u32 s44, s43, {LDS_VB}", f"v_add_u32 v{vVa}, s44, v{VL}")
    A("s_lshl_b32 s32, s19, 16", f"s_lshl_b32 s33, s{sH}, 10", "s_add_u32 s32, s32, s33", f"s_add_u32 s32, s32, {OF}", "s_add_u32 s33, s32, 32768")
    A("s_lshl_b32 s22, s19, 10", "s_add_u32 s22, s22, s21", f"s_add_u32 s22, s22, {QF}")
    A("s_lshl_b32 s23, s19, 10", "s_add_u32 s23, s23, s20", f"s_add_u32 s23, s23, {QF}", "s_xor_b32 s14, s19, 1", "s_lshl_b32 s14, s14, 10", "s_add_u32 s14, s14, s20", f"s_add_u32 s14, s14, {QF}")
    for ii in range(2):
        A(f"s_add_u32 s43, s{sW}, {8*ii}", "s_add_u32 s44, s18, s43", "s_sub_u32 s44, s44, 8", "s_max_i32 s44, s44, 0",
          "s_lshl_b32 s44, s44, 10", "s_add_u32 s44, s44, s21", f"s_add_u32 s{54+ii}, s44, {KF}")
    A(f"s_lshl_b32 s56, s{sW}, 10", "s_add_u32 s57, s56, s20", f"s_add_u32 s57, s57, {KF}")
    publish1(A,ST,opt)
    OBz=OA0
    for i in range(16): A(f"v_mov_b32 v{OBz+i}, 0")
    for i in range(4): A(f"v_mov_b32 v{P+4+i}, 0")
    gate(A)
    sync1(A,ST,opt)
    A(f"buffer_load_dwordx4 {vr(QB,4)}, v{vL16}, {W_}, s22 offen{SC}")
    if 'fine2' in opt:
        A("s_waitcnt vmcnt(0)"); ST.rt("qb_landed")
    for ii in range(2):
        A(f"s_add_u32 m0, s56, {LDS_KB+8192*ii}", f"s_add_u32 s45, s{54+ii}, {VF-KF}", f"buffer_load_dwordx4 v{vL16}, {W_}, s{54+ii} offen{SC} lds")
        A(f"s_add_u32 m0, s56, {LDS_VB+8192*ii}", "s_nop 0", f"buffer_load_dwordx4 v{vL16}, {W_}, s45 offen{SC} lds")
    A(f"buffer_load_dwordx4 {vr(QA0,4)}, v{vL16}, {W_}, s23 offen{SC}", f"buffer_load_dwordx4 {vr(QA1,4)}, v{vL16}, {W_}, s14 offen{SC}")
    def adma(m):
        return [f"s_add_u32 m0, s56, {LDS_KA+m*8192}", f"s_add_u32 s45, s57, {m*8192}", f"buffer_load_dwordx4 v{vL16}, {W_}, s45 offen{SC} lds",
                f"s_add_u32 m0, s56, {LDS_VA+m*8192}", f"s_add_u32 s45, s57, {VF-KF+m*8192}", f"buffer_load_dwordx4 v{vL16}, {W_}, s45 offen{SC} lds"]
    global ADMA; ADMA=adma
    A("s_waitcnt vmcnt(2)")
    OB=OA0
    if 'fine3' in opt: ST.rt("own_b")
    A("s_barrier")
    ST.rt("b_data")
    if 'fine3' in opt:
        ST.flush(2); A("s_waitcnt vmcnt(0)", "s_endpgm"); ST.on=False
    def ldK(t,base): return [f"ds_read_b128 {vr(KB_+4*(t%2),4)}, v{base} offset:{t*1024}"]
    def ldV(t,base): return MK+[f"ds_read_b128 {vr(VB_+8*(t%2),4)}, v{base} offset:{t*1024}", f"ds_read_b128 {vr(VB_+8*(t%2)+4,4)}, v{base} offset:{t*1024+512}"]+UM
    NB=9
    A("s_mov_b32 s51, 1", f"s_cmp_eq_u32 s{sJ}, 0", "s_cselect_b32 s50, 0, 1", "s_sub_u32 s53, 8, s17", "s_cselect_b32 s53, s53, 0")
    A.L.pop()
    A(f"s_cmp_eq_u32 s{sJ}, 0", "s_cselect_b32 s53, s53, 0")
    A("s_sub_u32 s52, 9, s53")
    A("s_lshl_b32 s43, s53, 10", f"v_add_u32 v{vKs}, s43, v{vKa}", f"v_add_u32 v{vVs}, s43, v{vVa}")
    A("s_cmp_eq_u32 s53, 0", "s_cbranch_scc1 B_pro0", "s_mov_b32 s58, s56", "s_mov_b32 s59, s57", "s_mov_b32 s60, s53", "B_skipdma:")
    A(f"s_add_u32 m0, s58, {LDS_KA}", f"s_add_u32 s45, s59, {VF-KF}", f"buffer_load_dwordx4 v{vL16}, {W_}, s59 offen{SC} lds",
      f"s_add_u32 m0, s58, {LDS_VA}", "s_add_u32 s58, s58, 8192", f"buffer_load_dwordx4 v{vL16}, {W_}, s45 offen{SC} lds",
      "s_add_u32 s59, s59, 8192", "s_sub_u32 s60, s60, 1", "s_cmp_lg_u32 s60, 0", "s_cbranch_scc1 B_skipdma")
    for s0 in range(1,NB):
        A(f"s_cmp_eq_u32 s53, {s0}", f"s_cbranch_scc1 B_pro{s0}")
    for s0 in range(NB-1,-1,-1):
        A(f"B_pro{s0}:")
        Sc=S0 if s0%2==0 else S1
        C = MF if s0==0 else (MD if s0==NB-1 else "0")
        A(ldK(s0,vKa), "s_waitcnt lgkmcnt(0)", mfma32(Sc, KB_+4*(s0%2), QB, C))
        if s0==0:
            A(ldV(0,vVa), ldK(1,vKa))
        else:
            if s0+1<NB: A(ldK(s0+1,vKa))
            A(ldV(s0,vVa))
        A("s_nop 7","s_nop 3")
        if s0!=0: A(f"s_branch B_step{s0}")
    for t in range(NB):
        A(f"B_step{t}:")
        Sc=S0 if t%2==0 else S1; Sn=S1 if t%2==0 else S0
        if t+1<NB:
            QK=[mfma32(Sn, KB_+4*((t+1)%2), QB, MD if t+1==NB-1 else "0")]
            wK=["s_waitcnt lgkmcnt(0)"] if t==0 else ["s_waitcnt lgkmcnt(2)"]
        else: QK=[]; wK=[]
        PV1=[mfma32(OB, VB_+8*((t-1)%2)+4, P+4, OB)] if t>0 else []
        ld=[]
        if t+2<NB: ld+=ldK(t+2,vKa)
        if t+1<NB: ld+=ldV(t+1,vVa)
        nld=(1 if t+2<NB else 0)+(2 if t+1<NB else 0)
        wV=[f"s_waitcnt lgkmcnt({nld})"]
        PV0=[mfma32(OB, VB_+8*(t%2), P, OB)]
        if t<8: ld=ld+ADMA(t)
        unit(A,Sc,QK,PV1,ld,wK,wV,PV0)
    A("s_nop 1", mfma32(OB, VB_+8*((NB-1)%2)+4, P+4, OB))
    A("s_nop 7","s_nop 3")
    check_range(A,OB,"B_ok")
    slow_pass(A,"bf1",QB,OB,True,50,51,52)
    slow_pass(A,"bf2",QB,OB,False,50,51,52)
    bcast_l(A,OB)
    A("B_ok:")
    finalize(A,OB,33)
    ST.rt("b_done")
    A("s_waitcnt vmcnt(1)", "s_barrier")
    ST.rt("a_start")
    gate_store(A)
    if 'dup' in opt: A("s_mov_b32 s54, 2", "A_dup:")
    A("s_lshl_b32 s43, s16, 15", f"v_add_u32 v{vKa}, s43, v{vL16}", f"s_add_u32 s44, s43, {LDS_VA}", f"v_add_u32 v{vVa}, s44, v{VL}")
    NOMASK='novmask' in opt
    vStep=119
    if NOMASK:
        CREG=LDS_KB+22528
        t0,t1,t2,t3=120,121,122,123
        A(f"v_mul_u32_u24 v{t0}, 43, v{LANE}", f"v_lshrrev_b32 v{t0}, 7, v{t0}",
          f"v_mul_u32_u24 v{t1}, 3, v{t0}", f"v_sub_u32 v{t1}, v{LANE}, v{t1}",
          f"v_lshlrev_b32 v{t2}, 4, v{t1}", f"v_cmp_eq_u32 vcc, 2, v{t1}", f"v_lshlrev_b32 v{t0}, 9, v{t0}", "s_nop 0", f"v_cndmask_b32 v{t2}, v{t2}, 64, vcc",
          f"v_add_u32 v{t0}, v{t0}, v{t2}", f"v_add_u32 v{t0}, {CREG}, v{t0}", f"v_cmp_eq_u32 vcc, 0, v{t1}", f"v_mov_b32 v{t3}, 0x3f803f80", "s_nop 0",
          f"v_cndmask_b32 v124, 0, v{t3}, vcc", "v_mov_b32 v125, v124", "v_mov_b32 v126, v124", "v_mov_b32 v127, v124",
          f"v_cmp_gt_u32 vcc, 54, v{LANE}", "s_and_saveexec_b64 s[44:45], vcc", f"ds_write_b128 v{t0}, v[124:127]", "s_mov_b64 exec, s[44:45]")
        A(f"v_and_b32 v{t0}, 31, v{LANE}", f"v_mov_b32 v{t1}, {CREG+16}", f"v_subrev_u32 v{t2}, 20, v{t0}", f"v_cmp_gt_u32 vcc, 8, v{t2}", f"v_mov_b32 v{t3}, {CREG+64}", "s_nop 0",
          f"v_cndmask_b32 v{t1}, v{t1}, v{t3}, vcc", f"v_cmp_eq_u32 vcc, 16, v{t0}", f"v_mov_b32 v{t3}, {CREG}", "s_nop 0", f"v_cndmask_b32 v{t1}, v{t1}, v{t3}, vcc",
          f"v_cmp_gt_u32 vcc, 16, v{t0}", f"v_mov_b32 v{t3}, 8192", "s_nop 0", f"v_cndmask_b32 v{vVa}, v{t1}, v{vVa}, vcc", f"v_cndmask_b32 v{vStep}, 0, v{t3}, vcc", "s_waitcnt lgkmcnt(0)")
    def ldVA(t,base):
        if not NOMASK: return ldV(t,base)
        return [f"ds_read_b128 {vr(VB_+8*(t%2),4)}, v{base} offset:{t*1024}", f"ds_read_b128 {vr(VB_+8*(t%2)+4,4)}, v{base} offset:{t*1024+512}"]
    for i in range(32): A(f"v_mov_b32 v{OA0+i}, 0")
    for i in range(4): A(f"v_mov_b32 v{P+4+i}, 0")
    Qr=[QA0,QA1]; Or=[OA0,OA1]
    A(ldK(0,vKa), ldVA(0,vVa), "s_waitcnt lgkmcnt(2)", mfma32(S0, KB_, QA0, "0"))
    vWs=190; vWr=191
    srd(A,SRD_A,pWOB,512*512*2)
    A(f"v_lshrrev_b32 v{vWs}, 2, v{LANE}", f"v_lshlrev_b32 v{vWs}, 10, v{vWs}", f"v_and_b32 v{vT}, 3, v{LANE}", f"v_lshl_add_u32 v{vWs}, v{vT}, 4, v{vWs}",
      f"s_lshr_b32 s42, s{sI}, 2", "s_lshl_b32 s42, s42, 7", f"s_bfe_u32 s43, s{sW}, 0x10001", "s_lshl_b32 s43, s43, 6", "s_add_u32 s42, s42, s43", f"v_add_u32 v{vWs}, s42, v{vWs}",
      f"s_lshr_b32 s82, s{sW}, 2", "s_lshl_b32 s82, s82, 18",
      f"s_lshl_b32 s83, s{sW}, 12", f"s_add_u32 s83, s83, {LDS_KB}")
    A(f"v_lshrrev_b32 v{vT}, 5, v{LANE}", f"v_bfe_u32 v{vWr}, v{LANE}, 2, 2", f"v_lshl_add_u32 v{vWr}, v{vT}, 2, v{vWr}", f"v_lshlrev_b32 v{vWr}, 6, v{vWr}",
      f"v_bfe_u32 v{vT}, v{LANE}, 4, 1", f"v_lshl_add_u32 v{vWr}, v{vT}, 5, v{vWr}", f"v_and_b32 v{vT}, 3, v{LANE}", f"v_lshl_add_u32 v{vWr}, v{vT}, 3, v{vWr}", f"v_add_u32 v{vWr}, s83, v{vWr}")
    def wb_dma():
        L=[]
        for ii in range(4):
            L+=[f"s_add_u32 m0, s83, {ii*1024}", f"s_add_u32 s45, s82, {ii*16384}", f"buffer_load_dwordx4 v{vWs}, s[{SRD_A}:{SRD_A+3}], s45 offen lds"]
        return L+["s_add_u32 s82, s82, 65536"]
    def wb_read(r):
        L=["s_waitcnt vmcnt(0)"]
        for nl in range(4):
            for rr in range(2):
                L.append(f"ds_read_b64_tr_b16 {vr(WBF[4*r+nl]+2*rr,2)}, v{vWr} offset:{(16*nl+8*rr)*64}")
        return L+["s_waitcnt lgkmcnt(0)"]
    A(wb_dma())
    vFv=112; vFz=113; vFa=114; vFb=115
    A(f"s_lshl_b32 s34, s{sJ}, 10", f"s_lshl_b32 s35, s{sH}, 5", "s_add_u32 s34, s34, s35", f"s_lshl_b32 s35, s{sW}, 2", "s_add_u32 s34, s34, s35",
      f"s_add_u32 s35, s34, {FL+FL_F2A}", f"s_add_u32 s34, s34, {FL+FL_F2B}")
    A(f"v_mov_b32 v{vFv}, s{sNONCE}", f"v_mov_b32 v{vFz}, 0")
    A(f"v_lshrrev_b32 v{vFa}, 1, v{LANE}", f"v_lshlrev_b32 v{vFa}, 5, v{vFa}", f"v_and_b32 v{vT}, 1, v{LANE}", f"v_lshl_add_u32 v{vFa}, v{vT}, 4, v{vFa}",
      f"s_and_b32 s36, s{sI}, 3", "s_lshl_b32 s36, s36, 2", f"v_add_u32 v{vFa}, s36, v{vFa}", f"s_lshl_b32 s36, s{sX}, 10", f"s_add_u32 s36, s36, {FL+FL_F2B}")
    A("s_mov_b32 s53, 4", "s_setprio 3", "s_nop 7", "s_nop 1")
    A(".p2align 3", "A_loop:")
    A("s_cmp_eq_u32 s53, 3", "s_cbranch_scc1 A_it1", "s_cmp_eq_u32 s53, 2", "s_cbranch_scc1 A_it2", "s_cmp_eq_u32 s53, 1", "s_cbranch_scc1 A_it3", "A_body:")
    NK=8
    units=[(t,qi) for t in range(NK) for qi in range(2)]
    for u,(t,qi) in enumerate(units):
        Sc=S0 if u%2==0 else S1; Sn=S1 if u%2==0 else S0
        tn,qn=(t,1) if qi==0 else (t+1,0)
        tp,qp=(t-1,1) if qi==0 else (t,0)
        QK=[mfma32(Sn, KB_+4*(tn%2), Qr[qn], "0")]
        PV1=[mfma32(Or[qp], VB_+8*(tp%2)+4, P+4, Or[qp])]
        PV0=[mfma32(Or[qi], VB_+8*(t%2), P, Or[qi])]
        ld=[];wK=[];wV=[]
        if qi==0: ld=ldK(t+1,vKa)+ldVA(t+1,vVa); wV=["s_waitcnt lgkmcnt(3)"]
        else: wK=["s_waitcnt lgkmcnt(2)"]
        if u==8: A("s_cmp_ge_u32 s53, 3", "s_cbranch_scc1 A_mid", "A_midback:")
        unit(A,Sc,QK,PV1,ld,wK,wV,PV0)
    A(f"v_add_u32 v{vKa}, {NK*1024}, v{vKa}", f"v_add_u32 v{vVa}, v{vStep}, v{vVa}" if NOMASK else f"v_add_u32 v{vVa}, {NK*1024}, v{vVa}")
    A("s_sub_u32 s53, s53, 1", "s_cmp_lg_u32 s53, 0", "s_cbranch_scc1 A_loop")
    A("s_branch A_after")
    A("A_mid:", "s_cmp_eq_u32 s53, 4", "s_cbranch_scc0 A_mid1")
    A(wb_read(0), wb_dma(), "s_branch A_midback")
    A("A_mid1:", wb_read(2), wb_dma(), "s_branch A_midback")
    A("A_it1:", "s_setprio 2", wb_read(1), "s_mov_b64 exec, 1", f"buffer_store_dword v{vFv}, v{vFz}, {W_}, s34 offen sc1", "s_mov_b64 exec, -1", wb_dma(), "s_branch A_body")
    A("A_it2:", "s_setprio 1", wb_read(3))
    if 'wbl2' in opt:
        A(f"s_cmp_lg_u32 s{sI}, 0", "s_cbranch_scc1 A_nowb", f"s_cmp_lg_u32 s{sW}, 0", "s_cbranch_scc1 A_nowb", "buffer_wbl2 sc1", "A_nowb:")
    if 'nopt3' not in opt:
        vP=116
        A(f"s_and_b32 s44, s{sI}, 3", f"s_lshr_b32 s45, s{sI}, 2", "s_lshl_b32 s46, s44, 7", f"s_lshl_b32 s47, s{sW}, 4", "s_add_u32 s46, s46, s47",
          f"v_and_b32 v{vP}, 15, v{LANE}", f"v_add_u32 v{vP}, s46, v{vP}", f"v_lshlrev_b32 v{vP}, 10, v{vP}", "s_lshl_b32 s45, s45, 7")
        A(f"s_mov_b32 s{SRD_PT}, s{pWOA}", f"s_mov_b32 s{SRD_PT+1}, s{pWOA+1}", f"s_mov_b32 s{SRD_PT+2}, {512*512*2}", f"s_mov_b32 s{SRD_PT+3}, 0x00020000",
          f"buffer_load_dword v{vP+1}, v{vP}, s[{SRD_PT}:{SRD_PT+3}], s45 offen")
        if 'ptout' in opt:
            A(f"s_lshl_b32 s46, s{sX}, 8", "s_lshl_b32 s47, s44, 6", "s_add_u32 s46, s46, s47", f"s_lshl_b32 s47, s{sW}, 3", "s_add_u32 s46, s46, s47",
              f"v_and_b32 v{vP}, 7, v{LANE}", f"v_add_u32 v{vP}, s46, v{vP}", f"v_lshlrev_b32 v{vP}, 10, v{vP}",
              f"s_mov_b32 s{SRD_PT}, s{pOUT}", f"s_mov_b32 s{SRD_PT+1}, s{pOUT+1}", f"s_mov_b32 s{SRD_PT+2}, {2048*512*2}", f"s_mov_b32 s{SRD_PT+3}, 0x00020000",
              f"buffer_load_dword v{vP+2}, v{vP}, s[{SRD_PT}:{SRD_PT+3}], s45 offen")
    A("s_branch A_body")
    A("A_it3:", "s_setprio 0", f"buffer_load_dword v{vFb}, v{vFa}, {W_}, s36 offen sc1", "s_branch A_body")
    A("A_after:")
    A(mfma32(OA1, VB_+8*((NK-1)%2)+4, P+4, OA1))
    A("s_waitcnt lgkmcnt(0)", "s_nop 7", "s_nop 3")
    if 'dup' in opt: A("s_sub_u32 s54, s54, 1", "s_cmp_lg_u32 s54, 0", "s_cbranch_scc1 A_dup")
    ST.rt("a_loop")
    A(f"s_lshl_b32 s43, s{sW}, 12", f"s_add_u32 s43, s43, {LDS_KB}", f"v_add_u32 v{vT}, s43, v{vL16}",
      f"v_lshlrev_b32 v{vT2}, 2, v{LANE}", f"v_add_u32 v{vT2}, s43, v{vT2}")
    A(f"ds_write_b128 v{vT}, {vr(OA1,4)}", f"ds_write_b128 v{vT}, {vr(OA1+4,4)} offset:1024", f"ds_write_b32 v{vT2}, v{OA1+8} offset:2048")
    A(f"s_xor_b32 s44, s{sW}, 4", "s_lshl_b32 s43, s44, 12", f"s_add_u32 s43, s43, {LDS_KB}", f"v_add_u32 v{vT}, s43, v{vL16}",
      f"v_lshlrev_b32 v{vT2}, 2, v{LANE}", f"v_add_u32 v{vT2}, s43, v{vT2}")
    A("s_waitcnt lgkmcnt(0)", "s_barrier")
    A(f"ds_read_b128 {vr(S0,4)}, v{vT}", f"ds_read_b128 {vr(S0+4,4)}, v{vT} offset:1024", f"ds_read_b32 v{S0+8}, v{vT2} offset:2048")
    A("s_waitcnt lgkmcnt(0)")
    for i in range(9): A(f"v_add_f32 v{OA0+i}, v{OA0+i}, v{S0+i}")
    check_range(A,OA0,"A_ok")
    A("s_mov_b32 s50, 0", "s_mov_b32 s51, 0", "s_mov_b32 s52, 64")
    A(f"v_add_u32 v{vKs}, {LDS_KA}, v{vL16}", f"v_add_u32 v{vVs}, {LDS_VA}, v{VL}")
    slow_pass(A,"af1",QA0,OA0,True,50,51,52)
    slow_pass(A,"af2",QA0,OA0,False,50,51,52)
    bcast_l(A,OA0)
    A("A_ok:")
    finalize(A,OA0,32)

def phase3(A, ST, opt):
    W_=f"s[{SRD_WS}:{SRD_WS+3}]"
    lane=LANE
    vFv=112; vFz=113; vFa=114; vFb=115
    srd(A,SRD_A,pWOA,512*512*2); srd(A,SRD_C,pOUT,2048*512*2)
    SA=f"s[{SRD_A}:{SRD_A+3}]"
    A(f"s_and_b32 s50, s{sI}, 3", f"s_lshr_b32 s51, s{sI}, 2")
    A(f"s_and_b32 s52, s{sW}, 1", f"s_bfe_u32 s53, s{sW}, 0x10001", f"s_lshr_b32 s54, s{sW}, 2")
    A(f"v_lshlrev_b32 v3, 4, v{lane}")
    A(f"s_lshl_b32 s42, s{sX}, 3", "s_lshl_b32 s43, s50, 1", "s_add_u32 s42, s42, s43", "s_lshl_b32 s55, s42, 16", f"s_add_u32 s55, s55, {OF}",
      "s_lshl_b32 s43, s53, 14", "s_lshl_b32 s44, s54, 12", "s_add_u32 s43, s43, s44",
      "s_lshl_b32 s56, s52, 15", "s_add_u32 s56, s56, s43", "s_add_u32 s56, s56, 0x10000",
      "s_lshl_b32 s57, s52, 16", "s_add_u32 s57, s57, s43", "s_add_u32 s57, s57, s55")
    def odma(br):
        L=[]
        for r in range(2):
            for ii in range(4):
                L+= [f"s_add_u32 m0, s56, {r*8192+ii*1024}", f"s_add_u32 s45, s57, {br*32768+r*8192+ii*1024}", f"buffer_load_dwordx4 v3, {W_}, s45 offen sc1 lds"]
        return L
    A("s_waitcnt vmcnt(1)", f"s_mov_b32 s46, {SPIN_MAX}")
    A("P3_bchk:", f"v_cmp_ne_u32 vcc, s{sNONCE}, v{vFb}", "s_nop 1", "s_cmp_eq_u64 vcc, 0", "s_cbranch_scc1 P3_bok",
      "s_sub_u32 s46, s46, 1", "s_cmp_eq_u32 s46, 0", "s_cbranch_scc1 P3_bok", "s_sleep 1",
      f"buffer_load_dword v{vFb}, v{vFa}, {W_}, s36 offen sc1", "s_waitcnt vmcnt(0)", "s_branch P3_bchk", "P3_bok:")
    A("s_barrier")
    A(odma(1))
    A("s_waitcnt vmcnt(8)")
    A("s_mov_b64 exec, 1", f"buffer_store_dword v{vFv}, v{vFz}, {W_}, s35 offen sc1", "s_mov_b64 exec, -1")
    ST.rt("o_stored")
    A(f"v_and_b32 v12, 31, v{lane}", f"s_lshl_b32 s44, s{sX}, 8", "s_lshl_b32 s45, s50, 6", "s_add_u32 s44, s44, s45", "s_lshl_b32 s45, s52, 5", "s_add_u32 s44, s44, s45",
      "v_add_u32 v12, s44, v12", "v_lshlrev_b32 v13, 2, v12", f"s_mov_b32 s45, {GOFF}", f"buffer_load_dword v14, v13, {W_}, s45 offen sc1")
    vW=4
    w_src_addr(A, vW, 5, 6, 7, lane, 51, 42)
    A(f"s_lshl_b32 s58, s{sW}, 13", f"s_lshl_b32 s59, s{sW}, 16")
    for ii in range(8):
        A(f"s_add_u32 m0, s58, {ii*1024}", f"s_add_u32 s45, s59, {ii*8192}", f"buffer_load_dwordx4 v{vW}, {SA}, s45 offen lds")
    w_frag_addr(A, 9, 6, 7, lane, 53, 42)
    A(f"v_lshrrev_b32 v8, 5, v{lane}", "s_lshl_b32 s42, s54, 15", "v_add_u32 v9, s42, v9")
    A("s_lshl_b32 s43, s52, 15", "s_lshl_b32 s44, s54, 14", "s_add_u32 s43, s43, s44", "s_add_u32 s43, s43, 0x10000", "v_add_u32 v11, s43, v3")
    ACA=16; ACB=48; OFr=[64,68,72,76]; WA=128
    for i in range(16): A(f"v_mov_b32 v{ACB+i}, 0", f"v_mov_b32 v{ACA+i}, 0")
    A("s_waitcnt vmcnt(10)", "s_barrier")
    ST.rt("w_landed")
    for n in range(4): A(f"ds_read_b128 {vr(OFr[n],4)}, v11 offset:{n*1024}")
    for n in range(16):
        A(f"s_waitcnt lgkmcnt({min(3,15-n)})")
        A(mfma32(ACB, WBF[n], OFr[n%4], ACB))
        if n+4<16: A(f"ds_read_b128 {vr(OFr[n%4],4)}, v11 offset:{(n+4)*1024}")
    ST.rt("b_half")
    A(f"s_add_u32 s36, s36, {FL_F2A-FL_F2B}")
    A(f"s_cmp_lg_u32 s{sW}, 0", "s_cbranch_scc1 P3_askip", f"s_mov_b32 s46, {SPIN_MAX}")
    A("P3_achk:", f"buffer_load_dword v{vFb}, v{vFa}, {W_}, s36 offen sc1", "s_waitcnt vmcnt(0)",
      f"v_cmp_ne_u32 vcc, s{sNONCE}, v{vFb}", "s_nop 1", "s_cmp_eq_u64 vcc, 0", "s_cbranch_scc1 P3_askip",
      "s_sub_u32 s46, s46, 1", "s_cmp_eq_u32 s46, 0", "s_cbranch_scc1 P3_askip", "s_branch P3_achk", "P3_askip:")
    A("s_waitcnt vmcnt(0)", "s_barrier")
    ST.rt("p2_flags")
    A(odma(0))
    A("s_cmp_lg_u32 s2, 0", "s_cbranch_scc1 P3_noep", f"s_mov_b32 s43, {FL+FL_EPOCH}")
    setflag(A,"ep",43,5)
    A("P3_noep:")
    for n in range(16):
        A(wrd2(WA+4*n,9,n))
        if n%4==3: A("s_waitcnt lgkmcnt(4)")
    for r in range(2):
        A(f"s_waitcnt vmcnt({4-4*r}) lgkmcnt(0)", "s_barrier")
        for s_ in range(4): A(f"ds_read_b128 {vr(OFr[s_],4)}, v11 offset:{(8*r+s_)*1024}")
        for s_ in range(8):
            n=8*r+s_
            A(f"s_waitcnt lgkmcnt({3 if s_<5 else 7-s_})")
            A(mfma32(ACA, WA+4*n, OFr[s_%4], ACA))
            if s_<4: A(f"ds_read_b128 {vr(OFr[s_%4],4)}, v11 offset:{(8*r+s_+4)*1024}")
    ST.rt("p3_mfma")
    A("s_nop 7","s_nop 3")
    for i in range(16): A(f"v_sub_f32 v{ACA+i}, v{ACA+i}, v{ACB+i}")
    for i in range(16): A(f"v_fma_f32 v{ACA+i}, v14, v{ACA+i}, v{ACB+i}")
    ACC=ACA
    A(f"s_lshl_b32 s43, s{sW}, 11", "v_add_u32 v5, s43, v3", f"s_xor_b32 s44, s{sW}, 4", "s_lshl_b32 s44, s44, 11", "v_add_u32 v6, s44, v3")
    PK=40
    A("s_cmp_eq_u32 s54, 0", "s_cbranch_scc0 P3_k1")
    for kq,lab in ((0,None),(1,"P3_k1")):
        if lab: A("s_branch P3_kdone", f"{lab}:")
        own=ACC+8*kq; oth=ACC+8*(1-kq)
        A(f"ds_write_b128 v5, {vr(oth,4)}", f"ds_write_b128 v5, {vr(oth+4,4)} offset:1024", "s_waitcnt lgkmcnt(0)", "s_barrier")
        A(f"ds_read_b128 {vr(32,4)}, v6", f"ds_read_b128 {vr(36,4)}, v6 offset:1024", "s_waitcnt lgkmcnt(0)")
        for i in range(8): A(f"v_add_f32 v{own+i}, v{own+i}, v{32+i}")
        for i in range(4): A(f"v_cvt_pk_bf16_f32 v{PK+i}, v{own+2*i}, v{own+2*i+1}")
    A("P3_kdone:")
    A("s_nop 1", f"v_permlane32_swap_b32 v{PK}, v{PK+2}", f"v_permlane32_swap_b32 v{PK+1}, v{PK+3}")
    A("v_lshlrev_b32 v5, 10, v12", "v_lshl_add_u32 v5, v8, 4, v5",
      "s_lshl_b32 s42, s51, 7", "s_lshl_b32 s43, s53, 6", "s_add_u32 s42, s42, s43", "s_lshl_b32 s43, s54, 5", "s_add_u32 s42, s42, s43")
    A(f"buffer_store_dwordx4 {vr(PK,4)}, v5, s[{SRD_C}:{SRD_C+3}], s42 offen" + (" sc1" if 'outsc1' in opt else "") + (" nt" if 'outnt' in opt else ""))

def gen(opt=()):
    A=Asm(); ST=Stamps(A,'stamps' in opt)
    pr=[o[6:] for o in opt if o.startswith('probe=')]
    if pr: ST.probe=pr[0]
    cy=[o[4:] for o in opt if o.startswith('cyc=')]
    if cy: ST.cp=cy[0].split(':')
    A(f".globl {NAME}", ".p2align 8", f".type {NAME},@function", f"{NAME}:")
    if pr: A("s_memrealtime s[100:101]")
    A("s_cmp_ge_u32 s2, 256", "s_cbranch_scc1 L_done")
    if 'scramble' in opt: A("s_lshr_b32 s3, s2, 3", "s_and_b32 s2, s2, 7", "s_lshl_b32 s2, s2, 5", "s_or_b32 s2, s2, s3")
    A(f"s_load_dwordx2 s[{sWS}:{sWS+1}], s[0:1], 72", "s_load_dwordx2 s[42:43], s[0:1], 0", "s_load_dwordx2 s[44:45], s[0:1], 8",
      "s_load_dwordx2 s[46:47], s[0:1], 32", "s_load_dwordx2 s[48:49], s[0:1], 48",
      f"s_load_dwordx2 s[{pWOA}:{pWOA+1}], s[0:1], 16", f"s_load_dwordx2 s[{pWOB}:{pWOB+1}], s[0:1], 40", f"s_load_dwordx2 s[{pOUT}:{pOUT+1}], s[0:1], 56")
    rot=[int(o[3:]) for o in opt if o.startswith('rot')]
    if rot: A(f"s_add_u32 s{sX}, s2, {rot[0]}", f"s_and_b32 s{sX}, s{sX}, 7")
    else: A(f"s_and_b32 s{sX}, s2, 7")
    A(f"s_lshr_b32 s{sI}, s2, 3", f"s_lshr_b32 s{sJ}, s{sI}, 2", f"s_and_b32 s{sA}, s{sI}, 3",
      f"s_lshr_b32 s{sBR}, s{sA}, 1", f"s_and_b32 s50, s{sA}, 1", f"s_lshl_b32 s{sRB}, s{sJ}, 1", f"s_add_u32 s{sRB}, s{sRB}, s50",
      f"s_lshl_b32 s{sH}, s{sX}, 2", f"s_add_u32 s{sH}, s{sH}, s{sA}")
    A("v_lshrrev_b32 v1, 6, v0", "v_and_b32 v2, 63, v0", "s_nop 0", f"v_readfirstlane_b32 s{sW}, v1")
    if 'epf' in opt:
        A(f"s_cmp_ge_u32 s{sW}, 3", "s_cbranch_scc1 L_noepf", "s_getpc_b64 s[50:51]", "L_epf_pc:", f"s_lshl_b32 s52, s{sW}, 13", "v_lshlrev_b32 v241, 7, v2", "v_add_u32 v241, s52, v241",
          "v_min_u32 v241, (L_done-L_epf_pc), v241", "global_load_dword v240, v241, s[50:51]", "L_noepf:")
    if 'pf' in opt:
        A("s_getpc_b64 s[50:51]", "L_pc:", f"s_sub_u32 s50, s50, (L_pc-{NAME})", "s_subb_u32 s51, s51, 0")
        A(f"s_lshl_b32 s52, s{sI}, 1", f"s_add_u32 s52, s52, s{sW}", "s_lshl_b32 s52, s52, 10", "v_lshlrev_b32 v3, 4, v2", "v_add_u32 v3, s52, v3")
        A(f"s_cmp_lt_u32 s{sW}, 2", "s_cbranch_scc0 L_nopf", f"s_cmp_lt_u32 s52, (L_done-{NAME}-1024)", "s_cbranch_scc0 L_nopf",
          "global_load_dwordx4 v[252:255], v3, s[50:51]", "L_nopf:")
    if 'spin60' in opt: A("s_memrealtime s[90:91]")
    A("s_waitcnt lgkmcnt(0)")
    wb=[int(o[2:]) for o in opt if o.startswith('wb') and o[2:].isdigit()]
    if wb: A(f"s_add_u32 s{sWS}, s{sWS}, {wb[0]<<20}", f"s_addc_u32 s{sWS+1}, s{sWS+1}, 0")
    ST.rt("start"); ST.cyc("cyc0")
    A(f"s_add_u32 s6, s{sWS}, {FL+FL_EPOCH}", f"s_addc_u32 s7, s{sWS+1}, 0", "s_load_dword s3, s[6:7], 0")
    srd(A,SRD_WS,sWS,WS_SIZE)
    srd(A,SRD_A,42,2048*512*2)
    A(f"s_cmp_eq_u32 s{sBR}, 0", "s_cselect_b32 s44, s44, s46", "s_cselect_b32 s45, s45, s47")
    srd(A,SRD_B,44,512*1536*2)
    srd(A,SRD_C,48,1024)
    phase1(A,ST,opt)
    phase2(A,ST,opt)
    phase3(A,ST,opt)
    if pr:
        A("s_waitcnt vmcnt(0)", "L_probe:", "s_memrealtime s[80:81]", "s_waitcnt lgkmcnt(0)", "s_sub_u32 s80, s80, s100", *(["s_lshr_b32 s81, s63, 2", "s_add_u32 s81, s81, 6000", "s_cmp_lt_u32 s80, s81"] if cy else ["s_cmp_lt_u32 s80, 6000"]), "s_cbranch_scc1 L_probe")
    if 'spin60' in opt:
        A("s_waitcnt vmcnt(0)", "L_spin:", "s_memrealtime s[80:81]", "s_waitcnt lgkmcnt(0)", "s_sub_u32 s80, s80, s90", "s_cmp_lt_u32 s80, 6000", "s_cbranch_scc1 L_spin")
    if ST.on: A("s_waitcnt vmcnt(0)")
    ST.rt("end"); ST.cyc("cyc1")
    ST.flush(120)
    A("L_done:", "s_endpgm")
    kd=f""".section .rodata,"a"
.p2align 6
.amdhsa_kernel {NAME}
  .amdhsa_next_free_vgpr 256
  .amdhsa_next_free_sgpr 102
  .amdhsa_accum_offset 256
  .amdhsa_group_segment_fixed_size 0
  .amdhsa_kernarg_size 80
  .amdhsa_user_sgpr_count 2
  .amdhsa_user_sgpr_kernarg_segment_ptr 1
  .amdhsa_system_sgpr_workgroup_id_x 1
.end_amdhsa_kernel
"""
    return A.text(), kd, ST.names

if __name__=='__main__':
    import sys, hazard
    out=sys.argv[1]; opt=tuple(sys.argv[2:])
    HDR=open('gated_mix__softmax_full_mha__sliding_block__prompt.s.ref').read().split('\n')
    hdr=[l for l in HDR if l.startswith(';') and 'launch' not in l.lower() and 'Override' not in l and 'grid=ceil' not in l]
    t,kd,names=gen(opt)
    s='\n'.join(hdr)+'\n'+"; @launch grid=(256,1,1) block=(512,1,1) lds=163840\n"+'.amdgcn_target "amdgcn-amd-amdhsa--gfx950"\n.text\n'+t+kd
    open(out,'w').write(s)
    print('hazards',len(hazard.check(t)),'bytes',len(s),'stamps',','.join(names))
    sys.path.insert(0,'cdna_kernels')
    import subprocess
    from cdna_launch import with_harness_metadata, address_register_problem
    open('h.s','w').write(with_harness_metadata(s,NAME,10,launch_lists=True))
    r=subprocess.run(['clang','-x','assembler','-target','amdgcn-amd-amdhsa','-mcpu=gfx950','h.s','-o','h.co'],capture_output=True,text=True)
    if r.returncode: print(r.stderr)
    else:
        print('check:',address_register_problem('h.co',NAME))
        d=subprocess.run(['llvm-objdump','-d','--mcpu=gfx950','h.co'],capture_output=True,text=True).stdout
        import re
        ad=[int(m,16) for m in re.findall(r'// ([0-9A-F]{12}):',d)]
        print('code bytes',ad[-1]-ad[0]-768)
```

```python
from asm import Asm, vr, sr, mfma32
import struct
def f2u(x): return struct.unpack('<I',struct.pack('<f',x))[0]
NAME="gated_mix__softmax_full_mha__sliding_block__prompt_kernel"
QF=0; KF=4<<20; VF=8<<20; GOFF=12<<20; OF=16<<20; FL=30<<20; WS_SIZE=31<<20
FL_EPOCH=0; FL_F0=1024; FL_F1=2048; FL_F2=8192; FL_F2B=16384; FL_F2A=32768
FSTR=16
F1STR=4
STAMP_OFF=32<<20
QSCALE=0.25*1.4426950408889634
NEG=f2u(-2.0**100); LLO=f2u(2.0**-64); LHI=f2u(2.0**64)
SPIN_MAX=1<<20
sNONCE=3; sWS=4
SRD_WS=8; SRD_A=12; SRD_B=16; SRD_C=20; SRD_PT=56
sW=24; sX=25; sI=26; sJ=27; sA=28; sBR=29; sRB=30; sH=31
sMASK=40
sXCC=37; sMODE=39
pWOA=84; pWOB=86; pOUT=88

class Stamps:
    def __init__(s, A, on): s.A=A; s.on=on; s.n=0; s.names=[]; s.skip=('p1_stored','l_pre'); s.probe=None; s.cp=None
    def rt(s,name):
        if s.cp and name==s.cp[0]: s.A("s_memtime s[96:97]", "s_waitcnt lgkmcnt(0)", "s_mov_b32 s63, s96")
        if s.cp and name==s.cp[1]: s.A("s_memtime s[96:97]", "s_waitcnt lgkmcnt(0)", "s_sub_u32 s63, s96, s63")
        if s.probe==name:
            s.A("s_memrealtime s[100:101]", "s_waitcnt lgkmcnt(0)")
        if not s.on or name in s.skip: return
        s.A("s_memrealtime s[80:81]", "s_waitcnt lgkmcnt(0)", f"s_mov_b32 s{64+s.n}, s80"); s.names.append(name); s.n+=1
    def cyc(s,name):
        if not s.on: return
        s.A("s_memtime s[80:81]", "s_waitcnt lgkmcnt(0)", f"s_mov_b32 s{64+s.n}, s80"); s.names.append(name); s.n+=1
    def flush(s, vtmp):
        if not s.on: return
        A=s.A
        A(f"s_mov_b32 s92, s{sWS}", f"s_mov_b32 s93, s{sWS+1}", "s_mov_b32 s94, 0x10000000", "s_mov_b32 s95, 0x00020000")
        A(f"s_lshl_b32 s80, s2, 3", f"s_add_u32 s80, s80, s{sW}", "s_lshl_b32 s80, s80, 6", f"s_add_u32 s80, s80, {STAMP_OFF}")
        for i in range(s.n):
            A(f"v_mov_b32 v{vtmp}, s{64+i}", f"v_mov_b32 v{vtmp+1}, {4*i}", f"buffer_store_dword v{vtmp}, v{vtmp+1}, s[92:95], s80 offen")

def srd(A, s, base, size):
    A(f"s_mov_b32 s{s}, s{base}", f"s_mov_b32 s{s+1}, s{base+1}", f"s_mov_b32 s{s+2}, {size}", f"s_mov_b32 s{s+3}, 0x00020000")

def poll(A, tag, flag_off_sgpr, vaddr, vtmp, stride=FSTR):
    A(f"s_cmp_lg_u32 s{sW}, 0", f"s_cbranch_scc1 L_{tag}_skip")
    A(f"v_and_b32 v{vaddr}, 31, v0", f"v_mul_u32_u24 v{vaddr}, {stride}, v{vaddr}", f"s_mov_b32 s42, {SPIN_MAX}")
    A(f"L_{tag}_loop:")
    A(f"buffer_load_dword v{vtmp}, v{vaddr}, s[{SRD_WS}:{SRD_WS+3}], s{flag_off_sgpr} offen sc1")
    A("s_waitcnt vmcnt(0)")
    A(f"v_cmp_ne_u32 vcc, s{sNONCE}, v{vtmp}", "s_nop 1", "s_cmp_eq_u64 vcc, 0", f"s_cbranch_scc1 L_{tag}_skip")
    A("s_sub_u32 s42, s42, 1", "s_cmp_eq_u32 s42, 0", f"s_cbranch_scc1 L_{tag}_skip", "s_sleep 1", f"s_branch L_{tag}_loop")
    A(f"L_{tag}_skip:")

def setflag(A, tag, off_sgpr, vt, sc=" sc1"):
    A(f"s_cmp_lg_u32 s{sW}, 0", f"s_cbranch_scc1 L_{tag}_nf")
    A(f"v_mov_b32 v{vt}, s{sNONCE}", f"v_mov_b32 v{vt+1}, 0", "s_mov_b64 exec, 1",
      f"buffer_store_dword v{vt}, v{vt+1}, s[{SRD_WS}:{SRD_WS+3}], s{off_sgpr} offen{sc}", "s_mov_b64 exec, -1")
    A(f"L_{tag}_nf:")

def mfma16(d,a,b,c): return f"v_mfma_f32_16x16x32_bf16 {vr(d,4)}, {vr(a,4)}, {vr(b,4)}, {vr(c,4)}"
def w_src_addr(A, v, t5, t6, t7, lane, cb_sgpr, stmp):
    A(f"v_lshrrev_b32 v{t5}, 3, v{lane}", f"v_lshlrev_b32 v{t5}, 10, v{t5}", f"v_bfe_u32 v{t6}, v{lane}, 4, 1", f"v_lshlrev_b32 v{t6}, 2, v{t6}", f"v_and_b32 v{t7}, 7, v{lane}",
      f"v_xor_b32 v{t6}, v{t6}, v{t7}", f"v_lshl_add_u32 v{t5}, v{t6}, 4, v{t5}", f"s_lshl_b32 s{stmp}, s{cb_sgpr}, 7", f"v_add_u32 v{v}, s{stmp}, v{t5}")
def w_frag_addr(A, v, t6, t7, lane, ct_sgpr, stmp):
    A(f"v_lshrrev_b32 v{t6}, 5, v{lane}", f"v_bfe_u32 v{v}, v{lane}, 2, 2", f"v_lshl_add_u32 v{v}, v{t6}, 2, v{v}", f"v_lshlrev_b32 v{v}, 7, v{v}",
      f"v_bfe_u32 v{t6}, v{lane}, 4, 1", f"v_lshlrev_b32 v{t6}, 1, v{t6}", f"v_bfe_u32 v{t7}, v{lane}, 1, 1", f"v_add_u32 v{t6}, v{t6}, v{t7}",
      f"s_lshl_b32 s{stmp}, s{ct_sgpr}, 2", f"v_add_u32 v{t6}, s{stmp}, v{t6}",
      f"v_bfe_u32 v{t7}, v{lane}, 3, 1", f"v_lshlrev_b32 v{t7}, 2, v{t7}", f"v_xor_b32 v{t6}, v{t6}, v{t7}", f"v_lshl_add_u32 v{v}, v{t6}, 4, v{v}",
      f"v_and_b32 v{t7}, 1, v{lane}", f"v_lshl_add_u32 v{v}, v{t7}, 3, v{v}")
def wrd2(dst, base, n): return [f"ds_read_b64_tr_b16 {vr(dst,2)}, v{base} offset:{(16*n)*128}", f"ds_read_b64_tr_b16 {vr(dst+2,2)}, v{base} offset:{(16*n+8)*128}"]

def phase1(A, ST, opt):
    lane=2; vX=3; vW=4; t0=5; t1=6; t2=7; g_t=8
    W_=f"s[{SRD_WS}:{SRD_WS+3}]"
    GX=232; GW=236
    PT=240; F0V=244; vF0=246; vPT=247
    PTF="sc1"
    if 'ptnt' in opt: PTF="sc1 nt"
    if 'ptplain' in opt: PTF=""
    PTC=int([o[3:] for o in opt if o.startswith('ptc')][0]) if any(o.startswith('ptc') for o in opt) else 5
    if 'nopt1' in opt: PTC=99
    STG=40960
    A(f"v_lshlrev_b32 v24, 4, v{lane}")
    LF='computefirst' not in opt
    if LF: A(f"s_cmp_lt_u32 s{sW}, 4", "s_cbranch_scc1 P1_compute")
    else: A(f"s_cmp_ge_u32 s{sW}, 4", "s_cbranch_scc1 P1_loader")
    i_c0=len(A.L)
    if LF: A("P1_compute:")
    n_save=ST.n; names_save=list(ST.names)
    def gate_loads():
        A(f"s_lshl_b32 s62, s{sJ}, 8", f"s_and_b32 s42, s{sW}, 3", "s_lshl_b32 s42, s42, 6", "s_add_u32 s62, s62, s42", f"s_lshl_b32 s42, s{sH}, 1", "s_add_u32 s62, s62, s42",
          f"s_lshr_b32 s42, s{sW}, 2", "s_add_u32 s62, s62, s42", "s_lshl_b32 s42, s62, 10",
          f"buffer_load_dwordx4 {vr(GX,4)}, v24, s[{SRD_A}:{SRD_A+3}], s42 offen", f"buffer_load_dwordx4 {vr(GW,4)}, v24, s[{SRD_C}:{SRD_C+3}], 0 offen")
    gate_loads()
    if 'tlbw' in opt:
        sh=int([o[4:] for o in opt if o.startswith('tlbs')][0]) if any(o.startswith('tlbs') for o in opt) else 16
        A(f"v_lshlrev_b32 v241, {sh}, v{lane}", f"s_lshl_b32 s42, s{sX}, 7", f"buffer_load_dword v242, v241, s[{SRD_B}:{SRD_B+3}], s42 offen sc1")
    A(f"s_and_b32 s34, s{sW}, 1", f"s_lshr_b32 s35, s{sW}, 1")
    A(f"s_lshl_b32 s42, s{sX}, 2", "s_lshl_b32 s43, s35, 1", "s_add_u32 s42, s42, s43", f"s_lshl_b32 s43, s{sBR}, 5", "s_add_u32 s42, s42, s43",
      "s_lshl_b32 s42, s42, 16", f"s_lshl_b32 s43, s{sRB}, 1", "s_add_u32 s43, s43, s34", "s_lshl_b32 s43, s43, 11", "s_add_u32 s56, s42, s43")
    A(f"v_and_b32 v{vF0}, 31, v{lane}", f"v_lshlrev_b32 v{vF0}, 2, v{vF0}", f"v_lshrrev_b32 v{t0}, 5, v{lane}", f"v_lshl_add_u32 v{vF0}, v{t0}, 10, v{vF0}",
      f"s_lshl_b32 s58, s{sX}, 7", f"s_add_u32 s58, s58, {FL+FL_F0}", f"s_getreg_b32 s{sXCC}, hwreg(HW_REG_XCC_ID, 0, 4)")
    aX=[10,11]; aW=[18,19]; m=20
    A(f"v_lshrrev_b32 v{g_t}, 4, v{lane}", f"v_and_b32 v{m}, 15, v{lane}", f"v_lshrrev_b32 v{t0}, 1, v{m}",
      "s_lshl_b32 s42, s34, 6", f"v_add_u32 v{t1}, s42, v{m}", f"v_lshlrev_b32 v{t1}, 7, v{t1}")
    for s_ in range(2):
        A(f"v_or_b32 v{t2}, {4*s_}, v{g_t}", f"v_xor_b32 v{t2}, v{t2}, v{t0}", f"v_lshl_add_u32 v{aX[s_]}, v{t2}, 4, v{t1}")
    A(f"v_bfe_u32 v{t0}, v{lane}, 2, 2", f"v_lshl_add_u32 v{t1}, v{g_t}, 3, v{t0}", f"v_lshlrev_b32 v{t1}, 7, v{t1}",
      f"v_and_b32 v21, 1, v{lane}", f"v_lshl_add_u32 v{t1}, v21, 3, v{t1}", f"v_add_u32 v{t1}, 16384, v{t1}",
      f"v_bfe_u32 v{t2}, v{lane}, 3, 1", f"v_bfe_u32 v21, v{lane}, 4, 1", f"v_lshl_or_b32 v{t2}, v21, 1, v{t2}", f"v_lshlrev_b32 v{t2}, 1, v{t2}",
      f"v_bfe_u32 v21, v{lane}, 1, 1", "s_lshl_b32 s42, s35, 2", "v_or_b32 v21, s42, v21")
    for hd in range(2):
        A(f"v_or_b32 v22, {2*hd}, v21", f"v_xor_b32 v22, v{t2}, v22", f"v_lshl_add_u32 v{aW[hd]}, v22, 4, v{t1}")
    def l2pf():
        if 'l2pf' in opt:
            C0=int([o[2:] for o in opt if o.startswith('c0')][0]) if any(o.startswith('c0') for o in opt) else 3
            NCH=8-C0
            vq=240
            A(f"s_lshl_b32 s42, s{sRB}, 7", f"s_lshl_b32 s43, s{sBR}, 6", "s_add_u32 s42, s42, s43", f"s_lshl_b32 s43, s{sW}, 4", "s_add_u32 s42, s42, s43",
              f"v_add_u32 v{vq}, s42, v{m}", f"v_lshlrev_b32 v{vq}, 10, v{vq}", f"v_lshl_add_u32 v{vq}, v{g_t}, 7, v{vq}", f"s_movk_i32 s43, {128*C0}",
              f"buffer_load_dword v{vq+2}, v{vq}, s[{SRD_A}:{SRD_A+3}], s43 offen sc1" if 'pfx' in opt else "s_nop 0")
            if NCH>4 and 'pfx' in opt: A(f"buffer_load_dword v{vq+3}, v{vq}, s[{SRD_A}:{SRD_A+3}], s43 offen offset:512 sc1")
            A(f"v_mul_u32_u24 v{vq}, 43, v{lane}", f"v_lshrrev_b32 v{vq}, 7, v{vq}", f"v_mul_u32_u24 v{vq+1}, 3, v{vq}", f"v_sub_u32 v{vq+1}, v{lane}, v{vq+1}",
              f"s_mul_i32 s42, s{sRB}, {4*NCH}", f"s_mul_i32 s43, s{sW}, {NCH}", "s_add_u32 s42, s42, s43", f"s_add_u32 s42, s42, {64*C0}",
              f"v_add_u32 v{vq}, s42, v{vq}", f"v_mul_u32_u24 v{vq}, 3072, v{vq}", f"v_lshl_add_u32 v{vq}, v{vq+1}, 10, v{vq}",
              f"v_cmp_gt_u32 vcc, {3*NCH}, v{lane}", f"v_mov_b32 v{vq+1}, 0x7ff00000", f"s_lshl_b32 s43, s{sX}, 7", f"v_cndmask_b32 v{vq}, v{vq+1}, v{vq}, vcc",
              f"buffer_load_dword v{vq+2}, v{vq}, s[{SRD_B}:{SRD_B+3}], s43 offen sc1{' nt' if 'wnt' in opt else ''}")
    if 'pfearly' in opt: l2pf()
    def T(hd,a,rt): return 32+48*hd+16*a+4*rt
    XF=[128,144]; WF=[[160,164,168],[172,176,180]]
    for i in range(96): A(f"v_mov_b32 v{32+i}, 0")
    def wrd(hd,a,s_):
        if 'p1noread' in opt: return ["s_nop 0","s_nop 0"]
        return [f"ds_read_b64_tr_b16 {vr(WF[hd][a]+2*rr,2)}, v{aW[hd]} offset:{a*8192+(32*s_+4*rr)*128}" for rr in range(2)]
    def xrd(s_,rt):
        if 'p1noread' in opt: return ["s_nop 0"]
        return [f"ds_read_b128 {vr(XF[s_]+4*rt,4)}, v{aX[s_]} offset:{rt*2048}"]
    def setA(s_): return wrd(0,0,s_)+xrd(s_,0)+xrd(s_,1)+wrd(0,1,s_)+xrd(s_,2)+xrd(s_,3)+wrd(0,2,s_)
    def setB(s_): return wrd(1,0,s_)+wrd(1,1,s_)+wrd(1,2,s_)
    def mf(hd,s_):
        x=XF[s_]; w=WF[hd]; L=[]
        for rt in (0,1): L.append(mfma16(T(hd,0,rt), w[0], x+4*rt, T(hd,0,rt)))
        for rt in (0,1): L.append(mfma16(T(hd,1,rt), w[1], x+4*rt, T(hd,1,rt)))
        for rt in (2,3): L.append(mfma16(T(hd,0,rt), w[0], x+4*rt, T(hd,0,rt)))
        for rt in (2,3): L.append(mfma16(T(hd,1,rt), w[1], x+4*rt, T(hd,1,rt)))
        for rt in range(4): L.append(mfma16(T(hd,2,rt), x+4*rt, w[2], T(hd,2,rt)))
        return L
    needA=[2,3,5,5,6,7,7,7,9,9,9,9]; needB=[1,1,3,3,3,3,3,3,5,5,5,5]
    def half(mfs, need, nold, new, pre=None, at=None):
        prev=-1; issued=0
        for k in range(12):
            if need[k]>prev:
                A(f"s_waitcnt lgkmcnt({(nold-1-need[k])+issued})"); prev=need[k]
            if pre and k==pre[0]: pre[1]()
            A(mfs[k])
            if k>=at and issued<len(new):
                n=1 if (len(new)-issued)<=(12-k-1) else 2
                n=min(n,len(new)-issued)
                A(new[issued:issued+n]); issued+=n
        assert issued==len(new)
    A("s_mov_b32 s49, 0", "s_mov_b32 s36, 0", f"s_mov_b32 s53, {STG}")
    A("s_barrier")
    A("s_waitcnt lgkmcnt(0)", f"s_mul_i32 s{sNONCE}, s3, 0x9e3779b1", f"s_add_u32 s{sNONCE}, s{sNONCE}, 0x7f4a7c15")
    ST.rt("p1_data")
    A(setA(0))
    if 'pfearly' not in opt: l2pf()
    if 'codepf' in opt:
        A(f"s_cmp_lg_u32 s{sW}, 1", "s_cbranch_scc1 L_nocpf", "s_getpc_b64 s[42:43]", "L_cpf_pc:", "s_add_u32 s42, s42, (P1_after-L_cpf_pc)", "s_addc_u32 s43, s43, 0",
          f"v_lshlrev_b32 v241, 7, v{lane}", "v_min_u32 v242, (L_done-P1_after-8192), v241")
        A("v_min_u32 v243, (L_done-P1_after), v241", "global_load_dword v240, v243, s[42:43]",
          "v_add_u32 v243, 8192, v242", "global_load_dword v240, v243, s[42:43]", "L_nocpf:")
    A(f"s_cmp_lg_u32 s{sW}, 0", "s_cbranch_scc1 L_f0_nf", f"s_add_u32 s42, s{sNONCE}, s{sXCC}", f"s_lshl_b32 s43, s{sI}, 2", "s_add_u32 s43, s43, s58",
      "v_mov_b32 v5, s42", "v_mov_b32 v6, 0", "s_mov_b64 exec, 1", f"buffer_store_dword v5, v6, {W_}, s43 offen sc1", "s_mov_b64 exec, -1", "L_f0_nf:")
    A(".p2align 3", "P1_loop:")
    half(mf(0,0), needA, 10, setB(0), at=2)
    half(mf(1,0), needB, 6, setA(1), at=1)
    half(mf(0,1), needA, 10, setB(1), at=2)
    def boundary():
        A("s_add_u32 s36, s36, 1", "s_cmp_eq_u32 s36, 4", f"s_cselect_b32 s52, {(-3*STG)&0xffffffff:#x}, s53", "s_cselect_b32 s36, 0, s36", "s_waitcnt lgkmcnt(0)")
        for r in aX+aW: A(f"v_add_u32 v{r}, s52, v{r}")
        A("s_cmp_eq_u32 s49, 4", "s_cbranch_scc1 P1_f0ld", "P1_f0back:", "s_barrier")
        if ST.probe and ST.probe.startswith('it'):
            A(f"s_cmp_eq_u32 s49, {ST.probe[2:]}", "s_cbranch_scc0 P1_noprobe", "s_memrealtime s[100:101]", "s_waitcnt lgkmcnt(0)", "P1_noprobe:")
        if 'p1it' in opt:
            A("s_memtime s[80:81]", "s_waitcnt lgkmcnt(0)")
            for k in range(7): A(f"s_mov_b32 s{64+8+k}, s{64+9+k}")
            A(f"s_mov_b32 s{64+15}, s80")
    half(mf(1,1), needB, 6, setA(0), pre=(3,boundary), at=3)
    A("s_add_u32 s49, s49, 1", "s_cmp_lt_u32 s49, 8", "s_cbranch_scc1 P1_loop")
    ST.rt("p1_loop")
    if 'p1it' in opt:
        ST.n=16; ST.flush(210); A("s_waitcnt vmcnt(0)", "s_endpgm")
    A("s_branch P1_after")
    A("P1_f0ld:", f"buffer_load_dword v{F0V}, v{vF0}, {W_}, s58 offen sc1", "s_branch P1_f0back")
    A("P1_after:")
    A("s_waitcnt vmcnt(0)", f"s_mov_b32 s42, {SPIN_MAX}")
    A("P1_chk:", f"v_subrev_u32 v{F0V+1}, s{sNONCE}, v{F0V}", f"v_cmp_gt_u32 vcc, 8, v{F0V+1}", "s_nop 1", "s_cmp_eq_u32 vcc_lo, -1", "s_cbranch_scc1 P1_chk_ok")
    A("s_sub_u32 s42, s42, 1", "s_cmp_eq_u32 s42, 0", "s_cbranch_scc1 P1_chk_ok", "s_sleep 1",
      f"buffer_load_dword v{F0V}, v{vF0}, {W_}, s58 offen sc1", "s_waitcnt vmcnt(0)", "s_branch P1_chk")
    A("P1_chk_ok:", f"v_cmp_eq_u32 vcc, s{sXCC}, v{F0V+1}", "s_nop 1", "s_cmp_eq_u32 vcc_lo, -1", f"s_cselect_b32 s{sMODE}, 1, 0")
    if 'forcesafe' in opt: A(f"s_mov_b32 s{sMODE}, 0")
    if 'fine3' in opt: ST.rt("mode")
    A(f"s_mov_b32 s44, {hex(f2u(QSCALE))}", "s_waitcnt lgkmcnt(0)")
    for hd in range(2):
        PK=128+24*hd
        TQ,TK,TV=T(hd,0,0),T(hd,1,0),T(hd,2,0)
        for t in range(2):
            for i in range(4): A(f"v_cvt_pk_bf16_f32 v{PK+4*t+i}, v{TK+8*t+2*i}, v{TK+8*t+2*i+1}")
        for t in range(2):
            for i in range(4): A(f"v_cvt_pk_bf16_f32 v{PK+8+4*t+i}, v{TV+8*t+2*i}, v{TV+8*t+2*i+1}")
        for i in range(16): A(f"v_mul_f32 v{TQ+i}, s44, v{TQ+i}")
        for t in range(2): A(f"v_permlane16_swap_b32 v{PK+4*t}, v{PK+4*t+2}", f"v_permlane16_swap_b32 v{PK+4*t+1}, v{PK+4*t+3}")
        for t in range(2):
            for i in range(4): A(f"v_cvt_pk_bf16_f32 v{PK+16+4*t+i}, v{TQ+8*t+2*i}, v{TQ+8*t+2*i+1}")
        for t in range(2): A(f"v_permlane32_swap_b32 v{PK+8+4*t}, v{PK+8+4*t+2}", f"v_permlane32_swap_b32 v{PK+8+4*t+1}, v{PK+8+4*t+3}")
        for t in range(2): A(f"v_permlane16_swap_b32 v{PK+16+4*t}, v{PK+16+4*t+2}", f"v_permlane16_swap_b32 v{PK+16+4*t+1}, v{PK+16+4*t+3}")
        A(f"s_add_u32 s46, s56, {hd*65536}", f"s_add_u32 s45, s46, {KF}", f"s_add_u32 s47, s46, {VF}")
        A(f"s_cmp_eq_u32 s{sMODE}, 0", f"s_cbranch_scc1 P1_st_safe{hd}")
        for sc,lab in (("",None),(" sc1",f"P1_st_safe{hd}")):
            if lab: A(f"s_branch P1_st_done{hd}", f"{lab}:")
            A(f"buffer_store_dwordx4 {vr(PK,4)}, v24, {W_}, s45 offen{sc}", f"buffer_store_dwordx4 {vr(PK+4,4)}, v24, {W_}, s45 offen offset:1024{sc}")
            A(f"buffer_store_dwordx4 {vr(PK+8,4)}, v24, {W_}, s47 offen{sc}", f"buffer_store_dwordx4 {vr(PK+12,4)}, v24, {W_}, s47 offen offset:1024{sc}")
            A(f"buffer_store_dwordx4 {vr(PK+16,4)}, v24, {W_}, s46 offen{sc}", f"buffer_store_dwordx4 {vr(PK+20,4)}, v24, {W_}, s46 offen offset:1024{sc}")
        A(f"P1_st_done{hd}:")
    if not LF: A("s_branch P1_join")
    i_l0=len(A.L)
    A("P1_loader:")
    n_end=ST.n; names_end=list(ST.names); ST.n=n_save; ST.names=list(names_save)
    A(f"s_and_b32 s34, s{sW}, 3")
    A(f"v_lshrrev_b32 v{t0}, 3, v{lane}", f"v_and_b32 v{t2}, 7, v{lane}", f"v_lshrrev_b32 v{t1}, 4, v{lane}", f"v_xor_b32 v{t1}, v{t1}, v{t2}",
      f"s_lshl_b32 s42, s{sRB}, 7", "s_lshl_b32 s43, s34, 5", "s_add_u32 s42, s42, s43", f"v_add_u32 v{vX}, s42, v{t0}", f"v_lshlrev_b32 v{vX}, 10, v{vX}",
      f"v_xor_b32 v9, 4, v{t1}", f"v_lshl_add_u32 v9, v9, 4, v{vX}", f"v_add_u32 v9, 8192, v9", f"v_lshl_add_u32 v{vX}, v{t1}, 4, v{vX}")
    A(f"v_add_u32 v10, 0x4000, v{vX}", "v_add_u32 v11, 0x4000, v9")
    A(f"v_bfe_u32 v{t1}, v{lane}, 4, 1", f"v_lshlrev_b32 v{t1}, 1, v{t1}", f"v_xor_b32 v{t1}, v{t1}, v{t2}",
      "s_lshl_b32 s43, s34, 4", f"v_add_u32 v{t0}, s43, v{t0}", f"v_mul_u32_u24 v{vW}, 3072, v{t0}", *([f"s_add_u32 s45, s{sX}, 2", "s_and_b32 s45, s45, 7", "s_lshl_b32 s45, s45, 7"] if 'wcol2' in opt else [f"s_lshl_b32 s45, s{sX}, 7"]), f"v_add_u32 v{vW}, s45, v{vW}",
      f"v_xor_b32 v12, 4, v{t1}", f"v_lshl_add_u32 v12, v12, 4, v{vW}", f"v_add_u32 v12, {8*3072}, v12", f"v_lshl_add_u32 v{vW}, v{t1}, 4, v{vW}")
    def dmas():
        L=[]
        xs=[vX,9,10,11]
        for ii in range(4):
            L.append([f"s_add_u32 m0, s46, {ii*1024}", "NOP", f"buffer_load_dwordx4 v{xs[ii]}, s[{SRD_A}:{SRD_A+3}], s47 offen{' nt' if 'xnt' in opt else ''} lds"])
        for seg in range(3):
            for ii in range(2):
                L.append([f"s_add_u32 m0, s57, {16384+seg*8192+ii*1024-seg*1024}", "NOP", f"buffer_load_dwordx4 v{[vW,12][ii]}, s[{SRD_B}:{SRD_B+3}], s48 offen offset:{seg*1024}{' nt' if 'wnt' in opt else ''} lds"])
        return L
    def issue():
        A("s_and_b32 s51, s50, 3", f"s_mul_i32 s51, s51, {STG}", "s_lshl_b32 s46, s34, 12", "s_add_u32 s46, s46, s51", "s_lshl_b32 s57, s34, 11", "s_add_u32 s57, s57, s51",
          *(["s_add_u32 s59, s50, s60", "s_and_b32 s59, s59, 7", "s_lshl_b32 s47, s59, 7", f"s_mul_i32 s48, s59, {64*3072}"] if True else ["s_lshl_b32 s47, s50, 7", f"s_mul_i32 s48, s50, {64*3072}"]))
        if 'p1nodma' not in opt:
            for g in dmas(): A([("s_nop 0" if x=="NOP" else x) for x in g])
        A("s_add_u32 s50, s50, 1")
    if 'krot1' in opt: A(f"s_and_b32 s60, s{sRB}, 7")
    elif 'krot2' in opt: A(f"s_lshl_b32 s60, s{sBR}, 2", f"s_add_u32 s60, s60, s{sRB}")
    elif 'krot3' in opt: A(f"s_lshr_b32 s60, s{sRB}, 1", f"s_lshl_b32 s59, s{sBR}, 2", "s_add_u32 s60, s60, s59")
    elif 'krot4' in opt: A(f"s_lshr_b32 s60, s{sRB}, 1", f"s_add_u32 s60, s60, s{sX}")
    elif 'krot0' in opt: A("s_mov_b32 s60, 0")
    elif 'krotrb' in opt: A(f"s_lshr_b32 s60, s{sRB}, 1")
    else: A(f"s_lshr_b32 s60, s{sRB}, 1", f"s_add_u32 s60, s60, s{sX}")
    A("s_mov_b32 s50, 0", "s_mov_b32 s49, 0")
    ST.rt("l_pre")
    A("P1_lpro:")
    issue()
    UP=2 if 'up2' in opt else (4 if 'up4' in opt else 3)
    A(f"s_cmp_lt_u32 s50, {UP}", "s_cbranch_scc1 P1_lpro")
    gate_loads()
    A(f"s_waitcnt vmcnt({10*(UP-1)+2})", "s_barrier")
    A("s_waitcnt lgkmcnt(0)", f"s_mul_i32 s{sNONCE}, s3, 0x9e3779b1", f"s_add_u32 s{sNONCE}, s{sNONCE}, 0x7f4a7c15")
    ST.rt("p1_data")
    A(f"v_lshrrev_b32 v{t0}, 4, v{lane}", f"v_lshlrev_b32 v{vPT}, 22, v{t0}", f"v_bfe_u32 v{t0}, v{lane}, 3, 1", f"v_lshl_add_u32 v{vPT}, v{t0}, 10, v{vPT}",
      f"v_and_b32 v{t0}, 7, v{lane}", f"v_lshl_add_u32 v{vPT}, v{t0}, 7, v{vPT}", f"v_cmp_gt_u32 vcc, 48, v{lane}", f"v_mov_b32 v{t0}, 0x7ff00000", "s_nop 0",
      f"v_cndmask_b32 v{vPT}, v{t0}, v{vPT}, vcc")
    A("s_and_b32 s42, s34, 1", "s_lshr_b32 s43, s34, 1",
      f"s_lshl_b32 s44, s{sX}, 2", "s_lshl_b32 s43, s43, 1", "s_add_u32 s44, s44, s43", f"s_lshl_b32 s43, s{sBR}, 5", "s_add_u32 s44, s44, s43", "s_lshl_b32 s44, s44, 16",
      f"s_lshl_b32 s43, s{sRB}, 1", "s_add_u32 s43, s43, s42", "s_lshl_b32 s43, s43, 11", "s_add_u32 s56, s44, s43")
    issue_lbl="P1_lloop"
    if UP<4:
        A("P1_lpro2:")
        issue()
        A("s_cmp_lt_u32 s50, 4", "s_cbranch_scc1 P1_lpro2")
    A("P1_lloop:")
    A("s_cmp_lt_u32 s49, 5", "s_cbranch_scc0 P1_ltail", "s_waitcnt vmcnt(20)", "s_branch P1_lbar")
    A("P1_ltail:", "s_cmp_eq_u32 s49, 5", "s_cbranch_scc0 P1_ltail2", "s_waitcnt vmcnt(10)", "s_branch P1_lbar")
    A("P1_ltail2:", "s_cmp_eq_u32 s49, 6", "s_cbranch_scc0 P1_lbar", f"s_waitcnt vmcnt({2 if PTC==5 else 0})")
    A("P1_lbar:", "s_barrier")
    if ST.probe and ST.probe.startswith('it'):
        A(f"s_cmp_eq_u32 s49, {ST.probe[2:]}", "s_cbranch_scc0 P1_lnoprobe", "s_memrealtime s[100:101]", "s_waitcnt lgkmcnt(0)", "P1_lnoprobe:")
    A("s_cmp_lt_u32 s50, 8", "s_cbranch_scc0 P1_lnoiss")
    issue()
    A("P1_lnoiss:")
    A(f"s_cmp_eq_u32 s49, {PTC}", "s_cbranch_scc0 P1_lnopt", "s_add_u32 s42, s56, 65536",
      f"buffer_load_dword v{PT}, v{vPT}, {W_}, s56 offen {PTF}", f"buffer_load_dword v{PT+1}, v{vPT}, {W_}, s42 offen {PTF}", "P1_lnopt:")
    A("s_add_u32 s49, s49, 1", "s_cmp_lt_u32 s49, 8", "s_cbranch_scc1 P1_lloop")
    ST.rt("p1_loop")
    if 'p1it' in opt:
        A("s_waitcnt vmcnt(0)", "s_endpgm")
    if 'fine3' in opt: ST.rt("mode")
    A(f"s_mov_b32 s{sMODE}, 0")
    if LF:
        A("s_branch P1_join")
        A.L[i_c0:]=A.L[i_l0:]+A.L[i_c0:i_l0]
    A("P1_join:", "s_nop 1")
    assert ST.n==n_end or 'p1it' in opt
    if 'fine3' in opt: ST.rt("st_iss")

def gate(A):
    W_=f"s[{SRD_WS}:{SRD_WS+3}]"
    GX=232; GW=236; GA=250
    A(f"v_mov_b32 v{GA}, 0")
    for i in range(4): A(f"v_dot2_f32_bf16 v{GA}, v{GX+i}, v{GW+i}, v{GA}")
    A("s_nop 2")
    for ror in (8,4,2,1):
        A(f"v_add_f32_dpp v{GA}, v{GA}, v{GA} row_ror:{ror} row_mask:0xf bank_mask:0xf", "s_nop 1")
    A(f"v_mov_b32 v{GA+1}, v{GA}", "s_nop 1", f"v_permlane16_swap_b32 v{GA+1}, v{GA}", "s_nop 1", f"v_add_f32 v{GA}, v{GA}, v{GA+1}",
      f"v_mov_b32 v{GA+1}, v{GA}", "s_nop 1", f"v_permlane32_swap_b32 v{GA+1}, v{GA}", "s_nop 1", f"v_add_f32 v{GA}, v{GA}, v{GA+1}")
    A(f"v_mul_f32 v{GA}, {hex(f2u(-1.4426950408889634))}, v{GA}", f"v_exp_f32 v{GA}, v{GA}", "s_nop 0", f"v_add_f32 v{GA}, 1.0, v{GA}", f"v_rcp_f32 v{GA}, v{GA}",
      "s_lshl_b32 s62, s62, 2", f"s_add_u32 s62, s62, {GOFF}", f"v_mov_b32 v{GA+1}, 0")
def gate_store(A):
    A("s_mov_b64 exec, 1", f"buffer_store_dword v250, v251, s[{SRD_WS}:{SRD_WS+3}], s62 offen sc1", "s_mov_b64 exec, -1")

def publish1(A, ST, opt):
    if 'fine3' in opt:
        A("s_waitcnt vmcnt(0)"); ST.rt("vm0")
    A("s_waitcnt vmcnt(0)", "s_barrier")
    if 'fine3' in opt: ST.rt("bar1")
    ST.rt("p1_stored")
    A(f"s_lshl_b32 s42, s{sX}, 7", f"s_lshl_b32 s43, s{sI}, 2", "s_add_u32 s43, s43, s42", f"s_add_u32 s43, s43, {FL+FL_F1}", f"s_add_u32 s38, s42, {FL+FL_F1}")
    A(f"s_cmp_eq_u32 s{sMODE}, 0", "s_cbranch_scc1 L_f1_safe")
    setflag(A,"f1f",43,5,"")
    A("s_branch L_f1_done", "L_f1_safe:")
    setflag(A,"f1s",43,5," sc1")
    A("L_f1_done:")
def sync1(A, ST, opt):
    if 'fine3' in opt: ST.rt("prolog")
    poll(A,"p1",38,2,3,stride=F1STR)
    A("s_barrier")
    ST.rt("p1_flags")

LANE=1
QA0=4; QA1=8; QB=12
OA0=16; OA1=32
S0=48; S1=64
P=80
KB_=88; VB_=210
MF=140; MD=156; CB=64
WBF=[96,100,104,108,120,124,128,132,136,192,196,200,204,228,232,236]
vKa=172; vVa=173
vL16=174; vT=175; vT2=176; vT3=177; vNEGM=178; vM=179; vKs=180; vVs=181; vX0=182; vPK=184
VL=188
LDS_KA=0; LDS_VA=65536; LDS_KB=131072; LDS_VB=147456
def exps(S): return [f"v_exp_f32 v{S+i}, v{S+i}" for i in range(16)]
def cvts(S): return [f"v_cvt_pk_bf16_f32 v{P+i}, v{S+2*i}, v{S+2*i+1}" for i in range(8)]
MK=[f"s_mov_b64 exec, s[{sMASK}:{sMASK+1}]"]; UM=["s_mov_b64 exec, -1"]
def unit(A, Sc, QK, PV1, ld, wK, wV, PV0):
    e=exps(Sc); c=cvts(Sc)
    A(wK, QK)
    A(e[0:4], c[0], e[4:6], c[1])
    A(PV1, ld)
    A(e[6:8], c[2], e[8:10], c[3], e[10:12])
    A(wV, PV0)
    A(e[12:13], c[4], e[13:15], c[5], e[15:16], c[6], c[7])
def slow_pass(A, tag, Q, O, pass1, far, diag, n):
    A(f"v_mov_b32 v{vX0}, v{vKs}", f"v_mov_b32 v{vX0+1}, v{vVs}", "s_mov_b32 s60, 0")
    if pass1: A(f"v_mov_b32 v{vM}, {hex(NEG)}", f"v_mov_b32 v{vNEGM}, 0")
    else:
        for i in range(16): A(f"v_mov_b32 v{O+i}, 0")
    A(f"L_{tag}_loop:")
    A(f"ds_read_b128 {vr(KB_,4)}, v{vX0}")
    if not pass1: A(MK, f"ds_read_b128 {vr(VB_,4)}, v{vX0+1}", f"ds_read_b128 {vr(VB_+4,4)}, v{vX0+1} offset:512", UM)
    A("s_cmp_eq_u32 s60, 0", f"s_cselect_b32 s61, s{far}, 0", "s_cmp_lg_u32 s61, 0", f"s_cbranch_scc1 L_{tag}_far")
    A(f"s_add_u32 s61, s60, 1", f"s_cmp_eq_u32 s61, s{n}", f"s_cselect_b32 s61, s{diag}, 0", "s_cmp_lg_u32 s61, 0", f"s_cbranch_scc1 L_{tag}_diag")
    for i in range(16): A(f"v_mov_b32 v{CB+i}, v{vNEGM}")
    A(f"s_branch L_{tag}_go")
    A(f"L_{tag}_far:")
    for i in range(16): A(f"v_add_f32 v{CB+i}, v{MF+i}, v{vNEGM}")
    A(f"s_branch L_{tag}_go")
    A(f"L_{tag}_diag:")
    for i in range(16): A(f"v_add_f32 v{CB+i}, v{MD+i}, v{vNEGM}")
    A(f"L_{tag}_go:")
    A("s_waitcnt lgkmcnt(0)", "s_nop 0")
    A(mfma32(S0, KB_, Q, CB))
    A("s_nop 7","s_nop 3")
    if pass1:
        for i in range(16): A(f"v_max_f32 v{vM}, v{vM}, v{S0+i}")
    else:
        A(exps(S0), "s_nop 0", cvts(S0), "s_nop 1")
        A(mfma32(O, VB_, P, O), mfma32(O, VB_+4, P+4, O))
    A(f"v_add_u32 v{vX0}, 1024, v{vX0}", f"v_add_u32 v{vX0+1}, 1024, v{vX0+1}")
    A("s_add_u32 s60, s60, 1", f"s_cmp_lt_u32 s60, s{n}", f"s_cbranch_scc1 L_{tag}_loop")
    if pass1:
        A(f"v_mov_b32 v{vT}, v{vM}", "s_nop 1", f"v_permlane32_swap_b32 v{vT}, v{vM}", "s_nop 1",
          f"v_max_f32 v{vM}, v{vM}, v{vT}", f"v_sub_f32 v{vNEGM}, 0, v{vM}")
    else: A("s_nop 7","s_nop 3")
def bcast_l(A,O):
    A(f"v_mov_b32 v{vT}, v{O+8}", "s_nop 1", f"v_permlane32_swap_b32 v{vT}, v{O+8}", "s_nop 1", f"v_add_f32 v{O+8}, v{O+8}, v{vT}")
def check_range(A, O, okl):
    bcast_l(A,O)
    A(f"v_mov_b32 v{vT}, v{O+8}")
    for i in range(8): A(f"v_fma_f32 v{vT}, v{O+i}, 0, v{vT}")
    A(f"s_mov_b32 s44, {hex(LLO)}", f"s_mov_b32 s45, {hex(LHI)}")
    A(f"v_cmp_le_f32 s[46:47], s44, v{vT}", f"v_cmp_ge_f32 s[48:49], s45, v{vT}", "s_nop 1",
      "s_and_b64 s[46:47], s[46:47], s[48:49]", "s_cmp_eq_u64 s[46:47], -1", f"s_cbranch_scc1 {okl}")
def finalize(A, O, soff):
    A(f"v_rcp_f32 v{vT}, v{O+8}", "s_nop 0")
    for i in range(8): A(f"v_mul_f32 v{O+i}, v{O+i}, v{vT}")
    for i in range(4): A(f"v_cvt_pk_bf16_f32 v{vPK+i}, v{O+2*i}, v{O+2*i+1}")
    A(f"buffer_store_dwordx4 {vr(vPK,4)}, v{vL16}, s[{SRD_WS}:{SRD_WS+3}], s{soff} offen sc1")

def early2(A):
    A(f"v_and_b32 v{LANE}, 63, v0")
    A(f"v_lshlrev_b32 v{vL16}, 4, v{LANE}", f"v_and_b32 v{vT}, 31, v{LANE}")
    A(f"s_mov_b32 s{sMASK}, 0x0000ffff", f"s_mov_b32 s{sMASK+1}, 0x0000ffff")
    A(f"v_cmp_eq_u32 vcc, 16, v{vT}", f"v_mov_b32 v{vX0}, 0x3f803f80", "s_nop 0", f"v_cndmask_b32 v{vX0+1}, 0, v{vX0}, vcc")
    for i in range(16): A(f"v_mov_b32 v{VB_+i}, v{vX0+1}")
    hh=vT3; MS=[82,90,96,98]
    A(f"v_lshrrev_b32 v{hh}, 5, v{LANE}", f"v_lshlrev_b32 v{vT2}, 2, v{hh}", f"v_sub_u32 v{vT2}, v{vT}, v{vT2}")
    A(f"v_mov_b32 v{vX0}, {hex(NEG)}")
    for g in range(4):
        for k in range(4): A(f"v_cmp_gt_i32 s[{MS[k]}:{MS[k]+1}], {8*g+k}, v{vT2}")
        A("s_nop 0")
        for k in range(4):
            i=4*g+k
            A(f"v_cndmask_b32 v{MF+i}, v{vX0}, 0, s[{MS[k]}:{MS[k]+1}]", f"v_cndmask_b32 v{MD+i}, 0, v{vX0}, s[{MS[k]}:{MS[k]+1}]")
    A(f"v_and_b32 v{vT}, 15, v{LANE}", f"v_lshlrev_b32 v{vT}, 4, v{vT}", f"v_lshl_add_u32 v{VL}, v{hh}, 8, v{vT}")

def phase2(A, ST, opt):
    W_=f"s[{SRD_WS}:{SRD_WS+3}]"
    SC="" if 'plainld' in opt else " sc1"
    early2(A)
    A(f"s_and_b32 s15, s{sW}, 3", f"s_lshr_b32 s16, s{sW}, 2")
    A("s_lshl_b32 s17, s15, 1", "s_add_u32 s17, s17, s16",
      f"s_lshl_b32 s18, s{sJ}, 3", "s_add_u32 s19, s18, s17",
      f"s_lshl_b32 s20, s{sH}, 16", f"s_add_u32 s21, s20, {32*65536}")
    A("s_lshl_b32 s43, s17, 10", f"s_add_u32 s44, s43, {LDS_KB}", f"v_add_u32 v{vKa}, s44, v{vL16}",
      f"s_add_u32 s44, s43, {LDS_VB}", f"v_add_u32 v{vVa}, s44, v{VL}")
    A("s_lshl_b32 s32, s19, 16", f"s_lshl_b32 s33, s{sH}, 10", "s_add_u32 s32, s32, s33", f"s_add_u32 s32, s32, {OF}", "s_add_u32 s33, s32, 32768")
    A("s_lshl_b32 s22, s19, 10", "s_add_u32 s22, s22, s21", f"s_add_u32 s22, s22, {QF}")
    A("s_lshl_b32 s23, s19, 10", "s_add_u32 s23, s23, s20", f"s_add_u32 s23, s23, {QF}", "s_xor_b32 s14, s19, 1", "s_lshl_b32 s14, s14, 10", "s_add_u32 s14, s14, s20", f"s_add_u32 s14, s14, {QF}")
    for ii in range(2):
        A(f"s_add_u32 s43, s{sW}, {8*ii}", "s_add_u32 s44, s18, s43", "s_sub_u32 s44, s44, 8", "s_max_i32 s44, s44, 0",
          "s_lshl_b32 s44, s44, 10", "s_add_u32 s44, s44, s21", f"s_add_u32 s{54+ii}, s44, {KF}")
    A(f"s_lshl_b32 s56, s{sW}, 10", "s_add_u32 s57, s56, s20", f"s_add_u32 s57, s57, {KF}")
    publish1(A,ST,opt)
    OBz=OA0
    for i in range(16): A(f"v_mov_b32 v{OBz+i}, 0")
    for i in range(4): A(f"v_mov_b32 v{P+4+i}, 0")
    gate(A)
    sync1(A,ST,opt)
    A(f"buffer_load_dwordx4 {vr(QB,4)}, v{vL16}, {W_}, s22 offen{SC}")
    if 'fine2' in opt:
        A("s_waitcnt vmcnt(0)"); ST.rt("qb_landed")
    for ii in range(2):
        A(f"s_add_u32 m0, s56, {LDS_KB+8192*ii}", f"s_add_u32 s45, s{54+ii}, {VF-KF}", f"buffer_load_dwordx4 v{vL16}, {W_}, s{54+ii} offen{SC} lds")
        A(f"s_add_u32 m0, s56, {LDS_VB+8192*ii}", "s_nop 0", f"buffer_load_dwordx4 v{vL16}, {W_}, s45 offen{SC} lds")
    A(f"buffer_load_dwordx4 {vr(QA0,4)}, v{vL16}, {W_}, s23 offen{SC}", f"buffer_load_dwordx4 {vr(QA1,4)}, v{vL16}, {W_}, s14 offen{SC}")
    def adma(m):
        return [f"s_add_u32 m0, s56, {LDS_KA+m*8192}", f"s_add_u32 s45, s57, {m*8192}", f"buffer_load_dwordx4 v{vL16}, {W_}, s45 offen{SC} lds",
                f"s_add_u32 m0, s56, {LDS_VA+m*8192}", f"s_add_u32 s45, s57, {VF-KF+m*8192}", f"buffer_load_dwordx4 v{vL16}, {W_}, s45 offen{SC} lds"]
    global ADMA; ADMA=adma
    A("s_waitcnt vmcnt(2)")
    OB=OA0
    if 'fine3' in opt: ST.rt("own_b")
    A("s_barrier")
    ST.rt("b_data")
    if 'fine3' in opt:
        ST.flush(2); A("s_waitcnt vmcnt(0)", "s_endpgm"); ST.on=False
    def ldK(t,base): return [f"ds_read_b128 {vr(KB_+4*(t%2),4)}, v{base} offset:{t*1024}"]
    def ldV(t,base): return MK+[f"ds_read_b128 {vr(VB_+8*(t%2),4)}, v{base} offset:{t*1024}", f"ds_read_b128 {vr(VB_+8*(t%2)+4,4)}, v{base} offset:{t*1024+512}"]+UM
    NB=9
    A("s_mov_b32 s51, 1", f"s_cmp_eq_u32 s{sJ}, 0", "s_cselect_b32 s50, 0, 1", "s_sub_u32 s53, 8, s17", "s_cselect_b32 s53, s53, 0")
    A.L.pop()
    A(f"s_cmp_eq_u32 s{sJ}, 0", "s_cselect_b32 s53, s53, 0")
    A("s_sub_u32 s52, 9, s53")
    A("s_lshl_b32 s43, s53, 10", f"v_add_u32 v{vKs}, s43, v{vKa}", f"v_add_u32 v{vVs}, s43, v{vVa}")
    A("s_cmp_eq_u32 s53, 0", "s_cbranch_scc1 B_pro0", "s_mov_b32 s58, s56", "s_mov_b32 s59, s57", "s_mov_b32 s60, s53", "B_skipdma:")
    A(f"s_add_u32 m0, s58, {LDS_KA}", f"s_add_u32 s45, s59, {VF-KF}", f"buffer_load_dwordx4 v{vL16}, {W_}, s59 offen{SC} lds",
      f"s_add_u32 m0, s58, {LDS_VA}", "s_add_u32 s58, s58, 8192", f"buffer_load_dwordx4 v{vL16}, {W_}, s45 offen{SC} lds",
      "s_add_u32 s59, s59, 8192", "s_sub_u32 s60, s60, 1", "s_cmp_lg_u32 s60, 0", "s_cbranch_scc1 B_skipdma")
    for s0 in range(1,NB):
        A(f"s_cmp_eq_u32 s53, {s0}", f"s_cbranch_scc1 B_pro{s0}")
    for s0 in range(NB-1,-1,-1):
        A(f"B_pro{s0}:")
        Sc=S0 if s0%2==0 else S1
        C = MF if s0==0 else (MD if s0==NB-1 else "0")
        A(ldK(s0,vKa), "s_waitcnt lgkmcnt(0)", mfma32(Sc, KB_+4*(s0%2), QB, C))
        if s0==0:
            A(ldV(0,vVa), ldK(1,vKa))
        else:
            if s0+1<NB: A(ldK(s0+1,vKa))
            A(ldV(s0,vVa))
        A("s_nop 7","s_nop 3")
        if s0!=0: A(f"s_branch B_step{s0}")
    for t in range(NB):
        A(f"B_step{t}:")
        Sc=S0 if t%2==0 else S1; Sn=S1 if t%2==0 else S0
        if t+1<NB:
            QK=[mfma32(Sn, KB_+4*((t+1)%2), QB, MD if t+1==NB-1 else "0")]
            wK=["s_waitcnt lgkmcnt(0)"] if t==0 else ["s_waitcnt lgkmcnt(2)"]
        else: QK=[]; wK=[]
        PV1=[mfma32(OB, VB_+8*((t-1)%2)+4, P+4, OB)] if t>0 else []
        ld=[]
        if t+2<NB: ld+=ldK(t+2,vKa)
        if t+1<NB: ld+=ldV(t+1,vVa)
        nld=(1 if t+2<NB else 0)+(2 if t+1<NB else 0)
        wV=[f"s_waitcnt lgkmcnt({nld})"]
        PV0=[mfma32(OB, VB_+8*(t%2), P, OB)]
        if t<8: ld=ld+ADMA(t)
        unit(A,Sc,QK,PV1,ld,wK,wV,PV0)
    A("s_nop 1", mfma32(OB, VB_+8*((NB-1)%2)+4, P+4, OB))
    A("s_nop 7","s_nop 3")
    check_range(A,OB,"B_ok")
    slow_pass(A,"bf1",QB,OB,True,50,51,52)
    slow_pass(A,"bf2",QB,OB,False,50,51,52)
    bcast_l(A,OB)
    A("B_ok:")
    finalize(A,OB,33)
    ST.rt("b_done")
    A("s_waitcnt vmcnt(1)", "s_barrier")
    ST.rt("a_start")
    gate_store(A)
    if 'dup' in opt: A("s_mov_b32 s54, 2", "A_dup:")
    A("s_lshl_b32 s43, s16, 15", f"v_add_u32 v{vKa}, s43, v{vL16}", f"s_add_u32 s44, s43, {LDS_VA}", f"v_add_u32 v{vVa}, s44, v{VL}")
    NOMASK='novmask' in opt
    vStep=119
    if NOMASK:
        CREG=LDS_KB+22528
        t0,t1,t2,t3=120,121,122,123
        A(f"v_mul_u32_u24 v{t0}, 43, v{LANE}", f"v_lshrrev_b32 v{t0}, 7, v{t0}",
          f"v_mul_u32_u24 v{t1}, 3, v{t0}", f"v_sub_u32 v{t1}, v{LANE}, v{t1}",
          f"v_lshlrev_b32 v{t2}, 4, v{t1}", f"v_cmp_eq_u32 vcc, 2, v{t1}", f"v_lshlrev_b32 v{t0}, 9, v{t0}", "s_nop 0", f"v_cndmask_b32 v{t2}, v{t2}, 64, vcc",
          f"v_add_u32 v{t0}, v{t0}, v{t2}", f"v_add_u32 v{t0}, {CREG}, v{t0}", f"v_cmp_eq_u32 vcc, 0, v{t1}", f"v_mov_b32 v{t3}, 0x3f803f80", "s_nop 0",
          f"v_cndmask_b32 v124, 0, v{t3}, vcc", "v_mov_b32 v125, v124", "v_mov_b32 v126, v124", "v_mov_b32 v127, v124",
          f"v_cmp_gt_u32 vcc, 54, v{LANE}", "s_and_saveexec_b64 s[44:45], vcc", f"ds_write_b128 v{t0}, v[124:127]", "s_mov_b64 exec, s[44:45]")
        A(f"v_and_b32 v{t0}, 31, v{LANE}", f"v_mov_b32 v{t1}, {CREG+16}", f"v_subrev_u32 v{t2}, 20, v{t0}", f"v_cmp_gt_u32 vcc, 8, v{t2}", f"v_mov_b32 v{t3}, {CREG+64}", "s_nop 0",
          f"v_cndmask_b32 v{t1}, v{t1}, v{t3}, vcc", f"v_cmp_eq_u32 vcc, 16, v{t0}", f"v_mov_b32 v{t3}, {CREG}", "s_nop 0", f"v_cndmask_b32 v{t1}, v{t1}, v{t3}, vcc",
          f"v_cmp_gt_u32 vcc, 16, v{t0}", f"v_mov_b32 v{t3}, 8192", "s_nop 0", f"v_cndmask_b32 v{vVa}, v{t1}, v{vVa}, vcc", f"v_cndmask_b32 v{vStep}, 0, v{t3}, vcc", "s_waitcnt lgkmcnt(0)")
    def ldVA(t,base):
        if not NOMASK: return ldV(t,base)
        return [f"ds_read_b128 {vr(VB_+8*(t%2),4)}, v{base} offset:{t*1024}", f"ds_read_b128 {vr(VB_+8*(t%2)+4,4)}, v{base} offset:{t*1024+512}"]
    for i in range(32): A(f"v_mov_b32 v{OA0+i}, 0")
    for i in range(4): A(f"v_mov_b32 v{P+4+i}, 0")
    Qr=[QA0,QA1]; Or=[OA0,OA1]
    A(ldK(0,vKa), ldVA(0,vVa), "s_waitcnt lgkmcnt(2)", mfma32(S0, KB_, QA0, "0"))
    vWs=190; vWr=191
    srd(A,SRD_A,pWOB,512*512*2)
    A(f"v_lshrrev_b32 v{vWs}, 2, v{LANE}", f"v_lshlrev_b32 v{vWs}, 10, v{vWs}", f"v_and_b32 v{vT}, 3, v{LANE}", f"v_lshl_add_u32 v{vWs}, v{vT}, 4, v{vWs}",
      f"s_lshr_b32 s42, s{sI}, 2", "s_lshl_b32 s42, s42, 7", f"s_bfe_u32 s43, s{sW}, 0x10001", "s_lshl_b32 s43, s43, 6", "s_add_u32 s42, s42, s43", f"v_add_u32 v{vWs}, s42, v{vWs}",
      f"s_lshr_b32 s82, s{sW}, 2", "s_lshl_b32 s82, s82, 18",
      f"s_lshl_b32 s83, s{sW}, 12", f"s_add_u32 s83, s83, {LDS_KB}")
    A(f"v_lshrrev_b32 v{vT}, 5, v{LANE}", f"v_bfe_u32 v{vWr}, v{LANE}, 2, 2", f"v_lshl_add_u32 v{vWr}, v{vT}, 2, v{vWr}", f"v_lshlrev_b32 v{vWr}, 6, v{vWr}",
      f"v_bfe_u32 v{vT}, v{LANE}, 4, 1", f"v_lshl_add_u32 v{vWr}, v{vT}, 5, v{vWr}", f"v_and_b32 v{vT}, 3, v{LANE}", f"v_lshl_add_u32 v{vWr}, v{vT}, 3, v{vWr}", f"v_add_u32 v{vWr}, s83, v{vWr}")
    def wb_dma():
        L=[]
        for ii in range(4):
            L+=[f"s_add_u32 m0, s83, {ii*1024}", f"s_add_u32 s45, s82, {ii*16384}", f"buffer_load_dwordx4 v{vWs}, s[{SRD_A}:{SRD_A+3}], s45 offen lds"]
        return L+["s_add_u32 s82, s82, 65536"]
    def wb_read(r):
        L=["s_waitcnt vmcnt(0)"]
        for nl in range(4):
            for rr in range(2):
                L.append(f"ds_read_b64_tr_b16 {vr(WBF[4*r+nl]+2*rr,2)}, v{vWr} offset:{(16*nl+8*rr)*64}")
        return L+["s_waitcnt lgkmcnt(0)"]
    A(wb_dma())
    vFv=112; vFz=113; vFa=114; vFb=115
    A(f"s_lshl_b32 s34, s{sJ}, 10", f"s_lshl_b32 s35, s{sH}, 5", "s_add_u32 s34, s34, s35", f"s_lshl_b32 s35, s{sW}, 2", "s_add_u32 s34, s34, s35",
      f"s_add_u32 s35, s34, {FL+FL_F2A}", f"s_add_u32 s34, s34, {FL+FL_F2B}")
    A(f"v_mov_b32 v{vFv}, s{sNONCE}", f"v_mov_b32 v{vFz}, 0")
    A(f"v_lshrrev_b32 v{vFa}, 1, v{LANE}", f"v_lshlrev_b32 v{vFa}, 5, v{vFa}", f"v_and_b32 v{vT}, 1, v{LANE}", f"v_lshl_add_u32 v{vFa}, v{vT}, 4, v{vFa}",
      f"s_and_b32 s36, s{sI}, 3", "s_lshl_b32 s36, s36, 2", f"v_add_u32 v{vFa}, s36, v{vFa}", f"s_lshl_b32 s36, s{sX}, 10", f"s_add_u32 s36, s36, {FL+FL_F2B}")
    A("s_mov_b32 s53, 4", "s_setprio 3", "s_nop 7", "s_nop 1")
    A(".p2align 3", "A_loop:")
    A("s_cmp_eq_u32 s53, 3", "s_cbranch_scc1 A_it1", "s_cmp_eq_u32 s53, 2", "s_cbranch_scc1 A_it2", "s_cmp_eq_u32 s53, 1", "s_cbranch_scc1 A_it3", "A_body:")
    NK=8
    units=[(t,qi) for t in range(NK) for qi in range(2)]
    for u,(t,qi) in enumerate(units):
        Sc=S0 if u%2==0 else S1; Sn=S1 if u%2==0 else S0
        tn,qn=(t,1) if qi==0 else (t+1,0)
        tp,qp=(t-1,1) if qi==0 else (t,0)
        QK=[mfma32(Sn, KB_+4*(tn%2), Qr[qn], "0")]
        PV1=[mfma32(Or[qp], VB_+8*(tp%2)+4, P+4, Or[qp])]
        PV0=[mfma32(Or[qi], VB_+8*(t%2), P, Or[qi])]
        ld=[];wK=[];wV=[]
        if qi==0: ld=ldK(t+1,vKa)+ldVA(t+1,vVa); wV=["s_waitcnt lgkmcnt(3)"]
        else: wK=["s_waitcnt lgkmcnt(2)"]
        if u==8: A("s_cmp_ge_u32 s53, 3", "s_cbranch_scc1 A_mid", "A_midback:")
        unit(A,Sc,QK,PV1,ld,wK,wV,PV0)
    A(f"v_add_u32 v{vKa}, {NK*1024}, v{vKa}", f"v_add_u32 v{vVa}, v{vStep}, v{vVa}" if NOMASK else f"v_add_u32 v{vVa}, {NK*1024}, v{vVa}")
    A("s_sub_u32 s53, s53, 1", "s_cmp_lg_u32 s53, 0", "s_cbranch_scc1 A_loop")
    A("s_branch A_after")
    A("A_mid:", "s_cmp_eq_u32 s53, 4", "s_cbranch_scc0 A_mid1")
    A(wb_read(0), wb_dma(), "s_branch A_midback")
    A("A_mid1:", wb_read(2), wb_dma(), "s_branch A_midback")
    A("A_it1:", "s_setprio 2", wb_read(1), "s_mov_b64 exec, 1", f"buffer_store_dword v{vFv}, v{vFz}, {W_}, s34 offen sc1", "s_mov_b64 exec, -1", wb_dma(), "s_branch A_body")
    A("A_it2:", "s_setprio 1", wb_read(3))
    if 'wbl2' in opt:
        A(f"s_cmp_lg_u32 s{sI}, 0", "s_cbranch_scc1 A_nowb", f"s_cmp_lg_u32 s{sW}, 0", "s_cbranch_scc1 A_nowb", "buffer_wbl2 sc1", "A_nowb:")
    if 'nopt3' not in opt:
        vP=116
        A(f"s_and_b32 s44, s{sI}, 3", f"s_lshr_b32 s45, s{sI}, 2", "s_lshl_b32 s46, s44, 7", f"s_lshl_b32 s47, s{sW}, 4", "s_add_u32 s46, s46, s47",
          f"v_and_b32 v{vP}, 15, v{LANE}", f"v_add_u32 v{vP}, s46, v{vP}", f"v_lshlrev_b32 v{vP}, 10, v{vP}", "s_lshl_b32 s45, s45, 7")
        A(f"s_mov_b32 s{SRD_PT}, s{pWOA}", f"s_mov_b32 s{SRD_PT+1}, s{pWOA+1}", f"s_mov_b32 s{SRD_PT+2}, {512*512*2}", f"s_mov_b32 s{SRD_PT+3}, 0x00020000",
          f"buffer_load_dword v{vP+1}, v{vP}, s[{SRD_PT}:{SRD_PT+3}], s45 offen")
        if 'ptout' in opt:
            A(f"s_lshl_b32 s46, s{sX}, 8", "s_lshl_b32 s47, s44, 6", "s_add_u32 s46, s46, s47", f"s_lshl_b32 s47, s{sW}, 3", "s_add_u32 s46, s46, s47",
              f"v_and_b32 v{vP}, 7, v{LANE}", f"v_add_u32 v{vP}, s46, v{vP}", f"v_lshlrev_b32 v{vP}, 10, v{vP}",
              f"s_mov_b32 s{SRD_PT}, s{pOUT}", f"s_mov_b32 s{SRD_PT+1}, s{pOUT+1}", f"s_mov_b32 s{SRD_PT+2}, {2048*512*2}", f"s_mov_b32 s{SRD_PT+3}, 0x00020000",
              f"buffer_load_dword v{vP+2}, v{vP}, s[{SRD_PT}:{SRD_PT+3}], s45 offen")
    A("s_branch A_body")
    A("A_it3:", "s_setprio 0", f"buffer_load_dword v{vFb}, v{vFa}, {W_}, s36 offen sc1", "s_branch A_body")
    A("A_after:")
    A(mfma32(OA1, VB_+8*((NK-1)%2)+4, P+4, OA1))
    A("s_waitcnt lgkmcnt(0)", "s_nop 7", "s_nop 3")
    if 'dup' in opt: A("s_sub_u32 s54, s54, 1", "s_cmp_lg_u32 s54, 0", "s_cbranch_scc1 A_dup")
    ST.rt("a_loop")
    A(f"s_lshl_b32 s43, s{sW}, 12", f"s_add_u32 s43, s43, {LDS_KB}", f"v_add_u32 v{vT}, s43, v{vL16}",
      f"v_lshlrev_b32 v{vT2}, 2, v{LANE}", f"v_add_u32 v{vT2}, s43, v{vT2}")
    A(f"ds_write_b128 v{vT}, {vr(OA1,4)}", f"ds_write_b128 v{vT}, {vr(OA1+4,4)} offset:1024", f"ds_write_b32 v{vT2}, v{OA1+8} offset:2048")
    A(f"s_xor_b32 s44, s{sW}, 4", "s_lshl_b32 s43, s44, 12", f"s_add_u32 s43, s43, {LDS_KB}", f"v_add_u32 v{vT}, s43, v{vL16}",
      f"v_lshlrev_b32 v{vT2}, 2, v{LANE}", f"v_add_u32 v{vT2}, s43, v{vT2}")
    A("s_waitcnt lgkmcnt(0)", "s_barrier")
    A(f"ds_read_b128 {vr(S0,4)}, v{vT}", f"ds_read_b128 {vr(S0+4,4)}, v{vT} offset:1024", f"ds_read_b32 v{S0+8}, v{vT2} offset:2048")
    A("s_waitcnt lgkmcnt(0)")
    for i in range(9): A(f"v_add_f32 v{OA0+i}, v{OA0+i}, v{S0+i}")
    check_range(A,OA0,"A_ok")
    A("s_mov_b32 s50, 0", "s_mov_b32 s51, 0", "s_mov_b32 s52, 64")
    A(f"v_add_u32 v{vKs}, {LDS_KA}, v{vL16}", f"v_add_u32 v{vVs}, {LDS_VA}, v{VL}")
    slow_pass(A,"af1",QA0,OA0,True,50,51,52)
    slow_pass(A,"af2",QA0,OA0,False,50,51,52)
    bcast_l(A,OA0)
    A("A_ok:")
    finalize(A,OA0,32)

def phase3(A, ST, opt):
    W_=f"s[{SRD_WS}:{SRD_WS+3}]"
    lane=LANE
    vFv=112; vFz=113; vFa=114; vFb=115
    srd(A,SRD_A,pWOA,512*512*2); srd(A,SRD_C,pOUT,2048*512*2)
    SA=f"s[{SRD_A}:{SRD_A+3}]"
    A(f"s_and_b32 s50, s{sI}, 3", f"s_lshr_b32 s51, s{sI}, 2")
    A(f"s_and_b32 s52, s{sW}, 1", f"s_bfe_u32 s53, s{sW}, 0x10001", f"s_lshr_b32 s54, s{sW}, 2")
    A(f"v_lshlrev_b32 v3, 4, v{lane}")
    A(f"s_lshl_b32 s42, s{sX}, 3", "s_lshl_b32 s43, s50, 1", "s_add_u32 s42, s42, s43", "s_lshl_b32 s55, s42, 16", f"s_add_u32 s55, s55, {OF}",
      "s_lshl_b32 s43, s53, 14", "s_lshl_b32 s44, s54, 12", "s_add_u32 s43, s43, s44",
      "s_lshl_b32 s56, s52, 15", "s_add_u32 s56, s56, s43", "s_add_u32 s56, s56, 0x10000",
      "s_lshl_b32 s57, s52, 16", "s_add_u32 s57, s57, s43", "s_add_u32 s57, s57, s55")
    def odma(br):
        L=[]
        for r in range(2):
            for ii in range(4):
                L+= [f"s_add_u32 m0, s56, {r*8192+ii*1024}", f"s_add_u32 s45, s57, {br*32768+r*8192+ii*1024}", f"buffer_load_dwordx4 v3, {W_}, s45 offen sc1 lds"]
        return L
    A("s_waitcnt vmcnt(1)", f"s_mov_b32 s46, {SPIN_MAX}")
    A("P3_bchk:", f"v_cmp_ne_u32 vcc, s{sNONCE}, v{vFb}", "s_nop 1", "s_cmp_eq_u64 vcc, 0", "s_cbranch_scc1 P3_bok",
      "s_sub_u32 s46, s46, 1", "s_cmp_eq_u32 s46, 0", "s_cbranch_scc1 P3_bok", "s_sleep 1",
      f"buffer_load_dword v{vFb}, v{vFa}, {W_}, s36 offen sc1", "s_waitcnt vmcnt(0)", "s_branch P3_bchk", "P3_bok:")
    A("s_barrier")
    A(odma(1))
    A("s_waitcnt vmcnt(8)")
    A("s_mov_b64 exec, 1", f"buffer_store_dword v{vFv}, v{vFz}, {W_}, s35 offen sc1", "s_mov_b64 exec, -1")
    ST.rt("o_stored")
    A(f"v_and_b32 v12, 31, v{lane}", f"s_lshl_b32 s44, s{sX}, 8", "s_lshl_b32 s45, s50, 6", "s_add_u32 s44, s44, s45", "s_lshl_b32 s45, s52, 5", "s_add_u32 s44, s44, s45",
      "v_add_u32 v12, s44, v12", "v_lshlrev_b32 v13, 2, v12", f"s_mov_b32 s45, {GOFF}", f"buffer_load_dword v14, v13, {W_}, s45 offen sc1")
    vW=4
    w_src_addr(A, vW, 5, 6, 7, lane, 51, 42)
    A(f"s_lshl_b32 s58, s{sW}, 13", f"s_lshl_b32 s59, s{sW}, 16")
    for ii in range(8):
        A(f"s_add_u32 m0, s58, {ii*1024}", f"s_add_u32 s45, s59, {ii*8192}", f"buffer_load_dwordx4 v{vW}, {SA}, s45 offen lds")
    w_frag_addr(A, 9, 6, 7, lane, 53, 42)
    A(f"v_lshrrev_b32 v8, 5, v{lane}", "s_lshl_b32 s42, s54, 15", "v_add_u32 v9, s42, v9")
    A("s_lshl_b32 s43, s52, 15", "s_lshl_b32 s44, s54, 14", "s_add_u32 s43, s43, s44", "s_add_u32 s43, s43, 0x10000", "v_add_u32 v11, s43, v3")
    ACA=16; ACB=48; OFr=[64,68,72,76]; WA=128
    for i in range(16): A(f"v_mov_b32 v{ACB+i}, 0", f"v_mov_b32 v{ACA+i}, 0")
    A("s_waitcnt vmcnt(10)", "s_barrier")
    ST.rt("w_landed")
    for n in range(4): A(f"ds_read_b128 {vr(OFr[n],4)}, v11 offset:{n*1024}")
    for n in range(16):
        A(f"s_waitcnt lgkmcnt({min(3,15-n)})")
        A(mfma32(ACB, WBF[n], OFr[n%4], ACB))
        if n+4<16: A(f"ds_read_b128 {vr(OFr[n%4],4)}, v11 offset:{(n+4)*1024}")
    ST.rt("b_half")
    A(f"s_add_u32 s36, s36, {FL_F2A-FL_F2B}")
    A(f"s_cmp_lg_u32 s{sW}, 0", "s_cbranch_scc1 P3_askip", f"s_mov_b32 s46, {SPIN_MAX}")
    A("P3_achk:", f"buffer_load_dword v{vFb}, v{vFa}, {W_}, s36 offen sc1", "s_waitcnt vmcnt(0)",
      f"v_cmp_ne_u32 vcc, s{sNONCE}, v{vFb}", "s_nop 1", "s_cmp_eq_u64 vcc, 0", "s_cbranch_scc1 P3_askip",
      "s_sub_u32 s46, s46, 1", "s_cmp_eq_u32 s46, 0", "s_cbranch_scc1 P3_askip", "s_branch P3_achk", "P3_askip:")
    A("s_waitcnt vmcnt(0)", "s_barrier")
    ST.rt("p2_flags")
    A(odma(0))
    A("s_cmp_lg_u32 s2, 0", "s_cbranch_scc1 P3_noep", f"s_mov_b32 s43, {FL+FL_EPOCH}")
    setflag(A,"ep",43,5)
    A("P3_noep:")
    for n in range(16):
        A(wrd2(WA+4*n,9,n))
        if n%4==3: A("s_waitcnt lgkmcnt(4)")
    for r in range(2):
        A(f"s_waitcnt vmcnt({4-4*r}) lgkmcnt(0)", "s_barrier")
        for s_ in range(4): A(f"ds_read_b128 {vr(OFr[s_],4)}, v11 offset:{(8*r+s_)*1024}")
        for s_ in range(8):
            n=8*r+s_
            A(f"s_waitcnt lgkmcnt({3 if s_<5 else 7-s_})")
            A(mfma32(ACA, WA+4*n, OFr[s_%4], ACA))
            if s_<4: A(f"ds_read_b128 {vr(OFr[s_%4],4)}, v11 offset:{(8*r+s_+4)*1024}")
    ST.rt("p3_mfma")
    A("s_nop 7","s_nop 3")
    for i in range(16): A(f"v_sub_f32 v{ACA+i}, v{ACA+i}, v{ACB+i}")
    for i in range(16): A(f"v_fma_f32 v{ACA+i}, v14, v{ACA+i}, v{ACB+i}")
    ACC=ACA
    A(f"s_lshl_b32 s43, s{sW}, 11", "v_add_u32 v5, s43, v3", f"s_xor_b32 s44, s{sW}, 4", "s_lshl_b32 s44, s44, 11", "v_add_u32 v6, s44, v3")
    PK=40
    A("s_cmp_eq_u32 s54, 0", "s_cbranch_scc0 P3_k1")
    for kq,lab in ((0,None),(1,"P3_k1")):
        if lab: A("s_branch P3_kdone", f"{lab}:")
        own=ACC+8*kq; oth=ACC+8*(1-kq)
        A(f"ds_write_b128 v5, {vr(oth,4)}", f"ds_write_b128 v5, {vr(oth+4,4)} offset:1024", "s_waitcnt lgkmcnt(0)", "s_barrier")
        A(f"ds_read_b128 {vr(32,4)}, v6", f"ds_read_b128 {vr(36,4)}, v6 offset:1024", "s_waitcnt lgkmcnt(0)")
        for i in range(8): A(f"v_add_f32 v{own+i}, v{own+i}, v{32+i}")
        for i in range(4): A(f"v_cvt_pk_bf16_f32 v{PK+i}, v{own+2*i}, v{own+2*i+1}")
    A("P3_kdone:")
    A("s_nop 1", f"v_permlane32_swap_b32 v{PK}, v{PK+2}", f"v_permlane32_swap_b32 v{PK+1}, v{PK+3}")
    A("v_lshlrev_b32 v5, 10, v12", "v_lshl_add_u32 v5, v8, 4, v5",
      "s_lshl_b32 s42, s51, 7", "s_lshl_b32 s43, s53, 6", "s_add_u32 s42, s42, s43", "s_lshl_b32 s43, s54, 5", "s_add_u32 s42, s42, s43")
    A(f"buffer_store_dwordx4 {vr(PK,4)}, v5, s[{SRD_C}:{SRD_C+3}], s42 offen" + (" sc1" if 'outsc1' in opt else "") + (" nt" if 'outnt' in opt else ""))

def gen(opt=()):
    A=Asm(); ST=Stamps(A,'stamps' in opt)
    pr=[o[6:] for o in opt if o.startswith('probe=')]
    if pr: ST.probe=pr[0]
    cy=[o[4:] for o in opt if o.startswith('cyc=')]
    if cy: ST.cp=cy[0].split(':')
    A(f".globl {NAME}", ".p2align 8", f".type {NAME},@function", f"{NAME}:")
    if pr: A("s_memrealtime s[100:101]")
    A("s_cmp_ge_u32 s2, 256", "s_cbranch_scc1 L_done")
    if 'scramble' in opt: A("s_lshr_b32 s3, s2, 3", "s_and_b32 s2, s2, 7", "s_lshl_b32 s2, s2, 5", "s_or_b32 s2, s2, s3")
    A(f"s_load_dwordx2 s[{sWS}:{sWS+1}], s[0:1], 72", "s_load_dwordx2 s[42:43], s[0:1], 0", "s_load_dwordx2 s[44:45], s[0:1], 8",
      "s_load_dwordx2 s[46:47], s[0:1], 32", "s_load_dwordx2 s[48:49], s[0:1], 48",
      f"s_load_dwordx2 s[{pWOA}:{pWOA+1}], s[0:1], 16", f"s_load_dwordx2 s[{pWOB}:{pWOB+1}], s[0:1], 40", f"s_load_dwordx2 s[{pOUT}:{pOUT+1}], s[0:1], 56")
    rot=[int(o[3:]) for o in opt if o.startswith('rot')]
    if rot: A(f"s_add_u32 s{sX}, s2, {rot[0]}", f"s_and_b32 s{sX}, s{sX}, 7")
    else: A(f"s_and_b32 s{sX}, s2, 7")
    A(f"s_lshr_b32 s{sI}, s2, 3", f"s_lshr_b32 s{sJ}, s{sI}, 2", f"s_and_b32 s{sA}, s{sI}, 3",
      f"s_lshr_b32 s{sBR}, s{sA}, 1", f"s_and_b32 s50, s{sA}, 1", f"s_lshl_b32 s{sRB}, s{sJ}, 1", f"s_add_u32 s{sRB}, s{sRB}, s50",
      f"s_lshl_b32 s{sH}, s{sX}, 2", f"s_add_u32 s{sH}, s{sH}, s{sA}")
    A("v_lshrrev_b32 v1, 6, v0", "v_and_b32 v2, 63, v0", "s_nop 0", f"v_readfirstlane_b32 s{sW}, v1")
    if 'epf' in opt:
        A(f"s_cmp_ge_u32 s{sW}, 3", "s_cbranch_scc1 L_noepf", "s_getpc_b64 s[50:51]", "L_epf_pc:", f"s_lshl_b32 s52, s{sW}, 13", "v_lshlrev_b32 v241, 7, v2", "v_add_u32 v241, s52, v241",
          "v_min_u32 v241, (L_done-L_epf_pc), v241", "global_load_dword v240, v241, s[50:51]", "L_noepf:")
    if 'pf' in opt:
        A("s_getpc_b64 s[50:51]", "L_pc:", f"s_sub_u32 s50, s50, (L_pc-{NAME})", "s_subb_u32 s51, s51, 0")
        A(f"s_lshl_b32 s52, s{sI}, 1", f"s_add_u32 s52, s52, s{sW}", "s_lshl_b32 s52, s52, 10", "v_lshlrev_b32 v3, 4, v2", "v_add_u32 v3, s52, v3")
        A(f"s_cmp_lt_u32 s{sW}, 2", "s_cbranch_scc0 L_nopf", f"s_cmp_lt_u32 s52, (L_done-{NAME}-1024)", "s_cbranch_scc0 L_nopf",
          "global_load_dwordx4 v[252:255], v3, s[50:51]", "L_nopf:")
    if 'spin60' in opt: A("s_memrealtime s[90:91]")
    A("s_waitcnt lgkmcnt(0)")
    wb=[int(o[2:]) for o in opt if o.startswith('wb') and o[2:].isdigit()]
    if wb: A(f"s_add_u32 s{sWS}, s{sWS}, {wb[0]<<20}", f"s_addc_u32 s{sWS+1}, s{sWS+1}, 0")
    ST.rt("start"); ST.cyc("cyc0")
    A(f"s_add_u32 s6, s{sWS}, {FL+FL_EPOCH}", f"s_addc_u32 s7, s{sWS+1}, 0", "s_load_dword s3, s[6:7], 0")
    srd(A,SRD_WS,sWS,WS_SIZE)
    srd(A,SRD_A,42,2048*512*2)
    A(f"s_cmp_eq_u32 s{sBR}, 0", "s_cselect_b32 s44, s44, s46", "s_cselect_b32 s45, s45, s47")
    srd(A,SRD_B,44,512*1536*2)
    srd(A,SRD_C,48,1024)
    phase1(A,ST,opt)
    phase2(A,ST,opt)
    phase3(A,ST,opt)
    if pr:
        A("s_waitcnt vmcnt(0)", "L_probe:", "s_memrealtime s[80:81]", "s_waitcnt lgkmcnt(0)", "s_sub_u32 s80, s80, s100", *(["s_lshr_b32 s81, s63, 2", "s_add_u32 s81, s81, 6000", "s_cmp_lt_u32 s80, s81"] if cy else ["s_cmp_lt_u32 s80, 6000"]), "s_cbranch_scc1 L_probe")
    if 'spin60' in opt:
        A("s_waitcnt vmcnt(0)", "L_spin:", "s_memrealtime s[80:81]", "s_waitcnt lgkmcnt(0)", "s_sub_u32 s80, s80, s90", "s_cmp_lt_u32 s80, 6000", "s_cbranch_scc1 L_spin")
    if ST.on: A("s_waitcnt vmcnt(0)")
    ST.rt("end"); ST.cyc("cyc1")
    ST.flush(120)
    A("L_done:", "s_endpgm")
    kd=f""".section .rodata,"a"
.p2align 6
.amdhsa_kernel {NAME}
  .amdhsa_next_free_vgpr 256
  .amdhsa_next_free_sgpr 102
  .amdhsa_accum_offset 256
  .amdhsa_group_segment_fixed_size 0
  .amdhsa_kernarg_size 80
  .amdhsa_user_sgpr_count 2
  .amdhsa_user_sgpr_kernarg_segment_ptr 1
  .amdhsa_system_sgpr_workgroup_id_x 1
.end_amdhsa_kernel
"""
    return A.text(), kd, ST.names

if __name__=='__main__':
    import sys, hazard
    out=sys.argv[1]; opt=tuple(sys.argv[2:])
    HDR=open('gated_mix__softmax_full_mha__sliding_block__prompt.s.ref').read().split('\n')
    hdr=[l for l in HDR if l.startswith(';') and 'launch' not in l.lower() and 'Override' not in l and 'grid=ceil' not in l]
    t,kd,names=gen(opt)
    s='\n'.join(hdr)+'\n'+"; @launch grid=(256,1,1) block=(512,1,1) lds=163840\n"+'.amdgcn_target "amdgcn-amd-amdhsa--gfx950"\n.text\n'+t+kd
    open(out,'w').write(s)
    print('hazards',len(hazard.check(t)),'bytes',len(s),'stamps',','.join(names))
    sys.path.insert(0,'cdna_kernels')
    import subprocess
    from cdna_launch import with_harness_metadata, address_register_problem
    open('h.s','w').write(with_harness_metadata(s,NAME,10,launch_lists=True))
    r=subprocess.run(['clang','-x','assembler','-target','amdgcn-amd-amdhsa','-mcpu=gfx950','h.s','-o','h.co'],capture_output=True,text=True)
    if r.returncode: print(r.stderr)
    else:
        print('check:',address_register_problem('h.co',NAME))
        d=subprocess.run(['llvm-objdump','-d','--mcpu=gfx950','h.co'],capture_output=True,text=True).stdout
        import re
        ad=[int(m,16) for m in re.findall(r'// ([0-9A-F]{12}):',d)]
        print('code bytes',ad[-1]-ad[0]-768)
```

```python
from asm import Asm, vr, sr, mfma32
import struct
def f2u(x): return struct.unpack('<I',struct.pack('<f',x))[0]
NAME="gated_mix__softmax_full_mha__sliding_block__prompt_kernel"
QF=0; KF=4<<20; VF=8<<20; GOFF=12<<20; OF=16<<20; FL=30<<20; WS_SIZE=31<<20
FL_EPOCH=0; FL_F0=1024; FL_F1=2048; FL_F2=8192; FL_F2B=16384; FL_F2A=32768
FSTR=16
F1STR=4
STAMP_OFF=32<<20
QSCALE=0.25*1.4426950408889634
NEG=f2u(-2.0**100); LLO=f2u(2.0**-64); LHI=f2u(2.0**64)
SPIN_MAX=1<<20
sNONCE=3; sWS=4
SRD_WS=8; SRD_A=12; SRD_B=16; SRD_C=20; SRD_PT=56
sW=24; sX=25; sI=26; sJ=27; sA=28; sBR=29; sRB=30; sH=31
sMASK=40
sXCC=37; sMODE=39
pWOA=84; pWOB=86; pOUT=88

class Stamps:
    def __init__(s, A, on): s.A=A; s.on=on; s.n=0; s.names=[]; s.skip=('p1_stored','l_pre'); s.probe=None; s.cp=None
    def rt(s,name):
        if s.cp and name==s.cp[0]: s.A("s_memtime s[96:97]", "s_waitcnt lgkmcnt(0)", "s_mov_b32 s63, s96")
        if s.cp and name==s.cp[1]: s.A("s_memtime s[96:97]", "s_waitcnt lgkmcnt(0)", "s_sub_u32 s63, s96, s63")
        if s.probe==name:
            s.A("s_memrealtime s[100:101]", "s_waitcnt lgkmcnt(0)")
        if not s.on or name in s.skip: return
        s.A("s_memrealtime s[80:81]", "s_waitcnt lgkmcnt(0)", f"s_mov_b32 s{64+s.n}, s80"); s.names.append(name); s.n+=1
    def cyc(s,name):
        if not s.on: return
        s.A("s_memtime s[80:81]", "s_waitcnt lgkmcnt(0)", f"s_mov_b32 s{64+s.n}, s80"); s.names.append(name); s.n+=1
    def flush(s, vtmp):
        if not s.on: return
        A=s.A
        A(f"s_mov_b32 s92, s{sWS}", f"s_mov_b32 s93, s{sWS+1}", "s_mov_b32 s94, 0x10000000", "s_mov_b32 s95, 0x00020000")
        A(f"s_lshl_b32 s80, s2, 3", f"s_add_u32 s80, s80, s{sW}", "s_lshl_b32 s80, s80, 6", f"s_add_u32 s80, s80, {STAMP_OFF}")
        for i in range(s.n):
            A(f"v_mov_b32 v{vtmp}, s{64+i}", f"v_mov_b32 v{vtmp+1}, {4*i}", f"buffer_store_dword v{vtmp}, v{vtmp+1}, s[92:95], s80 offen")

def srd(A, s, base, size):
    A(f"s_mov_b32 s{s}, s{base}", f"s_mov_b32 s{s+1}, s{base+1}", f"s_mov_b32 s{s+2}, {size}", f"s_mov_b32 s{s+3}, 0x00020000")

def poll(A, tag, flag_off_sgpr, vaddr, vtmp, stride=FSTR):
    A(f"s_cmp_lg_u32 s{sW}, 0", f"s_cbranch_scc1 L_{tag}_skip")
    A(f"v_and_b32 v{vaddr}, 31, v0", f"v_mul_u32_u24 v{vaddr}, {stride}, v{vaddr}", f"s_mov_b32 s42, {SPIN_MAX}")
    A(f"L_{tag}_loop:")
    A(f"buffer_load_dword v{vtmp}, v{vaddr}, s[{SRD_WS}:{SRD_WS+3}], s{flag_off_sgpr} offen sc1")
    A("s_waitcnt vmcnt(0)")
    A(f"v_cmp_ne_u32 vcc, s{sNONCE}, v{vtmp}", "s_nop 1", "s_cmp_eq_u64 vcc, 0", f"s_cbranch_scc1 L_{tag}_skip")
    A("s_sub_u32 s42, s42, 1", "s_cmp_eq_u32 s42, 0", f"s_cbranch_scc1 L_{tag}_skip", "s_sleep 1", f"s_branch L_{tag}_loop")
    A(f"L_{tag}_skip:")

def setflag(A, tag, off_sgpr, vt, sc=" sc1"):
    A(f"s_cmp_lg_u32 s{sW}, 0", f"s_cbranch_scc1 L_{tag}_nf")
    A(f"v_mov_b32 v{vt}, s{sNONCE}", f"v_mov_b32 v{vt+1}, 0", "s_mov_b64 exec, 1",
      f"buffer_store_dword v{vt}, v{vt+1}, s[{SRD_WS}:{SRD_WS+3}], s{off_sgpr} offen{sc}", "s_mov_b64 exec, -1")
    A(f"L_{tag}_nf:")

def mfma16(d,a,b,c): return f"v_mfma_f32_16x16x32_bf16 {vr(d,4)}, {vr(a,4)}, {vr(b,4)}, {vr(c,4)}"
def w_src_addr(A, v, t5, t6, t7, lane, cb_sgpr, stmp):
    A(f"v_lshrrev_b32 v{t5}, 3, v{lane}", f"v_lshlrev_b32 v{t5}, 10, v{t5}", f"v_bfe_u32 v{t6}, v{lane}, 4, 1", f"v_lshlrev_b32 v{t6}, 2, v{t6}", f"v_and_b32 v{t7}, 7, v{lane}",
      f"v_xor_b32 v{t6}, v{t6}, v{t7}", f"v_lshl_add_u32 v{t5}, v{t6}, 4, v{t5}", f"s_lshl_b32 s{stmp}, s{cb_sgpr}, 7", f"v_add_u32 v{v}, s{stmp}, v{t5}")
def w_frag_addr(A, v, t6, t7, lane, ct_sgpr, stmp):
    A(f"v_lshrrev_b32 v{t6}, 5, v{lane}", f"v_bfe_u32 v{v}, v{lane}, 2, 2", f"v_lshl_add_u32 v{v}, v{t6}, 2, v{v}", f"v_lshlrev_b32 v{v}, 7, v{v}",
      f"v_bfe_u32 v{t6}, v{lane}, 4, 1", f"v_lshlrev_b32 v{t6}, 1, v{t6}", f"v_bfe_u32 v{t7}, v{lane}, 1, 1", f"v_add_u32 v{t6}, v{t6}, v{t7}",
      f"s_lshl_b32 s{stmp}, s{ct_sgpr}, 2", f"v_add_u32 v{t6}, s{stmp}, v{t6}",
      f"v_bfe_u32 v{t7}, v{lane}, 3, 1", f"v_lshlrev_b32 v{t7}, 2, v{t7}", f"v_xor_b32 v{t6}, v{t6}, v{t7}", f"v_lshl_add_u32 v{v}, v{t6}, 4, v{v}",
      f"v_and_b32 v{t7}, 1, v{lane}", f"v_lshl_add_u32 v{v}, v{t7}, 3, v{v}")
def wrd2(dst, base, n): return [f"ds_read_b64_tr_b16 {vr(dst,2)}, v{base} offset:{(16*n)*128}", f"ds_read_b64_tr_b16 {vr(dst+2,2)}, v{base} offset:{(16*n+8)*128}"]

def phase1(A, ST, opt):
    lane=2; vX=3; vW=4; t0=5; t1=6; t2=7; g_t=8
    W_=f"s[{SRD_WS}:{SRD_WS+3}]"
    GX=232; GW=236
    PT=240; F0V=244; vF0=246; vPT=247
    PTF="sc1"
    if 'ptnt' in opt: PTF="sc1 nt"
    if 'ptplain' in opt: PTF=""
    PTC=int([o[3:] for o in opt if o.startswith('ptc')][0]) if any(o.startswith('ptc') for o in opt) else 5
    if 'nopt1' in opt: PTC=99
    STG=40960
    A(f"v_lshlrev_b32 v24, 4, v{lane}")
    LF='computefirst' not in opt
    if LF: A(f"s_cmp_lt_u32 s{sW}, 4", "s_cbranch_scc1 P1_compute")
    else: A(f"s_cmp_ge_u32 s{sW}, 4", "s_cbranch_scc1 P1_loader")
    i_c0=len(A.L)
    if LF: A("P1_compute:")
    n_save=ST.n; names_save=list(ST.names)
    def gate_loads():
        A(f"s_lshl_b32 s62, s{sJ}, 8", f"s_and_b32 s42, s{sW}, 3", "s_lshl_b32 s42, s42, 6", "s_add_u32 s62, s62, s42", f"s_lshl_b32 s42, s{sH}, 1", "s_add_u32 s62, s62, s42",
          f"s_lshr_b32 s42, s{sW}, 2", "s_add_u32 s62, s62, s42", "s_lshl_b32 s42, s62, 10",
          f"buffer_load_dwordx4 {vr(GX,4)}, v24, s[{SRD_A}:{SRD_A+3}], s42 offen", f"buffer_load_dwordx4 {vr(GW,4)}, v24, s[{SRD_C}:{SRD_C+3}], 0 offen")
    gate_loads()
    if 'tlbw' in opt:
        sh=int([o[4:] for o in opt if o.startswith('tlbs')][0]) if any(o.startswith('tlbs') for o in opt) else 16
        A(f"v_lshlrev_b32 v241, {sh}, v{lane}", f"s_lshl_b32 s42, s{sX}, 7", f"buffer_load_dword v242, v241, s[{SRD_B}:{SRD_B+3}], s42 offen sc1")
    A(f"s_and_b32 s34, s{sW}, 1", f"s_lshr_b32 s35, s{sW}, 1")
    A(f"s_lshl_b32 s42, s{sX}, 2", "s_lshl_b32 s43, s35, 1", "s_add_u32 s42, s42, s43", f"s_lshl_b32 s43, s{sBR}, 5", "s_add_u32 s42, s42, s43",
      "s_lshl_b32 s42, s42, 16", f"s_lshl_b32 s43, s{sRB}, 1", "s_add_u32 s43, s43, s34", "s_lshl_b32 s43, s43, 11", "s_add_u32 s56, s42, s43")
    A(f"v_and_b32 v{vF0}, 31, v{lane}", f"v_lshlrev_b32 v{vF0}, 2, v{vF0}", f"v_lshrrev_b32 v{t0}, 5, v{lane}", f"v_lshl_add_u32 v{vF0}, v{t0}, 10, v{vF0}",
      f"s_lshl_b32 s58, s{sX}, 7", f"s_add_u32 s58, s58, {FL+FL_F0}", f"s_getreg_b32 s{sXCC}, hwreg(HW_REG_XCC_ID, 0, 4)")
    aX=[10,11]; aW=[18,19]; m=20
    A(f"v_lshrrev_b32 v{g_t}, 4, v{lane}", f"v_and_b32 v{m}, 15, v{lane}", f"v_lshrrev_b32 v{t0}, 1, v{m}",
      "s_lshl_b32 s42, s34, 6", f"v_add_u32 v{t1}, s42, v{m}", f"v_lshlrev_b32 v{t1}, 7, v{t1}")
    for s_ in range(2):
        A(f"v_or_b32 v{t2}, {4*s_}, v{g_t}", f"v_xor_b32 v{t2}, v{t2}, v{t0}", f"v_lshl_add_u32 v{aX[s_]}, v{t2}, 4, v{t1}")
    A(f"v_bfe_u32 v{t0}, v{lane}, 2, 2", f"v_lshl_add_u32 v{t1}, v{g_t}, 3, v{t0}", f"v_lshlrev_b32 v{t1}, 7, v{t1}",
      f"v_and_b32 v21, 1, v{lane}", f"v_lshl_add_u32 v{t1}, v21, 3, v{t1}", f"v_add_u32 v{t1}, 16384, v{t1}",
      f"v_bfe_u32 v{t2}, v{lane}, 3, 1", f"v_bfe_u32 v21, v{lane}, 4, 1", f"v_lshl_or_b32 v{t2}, v21, 1, v{t2}", f"v_lshlrev_b32 v{t2}, 1, v{t2}",
      f"v_bfe_u32 v21, v{lane}, 1, 1", "s_lshl_b32 s42, s35, 2", "v_or_b32 v21, s42, v21")
    for hd in range(2):
        A(f"v_or_b32 v22, {2*hd}, v21", f"v_xor_b32 v22, v{t2}, v22", f"v_lshl_add_u32 v{aW[hd]}, v22, 4, v{t1}")
    def l2pf():
        if 'l2pf' in opt:
            C0=int([o[2:] for o in opt if o.startswith('c0')][0]) if any(o.startswith('c0') for o in opt) else 3
            NCH=8-C0
            vq=240
            A(f"s_lshl_b32 s42, s{sRB}, 7", f"s_lshl_b32 s43, s{sBR}, 6", "s_add_u32 s42, s42, s43", f"s_lshl_b32 s43, s{sW}, 4", "s_add_u32 s42, s42, s43",
              f"v_add_u32 v{vq}, s42, v{m}", f"v_lshlrev_b32 v{vq}, 10, v{vq}", f"v_lshl_add_u32 v{vq}, v{g_t}, 7, v{vq}", f"s_movk_i32 s43, {128*C0}",
              f"buffer_load_dword v{vq+2}, v{vq}, s[{SRD_A}:{SRD_A+3}], s43 offen sc1" if 'pfx' in opt else "s_nop 0")
            if NCH>4 and 'pfx' in opt: A(f"buffer_load_dword v{vq+3}, v{vq}, s[{SRD_A}:{SRD_A+3}], s43 offen offset:512 sc1")
            A(f"v_mul_u32_u24 v{vq}, 43, v{lane}", f"v_lshrrev_b32 v{vq}, 7, v{vq}", f"v_mul_u32_u24 v{vq+1}, 3, v{vq}", f"v_sub_u32 v{vq+1}, v{lane}, v{vq+1}",
              f"s_mul_i32 s42, s{sRB}, {4*NCH}", f"s_mul_i32 s43, s{sW}, {NCH}", "s_add_u32 s42, s42, s43", f"s_add_u32 s42, s42, {64*C0}",
              f"v_add_u32 v{vq}, s42, v{vq}", f"v_mul_u32_u24 v{vq}, 3072, v{vq}", f"v_lshl_add_u32 v{vq}, v{vq+1}, 10, v{vq}",
              f"v_cmp_gt_u32 vcc, {3*NCH}, v{lane}", f"v_mov_b32 v{vq+1}, 0x7ff00000", f"s_lshl_b32 s43, s{sX}, 7", f"v_cndmask_b32 v{vq}, v{vq+1}, v{vq}, vcc",
              f"buffer_load_dword v{vq+2}, v{vq}, s[{SRD_B}:{SRD_B+3}], s43 offen sc1{' nt' if 'wnt' in opt else ''}")
    if 'pfearly' in opt: l2pf()
    def T(hd,a,rt): return 32+48*hd+16*a+4*rt
    XF=[128,144]; WF=[[160,164,168],[172,176,180]]
    for i in range(96): A(f"v_mov_b32 v{32+i}, 0")
    def wrd(hd,a,s_):
        if 'p1noread' in opt: return ["s_nop 0","s_nop 0"]
        return [f"ds_read_b64_tr_b16 {vr(WF[hd][a]+2*rr,2)}, v{aW[hd]} offset:{a*8192+(32*s_+4*rr)*128}" for rr in range(2)]
    def xrd(s_,rt):
        if 'p1noread' in opt: return ["s_nop 0"]
        return [f"ds_read_b128 {vr(XF[s_]+4*rt,4)}, v{aX[s_]} offset:{rt*2048}"]
    def setA(s_): return wrd(0,0,s_)+xrd(s_,0)+xrd(s_,1)+wrd(0,1,s_)+xrd(s_,2)+xrd(s_,3)+wrd(0,2,s_)
    def setB(s_): return wrd(1,0,s_)+wrd(1,1,s_)+wrd(1,2,s_)
    def mf(hd,s_):
        x=XF[s_]; w=WF[hd]; L=[]
        for rt in (0,1): L.append(mfma16(T(hd,0,rt), w[0], x+4*rt, T(hd,0,rt)))
        for rt in (0,1): L.append(mfma16(T(hd,1,rt), w[1], x+4*rt, T(hd,1,rt)))
        for rt in (2,3): L.append(mfma16(T(hd,0,rt), w[0], x+4*rt, T(hd,0,rt)))
        for rt in (2,3): L.append(mfma16(T(hd,1,rt), w[1], x+4*rt, T(hd,1,rt)))
        for rt in range(4): L.append(mfma16(T(hd,2,rt), x+4*rt, w[2], T(hd,2,rt)))
        return L
    needA=[2,3,5,5,6,7,7,7,9,9,9,9]; needB=[1,1,3,3,3,3,3,3,5,5,5,5]
    def half(mfs, need, nold, new, pre=None, at=None):
        prev=-1; issued=0
        for k in range(12):
            if need[k]>prev:
                A(f"s_waitcnt lgkmcnt({(nold-1-need[k])+issued})"); prev=need[k]
            if pre and k==pre[0]: pre[1]()
            A(mfs[k])
            if k>=at and issued<len(new):
                n=1 if (len(new)-issued)<=(12-k-1) else 2
                n=min(n,len(new)-issued)
                A(new[issued:issued+n]); issued+=n
        assert issued==len(new)
    A("s_mov_b32 s49, 0", "s_mov_b32 s36, 0", f"s_mov_b32 s53, {STG}")
    A("s_barrier")
    A("s_waitcnt lgkmcnt(0)", f"s_mul_i32 s{sNONCE}, s3, 0x9e3779b1", f"s_add_u32 s{sNONCE}, s{sNONCE}, 0x7f4a7c15")
    ST.rt("p1_data")
    A(setA(0))
    if 'pfearly' not in opt: l2pf()
    if 'codepf' in opt:
        A(f"s_cmp_lg_u32 s{sW}, 1", "s_cbranch_scc1 L_nocpf", "s_getpc_b64 s[42:43]", "L_cpf_pc:", "s_add_u32 s42, s42, (P1_after-L_cpf_pc)", "s_addc_u32 s43, s43, 0",
          f"v_lshlrev_b32 v241, 7, v{lane}", "v_min_u32 v242, (L_done-P1_after-8192), v241")
        A("v_min_u32 v243, (L_done-P1_after), v241", "global_load_dword v240, v243, s[42:43]",
          "v_add_u32 v243, 8192, v242", "global_load_dword v240, v243, s[42:43]", "L_nocpf:")
    A(f"s_cmp_lg_u32 s{sW}, 0", "s_cbranch_scc1 L_f0_nf", f"s_add_u32 s42, s{sNONCE}, s{sXCC}", f"s_lshl_b32 s43, s{sI}, 2", "s_add_u32 s43, s43, s58",
      "v_mov_b32 v5, s42", "v_mov_b32 v6, 0", "s_mov_b64 exec, 1", f"buffer_store_dword v5, v6, {W_}, s43 offen sc1", "s_mov_b64 exec, -1", "L_f0_nf:")
    A(".p2align 3", "P1_loop:")
    half(mf(0,0), needA, 10, setB(0), at=2)
    half(mf(1,0), needB, 6, setA(1), at=1)
    half(mf(0,1), needA, 10, setB(1), at=2)
    def boundary():
        A("s_add_u32 s36, s36, 1", "s_cmp_eq_u32 s36, 4", f"s_cselect_b32 s52, {(-3*STG)&0xffffffff:#x}, s53", "s_cselect_b32 s36, 0, s36", "s_waitcnt lgkmcnt(0)")
        for r in aX+aW: A(f"v_add_u32 v{r}, s52, v{r}")
        A("s_cmp_eq_u32 s49, 4", "s_cbranch_scc1 P1_f0ld", "P1_f0back:", "s_barrier")
        if ST.probe and ST.probe.startswith('it'):
            A(f"s_cmp_eq_u32 s49, {ST.probe[2:]}", "s_cbranch_scc0 P1_noprobe", "s_memrealtime s[100:101]", "s_waitcnt lgkmcnt(0)", "P1_noprobe:")
        if 'p1it' in opt:
            A("s_memtime s[80:81]", "s_waitcnt lgkmcnt(0)")
            for k in range(7): A(f"s_mov_b32 s{64+8+k}, s{64+9+k}")
            A(f"s_mov_b32 s{64+15}, s80")
    half(mf(1,1), needB, 6, setA(0), pre=(3,boundary), at=3)
    A("s_add_u32 s49, s49, 1", "s_cmp_lt_u32 s49, 8", "s_cbranch_scc1 P1_loop")
    ST.rt("p1_loop")
    if 'p1it' in opt:
        ST.n=16; ST.flush(210); A("s_waitcnt vmcnt(0)", "s_endpgm")
    A("s_branch P1_after")
    A("P1_f0ld:", f"buffer_load_dword v{F0V}, v{vF0}, {W_}, s58 offen sc1", "s_branch P1_f0back")
    A("P1_after:")
    A("s_waitcnt vmcnt(0)", f"s_mov_b32 s42, {SPIN_MAX}")
    A("P1_chk:", f"v_subrev_u32 v{F0V+1}, s{sNONCE}, v{F0V}", f"v_cmp_gt_u32 vcc, 8, v{F0V+1}", "s_nop 1", "s_cmp_eq_u32 vcc_lo, -1", "s_cbranch_scc1 P1_chk_ok")
    A("s_sub_u32 s42, s42, 1", "s_cmp_eq_u32 s42, 0", "s_cbranch_scc1 P1_chk_ok", "s_sleep 1",
      f"buffer_load_dword v{F0V}, v{vF0}, {W_}, s58 offen sc1", "s_waitcnt vmcnt(0)", "s_branch P1_chk")
    A("P1_chk_ok:", f"v_cmp_eq_u32 vcc, s{sXCC}, v{F0V+1}", "s_nop 1", "s_cmp_eq_u32 vcc_lo, -1", f"s_cselect_b32 s{sMODE}, 1, 0")
    if 'forcesafe' in opt: A(f"s_mov_b32 s{sMODE}, 0")
    if 'fine3' in opt: ST.rt("mode")
    A(f"s_mov_b32 s44, {hex(f2u(QSCALE))}", "s_waitcnt lgkmcnt(0)")
    for hd in range(2):
        PK=128+24*hd
        TQ,TK,TV=T(hd,0,0),T(hd,1,0),T(hd,2,0)
        for t in range(2):
            for i in range(4): A(f"v_cvt_pk_bf16_f32 v{PK+4*t+i}, v{TK+8*t+2*i}, v{TK+8*t+2*i+1}")
        for t in range(2):
            for i in range(4): A(f"v_cvt_pk_bf16_f32 v{PK+8+4*t+i}, v{TV+8*t+2*i}, v{TV+8*t+2*i+1}")
        for i in range(16): A(f"v_mul_f32 v{TQ+i}, s44, v{TQ+i}")
        for t in range(2): A(f"v_permlane16_swap_b32 v{PK+4*t}, v{PK+4*t+2}", f"v_permlane16_swap_b32 v{PK+4*t+1}, v{PK+4*t+3}")
        for t in range(2):
            for i in range(4): A(f"v_cvt_pk_bf16_f32 v{PK+16+4*t+i}, v{TQ+8*t+2*i}, v{TQ+8*t+2*i+1}")
        for t in range(2): A(f"v_permlane32_swap_b32 v{PK+8+4*t}, v{PK+8+4*t+2}", f"v_permlane32_swap_b32 v{PK+8+4*t+1}, v{PK+8+4*t+3}")
        for t in range(2): A(f"v_permlane16_swap_b32 v{PK+16+4*t}, v{PK+16+4*t+2}", f"v_permlane16_swap_b32 v{PK+16+4*t+1}, v{PK+16+4*t+3}")
        A(f"s_add_u32 s46, s56, {hd*65536}", f"s_add_u32 s45, s46, {KF}", f"s_add_u32 s47, s46, {VF}")
        A(f"s_cmp_eq_u32 s{sMODE}, 0", f"s_cbranch_scc1 P1_st_safe{hd}")
        for sc,lab in (("",None),(" sc1",f"P1_st_safe{hd}")):
            if lab: A(f"s_branch P1_st_done{hd}", f"{lab}:")
            A(f"buffer_store_dwordx4 {vr(PK,4)}, v24, {W_}, s45 offen{sc}", f"buffer_store_dwordx4 {vr(PK+4,4)}, v24, {W_}, s45 offen offset:1024{sc}")
            A(f"buffer_store_dwordx4 {vr(PK+8,4)}, v24, {W_}, s47 offen{sc}", f"buffer_store_dwordx4 {vr(PK+12,4)}, v24, {W_}, s47 offen offset:1024{sc}")
            A(f"buffer_store_dwordx4 {vr(PK+16,4)}, v24, {W_}, s46 offen{sc}", f"buffer_store_dwordx4 {vr(PK+20,4)}, v24, {W_}, s46 offen offset:1024{sc}")
        A(f"P1_st_done{hd}:")
    if not LF: A("s_branch P1_join")
    i_l0=len(A.L)
    A("P1_loader:")
    n_end=ST.n; names_end=list(ST.names); ST.n=n_save; ST.names=list(names_save)
    A(f"s_and_b32 s34, s{sW}, 3")
    A(f"v_lshrrev_b32 v{t0}, 3, v{lane}", f"v_and_b32 v{t2}, 7, v{lane}", f"v_lshrrev_b32 v{t1}, 4, v{lane}", f"v_xor_b32 v{t1}, v{t1}, v{t2}",
      f"s_lshl_b32 s42, s{sRB}, 7", "s_lshl_b32 s43, s34, 5", "s_add_u32 s42, s42, s43", f"v_add_u32 v{vX}, s42, v{t0}", f"v_lshlrev_b32 v{vX}, 10, v{vX}",
      f"v_xor_b32 v9, 4, v{t1}", f"v_lshl_add_u32 v9, v9, 4, v{vX}", f"v_add_u32 v9, 8192, v9", f"v_lshl_add_u32 v{vX}, v{t1}, 4, v{vX}")
    A(f"v_add_u32 v10, 0x4000, v{vX}", "v_add_u32 v11, 0x4000, v9")
    A(f"v_bfe_u32 v{t1}, v{lane}, 4, 1", f"v_lshlrev_b32 v{t1}, 1, v{t1}", f"v_xor_b32 v{t1}, v{t1}, v{t2}",
      "s_lshl_b32 s43, s34, 4", f"v_add_u32 v{t0}, s43, v{t0}", f"v_mul_u32_u24 v{vW}, 3072, v{t0}", *([f"s_add_u32 s45, s{sX}, 2", "s_and_b32 s45, s45, 7", "s_lshl_b32 s45, s45, 7"] if 'wcol2' in opt else [f"s_lshl_b32 s45, s{sX}, 7"]), f"v_add_u32 v{vW}, s45, v{vW}",
      f"v_xor_b32 v12, 4, v{t1}", f"v_lshl_add_u32 v12, v12, 4, v{vW}", f"v_add_u32 v12, {8*3072}, v12", f"v_lshl_add_u32 v{vW}, v{t1}, 4, v{vW}")
    def dmas():
        L=[]
        xs=[vX,9,10,11]
        for ii in range(4):
            L.append([f"s_add_u32 m0, s46, {ii*1024}", "NOP", f"buffer_load_dwordx4 v{xs[ii]}, s[{SRD_A}:{SRD_A+3}], s47 offen{' nt' if 'xnt' in opt else ''} lds"])
        for seg in range(3):
            for ii in range(2):
                L.append([f"s_add_u32 m0, s57, {16384+seg*8192+ii*1024-seg*1024}", "NOP", f"buffer_load_dwordx4 v{[vW,12][ii]}, s[{SRD_B}:{SRD_B+3}], s48 offen offset:{seg*1024}{' nt' if 'wnt' in opt else ''} lds"])
        return L
    def issue():
        A("s_and_b32 s51, s50, 3", f"s_mul_i32 s51, s51, {STG}", "s_lshl_b32 s46, s34, 12", "s_add_u32 s46, s46, s51", "s_lshl_b32 s57, s34, 11", "s_add_u32 s57, s57, s51",
          *(["s_add_u32 s59, s50, s60", "s_and_b32 s59, s59, 7", "s_lshl_b32 s47, s59, 7", f"s_mul_i32 s48, s59, {64*3072}"] if True else ["s_lshl_b32 s47, s50, 7", f"s_mul_i32 s48, s50, {64*3072}"]))
        if 'p1nodma' not in opt:
            for g in dmas(): A([("s_nop 0" if x=="NOP" else x) for x in g])
        A("s_add_u32 s50, s50, 1")
    if 'krot1' in opt: A(f"s_and_b32 s60, s{sRB}, 7")
    elif 'krot2' in opt: A(f"s_lshl_b32 s60, s{sBR}, 2", f"s_add_u32 s60, s60, s{sRB}")
    elif 'krot3' in opt: A(f"s_lshr_b32 s60, s{sRB}, 1", f"s_lshl_b32 s59, s{sBR}, 2", "s_add_u32 s60, s60, s59")
    elif 'krot4' in opt: A(f"s_lshr_b32 s60, s{sRB}, 1", f"s_add_u32 s60, s60, s{sX}")
    elif 'krot0' in opt: A("s_mov_b32 s60, 0")
    elif 'krotrb' in opt: A(f"s_lshr_b32 s60, s{sRB}, 1")
    else: A(f"s_lshr_b32 s60, s{sRB}, 1", f"s_add_u32 s60, s60, s{sX}")
    A("s_mov_b32 s50, 0", "s_mov_b32 s49, 0")
    ST.rt("l_pre")
    A("P1_lpro:")
    issue()
    UP=2 if 'up2' in opt else (4 if 'up4' in opt else 3)
    A(f"s_cmp_lt_u32 s50, {UP}", "s_cbranch_scc1 P1_lpro")
    gate_loads()
    A(f"s_waitcnt vmcnt({10*(UP-1)+2})", "s_barrier")
    A("s_waitcnt lgkmcnt(0)", f"s_mul_i32 s{sNONCE}, s3, 0x9e3779b1", f"s_add_u32 s{sNONCE}, s{sNONCE}, 0x7f4a7c15")
    ST.rt("p1_data")
    A(f"v_lshrrev_b32 v{t0}, 4, v{lane}", f"v_lshlrev_b32 v{vPT}, 22, v{t0}", f"v_bfe_u32 v{t0}, v{lane}, 3, 1", f"v_lshl_add_u32 v{vPT}, v{t0}, 10, v{vPT}",
      f"v_and_b32 v{t0}, 7, v{lane}", f"v_lshl_add_u32 v{vPT}, v{t0}, 7, v{vPT}", f"v_cmp_gt_u32 vcc, 48, v{lane}", f"v_mov_b32 v{t0}, 0x7ff00000", "s_nop 0",
      f"v_cndmask_b32 v{vPT}, v{t0}, v{vPT}, vcc")
    A("s_and_b32 s42, s34, 1", "s_lshr_b32 s43, s34, 1",
      f"s_lshl_b32 s44, s{sX}, 2", "s_lshl_b32 s43, s43, 1", "s_add_u32 s44, s44, s43", f"s_lshl_b32 s43, s{sBR}, 5", "s_add_u32 s44, s44, s43", "s_lshl_b32 s44, s44, 16",
      f"s_lshl_b32 s43, s{sRB}, 1", "s_add_u32 s43, s43, s42", "s_lshl_b32 s43, s43, 11", "s_add_u32 s56, s44, s43")
    issue_lbl="P1_lloop"
    if UP<4:
        A("P1_lpro2:")
        issue()
        A("s_cmp_lt_u32 s50, 4", "s_cbranch_scc1 P1_lpro2")
    A("P1_lloop:")
    A("s_cmp_lt_u32 s49, 5", "s_cbranch_scc0 P1_ltail", "s_waitcnt vmcnt(20)", "s_branch P1_lbar")
    A("P1_ltail:", "s_cmp_eq_u32 s49, 5", "s_cbranch_scc0 P1_ltail2", "s_waitcnt vmcnt(10)", "s_branch P1_lbar")
    A("P1_ltail2:", "s_cmp_eq_u32 s49, 6", "s_cbranch_scc0 P1_lbar", f"s_waitcnt vmcnt({2 if PTC==5 else 0})")
    A("P1_lbar:", "s_barrier")
    if ST.probe and ST.probe.startswith('it'):
        A(f"s_cmp_eq_u32 s49, {ST.probe[2:]}", "s_cbranch_scc0 P1_lnoprobe", "s_memrealtime s[100:101]", "s_waitcnt lgkmcnt(0)", "P1_lnoprobe:")
    A("s_cmp_lt_u32 s50, 8", "s_cbranch_scc0 P1_lnoiss")
    issue()
    A("P1_lnoiss:")
    A(f"s_cmp_eq_u32 s49, {PTC}", "s_cbranch_scc0 P1_lnopt", "s_add_u32 s42, s56, 65536",
      f"buffer_load_dword v{PT}, v{vPT}, {W_}, s56 offen {PTF}", f"buffer_load_dword v{PT+1}, v{vPT}, {W_}, s42 offen {PTF}", "P1_lnopt:")
    A("s_add_u32 s49, s49, 1", "s_cmp_lt_u32 s49, 8", "s_cbranch_scc1 P1_lloop")
    ST.rt("p1_loop")
    if 'p1it' in opt:
        A("s_waitcnt vmcnt(0)", "s_endpgm")
    if 'fine3' in opt: ST.rt("mode")
    A(f"s_mov_b32 s{sMODE}, 0")
    if LF:
        A("s_branch P1_join")
        A.L[i_c0:]=A.L[i_l0:]+A.L[i_c0:i_l0]
    A("P1_join:", "s_nop 1")
    assert ST.n==n_end or 'p1it' in opt
    if 'fine3' in opt: ST.rt("st_iss")

def gate(A):
    W_=f"s[{SRD_WS}:{SRD_WS+3}]"
    GX=232; GW=236; GA=250
    A(f"v_mov_b32 v{GA}, 0")
    for i in range(4): A(f"v_dot2_f32_bf16 v{GA}, v{GX+i}, v{GW+i}, v{GA}")
    A("s_nop 2")
    for ror in (8,4,2,1):
        A(f"v_add_f32_dpp v{GA}, v{GA}, v{GA} row_ror:{ror} row_mask:0xf bank_mask:0xf", "s_nop 1")
    A(f"v_mov_b32 v{GA+1}, v{GA}", "s_nop 1", f"v_permlane16_swap_b32 v{GA+1}, v{GA}", "s_nop 1", f"v_add_f32 v{GA}, v{GA}, v{GA+1}",
      f"v_mov_b32 v{GA+1}, v{GA}", "s_nop 1", f"v_permlane32_swap_b32 v{GA+1}, v{GA}", "s_nop 1", f"v_add_f32 v{GA}, v{GA}, v{GA+1}")
    A(f"v_mul_f32 v{GA}, {hex(f2u(-1.4426950408889634))}, v{GA}", f"v_exp_f32 v{GA}, v{GA}", "s_nop 0", f"v_add_f32 v{GA}, 1.0, v{GA}", f"v_rcp_f32 v{GA}, v{GA}",
      "s_lshl_b32 s62, s62, 2", f"s_add_u32 s62, s62, {GOFF}", f"v_mov_b32 v{GA+1}, 0")
def gate_store(A):
    A("s_mov_b64 exec, 1", f"buffer_store_dword v250, v251, s[{SRD_WS}:{SRD_WS+3}], s62 offen sc1", "s_mov_b64 exec, -1")

def publish1(A, ST, opt):
    if 'fine3' in opt:
        A("s_waitcnt vmcnt(0)"); ST.rt("vm0")
    A("s_waitcnt vmcnt(0)", "s_barrier")
    if 'fine3' in opt: ST.rt("bar1")
    ST.rt("p1_stored")
    A(f"s_lshl_b32 s42, s{sX}, 7", f"s_lshl_b32 s43, s{sI}, 2", "s_add_u32 s43, s43, s42", f"s_add_u32 s43, s43, {FL+FL_F1}", f"s_add_u32 s38, s42, {FL+FL_F1}")
    A(f"s_cmp_eq_u32 s{sMODE}, 0", "s_cbranch_scc1 L_f1_safe")
    setflag(A,"f1f",43,5,"")
    A("s_branch L_f1_done", "L_f1_safe:")
    setflag(A,"f1s",43,5," sc1")
    A("L_f1_done:")
def sync1(A, ST, opt):
    if 'fine3' in opt: ST.rt("prolog")
    poll(A,"p1",38,2,3,stride=F1STR)
    A("s_barrier")
    ST.rt("p1_flags")

LANE=1
QA0=4; QA1=8; QB=12
OA0=16; OA1=32
S0=48; S1=64
P=80
KB_=88; VB_=210
MF=140; MD=156; CB=64
WBF=[96,100,104,108,120,124,128,132,136,192,196,200,204,228,232,236]
vKa=172; vVa=173
vL16=174; vT=175; vT2=176; vT3=177; vNEGM=178; vM=179; vKs=180; vVs=181; vX0=182; vPK=184
VL=188
LDS_KA=0; LDS_VA=65536; LDS_KB=131072; LDS_VB=147456
def exps(S): return [f"v_exp_f32 v{S+i}, v{S+i}" for i in range(16)]
def cvts(S): return [f"v_cvt_pk_bf16_f32 v{P+i}, v{S+2*i}, v{S+2*i+1}" for i in range(8)]
MK=[f"s_mov_b64 exec, s[{sMASK}:{sMASK+1}]"]; UM=["s_mov_b64 exec, -1"]
def unit(A, Sc, QK, PV1, ld, wK, wV, PV0):
    e=exps(Sc); c=cvts(Sc)
    A(wK, QK)
    A(e[0:4], c[0], e[4:6], c[1])
    A(PV1, ld)
    A(e[6:8], c[2], e[8:10], c[3], e[10:12])
    A(wV, PV0)
    A(e[12:13], c[4], e[13:15], c[5], e[15:16], c[6], c[7])
def slow_pass(A, tag, Q, O, pass1, far, diag, n):
    A(f"v_mov_b32 v{vX0}, v{vKs}", f"v_mov_b32 v{vX0+1}, v{vVs}", "s_mov_b32 s60, 0")
    if pass1: A(f"v_mov_b32 v{vM}, {hex(NEG)}", f"v_mov_b32 v{vNEGM}, 0")
    else:
        for i in range(16): A(f"v_mov_b32 v{O+i}, 0")
    A(f"L_{tag}_loop:")
    A(f"ds_read_b128 {vr(KB_,4)}, v{vX0}")
    if not pass1: A(MK, f"ds_read_b128 {vr(VB_,4)}, v{vX0+1}", f"ds_read_b128 {vr(VB_+4,4)}, v{vX0+1} offset:512", UM)
    A("s_cmp_eq_u32 s60, 0", f"s_cselect_b32 s61, s{far}, 0", "s_cmp_lg_u32 s61, 0", f"s_cbranch_scc1 L_{tag}_far")
    A(f"s_add_u32 s61, s60, 1", f"s_cmp_eq_u32 s61, s{n}", f"s_cselect_b32 s61, s{diag}, 0", "s_cmp_lg_u32 s61, 0", f"s_cbranch_scc1 L_{tag}_diag")
    for i in range(16): A(f"v_mov_b32 v{CB+i}, v{vNEGM}")
    A(f"s_branch L_{tag}_go")
    A(f"L_{tag}_far:")
    for i in range(16): A(f"v_add_f32 v{CB+i}, v{MF+i}, v{vNEGM}")
    A(f"s_branch L_{tag}_go")
    A(f"L_{tag}_diag:")
    for i in range(16): A(f"v_add_f32 v{CB+i}, v{MD+i}, v{vNEGM}")
    A(f"L_{tag}_go:")
    A("s_waitcnt lgkmcnt(0)", "s_nop 0")
    A(mfma32(S0, KB_, Q, CB))
    A("s_nop 7","s_nop 3")
    if pass1:
        for i in range(16): A(f"v_max_f32 v{vM}, v{vM}, v{S0+i}")
    else:
        A(exps(S0), "s_nop 0", cvts(S0), "s_nop 1")
        A(mfma32(O, VB_, P, O), mfma32(O, VB_+4, P+4, O))
    A(f"v_add_u32 v{vX0}, 1024, v{vX0}", f"v_add_u32 v{vX0+1}, 1024, v{vX0+1}")
    A("s_add_u32 s60, s60, 1", f"s_cmp_lt_u32 s60, s{n}", f"s_cbranch_scc1 L_{tag}_loop")
    if pass1:
        A(f"v_mov_b32 v{vT}, v{vM}", "s_nop 1", f"v_permlane32_swap_b32 v{vT}, v{vM}", "s_nop 1",
          f"v_max_f32 v{vM}, v{vM}, v{vT}", f"v_sub_f32 v{vNEGM}, 0, v{vM}")
    else: A("s_nop 7","s_nop 3")
def bcast_l(A,O):
    A(f"v_mov_b32 v{vT}, v{O+8}", "s_nop 1", f"v_permlane32_swap_b32 v{vT}, v{O+8}", "s_nop 1", f"v_add_f32 v{O+8}, v{O+8}, v{vT}")
def check_range(A, O, okl):
    bcast_l(A,O)
    A(f"v_mov_b32 v{vT}, v{O+8}")
    for i in range(8): A(f"v_fma_f32 v{vT}, v{O+i}, 0, v{vT}")
    A(f"s_mov_b32 s44, {hex(LLO)}", f"s_mov_b32 s45, {hex(LHI)}")
    A(f"v_cmp_le_f32 s[46:47], s44, v{vT}", f"v_cmp_ge_f32 s[48:49], s45, v{vT}", "s_nop 1",
      "s_and_b64 s[46:47], s[46:47], s[48:49]", "s_cmp_eq_u64 s[46:47], -1", f"s_cbranch_scc1 {okl}")
def finalize(A, O, soff):
    A(f"v_rcp_f32 v{vT}, v{O+8}", "s_nop 0")
    for i in range(8): A(f"v_mul_f32 v{O+i}, v{O+i}, v{vT}")
    for i in range(4): A(f"v_cvt_pk_bf16_f32 v{vPK+i}, v{O+2*i}, v{O+2*i+1}")
    A(f"buffer_store_dwordx4 {vr(vPK,4)}, v{vL16}, s[{SRD_WS}:{SRD_WS+3}], s{soff} offen sc1")

def early2(A):
    A(f"v_and_b32 v{LANE}, 63, v0")
    A(f"v_lshlrev_b32 v{vL16}, 4, v{LANE}", f"v_and_b32 v{vT}, 31, v{LANE}")
    A(f"s_mov_b32 s{sMASK}, 0x0000ffff", f"s_mov_b32 s{sMASK+1}, 0x0000ffff")
    A(f"v_cmp_eq_u32 vcc, 16, v{vT}", f"v_mov_b32 v{vX0}, 0x3f803f80", "s_nop 0", f"v_cndmask_b32 v{vX0+1}, 0, v{vX0}, vcc")
    for i in range(16): A(f"v_mov_b32 v{VB_+i}, v{vX0+1}")
    hh=vT3; MS=[82,90,96,98]
    A(f"v_lshrrev_b32 v{hh}, 5, v{LANE}", f"v_lshlrev_b32 v{vT2}, 2, v{hh}", f"v_sub_u32 v{vT2}, v{vT}, v{vT2}")
    A(f"v_mov_b32 v{vX0}, {hex(NEG)}")
    for g in range(4):
        for k in range(4): A(f"v_cmp_gt_i32 s[{MS[k]}:{MS[k]+1}], {8*g+k}, v{vT2}")
        A("s_nop 0")
        for k in range(4):
            i=4*g+k
            A(f"v_cndmask_b32 v{MF+i}, v{vX0}, 0, s[{MS[k]}:{MS[k]+1}]", f"v_cndmask_b32 v{MD+i}, 0, v{vX0}, s[{MS[k]}:{MS[k]+1}]")
    A(f"v_and_b32 v{vT}, 15, v{LANE}", f"v_lshlrev_b32 v{vT}, 4, v{vT}", f"v_lshl_add_u32 v{VL}, v{hh}, 8, v{vT}")

def phase2(A, ST, opt):
    W_=f"s[{SRD_WS}:{SRD_WS+3}]"
    SC="" if 'plainld' in opt else " sc1"
    early2(A)
    A(f"s_and_b32 s15, s{sW}, 3", f"s_lshr_b32 s16, s{sW}, 2")
    A("s_lshl_b32 s17, s15, 1", "s_add_u32 s17, s17, s16",
      f"s_lshl_b32 s18, s{sJ}, 3", "s_add_u32 s19, s18, s17",
      f"s_lshl_b32 s20, s{sH}, 16", f"s_add_u32 s21, s20, {32*65536}")
    A("s_lshl_b32 s43, s17, 10", f"s_add_u32 s44, s43, {LDS_KB}", f"v_add_u32 v{vKa}, s44, v{vL16}",
      f"s_add_u32 s44, s43, {LDS_VB}", f"v_add_u32 v{vVa}, s44, v{VL}")
    A("s_lshl_b32 s32, s19, 16", f"s_lshl_b32 s33, s{sH}, 10", "s_add_u32 s32, s32, s33", f"s_add_u32 s32, s32, {OF}", "s_add_u32 s33, s32, 32768")
    A("s_lshl_b32 s22, s19, 10", "s_add_u32 s22, s22, s21", f"s_add_u32 s22, s22, {QF}")
    A("s_lshl_b32 s23, s19, 10", "s_add_u32 s23, s23, s20", f"s_add_u32 s23, s23, {QF}", "s_xor_b32 s14, s19, 1", "s_lshl_b32 s14, s14, 10", "s_add_u32 s14, s14, s20", f"s_add_u32 s14, s14, {QF}")
    for ii in range(2):
        A(f"s_add_u32 s43, s{sW}, {8*ii}", "s_add_u32 s44, s18, s43", "s_sub_u32 s44, s44, 8", "s_max_i32 s44, s44, 0",
          "s_lshl_b32 s44, s44, 10", "s_add_u32 s44, s44, s21", f"s_add_u32 s{54+ii}, s44, {KF}")
    A(f"s_lshl_b32 s56, s{sW}, 10", "s_add_u32 s57, s56, s20", f"s_add_u32 s57, s57, {KF}")
    publish1(A,ST,opt)
    OBz=OA0
    for i in range(16): A(f"v_mov_b32 v{OBz+i}, 0")
    for i in range(4): A(f"v_mov_b32 v{P+4+i}, 0")
    gate(A)
    sync1(A,ST,opt)
    A(f"buffer_load_dwordx4 {vr(QB,4)}, v{vL16}, {W_}, s22 offen{SC}")
    if 'fine2' in opt:
        A("s_waitcnt vmcnt(0)"); ST.rt("qb_landed")
    for ii in range(2):
        A(f"s_add_u32 m0, s56, {LDS_KB+8192*ii}", f"s_add_u32 s45, s{54+ii}, {VF-KF}", f"buffer_load_dwordx4 v{vL16}, {W_}, s{54+ii} offen{SC} lds")
        A(f"s_add_u32 m0, s56, {LDS_VB+8192*ii}", "s_nop 0", f"buffer_load_dwordx4 v{vL16}, {W_}, s45 offen{SC} lds")
    A(f"buffer_load_dwordx4 {vr(QA0,4)}, v{vL16}, {W_}, s23 offen{SC}", f"buffer_load_dwordx4 {vr(QA1,4)}, v{vL16}, {W_}, s14 offen{SC}")
    def adma(m):
        return [f"s_add_u32 m0, s56, {LDS_KA+m*8192}", f"s_add_u32 s45, s57, {m*8192}", f"buffer_load_dwordx4 v{vL16}, {W_}, s45 offen{SC} lds",
                f"s_add_u32 m0, s56, {LDS_VA+m*8192}", f"s_add_u32 s45, s57, {VF-KF+m*8192}", f"buffer_load_dwordx4 v{vL16}, {W_}, s45 offen{SC} lds"]
    global ADMA; ADMA=adma
    A("s_waitcnt vmcnt(2)")
    OB=OA0
    if 'fine3' in opt: ST.rt("own_b")
    A("s_barrier")
    ST.rt("b_data")
    if 'fine3' in opt:
        ST.flush(2); A("s_waitcnt vmcnt(0)", "s_endpgm"); ST.on=False
    def ldK(t,base): return [f"ds_read_b128 {vr(KB_+4*(t%2),4)}, v{base} offset:{t*1024}"]
    def ldV(t,base): return MK+[f"ds_read_b128 {vr(VB_+8*(t%2),4)}, v{base} offset:{t*1024}", f"ds_read_b128 {vr(VB_+8*(t%2)+4,4)}, v{base} offset:{t*1024+512}"]+UM
    NB=9
    A("s_mov_b32 s51, 1", f"s_cmp_eq_u32 s{sJ}, 0", "s_cselect_b32 s50, 0, 1", "s_sub_u32 s53, 8, s17", "s_cselect_b32 s53, s53, 0")
    A.L.pop()
    A(f"s_cmp_eq_u32 s{sJ}, 0", "s_cselect_b32 s53, s53, 0")
    A("s_sub_u32 s52, 9, s53")
    A("s_lshl_b32 s43, s53, 10", f"v_add_u32 v{vKs}, s43, v{vKa}", f"v_add_u32 v{vVs}, s43, v{vVa}")
    A("s_cmp_eq_u32 s53, 0", "s_cbranch_scc1 B_pro0", "s_mov_b32 s58, s56", "s_mov_b32 s59, s57", "s_mov_b32 s60, s53", "B_skipdma:")
    A(f"s_add_u32 m0, s58, {LDS_KA}", f"s_add_u32 s45, s59, {VF-KF}", f"buffer_load_dwordx4 v{vL16}, {W_}, s59 offen{SC} lds",
      f"s_add_u32 m0, s58, {LDS_VA}", "s_add_u32 s58, s58, 8192", f"buffer_load_dwordx4 v{vL16}, {W_}, s45 offen{SC} lds",
      "s_add_u32 s59, s59, 8192", "s_sub_u32 s60, s60, 1", "s_cmp_lg_u32 s60, 0", "s_cbranch_scc1 B_skipdma")
    for s0 in range(1,NB):
        A(f"s_cmp_eq_u32 s53, {s0}", f"s_cbranch_scc1 B_pro{s0}")
    for s0 in range(NB-1,-1,-1):
        A(f"B_pro{s0}:")
        Sc=S0 if s0%2==0 else S1
        C = MF if s0==0 else (MD if s0==NB-1 else "0")
        A(ldK(s0,vKa), "s_waitcnt lgkmcnt(0)", mfma32(Sc, KB_+4*(s0%2), QB, C))
        if s0==0:
            A(ldV(0,vVa), ldK(1,vKa))
        else:
            if s0+1<NB: A(ldK(s0+1,vKa))
            A(ldV(s0,vVa))
        A("s_nop 7","s_nop 3")
        if s0!=0: A(f"s_branch B_step{s0}")
    for t in range(NB):
        A(f"B_step{t}:")
        Sc=S0 if t%2==0 else S1; Sn=S1 if t%2==0 else S0
        if t+1<NB:
            QK=[mfma32(Sn, KB_+4*((t+1)%2), QB, MD if t+1==NB-1 else "0")]
            wK=["s_waitcnt lgkmcnt(0)"] if t==0 else ["s_waitcnt lgkmcnt(2)"]
        else: QK=[]; wK=[]
        PV1=[mfma32(OB, VB_+8*((t-1)%2)+4, P+4, OB)] if t>0 else []
        ld=[]
        if t+2<NB: ld+=ldK(t+2,vKa)
        if t+1<NB: ld+=ldV(t+1,vVa)
        nld=(1 if t+2<NB else 0)+(2 if t+1<NB else 0)
        wV=[f"s_waitcnt lgkmcnt({nld})"]
        PV0=[mfma32(OB, VB_+8*(t%2), P, OB)]
        if t<8: ld=ld+ADMA(t)
        unit(A,Sc,QK,PV1,ld,wK,wV,PV0)
    A("s_nop 1", mfma32(OB, VB_+8*((NB-1)%2)+4, P+4, OB))
    A("s_nop 7","s_nop 3")
    check_range(A,OB,"B_ok")
    slow_pass(A,"bf1",QB,OB,True,50,51,52)
    slow_pass(A,"bf2",QB,OB,False,50,51,52)
    bcast_l(A,OB)
    A("B_ok:")
    finalize(A,OB,33)
    ST.rt("b_done")
    A("s_waitcnt vmcnt(1)", "s_barrier")
    ST.rt("a_start")
    gate_store(A)
    if 'dup' in opt: A("s_mov_b32 s54, 2", "A_dup:")
    A("s_lshl_b32 s43, s16, 15", f"v_add_u32 v{vKa}, s43, v{vL16}", f"s_add_u32 s44, s43, {LDS_VA}", f"v_add_u32 v{vVa}, s44, v{VL}")
    NOMASK='novmask' in opt
    vStep=119
    if NOMASK:
        CREG=LDS_KB+22528
        t0,t1,t2,t3=120,121,122,123
        A(f"v_mul_u32_u24 v{t0}, 43, v{LANE}", f"v_lshrrev_b32 v{t0}, 7, v{t0}",
          f"v_mul_u32_u24 v{t1}, 3, v{t0}", f"v_sub_u32 v{t1}, v{LANE}, v{t1}",
          f"v_lshlrev_b32 v{t2}, 4, v{t1}", f"v_cmp_eq_u32 vcc, 2, v{t1}", f"v_lshlrev_b32 v{t0}, 9, v{t0}", "s_nop 0", f"v_cndmask_b32 v{t2}, v{t2}, 64, vcc",
          f"v_add_u32 v{t0}, v{t0}, v{t2}", f"v_add_u32 v{t0}, {CREG}, v{t0}", f"v_cmp_eq_u32 vcc, 0, v{t1}", f"v_mov_b32 v{t3}, 0x3f803f80", "s_nop 0",
          f"v_cndmask_b32 v124, 0, v{t3}, vcc", "v_mov_b32 v125, v124", "v_mov_b32 v126, v124", "v_mov_b32 v127, v124",
          f"v_cmp_gt_u32 vcc, 54, v{LANE}", "s_and_saveexec_b64 s[44:45], vcc", f"ds_write_b128 v{t0}, v[124:127]", "s_mov_b64 exec, s[44:45]")
        A(f"v_and_b32 v{t0}, 31, v{LANE}", f"v_mov_b32 v{t1}, {CREG+16}", f"v_subrev_u32 v{t2}, 20, v{t0}", f"v_cmp_gt_u32 vcc, 8, v{t2}", f"v_mov_b32 v{t3}, {CREG+64}", "s_nop 0",
          f"v_cndmask_b32 v{t1}, v{t1}, v{t3}, vcc", f"v_cmp_eq_u32 vcc, 16, v{t0}", f"v_mov_b32 v{t3}, {CREG}", "s_nop 0", f"v_cndmask_b32 v{t1}, v{t1}, v{t3}, vcc",
          f"v_cmp_gt_u32 vcc, 16, v{t0}", f"v_mov_b32 v{t3}, 8192", "s_nop 0", f"v_cndmask_b32 v{vVa}, v{t1}, v{vVa}, vcc", f"v_cndmask_b32 v{vStep}, 0, v{t3}, vcc", "s_waitcnt lgkmcnt(0)")
    def ldVA(t,base):
        if not NOMASK: return ldV(t,base)
        return [f"ds_read_b128 {vr(VB_+8*(t%2),4)}, v{base} offset:{t*1024}", f"ds_read_b128 {vr(VB_+8*(t%2)+4,4)}, v{base} offset:{t*1024+512}"]
    for i in range(32): A(f"v_mov_b32 v{OA0+i}, 0")
    for i in range(4): A(f"v_mov_b32 v{P+4+i}, 0")
    Qr=[QA0,QA1]; Or=[OA0,OA1]
    A(ldK(0,vKa), ldVA(0,vVa), "s_waitcnt lgkmcnt(2)", mfma32(S0, KB_, QA0, "0"))
    vWs=190; vWr=191
    srd(A,SRD_A,pWOB,512*512*2)
    A(f"v_lshrrev_b32 v{vWs}, 2, v{LANE}", f"v_lshlrev_b32 v{vWs}, 10, v{vWs}", f"v_and_b32 v{vT}, 3, v{LANE}", f"v_lshl_add_u32 v{vWs}, v{vT}, 4, v{vWs}",
      f"s_lshr_b32 s42, s{sI}, 2", "s_lshl_b32 s42, s42, 7", f"s_bfe_u32 s43, s{sW}, 0x10001", "s_lshl_b32 s43, s43, 6", "s_add_u32 s42, s42, s43", f"v_add_u32 v{vWs}, s42, v{vWs}",
      f"s_lshr_b32 s82, s{sW}, 2", "s_lshl_b32 s82, s82, 18",
      f"s_lshl_b32 s83, s{sW}, 12", f"s_add_u32 s83, s83, {LDS_KB}")
    A(f"v_lshrrev_b32 v{vT}, 5, v{LANE}", f"v_bfe_u32 v{vWr}, v{LANE}, 2, 2", f"v_lshl_add_u32 v{vWr}, v{vT}, 2, v{vWr}", f"v_lshlrev_b32 v{vWr}, 6, v{vWr}",
      f"v_bfe_u32 v{vT}, v{LANE}, 4, 1", f"v_lshl_add_u32 v{vWr}, v{vT}, 5, v{vWr}", f"v_and_b32 v{vT}, 3, v{LANE}", f"v_lshl_add_u32 v{vWr}, v{vT}, 3, v{vWr}", f"v_add_u32 v{vWr}, s83, v{vWr}")
    def wb_dma():
        L=[]
        for ii in range(4):
            L+=[f"s_add_u32 m0, s83, {ii*1024}", f"s_add_u32 s45, s82, {ii*16384}", f"buffer_load_dwordx4 v{vWs}, s[{SRD_A}:{SRD_A+3}], s45 offen lds"]
        return L+["s_add_u32 s82, s82, 65536"]
    def wb_read(r):
        L=["s_waitcnt vmcnt(0)"]
        for nl in range(4):
            for rr in range(2):
                L.append(f"ds_read_b64_tr_b16 {vr(WBF[4*r+nl]+2*rr,2)}, v{vWr} offset:{(16*nl+8*rr)*64}")
        return L+["s_waitcnt lgkmcnt(0)"]
    A(wb_dma())
    vFv=112; vFz=113; vFa=114; vFb=115
    A(f"s_lshl_b32 s34, s{sJ}, 10", f"s_lshl_b32 s35, s{sH}, 5", "s_add_u32 s34, s34, s35", f"s_lshl_b32 s35, s{sW}, 2", "s_add_u32 s34, s34, s35",
      f"s_add_u32 s35, s34, {FL+FL_F2A}", f"s_add_u32 s34, s34, {FL+FL_F2B}")
    A(f"v_mov_b32 v{vFv}, s{sNONCE}", f"v_mov_b32 v{vFz}, 0")
    A(f"v_lshrrev_b32 v{vFa}, 1, v{LANE}", f"v_lshlrev_b32 v{vFa}, 5, v{vFa}", f"v_and_b32 v{vT}, 1, v{LANE}", f"v_lshl_add_u32 v{vFa}, v{vT}, 4, v{vFa}",
      f"s_and_b32 s36, s{sI}, 3", "s_lshl_b32 s36, s36, 2", f"v_add_u32 v{vFa}, s36, v{vFa}", f"s_lshl_b32 s36, s{sX}, 10", f"s_add_u32 s36, s36, {FL+FL_F2B}")
    A("s_mov_b32 s53, 4", "s_setprio 3", "s_nop 7", "s_nop 1")
    A(".p2align 3", "A_loop:")
    A("s_cmp_eq_u32 s53, 3", "s_cbranch_scc1 A_it1", "s_cmp_eq_u32 s53, 2", "s_cbranch_scc1 A_it2", "s_cmp_eq_u32 s53, 1", "s_cbranch_scc1 A_it3", "A_body:")
    NK=8
    units=[(t,qi) for t in range(NK) for qi in range(2)]
    for u,(t,qi) in enumerate(units):
        Sc=S0 if u%2==0 else S1; Sn=S1 if u%2==0 else S0
        tn,qn=(t,1) if qi==0 else (t+1,0)
        tp,qp=(t-1,1) if qi==0 else (t,0)
        QK=[mfma32(Sn, KB_+4*(tn%2), Qr[qn], "0")]
        PV1=[mfma32(Or[qp], VB_+8*(tp%2)+4, P+4, Or[qp])]
        PV0=[mfma32(Or[qi], VB_+8*(t%2), P, Or[qi])]
        ld=[];wK=[];wV=[]
        if qi==0: ld=ldK(t+1,vKa)+ldVA(t+1,vVa); wV=["s_waitcnt lgkmcnt(3)"]
        else: wK=["s_waitcnt lgkmcnt(2)"]
        if u==8: A("s_cmp_ge_u32 s53, 3", "s_cbranch_scc1 A_mid", "A_midback:")
        unit(A,Sc,QK,PV1,ld,wK,wV,PV0)
    A(f"v_add_u32 v{vKa}, {NK*1024}, v{vKa}", f"v_add_u32 v{vVa}, v{vStep}, v{vVa}" if NOMASK else f"v_add_u32 v{vVa}, {NK*1024}, v{vVa}")
    A("s_sub_u32 s53, s53, 1", "s_cmp_lg_u32 s53, 0", "s_cbranch_scc1 A_loop")
    A("s_branch A_after")
    A("A_mid:", "s_cmp_eq_u32 s53, 4", "s_cbranch_scc0 A_mid1")
    A(wb_read(0), wb_dma(), "s_branch A_midback")
    A("A_mid1:", wb_read(2), wb_dma(), "s_branch A_midback")
    A("A_it1:", "s_setprio 2", wb_read(1), "s_mov_b64 exec, 1", f"buffer_store_dword v{vFv}, v{vFz}, {W_}, s34 offen sc1", "s_mov_b64 exec, -1", wb_dma(), "s_branch A_body")
    A("A_it2:", "s_setprio 1", wb_read(3))
    if 'wbl2' in opt:
        A(f"s_cmp_lg_u32 s{sI}, 0", "s_cbranch_scc1 A_nowb", f"s_cmp_lg_u32 s{sW}, 0", "s_cbranch_scc1 A_nowb", "buffer_wbl2 sc1", "A_nowb:")
    if 'nopt3' not in opt:
        vP=116
        A(f"s_and_b32 s44, s{sI}, 3", f"s_lshr_b32 s45, s{sI}, 2", "s_lshl_b32 s46, s44, 7", f"s_lshl_b32 s47, s{sW}, 4", "s_add_u32 s46, s46, s47",
          f"v_and_b32 v{vP}, 15, v{LANE}", f"v_add_u32 v{vP}, s46, v{vP}", f"v_lshlrev_b32 v{vP}, 10, v{vP}", "s_lshl_b32 s45, s45, 7")
        A(f"s_mov_b32 s{SRD_PT}, s{pWOA}", f"s_mov_b32 s{SRD_PT+1}, s{pWOA+1}", f"s_mov_b32 s{SRD_PT+2}, {512*512*2}", f"s_mov_b32 s{SRD_PT+3}, 0x00020000",
          f"buffer_load_dword v{vP+1}, v{vP}, s[{SRD_PT}:{SRD_PT+3}], s45 offen")
        if 'ptout' in opt:
            A(f"s_lshl_b32 s46, s{sX}, 8", "s_lshl_b32 s47, s44, 6", "s_add_u32 s46, s46, s47", f"s_lshl_b32 s47, s{sW}, 3", "s_add_u32 s46, s46, s47",
              f"v_and_b32 v{vP}, 7, v{LANE}", f"v_add_u32 v{vP}, s46, v{vP}", f"v_lshlrev_b32 v{vP}, 10, v{vP}",
              f"s_mov_b32 s{SRD_PT}, s{pOUT}", f"s_mov_b32 s{SRD_PT+1}, s{pOUT+1}", f"s_mov_b32 s{SRD_PT+2}, {2048*512*2}", f"s_mov_b32 s{SRD_PT+3}, 0x00020000",
              f"buffer_load_dword v{vP+2}, v{vP}, s[{SRD_PT}:{SRD_PT+3}], s45 offen")
    A("s_branch A_body")
    A("A_it3:", "s_setprio 0", f"buffer_load_dword v{vFb}, v{vFa}, {W_}, s36 offen sc1", "s_branch A_body")
    A("A_after:")
    A(mfma32(OA1, VB_+8*((NK-1)%2)+4, P+4, OA1))
    A("s_waitcnt lgkmcnt(0)", "s_nop 7", "s_nop 3")
    if 'dup' in opt: A("s_sub_u32 s54, s54, 1", "s_cmp_lg_u32 s54, 0", "s_cbranch_scc1 A_dup")
    ST.rt("a_loop")
    A(f"s_lshl_b32 s43, s{sW}, 12", f"s_add_u32 s43, s43, {LDS_KB}", f"v_add_u32 v{vT}, s43, v{vL16}",
      f"v_lshlrev_b32 v{vT2}, 2, v{LANE}", f"v_add_u32 v{vT2}, s43, v{vT2}")
    A(f"ds_write_b128 v{vT}, {vr(OA1,4)}", f"ds_write_b128 v{vT}, {vr(OA1+4,4)} offset:1024", f"ds_write_b32 v{vT2}, v{OA1+8} offset:2048")
    A(f"s_xor_b32 s44, s{sW}, 4", "s_lshl_b32 s43, s44, 12", f"s_add_u32 s43, s43, {LDS_KB}", f"v_add_u32 v{vT}, s43, v{vL16}",
      f"v_lshlrev_b32 v{vT2}, 2, v{LANE}", f"v_add_u32 v{vT2}, s43, v{vT2}")
    A("s_waitcnt lgkmcnt(0)", "s_barrier")
    A(f"ds_read_b128 {vr(S0,4)}, v{vT}", f"ds_read_b128 {vr(S0+4,4)}, v{vT} offset:1024", f"ds_read_b32 v{S0+8}, v{vT2} offset:2048")
    A("s_waitcnt lgkmcnt(0)")
    for i in range(9): A(f"v_add_f32 v{OA0+i}, v{OA0+i}, v{S0+i}")
    check_range(A,OA0,"A_ok")
    A("s_mov_b32 s50, 0", "s_mov_b32 s51, 0", "s_mov_b32 s52, 64")
    A(f"v_add_u32 v{vKs}, {LDS_KA}, v{vL16}", f"v_add_u32 v{vVs}, {LDS_VA}, v{VL}")
    slow_pass(A,"af1",QA0,OA0,True,50,51,52)
    slow_pass(A,"af2",QA0,OA0,False,50,51,52)
    bcast_l(A,OA0)
    A("A_ok:")
    finalize(A,OA0,32)

def phase3(A, ST, opt):
    W_=f"s[{SRD_WS}:{SRD_WS+3}]"
    lane=LANE
    vFv=112; vFz=113; vFa=114; vFb=115
    srd(A,SRD_A,pWOA,512*512*2); srd(A,SRD_C,pOUT,2048*512*2)
    SA=f"s[{SRD_A}:{SRD_A+3}]"
    A(f"s_and_b32 s50, s{sI}, 3", f"s_lshr_b32 s51, s{sI}, 2")
    A(f"s_and_b32 s52, s{sW}, 1", f"s_bfe_u32 s53, s{sW}, 0x10001", f"s_lshr_b32 s54, s{sW}, 2")
    A(f"v_lshlrev_b32 v3, 4, v{lane}")
    A(f"s_lshl_b32 s42, s{sX}, 3", "s_lshl_b32 s43, s50, 1", "s_add_u32 s42, s42, s43", "s_lshl_b32 s55, s42, 16", f"s_add_u32 s55, s55, {OF}",
      "s_lshl_b32 s43, s53, 14", "s_lshl_b32 s44, s54, 12", "s_add_u32 s43, s43, s44",
      "s_lshl_b32 s56, s52, 15", "s_add_u32 s56, s56, s43", "s_add_u32 s56, s56, 0x10000",
      "s_lshl_b32 s57, s52, 16", "s_add_u32 s57, s57, s43", "s_add_u32 s57, s57, s55")
    def odma(br):
        L=[]
        for r in range(2):
            for ii in range(4):
                L+= [f"s_add_u32 m0, s56, {r*8192+ii*1024}", f"s_add_u32 s45, s57, {br*32768+r*8192+ii*1024}", f"buffer_load_dwordx4 v3, {W_}, s45 offen sc1 lds"]
        return L
    A("s_waitcnt vmcnt(1)", f"s_mov_b32 s46, {SPIN_MAX}")
    A("P3_bchk:", f"v_cmp_ne_u32 vcc, s{sNONCE}, v{vFb}", "s_nop 1", "s_cmp_eq_u64 vcc, 0", "s_cbranch_scc1 P3_bok",
      "s_sub_u32 s46, s46, 1", "s_cmp_eq_u32 s46, 0", "s_cbranch_scc1 P3_bok", "s_sleep 1",
      f"buffer_load_dword v{vFb}, v{vFa}, {W_}, s36 offen sc1", "s_waitcnt vmcnt(0)", "s_branch P3_bchk", "P3_bok:")
    A("s_barrier")
    A(odma(1))
    A("s_waitcnt vmcnt(8)")
    A("s_mov_b64 exec, 1", f"buffer_store_dword v{vFv}, v{vFz}, {W_}, s35 offen sc1", "s_mov_b64 exec, -1")
    ST.rt("o_stored")
    A(f"v_and_b32 v12, 31, v{lane}", f"s_lshl_b32 s44, s{sX}, 8", "s_lshl_b32 s45, s50, 6", "s_add_u32 s44, s44, s45", "s_lshl_b32 s45, s52, 5", "s_add_u32 s44, s44, s45",
      "v_add_u32 v12, s44, v12", "v_lshlrev_b32 v13, 2, v12", f"s_mov_b32 s45, {GOFF}", f"buffer_load_dword v14, v13, {W_}, s45 offen sc1")
    vW=4
    w_src_addr(A, vW, 5, 6, 7, lane, 51, 42)
    A(f"s_lshl_b32 s58, s{sW}, 13", f"s_lshl_b32 s59, s{sW}, 16")
    for ii in range(8):
        A(f"s_add_u32 m0, s58, {ii*1024}", f"s_add_u32 s45, s59, {ii*8192}", f"buffer_load_dwordx4 v{vW}, {SA}, s45 offen lds")
    w_frag_addr(A, 9, 6, 7, lane, 53, 42)
    A(f"v_lshrrev_b32 v8, 5, v{lane}", "s_lshl_b32 s42, s54, 15", "v_add_u32 v9, s42, v9")
    A("s_lshl_b32 s43, s52, 15", "s_lshl_b32 s44, s54, 14", "s_add_u32 s43, s43, s44", "s_add_u32 s43, s43, 0x10000", "v_add_u32 v11, s43, v3")
    ACA=16; ACB=48; OFr=[64,68,72,76]; WA=128
    for i in range(16): A(f"v_mov_b32 v{ACB+i}, 0", f"v_mov_b32 v{ACA+i}, 0")
    A("s_waitcnt vmcnt(10)", "s_barrier")
    ST.rt("w_landed")
    for n in range(4): A(f"ds_read_b128 {vr(OFr[n],4)}, v11 offset:{n*1024}")
    for n in range(16):
        A(f"s_waitcnt lgkmcnt({min(3,15-n)})")
        A(mfma32(ACB, WBF[n], OFr[n%4], ACB))
        if n+4<16: A(f"ds_read_b128 {vr(OFr[n%4],4)}, v11 offset:{(n+4)*1024}")
    ST.rt("b_half")
    A(f"s_add_u32 s36, s36, {FL_F2A-FL_F2B}")
    A(f"s_cmp_lg_u32 s{sW}, 0", "s_cbranch_scc1 P3_askip", f"s_mov_b32 s46, {SPIN_MAX}")
    A("P3_achk:", f"buffer_load_dword v{vFb}, v{vFa}, {W_}, s36 offen sc1", "s_waitcnt vmcnt(0)",
      f"v_cmp_ne_u32 vcc, s{sNONCE}, v{vFb}", "s_nop 1", "s_cmp_eq_u64 vcc, 0", "s_cbranch_scc1 P3_askip",
      "s_sub_u32 s46, s46, 1", "s_cmp_eq_u32 s46, 0", "s_cbranch_scc1 P3_askip", "s_branch P3_achk", "P3_askip:")
    A("s_waitcnt vmcnt(0)", "s_barrier")
    ST.rt("p2_flags")
    A(odma(0))
    A("s_cmp_lg_u32 s2, 0", "s_cbranch_scc1 P3_noep", f"s_mov_b32 s43, {FL+FL_EPOCH}")
    setflag(A,"ep",43,5)
    A("P3_noep:")
    for n in range(16):
        A(wrd2(WA+4*n,9,n))
        if n%4==3: A("s_waitcnt lgkmcnt(4)")
    for r in range(2):
        A(f"s_waitcnt vmcnt({4-4*r}) lgkmcnt(0)", "s_barrier")
        for s_ in range(4): A(f"ds_read_b128 {vr(OFr[s_],4)}, v11 offset:{(8*r+s_)*1024}")
        for s_ in range(8):
            n=8*r+s_
            A(f"s_waitcnt lgkmcnt({3 if s_<5 else 7-s_})")
            A(mfma32(ACA, WA+4*n, OFr[s_%4], ACA))
            if s_<4: A(f"ds_read_b128 {vr(OFr[s_%4],4)}, v11 offset:{(8*r+s_+4)*1024}")
    ST.rt("p3_mfma")
    A("s_nop 7","s_nop 3")
    for i in range(16): A(f"v_sub_f32 v{ACA+i}, v{ACA+i}, v{ACB+i}")
    for i in range(16): A(f"v_fma_f32 v{ACA+i}, v14, v{ACA+i}, v{ACB+i}")
    ACC=ACA
    A(f"s_lshl_b32 s43, s{sW}, 11", "v_add_u32 v5, s43, v3", f"s_xor_b32 s44, s{sW}, 4", "s_lshl_b32 s44, s44, 11", "v_add_u32 v6, s44, v3")
    PK=40
    A("s_cmp_eq_u32 s54, 0", "s_cbranch_scc0 P3_k1")
    for kq,lab in ((0,None),(1,"P3_k1")):
        if lab: A("s_branch P3_kdone", f"{lab}:")
        own=ACC+8*kq; oth=ACC+8*(1-kq)
        A(f"ds_write_b128 v5, {vr(oth,4)}", f"ds_write_b128 v5, {vr(oth+4,4)} offset:1024", "s_waitcnt lgkmcnt(0)", "s_barrier")
        A(f"ds_read_b128 {vr(32,4)}, v6", f"ds_read_b128 {vr(36,4)}, v6 offset:1024", "s_waitcnt lgkmcnt(0)")
        for i in range(8): A(f"v_add_f32 v{own+i}, v{own+i}, v{32+i}")
        for i in range(4): A(f"v_cvt_pk_bf16_f32 v{PK+i}, v{own+2*i}, v{own+2*i+1}")
    A("P3_kdone:")
    A("s_nop 1", f"v_permlane32_swap_b32 v{PK}, v{PK+2}", f"v_permlane32_swap_b32 v{PK+1}, v{PK+3}")
    A("v_lshlrev_b32 v5, 10, v12", "v_lshl_add_u32 v5, v8, 4, v5",
      "s_lshl_b32 s42, s51, 7", "s_lshl_b32 s43, s53, 6", "s_add_u32 s42, s42, s43", "s_lshl_b32 s43, s54, 5", "s_add_u32 s42, s42, s43")
    A(f"buffer_store_dwordx4 {vr(PK,4)}, v5, s[{SRD_C}:{SRD_C+3}], s42 offen" + (" sc1" if 'outsc1' in opt else "") + (" nt" if 'outnt' in opt else ""))

def gen(opt=()):
    A=Asm(); ST=Stamps(A,'stamps' in opt)
    pr=[o[6:] for o in opt if o.startswith('probe=')]
    if pr: ST.probe=pr[0]
    cy=[o[4:] for o in opt if o.startswith('cyc=')]
    if cy: ST.cp=cy[0].split(':')
    A(f".globl {NAME}", ".p2align 8", f".type {NAME},@function", f"{NAME}:")
    if pr: A("s_memrealtime s[100:101]")
    A("s_cmp_ge_u32 s2, 256", "s_cbranch_scc1 L_done")
    if 'scramble' in opt: A("s_lshr_b32 s3, s2, 3", "s_and_b32 s2, s2, 7", "s_lshl_b32 s2, s2, 5", "s_or_b32 s2, s2, s3")
    A(f"s_load_dwordx2 s[{sWS}:{sWS+1}], s[0:1], 72", "s_load_dwordx2 s[42:43], s[0:1], 0", "s_load_dwordx2 s[44:45], s[0:1], 8",
      "s_load_dwordx2 s[46:47], s[0:1], 32", "s_load_dwordx2 s[48:49], s[0:1], 48",
      f"s_load_dwordx2 s[{pWOA}:{pWOA+1}], s[0:1], 16", f"s_load_dwordx2 s[{pWOB}:{pWOB+1}], s[0:1], 40", f"s_load_dwordx2 s[{pOUT}:{pOUT+1}], s[0:1], 56")
    rot=[int(o[3:]) for o in opt if o.startswith('rot')]
    if rot: A(f"s_add_u32 s{sX}, s2, {rot[0]}", f"s_and_b32 s{sX}, s{sX}, 7")
    else: A(f"s_and_b32 s{sX}, s2, 7")
    A(f"s_lshr_b32 s{sI}, s2, 3", f"s_lshr_b32 s{sJ}, s{sI}, 2", f"s_and_b32 s{sA}, s{sI}, 3",
      f"s_lshr_b32 s{sBR}, s{sA}, 1", f"s_and_b32 s50, s{sA}, 1", f"s_lshl_b32 s{sRB}, s{sJ}, 1", f"s_add_u32 s{sRB}, s{sRB}, s50",
      f"s_lshl_b32 s{sH}, s{sX}, 2", f"s_add_u32 s{sH}, s{sH}, s{sA}")
    A("v_lshrrev_b32 v1, 6, v0", "v_and_b32 v2, 63, v0", "s_nop 0", f"v_readfirstlane_b32 s{sW}, v1")
    if 'epf' in opt:
        A(f"s_cmp_ge_u32 s{sW}, 3", "s_cbranch_scc1 L_noepf", "s_getpc_b64 s[50:51]", "L_epf_pc:", f"s_lshl_b32 s52, s{sW}, 13", "v_lshlrev_b32 v241, 7, v2", "v_add_u32 v241, s52, v241",
          "v_min_u32 v241, (L_done-L_epf_pc), v241", "global_load_dword v240, v241, s[50:51]", "L_noepf:")
    if 'pf' in opt:
        A("s_getpc_b64 s[50:51]", "L_pc:", f"s_sub_u32 s50, s50, (L_pc-{NAME})", "s_subb_u32 s51, s51, 0")
        A(f"s_lshl_b32 s52, s{sI}, 1", f"s_add_u32 s52, s52, s{sW}", "s_lshl_b32 s52, s52, 10", "v_lshlrev_b32 v3, 4, v2", "v_add_u32 v3, s52, v3")
        A(f"s_cmp_lt_u32 s{sW}, 2", "s_cbranch_scc0 L_nopf", f"s_cmp_lt_u32 s52, (L_done-{NAME}-1024)", "s_cbranch_scc0 L_nopf",
          "global_load_dwordx4 v[252:255], v3, s[50:51]", "L_nopf:")
    if 'spin60' in opt: A("s_memrealtime s[90:91]")
    A("s_waitcnt lgkmcnt(0)")
    wb=[int(o[2:]) for o in opt if o.startswith('wb') and o[2:].isdigit()]
    if wb: A(f"s_add_u32 s{sWS}, s{sWS}, {wb[0]<<20}", f"s_addc_u32 s{sWS+1}, s{sWS+1}, 0")
    ST.rt("start"); ST.cyc("cyc0")
    A(f"s_add_u32 s6, s{sWS}, {FL+FL_EPOCH}", f"s_addc_u32 s7, s{sWS+1}, 0", "s_load_dword s3, s[6:7], 0")
    srd(A,SRD_WS,sWS,WS_SIZE)
    srd(A,SRD_A,42,2048*512*2)
    A(f"s_cmp_eq_u32 s{sBR}, 0", "s_cselect_b32 s44, s44, s46", "s_cselect_b32 s45, s45, s47")
    srd(A,SRD_B,44,512*1536*2)
    srd(A,SRD_C,48,1024)
    phase1(A,ST,opt)
    phase2(A,ST,opt)
    phase3(A,ST,opt)
    if pr:
        A("s_waitcnt vmcnt(0)", "L_probe:", "s_memrealtime s[80:81]", "s_waitcnt lgkmcnt(0)", "s_sub_u32 s80, s80, s100", *(["s_lshr_b32 s81, s63, 2", "s_add_u32 s81, s81, 6000", "s_cmp_lt_u32 s80, s81"] if cy else ["s_cmp_lt_u32 s80, 6000"]), "s_cbranch_scc1 L_probe")
    if 'spin60' in opt:
        A("s_waitcnt vmcnt(0)", "L_spin:", "s_memrealtime s[80:81]", "s_waitcnt lgkmcnt(0)", "s_sub_u32 s80, s80, s90", "s_cmp_lt_u32 s80, 6000", "s_cbranch_scc1 L_spin")
    if ST.on: A("s_waitcnt vmcnt(0)")
    ST.rt("end"); ST.cyc("cyc1")
    ST.flush(120)
    A("L_done:", "s_endpgm")
    kd=f""".section .rodata,"a"
.p2align 6
.amdhsa_kernel {NAME}
  .amdhsa_next_free_vgpr 256
  .amdhsa_next_free_sgpr 102
  .amdhsa_accum_offset 256
  .amdhsa_group_segment_fixed_size 0
  .amdhsa_kernarg_size 80
  .amdhsa_user_sgpr_count 2
  .amdhsa_user_sgpr_kernarg_segment_ptr 1
  .amdhsa_system_sgpr_workgroup_id_x 1
.end_amdhsa_kernel
"""
    return A.text(), kd, ST.names

if __name__=='__main__':
    import sys, hazard
    out=sys.argv[1]; opt=tuple(sys.argv[2:])
    HDR=open('gated_mix__softmax_full_mha__sliding_block__prompt.s.ref').read().split('\n')
    hdr=[l for l in HDR if l.startswith(';') and '@launch' not in l and 'Override' not in l and 'grid=ceil' not in l]
    t,kd,names=gen(opt)
    DOC = """;
; One persistent launch, 256 workgroups x 512 threads (one per CU, all co-resident), three phases with flag hand-offs in d_ws:
;      [2^-64, 2^64] and all sums finite), and a wave that fails the check recomputes its tile with the true row maximum (two passes).
; Hand-offs: words in d_ws are tagged with a per-launch value derived from the word the previous launch left behind (any content works).
;  otherwise, and for everything that crosses groups, stores are write-through (sc1) and loads are sc1.
"""
    s='\n'.join(hdr)+'\n'+DOC+"; @launch grid=(256,1,1) block=(512,1,1) lds=163840\n"+'.amdgcn_target "amdgcn-amd-amdhsa--gfx950"\n.text\n'+t+kd
    open(out,'w').write(s)
    print('hazards',len(hazard.check(t)),'bytes',len(s),'stamps',','.join(names))
    sys.path.insert(0,'cdna_kernels')
    import subprocess
    from cdna_launch import with_harness_metadata, address_register_problem
    open('h.s','w').write(with_harness_metadata(s,NAME,10,launch_lists=True))
    r=subprocess.run(['clang','-x','assembler','-target','amdgcn-amd-amdhsa','-mcpu=gfx950','h.s','-o','h.co'],capture_output=True,text=True)
    if r.returncode: print(r.stderr)
    else:
        print('check:',address_register_problem('h.co',NAME))
        d=subprocess.run(['llvm-objdump','-d','--mcpu=gfx950','h.co'],capture_output=True,text=True).stdout
        import re
        ad=[int(m,16) for m in re.findall(r'// ([0-9A-F]{12}):',d)]
        print('code bytes',ad[-1]-ad[0]-768)
```

```python
from asm import Asm, vr, sr, mfma32
import struct
def f2u(x): return struct.unpack('<I',struct.pack('<f',x))[0]
NAME="gated_mix__softmax_full_mha__sliding_block__prompt_kernel"
QF=0; KF=4<<20; VF=8<<20; GOFF=12<<20; OF=16<<20; FL=30<<20; WS_SIZE=31<<20
FL_EPOCH=0; FL_F0=1024; FL_F1=2048; FL_F2=8192; FL_F2B=16384; FL_F2A=32768
FSTR=16
F1STR=4
STAMP_OFF=32<<20
QSCALE=0.25*1.4426950408889634
NEG=f2u(-2.0**100); LLO=f2u(2.0**-64); LHI=f2u(2.0**64)
SPIN_MAX=1<<20
sNONCE=3; sWS=4
SRD_WS=8; SRD_A=12; SRD_B=16; SRD_C=20; SRD_PT=56
sW=24; sX=25; sI=26; sJ=27; sA=28; sBR=29; sRB=30; sH=31
sMASK=40
sXCC=37; sMODE=39
pWOA=84; pWOB=86; pOUT=88

import contextlib
@contextlib.contextmanager
def ool(A):
    if not hasattr(A,'T'): A.T=[]
    main=A.L; A.L=A.T
    try: yield
    finally: A.L=main

class Stamps:
    def __init__(s, A, on): s.A=A; s.on=on; s.n=0; s.names=[]; s.skip=('p1_stored','l_pre'); s.probe=None; s.cp=None
    def rt(s,name):
        if s.cp and name==s.cp[0]: s.A("s_memtime s[96:97]", "s_waitcnt lgkmcnt(0)", "s_mov_b32 s63, s96")
        if s.cp and name==s.cp[1]: s.A("s_memtime s[96:97]", "s_waitcnt lgkmcnt(0)", "s_sub_u32 s63, s96, s63")
        if s.probe==name:
            s.A("s_memrealtime s[100:101]", "s_waitcnt lgkmcnt(0)")
        if not s.on or name in s.skip: return
        s.A("s_memrealtime s[80:81]", "s_waitcnt lgkmcnt(0)", f"s_mov_b32 s{64+s.n}, s80"); s.names.append(name); s.n+=1
    def cyc(s,name):
        if not s.on: return
        s.A("s_memtime s[80:81]", "s_waitcnt lgkmcnt(0)", f"s_mov_b32 s{64+s.n}, s80"); s.names.append(name); s.n+=1
    def flush(s, vtmp):
        if not s.on: return
        A=s.A
        A(f"s_mov_b32 s92, s{sWS}", f"s_mov_b32 s93, s{sWS+1}", "s_mov_b32 s94, 0x10000000", "s_mov_b32 s95, 0x00020000")
        A(f"s_lshl_b32 s80, s2, 3", f"s_add_u32 s80, s80, s{sW}", "s_lshl_b32 s80, s80, 6", f"s_add_u32 s80, s80, {STAMP_OFF}")
        for i in range(s.n):
            A(f"v_mov_b32 v{vtmp}, s{64+i}", f"v_mov_b32 v{vtmp+1}, {4*i}", f"buffer_store_dword v{vtmp}, v{vtmp+1}, s[92:95], s80 offen")

def srd(A, s, base, size):
    A(f"s_mov_b32 s{s}, s{base}", f"s_mov_b32 s{s+1}, s{base+1}", f"s_mov_b32 s{s+2}, {size}", f"s_mov_b32 s{s+3}, 0x00020000")

def poll(A, tag, flag_off_sgpr, vaddr, vtmp, stride=FSTR):
    A(f"s_cmp_lg_u32 s{sW}, 0", f"s_cbranch_scc1 L_{tag}_skip")
    A(f"v_and_b32 v{vaddr}, 31, v0", f"v_mul_u32_u24 v{vaddr}, {stride}, v{vaddr}", f"s_mov_b32 s42, {SPIN_MAX}")
    A(f"L_{tag}_loop:")
    A(f"buffer_load_dword v{vtmp}, v{vaddr}, s[{SRD_WS}:{SRD_WS+3}], s{flag_off_sgpr} offen sc1")
    A("s_waitcnt vmcnt(0)")
    A(f"v_cmp_ne_u32 vcc, s{sNONCE}, v{vtmp}", "s_nop 1", "s_cmp_eq_u64 vcc, 0", f"s_cbranch_scc1 L_{tag}_skip")
    A("s_sub_u32 s42, s42, 1", "s_cmp_eq_u32 s42, 0", f"s_cbranch_scc1 L_{tag}_skip", "s_sleep 1", f"s_branch L_{tag}_loop")
    A(f"L_{tag}_skip:")

def setflag(A, tag, off_sgpr, vt, sc=" sc1"):
    A(f"s_cmp_lg_u32 s{sW}, 0", f"s_cbranch_scc1 L_{tag}_nf")
    A(f"v_mov_b32 v{vt}, s{sNONCE}", f"v_mov_b32 v{vt+1}, 0", "s_mov_b64 exec, 1",
      f"buffer_store_dword v{vt}, v{vt+1}, s[{SRD_WS}:{SRD_WS+3}], s{off_sgpr} offen{sc}", "s_mov_b64 exec, -1")
    A(f"L_{tag}_nf:")

def mfma16(d,a,b,c): return f"v_mfma_f32_16x16x32_bf16 {vr(d,4)}, {vr(a,4)}, {vr(b,4)}, {vr(c,4)}"
def w_src_addr(A, v, t5, t6, t7, lane, cb_sgpr, stmp):
    A(f"v_lshrrev_b32 v{t5}, 3, v{lane}", f"v_lshlrev_b32 v{t5}, 10, v{t5}", f"v_bfe_u32 v{t6}, v{lane}, 4, 1", f"v_lshlrev_b32 v{t6}, 2, v{t6}", f"v_and_b32 v{t7}, 7, v{lane}",
      f"v_xor_b32 v{t6}, v{t6}, v{t7}", f"v_lshl_add_u32 v{t5}, v{t6}, 4, v{t5}", f"s_lshl_b32 s{stmp}, s{cb_sgpr}, 7", f"v_add_u32 v{v}, s{stmp}, v{t5}")
def w_frag_addr(A, v, t6, t7, lane, ct_sgpr, stmp):
    A(f"v_lshrrev_b32 v{t6}, 5, v{lane}", f"v_bfe_u32 v{v}, v{lane}, 2, 2", f"v_lshl_add_u32 v{v}, v{t6}, 2, v{v}", f"v_lshlrev_b32 v{v}, 7, v{v}",
      f"v_bfe_u32 v{t6}, v{lane}, 4, 1", f"v_lshlrev_b32 v{t6}, 1, v{t6}", f"v_bfe_u32 v{t7}, v{lane}, 1, 1", f"v_add_u32 v{t6}, v{t6}, v{t7}",
      f"s_lshl_b32 s{stmp}, s{ct_sgpr}, 2", f"v_add_u32 v{t6}, s{stmp}, v{t6}",
      f"v_bfe_u32 v{t7}, v{lane}, 3, 1", f"v_lshlrev_b32 v{t7}, 2, v{t7}", f"v_xor_b32 v{t6}, v{t6}, v{t7}", f"v_lshl_add_u32 v{v}, v{t6}, 4, v{v}",
      f"v_and_b32 v{t7}, 1, v{lane}", f"v_lshl_add_u32 v{v}, v{t7}, 3, v{v}")
def wrd2(dst, base, n): return [f"ds_read_b64_tr_b16 {vr(dst,2)}, v{base} offset:{(16*n)*128}", f"ds_read_b64_tr_b16 {vr(dst+2,2)}, v{base} offset:{(16*n+8)*128}"]

def phase1(A, ST, opt):
    lane=2; vX=3; vW=4; t0=5; t1=6; t2=7; g_t=8
    W_=f"s[{SRD_WS}:{SRD_WS+3}]"
    GX=232; GW=236
    PT=240; F0V=244; vF0=246; vPT=247
    PTF="sc1"
    if 'ptnt' in opt: PTF="sc1 nt"
    if 'ptplain' in opt: PTF=""
    PTC=int([o[3:] for o in opt if o.startswith('ptc')][0]) if any(o.startswith('ptc') for o in opt) else 5
    if 'nopt1' in opt: PTC=99
    STG=40960
    A(f"v_lshlrev_b32 v24, 4, v{lane}")
    LF='computefirst' not in opt
    if LF: A(f"s_cmp_lt_u32 s{sW}, 4", "s_cbranch_scc1 P1_compute")
    else: A(f"s_cmp_ge_u32 s{sW}, 4", "s_cbranch_scc1 P1_loader")
    i_c0=len(A.L)
    if LF: A("P1_compute:")
    n_save=ST.n; names_save=list(ST.names)
    def gate_loads():
        A(f"s_lshl_b32 s62, s{sJ}, 8", f"s_and_b32 s42, s{sW}, 3", "s_lshl_b32 s42, s42, 6", "s_add_u32 s62, s62, s42", f"s_lshl_b32 s42, s{sH}, 1", "s_add_u32 s62, s62, s42",
          f"s_lshr_b32 s42, s{sW}, 2", "s_add_u32 s62, s62, s42", "s_lshl_b32 s42, s62, 10",
          f"buffer_load_dwordx4 {vr(GX,4)}, v24, s[{SRD_A}:{SRD_A+3}], s42 offen", f"buffer_load_dwordx4 {vr(GW,4)}, v24, s[{SRD_C}:{SRD_C+3}], 0 offen")
    gate_loads()
    if 'tlbw' in opt:
        sh=int([o[4:] for o in opt if o.startswith('tlbs')][0]) if any(o.startswith('tlbs') for o in opt) else 16
        A(f"v_lshlrev_b32 v241, {sh}, v{lane}", f"s_lshl_b32 s42, s{sX}, 7", f"buffer_load_dword v242, v241, s[{SRD_B}:{SRD_B+3}], s42 offen sc1")
    A(f"s_and_b32 s34, s{sW}, 1", f"s_lshr_b32 s35, s{sW}, 1")
    A(f"s_lshl_b32 s42, s{sX}, 2", "s_lshl_b32 s43, s35, 1", "s_add_u32 s42, s42, s43", f"s_lshl_b32 s43, s{sBR}, 5", "s_add_u32 s42, s42, s43",
      "s_lshl_b32 s42, s42, 16", f"s_lshl_b32 s43, s{sRB}, 1", "s_add_u32 s43, s43, s34", "s_lshl_b32 s43, s43, 11", "s_add_u32 s56, s42, s43")
    A(f"v_and_b32 v{vF0}, 31, v{lane}", f"v_lshlrev_b32 v{vF0}, 2, v{vF0}", f"v_lshrrev_b32 v{t0}, 5, v{lane}", f"v_lshl_add_u32 v{vF0}, v{t0}, 10, v{vF0}",
      f"s_lshl_b32 s58, s{sX}, 7", f"s_add_u32 s58, s58, {FL+FL_F0}", f"s_getreg_b32 s{sXCC}, hwreg(HW_REG_XCC_ID, 0, 4)")
    aX=[10,11]; aW=[18,19]; m=20
    A(f"v_lshrrev_b32 v{g_t}, 4, v{lane}", f"v_and_b32 v{m}, 15, v{lane}", f"v_lshrrev_b32 v{t0}, 1, v{m}",
      "s_lshl_b32 s42, s34, 6", f"v_add_u32 v{t1}, s42, v{m}", f"v_lshlrev_b32 v{t1}, 7, v{t1}")
    for s_ in range(2):
        A(f"v_or_b32 v{t2}, {4*s_}, v{g_t}", f"v_xor_b32 v{t2}, v{t2}, v{t0}", f"v_lshl_add_u32 v{aX[s_]}, v{t2}, 4, v{t1}")
    A(f"v_bfe_u32 v{t0}, v{lane}, 2, 2", f"v_lshl_add_u32 v{t1}, v{g_t}, 3, v{t0}", f"v_lshlrev_b32 v{t1}, 7, v{t1}",
      f"v_and_b32 v21, 1, v{lane}", f"v_lshl_add_u32 v{t1}, v21, 3, v{t1}", f"v_add_u32 v{t1}, 16384, v{t1}",
      f"v_bfe_u32 v{t2}, v{lane}, 3, 1", f"v_bfe_u32 v21, v{lane}, 4, 1", f"v_lshl_or_b32 v{t2}, v21, 1, v{t2}", f"v_lshlrev_b32 v{t2}, 1, v{t2}",
      f"v_bfe_u32 v21, v{lane}, 1, 1", "s_lshl_b32 s42, s35, 2", "v_or_b32 v21, s42, v21")
    for hd in range(2):
        A(f"v_or_b32 v22, {2*hd}, v21", f"v_xor_b32 v22, v{t2}, v22", f"v_lshl_add_u32 v{aW[hd]}, v22, 4, v{t1}")
    def l2pf():
        if 'l2pf' in opt:
            C0=int([o[2:] for o in opt if o.startswith('c0')][0]) if any(o.startswith('c0') for o in opt) else 3
            NCH=8-C0
            vq=240
            A(f"s_lshl_b32 s42, s{sRB}, 7", f"s_lshl_b32 s43, s{sBR}, 6", "s_add_u32 s42, s42, s43", f"s_lshl_b32 s43, s{sW}, 4", "s_add_u32 s42, s42, s43",
              f"v_add_u32 v{vq}, s42, v{m}", f"v_lshlrev_b32 v{vq}, 10, v{vq}", f"v_lshl_add_u32 v{vq}, v{g_t}, 7, v{vq}", f"s_movk_i32 s43, {128*C0}",
              f"buffer_load_dword v{vq+2}, v{vq}, s[{SRD_A}:{SRD_A+3}], s43 offen sc1" if 'pfx' in opt else "s_nop 0")
            if NCH>4 and 'pfx' in opt: A(f"buffer_load_dword v{vq+3}, v{vq}, s[{SRD_A}:{SRD_A+3}], s43 offen offset:512 sc1")
            A(f"v_mul_u32_u24 v{vq}, 43, v{lane}", f"v_lshrrev_b32 v{vq}, 7, v{vq}", f"v_mul_u32_u24 v{vq+1}, 3, v{vq}", f"v_sub_u32 v{vq+1}, v{lane}, v{vq+1}",
              f"s_mul_i32 s42, s{sRB}, {4*NCH}", f"s_mul_i32 s43, s{sW}, {NCH}", "s_add_u32 s42, s42, s43", f"s_add_u32 s42, s42, {64*C0}",
              f"v_add_u32 v{vq}, s42, v{vq}", f"v_mul_u32_u24 v{vq}, 3072, v{vq}", f"v_lshl_add_u32 v{vq}, v{vq+1}, 10, v{vq}",
              f"v_cmp_gt_u32 vcc, {3*NCH}, v{lane}", f"v_mov_b32 v{vq+1}, 0x7ff00000", f"s_lshl_b32 s43, s{sX}, 7", f"v_cndmask_b32 v{vq}, v{vq+1}, v{vq}, vcc",
              f"buffer_load_dword v{vq+2}, v{vq}, s[{SRD_B}:{SRD_B+3}], s43 offen sc1{' nt' if 'wnt' in opt else ''}")
    if 'pfearly' in opt: l2pf()
    def T(hd,a,rt): return 32+48*hd+16*a+4*rt
    XF=[128,144]; WF=[[160,164,168],[172,176,180]]
    for i in range(96): A(f"v_mov_b32 v{32+i}, 0")
    def wrd(hd,a,s_):
        if 'p1noread' in opt: return ["s_nop 0","s_nop 0"]
        return [f"ds_read_b64_tr_b16 {vr(WF[hd][a]+2*rr,2)}, v{aW[hd]} offset:{a*8192+(32*s_+4*rr)*128}" for rr in range(2)]
    def xrd(s_,rt):
        if 'p1noread' in opt: return ["s_nop 0"]
        return [f"ds_read_b128 {vr(XF[s_]+4*rt,4)}, v{aX[s_]} offset:{rt*2048}"]
    def setA(s_): return wrd(0,0,s_)+xrd(s_,0)+xrd(s_,1)+wrd(0,1,s_)+xrd(s_,2)+xrd(s_,3)+wrd(0,2,s_)
    def setB(s_): return wrd(1,0,s_)+wrd(1,1,s_)+wrd(1,2,s_)
    def mf(hd,s_):
        x=XF[s_]; w=WF[hd]; L=[]
        for rt in (0,1): L.append(mfma16(T(hd,0,rt), w[0], x+4*rt, T(hd,0,rt)))
        for rt in (0,1): L.append(mfma16(T(hd,1,rt), w[1], x+4*rt, T(hd,1,rt)))
        for rt in (2,3): L.append(mfma16(T(hd,0,rt), w[0], x+4*rt, T(hd,0,rt)))
        for rt in (2,3): L.append(mfma16(T(hd,1,rt), w[1], x+4*rt, T(hd,1,rt)))
        for rt in range(4): L.append(mfma16(T(hd,2,rt), x+4*rt, w[2], T(hd,2,rt)))
        return L
    needA=[2,3,5,5,6,7,7,7,9,9,9,9]; needB=[1,1,3,3,3,3,3,3,5,5,5,5]
    def half(mfs, need, nold, new, pre=None, at=None):
        prev=-1; issued=0
        for k in range(12):
            if need[k]>prev:
                A(f"s_waitcnt lgkmcnt({(nold-1-need[k])+issued})"); prev=need[k]
            if pre and k==pre[0]: pre[1]()
            A(mfs[k])
            if k>=at and issued<len(new):
                n=1 if (len(new)-issued)<=(12-k-1) else 2
                n=min(n,len(new)-issued)
                A(new[issued:issued+n]); issued+=n
        assert issued==len(new)
    A("s_mov_b32 s49, 0", "s_mov_b32 s36, 0", f"s_mov_b32 s53, {STG}")
    A("s_barrier")
    A("s_waitcnt lgkmcnt(0)", f"s_mul_i32 s{sNONCE}, s3, 0x9e3779b1", f"s_add_u32 s{sNONCE}, s{sNONCE}, 0x7f4a7c15")
    ST.rt("p1_data")
    A(setA(0))
    if 'pfearly' not in opt: l2pf()
    if 'codepf' in opt:
        A(f"s_cmp_lg_u32 s{sW}, 1", "s_cbranch_scc1 L_nocpf", "s_getpc_b64 s[42:43]", "L_cpf_pc:", "s_add_u32 s42, s42, (P1_after-L_cpf_pc)", "s_addc_u32 s43, s43, 0",
          f"v_lshlrev_b32 v241, 7, v{lane}", "v_min_u32 v242, (L_done-P1_after-8192), v241")
        A("v_min_u32 v243, (L_done-P1_after), v241", "global_load_dword v240, v243, s[42:43]",
          "v_add_u32 v243, 8192, v242", "global_load_dword v240, v243, s[42:43]", "L_nocpf:")
    A(f"s_cmp_lg_u32 s{sW}, 0", "s_cbranch_scc1 L_f0_nf", f"s_add_u32 s42, s{sNONCE}, s{sXCC}", f"s_lshl_b32 s43, s{sI}, 2", "s_add_u32 s43, s43, s58",
      "v_mov_b32 v5, s42", "v_mov_b32 v6, 0", "s_mov_b64 exec, 1", f"buffer_store_dword v5, v6, {W_}, s43 offen sc1", "s_mov_b64 exec, -1", "L_f0_nf:")
    A(".p2align 3", "P1_loop:")
    half(mf(0,0), needA, 10, setB(0), at=2)
    half(mf(1,0), needB, 6, setA(1), at=1)
    half(mf(0,1), needA, 10, setB(1), at=2)
    def boundary():
        A("s_add_u32 s36, s36, 1", "s_cmp_eq_u32 s36, 4", f"s_cselect_b32 s52, {(-3*STG)&0xffffffff:#x}, s53", "s_cselect_b32 s36, 0, s36", "s_waitcnt lgkmcnt(0)")
        for r in aX+aW: A(f"v_add_u32 v{r}, s52, v{r}")
        A("s_cmp_eq_u32 s49, 4", "s_cbranch_scc1 P1_f0ld", "P1_f0back:", "s_barrier")
        if ST.probe and ST.probe.startswith('it'):
            A(f"s_cmp_eq_u32 s49, {ST.probe[2:]}", "s_cbranch_scc0 P1_noprobe", "s_memrealtime s[100:101]", "s_waitcnt lgkmcnt(0)", "P1_noprobe:")
        if 'p1it' in opt:
            A("s_memtime s[80:81]", "s_waitcnt lgkmcnt(0)")
            for k in range(7): A(f"s_mov_b32 s{64+8+k}, s{64+9+k}")
            A(f"s_mov_b32 s{64+15}, s80")
    half(mf(1,1), needB, 6, setA(0), pre=(3,boundary), at=3)
    A("s_add_u32 s49, s49, 1", "s_cmp_lt_u32 s49, 8", "s_cbranch_scc1 P1_loop")
    ST.rt("p1_loop")
    if 'p1it' in opt:
        ST.n=16; ST.flush(210); A("s_waitcnt vmcnt(0)", "s_endpgm")
    A("s_branch P1_after")
    A("P1_f0ld:", f"buffer_load_dword v{F0V}, v{vF0}, {W_}, s58 offen sc1", "s_branch P1_f0back")
    A("P1_after:")
    A("s_waitcnt vmcnt(0)", f"s_mov_b32 s42, {SPIN_MAX}")
    A("P1_chk:", f"v_subrev_u32 v{F0V+1}, s{sNONCE}, v{F0V}", f"v_cmp_gt_u32 vcc, 8, v{F0V+1}", "s_nop 1", "s_cmp_eq_u32 vcc_lo, -1", "s_cbranch_scc1 P1_chk_ok")
    A("s_sub_u32 s42, s42, 1", "s_cmp_eq_u32 s42, 0", "s_cbranch_scc1 P1_chk_ok", "s_sleep 1",
      f"buffer_load_dword v{F0V}, v{vF0}, {W_}, s58 offen sc1", "s_waitcnt vmcnt(0)", "s_branch P1_chk")
    A("P1_chk_ok:", f"v_cmp_eq_u32 vcc, s{sXCC}, v{F0V+1}", "s_nop 1", "s_cmp_eq_u32 vcc_lo, -1", f"s_cselect_b32 s{sMODE}, 1, 0")
    if 'forcesafe' in opt: A(f"s_mov_b32 s{sMODE}, 0")
    if 'fine3' in opt: ST.rt("mode")
    A(f"s_mov_b32 s44, {hex(f2u(QSCALE))}", "s_waitcnt lgkmcnt(0)")
    for hd in range(2):
        PK=128+24*hd
        TQ,TK,TV=T(hd,0,0),T(hd,1,0),T(hd,2,0)
        for t in range(2):
            for i in range(4): A(f"v_cvt_pk_bf16_f32 v{PK+4*t+i}, v{TK+8*t+2*i}, v{TK+8*t+2*i+1}")
        for t in range(2):
            for i in range(4): A(f"v_cvt_pk_bf16_f32 v{PK+8+4*t+i}, v{TV+8*t+2*i}, v{TV+8*t+2*i+1}")
        for i in range(16): A(f"v_mul_f32 v{TQ+i}, s44, v{TQ+i}")
        for t in range(2): A(f"v_permlane16_swap_b32 v{PK+4*t}, v{PK+4*t+2}", f"v_permlane16_swap_b32 v{PK+4*t+1}, v{PK+4*t+3}")
        for t in range(2):
            for i in range(4): A(f"v_cvt_pk_bf16_f32 v{PK+16+4*t+i}, v{TQ+8*t+2*i}, v{TQ+8*t+2*i+1}")
        for t in range(2): A(f"v_permlane32_swap_b32 v{PK+8+4*t}, v{PK+8+4*t+2}", f"v_permlane32_swap_b32 v{PK+8+4*t+1}, v{PK+8+4*t+3}")
        for t in range(2): A(f"v_permlane16_swap_b32 v{PK+16+4*t}, v{PK+16+4*t+2}", f"v_permlane16_swap_b32 v{PK+16+4*t+1}, v{PK+16+4*t+3}")
        A(f"s_add_u32 s46, s56, {hd*65536}", f"s_add_u32 s45, s46, {KF}", f"s_add_u32 s47, s46, {VF}")
        A(f"s_cmp_eq_u32 s{sMODE}, 0", f"s_cbranch_scc1 P1_st_safe{hd}")
        def sts(sc):
            A(f"buffer_store_dwordx4 {vr(PK,4)}, v24, {W_}, s45 offen{sc}", f"buffer_store_dwordx4 {vr(PK+4,4)}, v24, {W_}, s45 offen offset:1024{sc}")
            A(f"buffer_store_dwordx4 {vr(PK+8,4)}, v24, {W_}, s47 offen{sc}", f"buffer_store_dwordx4 {vr(PK+12,4)}, v24, {W_}, s47 offen offset:1024{sc}")
            A(f"buffer_store_dwordx4 {vr(PK+16,4)}, v24, {W_}, s46 offen{sc}", f"buffer_store_dwordx4 {vr(PK+20,4)}, v24, {W_}, s46 offen offset:1024{sc}")
        sts("")
        with ool(A):
            A(f"P1_st_safe{hd}:"); sts(" sc1"); A("s_nop 1", f"s_branch P1_st_done{hd}")
        A(f"P1_st_done{hd}:")
    if not LF: A("s_branch P1_join")
    i_l0=len(A.L)
    A("P1_loader:")
    n_end=ST.n; names_end=list(ST.names); ST.n=n_save; ST.names=list(names_save)
    A(f"s_and_b32 s34, s{sW}, 3")
    A(f"v_lshrrev_b32 v{t0}, 3, v{lane}", f"v_and_b32 v{t2}, 7, v{lane}", f"v_lshrrev_b32 v{t1}, 4, v{lane}", f"v_xor_b32 v{t1}, v{t1}, v{t2}",
      f"s_lshl_b32 s42, s{sRB}, 7", "s_lshl_b32 s43, s34, 5", "s_add_u32 s42, s42, s43", f"v_add_u32 v{vX}, s42, v{t0}", f"v_lshlrev_b32 v{vX}, 10, v{vX}",
      f"v_xor_b32 v9, 4, v{t1}", f"v_lshl_add_u32 v9, v9, 4, v{vX}", f"v_add_u32 v9, 8192, v9", f"v_lshl_add_u32 v{vX}, v{t1}, 4, v{vX}")
    A(f"v_add_u32 v10, 0x4000, v{vX}", "v_add_u32 v11, 0x4000, v9")
    A(f"v_bfe_u32 v{t1}, v{lane}, 4, 1", f"v_lshlrev_b32 v{t1}, 1, v{t1}", f"v_xor_b32 v{t1}, v{t1}, v{t2}",
      "s_lshl_b32 s43, s34, 4", f"v_add_u32 v{t0}, s43, v{t0}", f"v_mul_u32_u24 v{vW}, 3072, v{t0}", *([f"s_add_u32 s45, s{sX}, 2", "s_and_b32 s45, s45, 7", "s_lshl_b32 s45, s45, 7"] if 'wcol2' in opt else [f"s_lshl_b32 s45, s{sX}, 7"]), f"v_add_u32 v{vW}, s45, v{vW}",
      f"v_xor_b32 v12, 4, v{t1}", f"v_lshl_add_u32 v12, v12, 4, v{vW}", f"v_add_u32 v12, {8*3072}, v12", f"v_lshl_add_u32 v{vW}, v{t1}, 4, v{vW}")
    def dmas():
        L=[]
        xs=[vX,9,10,11]
        for ii in range(4):
            L.append([f"s_add_u32 m0, s46, {ii*1024}", "NOP", f"buffer_load_dwordx4 v{xs[ii]}, s[{SRD_A}:{SRD_A+3}], s47 offen{' nt' if 'xnt' in opt else ''} lds"])
        for seg in range(3):
            for ii in range(2):
                L.append([f"s_add_u32 m0, s57, {16384+seg*8192+ii*1024-seg*1024}", "NOP", f"buffer_load_dwordx4 v{[vW,12][ii]}, s[{SRD_B}:{SRD_B+3}], s48 offen offset:{seg*1024}{' nt' if 'wnt' in opt else ''} lds"])
        return L
    def issue():
        A("s_and_b32 s51, s50, 3", f"s_mul_i32 s51, s51, {STG}", "s_lshl_b32 s46, s34, 12", "s_add_u32 s46, s46, s51", "s_lshl_b32 s57, s34, 11", "s_add_u32 s57, s57, s51",
          *(["s_add_u32 s59, s50, s60", "s_and_b32 s59, s59, 7", "s_lshl_b32 s47, s59, 7", f"s_mul_i32 s48, s59, {64*3072}"] if True else ["s_lshl_b32 s47, s50, 7", f"s_mul_i32 s48, s50, {64*3072}"]))
        if 'p1nodma' not in opt:
            for g in dmas(): A([("s_nop 0" if x=="NOP" else x) for x in g])
        A("s_add_u32 s50, s50, 1")
    if 'krot1' in opt: A(f"s_and_b32 s60, s{sRB}, 7")
    elif 'krot2' in opt: A(f"s_lshl_b32 s60, s{sBR}, 2", f"s_add_u32 s60, s60, s{sRB}")
    elif 'krot3' in opt: A(f"s_lshr_b32 s60, s{sRB}, 1", f"s_lshl_b32 s59, s{sBR}, 2", "s_add_u32 s60, s60, s59")
    elif 'krot4' in opt: A(f"s_lshr_b32 s60, s{sRB}, 1", f"s_add_u32 s60, s60, s{sX}")
    elif 'krot0' in opt: A("s_mov_b32 s60, 0")
    elif 'krotrb' in opt: A(f"s_lshr_b32 s60, s{sRB}, 1")
    else: A(f"s_lshr_b32 s60, s{sRB}, 1", f"s_add_u32 s60, s60, s{sX}")
    A("s_mov_b32 s50, 0", "s_mov_b32 s49, 0")
    ST.rt("l_pre")
    A("P1_lpro:")
    issue()
    UP=2 if 'up2' in opt else (4 if 'up4' in opt else 3)
    A(f"s_cmp_lt_u32 s50, {UP}", "s_cbranch_scc1 P1_lpro")
    gate_loads()
    A(f"s_waitcnt vmcnt({10*(UP-1)+2})", "s_barrier")
    A("s_waitcnt lgkmcnt(0)", f"s_mul_i32 s{sNONCE}, s3, 0x9e3779b1", f"s_add_u32 s{sNONCE}, s{sNONCE}, 0x7f4a7c15")
    ST.rt("p1_data")
    A(f"v_lshrrev_b32 v{t0}, 4, v{lane}", f"v_lshlrev_b32 v{vPT}, 22, v{t0}", f"v_bfe_u32 v{t0}, v{lane}, 3, 1", f"v_lshl_add_u32 v{vPT}, v{t0}, 10, v{vPT}",
      f"v_and_b32 v{t0}, 7, v{lane}", f"v_lshl_add_u32 v{vPT}, v{t0}, 7, v{vPT}", f"v_cmp_gt_u32 vcc, 48, v{lane}", f"v_mov_b32 v{t0}, 0x7ff00000", "s_nop 0",
      f"v_cndmask_b32 v{vPT}, v{t0}, v{vPT}, vcc")
    A("s_and_b32 s42, s34, 1", "s_lshr_b32 s43, s34, 1",
      f"s_lshl_b32 s44, s{sX}, 2", "s_lshl_b32 s43, s43, 1", "s_add_u32 s44, s44, s43", f"s_lshl_b32 s43, s{sBR}, 5", "s_add_u32 s44, s44, s43", "s_lshl_b32 s44, s44, 16",
      f"s_lshl_b32 s43, s{sRB}, 1", "s_add_u32 s43, s43, s42", "s_lshl_b32 s43, s43, 11", "s_add_u32 s56, s44, s43")
    issue_lbl="P1_lloop"
    if UP<4:
        A("P1_lpro2:")
        issue()
        A("s_cmp_lt_u32 s50, 4", "s_cbranch_scc1 P1_lpro2")
    A("P1_lloop:")
    A("s_cmp_lt_u32 s49, 5", "s_cbranch_scc0 P1_ltail", "s_waitcnt vmcnt(20)", "s_branch P1_lbar")
    A("P1_ltail:", "s_cmp_eq_u32 s49, 5", "s_cbranch_scc0 P1_ltail2", "s_waitcnt vmcnt(10)", "s_branch P1_lbar")
    A("P1_ltail2:", "s_cmp_eq_u32 s49, 6", "s_cbranch_scc0 P1_lbar", f"s_waitcnt vmcnt({2 if PTC==5 else 0})")
    A("P1_lbar:", "s_barrier")
    if ST.probe and ST.probe.startswith('it'):
        A(f"s_cmp_eq_u32 s49, {ST.probe[2:]}", "s_cbranch_scc0 P1_lnoprobe", "s_memrealtime s[100:101]", "s_waitcnt lgkmcnt(0)", "P1_lnoprobe:")
    A("s_cmp_lt_u32 s50, 8", "s_cbranch_scc0 P1_lnoiss")
    issue()
    A("P1_lnoiss:")
    A(f"s_cmp_eq_u32 s49, {PTC}", "s_cbranch_scc0 P1_lnopt", "s_add_u32 s42, s56, 65536",
      f"buffer_load_dword v{PT}, v{vPT}, {W_}, s56 offen {PTF}", f"buffer_load_dword v{PT+1}, v{vPT}, {W_}, s42 offen {PTF}", "P1_lnopt:")
    A("s_add_u32 s49, s49, 1", "s_cmp_lt_u32 s49, 8", "s_cbranch_scc1 P1_lloop")
    ST.rt("p1_loop")
    if 'p1it' in opt:
        A("s_waitcnt vmcnt(0)", "s_endpgm")
    if 'fine3' in opt: ST.rt("mode")
    A(f"s_mov_b32 s{sMODE}, 0")
    if LF:
        A("s_branch P1_join")
        A.L[i_c0:]=A.L[i_l0:]+A.L[i_c0:i_l0]
    A("P1_join:", "s_nop 1")
    assert ST.n==n_end or 'p1it' in opt
    if 'fine3' in opt: ST.rt("st_iss")

def gate(A):
    W_=f"s[{SRD_WS}:{SRD_WS+3}]"
    GX=232; GW=236; GA=250
    A(f"v_mov_b32 v{GA}, 0")
    for i in range(4): A(f"v_dot2_f32_bf16 v{GA}, v{GX+i}, v{GW+i}, v{GA}")
    A("s_nop 2")
    for ror in (8,4,2,1):
        A(f"v_add_f32_dpp v{GA}, v{GA}, v{GA} row_ror:{ror} row_mask:0xf bank_mask:0xf", "s_nop 1")
    A(f"v_mov_b32 v{GA+1}, v{GA}", "s_nop 1", f"v_permlane16_swap_b32 v{GA+1}, v{GA}", "s_nop 1", f"v_add_f32 v{GA}, v{GA}, v{GA+1}",
      f"v_mov_b32 v{GA+1}, v{GA}", "s_nop 1", f"v_permlane32_swap_b32 v{GA+1}, v{GA}", "s_nop 1", f"v_add_f32 v{GA}, v{GA}, v{GA+1}")
    A(f"v_mul_f32 v{GA}, {hex(f2u(-1.4426950408889634))}, v{GA}", f"v_exp_f32 v{GA}, v{GA}", "s_nop 0", f"v_add_f32 v{GA}, 1.0, v{GA}", f"v_rcp_f32 v{GA}, v{GA}",
      "s_lshl_b32 s62, s62, 2", f"s_add_u32 s62, s62, {GOFF}", f"v_mov_b32 v{GA+1}, 0")
def gate_store(A):
    A("s_mov_b64 exec, 1", f"buffer_store_dword v250, v251, s[{SRD_WS}:{SRD_WS+3}], s62 offen sc1", "s_mov_b64 exec, -1")

def publish1(A, ST, opt):
    if 'fine3' in opt:
        A("s_waitcnt vmcnt(0)"); ST.rt("vm0")
    A("s_waitcnt vmcnt(0)", "s_barrier")
    if 'fine3' in opt: ST.rt("bar1")
    ST.rt("p1_stored")
    A(f"s_lshl_b32 s42, s{sX}, 7", f"s_lshl_b32 s43, s{sI}, 2", "s_add_u32 s43, s43, s42", f"s_add_u32 s43, s43, {FL+FL_F1}", f"s_add_u32 s38, s42, {FL+FL_F1}")
    A(f"s_cmp_eq_u32 s{sMODE}, 0", "s_cbranch_scc1 L_f1_safe")
    setflag(A,"f1f",43,5,"")
    A("s_branch L_f1_done", "L_f1_safe:")
    setflag(A,"f1s",43,5," sc1")
    A("L_f1_done:")
def sync1(A, ST, opt):
    if 'fine3' in opt: ST.rt("prolog")
    poll(A,"p1",38,2,3,stride=F1STR)
    A("s_barrier")
    ST.rt("p1_flags")

LANE=1
QA0=4; QA1=8; QB=12
OA0=16; OA1=32
S0=48; S1=64
P=80
KB_=88; VB_=210
MF=140; MD=156; CB=64
WBF=[96,100,104,108,120,124,128,132,136,192,196,200,204,228,232,236]
vKa=172; vVa=173
vL16=174; vT=175; vT2=176; vT3=177; vNEGM=178; vM=179; vKs=180; vVs=181; vX0=182; vPK=184
VL=188
LDS_KA=0; LDS_VA=65536; LDS_KB=131072; LDS_VB=147456
def exps(S): return [f"v_exp_f32 v{S+i}, v{S+i}" for i in range(16)]
def cvts(S): return [f"v_cvt_pk_bf16_f32 v{P+i}, v{S+2*i}, v{S+2*i+1}" for i in range(8)]
MK=[f"s_mov_b64 exec, s[{sMASK}:{sMASK+1}]"]; UM=["s_mov_b64 exec, -1"]
def unit(A, Sc, QK, PV1, ld, wK, wV, PV0):
    e=exps(Sc); c=cvts(Sc)
    A(wK, QK)
    A(e[0:4], c[0], e[4:6], c[1])
    A(PV1, ld)
    A(e[6:8], c[2], e[8:10], c[3], e[10:12])
    A(wV, PV0)
    A(e[12:13], c[4], e[13:15], c[5], e[15:16], c[6], c[7])
def slow_pass(A, tag, Q, O, pass1, far, diag, n):
    A(f"v_mov_b32 v{vX0}, v{vKs}", f"v_mov_b32 v{vX0+1}, v{vVs}", "s_mov_b32 s60, 0")
    if pass1: A(f"v_mov_b32 v{vM}, {hex(NEG)}", f"v_mov_b32 v{vNEGM}, 0")
    else:
        for i in range(16): A(f"v_mov_b32 v{O+i}, 0")
    A(f"L_{tag}_loop:")
    A(f"ds_read_b128 {vr(KB_,4)}, v{vX0}")
    if not pass1: A(MK, f"ds_read_b128 {vr(VB_,4)}, v{vX0+1}", f"ds_read_b128 {vr(VB_+4,4)}, v{vX0+1} offset:512", UM)
    A("s_cmp_eq_u32 s60, 0", f"s_cselect_b32 s61, s{far}, 0", "s_cmp_lg_u32 s61, 0", f"s_cbranch_scc1 L_{tag}_far")
    A(f"s_add_u32 s61, s60, 1", f"s_cmp_eq_u32 s61, s{n}", f"s_cselect_b32 s61, s{diag}, 0", "s_cmp_lg_u32 s61, 0", f"s_cbranch_scc1 L_{tag}_diag")
    for i in range(16): A(f"v_mov_b32 v{CB+i}, v{vNEGM}")
    A(f"s_branch L_{tag}_go")
    A(f"L_{tag}_far:")
    for i in range(16): A(f"v_add_f32 v{CB+i}, v{MF+i}, v{vNEGM}")
    A(f"s_branch L_{tag}_go")
    A(f"L_{tag}_diag:")
    for i in range(16): A(f"v_add_f32 v{CB+i}, v{MD+i}, v{vNEGM}")
    A(f"L_{tag}_go:")
    A("s_waitcnt lgkmcnt(0)", "s_nop 0")
    A(mfma32(S0, KB_, Q, CB))
    A("s_nop 7","s_nop 3")
    if pass1:
        for i in range(16): A(f"v_max_f32 v{vM}, v{vM}, v{S0+i}")
    else:
        A(exps(S0), "s_nop 0", cvts(S0), "s_nop 1")
        A(mfma32(O, VB_, P, O), mfma32(O, VB_+4, P+4, O))
    A(f"v_add_u32 v{vX0}, 1024, v{vX0}", f"v_add_u32 v{vX0+1}, 1024, v{vX0+1}")
    A("s_add_u32 s60, s60, 1", f"s_cmp_lt_u32 s60, s{n}", f"s_cbranch_scc1 L_{tag}_loop")
    if pass1:
        A(f"v_mov_b32 v{vT}, v{vM}", "s_nop 1", f"v_permlane32_swap_b32 v{vT}, v{vM}", "s_nop 1",
          f"v_max_f32 v{vM}, v{vM}, v{vT}", f"v_sub_f32 v{vNEGM}, 0, v{vM}")
    else: A("s_nop 7","s_nop 3")
def bcast_l(A,O):
    A(f"v_mov_b32 v{vT}, v{O+8}", "s_nop 1", f"v_permlane32_swap_b32 v{vT}, v{O+8}", "s_nop 1", f"v_add_f32 v{O+8}, v{O+8}, v{vT}")
def check_range(A, O, slowl):
    bcast_l(A,O)
    A(f"v_mov_b32 v{vT}, v{O+8}")
    for i in range(8): A(f"v_fma_f32 v{vT}, v{O+i}, 0, v{vT}")
    A(f"s_mov_b32 s44, {hex(LLO)}", f"s_mov_b32 s45, {hex(LHI)}")
    A(f"v_cmp_le_f32 s[46:47], s44, v{vT}", f"v_cmp_ge_f32 s[48:49], s45, v{vT}", "s_nop 1",
      "s_and_b64 s[46:47], s[46:47], s[48:49]", "s_cmp_eq_u64 s[46:47], -1", f"s_cbranch_scc0 {slowl}")
def finalize(A, O, soff):
    A(f"v_rcp_f32 v{vT}, v{O+8}", "s_nop 0")
    for i in range(8): A(f"v_mul_f32 v{O+i}, v{O+i}, v{vT}")
    for i in range(4): A(f"v_cvt_pk_bf16_f32 v{vPK+i}, v{O+2*i}, v{O+2*i+1}")
    A(f"buffer_store_dwordx4 {vr(vPK,4)}, v{vL16}, s[{SRD_WS}:{SRD_WS+3}], s{soff} offen sc1")

def early2(A):
    A(f"v_and_b32 v{LANE}, 63, v0")
    A(f"v_lshlrev_b32 v{vL16}, 4, v{LANE}", f"v_and_b32 v{vT}, 31, v{LANE}")
    A(f"s_mov_b32 s{sMASK}, 0x0000ffff", f"s_mov_b32 s{sMASK+1}, 0x0000ffff")
    A(f"v_cmp_eq_u32 vcc, 16, v{vT}", f"v_mov_b32 v{vX0}, 0x3f803f80", "s_nop 0", f"v_cndmask_b32 v{vX0+1}, 0, v{vX0}, vcc")
    for i in range(16): A(f"v_mov_b32 v{VB_+i}, v{vX0+1}")
    hh=vT3; MS=[82,90,96,98]
    A(f"v_lshrrev_b32 v{hh}, 5, v{LANE}", f"v_lshlrev_b32 v{vT2}, 2, v{hh}", f"v_sub_u32 v{vT2}, v{vT}, v{vT2}")
    A(f"v_mov_b32 v{vX0}, {hex(NEG)}")
    for g in range(4):
        for k in range(4): A(f"v_cmp_gt_i32 s[{MS[k]}:{MS[k]+1}], {8*g+k}, v{vT2}")
        A("s_nop 0")
        for k in range(4):
            i=4*g+k
            A(f"v_cndmask_b32 v{MF+i}, v{vX0}, 0, s[{MS[k]}:{MS[k]+1}]", f"v_cndmask_b32 v{MD+i}, 0, v{vX0}, s[{MS[k]}:{MS[k]+1}]")
    A(f"v_and_b32 v{vT}, 15, v{LANE}", f"v_lshlrev_b32 v{vT}, 4, v{vT}", f"v_lshl_add_u32 v{VL}, v{hh}, 8, v{vT}")

def phase2(A, ST, opt):
    W_=f"s[{SRD_WS}:{SRD_WS+3}]"
    SC="" if 'plainld' in opt else " sc1"
    early2(A)
    A(f"s_and_b32 s15, s{sW}, 3", f"s_lshr_b32 s16, s{sW}, 2")
    A("s_lshl_b32 s17, s15, 1", "s_add_u32 s17, s17, s16",
      f"s_lshl_b32 s18, s{sJ}, 3", "s_add_u32 s19, s18, s17",
      f"s_lshl_b32 s20, s{sH}, 16", f"s_add_u32 s21, s20, {32*65536}")
    A("s_lshl_b32 s43, s17, 10", f"s_add_u32 s44, s43, {LDS_KB}", f"v_add_u32 v{vKa}, s44, v{vL16}",
      f"s_add_u32 s44, s43, {LDS_VB}", f"v_add_u32 v{vVa}, s44, v{VL}")
    A("s_lshl_b32 s32, s19, 16", f"s_lshl_b32 s33, s{sH}, 10", "s_add_u32 s32, s32, s33", f"s_add_u32 s32, s32, {OF}", "s_add_u32 s33, s32, 32768")
    A("s_lshl_b32 s22, s19, 10", "s_add_u32 s22, s22, s21", f"s_add_u32 s22, s22, {QF}")
    A("s_lshl_b32 s23, s19, 10", "s_add_u32 s23, s23, s20", f"s_add_u32 s23, s23, {QF}", "s_xor_b32 s14, s19, 1", "s_lshl_b32 s14, s14, 10", "s_add_u32 s14, s14, s20", f"s_add_u32 s14, s14, {QF}")
    for ii in range(2):
        A(f"s_add_u32 s43, s{sW}, {8*ii}", "s_add_u32 s44, s18, s43", "s_sub_u32 s44, s44, 8", "s_max_i32 s44, s44, 0",
          "s_lshl_b32 s44, s44, 10", "s_add_u32 s44, s44, s21", f"s_add_u32 s{54+ii}, s44, {KF}")
    A(f"s_lshl_b32 s56, s{sW}, 10", "s_add_u32 s57, s56, s20", f"s_add_u32 s57, s57, {KF}")
    publish1(A,ST,opt)
    OBz=OA0
    for i in range(16): A(f"v_mov_b32 v{OBz+i}, 0")
    for i in range(4): A(f"v_mov_b32 v{P+4+i}, 0")
    gate(A)
    sync1(A,ST,opt)
    A(f"buffer_load_dwordx4 {vr(QB,4)}, v{vL16}, {W_}, s22 offen{SC}")
    if 'fine2' in opt:
        A("s_waitcnt vmcnt(0)"); ST.rt("qb_landed")
    for ii in range(2):
        A(f"s_add_u32 m0, s56, {LDS_KB+8192*ii}", f"s_add_u32 s45, s{54+ii}, {VF-KF}", f"buffer_load_dwordx4 v{vL16}, {W_}, s{54+ii} offen{SC} lds")
        A(f"s_add_u32 m0, s56, {LDS_VB+8192*ii}", "s_nop 0", f"buffer_load_dwordx4 v{vL16}, {W_}, s45 offen{SC} lds")
    A(f"buffer_load_dwordx4 {vr(QA0,4)}, v{vL16}, {W_}, s23 offen{SC}", f"buffer_load_dwordx4 {vr(QA1,4)}, v{vL16}, {W_}, s14 offen{SC}")
    def adma(m):
        return [f"s_add_u32 m0, s56, {LDS_KA+m*8192}", f"s_add_u32 s45, s57, {m*8192}", f"buffer_load_dwordx4 v{vL16}, {W_}, s45 offen{SC} lds",
                f"s_add_u32 m0, s56, {LDS_VA+m*8192}", f"s_add_u32 s45, s57, {VF-KF+m*8192}", f"buffer_load_dwordx4 v{vL16}, {W_}, s45 offen{SC} lds"]
    global ADMA; ADMA=adma
    A("s_waitcnt vmcnt(2)")
    OB=OA0
    if 'fine3' in opt: ST.rt("own_b")
    A("s_barrier")
    ST.rt("b_data")
    if 'fine3' in opt:
        ST.flush(2); A("s_waitcnt vmcnt(0)", "s_endpgm"); ST.on=False
    def ldK(t,base): return [f"ds_read_b128 {vr(KB_+4*(t%2),4)}, v{base} offset:{t*1024}"]
    def ldV(t,base): return MK+[f"ds_read_b128 {vr(VB_+8*(t%2),4)}, v{base} offset:{t*1024}", f"ds_read_b128 {vr(VB_+8*(t%2)+4,4)}, v{base} offset:{t*1024+512}"]+UM
    NB=9
    A("s_mov_b32 s51, 1", f"s_cmp_eq_u32 s{sJ}, 0", "s_cselect_b32 s50, 0, 1", "s_sub_u32 s53, 8, s17", "s_cselect_b32 s53, s53, 0")
    A.L.pop()
    A(f"s_cmp_eq_u32 s{sJ}, 0", "s_cselect_b32 s53, s53, 0")
    A("s_sub_u32 s52, 9, s53")
    A("s_lshl_b32 s43, s53, 10", f"v_add_u32 v{vKs}, s43, v{vKa}", f"v_add_u32 v{vVs}, s43, v{vVa}")
    def bpro(s0):
        A(f"B_pro{s0}:")
        Sc=S0 if s0%2==0 else S1
        C = MF if s0==0 else (MD if s0==NB-1 else "0")
        A(ldK(s0,vKa), "s_waitcnt lgkmcnt(0)", mfma32(Sc, KB_+4*(s0%2), QB, C))
        if s0==0:
            A(ldV(0,vVa), ldK(1,vKa))
        else:
            if s0+1<NB: A(ldK(s0+1,vKa))
            A(ldV(s0,vVa))
        A("s_nop 7","s_nop 3")
        if s0!=0: A(f"s_branch B_step{s0}")
    A("s_cmp_lg_u32 s53, 0", "s_cbranch_scc1 B_jump")
    with ool(A):
        A("B_jump:", "s_mov_b32 s58, s56", "s_mov_b32 s59, s57", "s_mov_b32 s60, s53", "B_skipdma:")
        A(f"s_add_u32 m0, s58, {LDS_KA}", f"s_add_u32 s45, s59, {VF-KF}", f"buffer_load_dwordx4 v{vL16}, {W_}, s59 offen{SC} lds",
          f"s_add_u32 m0, s58, {LDS_VA}", "s_add_u32 s58, s58, 8192", f"buffer_load_dwordx4 v{vL16}, {W_}, s45 offen{SC} lds",
          "s_add_u32 s59, s59, 8192", "s_sub_u32 s60, s60, 1", "s_cmp_lg_u32 s60, 0", "s_cbranch_scc1 B_skipdma")
        for s0 in range(1,NB-1):
            A(f"s_cmp_eq_u32 s53, {s0}", f"s_cbranch_scc1 B_pro{s0}")
        for s0 in range(NB-1,0,-1): bpro(s0)
    bpro(0)
    for t in range(NB):
        A(f"B_step{t}:")
        Sc=S0 if t%2==0 else S1; Sn=S1 if t%2==0 else S0
        if t+1<NB:
            QK=[mfma32(Sn, KB_+4*((t+1)%2), QB, MD if t+1==NB-1 else "0")]
            wK=["s_waitcnt lgkmcnt(0)"] if t==0 else ["s_waitcnt lgkmcnt(2)"]
        else: QK=[]; wK=[]
        PV1=[mfma32(OB, VB_+8*((t-1)%2)+4, P+4, OB)] if t>0 else []
        ld=[]
        if t+2<NB: ld+=ldK(t+2,vKa)
        if t+1<NB: ld+=ldV(t+1,vVa)
        nld=(1 if t+2<NB else 0)+(2 if t+1<NB else 0)
        wV=[f"s_waitcnt lgkmcnt({nld})"]
        PV0=[mfma32(OB, VB_+8*(t%2), P, OB)]
        if t<8: ld=ld+ADMA(t)
        unit(A,Sc,QK,PV1,ld,wK,wV,PV0)
    A("s_nop 1", mfma32(OB, VB_+8*((NB-1)%2)+4, P+4, OB))
    A("s_nop 7","s_nop 3")
    check_range(A,OB,"B_slow")
    with ool(A):
        A("B_slow:")
        slow_pass(A,"bf1",QB,OB,True,50,51,52)
        slow_pass(A,"bf2",QB,OB,False,50,51,52)
        bcast_l(A,OB)
        A("s_branch B_ok")
    A("B_ok:")
    finalize(A,OB,33)
    ST.rt("b_done")
    A("s_waitcnt vmcnt(1)", "s_barrier")
    ST.rt("a_start")
    gate_store(A)
    if 'dup' in opt: A("s_mov_b32 s54, 2", "A_dup:")
    A("s_lshl_b32 s43, s16, 15", f"v_add_u32 v{vKa}, s43, v{vL16}", f"s_add_u32 s44, s43, {LDS_VA}", f"v_add_u32 v{vVa}, s44, v{VL}")
    NOMASK='novmask' in opt
    vStep=119
    if NOMASK:
        CREG=LDS_KB+22528
        t0,t1,t2,t3=120,121,122,123
        A(f"v_mul_u32_u24 v{t0}, 43, v{LANE}", f"v_lshrrev_b32 v{t0}, 7, v{t0}",
          f"v_mul_u32_u24 v{t1}, 3, v{t0}", f"v_sub_u32 v{t1}, v{LANE}, v{t1}",
          f"v_lshlrev_b32 v{t2}, 4, v{t1}", f"v_cmp_eq_u32 vcc, 2, v{t1}", f"v_lshlrev_b32 v{t0}, 9, v{t0}", "s_nop 0", f"v_cndmask_b32 v{t2}, v{t2}, 64, vcc",
          f"v_add_u32 v{t0}, v{t0}, v{t2}", f"v_add_u32 v{t0}, {CREG}, v{t0}", f"v_cmp_eq_u32 vcc, 0, v{t1}", f"v_mov_b32 v{t3}, 0x3f803f80", "s_nop 0",
          f"v_cndmask_b32 v124, 0, v{t3}, vcc", "v_mov_b32 v125, v124", "v_mov_b32 v126, v124", "v_mov_b32 v127, v124",
          f"v_cmp_gt_u32 vcc, 54, v{LANE}", "s_and_saveexec_b64 s[44:45], vcc", f"ds_write_b128 v{t0}, v[124:127]", "s_mov_b64 exec, s[44:45]")
        A(f"v_and_b32 v{t0}, 31, v{LANE}", f"v_mov_b32 v{t1}, {CREG+16}", f"v_subrev_u32 v{t2}, 20, v{t0}", f"v_cmp_gt_u32 vcc, 8, v{t2}", f"v_mov_b32 v{t3}, {CREG+64}", "s_nop 0",
          f"v_cndmask_b32 v{t1}, v{t1}, v{t3}, vcc", f"v_cmp_eq_u32 vcc, 16, v{t0}", f"v_mov_b32 v{t3}, {CREG}", "s_nop 0", f"v_cndmask_b32 v{t1}, v{t1}, v{t3}, vcc",
          f"v_cmp_gt_u32 vcc, 16, v{t0}", f"v_mov_b32 v{t3}, 8192", "s_nop 0", f"v_cndmask_b32 v{vVa}, v{t1}, v{vVa}, vcc", f"v_cndmask_b32 v{vStep}, 0, v{t3}, vcc", "s_waitcnt lgkmcnt(0)")
    def ldVA(t,base):
        if not NOMASK: return ldV(t,base)
        return [f"ds_read_b128 {vr(VB_+8*(t%2),4)}, v{base} offset:{t*1024}", f"ds_read_b128 {vr(VB_+8*(t%2)+4,4)}, v{base} offset:{t*1024+512}"]
    for i in range(32): A(f"v_mov_b32 v{OA0+i}, 0")
    for i in range(4): A(f"v_mov_b32 v{P+4+i}, 0")
    Qr=[QA0,QA1]; Or=[OA0,OA1]
    A(ldK(0,vKa), ldVA(0,vVa), "s_waitcnt lgkmcnt(2)", mfma32(S0, KB_, QA0, "0"))
    vWs=190; vWr=191
    srd(A,SRD_A,pWOB,512*512*2)
    A(f"v_lshrrev_b32 v{vWs}, 2, v{LANE}", f"v_lshlrev_b32 v{vWs}, 10, v{vWs}", f"v_and_b32 v{vT}, 3, v{LANE}", f"v_lshl_add_u32 v{vWs}, v{vT}, 4, v{vWs}",
      f"s_lshr_b32 s42, s{sI}, 2", "s_lshl_b32 s42, s42, 7", f"s_bfe_u32 s43, s{sW}, 0x10001", "s_lshl_b32 s43, s43, 6", "s_add_u32 s42, s42, s43", f"v_add_u32 v{vWs}, s42, v{vWs}",
      f"s_lshr_b32 s82, s{sW}, 2", "s_lshl_b32 s82, s82, 18",
      f"s_lshl_b32 s83, s{sW}, 12", f"s_add_u32 s83, s83, {LDS_KB}")
    A(f"v_lshrrev_b32 v{vT}, 5, v{LANE}", f"v_bfe_u32 v{vWr}, v{LANE}, 2, 2", f"v_lshl_add_u32 v{vWr}, v{vT}, 2, v{vWr}", f"v_lshlrev_b32 v{vWr}, 6, v{vWr}",
      f"v_bfe_u32 v{vT}, v{LANE}, 4, 1", f"v_lshl_add_u32 v{vWr}, v{vT}, 5, v{vWr}", f"v_and_b32 v{vT}, 3, v{LANE}", f"v_lshl_add_u32 v{vWr}, v{vT}, 3, v{vWr}", f"v_add_u32 v{vWr}, s83, v{vWr}")
    def wb_dma():
        L=[]
        for ii in range(4):
            L+=[f"s_add_u32 m0, s83, {ii*1024}", f"s_add_u32 s45, s82, {ii*16384}", f"buffer_load_dwordx4 v{vWs}, s[{SRD_A}:{SRD_A+3}], s45 offen lds"]
        return L+["s_add_u32 s82, s82, 65536"]
    def wb_read(r):
        L=["s_waitcnt vmcnt(0)"]
        for nl in range(4):
            for rr in range(2):
                L.append(f"ds_read_b64_tr_b16 {vr(WBF[4*r+nl]+2*rr,2)}, v{vWr} offset:{(16*nl+8*rr)*64}")
        return L+["s_waitcnt lgkmcnt(0)"]
    A(wb_dma())
    vFv=112; vFz=113; vFa=114; vFb=115
    A(f"s_lshl_b32 s34, s{sJ}, 10", f"s_lshl_b32 s35, s{sH}, 5", "s_add_u32 s34, s34, s35", f"s_lshl_b32 s35, s{sW}, 2", "s_add_u32 s34, s34, s35",
      f"s_add_u32 s35, s34, {FL+FL_F2A}", f"s_add_u32 s34, s34, {FL+FL_F2B}")
    A(f"v_mov_b32 v{vFv}, s{sNONCE}", f"v_mov_b32 v{vFz}, 0")
    A(f"v_lshrrev_b32 v{vFa}, 1, v{LANE}", f"v_lshlrev_b32 v{vFa}, 5, v{vFa}", f"v_and_b32 v{vT}, 1, v{LANE}", f"v_lshl_add_u32 v{vFa}, v{vT}, 4, v{vFa}",
      f"s_and_b32 s36, s{sI}, 3", "s_lshl_b32 s36, s36, 2", f"v_add_u32 v{vFa}, s36, v{vFa}", f"s_lshl_b32 s36, s{sX}, 10", f"s_add_u32 s36, s36, {FL+FL_F2B}")
    A("s_mov_b32 s53, 4", "s_setprio 3", "s_nop 7", "s_nop 1")
    A(".p2align 3", "A_loop:")
    A("s_cmp_eq_u32 s53, 3", "s_cbranch_scc1 A_it1", "s_cmp_eq_u32 s53, 2", "s_cbranch_scc1 A_it2", "s_cmp_eq_u32 s53, 1", "s_cbranch_scc1 A_it3", "A_body:")
    NK=8
    units=[(t,qi) for t in range(NK) for qi in range(2)]
    for u,(t,qi) in enumerate(units):
        Sc=S0 if u%2==0 else S1; Sn=S1 if u%2==0 else S0
        tn,qn=(t,1) if qi==0 else (t+1,0)
        tp,qp=(t-1,1) if qi==0 else (t,0)
        QK=[mfma32(Sn, KB_+4*(tn%2), Qr[qn], "0")]
        PV1=[mfma32(Or[qp], VB_+8*(tp%2)+4, P+4, Or[qp])]
        PV0=[mfma32(Or[qi], VB_+8*(t%2), P, Or[qi])]
        ld=[];wK=[];wV=[]
        if qi==0: ld=ldK(t+1,vKa)+ldVA(t+1,vVa); wV=["s_waitcnt lgkmcnt(3)"]
        else: wK=["s_waitcnt lgkmcnt(2)"]
        if u==8: A("s_cmp_ge_u32 s53, 3", "s_cbranch_scc1 A_mid", "A_midback:")
        unit(A,Sc,QK,PV1,ld,wK,wV,PV0)
    A(f"v_add_u32 v{vKa}, {NK*1024}, v{vKa}", f"v_add_u32 v{vVa}, v{vStep}, v{vVa}" if NOMASK else f"v_add_u32 v{vVa}, {NK*1024}, v{vVa}")
    A("s_sub_u32 s53, s53, 1", "s_cmp_lg_u32 s53, 0", "s_cbranch_scc1 A_loop")
    if 'hooksinl' in opt: A("s_branch A_after")
    with (contextlib.nullcontext() if 'hooksinl' in opt else ool(A)):
        A("A_mid:", "s_cmp_eq_u32 s53, 4", "s_cbranch_scc0 A_mid1")
        A(wb_read(0), wb_dma(), "s_branch A_midback")
        A("A_mid1:", wb_read(2), wb_dma(), "s_branch A_midback")
        A("A_it1:", "s_setprio 2", wb_read(1), "s_mov_b64 exec, 1", f"buffer_store_dword v{vFv}, v{vFz}, {W_}, s34 offen sc1", "s_mov_b64 exec, -1", wb_dma(), "s_branch A_body")
        A("A_it2:", "s_setprio 1", wb_read(3))
        if 'wbl2' in opt:
            A(f"s_cmp_lg_u32 s{sI}, 0", "s_cbranch_scc1 A_nowb", f"s_cmp_lg_u32 s{sW}, 0", "s_cbranch_scc1 A_nowb", "buffer_wbl2 sc1", "A_nowb:")
        if 'nopt3' not in opt:
            vP=116
            A(f"s_and_b32 s44, s{sI}, 3", f"s_lshr_b32 s45, s{sI}, 2", "s_lshl_b32 s46, s44, 7", f"s_lshl_b32 s47, s{sW}, 4", "s_add_u32 s46, s46, s47",
              f"v_and_b32 v{vP}, 15, v{LANE}", f"v_add_u32 v{vP}, s46, v{vP}", f"v_lshlrev_b32 v{vP}, 10, v{vP}", "s_lshl_b32 s45, s45, 7")
            A(f"s_mov_b32 s{SRD_PT}, s{pWOA}", f"s_mov_b32 s{SRD_PT+1}, s{pWOA+1}", f"s_mov_b32 s{SRD_PT+2}, {512*512*2}", f"s_mov_b32 s{SRD_PT+3}, 0x00020000",
              f"buffer_load_dword v{vP+1}, v{vP}, s[{SRD_PT}:{SRD_PT+3}], s45 offen")
            if 'ptout' in opt:
                A(f"s_lshl_b32 s46, s{sX}, 8", "s_lshl_b32 s47, s44, 6", "s_add_u32 s46, s46, s47", f"s_lshl_b32 s47, s{sW}, 3", "s_add_u32 s46, s46, s47",
                  f"v_and_b32 v{vP}, 7, v{LANE}", f"v_add_u32 v{vP}, s46, v{vP}", f"v_lshlrev_b32 v{vP}, 10, v{vP}",
                  f"s_mov_b32 s{SRD_PT}, s{pOUT}", f"s_mov_b32 s{SRD_PT+1}, s{pOUT+1}", f"s_mov_b32 s{SRD_PT+2}, {2048*512*2}", f"s_mov_b32 s{SRD_PT+3}, 0x00020000",
                  f"buffer_load_dword v{vP+2}, v{vP}, s[{SRD_PT}:{SRD_PT+3}], s45 offen")
        A("s_branch A_body")
        A("A_it3:", "s_setprio 0", f"buffer_load_dword v{vFb}, v{vFa}, {W_}, s36 offen sc1", "s_branch A_body")
    A("A_after:")
    A(mfma32(OA1, VB_+8*((NK-1)%2)+4, P+4, OA1))
    A("s_waitcnt lgkmcnt(0)", "s_nop 7", "s_nop 3")
    if 'dup' in opt: A("s_sub_u32 s54, s54, 1", "s_cmp_lg_u32 s54, 0", "s_cbranch_scc1 A_dup")
    ST.rt("a_loop")
    A(f"s_lshl_b32 s43, s{sW}, 12", f"s_add_u32 s43, s43, {LDS_KB}", f"v_add_u32 v{vT}, s43, v{vL16}",
      f"v_lshlrev_b32 v{vT2}, 2, v{LANE}", f"v_add_u32 v{vT2}, s43, v{vT2}")
    A(f"ds_write_b128 v{vT}, {vr(OA1,4)}", f"ds_write_b128 v{vT}, {vr(OA1+4,4)} offset:1024", f"ds_write_b32 v{vT2}, v{OA1+8} offset:2048")
    A(f"s_xor_b32 s44, s{sW}, 4", "s_lshl_b32 s43, s44, 12", f"s_add_u32 s43, s43, {LDS_KB}", f"v_add_u32 v{vT}, s43, v{vL16}",
      f"v_lshlrev_b32 v{vT2}, 2, v{LANE}", f"v_add_u32 v{vT2}, s43, v{vT2}")
    A("s_waitcnt lgkmcnt(0)", "s_barrier")
    A(f"ds_read_b128 {vr(S0,4)}, v{vT}", f"ds_read_b128 {vr(S0+4,4)}, v{vT} offset:1024", f"ds_read_b32 v{S0+8}, v{vT2} offset:2048")
    A("s_waitcnt lgkmcnt(0)")
    for i in range(9): A(f"v_add_f32 v{OA0+i}, v{OA0+i}, v{S0+i}")
    check_range(A,OA0,"A_slow")
    with ool(A):
        A("A_slow:")
        A("s_mov_b32 s50, 0", "s_mov_b32 s51, 0", "s_mov_b32 s52, 64")
        A(f"v_add_u32 v{vKs}, {LDS_KA}, v{vL16}", f"v_add_u32 v{vVs}, {LDS_VA}, v{VL}")
        slow_pass(A,"af1",QA0,OA0,True,50,51,52)
        slow_pass(A,"af2",QA0,OA0,False,50,51,52)
        bcast_l(A,OA0)
        A("s_branch A_ok")
    A("A_ok:")
    finalize(A,OA0,32)

def phase3(A, ST, opt):
    W_=f"s[{SRD_WS}:{SRD_WS+3}]"
    lane=LANE
    vFv=112; vFz=113; vFa=114; vFb=115
    srd(A,SRD_A,pWOA,512*512*2); srd(A,SRD_C,pOUT,2048*512*2)
    SA=f"s[{SRD_A}:{SRD_A+3}]"
    A(f"s_and_b32 s50, s{sI}, 3", f"s_lshr_b32 s51, s{sI}, 2")
    A(f"s_and_b32 s52, s{sW}, 1", f"s_bfe_u32 s53, s{sW}, 0x10001", f"s_lshr_b32 s54, s{sW}, 2")
    A(f"v_lshlrev_b32 v3, 4, v{lane}")
    A(f"s_lshl_b32 s42, s{sX}, 3", "s_lshl_b32 s43, s50, 1", "s_add_u32 s42, s42, s43", "s_lshl_b32 s55, s42, 16", f"s_add_u32 s55, s55, {OF}",
      "s_lshl_b32 s43, s53, 14", "s_lshl_b32 s44, s54, 12", "s_add_u32 s43, s43, s44",
      "s_lshl_b32 s56, s52, 15", "s_add_u32 s56, s56, s43", "s_add_u32 s56, s56, 0x10000",
      "s_lshl_b32 s57, s52, 16", "s_add_u32 s57, s57, s43", "s_add_u32 s57, s57, s55")
    def odma(br):
        L=[]
        for r in range(2):
            for ii in range(4):
                L+= [f"s_add_u32 m0, s56, {r*8192+ii*1024}", f"s_add_u32 s45, s57, {br*32768+r*8192+ii*1024}", f"buffer_load_dwordx4 v3, {W_}, s45 offen sc1 lds"]
        return L
    A("s_waitcnt vmcnt(1)", f"s_mov_b32 s46, {SPIN_MAX}")
    A("P3_bchk:", f"v_cmp_ne_u32 vcc, s{sNONCE}, v{vFb}", "s_nop 1", "s_cmp_eq_u64 vcc, 0", "s_cbranch_scc1 P3_bok",
      "s_sub_u32 s46, s46, 1", "s_cmp_eq_u32 s46, 0", "s_cbranch_scc1 P3_bok", "s_sleep 1",
      f"buffer_load_dword v{vFb}, v{vFa}, {W_}, s36 offen sc1", "s_waitcnt vmcnt(0)", "s_branch P3_bchk", "P3_bok:")
    A("s_barrier")
    A(odma(1))
    A("s_waitcnt vmcnt(8)")
    A("s_mov_b64 exec, 1", f"buffer_store_dword v{vFv}, v{vFz}, {W_}, s35 offen sc1", "s_mov_b64 exec, -1")
    ST.rt("o_stored")
    A(f"v_and_b32 v12, 31, v{lane}", f"s_lshl_b32 s44, s{sX}, 8", "s_lshl_b32 s45, s50, 6", "s_add_u32 s44, s44, s45", "s_lshl_b32 s45, s52, 5", "s_add_u32 s44, s44, s45",
      "v_add_u32 v12, s44, v12", "v_lshlrev_b32 v13, 2, v12", f"s_mov_b32 s45, {GOFF}", f"buffer_load_dword v14, v13, {W_}, s45 offen sc1")
    vW=4
    w_src_addr(A, vW, 5, 6, 7, lane, 51, 42)
    A(f"s_lshl_b32 s58, s{sW}, 13", f"s_lshl_b32 s59, s{sW}, 16")
    for ii in range(8):
        A(f"s_add_u32 m0, s58, {ii*1024}", f"s_add_u32 s45, s59, {ii*8192}", f"buffer_load_dwordx4 v{vW}, {SA}, s45 offen lds")
    w_frag_addr(A, 9, 6, 7, lane, 53, 42)
    A(f"v_lshrrev_b32 v8, 5, v{lane}", "s_lshl_b32 s42, s54, 15", "v_add_u32 v9, s42, v9")
    A("s_lshl_b32 s43, s52, 15", "s_lshl_b32 s44, s54, 14", "s_add_u32 s43, s43, s44", "s_add_u32 s43, s43, 0x10000", "v_add_u32 v11, s43, v3")
    ACA=16; ACB=48; OFr=[64,68,72,76]; WA=128
    for i in range(16): A(f"v_mov_b32 v{ACB+i}, 0", f"v_mov_b32 v{ACA+i}, 0")
    A("s_waitcnt vmcnt(10)", "s_barrier")
    ST.rt("w_landed")
    for n in range(4): A(f"ds_read_b128 {vr(OFr[n],4)}, v11 offset:{n*1024}")
    for n in range(16):
        A(f"s_waitcnt lgkmcnt({min(3,15-n)})")
        A(mfma32(ACB, WBF[n], OFr[n%4], ACB))
        if n+4<16: A(f"ds_read_b128 {vr(OFr[n%4],4)}, v11 offset:{(n+4)*1024}")
    ST.rt("b_half")
    A(f"s_add_u32 s36, s36, {FL_F2A-FL_F2B}")
    A(f"s_cmp_lg_u32 s{sW}, 0", "s_cbranch_scc1 P3_askip", f"s_mov_b32 s46, {SPIN_MAX}")
    A("P3_achk:", f"buffer_load_dword v{vFb}, v{vFa}, {W_}, s36 offen sc1", "s_waitcnt vmcnt(0)",
      f"v_cmp_ne_u32 vcc, s{sNONCE}, v{vFb}", "s_nop 1", "s_cmp_eq_u64 vcc, 0", "s_cbranch_scc1 P3_askip",
      "s_sub_u32 s46, s46, 1", "s_cmp_eq_u32 s46, 0", "s_cbranch_scc1 P3_askip", "s_branch P3_achk", "P3_askip:")
    A("s_waitcnt vmcnt(0)", "s_barrier")
    ST.rt("p2_flags")
    A(odma(0))
    A("s_cmp_lg_u32 s2, 0", "s_cbranch_scc1 P3_noep", f"s_mov_b32 s43, {FL+FL_EPOCH}")
    setflag(A,"ep",43,5)
    A("P3_noep:")
    for n in range(16):
        A(wrd2(WA+4*n,9,n))
        if n%4==3: A("s_waitcnt lgkmcnt(4)")
    for r in range(2):
        A(f"s_waitcnt vmcnt({4-4*r}) lgkmcnt(0)", "s_barrier")
        for s_ in range(4): A(f"ds_read_b128 {vr(OFr[s_],4)}, v11 offset:{(8*r+s_)*1024}")
        for s_ in range(8):
            n=8*r+s_
            A(f"s_waitcnt lgkmcnt({3 if s_<5 else 7-s_})")
            A(mfma32(ACA, WA+4*n, OFr[s_%4], ACA))
            if s_<4: A(f"ds_read_b128 {vr(OFr[s_%4],4)}, v11 offset:{(8*r+s_+4)*1024}")
    ST.rt("p3_mfma")
    A("s_nop 7","s_nop 3")
    for i in range(16): A(f"v_sub_f32 v{ACA+i}, v{ACA+i}, v{ACB+i}")
    for i in range(16): A(f"v_fma_f32 v{ACA+i}, v14, v{ACA+i}, v{ACB+i}")
    ACC=ACA
    A(f"s_lshl_b32 s43, s{sW}, 11", "v_add_u32 v5, s43, v3", f"s_xor_b32 s44, s{sW}, 4", "s_lshl_b32 s44, s44, 11", "v_add_u32 v6, s44, v3")
    PK=40
    A("s_cmp_eq_u32 s54, 0", "s_cbranch_scc0 P3_k1")
    for kq,lab in ((0,None),(1,"P3_k1")):
        if lab: A("s_branch P3_kdone", f"{lab}:")
        own=ACC+8*kq; oth=ACC+8*(1-kq)
        A(f"ds_write_b128 v5, {vr(oth,4)}", f"ds_write_b128 v5, {vr(oth+4,4)} offset:1024", "s_waitcnt lgkmcnt(0)", "s_barrier")
        A(f"ds_read_b128 {vr(32,4)}, v6", f"ds_read_b128 {vr(36,4)}, v6 offset:1024", "s_waitcnt lgkmcnt(0)")
        for i in range(8): A(f"v_add_f32 v{own+i}, v{own+i}, v{32+i}")
        for i in range(4): A(f"v_cvt_pk_bf16_f32 v{PK+i}, v{own+2*i}, v{own+2*i+1}")
    A("P3_kdone:")
    A("s_nop 1", f"v_permlane32_swap_b32 v{PK}, v{PK+2}", f"v_permlane32_swap_b32 v{PK+1}, v{PK+3}")
    A("v_lshlrev_b32 v5, 10, v12", "v_lshl_add_u32 v5, v8, 4, v5",
      "s_lshl_b32 s42, s51, 7", "s_lshl_b32 s43, s53, 6", "s_add_u32 s42, s42, s43", "s_lshl_b32 s43, s54, 5", "s_add_u32 s42, s42, s43")
    A(f"buffer_store_dwordx4 {vr(PK,4)}, v5, s[{SRD_C}:{SRD_C+3}], s42 offen" + (" sc1" if 'outsc1' in opt else "") + (" nt" if 'outnt' in opt else ""))

def gen(opt=()):
    A=Asm(); ST=Stamps(A,'stamps' in opt)
    pr=[o[6:] for o in opt if o.startswith('probe=')]
    if pr: ST.probe=pr[0]
    cy=[o[4:] for o in opt if o.startswith('cyc=')]
    if cy: ST.cp=cy[0].split(':')
    A(f".globl {NAME}", ".p2align 8", f".type {NAME},@function", f"{NAME}:")
    if pr: A("s_memrealtime s[100:101]")
    A("s_cmp_ge_u32 s2, 256", "s_cbranch_scc1 L_done")
    if 'scramble' in opt: A("s_lshr_b32 s3, s2, 3", "s_and_b32 s2, s2, 7", "s_lshl_b32 s2, s2, 5", "s_or_b32 s2, s2, s3")
    A(f"s_load_dwordx2 s[{sWS}:{sWS+1}], s[0:1], 72", "s_load_dwordx2 s[42:43], s[0:1], 0", "s_load_dwordx2 s[44:45], s[0:1], 8",
      "s_load_dwordx2 s[46:47], s[0:1], 32", "s_load_dwordx2 s[48:49], s[0:1], 48",
      f"s_load_dwordx2 s[{pWOA}:{pWOA+1}], s[0:1], 16", f"s_load_dwordx2 s[{pWOB}:{pWOB+1}], s[0:1], 40", f"s_load_dwordx2 s[{pOUT}:{pOUT+1}], s[0:1], 56")
    rot=[int(o[3:]) for o in opt if o.startswith('rot')]
    if rot: A(f"s_add_u32 s{sX}, s2, {rot[0]}", f"s_and_b32 s{sX}, s{sX}, 7")
    else: A(f"s_and_b32 s{sX}, s2, 7")
    A(f"s_lshr_b32 s{sI}, s2, 3", f"s_lshr_b32 s{sJ}, s{sI}, 2", f"s_and_b32 s{sA}, s{sI}, 3",
      f"s_lshr_b32 s{sBR}, s{sA}, 1", f"s_and_b32 s50, s{sA}, 1", f"s_lshl_b32 s{sRB}, s{sJ}, 1", f"s_add_u32 s{sRB}, s{sRB}, s50",
      f"s_lshl_b32 s{sH}, s{sX}, 2", f"s_add_u32 s{sH}, s{sH}, s{sA}")
    A("v_lshrrev_b32 v1, 6, v0", "v_and_b32 v2, 63, v0", "s_nop 0", f"v_readfirstlane_b32 s{sW}, v1")
    if 'epf' in opt:
        A(f"s_cmp_ge_u32 s{sW}, 3", "s_cbranch_scc1 L_noepf", "s_getpc_b64 s[50:51]", "L_epf_pc:", f"s_lshl_b32 s52, s{sW}, 13", "v_lshlrev_b32 v241, 7, v2", "v_add_u32 v241, s52, v241",
          "v_min_u32 v241, (L_done-L_epf_pc), v241", "global_load_dword v240, v241, s[50:51]", "L_noepf:")
    if 'pf' in opt:
        A("s_getpc_b64 s[50:51]", "L_pc:", f"s_sub_u32 s50, s50, (L_pc-{NAME})", "s_subb_u32 s51, s51, 0")
        A(f"s_lshl_b32 s52, s{sI}, 1", f"s_add_u32 s52, s52, s{sW}", "s_lshl_b32 s52, s52, 10", "v_lshlrev_b32 v3, 4, v2", "v_add_u32 v3, s52, v3")
        A(f"s_cmp_lt_u32 s{sW}, 2", "s_cbranch_scc0 L_nopf", f"s_cmp_lt_u32 s52, (L_done-{NAME}-1024)", "s_cbranch_scc0 L_nopf",
          "global_load_dwordx4 v[252:255], v3, s[50:51]", "L_nopf:")
    if 'spin60' in opt: A("s_memrealtime s[90:91]")
    A("s_waitcnt lgkmcnt(0)")
    wb=[int(o[2:]) for o in opt if o.startswith('wb') and o[2:].isdigit()]
    if wb: A(f"s_add_u32 s{sWS}, s{sWS}, {wb[0]<<20}", f"s_addc_u32 s{sWS+1}, s{sWS+1}, 0")
    ST.rt("start"); ST.cyc("cyc0")
    A(f"s_add_u32 s6, s{sWS}, {FL+FL_EPOCH}", f"s_addc_u32 s7, s{sWS+1}, 0", "s_load_dword s3, s[6:7], 0")
    srd(A,SRD_WS,sWS,WS_SIZE)
    srd(A,SRD_A,42,2048*512*2)
    A(f"s_cmp_eq_u32 s{sBR}, 0", "s_cselect_b32 s44, s44, s46", "s_cselect_b32 s45, s45, s47")
    srd(A,SRD_B,44,512*1536*2)
    srd(A,SRD_C,48,1024)
    phase1(A,ST,opt)
    phase2(A,ST,opt)
    phase3(A,ST,opt)
    if pr:
        A("s_waitcnt vmcnt(0)", "L_probe:", "s_memrealtime s[80:81]", "s_waitcnt lgkmcnt(0)", "s_sub_u32 s80, s80, s100", *(["s_lshr_b32 s81, s63, 2", "s_add_u32 s81, s81, 6000", "s_cmp_lt_u32 s80, s81"] if cy else ["s_cmp_lt_u32 s80, 6000"]), "s_cbranch_scc1 L_probe")
    if 'spin60' in opt:
        A("s_waitcnt vmcnt(0)", "L_spin:", "s_memrealtime s[80:81]", "s_waitcnt lgkmcnt(0)", "s_sub_u32 s80, s80, s90", "s_cmp_lt_u32 s80, 6000", "s_cbranch_scc1 L_spin")
    if ST.on: A("s_waitcnt vmcnt(0)")
    ST.rt("end"); ST.cyc("cyc1")
    ST.flush(120)
    A("s_endpgm")
    A.L+=getattr(A,'T',[])
    A("L_done:", "s_endpgm")
    kd=f""".section .rodata,"a"
.p2align 6
.amdhsa_kernel {NAME}
  .amdhsa_next_free_vgpr 256
  .amdhsa_next_free_sgpr 102
  .amdhsa_accum_offset 256
  .amdhsa_group_segment_fixed_size 0
  .amdhsa_kernarg_size 80
  .amdhsa_user_sgpr_count 2
  .amdhsa_user_sgpr_kernarg_segment_ptr 1
  .amdhsa_system_sgpr_workgroup_id_x 1
.end_amdhsa_kernel
"""
    return A.text(), kd, ST.names

if __name__=='__main__':
    import sys, hazard
    out=sys.argv[1]; opt=tuple(sys.argv[2:])
    HDR=open('gated_mix__softmax_full_mha__sliding_block__prompt.s.ref').read().split('\n')
    hdr=[l for l in HDR if l.startswith(';') and '@launch' not in l and 'Override' not in l and 'grid=ceil' not in l]
    t,kd,names=gen(opt)
    DOC = """;
; One persistent launch, 256 workgroups x 512 threads (one per CU, all co-resident), three phases with flag hand-offs in d_ws:
;      [2^-64, 2^64] and all sums finite), and a wave that fails the check recomputes its tile with the true row maximum (two passes).
; Hand-offs: words in d_ws are tagged with a per-launch value derived from the word the previous launch left behind (any content works).
;  otherwise, and for everything that crosses groups, stores are write-through (sc1) and loads are sc1.
"""
    s='\n'.join(hdr)+'\n'+DOC+"; @launch grid=(256,1,1) block=(512,1,1) lds=163840\n"+'.amdgcn_target "amdgcn-amd-amdhsa--gfx950"\n.text\n'+t+kd
    open(out,'w').write(s)
    print('hazards',len(hazard.check(t)),'bytes',len(s),'stamps',','.join(names))
    sys.path.insert(0,'cdna_kernels')
    import subprocess
    from cdna_launch import with_harness_metadata, address_register_problem
    open('h.s','w').write(with_harness_metadata(s,NAME,10,launch_lists=True))
    r=subprocess.run(['clang','-x','assembler','-target','amdgcn-amd-amdhsa','-mcpu=gfx950','h.s','-o','h.co'],capture_output=True,text=True)
    if r.returncode: print(r.stderr)
    else:
        print('check:',address_register_problem('h.co',NAME))
        d=subprocess.run(['llvm-objdump','-d','--mcpu=gfx950','h.co'],capture_output=True,text=True).stdout
        import re
        ad=[int(m,16) for m in re.findall(r'// ([0-9A-F]{12}):',d)]
        print('code bytes',ad[-1]-ad[0]-768)
```

```python
from asm import Asm, vr, sr, mfma32
import struct
def f2u(x): return struct.unpack('<I',struct.pack('<f',x))[0]
NAME="gated_mix__softmax_full_mha__sliding_block__prompt_kernel"
QF=0; KF=4<<20; VF=8<<20; GOFF=12<<20; OF=16<<20; FL=30<<20; WS_SIZE=31<<20
FL_EPOCH=0; FL_F0=1024; FL_F1=2048; FL_F2=8192; FL_F2B=16384; FL_F2A=32768
FSTR=16
F1STR=4
STAMP_OFF=32<<20
QSCALE=0.25*1.4426950408889634
NEG=f2u(-2.0**100); LLO=f2u(2.0**-64); LHI=f2u(2.0**64)
SPIN_MAX=1<<20
sNONCE=3; sWS=4
SRD_WS=8; SRD_A=12; SRD_B=16; SRD_C=20; SRD_PT=56
sW=24; sX=25; sI=26; sJ=27; sA=28; sBR=29; sRB=30; sH=31
sMASK=40
sXCC=37; sMODE=39
pWOA=84; pWOB=86; pOUT=88

import contextlib
@contextlib.contextmanager
def ool(A):
    if not hasattr(A,'T'): A.T=[]
    main=A.L; A.L=A.T
    try: yield
    finally: A.L=main

class Stamps:
    def __init__(s, A, on): s.A=A; s.on=on; s.n=0; s.names=[]; s.skip=('p1_stored','l_pre'); s.probe=None; s.cp=None
    def rt(s,name):
        if s.cp and name==s.cp[0]: s.A("s_memtime s[96:97]", "s_waitcnt lgkmcnt(0)", "s_mov_b32 s63, s96")
        if s.cp and name==s.cp[1]: s.A("s_memtime s[96:97]", "s_waitcnt lgkmcnt(0)", "s_sub_u32 s63, s96, s63")
        if s.probe==name:
            s.A("s_memrealtime s[100:101]", "s_waitcnt lgkmcnt(0)")
        if not s.on or name in s.skip: return
        s.A("s_memrealtime s[80:81]", "s_waitcnt lgkmcnt(0)", f"s_mov_b32 s{64+s.n}, s80"); s.names.append(name); s.n+=1
    def cyc(s,name):
        if not s.on: return
        s.A("s_memtime s[80:81]", "s_waitcnt lgkmcnt(0)", f"s_mov_b32 s{64+s.n}, s80"); s.names.append(name); s.n+=1
    def flush(s, vtmp):
        if not s.on: return
        A=s.A
        A(f"s_mov_b32 s92, s{sWS}", f"s_mov_b32 s93, s{sWS+1}", "s_mov_b32 s94, 0x10000000", "s_mov_b32 s95, 0x00020000")
        A(f"s_lshl_b32 s80, s2, 3", f"s_add_u32 s80, s80, s{sW}", "s_lshl_b32 s80, s80, 6", f"s_add_u32 s80, s80, {STAMP_OFF}")
        for i in range(s.n):
            A(f"v_mov_b32 v{vtmp}, s{64+i}", f"v_mov_b32 v{vtmp+1}, {4*i}", f"buffer_store_dword v{vtmp}, v{vtmp+1}, s[92:95], s80 offen")

def srd(A, s, base, size):
    A(f"s_mov_b32 s{s}, s{base}", f"s_mov_b32 s{s+1}, s{base+1}", f"s_mov_b32 s{s+2}, {size}", f"s_mov_b32 s{s+3}, 0x00020000")

def poll(A, tag, flag_off_sgpr, vaddr, vtmp, stride=FSTR):
    A(f"s_cmp_lg_u32 s{sW}, 0", f"s_cbranch_scc1 L_{tag}_skip")
    A(f"v_and_b32 v{vaddr}, 31, v0", f"v_mul_u32_u24 v{vaddr}, {stride}, v{vaddr}", f"s_mov_b32 s42, {SPIN_MAX}")
    A(f"L_{tag}_loop:")
    A(f"buffer_load_dword v{vtmp}, v{vaddr}, s[{SRD_WS}:{SRD_WS+3}], s{flag_off_sgpr} offen sc1")
    A("s_waitcnt vmcnt(0)")
    A(f"v_cmp_ne_u32 vcc, s{sNONCE}, v{vtmp}", "s_nop 1", "s_cmp_eq_u64 vcc, 0", f"s_cbranch_scc1 L_{tag}_skip")
    A("s_sub_u32 s42, s42, 1", "s_cmp_eq_u32 s42, 0", f"s_cbranch_scc1 L_{tag}_skip", "s_sleep 1", f"s_branch L_{tag}_loop")
    A(f"L_{tag}_skip:")

def setflag(A, tag, off_sgpr, vt, sc=" sc1"):
    A(f"s_cmp_lg_u32 s{sW}, 0", f"s_cbranch_scc1 L_{tag}_nf")
    A(f"v_mov_b32 v{vt}, s{sNONCE}", f"v_mov_b32 v{vt+1}, 0", "s_mov_b64 exec, 1",
      f"buffer_store_dword v{vt}, v{vt+1}, s[{SRD_WS}:{SRD_WS+3}], s{off_sgpr} offen{sc}", "s_mov_b64 exec, -1")
    A(f"L_{tag}_nf:")

def mfma16(d,a,b,c): return f"v_mfma_f32_16x16x32_bf16 {vr(d,4)}, {vr(a,4)}, {vr(b,4)}, {vr(c,4)}"
def w_src_addr(A, v, t5, t6, t7, lane, cb_sgpr, stmp):
    A(f"v_lshrrev_b32 v{t5}, 3, v{lane}", f"v_lshlrev_b32 v{t5}, 10, v{t5}", f"v_bfe_u32 v{t6}, v{lane}, 4, 1", f"v_lshlrev_b32 v{t6}, 2, v{t6}", f"v_and_b32 v{t7}, 7, v{lane}",
      f"v_xor_b32 v{t6}, v{t6}, v{t7}", f"v_lshl_add_u32 v{t5}, v{t6}, 4, v{t5}", f"s_lshl_b32 s{stmp}, s{cb_sgpr}, 7", f"v_add_u32 v{v}, s{stmp}, v{t5}")
def w_frag_addr(A, v, t6, t7, lane, ct_sgpr, stmp):
    A(f"v_lshrrev_b32 v{t6}, 5, v{lane}", f"v_bfe_u32 v{v}, v{lane}, 2, 2", f"v_lshl_add_u32 v{v}, v{t6}, 2, v{v}", f"v_lshlrev_b32 v{v}, 7, v{v}",
      f"v_bfe_u32 v{t6}, v{lane}, 4, 1", f"v_lshlrev_b32 v{t6}, 1, v{t6}", f"v_bfe_u32 v{t7}, v{lane}, 1, 1", f"v_add_u32 v{t6}, v{t6}, v{t7}",
      f"s_lshl_b32 s{stmp}, s{ct_sgpr}, 2", f"v_add_u32 v{t6}, s{stmp}, v{t6}",
      f"v_bfe_u32 v{t7}, v{lane}, 3, 1", f"v_lshlrev_b32 v{t7}, 2, v{t7}", f"v_xor_b32 v{t6}, v{t6}, v{t7}", f"v_lshl_add_u32 v{v}, v{t6}, 4, v{v}",
      f"v_and_b32 v{t7}, 1, v{lane}", f"v_lshl_add_u32 v{v}, v{t7}, 3, v{v}")
def wrd2(dst, base, n): return [f"ds_read_b64_tr_b16 {vr(dst,2)}, v{base} offset:{(16*n)*128}", f"ds_read_b64_tr_b16 {vr(dst+2,2)}, v{base} offset:{(16*n+8)*128}"]

def phase1(A, ST, opt):
    lane=2; vX=3; vW=4; t0=5; t1=6; t2=7; g_t=8
    W_=f"s[{SRD_WS}:{SRD_WS+3}]"
    GX=232; GW=236
    PT=240; F0V=244; vF0=246; vPT=247
    PTF="sc1"
    if 'ptnt' in opt: PTF="sc1 nt"
    if 'ptplain' in opt: PTF=""
    PTC=int([o[3:] for o in opt if o.startswith('ptc')][0]) if any(o.startswith('ptc') for o in opt) else 5
    if 'nopt1' in opt: PTC=99
    STG=40960
    A(f"v_lshlrev_b32 v24, 4, v{lane}")
    LF='computefirst' not in opt
    if LF: A(f"s_cmp_lt_u32 s{sW}, 4", "s_cbranch_scc1 P1_compute")
    else: A(f"s_cmp_ge_u32 s{sW}, 4", "s_cbranch_scc1 P1_loader")
    i_c0=len(A.L)
    if LF: A("P1_compute:")
    n_save=ST.n; names_save=list(ST.names)
    def gate_loads():
        A(f"s_lshl_b32 s62, s{sJ}, 8", f"s_and_b32 s42, s{sW}, 3", "s_lshl_b32 s42, s42, 6", "s_add_u32 s62, s62, s42", f"s_lshl_b32 s42, s{sH}, 1", "s_add_u32 s62, s62, s42",
          f"s_lshr_b32 s42, s{sW}, 2", "s_add_u32 s62, s62, s42", "s_lshl_b32 s42, s62, 10",
          f"buffer_load_dwordx4 {vr(GX,4)}, v24, s[{SRD_A}:{SRD_A+3}], s42 offen", f"buffer_load_dwordx4 {vr(GW,4)}, v24, s[{SRD_C}:{SRD_C+3}], 0 offen")
    gate_loads()
    if 'tlbw' in opt:
        sh=int([o[4:] for o in opt if o.startswith('tlbs')][0]) if any(o.startswith('tlbs') for o in opt) else 16
        A(f"v_lshlrev_b32 v241, {sh}, v{lane}", f"s_lshl_b32 s42, s{sX}, 7", f"buffer_load_dword v242, v241, s[{SRD_B}:{SRD_B+3}], s42 offen sc1")
    A(f"s_and_b32 s34, s{sW}, 1", f"s_lshr_b32 s35, s{sW}, 1")
    A(f"s_lshl_b32 s42, s{sX}, 2", "s_lshl_b32 s43, s35, 1", "s_add_u32 s42, s42, s43", f"s_lshl_b32 s43, s{sBR}, 5", "s_add_u32 s42, s42, s43",
      "s_lshl_b32 s42, s42, 16", f"s_lshl_b32 s43, s{sRB}, 1", "s_add_u32 s43, s43, s34", "s_lshl_b32 s43, s43, 11", "s_add_u32 s56, s42, s43")
    A(f"v_and_b32 v{vF0}, 31, v{lane}", f"v_lshlrev_b32 v{vF0}, 2, v{vF0}", f"v_lshrrev_b32 v{t0}, 5, v{lane}", f"v_lshl_add_u32 v{vF0}, v{t0}, 10, v{vF0}",
      f"s_lshl_b32 s58, s{sX}, 7", f"s_add_u32 s58, s58, {FL+FL_F0}", f"s_getreg_b32 s{sXCC}, hwreg(HW_REG_XCC_ID, 0, 4)")
    aX=[10,11]; aW=[18,19]; m=20
    A(f"v_lshrrev_b32 v{g_t}, 4, v{lane}", f"v_and_b32 v{m}, 15, v{lane}", f"v_lshrrev_b32 v{t0}, 1, v{m}",
      "s_lshl_b32 s42, s34, 6", f"v_add_u32 v{t1}, s42, v{m}", f"v_lshlrev_b32 v{t1}, 7, v{t1}")
    for s_ in range(2):
        A(f"v_or_b32 v{t2}, {4*s_}, v{g_t}", f"v_xor_b32 v{t2}, v{t2}, v{t0}", f"v_lshl_add_u32 v{aX[s_]}, v{t2}, 4, v{t1}")
    A(f"v_bfe_u32 v{t0}, v{lane}, 2, 2", f"v_lshl_add_u32 v{t1}, v{g_t}, 3, v{t0}", f"v_lshlrev_b32 v{t1}, 7, v{t1}",
      f"v_and_b32 v21, 1, v{lane}", f"v_lshl_add_u32 v{t1}, v21, 3, v{t1}", f"v_add_u32 v{t1}, 16384, v{t1}",
      f"v_bfe_u32 v{t2}, v{lane}, 3, 1", f"v_bfe_u32 v21, v{lane}, 4, 1", f"v_lshl_or_b32 v{t2}, v21, 1, v{t2}", f"v_lshlrev_b32 v{t2}, 1, v{t2}",
      f"v_bfe_u32 v21, v{lane}, 1, 1", "s_lshl_b32 s42, s35, 2", "v_or_b32 v21, s42, v21")
    for hd in range(2):
        A(f"v_or_b32 v22, {2*hd}, v21", f"v_xor_b32 v22, v{t2}, v22", f"v_lshl_add_u32 v{aW[hd]}, v22, 4, v{t1}")
    def l2pf():
        if 'l2pf' in opt:
            C0=int([o[2:] for o in opt if o.startswith('c0')][0]) if any(o.startswith('c0') for o in opt) else 3
            NCH=8-C0
            vq=240
            A(f"s_lshl_b32 s42, s{sRB}, 7", f"s_lshl_b32 s43, s{sBR}, 6", "s_add_u32 s42, s42, s43", f"s_lshl_b32 s43, s{sW}, 4", "s_add_u32 s42, s42, s43",
              f"v_add_u32 v{vq}, s42, v{m}", f"v_lshlrev_b32 v{vq}, 10, v{vq}", f"v_lshl_add_u32 v{vq}, v{g_t}, 7, v{vq}", f"s_movk_i32 s43, {128*C0}",
              f"buffer_load_dword v{vq+2}, v{vq}, s[{SRD_A}:{SRD_A+3}], s43 offen sc1" if 'pfx' in opt else "s_nop 0")
            if NCH>4 and 'pfx' in opt: A(f"buffer_load_dword v{vq+3}, v{vq}, s[{SRD_A}:{SRD_A+3}], s43 offen offset:512 sc1")
            A(f"v_mul_u32_u24 v{vq}, 43, v{lane}", f"v_lshrrev_b32 v{vq}, 7, v{vq}", f"v_mul_u32_u24 v{vq+1}, 3, v{vq}", f"v_sub_u32 v{vq+1}, v{lane}, v{vq+1}",
              f"s_mul_i32 s42, s{sRB}, {4*NCH}", f"s_mul_i32 s43, s{sW}, {NCH}", "s_add_u32 s42, s42, s43", f"s_add_u32 s42, s42, {64*C0}",
              f"v_add_u32 v{vq}, s42, v{vq}", f"v_mul_u32_u24 v{vq}, 3072, v{vq}", f"v_lshl_add_u32 v{vq}, v{vq+1}, 10, v{vq}",
              f"v_cmp_gt_u32 vcc, {3*NCH}, v{lane}", f"v_mov_b32 v{vq+1}, 0x7ff00000", f"s_lshl_b32 s43, s{sX}, 7", f"v_cndmask_b32 v{vq}, v{vq+1}, v{vq}, vcc",
              f"buffer_load_dword v{vq+2}, v{vq}, s[{SRD_B}:{SRD_B+3}], s43 offen sc1{' nt' if 'wnt' in opt else ''}")
    if 'pfearly' in opt: l2pf()
    def T(hd,a,rt): return 32+48*hd+16*a+4*rt
    XF=[128,144]; WF=[[160,164,168],[172,176,180]]
    for i in range(96): A(f"v_mov_b32 v{32+i}, 0")
    def wrd(hd,a,s_):
        if 'p1noread' in opt: return ["s_nop 0","s_nop 0"]
        return [f"ds_read_b64_tr_b16 {vr(WF[hd][a]+2*rr,2)}, v{aW[hd]} offset:{a*8192+(32*s_+4*rr)*128}" for rr in range(2)]
    def xrd(s_,rt):
        if 'p1noread' in opt: return ["s_nop 0"]
        return [f"ds_read_b128 {vr(XF[s_]+4*rt,4)}, v{aX[s_]} offset:{rt*2048}"]
    def setA(s_): return wrd(0,0,s_)+xrd(s_,0)+xrd(s_,1)+wrd(0,1,s_)+xrd(s_,2)+xrd(s_,3)+wrd(0,2,s_)
    def setB(s_): return wrd(1,0,s_)+wrd(1,1,s_)+wrd(1,2,s_)
    def mf(hd,s_):
        x=XF[s_]; w=WF[hd]; L=[]
        for rt in (0,1): L.append(mfma16(T(hd,0,rt), w[0], x+4*rt, T(hd,0,rt)))
        for rt in (0,1): L.append(mfma16(T(hd,1,rt), w[1], x+4*rt, T(hd,1,rt)))
        for rt in (2,3): L.append(mfma16(T(hd,0,rt), w[0], x+4*rt, T(hd,0,rt)))
        for rt in (2,3): L.append(mfma16(T(hd,1,rt), w[1], x+4*rt, T(hd,1,rt)))
        for rt in range(4): L.append(mfma16(T(hd,2,rt), x+4*rt, w[2], T(hd,2,rt)))
        return L
    needA=[2,3,5,5,6,7,7,7,9,9,9,9]; needB=[1,1,3,3,3,3,3,3,5,5,5,5]
    def half(mfs, need, nold, new, pre=None, at=None):
        prev=-1; issued=0
        for k in range(12):
            if need[k]>prev:
                A(f"s_waitcnt lgkmcnt({(nold-1-need[k])+issued})"); prev=need[k]
            if pre and k==pre[0]: pre[1]()
            A(mfs[k])
            if k>=at and issued<len(new):
                n=1 if (len(new)-issued)<=(12-k-1) else 2
                n=min(n,len(new)-issued)
                A(new[issued:issued+n]); issued+=n
        assert issued==len(new)
    A("s_mov_b32 s49, 0", "s_mov_b32 s36, 0", f"s_mov_b32 s53, {STG}")
    A("s_barrier")
    A("s_waitcnt lgkmcnt(0)", f"s_mul_i32 s{sNONCE}, s3, 0x9e3779b1", f"s_add_u32 s{sNONCE}, s{sNONCE}, 0x7f4a7c15")
    ST.rt("p1_data")
    A(setA(0))
    if 'pfearly' not in opt: l2pf()
    if 'codepf' in opt:
        A(f"s_cmp_lg_u32 s{sW}, 1", "s_cbranch_scc1 L_nocpf", "s_getpc_b64 s[42:43]", "L_cpf_pc:", "s_add_u32 s42, s42, (P1_after-L_cpf_pc)", "s_addc_u32 s43, s43, 0",
          f"v_lshlrev_b32 v241, 7, v{lane}", "v_min_u32 v242, (L_done-P1_after-8192), v241")
        A("v_min_u32 v243, (L_done-P1_after), v241", "global_load_dword v240, v243, s[42:43]",
          "v_add_u32 v243, 8192, v242", "global_load_dword v240, v243, s[42:43]", "L_nocpf:")
    A(f"s_cmp_lg_u32 s{sW}, 0", "s_cbranch_scc1 L_f0_nf", f"s_add_u32 s42, s{sNONCE}, s{sXCC}", f"s_lshl_b32 s43, s{sI}, 2", "s_add_u32 s43, s43, s58",
      "v_mov_b32 v5, s42", "v_mov_b32 v6, 0", "s_mov_b64 exec, 1", f"buffer_store_dword v5, v6, {W_}, s43 offen sc1", "s_mov_b64 exec, -1", "L_f0_nf:")
    A(".p2align 3", "P1_loop:")
    half(mf(0,0), needA, 10, setB(0), at=2)
    half(mf(1,0), needB, 6, setA(1), at=1)
    half(mf(0,1), needA, 10, setB(1), at=2)
    def boundary():
        A("s_add_u32 s36, s36, 1", "s_cmp_eq_u32 s36, 4", f"s_cselect_b32 s52, {(-3*STG)&0xffffffff:#x}, s53", "s_cselect_b32 s36, 0, s36", "s_waitcnt lgkmcnt(0)")
        for r in aX+aW: A(f"v_add_u32 v{r}, s52, v{r}")
        A("s_cmp_eq_u32 s49, 4", "s_cbranch_scc1 P1_f0ld", "P1_f0back:", "s_barrier")
        if ST.probe and ST.probe.startswith('it'):
            A(f"s_cmp_eq_u32 s49, {ST.probe[2:]}", "s_cbranch_scc0 P1_noprobe", "s_memrealtime s[100:101]", "s_waitcnt lgkmcnt(0)", "P1_noprobe:")
        if 'p1it' in opt:
            A("s_memtime s[80:81]", "s_waitcnt lgkmcnt(0)")
            for k in range(7): A(f"s_mov_b32 s{64+8+k}, s{64+9+k}")
            A(f"s_mov_b32 s{64+15}, s80")
    half(mf(1,1), needB, 6, setA(0), pre=(3,boundary), at=3)
    A("s_add_u32 s49, s49, 1", "s_cmp_lt_u32 s49, 8", "s_cbranch_scc1 P1_loop")
    ST.rt("p1_loop")
    if 'p1it' in opt:
        ST.n=16; ST.flush(210); A("s_waitcnt vmcnt(0)", "s_endpgm")
    A("s_branch P1_after")
    A("P1_f0ld:", f"buffer_load_dword v{F0V}, v{vF0}, {W_}, s58 offen sc1", "s_branch P1_f0back")
    A("P1_after:")
    A("s_waitcnt vmcnt(0)", f"s_mov_b32 s42, {SPIN_MAX}")
    A("P1_chk:", f"v_subrev_u32 v{F0V+1}, s{sNONCE}, v{F0V}", f"v_cmp_gt_u32 vcc, 8, v{F0V+1}", "s_nop 1", "s_cmp_eq_u32 vcc_lo, -1", "s_cbranch_scc1 P1_chk_ok")
    A("s_sub_u32 s42, s42, 1", "s_cmp_eq_u32 s42, 0", "s_cbranch_scc1 P1_chk_ok", "s_sleep 1",
      f"buffer_load_dword v{F0V}, v{vF0}, {W_}, s58 offen sc1", "s_waitcnt vmcnt(0)", "s_branch P1_chk")
    A("P1_chk_ok:", f"v_cmp_eq_u32 vcc, s{sXCC}, v{F0V+1}", "s_nop 1", "s_cmp_eq_u32 vcc_lo, -1", f"s_cselect_b32 s{sMODE}, 1, 0")
    if 'forcesafe' in opt: A(f"s_mov_b32 s{sMODE}, 0")
    if 'fine3' in opt: ST.rt("mode")
    A(f"s_mov_b32 s44, {hex(f2u(QSCALE))}", "s_mov_b32 s48, s44", "s_mov_b32 s49, s44", "s_waitcnt lgkmcnt(0)")
    for hd in range(2):
        PK=128+24*hd
        TQ,TK,TV=T(hd,0,0),T(hd,1,0),T(hd,2,0)
        for t in range(2):
            for i in range(4): A(f"v_cvt_pk_bf16_f32 v{PK+4*t+i}, v{TK+8*t+2*i}, v{TK+8*t+2*i+1}")
        for t in range(2):
            for i in range(4): A(f"v_cvt_pk_bf16_f32 v{PK+8+4*t+i}, v{TV+8*t+2*i}, v{TV+8*t+2*i+1}")
        if 'nopkmul' in opt:
            for i in range(16): A(f"v_mul_f32 v{TQ+i}, s44, v{TQ+i}")
        else:
            for i in range(8): A(f"v_pk_mul_f32 v[{TQ+2*i}:{TQ+2*i+1}], v[{TQ+2*i}:{TQ+2*i+1}], s[48:49]")
        for t in range(2): A(f"v_permlane16_swap_b32 v{PK+4*t}, v{PK+4*t+2}", f"v_permlane16_swap_b32 v{PK+4*t+1}, v{PK+4*t+3}")
        for t in range(2):
            for i in range(4): A(f"v_cvt_pk_bf16_f32 v{PK+16+4*t+i}, v{TQ+8*t+2*i}, v{TQ+8*t+2*i+1}")
        for t in range(2): A(f"v_permlane32_swap_b32 v{PK+8+4*t}, v{PK+8+4*t+2}", f"v_permlane32_swap_b32 v{PK+8+4*t+1}, v{PK+8+4*t+3}")
        for t in range(2): A(f"v_permlane16_swap_b32 v{PK+16+4*t}, v{PK+16+4*t+2}", f"v_permlane16_swap_b32 v{PK+16+4*t+1}, v{PK+16+4*t+3}")
        A(f"s_add_u32 s46, s56, {hd*65536}", f"s_add_u32 s45, s46, {KF}", f"s_add_u32 s47, s46, {VF}")
        A(f"s_cmp_eq_u32 s{sMODE}, 0", f"s_cbranch_scc1 P1_st_safe{hd}")
        def sts(sc):
            A(f"buffer_store_dwordx4 {vr(PK,4)}, v24, {W_}, s45 offen{sc}", f"buffer_store_dwordx4 {vr(PK+4,4)}, v24, {W_}, s45 offen offset:1024{sc}")
            A(f"buffer_store_dwordx4 {vr(PK+8,4)}, v24, {W_}, s47 offen{sc}", f"buffer_store_dwordx4 {vr(PK+12,4)}, v24, {W_}, s47 offen offset:1024{sc}")
            A(f"buffer_store_dwordx4 {vr(PK+16,4)}, v24, {W_}, s46 offen{sc}", f"buffer_store_dwordx4 {vr(PK+20,4)}, v24, {W_}, s46 offen offset:1024{sc}")
        sts("")
        with ool(A):
            A(f"P1_st_safe{hd}:"); sts(" sc1"); A("s_nop 1", f"s_branch P1_st_done{hd}")
        A(f"P1_st_done{hd}:")
    if not LF: A("s_branch P1_join")
    i_l0=len(A.L)
    A("P1_loader:")
    n_end=ST.n; names_end=list(ST.names); ST.n=n_save; ST.names=list(names_save)
    A(f"s_and_b32 s34, s{sW}, 3")
    A(f"v_lshrrev_b32 v{t0}, 3, v{lane}", f"v_and_b32 v{t2}, 7, v{lane}", f"v_lshrrev_b32 v{t1}, 4, v{lane}", f"v_xor_b32 v{t1}, v{t1}, v{t2}",
      f"s_lshl_b32 s42, s{sRB}, 7", "s_lshl_b32 s43, s34, 5", "s_add_u32 s42, s42, s43", f"v_add_u32 v{vX}, s42, v{t0}", f"v_lshlrev_b32 v{vX}, 10, v{vX}",
      f"v_xor_b32 v9, 4, v{t1}", f"v_lshl_add_u32 v9, v9, 4, v{vX}", f"v_add_u32 v9, 8192, v9", f"v_lshl_add_u32 v{vX}, v{t1}, 4, v{vX}")
    A(f"v_add_u32 v10, 0x4000, v{vX}", "v_add_u32 v11, 0x4000, v9")
    A(f"v_bfe_u32 v{t1}, v{lane}, 4, 1", f"v_lshlrev_b32 v{t1}, 1, v{t1}", f"v_xor_b32 v{t1}, v{t1}, v{t2}",
      "s_lshl_b32 s43, s34, 4", f"v_add_u32 v{t0}, s43, v{t0}", f"v_mul_u32_u24 v{vW}, 3072, v{t0}", *([f"s_add_u32 s45, s{sX}, 2", "s_and_b32 s45, s45, 7", "s_lshl_b32 s45, s45, 7"] if 'wcol2' in opt else [f"s_lshl_b32 s45, s{sX}, 7"]), f"v_add_u32 v{vW}, s45, v{vW}",
      f"v_xor_b32 v12, 4, v{t1}", f"v_lshl_add_u32 v12, v12, 4, v{vW}", f"v_add_u32 v12, {8*3072}, v12", f"v_lshl_add_u32 v{vW}, v{t1}, 4, v{vW}")
    def dmas():
        L=[]
        xs=[vX,9,10,11]
        for ii in range(4):
            L.append([f"s_add_u32 m0, s46, {ii*1024}", "NOP", f"buffer_load_dwordx4 v{xs[ii]}, s[{SRD_A}:{SRD_A+3}], s47 offen{' nt' if 'xnt' in opt else ''} lds"])
        for seg in range(3):
            for ii in range(2):
                L.append([f"s_add_u32 m0, s57, {16384+seg*8192+ii*1024-seg*1024}", "NOP", f"buffer_load_dwordx4 v{[vW,12][ii]}, s[{SRD_B}:{SRD_B+3}], s48 offen offset:{seg*1024}{' nt' if 'wnt' in opt else ''} lds"])
        return L
    def issue():
        A("s_and_b32 s51, s50, 3", f"s_mul_i32 s51, s51, {STG}", "s_lshl_b32 s46, s34, 12", "s_add_u32 s46, s46, s51", "s_lshl_b32 s57, s34, 11", "s_add_u32 s57, s57, s51",
          *(["s_add_u32 s59, s50, s60", "s_and_b32 s59, s59, 7", "s_lshl_b32 s47, s59, 7", f"s_mul_i32 s48, s59, {64*3072}"] if True else ["s_lshl_b32 s47, s50, 7", f"s_mul_i32 s48, s50, {64*3072}"]))
        if 'p1nodma' not in opt:
            for g in dmas(): A([("s_nop 0" if x=="NOP" else x) for x in g])
        A("s_add_u32 s50, s50, 1")
    if 'krot1' in opt: A(f"s_and_b32 s60, s{sRB}, 7")
    elif 'krot2' in opt: A(f"s_lshl_b32 s60, s{sBR}, 2", f"s_add_u32 s60, s60, s{sRB}")
    elif 'krot3' in opt: A(f"s_lshr_b32 s60, s{sRB}, 1", f"s_lshl_b32 s59, s{sBR}, 2", "s_add_u32 s60, s60, s59")
    elif 'krot4' in opt: A(f"s_lshr_b32 s60, s{sRB}, 1", f"s_add_u32 s60, s60, s{sX}")
    elif 'krot0' in opt: A("s_mov_b32 s60, 0")
    elif 'krotrb' in opt: A(f"s_lshr_b32 s60, s{sRB}, 1")
    else: A(f"s_lshr_b32 s60, s{sRB}, 1", f"s_add_u32 s60, s60, s{sX}")
    A("s_mov_b32 s50, 0", "s_mov_b32 s49, 0")
    ST.rt("l_pre")
    A("P1_lpro:")
    issue()
    UP=2 if 'up2' in opt else (4 if 'up4' in opt else 3)
    A(f"s_cmp_lt_u32 s50, {UP}", "s_cbranch_scc1 P1_lpro")
    gate_loads()
    A(f"s_waitcnt vmcnt({10*(UP-1)+2})", "s_barrier")
    A("s_waitcnt lgkmcnt(0)", f"s_mul_i32 s{sNONCE}, s3, 0x9e3779b1", f"s_add_u32 s{sNONCE}, s{sNONCE}, 0x7f4a7c15")
    ST.rt("p1_data")
    A(f"v_lshrrev_b32 v{t0}, 4, v{lane}", f"v_lshlrev_b32 v{vPT}, 22, v{t0}", f"v_bfe_u32 v{t0}, v{lane}, 3, 1", f"v_lshl_add_u32 v{vPT}, v{t0}, 10, v{vPT}",
      f"v_and_b32 v{t0}, 7, v{lane}", f"v_lshl_add_u32 v{vPT}, v{t0}, 7, v{vPT}", f"v_cmp_gt_u32 vcc, 48, v{lane}", f"v_mov_b32 v{t0}, 0x7ff00000", "s_nop 0",
      f"v_cndmask_b32 v{vPT}, v{t0}, v{vPT}, vcc")
    A("s_and_b32 s42, s34, 1", "s_lshr_b32 s43, s34, 1",
      f"s_lshl_b32 s44, s{sX}, 2", "s_lshl_b32 s43, s43, 1", "s_add_u32 s44, s44, s43", f"s_lshl_b32 s43, s{sBR}, 5", "s_add_u32 s44, s44, s43", "s_lshl_b32 s44, s44, 16",
      f"s_lshl_b32 s43, s{sRB}, 1", "s_add_u32 s43, s43, s42", "s_lshl_b32 s43, s43, 11", "s_add_u32 s56, s44, s43")
    issue_lbl="P1_lloop"
    if UP<4:
        A("P1_lpro2:")
        issue()
        A("s_cmp_lt_u32 s50, 4", "s_cbranch_scc1 P1_lpro2")
    A("P1_lloop:")
    A("s_cmp_lt_u32 s49, 5", "s_cbranch_scc0 P1_ltail", "s_waitcnt vmcnt(20)", "s_branch P1_lbar")
    A("P1_ltail:", "s_cmp_eq_u32 s49, 5", "s_cbranch_scc0 P1_ltail2", "s_waitcnt vmcnt(10)", "s_branch P1_lbar")
    A("P1_ltail2:", "s_cmp_eq_u32 s49, 6", "s_cbranch_scc0 P1_lbar", f"s_waitcnt vmcnt({2 if PTC==5 else 0})")
    A("P1_lbar:", "s_barrier")
    if ST.probe and ST.probe.startswith('it'):
        A(f"s_cmp_eq_u32 s49, {ST.probe[2:]}", "s_cbranch_scc0 P1_lnoprobe", "s_memrealtime s[100:101]", "s_waitcnt lgkmcnt(0)", "P1_lnoprobe:")
    A("s_cmp_lt_u32 s50, 8", "s_cbranch_scc0 P1_lnoiss")
    issue()
    A("P1_lnoiss:")
    A(f"s_cmp_eq_u32 s49, {PTC}", "s_cbranch_scc0 P1_lnopt", "s_add_u32 s42, s56, 65536",
      f"buffer_load_dword v{PT}, v{vPT}, {W_}, s56 offen {PTF}", f"buffer_load_dword v{PT+1}, v{vPT}, {W_}, s42 offen {PTF}", "P1_lnopt:")
    A("s_add_u32 s49, s49, 1", "s_cmp_lt_u32 s49, 8", "s_cbranch_scc1 P1_lloop")
    ST.rt("p1_loop")
    if 'p1it' in opt:
        A("s_waitcnt vmcnt(0)", "s_endpgm")
    if 'fine3' in opt: ST.rt("mode")
    A(f"s_mov_b32 s{sMODE}, 0")
    if LF:
        A("s_branch P1_join")
        A.L[i_c0:]=A.L[i_l0:]+A.L[i_c0:i_l0]
    A("P1_join:", "s_nop 1")
    assert ST.n==n_end or 'p1it' in opt
    if 'fine3' in opt: ST.rt("st_iss")

def gate(A):
    W_=f"s[{SRD_WS}:{SRD_WS+3}]"
    GX=232; GW=236; GA=250
    A(f"v_mov_b32 v{GA}, 0")
    for i in range(4): A(f"v_dot2_f32_bf16 v{GA}, v{GX+i}, v{GW+i}, v{GA}")
    A("s_nop 2")
    for ror in (8,4,2,1):
        A(f"v_add_f32_dpp v{GA}, v{GA}, v{GA} row_ror:{ror} row_mask:0xf bank_mask:0xf", "s_nop 1")
    A(f"v_mov_b32 v{GA+1}, v{GA}", "s_nop 1", f"v_permlane16_swap_b32 v{GA+1}, v{GA}", "s_nop 1", f"v_add_f32 v{GA}, v{GA}, v{GA+1}",
      f"v_mov_b32 v{GA+1}, v{GA}", "s_nop 1", f"v_permlane32_swap_b32 v{GA+1}, v{GA}", "s_nop 1", f"v_add_f32 v{GA}, v{GA}, v{GA+1}")
    A(f"v_mul_f32 v{GA}, {hex(f2u(-1.4426950408889634))}, v{GA}", f"v_exp_f32 v{GA}, v{GA}", "s_nop 0", f"v_add_f32 v{GA}, 1.0, v{GA}", f"v_rcp_f32 v{GA}, v{GA}",
      "s_lshl_b32 s62, s62, 2", f"s_add_u32 s62, s62, {GOFF}", f"v_mov_b32 v{GA+1}, 0")
def gate_store(A):
    A("s_mov_b64 exec, 1", f"buffer_store_dword v250, v251, s[{SRD_WS}:{SRD_WS+3}], s62 offen sc1", "s_mov_b64 exec, -1")

def publish1(A, ST, opt):
    if 'fine3' in opt:
        A("s_waitcnt vmcnt(0)"); ST.rt("vm0")
    A("s_waitcnt vmcnt(0)", "s_barrier")
    if 'fine3' in opt: ST.rt("bar1")
    ST.rt("p1_stored")
    A(f"s_lshl_b32 s42, s{sX}, 7", f"s_lshl_b32 s43, s{sI}, 2", "s_add_u32 s43, s43, s42", f"s_add_u32 s43, s43, {FL+FL_F1}", f"s_add_u32 s38, s42, {FL+FL_F1}")
    A(f"s_cmp_eq_u32 s{sMODE}, 0", "s_cbranch_scc1 L_f1_safe")
    setflag(A,"f1f",43,5,"")
    A("s_branch L_f1_done", "L_f1_safe:")
    setflag(A,"f1s",43,5," sc1")
    A("L_f1_done:")
def sync1(A, ST, opt):
    if 'fine3' in opt: ST.rt("prolog")
    poll(A,"p1",38,2,3,stride=F1STR)
    A("s_barrier")
    ST.rt("p1_flags")

LANE=1
QA0=4; QA1=8; QB=12
OA0=16; OA1=32
S0=48; S1=64
P=80
KB_=88; VB_=210
MF=140; MD=156; CB=64
WBF=[96,100,104,108,120,124,128,132,136,192,196,200,204,228,232,236]
vKa=172; vVa=173
vL16=174; vT=175; vT2=176; vT3=177; vNEGM=178; vM=179; vKs=180; vVs=181; vX0=182; vPK=184
VL=188
LDS_KA=0; LDS_VA=65536; LDS_KB=131072; LDS_VB=147456
def exps(S): return [f"v_exp_f32 v{S+i}, v{S+i}" for i in range(16)]
def cvts(S): return [f"v_cvt_pk_bf16_f32 v{P+i}, v{S+2*i}, v{S+2*i+1}" for i in range(8)]
MK=[f"s_mov_b64 exec, s[{sMASK}:{sMASK+1}]"]; UM=["s_mov_b64 exec, -1"]
def unit(A, Sc, QK, PV1, ld, wK, wV, PV0):
    e=exps(Sc); c=cvts(Sc)
    A(wK, QK)
    A(e[0:4], c[0], e[4:6], c[1])
    A(PV1, ld)
    A(e[6:8], c[2], e[8:10], c[3], e[10:12])
    A(wV, PV0)
    A(e[12:13], c[4], e[13:15], c[5], e[15:16], c[6], c[7])
def slow_pass(A, tag, Q, O, pass1, far, diag, n):
    A(f"v_mov_b32 v{vX0}, v{vKs}", f"v_mov_b32 v{vX0+1}, v{vVs}", "s_mov_b32 s60, 0")
    if pass1: A(f"v_mov_b32 v{vM}, {hex(NEG)}", f"v_mov_b32 v{vNEGM}, 0")
    else:
        for i in range(16): A(f"v_mov_b32 v{O+i}, 0")
    A(f"L_{tag}_loop:")
    A(f"ds_read_b128 {vr(KB_,4)}, v{vX0}")
    if not pass1: A(MK, f"ds_read_b128 {vr(VB_,4)}, v{vX0+1}", f"ds_read_b128 {vr(VB_+4,4)}, v{vX0+1} offset:512", UM)
    A("s_cmp_eq_u32 s60, 0", f"s_cselect_b32 s61, s{far}, 0", "s_cmp_lg_u32 s61, 0", f"s_cbranch_scc1 L_{tag}_far")
    A(f"s_add_u32 s61, s60, 1", f"s_cmp_eq_u32 s61, s{n}", f"s_cselect_b32 s61, s{diag}, 0", "s_cmp_lg_u32 s61, 0", f"s_cbranch_scc1 L_{tag}_diag")
    for i in range(16): A(f"v_mov_b32 v{CB+i}, v{vNEGM}")
    A(f"s_branch L_{tag}_go")
    A(f"L_{tag}_far:")
    for i in range(16): A(f"v_add_f32 v{CB+i}, v{MF+i}, v{vNEGM}")
    A(f"s_branch L_{tag}_go")
    A(f"L_{tag}_diag:")
    for i in range(16): A(f"v_add_f32 v{CB+i}, v{MD+i}, v{vNEGM}")
    A(f"L_{tag}_go:")
    A("s_waitcnt lgkmcnt(0)", "s_nop 0")
    A(mfma32(S0, KB_, Q, CB))
    A("s_nop 7","s_nop 3")
    if pass1:
        for i in range(16): A(f"v_max_f32 v{vM}, v{vM}, v{S0+i}")
    else:
        A(exps(S0), "s_nop 0", cvts(S0), "s_nop 1")
        A(mfma32(O, VB_, P, O), mfma32(O, VB_+4, P+4, O))
    A(f"v_add_u32 v{vX0}, 1024, v{vX0}", f"v_add_u32 v{vX0+1}, 1024, v{vX0+1}")
    A("s_add_u32 s60, s60, 1", f"s_cmp_lt_u32 s60, s{n}", f"s_cbranch_scc1 L_{tag}_loop")
    if pass1:
        A(f"v_mov_b32 v{vT}, v{vM}", "s_nop 1", f"v_permlane32_swap_b32 v{vT}, v{vM}", "s_nop 1",
          f"v_max_f32 v{vM}, v{vM}, v{vT}", f"v_sub_f32 v{vNEGM}, 0, v{vM}")
    else: A("s_nop 7","s_nop 3")
def bcast_l(A,O):
    A(f"v_mov_b32 v{vT}, v{O+8}", "s_nop 1", f"v_permlane32_swap_b32 v{vT}, v{O+8}", "s_nop 1", f"v_add_f32 v{O+8}, v{O+8}, v{vT}")
def check_range(A, O, slowl):
    bcast_l(A,O)
    A(f"v_mov_b32 v{vT}, v{O+8}")
    for i in range(8): A(f"v_fma_f32 v{vT}, v{O+i}, 0, v{vT}")
    A(f"s_mov_b32 s44, {hex(LLO)}", f"s_mov_b32 s45, {hex(LHI)}")
    A(f"v_cmp_le_f32 s[46:47], s44, v{vT}", f"v_cmp_ge_f32 s[48:49], s45, v{vT}", "s_nop 1",
      "s_and_b64 s[46:47], s[46:47], s[48:49]", "s_cmp_eq_u64 s[46:47], -1", f"s_cbranch_scc0 {slowl}")
def finalize(A, O, soff):
    A(f"v_rcp_f32 v{vT}, v{O+8}", "s_nop 0")
    for i in range(8): A(f"v_mul_f32 v{O+i}, v{O+i}, v{vT}")
    for i in range(4): A(f"v_cvt_pk_bf16_f32 v{vPK+i}, v{O+2*i}, v{O+2*i+1}")
    A(f"buffer_store_dwordx4 {vr(vPK,4)}, v{vL16}, s[{SRD_WS}:{SRD_WS+3}], s{soff} offen sc1")

def early2(A):
    A(f"v_and_b32 v{LANE}, 63, v0")
    A(f"v_lshlrev_b32 v{vL16}, 4, v{LANE}", f"v_and_b32 v{vT}, 31, v{LANE}")
    A(f"s_mov_b32 s{sMASK}, 0x0000ffff", f"s_mov_b32 s{sMASK+1}, 0x0000ffff")
    A(f"v_cmp_eq_u32 vcc, 16, v{vT}", f"v_mov_b32 v{vX0}, 0x3f803f80", "s_nop 0", f"v_cndmask_b32 v{vX0+1}, 0, v{vX0}, vcc")
    for i in range(16): A(f"v_mov_b32 v{VB_+i}, v{vX0+1}")
    hh=vT3; MS=[82,90,96,98]
    A(f"v_lshrrev_b32 v{hh}, 5, v{LANE}", f"v_lshlrev_b32 v{vT2}, 2, v{hh}", f"v_sub_u32 v{vT2}, v{vT}, v{vT2}")
    A(f"v_mov_b32 v{vX0}, {hex(NEG)}")
    for g in range(4):
        for k in range(4): A(f"v_cmp_gt_i32 s[{MS[k]}:{MS[k]+1}], {8*g+k}, v{vT2}")
        A("s_nop 0")
        for k in range(4):
            i=4*g+k
            A(f"v_cndmask_b32 v{MF+i}, v{vX0}, 0, s[{MS[k]}:{MS[k]+1}]", f"v_cndmask_b32 v{MD+i}, 0, v{vX0}, s[{MS[k]}:{MS[k]+1}]")
    A(f"v_and_b32 v{vT}, 15, v{LANE}", f"v_lshlrev_b32 v{vT}, 4, v{vT}", f"v_lshl_add_u32 v{VL}, v{hh}, 8, v{vT}")

def phase2(A, ST, opt):
    W_=f"s[{SRD_WS}:{SRD_WS+3}]"
    SC="" if 'plainld' in opt else " sc1"
    early2(A)
    A(f"s_and_b32 s15, s{sW}, 3", f"s_lshr_b32 s16, s{sW}, 2")
    A("s_lshl_b32 s17, s15, 1", "s_add_u32 s17, s17, s16",
      f"s_lshl_b32 s18, s{sJ}, 3", "s_add_u32 s19, s18, s17",
      f"s_lshl_b32 s20, s{sH}, 16", f"s_add_u32 s21, s20, {32*65536}")
    A("s_lshl_b32 s43, s17, 10", f"s_add_u32 s44, s43, {LDS_KB}", f"v_add_u32 v{vKa}, s44, v{vL16}",
      f"s_add_u32 s44, s43, {LDS_VB}", f"v_add_u32 v{vVa}, s44, v{VL}")
    A("s_lshl_b32 s32, s19, 16", f"s_lshl_b32 s33, s{sH}, 10", "s_add_u32 s32, s32, s33", f"s_add_u32 s32, s32, {OF}", "s_add_u32 s33, s32, 32768")
    A("s_lshl_b32 s22, s19, 10", "s_add_u32 s22, s22, s21", f"s_add_u32 s22, s22, {QF}")
    A("s_lshl_b32 s23, s19, 10", "s_add_u32 s23, s23, s20", f"s_add_u32 s23, s23, {QF}", "s_xor_b32 s14, s19, 1", "s_lshl_b32 s14, s14, 10", "s_add_u32 s14, s14, s20", f"s_add_u32 s14, s14, {QF}")
    for ii in range(2):
        A(f"s_add_u32 s43, s{sW}, {8*ii}", "s_add_u32 s44, s18, s43", "s_sub_u32 s44, s44, 8", "s_max_i32 s44, s44, 0",
          "s_lshl_b32 s44, s44, 10", "s_add_u32 s44, s44, s21", f"s_add_u32 s{54+ii}, s44, {KF}")
    A(f"s_lshl_b32 s56, s{sW}, 10", "s_add_u32 s57, s56, s20", f"s_add_u32 s57, s57, {KF}")
    publish1(A,ST,opt)
    OBz=OA0
    for i in range(16): A(f"v_mov_b32 v{OBz+i}, 0")
    for i in range(4): A(f"v_mov_b32 v{P+4+i}, 0")
    gate(A)
    sync1(A,ST,opt)
    A(f"buffer_load_dwordx4 {vr(QB,4)}, v{vL16}, {W_}, s22 offen{SC}")
    if 'fine2' in opt:
        A("s_waitcnt vmcnt(0)"); ST.rt("qb_landed")
    for ii in range(2):
        A(f"s_add_u32 m0, s56, {LDS_KB+8192*ii}", f"s_add_u32 s45, s{54+ii}, {VF-KF}", f"buffer_load_dwordx4 v{vL16}, {W_}, s{54+ii} offen{SC} lds")
        A(f"s_add_u32 m0, s56, {LDS_VB+8192*ii}", "s_nop 0", f"buffer_load_dwordx4 v{vL16}, {W_}, s45 offen{SC} lds")
    A(f"buffer_load_dwordx4 {vr(QA0,4)}, v{vL16}, {W_}, s23 offen{SC}", f"buffer_load_dwordx4 {vr(QA1,4)}, v{vL16}, {W_}, s14 offen{SC}")
    def adma(m):
        return [f"s_add_u32 m0, s56, {LDS_KA+m*8192}", f"s_add_u32 s45, s57, {m*8192}", f"buffer_load_dwordx4 v{vL16}, {W_}, s45 offen{SC} lds",
                f"s_add_u32 m0, s56, {LDS_VA+m*8192}", f"s_add_u32 s45, s57, {VF-KF+m*8192}", f"buffer_load_dwordx4 v{vL16}, {W_}, s45 offen{SC} lds"]
    global ADMA; ADMA=adma
    A("s_waitcnt vmcnt(2)")
    OB=OA0
    if 'fine3' in opt: ST.rt("own_b")
    A("s_barrier")
    ST.rt("b_data")
    if 'fine3' in opt:
        ST.flush(2); A("s_waitcnt vmcnt(0)", "s_endpgm"); ST.on=False
    def ldK(t,base): return [f"ds_read_b128 {vr(KB_+4*(t%2),4)}, v{base} offset:{t*1024}"]
    def ldV(t,base): return MK+[f"ds_read_b128 {vr(VB_+8*(t%2),4)}, v{base} offset:{t*1024}", f"ds_read_b128 {vr(VB_+8*(t%2)+4,4)}, v{base} offset:{t*1024+512}"]+UM
    NB=9
    A("s_mov_b32 s51, 1", f"s_cmp_eq_u32 s{sJ}, 0", "s_cselect_b32 s50, 0, 1", "s_sub_u32 s53, 8, s17", "s_cselect_b32 s53, s53, 0")
    A.L.pop()
    A(f"s_cmp_eq_u32 s{sJ}, 0", "s_cselect_b32 s53, s53, 0")
    A("s_sub_u32 s52, 9, s53")
    A("s_lshl_b32 s43, s53, 10", f"v_add_u32 v{vKs}, s43, v{vKa}", f"v_add_u32 v{vVs}, s43, v{vVa}")
    def bpro(s0):
        A(f"B_pro{s0}:")
        Sc=S0 if s0%2==0 else S1
        C = MF if s0==0 else (MD if s0==NB-1 else "0")
        A(ldK(s0,vKa), "s_waitcnt lgkmcnt(0)", mfma32(Sc, KB_+4*(s0%2), QB, C))
        if s0==0:
            A(ldV(0,vVa), ldK(1,vKa))
        else:
            if s0+1<NB: A(ldK(s0+1,vKa))
            A(ldV(s0,vVa))
        A("s_nop 7","s_nop 3")
        if s0!=0: A(f"s_branch B_step{s0}")
    A("s_cmp_lg_u32 s53, 0", "s_cbranch_scc1 B_jump")
    with ool(A):
        A("B_jump:", "s_mov_b32 s58, s56", "s_mov_b32 s59, s57", "s_mov_b32 s60, s53", "B_skipdma:")
        A(f"s_add_u32 m0, s58, {LDS_KA}", f"s_add_u32 s45, s59, {VF-KF}", f"buffer_load_dwordx4 v{vL16}, {W_}, s59 offen{SC} lds",
          f"s_add_u32 m0, s58, {LDS_VA}", "s_add_u32 s58, s58, 8192", f"buffer_load_dwordx4 v{vL16}, {W_}, s45 offen{SC} lds",
          "s_add_u32 s59, s59, 8192", "s_sub_u32 s60, s60, 1", "s_cmp_lg_u32 s60, 0", "s_cbranch_scc1 B_skipdma")
        for s0 in range(1,NB-1):
            A(f"s_cmp_eq_u32 s53, {s0}", f"s_cbranch_scc1 B_pro{s0}")
        for s0 in range(NB-1,0,-1): bpro(s0)
    bpro(0)
    for t in range(NB):
        A(f"B_step{t}:")
        if 'nobprio' not in opt and t in (0,3,5,7): A(f"s_setprio {dict(((0,3),(3,2),(5,1),(7,0)))[t]}")
        Sc=S0 if t%2==0 else S1; Sn=S1 if t%2==0 else S0
        if t+1<NB:
            QK=[mfma32(Sn, KB_+4*((t+1)%2), QB, MD if t+1==NB-1 else "0")]
            wK=["s_waitcnt lgkmcnt(0)"] if t==0 else ["s_waitcnt lgkmcnt(2)"]
        else: QK=[]; wK=[]
        PV1=[mfma32(OB, VB_+8*((t-1)%2)+4, P+4, OB)] if t>0 else []
        ld=[]
        if t+2<NB: ld+=ldK(t+2,vKa)
        if t+1<NB: ld+=ldV(t+1,vVa)
        nld=(1 if t+2<NB else 0)+(2 if t+1<NB else 0)
        wV=[f"s_waitcnt lgkmcnt({nld})"]
        PV0=[mfma32(OB, VB_+8*(t%2), P, OB)]
        if t<8: ld=ld+ADMA(t)
        unit(A,Sc,QK,PV1,ld,wK,wV,PV0)
    A("s_nop 1", mfma32(OB, VB_+8*((NB-1)%2)+4, P+4, OB))
    A("s_nop 7","s_nop 3")
    check_range(A,OB,"B_slow")
    with ool(A):
        A("B_slow:")
        slow_pass(A,"bf1",QB,OB,True,50,51,52)
        slow_pass(A,"bf2",QB,OB,False,50,51,52)
        bcast_l(A,OB)
        A("s_branch B_ok")
    A("B_ok:")
    finalize(A,OB,33)
    ST.rt("b_done")
    A("s_waitcnt vmcnt(1)", "s_barrier")
    ST.rt("a_start")
    gate_store(A)
    if 'dup' in opt: A("s_mov_b32 s54, 2", "A_dup:")
    A("s_lshl_b32 s43, s16, 15", f"v_add_u32 v{vKa}, s43, v{vL16}", f"s_add_u32 s44, s43, {LDS_VA}", f"v_add_u32 v{vVa}, s44, v{VL}")
    NOMASK='novmask' in opt
    vStep=119
    if NOMASK:
        CREG=LDS_KB+22528
        t0,t1,t2,t3=120,121,122,123
        A(f"v_mul_u32_u24 v{t0}, 43, v{LANE}", f"v_lshrrev_b32 v{t0}, 7, v{t0}",
          f"v_mul_u32_u24 v{t1}, 3, v{t0}", f"v_sub_u32 v{t1}, v{LANE}, v{t1}",
          f"v_lshlrev_b32 v{t2}, 4, v{t1}", f"v_cmp_eq_u32 vcc, 2, v{t1}", f"v_lshlrev_b32 v{t0}, 9, v{t0}", "s_nop 0", f"v_cndmask_b32 v{t2}, v{t2}, 64, vcc",
          f"v_add_u32 v{t0}, v{t0}, v{t2}", f"v_add_u32 v{t0}, {CREG}, v{t0}", f"v_cmp_eq_u32 vcc, 0, v{t1}", f"v_mov_b32 v{t3}, 0x3f803f80", "s_nop 0",
          f"v_cndmask_b32 v124, 0, v{t3}, vcc", "v_mov_b32 v125, v124", "v_mov_b32 v126, v124", "v_mov_b32 v127, v124",
          f"v_cmp_gt_u32 vcc, 54, v{LANE}", "s_and_saveexec_b64 s[44:45], vcc", f"ds_write_b128 v{t0}, v[124:127]", "s_mov_b64 exec, s[44:45]")
        A(f"v_and_b32 v{t0}, 31, v{LANE}", f"v_mov_b32 v{t1}, {CREG+16}", f"v_subrev_u32 v{t2}, 20, v{t0}", f"v_cmp_gt_u32 vcc, 8, v{t2}", f"v_mov_b32 v{t3}, {CREG+64}", "s_nop 0",
          f"v_cndmask_b32 v{t1}, v{t1}, v{t3}, vcc", f"v_cmp_eq_u32 vcc, 16, v{t0}", f"v_mov_b32 v{t3}, {CREG}", "s_nop 0", f"v_cndmask_b32 v{t1}, v{t1}, v{t3}, vcc",
          f"v_cmp_gt_u32 vcc, 16, v{t0}", f"v_mov_b32 v{t3}, 8192", "s_nop 0", f"v_cndmask_b32 v{vVa}, v{t1}, v{vVa}, vcc", f"v_cndmask_b32 v{vStep}, 0, v{t3}, vcc", "s_waitcnt lgkmcnt(0)")
    def ldVA(t,base):
        if not NOMASK: return ldV(t,base)
        return [f"ds_read_b128 {vr(VB_+8*(t%2),4)}, v{base} offset:{t*1024}", f"ds_read_b128 {vr(VB_+8*(t%2)+4,4)}, v{base} offset:{t*1024+512}"]
    for i in range(32): A(f"v_mov_b32 v{OA0+i}, 0")
    for i in range(4): A(f"v_mov_b32 v{P+4+i}, 0")
    Qr=[QA0,QA1]; Or=[OA0,OA1]
    A(ldK(0,vKa), ldVA(0,vVa), "s_waitcnt lgkmcnt(2)", mfma32(S0, KB_, QA0, "0"))
    vWs=190; vWr=191
    srd(A,SRD_A,pWOB,512*512*2)
    A(f"v_lshrrev_b32 v{vWs}, 2, v{LANE}", f"v_lshlrev_b32 v{vWs}, 10, v{vWs}", f"v_and_b32 v{vT}, 3, v{LANE}", f"v_lshl_add_u32 v{vWs}, v{vT}, 4, v{vWs}",
      f"s_lshr_b32 s42, s{sI}, 2", "s_lshl_b32 s42, s42, 7", f"s_bfe_u32 s43, s{sW}, 0x10001", "s_lshl_b32 s43, s43, 6", "s_add_u32 s42, s42, s43", f"v_add_u32 v{vWs}, s42, v{vWs}",
      f"s_lshr_b32 s82, s{sW}, 2", "s_lshl_b32 s82, s82, 18",
      f"s_lshl_b32 s83, s{sW}, 12", f"s_add_u32 s83, s83, {LDS_KB}")
    A(f"v_lshrrev_b32 v{vT}, 5, v{LANE}", f"v_bfe_u32 v{vWr}, v{LANE}, 2, 2", f"v_lshl_add_u32 v{vWr}, v{vT}, 2, v{vWr}", f"v_lshlrev_b32 v{vWr}, 6, v{vWr}",
      f"v_bfe_u32 v{vT}, v{LANE}, 4, 1", f"v_lshl_add_u32 v{vWr}, v{vT}, 5, v{vWr}", f"v_and_b32 v{vT}, 3, v{LANE}", f"v_lshl_add_u32 v{vWr}, v{vT}, 3, v{vWr}", f"v_add_u32 v{vWr}, s83, v{vWr}")
    def wb_dma():
        L=[]
        for ii in range(4):
            L+=[f"s_add_u32 m0, s83, {ii*1024}", f"s_add_u32 s45, s82, {ii*16384}", f"buffer_load_dwordx4 v{vWs}, s[{SRD_A}:{SRD_A+3}], s45 offen lds"]
        return L+["s_add_u32 s82, s82, 65536"]
    def wb_read(r):
        L=["s_waitcnt vmcnt(0)"]
        for nl in range(4):
            for rr in range(2):
                L.append(f"ds_read_b64_tr_b16 {vr(WBF[4*r+nl]+2*rr,2)}, v{vWr} offset:{(16*nl+8*rr)*64}")
        return L+["s_waitcnt lgkmcnt(0)"]
    A(wb_dma())
    vFv=112; vFz=113; vFa=114; vFb=115
    A(f"s_lshl_b32 s34, s{sJ}, 10", f"s_lshl_b32 s35, s{sH}, 5", "s_add_u32 s34, s34, s35", f"s_lshl_b32 s35, s{sW}, 2", "s_add_u32 s34, s34, s35",
      f"s_add_u32 s35, s34, {FL+FL_F2A}", f"s_add_u32 s34, s34, {FL+FL_F2B}")
    A(f"v_mov_b32 v{vFv}, s{sNONCE}", f"v_mov_b32 v{vFz}, 0")
    A(f"v_lshrrev_b32 v{vFa}, 1, v{LANE}", f"v_lshlrev_b32 v{vFa}, 5, v{vFa}", f"v_and_b32 v{vT}, 1, v{LANE}", f"v_lshl_add_u32 v{vFa}, v{vT}, 4, v{vFa}",
      f"s_and_b32 s36, s{sI}, 3", "s_lshl_b32 s36, s36, 2", f"v_add_u32 v{vFa}, s36, v{vFa}", f"s_lshl_b32 s36, s{sX}, 10", f"s_add_u32 s36, s36, {FL+FL_F2B}")
    A("s_mov_b32 s53, 4", "s_setprio 3", "s_nop 7", "s_nop 1")
    A(".p2align 3", "A_loop:")
    A("s_cmp_eq_u32 s53, 3", "s_cbranch_scc1 A_it1", "s_cmp_eq_u32 s53, 2", "s_cbranch_scc1 A_it2", "s_cmp_eq_u32 s53, 1", "s_cbranch_scc1 A_it3", "A_body:")
    NK=8
    units=[(t,qi) for t in range(NK) for qi in range(2)]
    for u,(t,qi) in enumerate(units):
        Sc=S0 if u%2==0 else S1; Sn=S1 if u%2==0 else S0
        tn,qn=(t,1) if qi==0 else (t+1,0)
        tp,qp=(t-1,1) if qi==0 else (t,0)
        QK=[mfma32(Sn, KB_+4*(tn%2), Qr[qn], "0")]
        PV1=[mfma32(Or[qp], VB_+8*(tp%2)+4, P+4, Or[qp])]
        PV0=[mfma32(Or[qi], VB_+8*(t%2), P, Or[qi])]
        ld=[];wK=[];wV=[]
        if qi==0: ld=ldK(t+1,vKa)+ldVA(t+1,vVa); wV=["s_waitcnt lgkmcnt(3)"]
        else: wK=["s_waitcnt lgkmcnt(2)"]
        if u==8: A("s_cmp_ge_u32 s53, 3", "s_cbranch_scc1 A_mid", "A_midback:")
        unit(A,Sc,QK,PV1,ld,wK,wV,PV0)
    A(f"v_add_u32 v{vKa}, {NK*1024}, v{vKa}", f"v_add_u32 v{vVa}, v{vStep}, v{vVa}" if NOMASK else f"v_add_u32 v{vVa}, {NK*1024}, v{vVa}")
    A("s_sub_u32 s53, s53, 1", "s_cmp_lg_u32 s53, 0", "s_cbranch_scc1 A_loop")
    if 'hooksinl' in opt: A("s_branch A_after")
    with (contextlib.nullcontext() if 'hooksinl' in opt else ool(A)):
        A("A_mid:", "s_cmp_eq_u32 s53, 4", "s_cbranch_scc0 A_mid1")
        A(wb_read(0), wb_dma(), "s_branch A_midback")
        A("A_mid1:", wb_read(2), wb_dma(), "s_branch A_midback")
        A("A_it1:", "s_setprio 2", wb_read(1), "s_mov_b64 exec, 1", f"buffer_store_dword v{vFv}, v{vFz}, {W_}, s34 offen sc1", "s_mov_b64 exec, -1", wb_dma(), "s_branch A_body")
        A("A_it2:", "s_setprio 1", wb_read(3))
        if 'wbl2' in opt:
            A(f"s_cmp_lg_u32 s{sI}, 0", "s_cbranch_scc1 A_nowb", f"s_cmp_lg_u32 s{sW}, 0", "s_cbranch_scc1 A_nowb", "buffer_wbl2 sc1", "A_nowb:")
        if 'nopt3' not in opt:
            vP=116
            A(f"s_and_b32 s44, s{sI}, 3", f"s_lshr_b32 s45, s{sI}, 2", "s_lshl_b32 s46, s44, 7", f"s_lshl_b32 s47, s{sW}, 4", "s_add_u32 s46, s46, s47",
              f"v_and_b32 v{vP}, 15, v{LANE}", f"v_add_u32 v{vP}, s46, v{vP}", f"v_lshlrev_b32 v{vP}, 10, v{vP}", "s_lshl_b32 s45, s45, 7")
            A(f"s_mov_b32 s{SRD_PT}, s{pWOA}", f"s_mov_b32 s{SRD_PT+1}, s{pWOA+1}", f"s_mov_b32 s{SRD_PT+2}, {512*512*2}", f"s_mov_b32 s{SRD_PT+3}, 0x00020000",
              f"buffer_load_dword v{vP+1}, v{vP}, s[{SRD_PT}:{SRD_PT+3}], s45 offen")
            if 'ptout' in opt:
                A(f"s_lshl_b32 s46, s{sX}, 8", "s_lshl_b32 s47, s44, 6", "s_add_u32 s46, s46, s47", f"s_lshl_b32 s47, s{sW}, 3", "s_add_u32 s46, s46, s47",
                  f"v_and_b32 v{vP}, 7, v{LANE}", f"v_add_u32 v{vP}, s46, v{vP}", f"v_lshlrev_b32 v{vP}, 10, v{vP}",
                  f"s_mov_b32 s{SRD_PT}, s{pOUT}", f"s_mov_b32 s{SRD_PT+1}, s{pOUT+1}", f"s_mov_b32 s{SRD_PT+2}, {2048*512*2}", f"s_mov_b32 s{SRD_PT+3}, 0x00020000",
                  f"buffer_load_dword v{vP+2}, v{vP}, s[{SRD_PT}:{SRD_PT+3}], s45 offen")
        A("s_branch A_body")
        A("A_it3:", "s_setprio 0", f"buffer_load_dword v{vFb}, v{vFa}, {W_}, s36 offen sc1", "s_branch A_body")
    A("A_after:")
    A(mfma32(OA1, VB_+8*((NK-1)%2)+4, P+4, OA1))
    A("s_waitcnt lgkmcnt(0)", "s_nop 7", "s_nop 3")
    if 'dup' in opt: A("s_sub_u32 s54, s54, 1", "s_cmp_lg_u32 s54, 0", "s_cbranch_scc1 A_dup")
    ST.rt("a_loop")
    A(f"s_lshl_b32 s43, s{sW}, 12", f"s_add_u32 s43, s43, {LDS_KB}", f"v_add_u32 v{vT}, s43, v{vL16}",
      f"v_lshlrev_b32 v{vT2}, 2, v{LANE}", f"v_add_u32 v{vT2}, s43, v{vT2}")
    A(f"ds_write_b128 v{vT}, {vr(OA1,4)}", f"ds_write_b128 v{vT}, {vr(OA1+4,4)} offset:1024", f"ds_write_b32 v{vT2}, v{OA1+8} offset:2048")
    A(f"s_xor_b32 s44, s{sW}, 4", "s_lshl_b32 s43, s44, 12", f"s_add_u32 s43, s43, {LDS_KB}", f"v_add_u32 v{vT}, s43, v{vL16}",
      f"v_lshlrev_b32 v{vT2}, 2, v{LANE}", f"v_add_u32 v{vT2}, s43, v{vT2}")
    A("s_waitcnt lgkmcnt(0)", "s_barrier")
    A(f"ds_read_b128 {vr(S0,4)}, v{vT}", f"ds_read_b128 {vr(S0+4,4)}, v{vT} offset:1024", f"ds_read_b32 v{S0+8}, v{vT2} offset:2048")
    A("s_waitcnt lgkmcnt(0)")
    for i in range(9): A(f"v_add_f32 v{OA0+i}, v{OA0+i}, v{S0+i}")
    check_range(A,OA0,"A_slow")
    with ool(A):
        A("A_slow:")
        A("s_mov_b32 s50, 0", "s_mov_b32 s51, 0", "s_mov_b32 s52, 64")
        A(f"v_add_u32 v{vKs}, {LDS_KA}, v{vL16}", f"v_add_u32 v{vVs}, {LDS_VA}, v{VL}")
        slow_pass(A,"af1",QA0,OA0,True,50,51,52)
        slow_pass(A,"af2",QA0,OA0,False,50,51,52)
        bcast_l(A,OA0)
        A("s_branch A_ok")
    A("A_ok:")
    finalize(A,OA0,32)

def phase3(A, ST, opt):
    W_=f"s[{SRD_WS}:{SRD_WS+3}]"
    lane=LANE
    vFv=112; vFz=113; vFa=114; vFb=115
    srd(A,SRD_A,pWOA,512*512*2); srd(A,SRD_C,pOUT,2048*512*2)
    SA=f"s[{SRD_A}:{SRD_A+3}]"
    A(f"s_and_b32 s50, s{sI}, 3", f"s_lshr_b32 s51, s{sI}, 2")
    A(f"s_and_b32 s52, s{sW}, 1", f"s_bfe_u32 s53, s{sW}, 0x10001", f"s_lshr_b32 s54, s{sW}, 2")
    A(f"v_lshlrev_b32 v3, 4, v{lane}")
    A(f"s_lshl_b32 s42, s{sX}, 3", "s_lshl_b32 s43, s50, 1", "s_add_u32 s42, s42, s43", "s_lshl_b32 s55, s42, 16", f"s_add_u32 s55, s55, {OF}",
      "s_lshl_b32 s43, s53, 14", "s_lshl_b32 s44, s54, 12", "s_add_u32 s43, s43, s44",
      "s_lshl_b32 s56, s52, 15", "s_add_u32 s56, s56, s43", "s_add_u32 s56, s56, 0x10000",
      "s_lshl_b32 s57, s52, 16", "s_add_u32 s57, s57, s43", "s_add_u32 s57, s57, s55")
    def odma(br):
        L=[]
        for r in range(2):
            for ii in range(4):
                L+= [f"s_add_u32 m0, s56, {r*8192+ii*1024}", f"s_add_u32 s45, s57, {br*32768+r*8192+ii*1024}", f"buffer_load_dwordx4 v3, {W_}, s45 offen sc1 lds"]
        return L
    A("s_waitcnt vmcnt(1)", f"s_mov_b32 s46, {SPIN_MAX}")
    A("P3_bchk:", f"v_cmp_ne_u32 vcc, s{sNONCE}, v{vFb}", "s_nop 1", "s_cmp_eq_u64 vcc, 0", "s_cbranch_scc1 P3_bok",
      "s_sub_u32 s46, s46, 1", "s_cmp_eq_u32 s46, 0", "s_cbranch_scc1 P3_bok", "s_sleep 1",
      f"buffer_load_dword v{vFb}, v{vFa}, {W_}, s36 offen sc1", "s_waitcnt vmcnt(0)", "s_branch P3_bchk", "P3_bok:")
    A("s_barrier")
    A(odma(1))
    A("s_waitcnt vmcnt(8)")
    A("s_mov_b64 exec, 1", f"buffer_store_dword v{vFv}, v{vFz}, {W_}, s35 offen sc1", "s_mov_b64 exec, -1")
    ST.rt("o_stored")
    A(f"v_and_b32 v12, 31, v{lane}", f"s_lshl_b32 s44, s{sX}, 8", "s_lshl_b32 s45, s50, 6", "s_add_u32 s44, s44, s45", "s_lshl_b32 s45, s52, 5", "s_add_u32 s44, s44, s45",
      "v_add_u32 v12, s44, v12", "v_lshlrev_b32 v13, 2, v12", f"s_mov_b32 s45, {GOFF}", f"buffer_load_dword v14, v13, {W_}, s45 offen sc1")
    vW=4
    w_src_addr(A, vW, 5, 6, 7, lane, 51, 42)
    A(f"s_lshl_b32 s58, s{sW}, 13", f"s_lshl_b32 s59, s{sW}, 16")
    for ii in range(8):
        A(f"s_add_u32 m0, s58, {ii*1024}", f"s_add_u32 s45, s59, {ii*8192}", f"buffer_load_dwordx4 v{vW}, {SA}, s45 offen lds")
    w_frag_addr(A, 9, 6, 7, lane, 53, 42)
    A(f"v_lshrrev_b32 v8, 5, v{lane}", "s_lshl_b32 s42, s54, 15", "v_add_u32 v9, s42, v9")
    A("s_lshl_b32 s43, s52, 15", "s_lshl_b32 s44, s54, 14", "s_add_u32 s43, s43, s44", "s_add_u32 s43, s43, 0x10000", "v_add_u32 v11, s43, v3")
    ACA=16; ACB=48; OFr=[64,68,72,76]; WA=128
    for i in range(16): A(f"v_mov_b32 v{ACB+i}, 0", f"v_mov_b32 v{ACA+i}, 0")
    A("s_waitcnt vmcnt(10)", "s_barrier")
    ST.rt("w_landed")
    for n in range(4): A(f"ds_read_b128 {vr(OFr[n],4)}, v11 offset:{n*1024}")
    for n in range(16):
        A(f"s_waitcnt lgkmcnt({min(3,15-n)})")
        A(mfma32(ACB, WBF[n], OFr[n%4], ACB))
        if n+4<16: A(f"ds_read_b128 {vr(OFr[n%4],4)}, v11 offset:{(n+4)*1024}")
    ST.rt("b_half")
    A(f"s_add_u32 s36, s36, {FL_F2A-FL_F2B}")
    A(f"s_cmp_lg_u32 s{sW}, 0", "s_cbranch_scc1 P3_askip", f"s_mov_b32 s46, {SPIN_MAX}")
    A("P3_achk:", f"buffer_load_dword v{vFb}, v{vFa}, {W_}, s36 offen sc1", "s_waitcnt vmcnt(0)",
      f"v_cmp_ne_u32 vcc, s{sNONCE}, v{vFb}", "s_nop 1", "s_cmp_eq_u64 vcc, 0", "s_cbranch_scc1 P3_askip",
      "s_sub_u32 s46, s46, 1", "s_cmp_eq_u32 s46, 0", "s_cbranch_scc1 P3_askip", "s_branch P3_achk", "P3_askip:")
    A("s_waitcnt vmcnt(0)", "s_barrier")
    ST.rt("p2_flags")
    A(odma(0))
    A("s_cmp_lg_u32 s2, 0", "s_cbranch_scc1 P3_noep", f"s_mov_b32 s43, {FL+FL_EPOCH}")
    setflag(A,"ep",43,5)
    A("P3_noep:")
    for n in range(16):
        A(wrd2(WA+4*n,9,n))
        if n%4==3: A("s_waitcnt lgkmcnt(4)")
    for r in range(2):
        A(f"s_waitcnt vmcnt({4-4*r}) lgkmcnt(0)", "s_barrier")
        for s_ in range(4): A(f"ds_read_b128 {vr(OFr[s_],4)}, v11 offset:{(8*r+s_)*1024}")
        for s_ in range(8):
            n=8*r+s_
            A(f"s_waitcnt lgkmcnt({3 if s_<5 else 7-s_})")
            A(mfma32(ACA, WA+4*n, OFr[s_%4], ACA))
            if s_<4: A(f"ds_read_b128 {vr(OFr[s_%4],4)}, v11 offset:{(8*r+s_+4)*1024}")
    ST.rt("p3_mfma")
    A("s_nop 7","s_nop 3")
    for i in range(16): A(f"v_sub_f32 v{ACA+i}, v{ACA+i}, v{ACB+i}")
    for i in range(16): A(f"v_fma_f32 v{ACA+i}, v14, v{ACA+i}, v{ACB+i}")
    ACC=ACA
    A(f"s_lshl_b32 s43, s{sW}, 11", "v_add_u32 v5, s43, v3", f"s_xor_b32 s44, s{sW}, 4", "s_lshl_b32 s44, s44, 11", "v_add_u32 v6, s44, v3")
    PK=40
    A("s_cmp_eq_u32 s54, 0", "s_cbranch_scc0 P3_k1")
    for kq,lab in ((0,None),(1,"P3_k1")):
        if lab: A("s_branch P3_kdone", f"{lab}:")
        own=ACC+8*kq; oth=ACC+8*(1-kq)
        A(f"ds_write_b128 v5, {vr(oth,4)}", f"ds_write_b128 v5, {vr(oth+4,4)} offset:1024", "s_waitcnt lgkmcnt(0)", "s_barrier")
        A(f"ds_read_b128 {vr(32,4)}, v6", f"ds_read_b128 {vr(36,4)}, v6 offset:1024", "s_waitcnt lgkmcnt(0)")
        for i in range(8): A(f"v_add_f32 v{own+i}, v{own+i}, v{32+i}")
        for i in range(4): A(f"v_cvt_pk_bf16_f32 v{PK+i}, v{own+2*i}, v{own+2*i+1}")
    A("P3_kdone:")
    A("s_nop 1", f"v_permlane32_swap_b32 v{PK}, v{PK+2}", f"v_permlane32_swap_b32 v{PK+1}, v{PK+3}")
    A("v_lshlrev_b32 v5, 10, v12", "v_lshl_add_u32 v5, v8, 4, v5",
      "s_lshl_b32 s42, s51, 7", "s_lshl_b32 s43, s53, 6", "s_add_u32 s42, s42, s43", "s_lshl_b32 s43, s54, 5", "s_add_u32 s42, s42, s43")
    A(f"buffer_store_dwordx4 {vr(PK,4)}, v5, s[{SRD_C}:{SRD_C+3}], s42 offen" + (" sc1" if 'outsc1' in opt else "") + (" nt" if 'outnt' in opt else ""))

def gen(opt=()):
    A=Asm(); ST=Stamps(A,'stamps' in opt)
    pr=[o[6:] for o in opt if o.startswith('probe=')]
    if pr: ST.probe=pr[0]
    cy=[o[4:] for o in opt if o.startswith('cyc=')]
    if cy: ST.cp=cy[0].split(':')
    A(f".globl {NAME}", ".p2align 8", f".type {NAME},@function", f"{NAME}:")
    if pr: A("s_memrealtime s[100:101]")
    A("s_cmp_ge_u32 s2, 256", "s_cbranch_scc1 L_done")
    if 'scramble' in opt: A("s_lshr_b32 s3, s2, 3", "s_and_b32 s2, s2, 7", "s_lshl_b32 s2, s2, 5", "s_or_b32 s2, s2, s3")
    A(f"s_load_dwordx2 s[{sWS}:{sWS+1}], s[0:1], 72", "s_load_dwordx2 s[42:43], s[0:1], 0", "s_load_dwordx2 s[44:45], s[0:1], 8",
      "s_load_dwordx2 s[46:47], s[0:1], 32", "s_load_dwordx2 s[48:49], s[0:1], 48",
      f"s_load_dwordx2 s[{pWOA}:{pWOA+1}], s[0:1], 16", f"s_load_dwordx2 s[{pWOB}:{pWOB+1}], s[0:1], 40", f"s_load_dwordx2 s[{pOUT}:{pOUT+1}], s[0:1], 56")
    rot=[int(o[3:]) for o in opt if o.startswith('rot')]
    if rot: A(f"s_add_u32 s{sX}, s2, {rot[0]}", f"s_and_b32 s{sX}, s{sX}, 7")
    else: A(f"s_and_b32 s{sX}, s2, 7")
    A(f"s_lshr_b32 s{sI}, s2, 3", f"s_lshr_b32 s{sJ}, s{sI}, 2", f"s_and_b32 s{sA}, s{sI}, 3",
      f"s_lshr_b32 s{sBR}, s{sA}, 1", f"s_and_b32 s50, s{sA}, 1", f"s_lshl_b32 s{sRB}, s{sJ}, 1", f"s_add_u32 s{sRB}, s{sRB}, s50",
      f"s_lshl_b32 s{sH}, s{sX}, 2", f"s_add_u32 s{sH}, s{sH}, s{sA}")
    A("v_lshrrev_b32 v1, 6, v0", "v_and_b32 v2, 63, v0", "s_nop 0", f"v_readfirstlane_b32 s{sW}, v1")
    if 'epf' in opt:
        A(f"s_cmp_ge_u32 s{sW}, 3", "s_cbranch_scc1 L_noepf", "s_getpc_b64 s[50:51]", "L_epf_pc:", f"s_lshl_b32 s52, s{sW}, 13", "v_lshlrev_b32 v241, 7, v2", "v_add_u32 v241, s52, v241",
          "v_min_u32 v241, (L_done-L_epf_pc), v241", "global_load_dword v240, v241, s[50:51]", "L_noepf:")
    if 'pf' in opt:
        A("s_getpc_b64 s[50:51]", "L_pc:", f"s_sub_u32 s50, s50, (L_pc-{NAME})", "s_subb_u32 s51, s51, 0")
        A(f"s_lshl_b32 s52, s{sI}, 1", f"s_add_u32 s52, s52, s{sW}", "s_lshl_b32 s52, s52, 10", "v_lshlrev_b32 v3, 4, v2", "v_add_u32 v3, s52, v3")
        A(f"s_cmp_lt_u32 s{sW}, 2", "s_cbranch_scc0 L_nopf", f"s_cmp_lt_u32 s52, (L_done-{NAME}-1024)", "s_cbranch_scc0 L_nopf",
          "global_load_dwordx4 v[252:255], v3, s[50:51]", "L_nopf:")
    if 'spin60' in opt: A("s_memrealtime s[90:91]")
    A("s_waitcnt lgkmcnt(0)")
    wb=[int(o[2:]) for o in opt if o.startswith('wb') and o[2:].isdigit()]
    if wb: A(f"s_add_u32 s{sWS}, s{sWS}, {wb[0]<<20}", f"s_addc_u32 s{sWS+1}, s{sWS+1}, 0")
    ST.rt("start"); ST.cyc("cyc0")
    A(f"s_add_u32 s6, s{sWS}, {FL+FL_EPOCH}", f"s_addc_u32 s7, s{sWS+1}, 0", "s_load_dword s3, s[6:7], 0")
    srd(A,SRD_WS,sWS,WS_SIZE)
    srd(A,SRD_A,42,2048*512*2)
    A(f"s_cmp_eq_u32 s{sBR}, 0", "s_cselect_b32 s44, s44, s46", "s_cselect_b32 s45, s45, s47")
    srd(A,SRD_B,44,512*1536*2)
    srd(A,SRD_C,48,1024)
    phase1(A,ST,opt)
    phase2(A,ST,opt)
    phase3(A,ST,opt)
    if pr:
        A("s_waitcnt vmcnt(0)", "L_probe:", "s_memrealtime s[80:81]", "s_waitcnt lgkmcnt(0)", "s_sub_u32 s80, s80, s100", *(["s_lshr_b32 s81, s63, 2", "s_add_u32 s81, s81, 6000", "s_cmp_lt_u32 s80, s81"] if cy else ["s_cmp_lt_u32 s80, 6000"]), "s_cbranch_scc1 L_probe")
    if 'spin60' in opt:
        A("s_waitcnt vmcnt(0)", "L_spin:", "s_memrealtime s[80:81]", "s_waitcnt lgkmcnt(0)", "s_sub_u32 s80, s80, s90", "s_cmp_lt_u32 s80, 6000", "s_cbranch_scc1 L_spin")
    if ST.on: A("s_waitcnt vmcnt(0)")
    ST.rt("end"); ST.cyc("cyc1")
    ST.flush(120)
    A("s_endpgm")
    A.L+=getattr(A,'T',[])
    A("L_done:", "s_endpgm")
    kd=f""".section .rodata,"a"
.p2align 6
.amdhsa_kernel {NAME}
  .amdhsa_next_free_vgpr 256
  .amdhsa_next_free_sgpr 102
  .amdhsa_accum_offset 256
  .amdhsa_group_segment_fixed_size 0
  .amdhsa_kernarg_size 80
  .amdhsa_user_sgpr_count 2
  .amdhsa_user_sgpr_kernarg_segment_ptr 1
  .amdhsa_system_sgpr_workgroup_id_x 1
.end_amdhsa_kernel
"""
    return A.text(), kd, ST.names

if __name__=='__main__':
    import sys, hazard
    out=sys.argv[1]; opt=tuple(sys.argv[2:])
    HDR=open('gated_mix__softmax_full_mha__sliding_block__prompt.s.ref').read().split('\n')
    hdr=[l for l in HDR if l.startswith(';') and '@launch' not in l and 'Override' not in l and 'grid=ceil' not in l]
    t,kd,names=gen(opt)
    DOC = """;
; One persistent launch, 256 workgroups x 512 threads (one per CU, all co-resident), three phases with flag hand-offs in d_ws:
;      [2^-64, 2^64] and all sums finite), and a wave that fails the check recomputes its tile with the true row maximum (two passes).
; Hand-offs: words in d_ws are tagged with a per-launch value derived from the word the previous launch left behind (any content works).
;  otherwise, and for everything that crosses groups, stores are write-through (sc1) and loads are sc1.
"""
    s='\n'.join(hdr)+'\n'+DOC+"; @launch grid=(256,1,1) block=(512,1,1) lds=163840\n"+'.amdgcn_target "amdgcn-amd-amdhsa--gfx950"\n.text\n'+t+kd
    open(out,'w').write(s)
    print('hazards',len(hazard.check(t)),'bytes',len(s),'stamps',','.join(names))
    sys.path.insert(0,'cdna_kernels')
    import subprocess
    from cdna_launch import with_harness_metadata, address_register_problem
    open('h.s','w').write(with_harness_metadata(s,NAME,10,launch_lists=True))
    r=subprocess.run(['clang','-x','assembler','-target','amdgcn-amd-amdhsa','-mcpu=gfx950','h.s','-o','h.co'],capture_output=True,text=True)
    if r.returncode: print(r.stderr)
    else:
        print('check:',address_register_problem('h.co',NAME))
        d=subprocess.run(['llvm-objdump','-d','--mcpu=gfx950','h.co'],capture_output=True,text=True).stdout
        import re
        ad=[int(m,16) for m in re.findall(r'// ([0-9A-F]{12}):',d)]
        print('code bytes',ad[-1]-ad[0]-768)
```
